```python
import torch

def _softmax(x, axis=-1):
    return torch.softmax(x, dim=axis)

def _gelu(x):
    return torch.nn.functional.gelu(x, approximate='tanh')

def _silu(x):
    return torch.nn.functional.silu(x)

def _sigmoid(x):
    return torch.sigmoid(x)

def _layernorm(x, axis=-1, eps=1e-05):
    m = x.mean(dim=axis, keepdim=True)
    v = x.var(dim=axis, keepdim=True, unbiased=False)
    return (x - m) / torch.sqrt(v + eps)

def _scatter_add(tgt, idx, src, axis=0):
    return tgt.clone().index_add_(axis, idx, src)

def _segment_sum(src, seg, n):
    out = torch.zeros((n,) + src.shape[1:], dtype=src.dtype)
    return out.index_add_(0, seg, src)

def _pad(x, pw):
    flat = tuple((v for pair in reversed(pw) for v in pair))
    return torch.nn.functional.pad(x, flat)
kernel_name = 'standalone__video_timesformer__vision'

def setup_inputs():

    _w = lambda a: (lambda t: t.to(torch.bfloat16) if t.is_floating_point() else t)(torch.as_tensor(a))
    T = 8
    p = 16
    HW = 256 // p * p
    N = (HW // p) ** 2
    C = 384
    return {'x': _w((lambda *s: torch.randn(*s, dtype=torch.bfloat16) * 0.05)(1, T, N, C)), 'wqkv_t': _w((lambda *s: torch.randn(*s, dtype=torch.bfloat16) * 0.05)(C, 3 * C)), 'wo_t': _w((lambda *s: torch.randn(*s, dtype=torch.bfloat16) * 0.05)(C, C)), 'wqkv_s': _w((lambda *s: torch.randn(*s, dtype=torch.bfloat16) * 0.05)(C, 3 * C)), 'wo_s': _w((lambda *s: torch.randn(*s, dtype=torch.bfloat16) * 0.05)(C, C))}

def reference(x, wqkv_t, wo_t, wqkv_s, wo_s):
    B, T, N, C = x.shape
    scale = C ** (-0.5)
    xt = (lambda x, *d: x.permute(*d))(x, 0, 2, 1, 3).reshape(B * N, T, C)
    h = _layernorm(xt, axis=-1)
    qkv = h @ wqkv_t
    q, k, v = (qkv[..., :C].clone(), qkv[..., C:2 * C].clone(), qkv[..., 2 * C:].clone())
    a = _softmax(torch.einsum('btc,bsc->bts', q, k) * scale, axis=-1)
    xt = xt + torch.einsum('bts,bsc->btc', a, v) @ wo_t
    x1 = (lambda x, *d: x.permute(*d))(xt.reshape(B, N, T, C), 0, 2, 1, 3)
    xs = x1.reshape(B * T, N, C)
    h = _layernorm(xs, axis=-1)
    qkv = h @ wqkv_s
    q, k, v = (qkv[..., :C].clone(), qkv[..., C:2 * C].clone(), qkv[..., 2 * C:].clone())
    a = _softmax(torch.einsum('bnc,bmc->bnm', q, k) * scale, axis=-1)
    xs = xs + torch.einsum('bnm,bmc->bnc', a, v) @ wo_s
    return xs.reshape(B, T, N, C)
```

```python
import sys, math

KNAME = "standalone__video_timesformer__vision_kernel"

WS_NONCE = 0
WS_FXCC = 0x1000
WS_FP = 0x9000
WS_FX = 0xD000
WS_F2A = 0x13000
WS_F2B = 0x1B000
WS_SPA = 0x24000
WS_SPB = 0x84000
WS_WVOT = 0xE4000
WS_WS2 = 0x12C000
WS_X1 = 0x1BC000
WS_RA = 0x33C000
R_QP = 0
R_VP = 0x180000
R_SQ = 0x300000
R_ST = 0x308000
R_SIZE = 0x318000
WS_RB = WS_RA + R_SIZE
WS_STAMP = WS_RB + R_SIZE
WS_SIZE = WS_STAMP + 256 * 256

L_W = 0
L_WVO = 98304
L_CT0 = 147456
L_CT1 = L_CT0 + 1024
L_CT2 = L_CT1 + 512
L_ML = L_CT2 + 1024
LDS_SIZE = L_ML + 1024

SPIN_LIMIT = 40000
SCALE_LOG2E = (384 ** -0.5) * math.log2(math.e)


def f2u(x):
    import struct
    return struct.unpack("<I", struct.pack("<f", x))[0]


class G:
    def __init__(self, stamps=False, opts=None):
        self.L = []
        self.stamps = stamps
        self.nstamp = 0
        self.uid = 0
        self.opts = opts or {}

    def __call__(self, s):
        for line in s.split("\n"):
            line = line.strip()
            if line:
                self.L.append("    " + line if not line.endswith(":") else line)

    def label(self, p):
        self.uid += 1
        return f"L_{p}_{self.uid}"

    def nop(self, n):
        while n > 0:
            k = min(n, 16)
            self(f"s_nop {k-1}")
            n -= k

    def stamp(self, idx):
        if self.stamps:
            self(f"s_memtime s[{S_STAMP+2*idx}:{S_STAMP+2*idx+1}]")
            self("s_waitcnt lgkmcnt(0)")


def v(a, n=1):
    return f"v{a}" if n == 1 else f"v[{a}:{a+n-1}]"


def a(x, n=1):
    return f"a{x}" if n == 1 else f"a[{x}:{x+n-1}]"


def s(x, n=1):
    return f"s{x}" if n == 1 else f"s[{x}:{x+n-1}]"


S_X, S_WQT, S_WOT, S_WQS, S_WOS, S_OUT, S_DBG, S_WS = 4, 6, 8, 10, 12, 14, 16, 18
S_G8, S_J, S_W, S_NONCE, S_ME = 20, 21, 22, 23, 24
S_RB, S_CB = 25, 26
S_T0, S_T1, S_T2, S_T3 = 27, 28, 29, 30
S_SPIN = 31
SRD_WS = 32
SRD_A = 36
SRD_B = 40
SRD_OUT = 44
S_VALID = 48
S_G0 = 50
S_TAG = 52
S_M = 56
S_ONES = 58
S_RQ = 59
S_CS = 60
S_REG = 61
S_FAST1 = 62
S_FAST3 = 63
S_T4, S_T5, S_T6, S_T7 = 64, 65, 66, 67
S_FB = 3
S_STAMP = 68

V_TID, V_L, V_I, V_G = 0, 1, 2, 3
V_T0, V_T1, V_T2, V_T3, V_T4, V_T5, V_T6, V_T7 = 4, 5, 6, 7, 8, 9, 10, 11
V_ONES = 12
V_XF = 16
V_MU = 64
V_R = 66
V_MEAN = 67
V_L16 = 68
V_MASK = 69
V_S1A, V_S1B, V_S2A, V_S2B = 70, 71, 72, 73
V_AD = 74
V_BUF = 80
V_ACC = 144
V_MISC = 192


def row_stats_dots(g, lo, hi):
    for r in range(lo, hi):
        g(f"v_dot2c_f32_bf16 {v(V_S1A + (r & 1))}, {s(S_ONES)}, {v(V_XF + r)}")
        g(f"v_dot2c_f32_bf16 {v(V_S2A + (r & 1))}, {v(V_XF + r)}, {v(V_XF + r)}")


def xlane_sum(g, r, t, op="v_add_f32"):
    g(f"v_mov_b32 {v(t)}, {v(r)}")
    g.nop(2)
    g(f"v_permlane16_swap_b32 {v(r)}, {v(t)}")
    g.nop(1)
    g(f"{op} {v(r)}, {v(r)}, {v(t)}")
    g(f"v_mov_b32 {v(t)}, {v(r)}")
    g.nop(2)
    g(f"v_permlane32_swap_b32 {v(r)}, {v(t)}")
    g.nop(1)
    g(f"{op} {v(r)}, {v(r)}, {v(t)}")


def row_stats_finish(g):
    g.nop(3)
    g(f"v_add_f32 {v(V_S1A)}, {v(V_S1A)}, {v(V_S1B)}")
    g(f"v_add_f32 {v(V_S2A)}, {v(V_S2A)}, {v(V_S2B)}")
    xlane_sum(g, V_S1A, V_T0)
    xlane_sum(g, V_S2A, V_T1)
    g(f"""
    v_mul_f32 {v(V_MEAN)}, {f2u(1/384.):#x}, {v(V_S1A)}
    v_mul_f32 {v(V_T0)}, {f2u(1/384.):#x}, {v(V_S2A)}
    v_fma_f32 {v(V_T0)}, -{v(V_MEAN)}, {v(V_MEAN)}, {v(V_T0)}
    v_max_f32 {v(V_T0)}, 0, {v(V_T0)}
    v_add_f32 {v(V_T0)}, {f2u(1e-5):#x}, {v(V_T0)}
    v_rsq_f32 {v(V_R)}, {v(V_T0)}
    v_cvt_pk_bf16_f32 {v(V_T1)}, -{v(V_MEAN)}, -{v(V_MEAN)}
    v_lshlrev_b32 {v(V_T1)}, 16, {v(V_T1)}
    v_sub_f32 {v(V_T1)}, -{v(V_MEAN)}, {v(V_T1)}
    v_cvt_pk_bf16_f32 {v(V_T1)}, -{v(V_MEAN)}, {v(V_T1)}
    v_cndmask_b32 {v(V_MU)}, 0, {v(V_T1)}, {s(S_G0,2)}
    v_cndmask_b32 {v(V_MU+1)}, 0, {v(V_T1)}, {s(S_G0,2)}
    """)


def colsum_pack(g, src, dst):
    g(f"""
    v_cvt_pk_bf16_f32 {v(dst)}, {v(src)}, {v(src)}
    v_lshlrev_b32 {v(dst+1)}, 16, {v(dst)}
    v_sub_f32 {v(dst+1)}, {v(src)}, {v(dst+1)}
    v_cvt_pk_bf16_f32 {v(dst+1)}, {v(dst+1)}, {v(dst+1)}
    """)


def poll(g, voff, soff, want, name):
    lp, done = g.label(name), g.label(name + "_ok")
    g(f"s_mov_b32 {s(S_SPIN)}, {SPIN_LIMIT}")
    g(f"{lp}:")
    g(f"""
    buffer_load_dword {v(V_T7)}, {v(voff)}, {s(SRD_WS,4)}, {soff} offen sc1
    s_waitcnt vmcnt(0)
    v_cmp_ne_u32 vcc, {want}, {v(V_T7)}
    s_cbranch_vccz {done}
    s_sub_u32 {s(S_SPIN)}, {s(S_SPIN)}, 1
    s_cbranch_scc0 {lp}
    {done}:
    """)


def mfma32(g, d, A, B, c=None):
    g(f"v_mfma_f32_16x16x32_bf16 {d}, {A}, {B}, {c if c is not None else d}")


def mfma16(g, d, A, B, c=None):
    g(f"v_mfma_f32_16x16x16_bf16 {d}, {A}, {B}, {c if c is not None else d}")


def pipelined(g, items, depth_reads):
    n = len(items)
    issued = 0
    cum = [0]
    for rd, _ in items:
        cum.append(cum[-1] + len(rd))
    for i in range(n):
        while issued < n and (issued <= i or cum[issued + 1] - cum[i] <= depth_reads):
            for r in items[issued][0]:
                g(r)
            issued += 1
        g(f"s_waitcnt lgkmcnt({cum[issued] - cum[i + 1]})")
        for c in items[i][1]:
            g(c)


def prologue(g):
    g(f"""
    s_cmp_ge_u32 s2, 256
    s_cbranch_scc1 L_end
    s_load_dwordx16 s[4:19], s[0:1], 0
    """)
    if g.stamps:
        g(f"s_memrealtime s[{S_STAMP}:{S_STAMP+1}]")
        g(f"s_memtime s[{S_STAMP+2}:{S_STAMP+3}]")
    g(f"""
    s_and_b32 {s(S_G8)}, s2, 7
    s_lshr_b32 {s(S_J)}, s2, 3
    v_lshrrev_b32 {v(V_T0)}, 6, v0
    v_and_b32 {v(V_L)}, 63, v0
    v_readfirstlane_b32 {s(S_W)}, {v(V_T0)}
    v_and_b32 {v(V_I)}, 15, v0
    v_bfe_u32 {v(V_G)}, v0, 4, 2
    v_lshlrev_b32 {v(V_L16)}, 4, {v(V_L)}
    s_mov_b32 {s(S_ONES)}, 0x3f803f80
    s_getreg_b32 {s(S_ME)}, hwreg(HW_REG_XCC_ID, 0, 3)
    s_lshr_b32 {s(S_RQ)}, {s(S_J)}, 3
    s_and_b32 {s(S_CS)}, {s(S_J)}, 7
    s_lshl_b32 {s(S_RB)}, {s(S_RQ)}, 3
    s_add_u32 {s(S_RB)}, {s(S_RB)}, {s(S_G8)}
    s_mov_b32 {s(S_CB)}, {s(S_CS)}
    s_waitcnt lgkmcnt(0)
    s_load_dword {s(S_NONCE)}, {s(S_WS,2)}, {WS_NONCE}
    s_mov_b32 {s(SRD_WS)}, {s(S_WS)}
    s_mov_b32 {s(SRD_WS+1)}, {s(S_WS+1)}
    s_mov_b32 {s(SRD_WS+2)}, {WS_SIZE}
    s_mov_b32 {s(SRD_WS+3)}, 0x20000
    s_mov_b32 {s(SRD_OUT)}, {s(S_OUT)}
    s_mov_b32 {s(SRD_OUT+1)}, {s(S_OUT+1)}
    s_mov_b32 {s(SRD_OUT+2)}, 1572864
    s_mov_b32 {s(SRD_OUT+3)}, 0x20000
    s_mov_b32 {s(SRD_A+3)}, 0x20000
    s_mov_b32 {s(SRD_B+3)}, 0x20000
    """)
    if g.opts.get("codepf", 1):
        g(f"""
        s_getpc_b64 {s(S_M,2)}
        L_pc0:
        s_lshl_b32 {s(S_T0)}, {s(S_J)}, 2
        s_add_u32 {s(S_T0)}, {s(S_T0)}, {s(S_W)}
        s_and_b32 {s(S_T0)}, {s(S_T0)}, 31
        s_lshl_b32 {s(S_T0)}, {s(S_T0)}, 10
        s_min_u32 {s(S_T0)}, {s(S_T0)}, L_code_end-L_pc0-1024
        v_add_u32 {v(V_T0)}, {s(S_T0)}, {v(V_L16)}
        global_load_dwordx4 {v(V_MISC+60,4)}, {v(V_T0)}, {s(S_M,2)}
        """)


def common_consts(g):
    g(f"""
    v_mov_b32 {v(V_ONES)}, {s(S_ONES)}
    v_mov_b32 {v(V_ONES+1)}, {s(S_ONES)}
    v_mov_b32 {v(V_ONES+2)}, {s(S_ONES)}
    v_mov_b32 {v(V_ONES+3)}, {s(S_ONES)}
    v_mov_b32 {v(V_MASK)}, 0xffffff00
    v_cmp_eq_u32 {s(S_G0,2)}, 0, {v(V_G)}
    v_lshrrev_b32 {v(V_T0)}, 1, {v(V_G)}
    v_lshrrev_b32 {v(V_T1)}, 3, {v(V_I)}
    v_cmp_eq_u32 {s(S_VALID,2)}, {v(V_T0)}, {v(V_T1)}
    s_waitcnt lgkmcnt(0)
    s_and_b32 {s(S_T0)}, {s(S_NONCE)}, 0x78787878
    s_add_u32 {s(S_T0)}, {s(S_T0)}, 0x08080808
    s_and_b32 {s(S_T1)}, {s(S_NONCE)}, 0x80808080
    s_xor_b32 {s(S_NONCE)}, {s(S_T0)}, {s(S_T1)}
    s_or_b32 {s(S_ME)}, {s(S_ME)}, {s(S_NONCE)}
    s_mov_b32 {s(S_TAG)}, {s(S_NONCE)}
    s_lshr_b32 {s(S_TAG+1)}, {s(S_NONCE)}, 8
    s_lshr_b32 {s(S_TAG+2)}, {s(S_NONCE)}, 16
    s_lshr_b32 {s(S_TAG+3)}, {s(S_NONCE)}, 24
    """)


def publish_xcc(g):
    g(f"""
    s_lshl_b32 {s(S_T0)}, s2, 7
    s_add_u32 {s(S_T0)}, {s(S_T0)}, {WS_FXCC}
    v_mov_b32 {v(V_T0)}, {s(S_ME)}
    v_mov_b32 {v(V_T1)}, 0
    s_mov_b64 exec, 1
    buffer_store_dword {v(V_T0)}, {v(V_T1)}, {s(SRD_WS,4)}, {s(S_T0)} offen sc1
    s_mov_b64 exec, -1
    """)


def flag_store(g, soff, sc1=True):
    sk = g.label("nofl")
    g(f"""
    s_cmp_lg_u32 {s(S_W)}, 0
    s_cbranch_scc1 {sk}
    v_mov_b32 {v(V_T0)}, {s(S_NONCE)}
    v_mov_b32 {v(V_T1)}, 0
    s_mov_b64 exec, 1
    buffer_store_dword {v(V_T0)}, {v(V_T1)}, {s(SRD_WS,4)}, {soff} offen{' sc1' if sc1 else ''}
    s_mov_b64 exec, -1
    {sk}:
    """)


def wave_flag(g, soff, sc1):
    g(f"""
    v_mov_b32 {v(V_T0)}, {s(S_NONCE)}
    v_mov_b32 {v(V_T1)}, 0
    s_mov_b64 exec, 1
    buffer_store_dword {v(V_T0)}, {v(V_T1)}, {s(SRD_WS,4)}, {soff} offen{' sc1' if sc1 else ''}
    s_mov_b64 exec, -1
    """)


def tr_addr(g, rot):
    pass


def p0_main(g):
    XR = V_MISC
    VW = V_MISC + 8
    ACCQ, ACCK = V_ACC, V_ACC + 16
    CSQ, CSK = V_ACC + 32, V_ACC + 36
    g(f"""
    s_mov_b32 {s(SRD_A)}, {s(S_X)}
    s_mov_b32 {s(SRD_A+1)}, {s(S_X+1)}
    s_mov_b32 {s(SRD_A+2)}, 1572864
    v_and_b32 {v(V_T0)}, 7, {v(V_I)}
    v_mul_u32_u24 {v(V_T0)}, 196608, {v(V_T0)}
    v_lshrrev_b32 {v(V_T1)}, 3, {v(V_I)}
    v_mul_u32_u24 {v(V_T1)}, 768, {v(V_T1)}
    v_lshlrev_b32 {v(V_T2)}, 4, {v(V_G)}
    v_add3_u32 {v(V_T0)}, {v(V_T0)}, {v(V_T1)}, {v(V_T2)}
    s_lshl_b32 {s(S_T0)}, {s(S_RB)}, 2
    s_add_u32 {s(S_T0)}, {s(S_T0)}, {s(S_W)}
    s_mul_i32 {s(S_T0)}, {s(S_T0)}, 1536
    s_lshl_b32 {s(S_T1)}, {s(S_CB)}, 7
    s_add_u32 {s(S_T2)}, {s(S_T0)}, {s(S_T1)}
    """)
    for ks in range(12):
        g(f"buffer_load_dwordx4 {v(V_XF+4*ks,4)}, {v(V_T0)}, {s(SRD_A,4)}, {s(S_T0)} offen offset:{ks*64}")
    for m in range(2):
        g(f"buffer_load_dwordx4 {v(XR+4*m,4)}, {v(V_T0)}, {s(SRD_A,4)}, {s(S_T2)} offen offset:{m*64}")
    g(f"""
    s_sub_u32 {s(SRD_B)}, {s(S_WQT)}, 4096
    s_subb_u32 {s(SRD_B+1)}, {s(S_WQT+1)}, 0
    s_mov_b32 {s(SRD_B+2)}, {884736+4096}
    v_lshrrev_b32 {v(V_T1)}, 3, {v(V_L)}
    v_mul_u32_u24 {v(V_T2)}, 2304, {v(V_T1)}
    v_and_b32 {v(V_T1)}, 2, {v(V_T1)}
    v_and_b32 {v(V_T3)}, 7, {v(V_L)}
    v_xor_b32 {v(V_T3)}, {v(V_T3)}, {v(V_T1)}
    v_lshl_add_u32 {v(V_T2)}, {v(V_T3)}, 4, {v(V_T2)}
    v_add_u32 {v(VW)}, 4096, {v(V_T2)}
    v_xor_b32 {v(V_T3)}, 64, {v(V_T2)}
    v_add_u32 {v(VW+1)}, {4096+18432-1024}, {v(V_T3)}
    v_add_u32 {v(VW+2)}, {4096+768-2048}, {v(V_T2)}
    v_add_u32 {v(VW+3)}, {4096+18432+768-3072}, {v(V_T3)}
    s_mul_i32 {s(S_T0)}, {s(S_W)}, {2*18432}
    s_add_u32 {s(S_T0)}, {s(S_T0)}, {s(S_T1)}
    s_lshl_b32 {s(S_T1)}, {s(S_W)}, 12
    s_mov_b32 m0, {s(S_T1)}
    s_mov_b32 {s(S_T2)}, 6
    L_p0_dma:
    """)
    for q in range(4):
        g(f"buffer_load_dwordx4 {v(VW+q)}, {s(SRD_B,4)}, {s(S_T0)} offen offset:{q*1024} lds")
    g(f"""
    s_add_u32 m0, m0, 16384
    s_add_u32 {s(S_T0)}, {s(S_T0)}, {8*18432}
    s_sub_u32 {s(S_T2)}, {s(S_T2)}, 1
    s_cmp_lg_u32 {s(S_T2)}, 0
    s_cbranch_scc1 L_p0_dma
    """)
    common_consts(g)
    publish_xcc(g)
    g(f"""
    v_lshrrev_b32 {v(V_T0)}, 1, {v(V_G)}
    v_lshlrev_b32 {v(V_T0)}, 12, {v(V_T0)}
    v_and_b32 {v(V_T1)}, 1, {v(V_G)}
    v_lshl_add_u32 {v(V_T0)}, {v(V_T1)}, 10, {v(V_T0)}
    v_lshrrev_b32 {v(V_T2)}, 2, {v(V_I)}
    v_lshl_add_u32 {v(V_T0)}, {v(V_T2)}, 7, {v(V_T0)}
    v_lshrrev_b32 {v(V_T2)}, 3, {v(V_I)}
    v_lshl_or_b32 {v(V_T2)}, {v(V_T1)}, 1, {v(V_T2)}
    v_xor_b32 {v(V_T2)}, {s(S_W)}, {v(V_T2)}
    v_lshl_add_u32 {v(V_T0)}, {v(V_T2)}, 5, {v(V_T0)}
    v_and_b32 {v(V_T2)}, 3, {v(V_I)}
    v_lshl_add_u32 {v(V_AD)}, {v(V_T2)}, 3, {v(V_T0)}
    v_xor_b32 {v(V_AD+1)}, 32, {v(V_AD)}
    v_xor_b32 {v(V_AD+2)}, 64, {v(V_AD)}
    v_xor_b32 {v(V_AD+3)}, 96, {v(V_AD)}
    v_mov_b32 {v(V_S1A)}, 0
    v_mov_b32 {v(V_S1B)}, 0
    v_mov_b32 {v(V_S2A)}, 0
    v_mov_b32 {v(V_S2B)}, 0
    """)
    g.stamp(2)
    g("s_waitcnt vmcnt(25)")
    g.stamp(3)
    row_stats_dots(g, 0, 48)
    row_stats_finish(g)
    for j in range(6):
        g(f"s_waitcnt vmcnt({4*(5-j)+1})")
        g("s_barrier")
        if j == 0:
            g.stamp(4)
        if j == 5:
            g.stamp(5)
        if j == 3:
            for q in range(4):
                g(f"v_add_u32 {v(V_AD+q)}, 49152, {v(V_AD+q)}")
        items = []
        for kk in range(2):
            ks = 2 * j + kk
            for mat in range(2):
                for sl in range(4):
                    b = V_BUF + (kk * 8 + mat * 4 + sl) * 4
                    off = (ks % 6) * 8192 + mat * 2048
                    rd = [f"ds_read_b64_tr_b16 {v(b,2)}, {v(V_AD+sl)} offset:{off}",
                          f"ds_read_b64_tr_b16 {v(b+2,2)}, {v(V_AD+sl)} offset:{off+512}"]
                    acc = (ACCQ if mat == 0 else ACCK) + 4 * sl
                    c = "0" if ks == 0 else v(acc, 4)
                    cm = [f"v_mfma_f32_16x16x32_bf16 {v(acc,4)}, {v(b,4)}, {v(V_XF+4*ks,4)}, {c}"]
                    if sl == 0:
                        cs = CSQ if mat == 0 else CSK
                        c2 = "0" if ks == 0 else v(cs, 4)
                        cm.append(f"v_mfma_f32_16x16x32_bf16 {v(cs,4)}, {v(V_ONES,4)}, {v(b,4)}, {c2}")
                    items.append((rd, cm))
        pipelined(g, items, 14)
    CT = V_BUF
    g(f"""
    v_lshlrev_b32 {v(V_T2)}, 3, {v(V_I)}
    s_lshl_b32 {s(S_T0)}, {s(S_W)}, 7
    s_add_u32 {s(S_T0)}, {s(S_T0)}, {L_CT0}
    v_add_u32 {v(V_T2)}, {s(S_T0)}, {v(V_T2)}
    """)
    g.nop(4)
    colsum_pack(g, CSQ, V_BUF + 40)
    colsum_pack(g, CSK, V_BUF + 42)
    g(f"""
    ds_write_b64 {v(V_T2)}, {v(V_BUF+40,2)}
    ds_write_b64 {v(V_T2)}, {v(V_BUF+42,2)} offset:512
    v_xor_b32 {v(V_T3)}, 128, {v(V_T2)}
    v_xor_b32 {v(V_T4)}, 256, {v(V_T2)}
    v_xor_b32 {v(V_T5)}, 384, {v(V_T2)}
    s_waitcnt lgkmcnt(0)
    s_barrier
    """)
    for mat in range(2):
        for sl in range(4):
            g(f"ds_read_b64 {v(CT+(mat*4+sl)*2,2)}, {v(V_T2+sl)} offset:{mat*512}")
    for mat in range(2):
        for sl in range(4):
            g(f"s_waitcnt lgkmcnt({7-(mat*4+sl)})")
            acc = (ACCQ if mat == 0 else ACCK) + 4 * sl
            mfma16(g, v(acc, 4), v(CT + (mat * 4 + sl) * 2, 2), v(V_MU, 2))
    QF, KF = V_BUF + 16, V_BUF + 24
    VS = V_MISC + 12
    g(f"""
    v_and_b32 {v(V_T0)}, 7, {v(V_L)}
    v_lshl_add_u32 {v(V_T0)}, {v(V_G)}, 3, {v(V_T0)}
    v_lshlrev_b32 {v(VS)}, 4, {v(V_T0)}
    s_lshl_b32 {s(S_T0)}, {s(S_RB)}, 2
    s_add_u32 {s(S_T0)}, {s(S_T0)}, {s(S_W)}
    s_mul_i32 {s(S_T4)}, {s(S_T0)}, 3072
    s_lshl_b32 {s(S_T1)}, {s(S_CB)}, 9
    s_add_u32 {s(S_T0)}, {s(S_T4)}, {s(S_T1)}
    s_add_u32 {s(S_T1)}, {s(S_T0)}, {WS_SPB}
    s_add_u32 {s(S_T0)}, {s(S_T0)}, {WS_SPA}
    """)
    for i in range(8):
        g(f"v_cvt_pk_bf16_f32 {v(QF+i)}, {v(ACCQ+2*i)}, {v(ACCQ+2*i+1)}")
    for i in range(8):
        g(f"v_cvt_pk_bf16_f32 {v(KF+i)}, {v(ACCK+2*i)}, {v(ACCK+2*i+1)}")
    SS = V_BUF + 32
    g.nop(2)
    mfma32(g, v(SS, 4), v(KF, 4), v(QF, 4), "0")
    mfma32(g, v(SS, 4), v(KF + 4, 4), v(QF + 4, 4))
    g.nop(8)
    for r in range(4):
        g(f"v_bfi_b32 {v(SS+r)}, {v(V_MASK)}, {v(SS+r)}, {s(S_TAG+r)}")
    g(f"""
    s_mov_b64 exec, {s(S_VALID,2)}
    buffer_store_dwordx4 {v(SS,4)}, {v(VS)}, {s(SRD_WS,4)}, {s(S_T0)} offen
    buffer_store_dwordx4 {v(SS,4)}, {v(VS)}, {s(SRD_WS,4)}, {s(S_T1)} offen sc1
    s_mov_b64 exec, -1
    """)
    g.stamp(6)


def check_xcc(g, main):
    g(f"""
    v_min_u32 {v(V_T0)}, 5, {v(V_L)}
    s_lshl_b32 {s(S_T0)}, {s(S_RQ)}, 3
    v_add_u32 {v(V_T0)}, {s(S_T0)}, {v(V_T0)}
    """)
    e3_producer_j(g, V_T1, V_T2, V_L)
    g(f"""
    v_cmp_gt_u32 vcc, 8, {v(V_L)}
    s_nop 1
    v_cndmask_b32 {v(V_T0)}, {v(V_T1)}, {v(V_T0)}, vcc
    v_lshlrev_b32 {v(V_T0)}, 10, {v(V_T0)}
    s_lshl_b32 {s(S_T0)}, {s(S_G8)}, 7
    s_add_u32 {s(S_T0)}, {s(S_T0)}, {WS_FXCC}
    buffer_load_dword {v(V_T7)}, {v(V_T0)}, {s(SRD_WS,4)}, {s(S_T0)} offen sc1
    s_waitcnt vmcnt(0)
    v_cmp_ne_u32 vcc, {s(S_ME)}, {v(V_T7)}
    s_and_b32 {s(S_FAST1)}, vcc_lo, 0xff
    s_and_b32 {s(S_FAST3)}, vcc_lo, 0xff00
    """)


def e3_producer_j(g, dst, tmp, idx):
    g(f"""
    v_and_b32 {v(V_T6)}, 4, {v(idx)}
    v_and_b32 {v(dst)}, 3, {v(idx)}
    s_and_b32 {s(S_T1)}, {s(S_J)}, 3
    s_add_u32 {s(S_T1)}, {s(S_T1)}, 4
    v_lshlrev_b32 {v(tmp)}, 3, {v(dst)}
    v_add_u32 {v(tmp)}, {s(S_T1)}, {v(tmp)}
    s_lshl_b32 {s(S_T1)}, {s(S_RQ)}, 3
    v_add_u32 {v(dst)}, {s(S_T1)}, {v(dst)}
    v_cmp_eq_u32 vcc, 0, {v(V_T6)}
    s_nop 1
    v_cndmask_b32 {v(dst)}, {v(tmp)}, {v(dst)}, vcc
    """)


def p1(g):
    XR = V_MISC
    VS = V_MISC + 12
    Z = V_ACC
    CS = V_ACC + 16
    XC = V_ACC + 20
    RS = V_MISC + 16
    FS = V_MISC + 20
    check_xcc(g, True)
    g(f"""
    v_min_u32 {v(V_T0)}, 5, {v(V_L)}
    v_mul_u32_u24 {v(V_T0)}, 768, {v(V_T0)}
    s_lshl_b32 {s(S_T0)}, {s(S_CB)}, 7
    s_add_u32 {s(S_T0)}, {s(S_T0)}, {WS_FP}
    """)
    poll(g, V_T0, s(S_T0), s(S_NONCE), "pwvo")
    g.stamp(7)
    g(f"""
    s_mul_i32 {s(S_T0)}, {s(S_CB)}, 49152
    s_lshl_b32 {s(S_T1)}, {s(S_W)}, 12
    s_add_u32 {s(S_T0)}, {s(S_T0)}, {s(S_T1)}
    s_add_u32 {s(S_T0)}, {s(S_T0)}, {WS_WVOT}
    s_add_u32 m0, {s(S_T1)}, {L_WVO}
    s_nop 0
    """)
    for st in range(3):
        for q in range(4):
            g(f"buffer_load_dwordx4 {v(V_L16)}, {s(SRD_WS,4)}, {s(S_T0)} offen offset:{q*1024} sc1 lds")
        if st < 2:
            g(f"s_add_u32 m0, m0, 16384")
            g(f"s_add_u32 {s(S_T0)}, {s(S_T0)}, 16384")
    for m in range(2):
        for par in range(2):
            for r in range(4):
                src = XR + 4 * m + 2 * par + (r >> 1)
                d = XC + (2 * m + par) * 4 + r
                if r & 1:
                    g(f"v_and_b32 {v(d)}, 0xffff0000, {v(src)}")
                else:
                    g(f"v_lshlrev_b32 {v(d)}, 16, {v(src)}")
    g(f"v_lshlrev_b32 {v(V_T0)}, 4, {v(V_G)}")
    for e in range(4):
        g(f"ds_bpermute_b32 {v(RS+e)}, {v(V_T0)}, {v(V_R)} offset:{4*e}")
    g(f"""
    v_mul_f32 {v(V_T1)}, {f2u(SCALE_LOG2E):#x}, {v(V_R)}
    v_add_u32 {v(V_AD)}, {L_WVO}, {v(V_L16)}
    s_lshl_b32 {s(S_T1)}, {s(S_W)}, 10
    v_add_u32 {v(V_AD+1)}, {s(S_T1)}, {v(V_AD)}
    s_waitcnt lgkmcnt(0)
    """)
    for e in range(4):
        g(f"v_mul_f32 {v(FS+e)}, {v(V_T1)}, {v(RS+e)}")
    for st in range(3):
        g(f"s_waitcnt vmcnt({8-4*st})")
        g("s_barrier")
        items = []
        for kk in range(4):
            ks = 4 * st + kk
            for c in range(5):
                b = V_BUF + ((kk * 5 + c) % 16) * 4
                if c < 4:
                    rd = [f"ds_read_b128 {v(b,4)}, {v(V_AD)} offset:{ks*4096+c*1024}"]
                    cc = "0" if ks == 0 else v(Z + 4 * c, 4)
                    cm = [f"v_mfma_f32_16x16x32_bf16 {v(Z+4*c,4)}, {v(V_XF+4*ks,4)}, {v(b,4)}, {cc}"]
                else:
                    rd = [f"ds_read_b128 {v(b,4)}, {v(V_AD+1)} offset:{ks*4096}"]
                    cc = "0" if ks == 0 else v(CS, 4)
                    cm = [f"v_mfma_f32_16x16x32_bf16 {v(CS,4)}, {v(V_ONES,4)}, {v(b,4)}, {cc}"]
                items.append((rd, cm))
        pipelined(g, items, 10)
    CT = V_BUF
    g(f"""
    v_lshlrev_b32 {v(V_T2)}, 3, {v(V_I)}
    v_add_u32 {v(V_T2)}, {L_CT1}, {v(V_T2)}
    s_lshl_b32 {s(S_T0)}, {s(S_W)}, 7
    v_add_u32 {v(V_T3)}, {s(S_T0)}, {v(V_T2)}
    """)
    g.nop(4)
    colsum_pack(g, CS, V_T4)
    g(f"""
    ds_write_b64 {v(V_T3)}, {v(V_T4,2)}
    s_waitcnt lgkmcnt(0)
    s_barrier
    """)
    for c in range(4):
        g(f"ds_read_b64 {v(CT+2*c,2)}, {v(V_T2)} offset:{c*128}")
    for c in range(4):
        g(f"s_waitcnt lgkmcnt({3-c})")
        mfma16(g, v(Z + 4 * c, 4), v(V_MU, 2), v(CT + 2 * c, 2))
    ZB = V_BUF + 8
    g.nop(8)
    for i in range(8):
        g(f"v_cvt_pk_bf16_f32 {v(ZB+i)}, {v(Z+2*i)}, {v(Z+2*i+1)}")
    g.stamp(8)
    SP = V_BUF + 16
    g(f"""
    s_cmp_eq_u32 {s(S_FAST1)}, 0
    s_cselect_b32 {s(S_T0)}, 0, {WS_SPB-WS_SPA}
    s_add_u32 {s(S_T0)}, {s(S_T0)}, {WS_SPA}
    s_add_u32 {s(S_T0)}, {s(S_T0)}, {s(S_T4)}
    s_mov_b32 {s(S_SPIN)}, {SPIN_LIMIT}
    L_spoll:
    """)
    for c in range(6):
        g(f"buffer_load_dwordx4 {v(SP+4*c,4)}, {v(VS)}, {s(SRD_WS,4)}, {s(S_T0)} offen offset:{c*512} sc1")
    for c in range(6):
        g(f"s_waitcnt vmcnt({5-c})")
        for r in range(4):
            if c == 0:
                g(f"v_xor_b32 {v(V_T0+r)}, {s(S_TAG+r)}, {v(SP+r)}")
            else:
                g(f"v_bitop3_b32 {v(V_T0+r)}, {v(V_T0+r)}, {v(SP+4*c+r)}, {s(S_TAG+r)} bitop3:0xf6")
    g(f"""
    v_or3_b32 {v(V_T0)}, {v(V_T0)}, {v(V_T0+1)}, {v(V_T0+2)}
    v_or_b32 {v(V_T0)}, {v(V_T0)}, {v(V_T0+3)}
    v_and_b32 {v(V_T0)}, 0xff, {v(V_T0)}
    v_cmp_ne_u32 vcc, 0, {v(V_T0)}
    s_cbranch_vccz L_sok
    s_sub_u32 {s(S_SPIN)}, {s(S_SPIN)}, 1
    s_cbranch_scc0 L_spoll
    L_sok:
    """)
    g.stamp(9)
    for c in (1, 3, 5):
        for h in range(2):
            g(f"v_pk_add_f32 {v(SP+4*c+2*h,2)}, {v(SP+4*c+2*h,2)}, {v(SP+4*(c-1)+2*h,2)}")
    for c in (3, 5):
        for h in range(2):
            g(f"v_pk_add_f32 {v(SP+4*c+2*h,2)}, {v(SP+4*c+2*h,2)}, {v(SP+4*(c-2)+2*h,2)}")
    T = SP + 20
    for h in range(2):
        g(f"v_pk_mul_f32 {v(T+2*h,2)}, {v(T+2*h,2)}, {v(FS+2*h,2)}")
    g(f"""
    v_max3_f32 {v(V_T0)}, {v(T)}, {v(T+1)}, {v(T+2)}
    v_max_f32 {v(V_T0)}, {v(V_T0)}, {v(T+3)}
    v_mov_b32 {v(V_T1)}, {v(V_T0)}
    s_nop 1
    v_permlane16_swap_b32 {v(V_T0)}, {v(V_T1)}
    s_nop 0
    v_max_f32 {v(V_T0)}, {v(V_T0)}, {v(V_T1)}
    """)
    for r in range(4):
        g(f"v_sub_f32 {v(T+r)}, {v(T+r)}, {v(V_T0)}")
    for r in range(4):
        g(f"v_exp_f32 {v(T+r)}, {v(T+r)}")
    g(f"""
    s_nop 0
    v_add_f32 {v(V_T0)}, {v(T)}, {v(T+1)}
    v_add_f32 {v(V_T1)}, {v(T+2)}, {v(T+3)}
    v_add_f32 {v(V_T0)}, {v(V_T0)}, {v(V_T1)}
    v_mov_b32 {v(V_T1)}, {v(V_T0)}
    v_pk_mul_f32 {v(T,2)}, {v(T,2)}, {v(RS,2)}
    v_pk_mul_f32 {v(T+2,2)}, {v(T+2,2)}, {v(RS+2,2)}
    v_permlane16_swap_b32 {v(V_T0)}, {v(V_T1)}
    s_nop 0
    v_add_f32 {v(V_T0)}, {v(V_T0)}, {v(V_T1)}
    v_rcp_f32 {v(V_T0)}, {v(V_T0)}
    s_nop 0
    v_cndmask_b32 {v(V_T0)}, 0, {v(V_T0)}, {s(S_VALID,2)}
    """)
    for r in range(4):
        g(f"v_mul_f32 {v(T+r)}, {v(T+r)}, {v(V_T0)}")
    g(f"""
    v_cvt_pk_bf16_f32 {v(V_T2)}, {v(T)}, {v(T+1)}
    v_cvt_pk_bf16_f32 {v(V_T3)}, {v(T+2)}, {v(T+3)}
    s_nop 1
    """)
    for c in range(4):
        mfma16(g, v(XC + 4 * c, 4), v(ZB + 2 * c, 2), v(V_T2, 2))
    g(f"""
    v_and_b32 {v(V_T0)}, 7, {v(V_I)}
    v_mul_u32_u24 {v(V_T0)}, 196608, {v(V_T0)}
    v_lshrrev_b32 {v(V_T1)}, 3, {v(V_I)}
    v_lshlrev_b32 {v(V_T1)}, 6, {v(V_T1)}
    v_lshlrev_b32 {v(V_T4)}, 4, {v(V_G)}
    v_add3_u32 {v(V_T0)}, {v(V_T0)}, {v(V_T1)}, {v(V_T4)}
    s_lshl_b32 {s(S_T0)}, {s(S_RB)}, 2
    s_add_u32 {s(S_T0)}, {s(S_T0)}, {s(S_W)}
    s_mul_i32 {s(S_T0)}, {s(S_T0)}, 1536
    s_lshl_b32 {s(S_T1)}, {s(S_CB)}, 8
    s_add_u32 {s(S_T0)}, {s(S_T0)}, {s(S_T1)}
    s_add_u32 {s(S_T0)}, {s(S_T0)}, {WS_X1}
    """)
    OB = V_BUF + 48
    for i in range(8):
        g(f"v_cvt_pk_bf16_f32 {v(OB+i)}, {v(XC+2*i)}, {v(XC+2*i+1)}")
    for m in range(2):
        g(f"buffer_store_dwordx4 {v(OB+4*m,4)}, {v(V_T0)}, {s(SRD_WS,4)}, {s(S_T0)} offen offset:{m*128} sc1")
    g(f"""
    s_mul_i32 {s(S_T0)}, {s(S_RB)}, 6
    s_add_u32 {s(S_T0)}, {s(S_T0)}, {s(S_CB)}
    s_lshl_b32 {s(S_T0)}, {s(S_T0)}, 7
    s_add_u32 {s(S_T0)}, {s(S_T0)}, {WS_FX}
    s_waitcnt vmcnt(0)
    s_barrier
    """)
    flag_store(g, s(S_T0))
    g.stamp(10)


def products(g):
    S_TILE, S_PROD, S_KB, S_NB = S_T4, S_T5, S_T6, S_T7
    VW = V_MISC + 8
    ACC = V_ACC
    common_consts(g)
    publish_xcc(g)
    g(f"""
    s_lshl_b32 {s(S_TILE)}, {s(S_G8)}, 3
    s_lshl_b32 {s(S_T0)}, {s(S_RQ)}, 1
    s_add_u32 {s(S_TILE)}, {s(S_TILE)}, {s(S_T0)}
    s_add_u32 {s(S_TILE)}, {s(S_TILE)}, {s(S_CS)}
    s_sub_u32 {s(S_TILE)}, {s(S_TILE)}, 6
    L_prod_loop:
    s_mul_hi_u32 {s(S_PROD)}, {s(S_TILE)}, {(2**32 + 35)//36}
    s_mul_i32 {s(S_T0)}, {s(S_PROD)}, 36
    s_sub_u32 {s(S_NB)}, {s(S_TILE)}, {s(S_T0)}
    s_mul_hi_u32 {s(S_KB)}, {s(S_NB)}, {(2**32 + 5)//6}
    s_mul_i32 {s(S_T0)}, {s(S_KB)}, 6
    s_sub_u32 {s(S_NB)}, {s(S_NB)}, {s(S_T0)}
    s_cmp_eq_u32 {s(S_PROD)}, 0
    s_cselect_b32 {s(SRD_A)}, {s(S_WQT)}, {s(S_WQS)}
    s_cselect_b32 {s(SRD_A+1)}, {s(S_WQT+1)}, {s(S_WQS+1)}
    s_mov_b32 {s(SRD_A+2)}, 884736
    v_mul_u32_u24 {v(V_T0)}, 2304, {v(V_I)}
    v_lshl_add_u32 {v(V_T0)}, {v(V_G)}, 4, {v(V_T0)}
    s_lshl_b32 {s(S_T0)}, {s(S_KB)}, 2
    s_add_u32 {s(S_T0)}, {s(S_T0)}, {s(S_W)}
    s_mul_i32 {s(S_T0)}, {s(S_T0)}, {16*2304}
    s_cmp_eq_u32 {s(S_PROD)}, 1
    s_cselect_b32 {s(S_T1)}, 0, 1536
    s_add_u32 {s(S_T0)}, {s(S_T0)}, {s(S_T1)}
    """)
    for ks in range(12):
        g(f"buffer_load_dwordx4 {v(V_XF+4*ks,4)}, {v(V_T0)}, {s(SRD_A,4)}, {s(S_T0)} offen offset:{ks*64}")
    g(f"""
    s_cmp_eq_u32 {s(S_PROD)}, 1
    s_cbranch_scc1 L_prod_rows
    """)
    g(f"""
    s_cmp_eq_u32 {s(S_PROD)}, 0
    s_cselect_b32 {s(SRD_B)}, {s(S_WOT)}, {s(S_WOS)}
    s_cselect_b32 {s(SRD_B+1)}, {s(S_WOT+1)}, {s(S_WOS+1)}
    s_mov_b32 {s(SRD_B+2)}, 294912
    v_lshrrev_b32 {v(V_T1)}, 3, {v(V_L)}
    v_mul_u32_u24 {v(V_T2)}, 768, {v(V_T1)}
    v_and_b32 {v(V_T1)}, 2, {v(V_T1)}
    v_and_b32 {v(V_T3)}, 7, {v(V_L)}
    v_xor_b32 {v(V_T3)}, {v(V_T3)}, {v(V_T1)}
    v_lshl_add_u32 {v(VW)}, {v(V_T3)}, 4, {v(V_T2)}
    v_xor_b32 {v(V_T3)}, 64, {v(VW)}
    v_add_u32 {v(VW+1)}, {6144-1024}, {v(V_T3)}
    s_mul_i32 {s(S_T0)}, {s(S_W)}, {2*6144}
    s_lshl_b32 {s(S_T1)}, {s(S_NB)}, 7
    s_add_u32 {s(S_T0)}, {s(S_T0)}, {s(S_T1)}
    s_lshl_b32 {s(S_T1)}, {s(S_W)}, 11
    s_mov_b32 m0, {s(S_T1)}
    s_nop 0
    """)
    for j in range(6):
        g(f"buffer_load_dwordx4 {v(VW)}, {s(SRD_B,4)}, {s(S_T0)} offen lds")
        g(f"buffer_load_dwordx4 {v(VW+1)}, {s(SRD_B,4)}, {s(S_T0)} offen offset:1024 lds")
        if j < 5:
            g(f"s_add_u32 m0, m0, 8192")
            g(f"s_add_u32 {s(S_T0)}, {s(S_T0)}, {8*6144}")
    g(f"""
    v_lshlrev_b32 {v(V_T0)}, 10, {v(V_G)}
    v_lshrrev_b32 {v(V_T2)}, 2, {v(V_I)}
    v_lshl_add_u32 {v(V_T0)}, {v(V_T2)}, 7, {v(V_T0)}
    v_and_b32 {v(V_T1)}, 1, {v(V_G)}
    v_lshrrev_b32 {v(V_T2)}, 3, {v(V_I)}
    v_lshl_or_b32 {v(V_T2)}, {v(V_T1)}, 1, {v(V_T2)}
    v_lshl_add_u32 {v(V_T0)}, {v(V_T2)}, 5, {v(V_T0)}
    v_and_b32 {v(V_T2)}, 3, {v(V_I)}
    v_lshl_add_u32 {v(V_AD)}, {v(V_T2)}, 3, {v(V_T0)}
    v_xor_b32 {v(V_AD+1)}, 32, {v(V_AD)}
    v_xor_b32 {v(V_AD+2)}, 64, {v(V_AD)}
    v_xor_b32 {v(V_AD+3)}, 96, {v(V_AD)}
    """)
    for j in range(3):
        g(f"s_waitcnt vmcnt({4*(2-j)})")
        g("s_barrier")
        items = []
        for kk in range(4):
            ks = 4 * j + kk
            for c in range(4):
                b = V_BUF + (kk * 4 + c) * 4
                rd = [f"ds_read_b64_tr_b16 {v(b,2)}, {v(V_AD+c)} offset:{ks*4096}",
                      f"ds_read_b64_tr_b16 {v(b+2,2)}, {v(V_AD+c)} offset:{ks*4096+512}"]
                cc = "0" if ks == 0 else v(ACC + 4 * c, 4)
                items.append((rd, [f"v_mfma_f32_16x16x32_bf16 {v(ACC+4*c,4)}, {v(V_XF+4*ks,4)}, {v(b,4)}, {cc}"]))
        pipelined(g, items, 14)
    g("s_branch L_prod_epi")
    g(f"""
    L_prod_rows:
    s_mov_b32 {s(SRD_B)}, {s(S_WQS)}
    s_mov_b32 {s(SRD_B+1)}, {s(S_WQS+1)}
    s_mov_b32 {s(SRD_B+2)}, 884736
    v_lshrrev_b32 {v(V_T1)}, 3, {v(V_L)}
    v_mul_u32_u24 {v(V_T2)}, 2304, {v(V_T1)}
    v_lshrrev_b32 {v(V_T1)}, 1, {v(V_T1)}
    v_and_b32 {v(V_T3)}, 7, {v(V_L)}
    v_xor_b32 {v(V_T3)}, {v(V_T3)}, {v(V_T1)}
    v_lshl_add_u32 {v(VW)}, {v(V_T3)}, 4, {v(V_T2)}
    v_xor_b32 {v(V_T3)}, 64, {v(VW)}
    v_add_u32 {v(VW+1)}, {18432-1024}, {v(V_T3)}
    s_lshl_b32 {s(S_T0)}, {s(S_NB)}, 2
    s_add_u32 {s(S_T0)}, {s(S_T0)}, {s(S_W)}
    s_mul_i32 {s(S_T0)}, {s(S_T0)}, {16*2304}
    s_add_u32 {s(S_T0)}, {s(S_T0)}, 768
    s_lshl_b32 {s(S_T1)}, {s(S_W)}, 11
    s_mov_b32 m0, {s(S_T1)}
    s_nop 0
    """)
    for j in range(6):
        g(f"buffer_load_dwordx4 {v(VW)}, {s(SRD_B,4)}, {s(S_T0)} offen lds")
        g(f"buffer_load_dwordx4 {v(VW+1)}, {s(SRD_B,4)}, {s(S_T0)} offen offset:1024 lds")
        if j < 5:
            g(f"s_add_u32 m0, m0, 8192")
            g(f"s_add_u32 {s(S_T0)}, {s(S_T0)}, 128")
    g(f"""
    v_lshrrev_b32 {v(V_T0)}, 1, {v(V_I)}
    v_xor_b32 {v(V_T0)}, {v(V_T0)}, {v(V_G)}
    v_lshlrev_b32 {v(V_T0)}, 4, {v(V_T0)}
    v_lshl_add_u32 {v(V_AD)}, {v(V_I)}, 7, {v(V_T0)}
    v_xor_b32 {v(V_AD+1)}, 64, {v(V_AD)}
    """)
    for j in range(3):
        g(f"s_waitcnt vmcnt({4*(2-j)})")
        g("s_barrier")
        items = []
        for kk in range(4):
            ks = 4 * j + kk
            for c in range(4):
                b = V_BUF + (kk * 4 + c) * 4
                rd = [f"ds_read_b128 {v(b,4)}, {v(V_AD+(ks&1))} offset:{(ks>>1)*8192+c*2048}"]
                cc = "0" if ks == 0 else v(ACC + 4 * c, 4)
                items.append((rd, [f"v_mfma_f32_16x16x32_bf16 {v(ACC+4*c,4)}, {v(V_XF+4*ks,4)}, {v(b,4)}, {cc}"]))
        pipelined(g, items, 10)
    PK = V_BUF
    g(f"""
    L_prod_epi:
    v_lshrrev_b32 {v(V_T0)}, 2, {v(V_I)}
    v_and_b32 {v(V_T0)}, 1, {v(V_T0)}
    v_lshlrev_b32 {v(V_T0)}, 10, {v(V_T0)}
    v_lshrrev_b32 {v(V_T1)}, 1, {v(V_G)}
    v_lshl_add_u32 {v(V_T0)}, {v(V_T1)}, 8, {v(V_T0)}
    v_and_b32 {v(V_T1)}, 1, {v(V_G)}
    v_lshl_add_u32 {v(V_T0)}, {v(V_T1)}, 7, {v(V_T0)}
    v_lshrrev_b32 {v(V_T1)}, 3, {v(V_I)}
    v_lshl_add_u32 {v(V_T0)}, {v(V_T1)}, 6, {v(V_T0)}
    v_and_b32 {v(V_T1)}, 3, {v(V_I)}
    v_lshl_add_u32 {v(V_T0)}, {v(V_T1)}, 4, {v(V_T0)}
    """)
    for c in range(4):
        g(f"v_cvt_pk_bf16_f32 {v(PK+2*c)}, {v(ACC+4*c)}, {v(ACC+4*c+1)}")
        g(f"v_cvt_pk_bf16_f32 {v(PK+2*c+1)}, {v(ACC+4*c+2)}, {v(ACC+4*c+3)}")
    g(f"""
    s_lshr_b32 {s(S_T0)}, {s(S_W)}, 1
    s_lshl_b32 {s(S_T1)}, {s(S_KB)}, 1
    s_add_u32 {s(S_T0)}, {s(S_T0)}, {s(S_T1)}
    s_and_b32 {s(S_T1)}, {s(S_W)}, 1
    s_lshl_b32 {s(S_T1)}, {s(S_T1)}, 9
    v_add_u32 {v(V_T0)}, {s(S_T1)}, {v(V_T0)}
    v_permlane16_swap_b32 {v(PK)}, {v(PK+2)}
    v_permlane16_swap_b32 {v(PK+1)}, {v(PK+3)}
    v_permlane16_swap_b32 {v(PK+4)}, {v(PK+6)}
    v_permlane16_swap_b32 {v(PK+5)}, {v(PK+7)}
    s_cmp_eq_u32 {s(S_PROD)}, 0
    s_cbranch_scc0 L_prod_ws2
    s_mul_i32 {s(S_T1)}, {s(S_NB)}, 49152
    s_lshl_b32 {s(S_T0)}, {s(S_T0)}, 12
    s_add_u32 {s(S_T0)}, {s(S_T0)}, {s(S_T1)}
    s_add_u32 {s(S_T1)}, {s(S_T0)}, {WS_WVOT}
    s_add_u32 {s(S_T2)}, {s(S_T1)}, 2048
    s_branch L_prod_st
    L_prod_ws2:
    s_mul_i32 {s(S_T0)}, {s(S_T0)}, 6144
    s_sub_u32 {s(S_T1)}, {s(S_PROD)}, 1
    s_mul_i32 {s(S_T1)}, {s(S_T1)}, {4*73728}
    s_add_u32 {s(S_T0)}, {s(S_T0)}, {s(S_T1)}
    s_add_u32 {s(S_T0)}, {s(S_T0)}, {WS_WS2}
    """)
    for aa, dst in ((0, S_T1), (1, S_T2)):
        g(f"""
        s_lshl_b32 {s(S_T3)}, {s(S_NB)}, 1
        s_add_u32 {s(S_T3)}, {s(S_T3)}, {aa}
        s_mul_hi_u32 {s(dst)}, {s(S_T3)}, {(2**32+2)//3}
        s_mul_i32 {s(S_SPIN)}, {s(dst)}, 3
        s_sub_u32 {s(S_T3)}, {s(S_T3)}, {s(S_SPIN)}
        s_mul_i32 {s(dst)}, {s(dst)}, 73728
        s_lshl_b32 {s(S_T3)}, {s(S_T3)}, 11
        s_add_u32 {s(dst)}, {s(dst)}, {s(S_T3)}
        s_add_u32 {s(dst)}, {s(dst)}, {s(S_T0)}
        """)
    g(f"""
    L_prod_st:
    buffer_store_dwordx4 {v(PK,4)}, {v(V_T0)}, {s(SRD_WS,4)}, {s(S_T1)} offen sc1
    buffer_store_dwordx4 {v(PK+4,4)}, {v(V_T0)}, {s(SRD_WS,4)}, {s(S_T2)} offen sc1
    s_lshl_b32 {s(S_T0)}, {s(S_TILE)}, 7
    s_add_u32 {s(S_T0)}, {s(S_T0)}, {WS_FP}
    s_waitcnt vmcnt(0)
    s_barrier
    """)
    flag_store(g, s(S_T0))
    g(f"""
    s_add_u32 {s(S_TILE)}, {s(S_TILE)}, 64
    s_cmp_lt_u32 {s(S_TILE)}, 108
    s_cbranch_scc1 L_prod_loop
    """)
    g.stamp(6)
    check_xcc(g, False)
    for i in (2, 3, 4, 5, 7, 8, 9, 10):
        g.stamp(i)


A_K = 0
A_V = 144
V_KO = V_MISC + 24
V_RES = V_MISC + 28


def kreg(slot, ks):
    return v(V_XF + 4 * ks, 4) if slot == 0 else a(A_K + (slot - 1) * 48 + 4 * ks, 4)


def p2(g):
    ACC = V_ACC
    CS = V_ACC + 24
    CT = V_ACC + 32
    RT = V_MISC + 16
    g(f"""
    v_min_u32 {v(V_T0)}, 35, {v(V_L)}
    v_lshlrev_b32 {v(V_T0)}, 7, {v(V_T0)}
    s_cmp_lt_u32 {s(S_CS)}, 4
    s_cselect_b32 {s(S_T0)}, 0, {36*128}
    s_add_u32 {s(S_T0)}, {s(S_T0)}, {WS_FP+36*128}
    """)
    poll(g, V_T0, s(S_T0), s(S_NONCE), "pws")
    g(f"""
    s_mul_i32 {s(S_T0)}, {s(S_CS)}, 73728
    s_mul_i32 {s(S_T1)}, {s(S_W)}, 18432
    s_add_u32 {s(S_T0)}, {s(S_T0)}, {s(S_T1)}
    s_add_u32 {s(S_T0)}, {s(S_T0)}, {WS_WS2}
    s_mov_b32 m0, {s(S_T1)}
    s_nop 0
    """)
    for blk in range(18):
        g(f"buffer_load_dwordx4 {v(V_L16)}, {s(SRD_WS,4)}, {s(S_T0)} offen offset:{(blk%4)*1024} sc1 lds")
        if blk % 4 == 3:
            g(f"s_add_u32 m0, m0, 4096")
            g(f"s_add_u32 {s(S_T0)}, {s(S_T0)}, 4096")
    g(f"""
    s_lshl_b32 {s(S_T1)}, {s(S_W)}, 10
    v_add_u32 {v(V_AD)}, {s(S_T1)}, {v(V_L16)}
    s_and_b32 {s(S_T1)}, {s(S_W)}, 1
    s_lshl_b32 {s(S_T1)}, {s(S_T1)}, 10
    s_add_u32 {s(S_T1)}, {s(S_T1)}, 4096
    v_add_u32 {v(V_AD+1)}, {s(S_T1)}, {v(V_L16)}
    v_add_u32 {v(V_AD+2)}, 36864, {v(V_L16)}
    v_add_u32 {v(V_AD+3)}, 36864, {v(V_AD)}
    v_add_u32 {v(V_AD+4)}, 36864, {v(V_AD+1)}
    v_lshrrev_b32 {v(V_T0)}, 2, {v(V_I)}
    v_lshlrev_b32 {v(V_T0)}, 2, {v(V_T0)}
    v_bfe_u32 {v(V_T1)}, {v(V_I)}, 1, 1
    v_add_u32 {v(V_T0)}, {v(V_T0)}, {v(V_T1)}
    v_mul_u32_u24 {v(V_T0)}, 1536, {v(V_T0)}
    v_and_b32 {v(V_T1)}, 1, {v(V_I)}
    v_lshl_add_u32 {v(V_T0)}, {v(V_T1)}, 6, {v(V_T0)}
    v_lshl_add_u32 {v(V_KO)}, {v(V_G)}, 4, {v(V_T0)}
    s_waitcnt vmcnt(0)
    s_barrier
    """)
    items = []
    for ks in range(12):
        for q in range(2):
            b = V_BUF + ((ks * 2 + q) % 16) * 4
            ad = V_AD + q + (3 if ks >= 6 else 0)
            rd = [f"ds_read_b128 {v(b,4)}, {v(ad)} offset:{(ks%6)*6144}"]
            cc = "0" if ks == 0 else v(CS + 4 * q, 4)
            items.append((rd, [f"v_mfma_f32_16x16x32_bf16 {v(CS+4*q,4)}, {v(V_ONES,4)}, {v(b,4)}, {cc}"]))
    pipelined(g, items, 10)
    g(f"""
    v_lshlrev_b32 {v(V_T2)}, 3, {v(V_I)}
    v_add_u32 {v(V_T2)}, {L_CT2}, {v(V_T2)}
    s_lshl_b32 {s(S_T0)}, {s(S_W)}, 7
    v_add_u32 {v(V_T3)}, {s(S_T0)}, {v(V_T2)}
    s_and_b32 {s(S_T0)}, {s(S_T0)}, 128
    v_add_u32 {v(V_T1)}, {s(S_T0)}, {v(V_T2)}
    """)
    g.nop(4)
    colsum_pack(g, CS, V_T4)
    colsum_pack(g, CS + 4, V_T6)
    g(f"""
    ds_write_b64 {v(V_T3)}, {v(V_T4,2)}
    ds_write_b64 {v(V_T1)}, {v(V_T6,2)} offset:512
    s_waitcnt lgkmcnt(0)
    s_barrier
    """)
    for c in range(6):
        g(f"ds_read_b64 {v(CT+2*c,2)}, {v(V_T2)} offset:{c*128}")
    g(f"""
    v_mov_b32 {v(V_S1A)}, 0
    v_mov_b32 {v(V_S1B)}, 0
    v_mov_b32 {v(V_S2A)}, 0
    v_mov_b32 {v(V_S2B)}, 0
    v_min_u32 {v(V_T0)}, 47, {v(V_L)}
    v_lshlrev_b32 {v(V_T0)}, 7, {v(V_T0)}
    s_mul_i32 {s(S_T0)}, {s(S_W)}, {48*128}
    s_add_u32 {s(S_T0)}, {s(S_T0)}, {WS_FX}
    s_lshl_b32 {s(S_T4)}, {s(S_G8)}, 2
    s_add_u32 {s(S_T4)}, {s(S_T4)}, {s(S_W)}
    s_mul_i32 {s(S_T4)}, {s(S_T4)}, {32*1536}
    s_add_u32 {s(S_T4)}, {s(S_T4)}, {WS_X1}
    s_waitcnt lgkmcnt(0)
    """)
    for sl in range(4):
        g(f"""
        s_xor_b32 {s(S_T1)}, {s(S_RQ)}, {sl}
        s_lshr_b32 {s(S_T2)}, {s(S_T1)}, 1
        s_mul_i32 {s(S_T2)}, {s(S_T2)}, {16*1536}
        s_and_b32 {s(S_T1)}, {s(S_T1)}, 1
        s_mul_i32 {s(S_T1)}, {s(S_T1)}, {2*1536}
        s_add_u32 {s(S_T1)}, {s(S_T1)}, {s(S_T2)}
        s_add_u32 {s(S_TAG+sl)}, {s(S_T1)}, {s(S_T4)}
        """)
    g.stamp(11)
    poll(g, V_T0, s(S_T0), s(S_NONCE), "px")
    g.stamp(12)
    KE = g.opts.get("kearly", 30)
    kl = [(sl, ks) for sl in range(4) for ks in range(12)]

    def kloads(lo, hi):
        for sl, ks in kl[lo:hi]:
            g(f"buffer_load_dwordx4 {kreg(sl,ks)}, {v(V_KO)}, {s(SRD_WS,4)}, {s(S_TAG+sl)} offen offset:{ks*128} sc1")
    kloads(0, KE)
    g(f"""
    s_bfe_u32 {s(S_T0)}, {s(S_J)}, 0x10002
    s_lshl_b32 {s(S_T0)}, {s(S_T0)}, 1
    s_and_b32 {s(S_T1)}, {s(S_W)}, 1
    s_add_u32 {s(S_T0)}, {s(S_T0)}, {s(S_T1)}
    s_sub_u32 {s(S_T0)}, {s(S_T0)}, {s(S_W)}
    s_mul_i32 {s(S_T0)}, {s(S_T0)}, {32*1536}
    s_add_u32 {s(S_T0)}, {s(S_T0)}, {s(S_TAG)}
    s_and_b32 {s(S_T1)}, {s(S_J)}, 3
    s_mul_i32 {s(S_T1)}, {s(S_T1)}, 384
    s_add_u32 {s(S_T0)}, {s(S_T0)}, {s(S_T1)}
    s_lshr_b32 {s(S_T1)}, {s(S_W)}, 1
    s_lshl_b32 {s(S_T1)}, {s(S_T1)}, 7
    s_add_u32 {s(S_T1)}, {s(S_T1)}, {s(S_T0)}
    buffer_load_dwordx4 {v(V_RES,4)}, {v(V_KO)}, {s(SRD_WS,4)}, {s(S_T1)} offen sc1
    buffer_load_dwordx4 {v(V_RES+4,4)}, {v(V_KO)}, {s(SRD_WS,4)}, {s(S_T0)} offen offset:256 sc1
    s_cmp_lt_u32 {s(S_CS)}, 4
    s_cbranch_scc0 L_p2_v
    """)
    for typ in range(2):
        if typ == 1:
            g("L_p2_v:")
        items = []
        for ks in range(12):
            for c in range(6):
                b = V_BUF + ((ks * 6 + c) % 16) * 4
                ad = V_L16 if ks < 6 else V_AD + 2
                rd = [f"ds_read_b128 {v(b,4)}, {v(ad)} offset:{(ks%6)*6144+c*1024}"]
                cc = "0" if ks == 0 else v(ACC + 4 * c, 4)
                cm = []
                if c == 0:
                    cm.append(f"s_waitcnt vmcnt({KE+2-1-ks})")
                if typ == 0:
                    cm.append(f"v_mfma_f32_16x16x32_bf16 {v(ACC+4*c,4)}, {v(b,4)}, {v(V_XF+4*ks,4)}, {cc}")
                else:
                    cm.append(f"v_mfma_f32_16x16x32_bf16 {v(ACC+4*c,4)}, {v(V_XF+4*ks,4)}, {v(b,4)}, {cc}")
                if c < 4:
                    r = 4 * ks + c
                    cm.append(f"v_dot2c_f32_bf16 {v(V_S1A + (r & 1))}, {s(S_ONES)}, {v(V_XF + r)}")
                    cm.append(f"v_dot2c_f32_bf16 {v(V_S2A + (r & 1))}, {v(V_XF + r)}, {v(V_XF + r)}")
                items.append((rd, cm))
        pipelined(g, items, 10)
        row_stats_finish(g)
        PK = V_BUF
        if typ == 0:
            g.nop(2)
            for c in range(6):
                mfma16(g, v(ACC + 4 * c, 4), v(CT + 2 * c, 2), v(V_MU, 2))
            g(f"""
            v_mul_f32 {v(V_T0)}, {f2u(SCALE_LOG2E):#x}, {v(V_R)}
            v_mov_b32 {v(V_T1)}, {v(V_T0)}
            v_mov_b32 {v(V_T2)}, 0
            s_lshl_b32 {s(S_T0)}, {s(S_G8)}, 2
            s_add_u32 {s(S_T0)}, {s(S_T0)}, {s(S_RQ)}
            s_lshl_b32 {s(S_T0)}, {s(S_T0)}, 2
            s_add_u32 {s(S_T1)}, {s(S_T0)}, {s(S_W)}
            s_mul_i32 {s(S_T1)}, {s(S_T1)}, 12288
            s_mul_i32 {s(S_T2)}, {s(S_CS)}, 3072
            s_add_u32 {s(S_T1)}, {s(S_T1)}, {s(S_T2)}
            s_add_u32 {s(S_T1)}, {s(S_T1)}, {WS_RA+R_QP}
            s_add_u32 {s(S_T0)}, {s(S_T0)}, {s(S_CS)}
            s_lshl_b32 {s(S_T0)}, {s(S_T0)}, 2
            s_add_u32 {s(S_T0)}, {s(S_T0)}, {s(S_W)}
            s_lshl_b32 {s(S_T0)}, {s(S_T0)}, 6
            s_add_u32 {s(S_T0)}, {s(S_T0)}, {WS_RA+R_SQ}
            s_add_u32 {s(S_T2)}, {s(S_T0)}, {R_SIZE}
            s_add_u32 {s(S_T3)}, {s(S_T1)}, {R_SIZE}
            """)
            for i in range(12):
                g(f"v_pk_mul_f32 {v(ACC+2*i,2)}, {v(ACC+2*i,2)}, {v(V_T0,2)}")
            for i in range(12):
                g(f"v_cvt_pk_bf16_f32 {v(PK+i)}, {v(ACC+2*i)}, {v(ACC+2*i+1)}")
            for m in range(3):
                g(f"buffer_store_dwordx4 {v(PK+4*m,4)}, {v(V_L16)}, {s(SRD_WS,4)}, {s(S_T1)} offen offset:{m*1024}")
            for i in range(12):
                g(f"v_dot2c_f32_bf16 {v(V_T2)}, {s(S_ONES)}, {v(PK+i)}")
            g.nop(3)
            xlane_sum(g, V_T2, V_T3)
            g(f"""
            v_lshlrev_b32 {v(V_T3)}, 2, {v(V_I)}
            s_mov_b64 exec, {s(S_G0,2)}
            buffer_store_dword {v(V_T2)}, {v(V_T3)}, {s(SRD_WS,4)}, {s(S_T0)} offen
            buffer_store_dword {v(V_T2)}, {v(V_T3)}, {s(SRD_WS,4)}, {s(S_T2)} offen sc1
            s_mov_b64 exec, -1
            """)
            for m in range(3):
                g(f"buffer_store_dwordx4 {v(PK+4*m,4)}, {v(V_L16)}, {s(SRD_WS,4)}, {s(S_T3)} offen offset:{m*1024} sc1")
            kloads(KE, 48)
            g(f"s_waitcnt vmcnt({4+48-KE})")
            g("s_branch L_p2_done")
        else:
            g(f"v_lshlrev_b32 {v(V_T0)}, 4, {v(V_G)}")
            for e in range(4):
                g(f"ds_bpermute_b32 {v(RT+e)}, {v(V_T0)}, {v(V_R)} offset:{4*e}")
            for c in range(6):
                mfma16(g, v(ACC + 4 * c, 4), v(V_MU, 2), v(CT + 2 * c, 2))
            g(f"""
            v_mul_f32 {v(V_T1)}, {v(V_MEAN)}, {v(V_R)}
            v_cndmask_b32 {v(V_T1)}, {v(V_T1)}, {v(V_R)}, {s(S_G0,2)}
            v_lshlrev_b32 {v(V_T2)}, 2, {v(V_L)}
            s_lshl_b32 {s(S_T0)}, {s(S_G8)}, 2
            s_add_u32 {s(S_T0)}, {s(S_T0)}, {s(S_CS)}
            s_sub_u32 {s(S_T0)}, {s(S_T0)}, 4
            s_mul_i32 {s(S_T1)}, {s(S_T0)}, 49152
            s_lshl_b32 {s(S_T2)}, {s(S_W)}, 1
            s_lshr_b32 {s(S_T3)}, {s(S_RQ)}, 1
            s_add_u32 {s(S_T2)}, {s(S_T2)}, {s(S_T3)}
            s_mul_i32 {s(S_T2)}, {s(S_T2)}, 6144
            s_add_u32 {s(S_T1)}, {s(S_T1)}, {s(S_T2)}
            s_and_b32 {s(S_T2)}, {s(S_RQ)}, 1
            s_lshl_b32 {s(S_T2)}, {s(S_T2)}, 3
            s_add_u32 {s(S_T1)}, {s(S_T1)}, {s(S_T2)}
            s_add_u32 {s(S_T1)}, {s(S_T1)}, {WS_RA+R_VP}
            s_lshl_b32 {s(S_T0)}, {s(S_T0)}, 2
            s_add_u32 {s(S_T0)}, {s(S_T0)}, {s(S_RQ)}
            s_lshl_b32 {s(S_T0)}, {s(S_T0)}, 2
            s_add_u32 {s(S_T0)}, {s(S_T0)}, {s(S_W)}
            s_lshl_b32 {s(S_T0)}, {s(S_T0)}, 7
            s_add_u32 {s(S_T0)}, {s(S_T0)}, {WS_RA+R_ST}
            s_add_u32 {s(S_T2)}, {s(S_T0)}, {R_SIZE}
            s_add_u32 {s(S_T3)}, {s(S_T1)}, {R_SIZE}
            v_add_u32 {v(V_T3)}, 4096, {v(V_L16)}
            s_waitcnt lgkmcnt(0)
            """)
            for c in range(6):
                for h in range(2):
                    g(f"v_pk_mul_f32 {v(ACC+4*c+2*h,2)}, {v(ACC+4*c+2*h,2)}, {v(RT+2*h,2)}")
            for i in range(12):
                g(f"v_cvt_pk_bf16_f32 {v(PK+i)}, {v(ACC+2*i)}, {v(ACC+2*i+1)}")
            for cp, (so, sc) in enumerate(((S_T1, ""), (S_T3, " sc1"))):
                for c in range(6):
                    vo, off = (V_L16, c * 1024) if c < 4 else (V_T3, (c - 4) * 1024)
                    g(f"buffer_store_dwordx2 {v(PK+2*c,2)}, {v(vo)}, {s(SRD_WS,4)}, {s(so)} offen offset:{off}{sc}")
                g(f"""
                s_mov_b32 exec_hi, 0
                buffer_store_dword {v(V_T1)}, {v(V_T2)}, {s(SRD_WS,4)}, {s(S_T0 if cp == 0 else S_T2)} offen{sc}
                s_mov_b32 exec_hi, -1
                """)
            kloads(KE, 48)
            g(f"s_waitcnt vmcnt({7+48-KE})")
    g(f"""
    L_p2_done:
    s_lshl_b32 {s(S_T0)}, s2, 7
    s_lshl_b32 {s(S_T1)}, {s(S_W)}, 2
    s_add_u32 {s(S_T0)}, {s(S_T0)}, {s(S_T1)}
    s_add_u32 {s(S_FB)}, {s(S_T0)}, {WS_F2B}
    s_add_u32 {s(S_T0)}, {s(S_T0)}, {WS_F2A}
    """)
    wave_flag(g, s(S_T0), False)
    g.stamp(13)
    g(f"""
    s_cmp_eq_u32 {s(S_FAST3)}, 0
    s_cbranch_scc1 L_p2_fast
    s_waitcnt vmcnt(0)
    """)
    wave_flag(g, s(S_FB), True)
    g("L_p2_fast:")


def p3(g):
    SA = V_ACC
    LS = V_ACC + 32
    MX = V_ACC + 40
    SQ = V_ACC + 42
    OA = V_BUF
    QB = V_BUF + 48
    RK = V_MISC
    BK = 232
    SG = 248
    PF = V_XF
    g(f"""
    s_cmp_eq_u32 {s(S_FAST3)}, 0
    s_cselect_b32 {s(S_REG)}, 0, {WS_RB-WS_RA}
    s_cselect_b32 {s(S_T0)}, 0, {WS_F2B-WS_F2A}
    s_add_u32 {s(S_REG)}, {s(S_REG)}, {WS_RA}
    s_add_u32 {s(S_T0)}, {s(S_T0)}, {WS_F2A}
    s_lshl_b32 {s(S_T1)}, {s(S_G8)}, 7
    s_add_u32 {s(S_T0)}, {s(S_T0)}, {s(S_T1)}
    """)
    g(f"v_lshrrev_b32 {v(V_T1)}, 2, {v(V_L)}")
    e3_producer_j(g, V_T0, V_T2, V_T1)
    g(f"""
    v_lshlrev_b32 {v(V_T0)}, 10, {v(V_T0)}
    v_and_b32 {v(V_T1)}, 3, {v(V_L)}
    v_lshl_add_u32 {v(V_T0)}, {v(V_T1)}, 2, {v(V_T0)}
    s_bfe_u32 {s(S_T4)}, {s(S_J)}, 0x10002
    s_and_b32 {s(S_T5)}, {s(S_J)}, 3
    s_lshl_b32 {s(S_T6)}, {s(S_G8)}, 2
    s_add_u32 {s(S_T7)}, {s(S_T6)}, {s(S_T5)}
    s_add_u32 {s(S_T6)}, {s(S_T6)}, {s(S_RQ)}
    """)
    g(f"""
    s_lshl_b32 {s(S_T1)}, {s(S_T6)}, 1
    s_add_u32 {s(S_T1)}, {s(S_T1)}, {s(S_T4)}
    s_mul_i32 {s(S_T1)}, {s(S_T1)}, 24576
    s_mul_i32 {s(S_T2)}, {s(S_W)}, 6144
    s_add_u32 {s(S_T1)}, {s(S_T1)}, {s(S_T2)}
    s_add_u32 {s(S_T1)}, {s(S_T1)}, {s(S_REG)}
    s_add_u32 m0, {s(S_T2)}, {L_WVO}
    v_add_u32 {v(V_T3)}, 4096, {v(V_L16)}
    v_lshlrev_b32 {v(V_T4)}, 4, {v(V_G)}
    v_lshlrev_b32 {v(V_T5)}, 2, {v(V_I)}
    """)
    poll(g, V_T0, s(S_T0), s(S_NONCE), "p2f")
    g.stamp(14)
    wave_flag(g, s(S_FB), True)
    for q in range(4):
        g(f"buffer_load_dwordx4 {v(V_L16)}, {s(SRD_WS,4)}, {s(S_T1)} offen offset:{q*1024} sc1 lds")
    g(f"s_add_u32 m0, m0, 4096")
    g(f"s_add_u32 {s(S_T1)}, {s(S_T1)}, 4096")
    for q in range(2):
        g(f"buffer_load_dwordx4 {v(V_L16)}, {s(SRD_WS,4)}, {s(S_T1)} offen offset:{q*1024} sc1 lds")
    g(f"""
    s_lshl_b32 {s(S_T1)}, {s(S_T6)}, 10
    s_lshl_b32 {s(S_T2)}, {s(S_T4)}, 7
    s_add_u32 {s(S_T1)}, {s(S_T1)}, {s(S_T2)}
    s_add_u32 {s(S_T1)}, {s(S_T1)}, {R_SQ}
    s_add_u32 {s(S_T1)}, {s(S_T1)}, {s(S_REG)}
    """)
    for u in range(2):
        for cs in range(4):
            g(f"buffer_load_dword {v(SG+4*u+cs)}, {v(V_T5)}, {s(SRD_WS,4)}, {s(S_T1)} offen offset:{cs*256+u*64} sc1")
    g(f"""
    s_lshl_b32 {s(S_T1)}, {s(S_T7)}, 11
    s_lshl_b32 {s(S_T2)}, {s(S_W)}, 7
    s_add_u32 {s(S_T1)}, {s(S_T1)}, {s(S_T2)}
    s_add_u32 {s(S_T1)}, {s(S_T1)}, {R_ST}
    s_add_u32 {s(S_T1)}, {s(S_T1)}, {s(S_REG)}
    """)
    for sl in range(4):
        g(f"""
        s_xor_b32 {s(S_T2)}, {s(S_RQ)}, {sl}
        s_lshl_b32 {s(S_T2)}, {s(S_T2)}, 9
        s_add_u32 {s(S_T2)}, {s(S_T2)}, {s(S_T1)}
        buffer_load_dwordx4 {v(RK+4*sl,4)}, {v(V_T4)}, {s(SRD_WS,4)}, {s(S_T2)} offen sc1
        buffer_load_dwordx4 {v(BK+4*sl,4)}, {v(V_T4)}, {s(SRD_WS,4)}, {s(S_T2)} offen offset:64 sc1
        """)
    g(f"""
    s_mul_i32 {s(S_T1)}, {s(S_T7)}, 49152
    s_mul_i32 {s(S_T2)}, {s(S_W)}, 12288
    s_add_u32 {s(S_T1)}, {s(S_T1)}, {s(S_T2)}
    s_add_u32 {s(S_T1)}, {s(S_T1)}, {R_VP}
    s_add_u32 {s(S_T1)}, {s(S_T1)}, {s(S_REG)}
    s_lshr_b32 {s(S_T2)}, {s(S_RQ)}, 1
    s_mul_i32 {s(S_T2)}, {s(S_T2)}, 6144
    s_add_u32 {s(S_T3)}, {s(S_T1)}, {s(S_T2)}
    s_sub_u32 {s(S_T1)}, {s(S_T1)}, {s(S_T2)}
    s_add_u32 {s(S_T1)}, {s(S_T1)}, 6144
    """)
    for pr, so in ((0, S_T3), (1, S_T1)):
        for c in range(6):
            vo, off = (V_L16, c * 1024) if c < 4 else (V_T3, (c - 4) * 1024)
            g(f"buffer_load_dwordx4 {a(A_V+(pr*6+c)*4,4)}, {v(vo)}, {s(SRD_WS,4)}, {s(so)} offen offset:{off} sc1")
    g(f"""
    v_add_u32 {v(V_AD)}, {L_WVO}, {v(V_L16)}
    s_waitcnt vmcnt(28)
    s_barrier
    """)
    g.stamp(15)
    items = []
    for u in range(2):
        for ks in range(12):
            b = QB + ((u * 12 + ks) % 4) * 4
            rd = [f"ds_read_b128 {v(b,4)}, {v(V_AD)} offset:{u*12288+ks*1024}"]
            cm = []
            for sl in range(4):
                d = SA + u * 16 + sl * 4
                cc = "0" if ks == 0 else v(d, 4)
                cm.append(f"v_mfma_f32_16x16x32_bf16 {v(d,4)}, {kreg(sl,ks)}, {v(b,4)}, {cc}")
            items.append((rd, cm))
    pipelined(g, items, 3)
    g("s_waitcnt vmcnt(12)")
    for u in range(2):
        g(f"v_add_f32 {v(SG+4*u)}, {v(SG+4*u)}, {v(SG+4*u+1)}")
        g(f"v_add_f32 {v(SG+4*u+2)}, {v(SG+4*u+2)}, {v(SG+4*u+3)}")
        g(f"v_add_f32 {v(SQ+u)}, {v(SG+4*u)}, {v(SG+4*u+2)}")
    for u in range(2):
        TMP = SG
        g(f"v_mov_b32 {v(TMP)}, {v(SQ+u)}")
        g(f"v_mov_b32 {v(TMP+1)}, {v(SQ+u)}")
        for i in range(8):
            d = SA + u * 16 + 2 * i
            g(f"v_pk_mul_f32 {v(TMP+2,2)}, {v(BK+2*i,2)}, {v(TMP,2)}")
            g(f"v_pk_fma_f32 {v(d,2)}, {v(d,2)}, {v(RK+2*i,2)}, {v(TMP+2,2)} neg_lo:[0,0,1] neg_hi:[0,0,1]")
        d = SA + u * 16
        g(f"v_max3_f32 {v(MX+u)}, {v(d)}, {v(d+1)}, {v(d+2)}")
        for i in range(3, 15, 2):
            g(f"v_max3_f32 {v(MX+u)}, {v(MX+u)}, {v(d+i)}, {v(d+i+1)}")
        g(f"v_max_f32 {v(MX+u)}, {v(MX+u)}, {v(d+15)}")
        xlane_sum(g, MX + u, V_T0, "v_max_f32")
        g(f"v_mov_b32 {v(TMP)}, {v(MX+u)}")
        g(f"v_mov_b32 {v(TMP+1)}, {v(MX+u)}")
        for i in range(8):
            g(f"v_pk_add_f32 {v(d+2*i,2)}, {v(d+2*i,2)}, {v(TMP,2)} neg_lo:[0,1] neg_hi:[0,1]")
        for i in range(16):
            g(f"v_exp_f32 {v(d+i)}, {v(d+i)}")
    g(f"""
    s_bitcmp1_b32 {s(S_RQ)}, 0
    s_cbranch_scc1 L_p3_odd
    """)
    for odd in range(2):
        if odd:
            g("L_p3_odd:")
        for u in range(2):
            for sl in range(4):
                for h in range(2):
                    dst = PF + u * 8 + (sl >> 1) * 4 + ((sl & 1) ^ odd) * 2 + h
                    src = SA + u * 16 + sl * 4 + 2 * h
                    g(f"v_cvt_pk_bf16_f32 {v(dst)}, {v(src)}, {v(src+1)}")
        if not odd:
            g("s_branch L_p3_pv")
    g("L_p3_pv:")
    g("s_waitcnt vmcnt(0)")
    g.nop(1)
    for u in range(2):
        for pr in range(2):
            p = v(PF + u * 8 + pr * 4, 4)
            for c in range(6):
                d = OA + u * 24 + c * 4
                mfma32(g, v(d, 4), a(A_V + (pr * 6 + c) * 4, 4), p, "0" if pr == 0 else None)
            mfma32(g, v(LS + 4 * u, 4), v(V_ONES, 4), p, "0" if pr == 0 else None)
    g(f"""
    s_lshl_b32 {s(S_T0)}, {s(S_W)}, 11
    v_add_u32 {v(V_T0)}, {s(S_T0)}, {v(V_L16)}
    s_lshl_b32 {s(S_T0)}, {s(S_W)}, 8
    s_add_u32 {s(S_T0)}, {s(S_T0)}, {L_ML}
    v_lshlrev_b32 {v(V_T1)}, 3, {v(V_I)}
    v_add_u32 {v(V_T2)}, {s(S_T0)}, {v(V_T1)}
    """)
    g.nop(2)
    for u in range(2):
        for m in range(3):
            unit = 2 * m + u
            for h in range(2):
                g(f"ds_write_b128 {v(V_T0)}, {v(OA+u*24+(2*m+h)*4,4)} offset:{unit*8192+h*1024}")
    for u in range(2):
        g(f"v_mov_b32 {v(V_T4+2*u)}, {v(MX+u)}")
        g(f"v_mov_b32 {v(V_T5+2*u)}, {v(LS+4*u)}")
        g(f"ds_write_b64 {v(V_T2)}, {v(V_T4+2*u,2)} offset:{u*128}")
    g(f"""
    s_and_b32 {s(S_T0)}, {s(S_W)}, 1
    s_lshl_b32 {s(S_T1)}, {s(S_T0)}, 7
    s_add_u32 {s(S_T1)}, {s(S_T1)}, {L_ML}
    v_add_u32 {v(V_T1)}, {s(S_T1)}, {v(V_T1)}
    s_lshl_b32 {s(S_T1)}, {s(S_W)}, 13
    v_add_u32 {v(V_T0)}, {s(S_T1)}, {v(V_L16)}
    s_lshl_b32 {s(S_T1)}, {s(S_T4)}, 1
    s_add_u32 {s(S_T1)}, {s(S_T1)}, {s(S_T0)}
    s_lshl_b32 {s(S_T1)}, {s(S_T1)}, 6
    s_lshr_b32 {s(S_T2)}, {s(S_RQ)}, 1
    s_lshl_b32 {s(S_T2)}, {s(S_T2)}, 5
    s_add_u32 {s(S_T1)}, {s(S_T1)}, {s(S_T2)}
    s_and_b32 {s(S_T2)}, {s(S_RQ)}, 1
    s_lshl_b32 {s(S_T2)}, {s(S_T2)}, 2
    s_add_u32 {s(S_T1)}, {s(S_T1)}, {s(S_T2)}
    s_lshl_b32 {s(S_T2)}, {s(S_G8)}, 8
    s_add_u32 {s(S_T1)}, {s(S_T1)}, {s(S_T2)}
    s_mul_i32 {s(S_T1)}, {s(S_T1)}, 768
    s_mul_i32 {s(S_T2)}, {s(S_T5)}, 192
    s_add_u32 {s(S_T1)}, {s(S_T1)}, {s(S_T2)}
    s_lshr_b32 {s(S_T2)}, {s(S_W)}, 1
    s_lshl_b32 {s(S_T2)}, {s(S_T2)}, 6
    s_add_u32 {s(S_T2)}, {s(S_T2)}, {s(S_T1)}
    v_lshrrev_b32 {v(V_T2)}, 2, {v(V_I)}
    v_lshlrev_b32 {v(V_T2)}, 3, {v(V_T2)}
    v_and_b32 {v(V_T3)}, 3, {v(V_I)}
    v_add_u32 {v(V_T2)}, {v(V_T2)}, {v(V_T3)}
    v_mul_u32_u24 {v(V_T2)}, 768, {v(V_T2)}
    v_lshl_add_u32 {v(V_T2)}, {v(V_G)}, 4, {v(V_T2)}
    s_waitcnt lgkmcnt(0)
    s_barrier
    """)
    ML = V_ACC
    FW = V_ACC + 8
    RD = V_BUF
    for w in range(4):
        g(f"ds_read_b64 {v(ML+2*w,2)}, {v(V_T1)} offset:{w*256}")
    for rnd in range(2):
        if rnd == 1:
            g(f"""
            s_cmp_ge_u32 {s(S_W)}, 2
            s_cbranch_scc1 L_fin
            """)
        for w in range(4):
            for h in range(2):
                g(f"ds_read_b128 {v(RD+w*8+h*4,4)}, {v(V_T0)} offset:{rnd*32768+w*2048+h*1024}")
        if rnd == 0:
            g(f"""
            s_waitcnt lgkmcnt(8)
            v_max3_f32 {v(V_T3)}, {v(ML)}, {v(ML+2)}, {v(ML+4)}
            v_max_f32 {v(V_T3)}, {v(V_T3)}, {v(ML+6)}
            """)
            for w in range(4):
                g(f"v_sub_f32 {v(FW+2*w)}, {v(ML+2*w)}, {v(V_T3)}")
            for w in range(4):
                g(f"v_exp_f32 {v(FW+2*w)}, {v(FW+2*w)}")
            g(f"""
            s_nop 0
            v_mul_f32 {v(V_T3)}, {v(FW)}, {v(ML+1)}
            v_fmac_f32 {v(V_T3)}, {v(FW+2)}, {v(ML+3)}
            v_fmac_f32 {v(V_T3)}, {v(FW+4)}, {v(ML+5)}
            v_fmac_f32 {v(V_T3)}, {v(FW+6)}, {v(ML+7)}
            v_rcp_f32 {v(V_T3)}, {v(V_T3)}
            s_nop 0
            """)
            for w in range(4):
                g(f"v_mul_f32 {v(FW+2*w)}, {v(FW+2*w)}, {v(V_T3)}")
                g(f"v_mov_b32 {v(FW+2*w+1)}, {v(FW+2*w)}")
        OUT = V_ACC + 16
        for i in range(8):
            src = V_RES + 4 * rnd + (i >> 1)
            if i & 1:
                g(f"v_and_b32 {v(OUT+i)}, 0xffff0000, {v(src)}")
            else:
                g(f"v_lshlrev_b32 {v(OUT+i)}, 16, {v(src)}")
        for w in range(4):
            g(f"s_waitcnt lgkmcnt({6-2*w})")
            for i in range(4):
                g(f"v_pk_fma_f32 {v(OUT+2*i,2)}, {v(RD+w*8+2*i,2)}, {v(FW+2*w,2)}, {v(OUT+2*i,2)}")
        PK = V_ACC + 24 + 4 * rnd
        for i in range(4):
            g(f"v_cvt_pk_bf16_f32 {v(PK+i)}, {v(OUT+2*i)}, {v(OUT+2*i+1)}")
        if rnd == 0:
            g(f"buffer_store_dwordx4 {v(PK,4)}, {v(V_T2)}, {s(SRD_OUT,4)}, {s(S_T2)} offen")
        else:
            g(f"buffer_store_dwordx4 {v(PK,4)}, {v(V_T2)}, {s(SRD_OUT,4)}, {s(S_T1)} offen offset:128")
    g("L_fin:")


def epilogue(g):
    g(f"""
    s_or_b32 {s(S_T0)}, s2, {s(S_W)}
    s_cmp_lg_u32 {s(S_T0)}, 0
    s_cbranch_scc1 L_nononce
    v_mov_b32 {v(V_T0)}, {s(S_NONCE)}
    v_mov_b32 {v(V_T1)}, 0
    s_mov_b64 exec, 1
    buffer_store_dword {v(V_T0)}, {v(V_T1)}, {s(SRD_WS,4)}, 0 offen
    s_mov_b64 exec, -1
    L_nononce:
    """)
    if g.stamps:
        g(f"""
        s_cmp_lg_u32 {s(S_W)}, 0
        s_cbranch_scc1 L_end
        s_waitcnt vmcnt(0)
        s_memtime s[100:101]
        s_waitcnt lgkmcnt(0)
        s_lshl_b32 {s(S_T0)}, s2, 8
        s_add_u32 {s(S_T0)}, {s(S_T0)}, {WS_STAMP}
        v_mov_b32 {v(V_T1)}, 0
        s_mov_b64 exec, 1
        """)
        for i in range(34):
            g(f"v_mov_b32 {v(V_T0)}, s{S_STAMP+i}")
            g(f"buffer_store_dword {v(V_T0)}, {v(V_T1)}, {s(SRD_WS,4)}, {s(S_T0)} offen offset:{4*i}")
            g("s_nop 1")
    g("L_end:")
    g("s_endpgm")


def build(stamps=False, opts=None):
    g = G(stamps, opts)
    prologue(g)
    g(f"""
    s_cmp_ge_u32 {s(S_CS)}, 6
    s_cbranch_scc1 L_products
    """)
    p0_main(g)
    p1(g)
    g("L_p2:")
    p2(g)
    p3(g)
    epilogue(g)
    g("L_products:")
    products(g)
    g("s_branch L_p2")
    g("L_code_end:")
    hdr = f"""; TimeSformer divided space-time attention block, one persistent launch (256 workgroups, one per CU).
; @launch grid=(256,1,1) block=(256,1,1) lds={LDS_SIZE}
.amdgcn_target "amdgcn-amd-amdhsa--gfx950"
.text
.globl {KNAME}
.p2align 8
.type {KNAME},@function
{KNAME}:
"""
    ftr = f"""
.section .rodata,"a"
.p2align 6
.amdhsa_kernel {KNAME}
  .amdhsa_next_free_vgpr 512
  .amdhsa_next_free_sgpr 102
  .amdhsa_accum_offset 256
  .amdhsa_group_segment_fixed_size 0
  .amdhsa_kernarg_size 64
  .amdhsa_user_sgpr_count 2
  .amdhsa_user_sgpr_kernarg_segment_ptr 1
  .amdhsa_system_sgpr_workgroup_id_x 1
.end_amdhsa_kernel
"""
    return hdr + "\n".join(g.L) + ftr


if __name__ == "__main__":
    out = sys.argv[1]
    stamps = "--stamps" in sys.argv
    opts = {}
    for x in sys.argv[2:]:
        if "=" in x:
            k, val = x.split("=")
            opts[k] = int(val)
    open(out, "w").write(build(stamps, opts))
```

```python
import sys, math

KNAME = "standalone__video_timesformer__vision_kernel"

WS_NONCE = 0
WS_FXCC = 0x1000
WS_FP = 0x9000
WS_FX = 0xD000
WS_F2 = 0x13000
WS_SP = 0x1B000
WS_STX = 0x7B000
WS_SQ = 0xAB000
WS_WVOT = 0xB3000
WS_WS2 = 0xFB000
WS_X1 = 0x18B000
WS_QP = 0x30B000
WS_VP = 0x48B000
WS_STAMP = 0x60B000
WS_SIZE = WS_STAMP + 256 * 256

L_W = 0
L_WVO = 98304
L_CT0 = 147456
L_CT1 = L_CT0 + 1024
L_CT2 = L_CT1 + 512
L_ML = L_CT2 + 1024
L_ST = L_ML + 1024
L_SG = L_ST + 3072
LDS_SIZE = L_SG + 512

SPIN_LIMIT = 40000
SCALE_LOG2E = (384 ** -0.5) * math.log2(math.e)


def f2u(x):
    import struct
    return struct.unpack("<I", struct.pack("<f", x))[0]


class G:
    def __init__(self, stamps=False, opts=None):
        self.L = []
        self.stamps = stamps
        self.nstamp = 0
        self.uid = 0
        self.opts = opts or {}

    def __call__(self, s):
        for line in s.split("\n"):
            line = line.strip()
            if line:
                self.L.append("    " + line if not line.endswith(":") else line)

    def label(self, p):
        self.uid += 1
        return f"L_{p}_{self.uid}"

    def nop(self, n):
        while n > 0:
            k = min(n, 16)
            self(f"s_nop {k-1}")
            n -= k

    def stamp(self, name, wait=True):
        if self.stamps and name in self.stamps:
            idx = 1 + self.stamps.index(name)
            self(f"s_memtime s[{S_STAMP+2*idx}:{S_STAMP+2*idx+1}]")
            if wait:
                self("s_waitcnt lgkmcnt(0)")


def v(a, n=1):
    return f"v{a}" if n == 1 else f"v[{a}:{a+n-1}]"


def a(x, n=1):
    return f"a{x}" if n == 1 else f"a[{x}:{x+n-1}]"


def s(x, n=1):
    return f"s{x}" if n == 1 else f"s[{x}:{x+n-1}]"


S_X, S_WQT, S_WOT, S_WQS, S_WOS, S_OUT, S_DBG, S_WS = 4, 6, 8, 10, 12, 14, 16, 18
S_G8, S_J, S_W, S_NONCE, S_ME = 20, 21, 22, 23, 24
S_RB = 25
S_T0, S_T1, S_T2, S_T3 = 27, 28, 29, 30
S_SPIN = 31
SRD_WS = 32
SRD_A = 36
SRD_B = 40
SRD_OUT = 44
S_VALID = 48
S_G0 = 50
S_TAG = 52
S_M = 56
S_ONES = 58
S_RQ = 59
S_CS = 60
S_SLOW = 61
S_F1 = 62
S_F2 = 63
S_T4, S_T5, S_T6, S_T7 = 64, 65, 66, 67
S_DIAG = 100
S_STAMP = 82

V_TID, V_L, V_I, V_G = 0, 1, 2, 3
V_T0, V_T1, V_T2, V_T3, V_T4, V_T5, V_T6, V_T7 = 4, 5, 6, 7, 8, 9, 10, 11
V_ONES = 12
V_XF = 16
V_MU = 64
V_R = 66
V_MEAN = 67
V_L16 = 68
V_MASK = 69
V_S1A, V_S1B, V_S2A, V_S2B = 70, 71, 72, 73
V_AD = 74
V_BUF = 80
V_ACC = 144
V_MISC = 192
V_ZERO, V_NONCE, V_PA, V_PB = 228, 229, 230, 231


def row_stats_dots(g, lo, hi):
    for r in range(lo, hi):
        g(f"v_dot2c_f32_bf16 {v(V_S1A + (r & 1))}, {s(S_ONES)}, {v(V_XF + r)}")
        g(f"v_dot2c_f32_bf16 {v(V_S2A + (r & 1))}, {v(V_XF + r)}, {v(V_XF + r)}")


def xlane_sum(g, r, t, op="v_add_f32"):
    g(f"v_mov_b32 {v(t)}, {v(r)}")
    g.nop(2)
    g(f"v_permlane16_swap_b32 {v(r)}, {v(t)}")
    g.nop(1)
    g(f"{op} {v(r)}, {v(r)}, {v(t)}")
    g(f"v_mov_b32 {v(t)}, {v(r)}")
    g.nop(2)
    g(f"v_permlane32_swap_b32 {v(r)}, {v(t)}")
    g.nop(1)
    g(f"{op} {v(r)}, {v(r)}, {v(t)}")


def row_stats_finish(g):
    g.nop(3)
    g(f"v_add_f32 {v(V_S1A)}, {v(V_S1A)}, {v(V_S1B)}")
    g(f"v_add_f32 {v(V_S2A)}, {v(V_S2A)}, {v(V_S2B)}")
    xlane_sum(g, V_S1A, V_T0)
    xlane_sum(g, V_S2A, V_T1)
    g(f"""
    v_mul_f32 {v(V_MEAN)}, {f2u(1/384.):#x}, {v(V_S1A)}
    v_mul_f32 {v(V_T0)}, {f2u(1/384.):#x}, {v(V_S2A)}
    v_fma_f32 {v(V_T0)}, -{v(V_MEAN)}, {v(V_MEAN)}, {v(V_T0)}
    v_max_f32 {v(V_T0)}, 0, {v(V_T0)}
    v_add_f32 {v(V_T0)}, {f2u(1e-5):#x}, {v(V_T0)}
    v_rsq_f32 {v(V_R)}, {v(V_T0)}
    v_cvt_pk_bf16_f32 {v(V_T1)}, -{v(V_MEAN)}, -{v(V_MEAN)}
    v_lshlrev_b32 {v(V_T1)}, 16, {v(V_T1)}
    v_sub_f32 {v(V_T1)}, -{v(V_MEAN)}, {v(V_T1)}
    v_cvt_pk_bf16_f32 {v(V_T1)}, -{v(V_MEAN)}, {v(V_T1)}
    v_cndmask_b32 {v(V_MU)}, 0, {v(V_T1)}, {s(S_G0,2)}
    v_cndmask_b32 {v(V_MU+1)}, 0, {v(V_T1)}, {s(S_G0,2)}
    """)


def mean_rstd(g, s1, s2, mean, rstd):
    g(f"""
    v_mul_f32 {v(mean)}, {f2u(1/384.):#x}, {v(s1)}
    v_mul_f32 {v(rstd)}, {f2u(1/384.):#x}, {v(s2)}
    v_fma_f32 {v(rstd)}, -{v(mean)}, {v(mean)}, {v(rstd)}
    v_max_f32 {v(rstd)}, 0, {v(rstd)}
    v_add_f32 {v(rstd)}, {f2u(1e-5):#x}, {v(rstd)}
    v_rsq_f32 {v(rstd)}, {v(rstd)}
    """)


def mu_operand(g, mean):
    g(f"""
    v_cvt_pk_bf16_f32 {v(V_T1)}, -{v(mean)}, -{v(mean)}
    v_lshlrev_b32 {v(V_T1)}, 16, {v(V_T1)}
    v_sub_f32 {v(V_T1)}, -{v(mean)}, {v(V_T1)}
    v_cvt_pk_bf16_f32 {v(V_T1)}, -{v(mean)}, {v(V_T1)}
    v_cndmask_b32 {v(V_MU)}, 0, {v(V_T1)}, {s(S_G0,2)}
    v_cndmask_b32 {v(V_MU+1)}, 0, {v(V_T1)}, {s(S_G0,2)}
    """)


def colsum_pack(g, src, dst):
    g(f"""
    v_cvt_pk_bf16_f32 {v(dst)}, {v(src)}, {v(src)}
    v_lshlrev_b32 {v(dst+1)}, 16, {v(dst)}
    v_sub_f32 {v(dst+1)}, {v(src)}, {v(dst+1)}
    v_cvt_pk_bf16_f32 {v(dst+1)}, {v(dst+1)}, {v(dst+1)}
    """)


def poll(g, voff, soff, want, name):
    lp, done = g.label(name), g.label(name + "_ok")
    g(f"s_mov_b32 {s(S_SPIN)}, {SPIN_LIMIT}")
    g(f"{lp}:")
    g(f"""
    buffer_load_dword {v(V_T7)}, {v(voff)}, {s(SRD_WS,4)}, {soff} offen sc1
    s_waitcnt vmcnt(0)
    v_cmp_ne_u32 vcc, {want}, {v(V_T7)}
    s_cbranch_vccz {done}
    s_sub_u32 {s(S_SPIN)}, {s(S_SPIN)}, 1
    s_cbranch_scc0 {lp}
    {done}:
    """)


def mfma32(g, d, A, B, c=None):
    g(f"v_mfma_f32_16x16x32_bf16 {d}, {A}, {B}, {c if c is not None else d}")


def mfma16(g, d, A, B, c=None):
    g(f"v_mfma_f32_16x16x16_bf16 {d}, {A}, {B}, {c if c is not None else d}")


def pipelined(g, items, depth_reads, group=1):
    n = len(items)
    issued = 0
    cum = [0]
    for it in items:
        cum.append(cum[-1] + len(it[0]))
    for i in range(0, n, group):
        hi = min(i + group, n)
        while issued < n and (issued < hi or cum[issued + 1] - cum[i] <= depth_reads):
            if len(items[issued]) > 2:
                for p in items[issued][2]:
                    g(p)
            for r in items[issued][0]:
                g(r)
            issued += 1
        g(f"s_waitcnt lgkmcnt({cum[issued] - cum[hi]})")
        for k in range(i, hi):
            for c in items[k][1]:
                g(c)


def capture(g, fn):
    keep = g.L
    g.L = []
    fn()
    out = [x.strip() for x in g.L]
    g.L = keep
    return out


def prologue(g):
    g(f"""
    s_cmp_ge_u32 s2, 256
    s_cbranch_scc1 L_end
    s_load_dwordx16 s[4:19], s[0:1], 0
    """)
    if g.stamps:
        for i in range(S_STAMP, 100):
            g(f"s_mov_b32 s{i}, 0")
        g(f"s_memrealtime s[{S_STAMP}:{S_STAMP+1}]")
        g.stamp('start', False)
    g(f"""
    s_and_b32 {s(S_G8)}, s2, 7
    s_lshr_b32 {s(S_J)}, s2, 3
    v_lshrrev_b32 {v(V_T0)}, 6, v0
    v_and_b32 {v(V_L)}, 63, v0
    v_readfirstlane_b32 {s(S_W)}, {v(V_T0)}
    v_and_b32 {v(V_I)}, 15, v0
    v_bfe_u32 {v(V_G)}, v0, 4, 2
    v_lshlrev_b32 {v(V_L16)}, 4, {v(V_L)}
    s_lshr_b32 {s(S_RQ)}, {s(S_J)}, 3
    s_and_b32 {s(S_CS)}, {s(S_J)}, 7
    s_lshl_b32 {s(S_RB)}, {s(S_RQ)}, 3
    s_add_u32 {s(S_RB)}, {s(S_RB)}, {s(S_G8)}
    s_mov_b32 {s(SRD_A+3)}, 0x20000
    s_mov_b32 {s(SRD_B+3)}, 0x20000
    s_mov_b32 {s(SRD_WS+3)}, 0x20000
    s_mov_b32 {s(SRD_WS+2)}, {WS_SIZE}
    s_cmp_ge_u32 {s(S_CS)}, 6
    s_waitcnt lgkmcnt(0)
    s_load_dword {s(S_NONCE)}, {s(S_WS,2)}, {WS_NONCE}
    """)


def touches(g):
    lb = g.label("pc")
    g(f"""
    s_getpc_b64 {s(S_M,2)}
    {lb}:
    s_lshl_b32 {s(S_T0)}, {s(S_J)}, 2
    s_add_u32 {s(S_T0)}, {s(S_T0)}, {s(S_W)}
    s_lshl_b32 {s(S_T0)}, {s(S_T0)}, 8
    s_min_u32 {s(S_T0)}, {s(S_T0)}, L_code_end-{lb}-256
    v_lshlrev_b32 {v(V_T0)}, 7, {v(V_L)}
    v_add_u32 {v(V_T1)}, {s(S_T0)}, {v(V_T0)}
    s_mov_b64 exec, {3 if g.opts.get("codepf", 1) else 1}
    global_load_dword {v(V_MISC+62)}, {v(V_T1)}, {s(S_M,2)}
    s_mul_i32 {s(S_T0)}, {s(S_W)}, {16*98304}
    v_mul_u32_u24 {v(V_T1)}, 98304, {v(V_L)}
    v_add_u32 {v(V_T1)}, {s(S_T0)}, {v(V_T1)}
    s_mov_b64 exec, {0xffff if g.opts.get("wstouch", 0) else 1}
    global_load_dword {v(V_MISC+63)}, {v(V_T1)}, {s(S_WS,2)} offset:64
    s_mov_b64 exec, -1
    """)


def common_consts(g):
    g(f"""
    s_mov_b32 {s(SRD_WS)}, {s(S_WS)}
    s_mov_b32 {s(SRD_WS+1)}, {s(S_WS+1)}
    s_mov_b32 {s(SRD_OUT)}, {s(S_OUT)}
    s_mov_b32 {s(SRD_OUT+1)}, {s(S_OUT+1)}
    s_mov_b32 {s(SRD_OUT+2)}, 1572864
    s_mov_b32 {s(SRD_OUT+3)}, 0x20000
    s_mov_b32 {s(S_ONES)}, 0x3f803f80
    s_getreg_b32 {s(S_ME)}, hwreg(HW_REG_XCC_ID, 0, 3)
    v_mov_b32 {v(V_ONES)}, {s(S_ONES)}
    v_mov_b32 {v(V_ONES+1)}, {s(S_ONES)}
    v_mov_b32 {v(V_ONES+2)}, {s(S_ONES)}
    v_mov_b32 {v(V_ONES+3)}, {s(S_ONES)}
    v_mov_b32 {v(V_MASK)}, 0xffffff00
    v_mov_b32 {v(V_ZERO)}, 0
    v_cmp_eq_u32 {s(S_G0,2)}, 0, {v(V_G)}
    v_lshrrev_b32 {v(V_T0)}, 1, {v(V_G)}
    v_lshrrev_b32 {v(V_T1)}, 3, {v(V_I)}
    v_cmp_eq_u32 {s(S_VALID,2)}, {v(V_T0)}, {v(V_T1)}
    v_lshrrev_b32 {v(V_T1)}, 2, {v(V_I)}
    v_cmp_eq_u32 {s(S_DIAG,2)}, {v(V_G)}, {v(V_T1)}
    """)
    g(f"""
    v_subrev_u32 {v(V_T0)}, 32, {v(V_L)}
    v_min_u32 {v(V_T0)}, 5, {v(V_T0)}
    v_mul_u32_u24 {v(V_T0)}, 768, {v(V_T0)}
    s_min_u32 {s(S_T0)}, {s(S_CS)}, 5
    s_lshl_b32 {s(S_T0)}, {s(S_T0)}, 7
    s_add_u32 {s(S_T0)}, {s(S_T0)}, {WS_FP}
    v_add_u32 {v(V_T0)}, {s(S_T0)}, {v(V_T0)}
    s_lshl_b32 {s(S_T0)}, {s(S_G8)}, 7
    s_add_u32 {s(S_T0)}, {s(S_T0)}, {WS_FXCC}
    v_lshlrev_b32 {v(V_T1)}, 10, {v(V_L)}
    v_add_u32 {v(V_T1)}, {s(S_T0)}, {v(V_T1)}
    v_cmp_gt_u32 vcc, 32, {v(V_L)}
    v_min_u32 {v(V_PB)}, 35, {v(V_L)}
    v_lshlrev_b32 {v(V_PB)}, 7, {v(V_PB)}
    v_cndmask_b32 {v(V_PA)}, {v(V_T0)}, {v(V_T1)}, vcc
    s_cmp_lt_u32 {s(S_CS)}, 4
    s_cselect_b32 {s(S_T0)}, 0, {36*128}
    s_add_u32 {s(S_T0)}, {s(S_T0)}, {WS_FP+36*128}
    v_add_u32 {v(V_PB)}, {s(S_T0)}, {v(V_PB)}
    """)


def nonce_and_publish(g):
    g(f"""
    s_waitcnt lgkmcnt(0)
    s_and_b32 {s(S_T0)}, {s(S_NONCE)}, 0x78787878
    s_add_u32 {s(S_T0)}, {s(S_T0)}, 0x08080808
    s_and_b32 {s(S_T1)}, {s(S_NONCE)}, 0x80808080
    s_xor_b32 {s(S_NONCE)}, {s(S_T0)}, {s(S_T1)}
    s_or_b32 {s(S_ME)}, {s(S_ME)}, {s(S_NONCE)}
    s_lshl_b32 {s(S_T0)}, s2, 7
    s_add_u32 {s(S_T0)}, {s(S_T0)}, {WS_FXCC}
    v_mov_b32 {v(V_T0)}, {s(S_ME)}
    v_mov_b32 {v(V_NONCE)}, {s(S_NONCE)}
    s_mov_b64 exec, 1
    buffer_store_dword {v(V_T0)}, {v(V_ZERO)}, {s(SRD_WS,4)}, {s(S_T0)} offen sc1
    s_mov_b64 exec, -1
    s_and_b32 {s(S_TAG)}, {s(S_NONCE)}, 0xff
    s_bfe_u32 {s(S_TAG+1)}, {s(S_NONCE)}, 0x80008
    s_bfe_u32 {s(S_TAG+2)}, {s(S_NONCE)}, 0x80010
    s_lshr_b32 {s(S_TAG+3)}, {s(S_NONCE)}, 24
    """)


def flag_store(g, soff):
    sk = g.label("nofl")
    g(f"""
    s_cmp_lg_u32 {s(S_W)}, 0
    s_cbranch_scc1 {sk}
    s_mov_b64 exec, 1
    buffer_store_dword {v(V_NONCE)}, {v(V_ZERO)}, {s(SRD_WS,4)}, {soff} offen sc1
    s_mov_b64 exec, -1
    {sk}:
    """)


def pa_eval(g):
    g(f"""
    v_and_b32 {v(V_T6)}, -8, {v(V_T7)}
    v_cmp_ne_u32 vcc, {s(S_NONCE)}, {v(V_T6)}
    s_mov_b32 {s(S_F1)}, vcc_lo
    s_mov_b32 {s(S_F2)}, vcc_hi
    v_cmp_ne_u32 vcc, {s(S_ME)}, {v(V_T7)}
    s_mov_b32 {s(S_SLOW)}, vcc_lo
    """)


def pa_wait(g, reg, name):
    lp, done = g.label(name), g.label(name + "_ok")
    g(f"""
    s_cmp_eq_u32 {s(reg)}, 0
    s_cbranch_scc1 {done}
    s_mov_b32 {s(S_SPIN)}, {SPIN_LIMIT}
    {lp}:
    buffer_load_dword {v(V_T7)}, {v(V_PA)}, {s(SRD_WS,4)}, 0 offen sc1
    s_waitcnt vmcnt(0)
    """)
    pa_eval(g)
    g(f"""
    s_cmp_eq_u32 {s(reg)}, 0
    s_cbranch_scc1 {done}
    s_sub_u32 {s(S_SPIN)}, {s(S_SPIN)}, 1
    s_cbranch_scc0 {lp}
    {done}:
    """)


def both_modes(g, emit):
    ls, le = g.label("slow"), g.label("join")
    g(f"""
    s_cmp_lg_u32 {s(S_SLOW)}, 0
    s_cbranch_scc1 {ls}
    """)
    emit("")
    g(f"s_branch {le}")
    g(f"{ls}:")
    emit(" sc1")
    g(f"{le}:")


S_WD0, S_WD1 = S_T6, S_T7
S_SPO = S_T4
S_WV, S_WVI = 0, 1
XR = V_MISC
VW = V_MISC + 8
VS = V_MISC + 12
RS = V_MISC + 16
FS = V_MISC + 20
V_XO = V_MISC + 13
S_XO = 26


def wchunk(g, jj):
    g(f"s_mov_b32 m0, {s(S_WD1)}")
    g(f"s_add_u32 {s(S_WD1)}, {s(S_WD1)}, 16384")
    for q in range(4):
        g(f"buffer_load_dwordx4 {v(VW+q)}, {s(SRD_B,4)}, {s(S_WD0)} offen offset:{q*1024} lds")
    for q in range(2):
        g(f"buffer_load_dwordx4 {v(V_XF+8*jj+4*q,4)}, {v(V_XO)}, {s(SRD_A,4)}, {s(S_XO)} offen offset:{q*64}")
    if jj < 5:
        g(f"""
        s_add_u32 {s(S_CH)}, {s(S_CH)}, 1
        s_cmp_eq_u32 {s(S_CH)}, 6
        s_cselect_b32 {s(S_T0)}, {-5*8*18432 & 0xffffffff}, {s(S_WSTEP)}
        s_cselect_b32 {s(S_T1)}, {-5*128 & 0xffffffff}, {s(S_XSTEP)}
        s_add_u32 {s(S_WD0)}, {s(S_WD0)}, {s(S_T0)}
        s_add_u32 {s(S_XO)}, {s(S_XO)}, {s(S_T1)}
        """)


def wvo_group(g, st):
    g(f"""
    s_add_u32 {s(S_T1)}, {s(S_SIG2)}, {4*st}
    s_cmp_ge_u32 {s(S_T1)}, 12
    s_cselect_b32 {s(S_T2)}, 12, 0
    s_sub_u32 {s(S_T1)}, {s(S_T1)}, {s(S_T2)}
    s_lshl_b32 {s(S_T2)}, {s(S_W)}, 12
    s_add_u32 m0, {s(S_T2)}, {L_WVO + st*16384}
    s_lshl_b32 {s(S_T1)}, {s(S_T1)}, 12
    s_add_u32 {s(S_T1)}, {s(S_T1)}, {s(S_WV)}
    """)
    for q in range(4):
        g(f"buffer_load_dwordx4 {v(V_L16)}, {s(SRD_WS,4)}, {s(S_T1)} offen offset:{q*1024} sc1 lds")


S_CH, S_WSTEP, S_XSTEP, S_SIG2, S_XR = 68, 69, 70, 71, 72
S_X1O, S_FXO, S_STO = 73, 74, 75
A1 = [236, 237, 238]
C1 = [239, 240]
XA = 241


def p0_issue(g):
    S_CB = S_CS
    AH = g.opts.get("ahead", 2)
    g(f"""
    s_lshl_b32 {s(S_CH)}, {s(S_RQ)}, 1
    s_add_u32 {s(S_CH)}, {s(S_CH)}, {s(S_CB)}
    s_cmp_ge_u32 {s(S_CH)}, 6
    s_cselect_b32 {s(S_T0)}, 6, 0
    s_sub_u32 {s(S_CH)}, {s(S_CH)}, {s(S_T0)}
    """)
    if not g.opts.get("rot", 0):
        g(f"s_mov_b32 {s(S_CH)}, 0")
    g(f"""
    s_sub_u32 {s(SRD_B)}, {s(S_WQT)}, 4096
    s_subb_u32 {s(SRD_B+1)}, {s(S_WQT+1)}, 0
    s_mov_b32 {s(SRD_B+2)}, {884736+4096}
    v_lshrrev_b32 {v(V_T1)}, 3, {v(V_L)}
    v_mul_u32_u24 {v(V_T2)}, 2304, {v(V_T1)}
    v_and_b32 {v(V_T1)}, 2, {v(V_T1)}
    v_and_b32 {v(V_T3)}, 7, {v(V_L)}
    v_xor_b32 {v(V_T3)}, {v(V_T3)}, {v(V_T1)}
    v_lshl_add_u32 {v(V_T2)}, {v(V_T3)}, 4, {v(V_T2)}
    v_add_u32 {v(VW)}, 4096, {v(V_T2)}
    v_xor_b32 {v(V_T3)}, 64, {v(V_T2)}
    v_add_u32 {v(VW+1)}, {4096+18432-1024}, {v(V_T3)}
    v_add_u32 {v(VW+2)}, {4096+768-2048}, {v(V_T2)}
    v_add_u32 {v(VW+3)}, {4096+18432+768-3072}, {v(V_T3)}
    s_mul_i32 {s(S_WD0)}, {s(S_W)}, {2*18432}
    s_lshl_b32 {s(S_T1)}, {s(S_CB)}, 7
    s_add_u32 {s(S_WD0)}, {s(S_WD0)}, {s(S_T1)}
    s_mov_b32 {s(S_WSTEP)}, {8*18432}
    s_mul_i32 {s(S_T0)}, {s(S_CH)}, {s(S_WSTEP)}
    s_add_u32 {s(S_WD0)}, {s(S_WD0)}, {s(S_T0)}
    s_lshl_b32 {s(S_WD1)}, {s(S_W)}, 12
    s_mov_b32 {s(SRD_A)}, {s(S_X)}
    s_mov_b32 {s(SRD_A+1)}, {s(S_X+1)}
    s_mov_b32 {s(SRD_A+2)}, 1572864
    v_and_b32 {v(V_T0)}, 7, {v(V_I)}
    v_mul_u32_u24 {v(V_T0)}, 196608, {v(V_T0)}
    v_lshrrev_b32 {v(V_T1)}, 3, {v(V_I)}
    v_mul_u32_u24 {v(V_T1)}, 768, {v(V_T1)}
    v_lshlrev_b32 {v(V_T2)}, 4, {v(V_G)}
    v_add3_u32 {v(V_XO)}, {v(V_T0)}, {v(V_T1)}, {v(V_T2)}
    s_lshl_b32 {s(S_T0)}, {s(S_RB)}, 2
    s_add_u32 {s(S_T0)}, {s(S_T0)}, {s(S_W)}
    s_mul_i32 {s(S_SPO)}, {s(S_T0)}, 3072
    s_mul_i32 {s(S_XO)}, {s(S_T0)}, 1536
    s_add_u32 {s(S_XR)}, {s(S_XO)}, {s(S_T1)}
    s_lshl_b32 {s(S_T0)}, {s(S_CH)}, 7
    s_add_u32 {s(S_XO)}, {s(S_XO)}, {s(S_T0)}
    s_movk_i32 {s(S_XSTEP)}, 128
    s_lshl_b32 {s(S_SIG2)}, {s(S_CH)}, 1
    s_add_u32 {s(S_SIG2)}, {s(S_SIG2)}, {s(S_W)}
    """)
    g.stamp('x0', False)
    for jj in range(AH):
        wchunk(g, jj)
    g.stamp('dmaiss', False)


def p0_main(g):
    ACCQ, ACCK = V_ACC, V_ACC + 16
    CSQ, CSK = V_ACC + 32, V_ACC + 36
    SX, SXX = V_ACC + 40, V_ACC + 44
    S_CB = S_CS
    AH = g.opts.get("ahead", 2)
    touches(g)
    common_consts(g)
    g(f"""
    v_lshrrev_b32 {v(V_T0)}, 1, {v(V_G)}
    v_lshlrev_b32 {v(V_T0)}, 12, {v(V_T0)}
    v_and_b32 {v(V_T1)}, 1, {v(V_G)}
    v_lshl_add_u32 {v(V_T0)}, {v(V_T1)}, 10, {v(V_T0)}
    v_lshrrev_b32 {v(V_T2)}, 2, {v(V_I)}
    v_lshl_add_u32 {v(V_T0)}, {v(V_T2)}, 7, {v(V_T0)}
    v_lshrrev_b32 {v(V_T2)}, 3, {v(V_I)}
    v_lshl_or_b32 {v(V_T2)}, {v(V_T1)}, 1, {v(V_T2)}
    v_xor_b32 {v(V_T2)}, {s(S_W)}, {v(V_T2)}
    v_lshl_add_u32 {v(V_T0)}, {v(V_T2)}, 5, {v(V_T0)}
    v_and_b32 {v(V_T2)}, 3, {v(V_I)}
    v_lshl_add_u32 {v(V_AD)}, {v(V_T2)}, 3, {v(V_T0)}
    v_xor_b32 {v(V_AD+1)}, 32, {v(V_AD)}
    v_xor_b32 {v(V_AD+2)}, 64, {v(V_AD)}
    v_xor_b32 {v(V_AD+3)}, 96, {v(V_AD)}
    v_cmp_eq_u32 s[4:5], 1, {v(V_T2)}
    v_cmp_eq_u32 s[6:7], 2, {v(V_T2)}
    v_cmp_eq_u32 s[8:9], 3, {v(V_T2)}
    v_and_b32 {v(V_T0)}, 7, {v(V_L)}
    v_lshl_add_u32 {v(V_T0)}, {v(V_G)}, 3, {v(V_T0)}
    v_lshlrev_b32 {v(VS)}, 4, {v(V_T0)}
    s_add_u32 {s(S_SPO)}, {s(S_SPO)}, {WS_SP}
    s_mul_i32 {s(S_WV)}, {s(S_CB)}, 49152
    s_add_u32 {s(S_WV)}, {s(S_WV)}, {WS_WVOT}
    v_lshlrev_b32 {v(V_T2)}, 3, {v(V_I)}
    s_lshl_b32 {s(S_T0)}, {s(S_W)}, 7
    s_add_u32 {s(S_T0)}, {s(S_T0)}, {L_CT0}
    v_add_u32 {v(V_T2)}, {s(S_T0)}, {v(V_T2)}
    v_xor_b32 {v(V_T3)}, 128, {v(V_T2)}
    v_xor_b32 {v(V_T4)}, 256, {v(V_T2)}
    v_xor_b32 {v(V_T5)}, 384, {v(V_T2)}
    """)
    p1_setup(g)
    p2_setup(g)
    nonce_and_publish(g)

    def resloads():
        for m in range(2):
            g(f"buffer_load_dwordx4 {v(XR+4*m,4)}, {v(V_XO)}, {s(SRD_A,4)}, {s(S_XR)} offen offset:{m*64}")

    def stats_finish():
        g(f"""
        v_cndmask_b32 {v(SXX)}, {v(SXX)}, {v(SXX+1)}, s[4:5]
        v_cndmask_b32 {v(SXX)}, {v(SXX)}, {v(SXX+2)}, s[6:7]
        v_cndmask_b32 {v(SXX)}, {v(SXX)}, {v(SXX+3)}, s[8:9]
        v_cndmask_b32 {v(SXX)}, 0, {v(SXX)}, {s(S_DIAG,2)}
        """)
        xlane_sum(g, SXX, V_T0)
        mean_rstd(g, SX, SXX, V_MEAN, V_R)
        mu_operand(g, V_MEAN)
    SCHED = [{0: [2], 1: [3], 2: [4], 3: [5], 4: ["r"]},
             {0: [2, 3], 1: [4], 2: [5], 3: ["r"]},
             {0: [2, 3], 1: [4, 5], 2: ["r"]}][g.opts.get("sched", 2)]
    order = [f"A{j}" for j in range(AH) for _ in range(6)] + ["t"] * 3
    items = []
    nb = 0
    for j in range(6):
        seq = [(kk, mat, sl) for kk in range(2) for mat in range(2) for sl in range(4)]
        if j == 5:
            seq = [o for o in seq if o[2] == 0] + [o for o in seq if o[2] != 0]
        for n, (kk, mat, sl) in enumerate(seq):
            ks = 2 * j + kk
            b = V_BUF + (nb % 16) * 4
            nb += 1
            off = (ks % 6) * 8192 + mat * 2048
            rd = [f"ds_read_b64_tr_b16 {v(b,2)}, {v(V_AD+sl)} offset:{off}",
                  f"ds_read_b64_tr_b16 {v(b+2,2)}, {v(V_AD+sl)} offset:{off+512}"]
            acc = (ACCQ if mat == 0 else ACCK) + 4 * sl
            xf = v(V_XF + 4 * ks, 4)
            c = "0" if ks == 0 else v(acc, 4)
            cm = [f"v_mfma_f32_16x16x32_bf16 {v(acc,4)}, {v(b,4)}, {xf}, {c}"]
            if sl == 0:
                cs = CSQ if mat == 0 else CSK
                c2 = "0" if ks == 0 else v(cs, 4)
                cm.insert(0, f"v_mfma_f32_16x16x32_bf16 {v(cs,4)}, {v(V_ONES,4)}, {v(b,4)}, {c2}")
                if mat == 0:
                    cm.append(f"v_mfma_f32_16x16x32_bf16 {v(SXX,4)}, {xf}, {xf}, {'0' if ks == 0 else v(SXX,4)}")
                else:
                    cm.append(f"v_mfma_f32_16x16x32_bf16 {v(SX,4)}, {v(V_ONES,4)}, {xf}, {'0' if ks == 0 else v(SX,4)}")
            pre = []
            if n == 0:
                last = len(order) - 1 - order[::-1].index(f"A{j}")
                pre += [f"s_waitcnt vmcnt({len(order) - 1 - last})", "s_barrier"]
                pre += capture(g, lambda: g.stamp(f'chunk{j}', False))
                spread, tags = [], []
                for jj in SCHED.get(j, []):
                    if jj == "r":
                        spread += capture(g, resloads)
                        tags += ["r"] * 2
                    else:
                        spread += capture(g, lambda: wchunk(g, jj))
                        tags += [f"A{jj}"] * 6
                pos = [round(q * 15.4 / len(tags)) for q in range(len(tags))] if tags else []
                if j == g.opts.get("mt", 2):
                    pre += ["s_mov_b64 exec, 63", f"global_load_dword {v(V_MISC+62)}, {v(V_MT)}, {s(S_M,2)}", "s_mov_b64 exec, -1"]
                    order.append("m")
                if j == 3:
                    pre += [f"v_add_u32 {v(V_AD+q)}, 49152, {v(V_AD+q)}" for q in range(4)]
                if j == g.opts.get("pj", 4):
                    pre += [f"buffer_load_dword {v(V_T7)}, {v(V_PA)}, {s(SRD_WS,4)}, 0 offen sc1"]
                    order += ["p"]
            if n in pos:
                while spread:
                    x = spread.pop(0)
                    pre.append(x)
                    if x.startswith("buffer"):
                        order.append(tags.pop(0))
                        if any(y.startswith("buffer") for y in spread):
                            break
            if n == 15:
                assert not spread
            items.append([rd, cm, pre])
    fill = capture(g, lambda: (colsum_pack(g, CSQ, 248), colsum_pack(g, CSK, 250), stats_finish()))
    per = -(-len(fill) // 9)
    for n in range(7, 16):
        items[80 + n][1] += fill[:per]
        fill = fill[per:]
    pipelined(g, items, 14, group=g.opts.get('p0g', 1))
    g(f"""
    ds_write_b64 {v(V_T2)}, {v(248,2)}
    ds_write_b64 {v(V_T2)}, {v(250,2)} offset:512
    """)
    g(f"""
    s_waitcnt lgkmcnt(0)
    s_barrier
    """)
    g.stamp('ctbar')
    CT = V_BUF
    for mat in range(2):
        for sl in range(4):
            g(f"ds_read_b64 {v(CT+(mat*4+sl)*2,2)}, {v(V_T2+sl)} offset:{mat*512}")
    g("s_waitcnt vmcnt(0)")
    pa_eval(g)
    for mat in range(2):
        for sl in range(4):
            if sl % 2 == 0:
                g(f"s_waitcnt lgkmcnt({6-(mat*4+sl)})")
            acc = (ACCQ if mat == 0 else ACCK) + 4 * sl
            mfma16(g, v(acc, 4), v(CT + (mat * 4 + sl) * 2, 2), v(V_MU, 2))
    QF, KF = V_BUF + 16, V_BUF + 24
    g(f"""
    s_lshl_b32 {s(S_T1)}, {s(S_CB)}, 9
    s_add_u32 {s(S_T3)}, {s(S_SPO)}, {s(S_T1)}
    s_nop 1
    """)
    for i in range(8):
        g(f"v_cvt_pk_bf16_f32 {v(QF+i)}, {v(ACCQ+2*i)}, {v(ACCQ+2*i+1)}")
    for i in range(8):
        g(f"v_cvt_pk_bf16_f32 {v(KF+i)}, {v(ACCK+2*i)}, {v(ACCK+2*i+1)}")
    SS = V_BUF + 32
    g.nop(1)
    mfma32(g, v(SS, 4), v(KF, 4), v(QF, 4), "0")
    mfma32(g, v(SS, 4), v(KF + 4, 4), v(QF + 4, 4))
    pa_wait(g, S_F1, "xcc")
    g.nop(6)
    for r in range(4):
        g(f"v_bfi_b32 {v(SS+r)}, {v(V_MASK)}, {v(SS+r)}, {s(S_TAG+r)}")
    g(f"s_mov_b64 exec, {s(S_VALID,2)}")
    both_modes(g, lambda sc: g(f"buffer_store_dwordx4 {v(SS,4)}, {v(VS)}, {s(SRD_WS,4)}, {s(S_T3)} offen{sc}"))
    g("s_mov_b64 exec, -1")
    g.stamp('sstored')
    g(f"""
    s_mov_b32 {s(S_WVI)}, {s(S_F2)}
    s_cmp_lg_u32 {s(S_F2)}, 0
    s_cbranch_scc1 L_nowvo
    """)
    for st in range(3):
        wvo_group(g, st)
    g("L_nowvo:")


def ws2_dma(g, lo=0, hi=18):
    assert lo in (0, 9) and hi in (9, 18)
    if lo == 0:
        g(f"""
        s_mul_i32 {s(S_T2)}, {s(S_CS)}, 73728
        s_add_u32 {s(S_T2)}, {s(S_T2)}, {WS_WS2}
        s_mul_i32 {s(S_T1)}, {s(S_W)}, 18432
        s_bitcmp1_b32 {s(S_RQ)}, 0
        s_cselect_b32 {s(S_T0)}, 9216, 0
        """)
    for half in range(lo // 9, hi // 9):
        if half:
            g(f"s_xor_b32 {s(S_T0)}, {s(S_T0)}, 9216")
        g(f"s_add_u32 m0, {s(S_T1)}, {s(S_T0)}")
        g(f"s_add_u32 {s(S_T3)}, {s(S_T2)}, m0")
        for blk in range(9):
            g(f"buffer_load_dwordx4 {v(V_L16)}, {s(SRD_WS,4)}, {s(S_T3)} offen offset:{(blk%4)*1024} sc1 lds")
            if blk % 4 == 3:
                g(f"s_add_u32 m0, m0, 4096")
                g(f"s_add_u32 {s(S_T3)}, {s(S_T3)}, 4096")


def p1_setup(g):
    S_CB = S_CS
    g(f"""
    v_add_u32 {v(A1[0])}, {L_WVO}, {v(V_L16)}
    s_lshl_b32 {s(S_T1)}, {s(S_W)}, 10
    v_add_u32 {v(A1[1])}, {s(S_T1)}, {v(A1[0])}
    v_lshlrev_b32 {v(V_T0)}, 3, {v(V_I)}
    v_add_u32 {v(C1[0])}, {L_CT1}, {v(V_T0)}
    s_lshl_b32 {s(S_T0)}, {s(S_W)}, 7
    v_add_u32 {v(C1[1])}, {s(S_T0)}, {v(C1[0])}
    v_add_u32 {v(A1[2])}, {L_SG-L_CT1}, {v(C1[1])}
    v_and_b32 {v(V_T0)}, 7, {v(V_I)}
    v_mul_u32_u24 {v(V_T0)}, 196608, {v(V_T0)}
    v_lshrrev_b32 {v(V_T1)}, 3, {v(V_I)}
    v_lshlrev_b32 {v(V_T1)}, 6, {v(V_T1)}
    v_lshlrev_b32 {v(V_T6)}, 4, {v(V_G)}
    v_add3_u32 {v(XA)}, {v(V_T0)}, {v(V_T1)}, {v(V_T6)}
    s_lshl_b32 {s(S_X1O)}, {s(S_RB)}, 2
    s_add_u32 {s(S_X1O)}, {s(S_X1O)}, {s(S_W)}
    s_mul_i32 {s(S_X1O)}, {s(S_X1O)}, 1536
    s_lshl_b32 {s(S_T1)}, {s(S_CB)}, 8
    s_add_u32 {s(S_X1O)}, {s(S_X1O)}, {s(S_T1)}
    s_add_u32 {s(S_X1O)}, {s(S_X1O)}, {WS_X1}
    s_mul_i32 {s(S_FXO)}, {s(S_RB)}, 6
    s_add_u32 {s(S_FXO)}, {s(S_FXO)}, {s(S_CB)}
    s_lshl_b32 {s(S_T1)}, {s(S_FXO)}, 2
    s_lshl_b32 {s(S_FXO)}, {s(S_FXO)}, 7
    s_add_u32 {s(S_FXO)}, {s(S_FXO)}, {WS_FX}
    s_add_u32 {s(S_STO)}, {s(S_FXO)}, {WS_STX-WS_FX}
    v_and_b32 {v(V_T0)}, 7, {v(V_L)}
    v_mul_u32_u24 {v(V_T0)}, {6*32*128}, {v(V_T0)}
    v_and_b32 {v(V_T1)}, -8, {v(V_L)}
    v_add_u32 {v(XA+1)}, {v(V_T0)}, {v(V_T1)}
    v_lshlrev_b32 {v(XA+2)}, 3, {v(V_L)}
    v_add_u32 {v(XA+2)}, {L_SG}, {v(XA+2)}
    s_add_u32 {s(S_T1)}, {s(S_T1)}, {s(S_W)}
    s_mul_i32 {s(S_T2)}, {s(S_T1)}, 2304
    s_add_u32 {s(S_T2)}, {s(S_T2)}, 1536
    s_mul_i32 {s(S_T3)}, {s(S_T1)}, 768
    s_sub_u32 {s(S_T3)}, {s(S_T3)}, {384*768}
    s_cmp_lt_u32 {s(S_T1)}, 384
    s_cselect_b32 {s(S_T2)}, {s(S_T2)}, {s(S_T3)}
    s_cselect_b32 {s(S_M)}, {s(S_WQS)}, {s(S_WOS)}
    s_cselect_b32 {s(S_M+1)}, {s(S_WQS+1)}, {s(S_WOS+1)}
    v_lshlrev_b32 {v(V_MT)}, 7, {v(V_L)}
    v_add_u32 {v(V_MT)}, {s(S_T2)}, {v(V_MT)}
    """)


V_MT = 245


def p1(g):
    Z = V_ACC
    CS = V_ACC + 16
    XC = V_ACC + 20

    def shadow():
        g(f"v_lshlrev_b32 {v(V_T0)}, 4, {v(V_G)}")
        for e in range(4):
            g(f"ds_bpermute_b32 {v(RS+e)}, {v(V_T0)}, {v(V_R)} offset:{4*e}")
        for m in range(2):
            for par in range(2):
                for r in range(4):
                    src = XR + 4 * m + 2 * par + (r >> 1)
                    d = XC + (2 * m + par) * 4 + r
                    if r & 1:
                        g(f"v_and_b32 {v(d)}, 0xffff0000, {v(src)}")
                    else:
                        g(f"v_lshlrev_b32 {v(d)}, 16, {v(src)}")
        g(f"v_mul_f32 {v(V_T1)}, {f2u(SCALE_LOG2E):#x}, {v(V_R)}")
        g("s_waitcnt lgkmcnt(0)")
        for e in range(4):
            g(f"v_mul_f32 {v(FS+e)}, {v(V_T1)}, {v(RS+e)}")
    shadow()
    SP = V_BUF + 16
    AOP = VW
    g(f"""
    s_mov_b32 {s(S_SPIN)}, {SPIN_LIMIT}
    L_spoll:
    """)
    for c in range(6):
        g(f"buffer_load_dwordx4 {v(SP+4*c,4)}, {v(VS)}, {s(SRD_WS,4)}, {s(S_SPO)} offen offset:{c*512} sc1")
    g(f"buffer_load_dword {v(V_T7)}, {v(V_PA)}, {s(SRD_WS,4)}, 0 offen sc1")
    for c in range(6):
        g(f"s_waitcnt vmcnt({6-c})")
        for r in range(4):
            g(f"v_xor_b32 {v(SP+4*c+r)}, {s(S_TAG+r)}, {v(SP+4*c+r)}")
        if c == 0:
            g(f"v_or_b32 {v(V_T0)}, {v(SP)}, {v(SP+1)}")
        else:
            g(f"v_or3_b32 {v(V_T0)}, {v(V_T0)}, {v(SP+4*c)}, {v(SP+4*c+1)}")
        g(f"v_or3_b32 {v(V_T0)}, {v(V_T0)}, {v(SP+4*c+2)}, {v(SP+4*c+3)}")
    g(f"""
    s_waitcnt vmcnt(0)
    v_cmp_ne_u32 vcc, {s(S_NONCE)}, {v(V_T7)}
    s_cmp_eq_u32 {s(S_WVI)}, 0
    s_cbranch_scc1 L_s1
    s_mov_b32 {s(S_WVI)}, vcc_hi
    s_cmp_lg_u32 {s(S_WVI)}, 0
    s_cbranch_scc1 L_s1
    """)
    for st in range(3):
        wvo_group(g, st)
    g(f"""
    L_s1:
    v_and_b32 {v(V_T0)}, 0xff, {v(V_T0)}
    v_cmp_ne_u32 vcc, 0, {v(V_T0)}
    s_cbranch_vccz L_sok
    s_sub_u32 {s(S_SPIN)}, {s(S_SPIN)}, 1
    s_cbranch_scc0 L_spoll
    L_sok:
    """)
    g.stamp('sok')
    for c in (1, 3, 5):
        for h in range(2):
            g(f"v_pk_add_f32 {v(SP+4*c+2*h,2)}, {v(SP+4*c+2*h,2)}, {v(SP+4*(c-1)+2*h,2)}")
    for c in (3, 5):
        for h in range(2):
            g(f"v_pk_add_f32 {v(SP+4*c+2*h,2)}, {v(SP+4*c+2*h,2)}, {v(SP+4*(c-2)+2*h,2)}")
    T = SP + 20
    for h in range(2):
        g(f"v_pk_mul_f32 {v(T+2*h,2)}, {v(T+2*h,2)}, {v(FS+2*h,2)}")
    g(f"""
    v_max3_f32 {v(V_T0)}, {v(T)}, {v(T+1)}, {v(T+2)}
    v_max_f32 {v(V_T0)}, {v(V_T0)}, {v(T+3)}
    v_mov_b32 {v(V_T1)}, {v(V_T0)}
    s_nop 1
    v_permlane16_swap_b32 {v(V_T0)}, {v(V_T1)}
    s_nop 0
    v_max_f32 {v(V_T0)}, {v(V_T0)}, {v(V_T1)}
    """)
    for r in range(4):
        g(f"v_sub_f32 {v(T+r)}, {v(T+r)}, {v(V_T0)}")
    for r in range(4):
        g(f"v_exp_f32 {v(T+r)}, {v(T+r)}")
    g(f"""
    s_nop 0
    v_add_f32 {v(V_T0)}, {v(T)}, {v(T+1)}
    v_add_f32 {v(V_T1)}, {v(T+2)}, {v(T+3)}
    v_add_f32 {v(V_T0)}, {v(V_T0)}, {v(V_T1)}
    v_mov_b32 {v(V_T1)}, {v(V_T0)}
    v_pk_mul_f32 {v(T,2)}, {v(T,2)}, {v(RS,2)}
    v_pk_mul_f32 {v(T+2,2)}, {v(T+2,2)}, {v(RS+2,2)}
    v_permlane16_swap_b32 {v(V_T0)}, {v(V_T1)}
    s_nop 0
    v_add_f32 {v(V_T0)}, {v(V_T0)}, {v(V_T1)}
    v_rcp_f32 {v(V_T0)}, {v(V_T0)}
    s_nop 0
    v_cndmask_b32 {v(V_T0)}, 0, {v(V_T0)}, {s(S_VALID,2)}
    """)
    for r in range(4):
        g(f"v_mul_f32 {v(T+r)}, {v(T+r)}, {v(V_T0)}")
    g(f"""
    v_cvt_pk_bf16_f32 {v(AOP)}, {v(T)}, {v(T+1)}
    v_cvt_pk_bf16_f32 {v(AOP+1)}, {v(T+2)}, {v(T+3)}
    s_cmp_eq_u32 {s(S_WVI)}, 0
    s_cbranch_scc1 L_wvo_on
    s_mov_b32 {s(S_F2)}, 1
    """)
    pa_wait(g, S_F2, "wvo")
    for st in range(3):
        wvo_group(g, st)
    g("L_wvo_on:")
    g.stamp('wvoflag')
    items = []
    nb = 0
    for ks in range(12):
        for c in ([4, 0, 1, 2, 3] if ks >= 10 else range(5)):
            b = V_BUF + (nb % 16) * 4
            nb += 1
            if c < 4:
                rd = [f"ds_read_b128 {v(b,4)}, {v(A1[0])} offset:{ks*4096+c*1024}"]
                cc = "0" if ks == 0 else v(Z + 4 * c, 4)
                cm = [f"v_mfma_f32_16x16x32_bf16 {v(Z+4*c,4)}, {v(V_XF+4*ks,4)}, {v(b,4)}, {cc}"]
            else:
                rd = [f"ds_read_b128 {v(b,4)}, {v(A1[1])} offset:{ks*4096}"]
                cc = "0" if ks == 0 else v(CS, 4)
                cm = [f"v_mfma_f32_16x16x32_bf16 {v(CS,4)}, {v(V_ONES,4)}, {v(b,4)}, {cc}"]
            pre = []
            if ks % 4 == 0 and c == 0:
                pre = [f"s_waitcnt vmcnt({8-ks})", "s_barrier"] + capture(g, lambda: g.stamp(f'wvo{ks//4}', False))
                if ks == 8:
                    pre.append(f"buffer_load_dword {v(V_T7)}, {v(V_PB)}, {s(SRD_WS,4)}, 0 offen sc1")
            items.append((rd, cm, pre))
    tail = items[50:]
    items = items[:50] + [tail[0], tail[5]] + tail[1:5] + tail[6:]
    pk = capture(g, lambda: colsum_pack(g, CS, V_T4))
    items[-3][1].extend(pk[:2])
    items[-2][1].extend(pk[2:])
    pipelined(g, items, 10, group=1)
    CT = V_BUF
    g(f"""
    ds_write_b64 {v(C1[1])}, {v(V_T4,2)}
    s_waitcnt lgkmcnt(0)
    s_barrier
    """)
    for c in range(4):
        g(f"ds_read_b64 {v(CT+2*c,2)}, {v(C1[0])} offset:{c*128}")
    g("s_waitcnt vmcnt(0)")
    g(f"v_cmp_ne_u32 vcc, {s(S_NONCE)}, {v(V_T7)}")
    for c in range(4):
        g(f"s_waitcnt lgkmcnt({3-c})")
        mfma16(g, v(Z + 4 * c, 4), v(V_MU, 2), v(CT + 2 * c, 2))
    ZB = V_BUF + 8
    g(f"s_or_b32 {s(S_F2)}, vcc_lo, vcc_hi")
    g.nop(1)
    for c in range(4):
        g(f"v_cvt_pk_bf16_f32 {v(ZB+2*c)}, {v(Z+4*c)}, {v(Z+4*c+1)}")
        g(f"v_cvt_pk_bf16_f32 {v(ZB+2*c+1)}, {v(Z+4*c+2)}, {v(Z+4*c+3)}")
    g.stamp('zdone')
    for c in range(4):
        mfma16(g, v(XC + 4 * c, 4), v(ZB + 2 * c, 2), v(AOP, 2))
    g.nop(5)
    OB = V_BUF + 48
    for m in range(2):
        for i in range(4):
            g(f"v_cvt_pk_bf16_f32 {v(OB+4*m+i)}, {v(XC+8*m+2*i)}, {v(XC+8*m+2*i+1)}")
        g(f"buffer_store_dwordx4 {v(OB+4*m,4)}, {v(XA)}, {s(SRD_WS,4)}, {s(S_X1O)} offen offset:{m*128} sc1")
    g.stamp('x1st')
    S1, S2 = Z, Z + 4
    mfma32(g, v(S2, 4), v(OB, 4), v(OB, 4), "0")
    mfma32(g, v(S1, 4), v(V_ONES, 4), v(OB, 4), "0")
    mfma32(g, v(S2, 4), v(OB + 4, 4), v(OB + 4, 4))
    mfma32(g, v(S1, 4), v(V_ONES, 4), v(OB + 4, 4))
    g.nop(7)
    g(f"""
    v_cndmask_b32 {v(S2)}, {v(S2)}, {v(S2+1)}, s[4:5]
    v_cndmask_b32 {v(S2)}, {v(S2)}, {v(S2+2)}, s[6:7]
    v_cndmask_b32 {v(S1+1)}, {v(S2)}, {v(S2+3)}, s[8:9]
    s_mov_b64 exec, {s(S_DIAG,2)}
    ds_write_b64 {v(A1[2])}, {v(S1,2)}
    s_mov_b64 exec, -1
    s_waitcnt lgkmcnt(0)
    s_barrier
    s_cmp_lg_u32 {s(S_W)}, 0
    s_cbranch_scc1 L_nostx
    ds_read_b64 {v(V_T0,2)}, {v(XA+2)}
    s_waitcnt lgkmcnt(0)
    buffer_store_dwordx2 {v(V_T0,2)}, {v(XA+1)}, {s(SRD_WS,4)}, {s(S_STO)} offen sc1
    L_nostx:
    s_cmp_lg_u32 {s(S_F2)}, 0
    s_cbranch_scc1 L_x1_late
    """)
    ws2_dma(g, 0, 9)
    g(f"""
    s_waitcnt vmcnt(9)
    s_barrier
    """)
    flag_store(g, s(S_FXO))
    g.stamp('x1flag')
    ws2_dma(g, 9, 18)
    g(f"""
    s_branch L_p2
    L_x1_late:
    s_waitcnt vmcnt(0)
    s_barrier
    """)
    flag_store(g, s(S_FXO))
    g.stamp('x1flag')
    g("L_ws_late:")
    poll(g, V_PB, "0", s(S_NONCE), "pws")
    ws2_dma(g)


S_TILE, S_PROD, S_KB, S_NB = S_T4, S_T5, S_T6, S_T7
S_PA, S_PB, S_PU, S_PS = S_F2, S_SLOW, S_SPIN, 26
S_PW, S_PO0, S_PO1, S_PF = 68, 16, 17, 25
V_PAO = V_MISC + 14


def pstamp(g, name):
    if g.stamps and name in g.stamps:
        sk = g.label("ps")
        g(f"s_cmp_ge_u32 {s(S_TILE)}, 64")
        g(f"s_cbranch_scc1 {sk}")
        g.stamp(name, False)
        g(f"{sk}:")


def prod_issue(g, n0):
    g(f"""
    s_mul_hi_u32 {s(S_PROD)}, {s(S_TILE)}, {(2**32 + 35)//36}
    s_mul_i32 {s(S_T0)}, {s(S_PROD)}, 36
    s_sub_u32 {s(S_NB)}, {s(S_TILE)}, {s(S_T0)}
    s_mul_hi_u32 {s(S_KB)}, {s(S_NB)}, {(2**32 + 5)//6}
    s_mul_i32 {s(S_T0)}, {s(S_KB)}, 6
    s_sub_u32 {s(S_NB)}, {s(S_NB)}, {s(S_T0)}
    s_add_u32 {s(S_PU)}, {s(S_KB)}, {s(S_NB)}
    s_cmp_ge_u32 {s(S_PU)}, 6
    s_cselect_b32 {s(S_T0)}, 6, 0
    s_sub_u32 {s(S_PU)}, {s(S_PU)}, {s(S_T0)}
    """)
    if not g.opts.get("rot", 0):
        g(f"s_mov_b32 {s(S_PU)}, 0")
    g(f"""
    s_cmp_eq_u32 {s(S_PROD)}, 0
    s_cselect_b32 {s(SRD_A)}, {s(S_WQT)}, {s(S_WQS)}
    s_cselect_b32 {s(SRD_A+1)}, {s(S_WQT+1)}, {s(S_WQS+1)}
    s_cselect_b32 {s(SRD_B)}, {s(S_WOT)}, {s(S_WOS)}
    s_cselect_b32 {s(SRD_B+1)}, {s(S_WOT+1)}, {s(S_WOS+1)}
    s_mov_b32 {s(SRD_A+2)}, 884736
    v_mul_u32_u24 {v(V_T0)}, 2304, {v(V_I)}
    v_lshl_add_u32 {v(V_PAO)}, {v(V_G)}, 4, {v(V_T0)}
    s_lshl_b32 {s(S_PA)}, {s(S_KB)}, 2
    s_add_u32 {s(S_PA)}, {s(S_PA)}, {s(S_W)}
    s_mul_i32 {s(S_PA)}, {s(S_PA)}, {16*2304}
    s_lshl_b32 {s(S_T0)}, {s(S_PU)}, 7
    s_add_u32 {s(S_PA)}, {s(S_PA)}, {s(S_T0)}
    s_lshl_b32 {s(S_T1)}, {s(S_NB)}, 2
    s_add_u32 {s(S_T1)}, {s(S_T1)}, {s(S_W)}
    s_mul_i32 {s(S_T1)}, {s(S_T1)}, {16*2304}
    s_add_u32 {s(S_T1)}, {s(S_T1)}, 768
    s_mul_i32 {s(S_T2)}, {s(S_W)}, {2*6144}
    s_lshl_b32 {s(S_T3)}, {s(S_NB)}, 7
    s_add_u32 {s(S_T2)}, {s(S_T2)}, {s(S_T3)}
    s_mov_b32 {s(S_T3)}, {8*6144}
    s_cmp_eq_u32 {s(S_PROD)}, 1
    s_cselect_b32 {s(SRD_B)}, {s(S_WQS)}, {s(SRD_B)}
    s_cselect_b32 {s(SRD_B+1)}, {s(S_WQS+1)}, {s(SRD_B+1)}
    s_cselect_b32 {s(SRD_B+2)}, {s(SRD_A+2)}, 294912
    s_cselect_b32 {s(S_PB)}, {s(S_T1)}, {s(S_T2)}
    s_cselect_b32 {s(S_PS)}, 128, {s(S_T3)}
    s_cselect_b32 {s(S_T0)}, 0, 1536
    s_cselect_b32 {s(S_T1)}, 1, 0
    s_cselect_b32 {s(S_T2)}, 7, 2
    s_movk_i32 {s(S_T3)}, 768
    s_cselect_b32 {s(S_T3)}, 2304, {s(S_T3)}
    s_add_u32 {s(S_PA)}, {s(S_PA)}, {s(S_T0)}
    s_mul_i32 {s(S_T0)}, {s(S_PU)}, {s(S_PS)}
    s_add_u32 {s(S_PB)}, {s(S_PB)}, {s(S_T0)}
    v_lshrrev_b32 {v(V_T1)}, 3, {v(V_L)}
    v_mul_u32_u24 {v(V_T2)}, {s(S_T3)}, {v(V_T1)}
    v_lshrrev_b32 {v(V_T1)}, {s(S_T1)}, {v(V_T1)}
    v_and_b32 {v(V_T1)}, {s(S_T2)}, {v(V_T1)}
    v_and_b32 {v(V_T3)}, 7, {v(V_L)}
    v_xor_b32 {v(V_T3)}, {v(V_T3)}, {v(V_T1)}
    v_lshl_add_u32 {v(VW)}, {v(V_T3)}, 4, {v(V_T2)}
    v_xor_b32 {v(V_T3)}, 64, {v(VW)}
    s_lshl_b32 {s(S_T3)}, {s(S_T3)}, 3
    s_sub_u32 {s(S_T3)}, {s(S_T3)}, 1024
    v_add_u32 {v(VW+1)}, {s(S_T3)}, {v(V_T3)}
    s_mul_i32 {s(S_PW)}, {s(S_PS)}, -5
    s_lshl_b32 {s(S_T1)}, {s(S_W)}, 11
    s_mov_b32 m0, {s(S_T1)}
    """)
    pstamp(g, 'x0')
    prod_units(g, 0, n0)
    pstamp(g, 'dmaiss')


def prod_units(g, lo, hi):
    for j in range(lo, hi):
        g(f"buffer_load_dwordx4 {v(VW)}, {s(SRD_B,4)}, {s(S_PB)} offen lds")
        g(f"buffer_load_dwordx4 {v(VW+1)}, {s(SRD_B,4)}, {s(S_PB)} offen offset:1024 lds")
        for q in range(2):
            g(f"buffer_load_dwordx4 {v(V_XF+8*j+4*q,4)}, {v(V_PAO)}, {s(SRD_A,4)}, {s(S_PA)} offen offset:{q*64}")
        if j < 5:
            g(f"""
            s_add_u32 {s(S_PU)}, {s(S_PU)}, 1
            s_cmp_eq_u32 {s(S_PU)}, 6
            s_cselect_b32 {s(S_T0)}, {s(S_PW)}, {s(S_PS)}
            s_cselect_b32 {s(S_T1)}, -5, 1
            s_add_u32 {s(S_PB)}, {s(S_PB)}, {s(S_T0)}
            s_lshl_b32 {s(S_T1)}, {s(S_T1)}, 7
            s_add_u32 {s(S_PA)}, {s(S_PA)}, {s(S_T1)}
            s_add_u32 m0, m0, 8192
            s_nop 0
            """)


def products(g):
    ACC = V_ACC
    g(f"""
    L_products:
    s_lshl_b32 {s(S_TILE)}, {s(S_G8)}, 3
    s_lshl_b32 {s(S_T0)}, {s(S_RQ)}, 1
    s_add_u32 {s(S_TILE)}, {s(S_TILE)}, {s(S_T0)}
    s_add_u32 {s(S_TILE)}, {s(S_TILE)}, {s(S_CS)}
    s_sub_u32 {s(S_TILE)}, {s(S_TILE)}, 6
    """)
    prod_issue(g, g.opts.get("pah", 3))
    g("s_branch L_prod_first")


def products_body(g):
    ACC = V_ACC
    g("L_prod_first:")
    touches(g)
    common_consts(g)
    nonce_and_publish(g)
    g(f"""
    L_prod_body:
    v_lshrrev_b32 {v(V_T0)}, 2, {v(V_I)}
    v_and_b32 {v(V_T0)}, 1, {v(V_T0)}
    v_lshlrev_b32 {v(V_T0)}, 10, {v(V_T0)}
    v_lshrrev_b32 {v(V_T1)}, 1, {v(V_G)}
    v_lshl_add_u32 {v(V_T0)}, {v(V_T1)}, 8, {v(V_T0)}
    v_and_b32 {v(V_T1)}, 1, {v(V_G)}
    v_lshl_add_u32 {v(V_T0)}, {v(V_T1)}, 7, {v(V_T0)}
    v_lshrrev_b32 {v(V_T1)}, 3, {v(V_I)}
    v_lshl_add_u32 {v(V_T0)}, {v(V_T1)}, 6, {v(V_T0)}
    v_and_b32 {v(V_T1)}, 3, {v(V_I)}
    v_lshl_add_u32 {v(V_T5)}, {v(V_T1)}, 4, {v(V_T0)}
    s_lshr_b32 {s(S_T0)}, {s(S_W)}, 1
    s_lshl_b32 {s(S_T1)}, {s(S_KB)}, 1
    s_add_u32 {s(S_T0)}, {s(S_T0)}, {s(S_T1)}
    s_and_b32 {s(S_T1)}, {s(S_W)}, 1
    s_lshl_b32 {s(S_T1)}, {s(S_T1)}, 9
    v_add_u32 {v(V_T5)}, {s(S_T1)}, {v(V_T5)}
    s_cmp_eq_u32 {s(S_PROD)}, 0
    s_cbranch_scc0 L_prod_ws2
    s_mul_i32 {s(S_T1)}, {s(S_NB)}, 49152
    s_lshl_b32 {s(S_T0)}, {s(S_T0)}, 12
    s_add_u32 {s(S_T0)}, {s(S_T0)}, {s(S_T1)}
    s_add_u32 {s(S_PO0)}, {s(S_T0)}, {WS_WVOT}
    s_add_u32 {s(S_PO1)}, {s(S_PO0)}, 2048
    s_branch L_prod_ad
    L_prod_ws2:
    s_mul_i32 {s(S_T0)}, {s(S_T0)}, 6144
    s_sub_u32 {s(S_T1)}, {s(S_PROD)}, 1
    s_mul_i32 {s(S_T1)}, {s(S_T1)}, {4*73728}
    s_add_u32 {s(S_T0)}, {s(S_T0)}, {s(S_T1)}
    s_add_u32 {s(S_T0)}, {s(S_T0)}, {WS_WS2}
    """)
    for aa, dst in ((0, S_PO0), (1, S_PO1)):
        g(f"""
        s_lshl_b32 {s(S_T3)}, {s(S_NB)}, 1
        s_add_u32 {s(S_T3)}, {s(S_T3)}, {aa}
        s_mul_hi_u32 {s(dst)}, {s(S_T3)}, {(2**32+2)//3}
        s_mul_i32 {s(S_T1)}, {s(dst)}, 3
        s_sub_u32 {s(S_T3)}, {s(S_T3)}, {s(S_T1)}
        s_mul_i32 {s(dst)}, {s(dst)}, 73728
        s_lshl_b32 {s(S_T3)}, {s(S_T3)}, 11
        s_add_u32 {s(dst)}, {s(dst)}, {s(S_T3)}
        s_add_u32 {s(dst)}, {s(dst)}, {s(S_T0)}
        """)
    g(f"""
    L_prod_ad:
    s_lshl_b32 {s(S_PF)}, {s(S_TILE)}, 7
    s_add_u32 {s(S_PF)}, {s(S_PF)}, {WS_FP}
    s_cmp_eq_u32 {s(S_PROD)}, 1
    s_cbranch_scc1 L_prod_rows
    v_lshlrev_b32 {v(V_T0)}, 10, {v(V_G)}
    v_lshrrev_b32 {v(V_T2)}, 2, {v(V_I)}
    v_lshl_add_u32 {v(V_T0)}, {v(V_T2)}, 7, {v(V_T0)}
    v_and_b32 {v(V_T1)}, 1, {v(V_G)}
    v_lshrrev_b32 {v(V_T2)}, 3, {v(V_I)}
    v_lshl_or_b32 {v(V_T2)}, {v(V_T1)}, 1, {v(V_T2)}
    v_lshl_add_u32 {v(V_T0)}, {v(V_T2)}, 5, {v(V_T0)}
    v_and_b32 {v(V_T2)}, 3, {v(V_I)}
    v_lshl_add_u32 {v(V_AD)}, {v(V_T2)}, 3, {v(V_T0)}
    v_xor_b32 {v(V_AD+1)}, 32, {v(V_AD)}
    v_xor_b32 {v(V_AD+2)}, 64, {v(V_AD)}
    v_xor_b32 {v(V_AD+3)}, 96, {v(V_AD)}
    """)

    def gemm(tr):
        PAH = g.opts.get("pah", 3)
        order = [f"U{j}" for j in range(PAH) for _ in range(4)]
        spread = capture(g, lambda: prod_units(g, PAH, 6))
        nu = 4 * PAH
        if g.opts.get("pburst", 1):
            for x in spread:
                g(x)
            order = [f"U{j}" for j in range(6) for _ in range(4)]
            spread = []
        items = []
        for ks in range(12):
            for c in range(4):
                b = V_BUF + ((ks * 4 + c) % 16) * 4
                if tr:
                    rd = [f"ds_read_b64_tr_b16 {v(b,2)}, {v(V_AD+c)} offset:{ks*4096}",
                          f"ds_read_b64_tr_b16 {v(b+2,2)}, {v(V_AD+c)} offset:{ks*4096+512}"]
                else:
                    rd = [f"ds_read_b128 {v(b,4)}, {v(V_AD+(ks&1))} offset:{(ks>>1)*8192+c*2048}"]
                cc = "0" if ks == 0 else v(ACC + 4 * c, 4)
                pre = []
                if ks % 2 == 0 and c == 0:
                    last = len(order) - 1 - order[::-1].index(f"U{ks//2}")
                    pre = [f"s_waitcnt vmcnt({len(order)-1-last})", "s_barrier"]
                    if tr and ks in (0, 4, 10):
                        pre += capture(g, lambda: pstamp(g, f'chunk{ {0:0,4:1,10:2}[ks] }'))
                if c % 2 == 0:
                    while spread:
                        x = spread.pop(0)
                        pre.append(x)
                        if x.startswith("buffer"):
                            order.append(f"U{nu//4}")
                            nu += 1
                            break
                items.append((rd, [f"v_mfma_f32_16x16x32_bf16 {v(ACC+4*c,4)}, {v(V_XF+4*ks,4)}, {v(b,4)}, {cc}"], pre))
        assert not [x for x in spread if x.startswith("buffer")]
        pipelined(g, items, 14 if tr else 10, group=1)
    gemm(True)
    PK = V_BUF
    g("L_prod_epi:")
    g.nop(5)
    for c in range(4):
        g(f"v_cvt_pk_bf16_f32 {v(PK+2*c)}, {v(ACC+4*c)}, {v(ACC+4*c+1)}")
        g(f"v_cvt_pk_bf16_f32 {v(PK+2*c+1)}, {v(ACC+4*c+2)}, {v(ACC+4*c+3)}")
    g(f"""
    v_permlane16_swap_b32 {v(PK)}, {v(PK+2)}
    v_permlane16_swap_b32 {v(PK+1)}, {v(PK+3)}
    v_permlane16_swap_b32 {v(PK+4)}, {v(PK+6)}
    v_permlane16_swap_b32 {v(PK+5)}, {v(PK+7)}
    buffer_store_dwordx4 {v(PK,4)}, {v(V_T5)}, {s(SRD_WS,4)}, {s(S_PO0)} offen sc1
    buffer_store_dwordx4 {v(PK+4,4)}, {v(V_T5)}, {s(SRD_WS,4)}, {s(S_PO1)} offen sc1
    """)
    pstamp(g, 'chunk3')
    g(f"""
    s_add_u32 {s(S_TILE)}, {s(S_TILE)}, 64
    s_cmp_ge_u32 {s(S_TILE)}, 108
    s_cbranch_scc1 L_prod_last
    s_barrier
    """)
    P2N = g.opts.get("p2n", 1)
    prod_issue(g, P2N)
    g(f"""
    s_waitcnt vmcnt({4*P2N})
    s_barrier
    """)
    flag_store(g, s(S_PF))
    g.stamp('chunk5')
    prod_units(g, P2N, g.opts.get("pah", 3))
    g(f"""
    s_branch L_prod_body
    L_prod_last:
    s_waitcnt vmcnt(0)
    s_barrier
    """)
    flag_store(g, s(S_PF))
    g(f"s_mov_b32 {s(S_F1)}, 1")
    g.stamp('sstored')
    p2_setup(g)
    pa_wait(g, S_F1, "pxcc")
    g("s_branch L_ws_late")
    g(f"""
    L_prod_rows:
    v_lshrrev_b32 {v(V_T0)}, 1, {v(V_I)}
    v_xor_b32 {v(V_T0)}, {v(V_T0)}, {v(V_G)}
    v_lshlrev_b32 {v(V_T0)}, 4, {v(V_T0)}
    v_lshl_add_u32 {v(V_AD)}, {v(V_I)}, 7, {v(V_T0)}
    v_xor_b32 {v(V_AD+1)}, 64, {v(V_AD)}
    """)
    gemm(False)
    g("s_branch L_prod_epi")


A_K = 0
A_V = 144
V_RES = V_MISC + 28
RK = V_MISC
BK = 232
SG = 248
A2 = [70, 71, 72, 73, 79]
V_KO, VST, V_L16H = 78, 206, 216
VTB = 217
V_I4 = 244
VC2 = 232
V_FXP = 235
S_KS = [76, 77, 78, 79]
S_R0, S_R1, S_STX, S_FXP, S_O1, S_O0, S_FL = 80, 81, 14, 15, 3, 18, 19


def kreg(slot, ks):
    return v(V_XF + 4 * ks, 4) if slot == 0 else a(A_K + (slot - 1) * 48 + 4 * ks, 4)


def p2_setup(g):
    T0, T1, T2 = V_T0, V_T1, V_T6
    g(f"""
    s_lshl_b32 {s(S_T1)}, {s(S_W)}, 10
    v_add_u32 {v(A2[0])}, {s(S_T1)}, {v(V_L16)}
    s_and_b32 {s(S_T1)}, {s(S_W)}, 1
    s_lshl_b32 {s(S_T1)}, {s(S_T1)}, 10
    s_add_u32 {s(S_T1)}, {s(S_T1)}, 4096
    v_add_u32 {v(A2[1])}, {s(S_T1)}, {v(V_L16)}
    v_add_u32 {v(A2[2])}, 36864, {v(V_L16)}
    v_add_u32 {v(A2[3])}, 36864, {v(A2[0])}
    v_add_u32 {v(A2[4])}, 36864, {v(A2[1])}
    v_lshrrev_b32 {v(T2)}, 2, {v(V_I)}
    v_lshlrev_b32 {v(T0)}, 2, {v(T2)}
    v_bfe_u32 {v(T1)}, {v(V_I)}, 1, 1
    v_add_u32 {v(T0)}, {v(T0)}, {v(T1)}
    v_mul_u32_u24 {v(T0)}, 1536, {v(T0)}
    v_and_b32 {v(T1)}, 1, {v(V_I)}
    v_lshl_add_u32 {v(T0)}, {v(T1)}, 6, {v(T0)}
    v_lshl_add_u32 {v(V_KO)}, {v(V_G)}, 4, {v(T0)}
    v_xor_b32 {v(T0)}, {s(S_RQ)}, {v(V_G)}
    v_lshrrev_b32 {v(T1)}, 1, {v(T0)}
    v_lshl_add_u32 {v(T1)}, {v(T1)}, 2, {v(T2)}
    v_mul_u32_u24 {v(T1)}, 768, {v(T1)}
    v_and_b32 {v(T0)}, 1, {v(T0)}
    v_lshl_add_u32 {v(T1)}, {v(T0)}, 5, {v(T1)}
    v_and_b32 {v(T0)}, 3, {v(V_I)}
    v_lshl_add_u32 {v(VST)}, {v(T0)}, 3, {v(T1)}
    s_mul_i32 {s(S_STX)}, {s(S_G8)}, {6*32*128}
    s_mul_i32 {s(S_T1)}, {s(S_W)}, {48*128}
    s_add_u32 {s(S_STX)}, {s(S_STX)}, {s(S_T1)}
    s_add_u32 {s(S_STX)}, {s(S_STX)}, {WS_STX}
    s_add_u32 {s(S_FXP)}, {s(S_T1)}, {WS_FX}
    s_mul_i32 {s(S_T1)}, {s(S_W)}, 768
    s_add_u32 {s(S_T1)}, {s(S_T1)}, {L_ST}
    v_lshlrev_b32 {v(T0)}, 2, {v(V_L)}
    v_add_u32 {v(VTB)}, {s(S_T1)}, {v(T0)}
    v_lshlrev_b32 {v(V_I4)}, 2, {v(V_I)}
    v_lshlrev_b32 {v(VTB+1)}, 4, {v(V_G)}
    v_add_u32 {v(VTB+2)}, {s(S_T1)}, {v(VTB+1)}
    v_lshlrev_b32 {v(T0)}, 3, {v(V_I)}
    v_add_u32 {v(VC2)}, {L_CT2}, {v(T0)}
    s_lshl_b32 {s(S_T1)}, {s(S_W)}, 7
    v_add_u32 {v(VC2+1)}, {s(S_T1)}, {v(VC2)}
    s_and_b32 {s(S_T1)}, {s(S_T1)}, 128
    v_add_u32 {v(VC2+2)}, {s(S_T1)}, {v(VC2)}
    v_min_u32 {v(V_FXP)}, 47, {v(V_L)}
    v_lshlrev_b32 {v(V_FXP)}, 7, {v(V_FXP)}
    v_add_u32 {v(V_L16H)}, 4096, {v(V_L16)}
    s_lshl_b32 {s(S_T3)}, {s(S_G8)}, 2
    s_add_u32 {s(S_T3)}, {s(S_T3)}, {s(S_W)}
    s_mul_i32 {s(S_T3)}, {s(S_T3)}, {32*1536}
    s_add_u32 {s(S_T3)}, {s(S_T3)}, {WS_X1}
    s_lshr_b32 {s(S_T2)}, {s(S_RQ)}, 1
    s_mul_i32 {s(S_T2)}, {s(S_T2)}, {16*1536}
    s_and_b32 {s(S_T1)}, {s(S_RQ)}, 1
    s_mul_i32 {s(S_T1)}, {s(S_T1)}, {2*1536}
    s_add_u32 {s(S_KS[0])}, {s(S_T3)}, {s(S_T2)}
    s_sub_u32 {s(S_KS[2])}, {s(S_T3)}, {s(S_T2)}
    s_add_u32 {s(S_KS[2])}, {s(S_KS[2])}, {16*1536}
    s_sub_u32 {s(S_KS[1])}, {s(S_KS[0])}, {s(S_T1)}
    s_add_u32 {s(S_KS[1])}, {s(S_KS[1])}, {2*1536}
    s_sub_u32 {s(S_KS[3])}, {s(S_KS[2])}, {s(S_T1)}
    s_add_u32 {s(S_KS[3])}, {s(S_KS[3])}, {2*1536}
    s_add_u32 {s(S_KS[0])}, {s(S_KS[0])}, {s(S_T1)}
    s_add_u32 {s(S_KS[2])}, {s(S_KS[2])}, {s(S_T1)}
    s_bfe_u32 {s(S_R1)}, {s(S_J)}, 0x10002
    s_lshl_b32 {s(S_R1)}, {s(S_R1)}, 1
    s_and_b32 {s(S_T1)}, {s(S_W)}, 1
    s_add_u32 {s(S_R1)}, {s(S_R1)}, {s(S_T1)}
    s_sub_u32 {s(S_R1)}, {s(S_R1)}, {s(S_W)}
    s_mul_i32 {s(S_R1)}, {s(S_R1)}, {32*1536}
    s_add_u32 {s(S_R1)}, {s(S_R1)}, {s(S_KS[0])}
    s_and_b32 {s(S_T1)}, {s(S_J)}, 3
    s_mul_i32 {s(S_T1)}, {s(S_T1)}, 384
    s_add_u32 {s(S_R1)}, {s(S_R1)}, {s(S_T1)}
    s_lshr_b32 {s(S_T1)}, {s(S_W)}, 1
    s_lshl_b32 {s(S_T1)}, {s(S_T1)}, 7
    s_add_u32 {s(S_R0)}, {s(S_T1)}, {s(S_R1)}
    s_lshl_b32 {s(S_FL)}, s2, 7
    s_lshl_b32 {s(S_T1)}, {s(S_W)}, 2
    s_add_u32 {s(S_FL)}, {s(S_FL)}, {s(S_T1)}
    s_add_u32 {s(S_FL)}, {s(S_FL)}, {WS_F2}
    s_lshl_b32 {s(S_T3)}, {s(S_G8)}, 2
    s_add_u32 {s(S_O0)}, {s(S_T3)}, {s(S_RQ)}
    s_lshl_b32 {s(S_O0)}, {s(S_O0)}, 2
    s_add_u32 {s(S_O1)}, {s(S_O0)}, {s(S_W)}
    s_mul_i32 {s(S_O1)}, {s(S_O1)}, 12288
    s_mul_i32 {s(S_T2)}, {s(S_CS)}, 3072
    s_add_u32 {s(S_O1)}, {s(S_O1)}, {s(S_T2)}
    s_add_u32 {s(S_O1)}, {s(S_O1)}, {WS_QP}
    s_add_u32 {s(S_O0)}, {s(S_O0)}, {s(S_CS)}
    s_lshl_b32 {s(S_O0)}, {s(S_O0)}, 2
    s_add_u32 {s(S_O0)}, {s(S_O0)}, {s(S_W)}
    s_lshl_b32 {s(S_O0)}, {s(S_O0)}, 6
    s_add_u32 {s(S_O0)}, {s(S_O0)}, {WS_SQ}
    s_add_u32 {s(S_T3)}, {s(S_T3)}, {s(S_CS)}
    s_mul_i32 {s(S_T3)}, {s(S_T3)}, 49152
    s_lshl_b32 {s(S_T2)}, {s(S_W)}, 1
    s_lshr_b32 {s(S_T1)}, {s(S_RQ)}, 1
    s_add_u32 {s(S_T2)}, {s(S_T2)}, {s(S_T1)}
    s_mul_i32 {s(S_T2)}, {s(S_T2)}, 6144
    s_add_u32 {s(S_T3)}, {s(S_T3)}, {s(S_T2)}
    s_and_b32 {s(S_T2)}, {s(S_RQ)}, 1
    s_lshl_b32 {s(S_T2)}, {s(S_T2)}, 3
    s_add_u32 {s(S_T3)}, {s(S_T3)}, {s(S_T2)}
    s_add_u32 {s(S_T3)}, {s(S_T3)}, {WS_VP-4*49152}
    s_cmp_lt_u32 {s(S_CS)}, 4
    s_cselect_b32 {s(S_O1)}, {s(S_O1)}, {s(S_T3)}
    """)


KL = ([f"buffer_load_dwordx4 {kreg(sl,ks)}, {v(V_KO)}, {s(SRD_WS,4)}, {s(S_KS[sl])} offen offset:{ks*128} sc1"
       for sl in range(4) for ks in range(12)] +
      [f"buffer_load_dwordx4 {v(V_RES,4)}, {v(V_KO)}, {s(SRD_WS,4)}, {s(S_R0)} offen sc1",
       f"buffer_load_dwordx4 {v(V_RES+4,4)}, {v(V_KO)}, {s(SRD_WS,4)}, {s(S_R1)} offen offset:256 sc1"])


def p2(g):
    ACC = V_ACC
    CS = V_ACC + 24
    CT = V_ACC + 32
    RT = V_MISC + 16
    STP = V_MISC
    KM, KR, KB = V_MISC + 12, V_MISC + 13, V_MISC + 20
    g(f"""
    L_p2:
    s_waitcnt vmcnt(0)
    s_barrier
    """)
    g.stamp('wsland')
    items = []
    for ks in range(12):
        for q in range(2):
            b = V_BUF + ((ks * 2 + q) % 16) * 4
            ad = A2[q + (3 if ks >= 6 else 0)]
            rd = [f"ds_read_b128 {v(b,4)}, {v(ad)} offset:{(ks%6)*6144}"]
            cc = "0" if ks == 0 else v(CS + 4 * q, 4)
            items.append((rd, [f"v_mfma_f32_16x16x32_bf16 {v(CS+4*q,4)}, {v(V_ONES,4)}, {v(b,4)}, {cc}"]))
    g(f"buffer_load_dword {v(V_T7)}, {v(V_FXP)}, {s(SRD_WS,4)}, {s(S_FXP)} offen sc1")
    pipelined(g, items, 12, group=2)
    g.nop(8)
    colsum_pack(g, CS, SG)
    colsum_pack(g, CS + 4, SG + 2)
    g(f"""
    ds_write_b64 {v(VC2+1)}, {v(SG,2)}
    ds_write_b64 {v(VC2+2)}, {v(SG+2,2)} offset:512
    s_mov_b32 {s(S_SPIN)}, {SPIN_LIMIT}
    """)
    g.stamp('ws2rdy')
    g(f"""
    L_px:
    s_waitcnt vmcnt(0)
    v_cmp_ne_u32 vcc, {s(S_NONCE)}, {v(V_T7)}
    s_cbranch_vccz L_pxok
    buffer_load_dword {v(V_T7)}, {v(V_FXP)}, {s(SRD_WS,4)}, {s(S_FXP)} offen sc1
    s_sub_u32 {s(S_SPIN)}, {s(S_SPIN)}, 1
    s_cbranch_scc0 L_px
    L_pxok:
    """)
    g.stamp('x1ok')
    for x in KL[:2]:
        g(x)
    for cb in range(6):
        g(f"buffer_load_dwordx2 {v(STP+2*cb,2)}, {v(VST)}, {s(SRD_WS,4)}, {s(S_STX)} offen offset:{cb*128} sc1")
    for x in KL[2:12]:
        g(x)
    g(f"""
    s_waitcnt lgkmcnt(0)
    s_barrier
    """)
    for c in range(6):
        g(f"ds_read_b64 {v(CT+2*c,2)}, {v(VC2)} offset:{c*128}")
    g(f"""
    s_waitcnt lgkmcnt(0)
    s_cmp_lt_u32 {s(S_CS)}, 4
    s_cbranch_scc0 L_p2_v
    """)

    def stats():
        for c in range(1, 6):
            g(f"v_add_f32 {v(STP)}, {v(STP)}, {v(STP+2*c)}")
            g(f"v_add_f32 {v(STP+1)}, {v(STP+1)}, {v(STP+2*c+1)}")
        mean_rstd(g, STP, STP + 1, KM, KR)
        for src, dst in ((KM, V_MEAN), (KR, V_R)):
            g(f"v_mov_b32 {v(dst)}, {v(src)}")
            g(f"v_mov_b32 {v(V_T0)}, {v(src)}")
            g.nop(2)
            g(f"v_permlane16_swap_b32 {v(dst)}, {v(V_T0)}")
            g.nop(1)
            g(f"v_mov_b32 {v(V_T0)}, {v(dst)}")
            g.nop(2)
            g(f"v_permlane32_swap_b32 {v(dst)}, {v(V_T0)}")
            g.nop(1)
        mu_operand(g, V_MEAN)
        g(f"""
        v_mul_f32 {v(KB)}, {v(KM)}, {v(KR)}
        v_mul_f32 {v(V_T0)}, {f2u(SCALE_LOG2E):#x}, {v(V_R)}
        v_mov_b32 {v(V_T1)}, {v(V_T0)}
        """)
    KIN = g.opts.get("kin", 20)
    KA = g.opts.get("kafter", 8)
    KB4 = g.opts.get("kpoll", 6)
    for typ in range(2):
        if typ == 1:
            g("L_p2_v:")
        g.stamp('k0')
        items = []
        order = ["K0", "K1"] + ["s"] * 6 + [f"K{q}" for q in range(2, 12)]
        nk = 12
        slots = [round((q + 0.5) * 72 / KIN) for q in range(KIN)] if KIN else []
        fill = capture(g, stats)
        for ks in range(12):
            for c in range(6):
                n = ks * 6 + c
                b = V_BUF + (n % 16) * 4
                ad = V_L16 if ks < 6 else A2[2]
                rd = [f"ds_read_b128 {v(b,4)}, {v(ad)} offset:{(ks%6)*6144+c*1024}"]
                cc = "0" if ks == 0 else v(ACC + 4 * c, 4)
                cm = []
                if c == 0:
                    cm.append(f"s_waitcnt vmcnt({len(order) - 1 - order.index(f'K{ks}')})")
                if typ == 0:
                    cm.append(f"v_mfma_f32_16x16x32_bf16 {v(ACC+4*c,4)}, {v(b,4)}, {v(V_XF+4*ks,4)}, {cc}")
                else:
                    cm.append(f"v_mfma_f32_16x16x32_bf16 {v(ACC+4*c,4)}, {v(V_XF+4*ks,4)}, {v(b,4)}, {cc}")
                if n >= 14 and fill:
                    cm.append(fill.pop(0))
                for _ in range(slots.count(n)):
                    cm.append(KL[nk])
                    order.append(f"K{nk}")
                    nk += 1
                items.append((rd, cm))
        assert not fill
        pipelined(g, items, 12, group=2)
        g.stamp('p2gemm')
        PK = V_BUF
        if typ == 0:
            for c in range(6):
                mfma16(g, v(ACC + 4 * c, 4), v(CT + 2 * c, 2), v(V_MU, 2))
            g.nop(3)
            for m in range(3):
                for i in range(4 * m, 4 * m + 4):
                    g(f"v_pk_mul_f32 {v(ACC+2*i,2)}, {v(ACC+2*i,2)}, {v(V_T0,2)}")
            for i in range(12):
                g(f"v_cvt_pk_bf16_f32 {v(PK+i)}, {v(ACC+2*i)}, {v(ACC+2*i+1)}")
            g.nop(1)
            for m in range(3):
                mfma32(g, v(CS, 4), v(V_ONES, 4), v(PK + 4 * m, 4), "0" if m == 0 else None)

            def st(sc):
                for m in range(3):
                    g(f"buffer_store_dwordx4 {v(PK+4*m,4)}, {v(V_L16)}, {s(SRD_WS,4)}, {s(S_O1)} offen offset:{m*1024}{sc}")
                g(f"""
                s_nop 3
                s_mov_b64 exec, {s(S_G0,2)}
                buffer_store_dword {v(CS)}, {v(V_I4)}, {s(SRD_WS,4)}, {s(S_O0)} offen{sc}
                s_mov_b64 exec, -1
                """)
            both_modes(g, st)
        else:
            for e in range(4):
                g(f"ds_bpermute_b32 {v(RT+e)}, {v(VTB+1)}, {v(KR)} offset:{4*e}")
            for c in range(6):
                mfma16(g, v(ACC + 4 * c, 4), v(V_MU, 2), v(CT + 2 * c, 2))
            g.nop(2)
            g("s_waitcnt lgkmcnt(0)")
            for c in range(6):
                for h in range(2):
                    g(f"v_pk_mul_f32 {v(ACC+4*c+2*h,2)}, {v(ACC+4*c+2*h,2)}, {v(RT+2*h,2)}")
            for i in range(12):
                g(f"v_cvt_pk_bf16_f32 {v(PK+i)}, {v(ACC+2*i)}, {v(ACC+2*i+1)}")

            def st(sc):
                for c in range(6):
                    vo, off = (V_L16, c * 1024) if c < 4 else (V_L16H, (c - 4) * 1024)
                    g(f"buffer_store_dwordx2 {v(PK+2*c,2)}, {v(vo)}, {s(SRD_WS,4)}, {s(S_O1)} offen offset:{off}{sc}")
            both_modes(g, st)
        if typ == 0:
            g("s_branch L_p2_done")
    g("L_p2_done:")
    g.stamp('p2st')
    for x in KL[nk:nk + KA]:
        g(x)
    g(f"""
    ds_write_b32 {v(VTB)}, {v(KR)}
    ds_write_b32 {v(VTB)}, {v(KB)} offset:256
    """)
    p3_setup(g)
    g(f"s_waitcnt vmcnt({KA}) lgkmcnt(0)")
    g("s_mov_b64 exec, 1")
    both_modes(g, lambda sc: g(f"buffer_store_dword {v(V_NONCE)}, {v(V_ZERO)}, {s(SRD_WS,4)}, {s(S_FL)} offen{sc}"))
    g("s_mov_b64 exec, -1")
    g.stamp('p2flag')
    for x in KL[nk + KA:nk + KA + KB4]:
        g(x)
    for sl in range(4):
        g(f"ds_read_b128 {v(RK+4*sl,4)}, {v(VTB+2)} offset:{sl*64}")
        g(f"ds_read_b128 {v(BK+4*sl,4)}, {v(VTB+2)} offset:{256+sl*64}")
    return nk + KA + KB4


S_Q, S_SQ, S_V0, S_V1 = S_TAG, S_TAG + 1, S_TAG + 2, S_TAG + 3


def p3_setup(g):
    g(f"""
    v_bfe_u32 {v(V_T0)}, {v(V_L)}, 2, 2
    s_and_b32 {s(S_T5)}, {s(S_J)}, 3
    s_add_u32 {s(S_T1)}, {s(S_T5)}, 4
    v_lshlrev_b32 {v(V_T2)}, 3, {v(V_T0)}
    v_add_u32 {v(V_T2)}, {s(S_T1)}, {v(V_T2)}
    s_lshl_b32 {s(S_T1)}, {s(S_RQ)}, 3
    v_add_u32 {v(V_T0)}, {s(S_T1)}, {v(V_T0)}
    v_and_b32 {v(V_T6)}, 16, {v(V_L)}
    v_cmp_eq_u32 vcc, 0, {v(V_T6)}
    s_lshl_b32 {s(S_T0)}, {s(S_G8)}, 7
    s_add_u32 {s(S_T0)}, {s(S_T0)}, {WS_F2}
    v_cndmask_b32 {v(V_T0)}, {v(V_T2)}, {v(V_T0)}, vcc
    v_lshlrev_b32 {v(V_T0)}, 10, {v(V_T0)}
    v_and_b32 {v(V_T1)}, 3, {v(V_L)}
    v_lshl_add_u32 {v(V_T0)}, {v(V_T1)}, 2, {v(V_T0)}
    s_bfe_u32 {s(S_T4)}, {s(S_J)}, 0x10002
    s_lshl_b32 {s(S_T6)}, {s(S_G8)}, 2
    s_add_u32 {s(S_T7)}, {s(S_T6)}, {s(S_T5)}
    s_add_u32 {s(S_T6)}, {s(S_T6)}, {s(S_RQ)}
    s_lshl_b32 {s(S_Q)}, {s(S_T6)}, 1
    s_add_u32 {s(S_Q)}, {s(S_Q)}, {s(S_T4)}
    s_mul_i32 {s(S_Q)}, {s(S_Q)}, 24576
    s_mul_i32 {s(S_T2)}, {s(S_W)}, 6144
    s_add_u32 {s(S_Q)}, {s(S_Q)}, {s(S_T2)}
    s_add_u32 {s(S_Q)}, {s(S_Q)}, {WS_QP}
    s_add_u32 m0, {s(S_T2)}, {L_WVO}
    s_lshl_b32 {s(S_SQ)}, {s(S_T6)}, 10
    s_lshl_b32 {s(S_T2)}, {s(S_T4)}, 7
    s_add_u32 {s(S_SQ)}, {s(S_SQ)}, {s(S_T2)}
    s_add_u32 {s(S_SQ)}, {s(S_SQ)}, {WS_SQ}
    s_mul_i32 {s(S_V1)}, {s(S_T7)}, 49152
    s_mul_i32 {s(S_T2)}, {s(S_W)}, 12288
    s_add_u32 {s(S_V1)}, {s(S_V1)}, {s(S_T2)}
    s_add_u32 {s(S_V1)}, {s(S_V1)}, {WS_VP}
    s_lshr_b32 {s(S_T2)}, {s(S_RQ)}, 1
    s_mul_i32 {s(S_T2)}, {s(S_T2)}, 6144
    s_add_u32 {s(S_V0)}, {s(S_V1)}, {s(S_T2)}
    s_sub_u32 {s(S_V1)}, {s(S_V1)}, {s(S_T2)}
    s_add_u32 {s(S_V1)}, {s(S_V1)}, 6144
    s_add_u32 {s(S_T3)}, {s(S_Q)}, 4096
    v_lshl_add_u32 {v(V_T5)}, {v(V_G)}, 8, {v(V_I4)}
    v_add_u32 {v(V_AD)}, {L_WVO}, {v(V_L16)}
    """)
    g(f"""
    s_lshl_b32 {s(S_T1)}, {s(S_W)}, 11
    v_add_u32 {v(V_AD+1)}, {s(S_T1)}, {v(V_L16)}
    s_lshl_b32 {s(S_T1)}, {s(S_W)}, 8
    s_add_u32 {s(S_T1)}, {s(S_T1)}, {L_ML}
    v_lshlrev_b32 {v(V_T1)}, 3, {v(V_I)}
    v_add_u32 {v(V_AD+2)}, {s(S_T1)}, {v(V_T1)}
    s_and_b32 {s(S_T7)}, {s(S_W)}, 1
    s_lshl_b32 {s(S_T1)}, {s(S_T7)}, 7
    s_add_u32 {s(S_T1)}, {s(S_T1)}, {L_ML}
    v_add_u32 {v(V_AD+3)}, {s(S_T1)}, {v(V_T1)}
    s_lshl_b32 {s(S_T1)}, {s(S_W)}, 13
    v_add_u32 {v(213)}, {s(S_T1)}, {v(V_L16)}
    s_lshl_b32 {s(S_O1)}, {s(S_T4)}, 1
    s_add_u32 {s(S_O1)}, {s(S_O1)}, {s(S_T7)}
    s_lshl_b32 {s(S_O1)}, {s(S_O1)}, 6
    s_lshr_b32 {s(S_T2)}, {s(S_RQ)}, 1
    s_lshl_b32 {s(S_T2)}, {s(S_T2)}, 5
    s_add_u32 {s(S_O1)}, {s(S_O1)}, {s(S_T2)}
    s_and_b32 {s(S_T2)}, {s(S_RQ)}, 1
    s_lshl_b32 {s(S_T2)}, {s(S_T2)}, 2
    s_add_u32 {s(S_O1)}, {s(S_O1)}, {s(S_T2)}
    s_lshl_b32 {s(S_T2)}, {s(S_G8)}, 8
    s_add_u32 {s(S_O1)}, {s(S_O1)}, {s(S_T2)}
    s_mul_i32 {s(S_O1)}, {s(S_O1)}, 768
    s_mul_i32 {s(S_T2)}, {s(S_T5)}, 192
    s_add_u32 {s(S_O1)}, {s(S_O1)}, {s(S_T2)}
    s_lshr_b32 {s(S_T2)}, {s(S_W)}, 1
    s_lshl_b32 {s(S_T2)}, {s(S_T2)}, 6
    s_add_u32 {s(S_O0)}, {s(S_T2)}, {s(S_O1)}
    v_lshrrev_b32 {v(V_T2)}, 2, {v(V_I)}
    v_lshlrev_b32 {v(V_T2)}, 3, {v(V_T2)}
    v_and_b32 {v(V_T3)}, 3, {v(V_I)}
    v_add_u32 {v(V_T2)}, {v(V_T2)}, {v(V_T3)}
    v_mul_u32_u24 {v(V_T2)}, 768, {v(V_T2)}
    v_lshl_add_u32 {v(A2[0])}, {v(V_G)}, 4, {v(V_T2)}
    """)


def p3(g, nk):
    SA = V_ACC
    LS = V_ACC + 32
    MX = V_ACC + 40
    SQ = V_ACC + 42
    OA = V_BUF
    QB = V_BUF + 48
    PF = V_XF
    BS = OA
    V_RW, V_MW, V_MR, V_RR, V_OO = V_AD + 1, V_AD + 2, V_AD + 3, 213, A2[0]
    poll(g, V_T0, s(S_T0), s(S_NONCE), "p2f")
    g.stamp('e3ok')
    for q in range(4):
        g(f"buffer_load_dwordx4 {v(V_L16)}, {s(SRD_WS,4)}, {s(S_Q)} offen offset:{q*1024} sc1 lds")
    g(f"s_add_u32 m0, m0, 4096")
    for u in range(2):
        g(f"buffer_load_dword {v(SQ+u)}, {v(V_T5)}, {s(SRD_WS,4)}, {s(S_SQ)} offen offset:{u*64} sc1")
    for q in range(2):
        g(f"buffer_load_dwordx4 {v(V_L16)}, {s(SRD_WS,4)}, {s(S_T3)} offen offset:{q*1024} sc1 lds")
    vl = []
    for pr, so in ((0, S_V0), (1, S_V1)):
        for c in range(6):
            vo, off = (V_L16, c * 1024) if c < 4 else (V_L16H, (c - 4) * 1024)
            vl.append(f"buffer_load_dwordx4 {a(A_V+(pr*6+c)*4,4)}, {v(vo)}, {s(SRD_WS,4)}, {s(so)} offen offset:{off} sc1")
    late = KL[nk:48] + vl + KL[48:]
    nkl = 48 - min(nk, 48)
    PRE = g.opts.get("p3pre", 0)
    for x in late[:PRE]:
        g(x)
    g(f"""
    s_waitcnt vmcnt({PRE}) lgkmcnt(0)
    s_barrier
    """)
    g.stamp('qland')
    issued = PRE

    def softmax_lines(u, pk):
        d = SA + u * 16
        TMP = SG + 4 * u
        L = []
        if pk:
            for i in range(8):
                L.append(f"v_pk_fma_f32 {v(d+2*i,2)}, {v(d+2*i,2)}, {v(RK+2*i,2)}, {v(BS+16*u+2*i,2)} neg_lo:[0,0,1] neg_hi:[0,0,1]")
        else:
            for i in range(16):
                L.append(f"v_fma_f32 {v(d+i)}, {v(d+i)}, {v(RK+i)}, -{v(BS+16*u+i)}")
        nf = len(L)
        L.append(f"v_max3_f32 {v(MX+u)}, {v(d)}, {v(d+1)}, {v(d+2)}")
        for i in range(3, 15, 2):
            L.append(f"v_max3_f32 {v(MX+u)}, {v(MX+u)}, {v(d+i)}, {v(d+i+1)}")
        L.append(f"v_max_f32 {v(MX+u)}, {v(MX+u)}, {v(d+15)}")
        L += capture(g, lambda: xlane_sum(g, MX + u, TMP + 2, "v_max_f32"))
        if pk:
            L.append(f"v_mov_b32 {v(TMP)}, {v(MX+u)}")
            L.append(f"v_mov_b32 {v(TMP+1)}, {v(MX+u)}")
            for i in range(8):
                L.append(f"v_pk_add_f32 {v(d+2*i,2)}, {v(d+2*i,2)}, {v(TMP,2)} neg_lo:[0,1] neg_hi:[0,1]")
        else:
            for i in range(16):
                L.append(f"v_sub_f32 {v(d+i)}, {v(d+i)}, {v(MX+u)}")
        for i in range(16):
            L.append(f"v_exp_f32 {v(d+i)}, {v(d+i)}")
        return L, nf
    pre0 = capture(g, lambda: (xlane_sum(g, SQ, SG), xlane_sum(g, SQ + 1, SG + 4)))
    for u in range(2):
        for i in range(16):
            pre0.append(f"v_mul_f32 {v(BS+16*u+i)}, {v(BK+i)}, {v(SQ+u)}")
    OV = g.opts.get("ov", 1)
    sm0, _ = softmax_lines(0, not OV)
    items = []
    nq = 0
    rest = late[PRE:]
    LSPAN = g.opts.get("lspan", 47)
    lpos = [int(q * LSPAN / max(len(rest), 1)) for q in range(len(rest))]
    for ph, (slots, u) in enumerate((((0, 1), 0), ((0, 1), 1), ((2, 3), 0), ((2, 3), 1))):
        for ks in range(12):
            b = QB + (nq % 4) * 4
            nq += 1
            rd = [f"ds_read_b128 {v(b,4)}, {v(V_AD)} offset:{u*12288+ks*1024}"]
            cm = []
            for sl in slots:
                kidx = sl * 12 + ks
                if kidx >= nk and u == 0:
                    cm.append(f"s_waitcnt vmcnt({issued - (kidx - nk) - 1})")
                d = SA + u * 16 + sl * 4
                cc = "0" if ks == 0 else v(d, 4)
                cm.append(f"v_mfma_f32_16x16x32_bf16 {v(d,4)}, {kreg(sl,ks)}, {v(b,4)}, {cc}")
                if ph < 2:
                    pos = ph * 24 + ks * 2 + (sl & 1)
                    k = lpos.count(pos)
                    for _ in range(k):
                        cm.append(rest.pop(0))
                        issued += 1
                    if not k and pre0:
                        cm += pre0[:2]
                        pre0 = pre0[2:]
                if ph == 2 and pre0:
                    cm += pre0[:2]
                    pre0 = pre0[2:]
                if ph == 3 and OV and ks >= 2:
                    take = 1 if sm0 and sm0[0].startswith("v_exp") else 2
                    cm += sm0[:take]
                    sm0 = sm0[take:]
            items.append((rd, cm))
        if ph == 1:
            assert not rest, len(rest)
    assert not pre0
    pipelined(g, items, 3)
    for x in sm0:
        g(x)
    g.stamp('sdone')

    def cvts(u, odd):
        L = []
        for sl in range(4):
            for h in range(2):
                dst = PF + u * 8 + (sl >> 1) * 4 + ((sl & 1) ^ odd) * 2 + h
                src = SA + u * 16 + sl * 4 + 2 * h
                L.append(f"v_cvt_pk_bf16_f32 {v(dst)}, {v(src)}, {v(src+1)}")
        return L

    def cvt_branch(u):
        lo, lj = g.label("odd"), g.label("cj")
        g(f"s_bitcmp1_b32 {s(S_RQ)}, 0")
        g(f"s_cbranch_scc1 {lo}")
        for x in cvts(u, 0):
            g(x)
        g(f"s_branch {lj}")
        g(f"{lo}:")
        for x in cvts(u, 1):
            g(x)
        g(f"{lj}:")

    def pv_lines(u):
        L = []
        for pr in range(2):
            p = v(PF + u * 8 + pr * 4, 4)
            for c in range(6):
                d = OA + u * 24 + c * 4
                L.append(f"v_mfma_f32_16x16x32_bf16 {v(d,4)}, {a(A_V+(pr*6+c)*4,4)}, {p}, {'0' if pr == 0 else v(d,4)}")
            L.append(f"v_mfma_f32_16x16x32_bf16 {v(LS+4*u,4)}, {v(V_ONES,4)}, {p}, {'0' if pr == 0 else v(LS+4*u,4)}")
        return L
    cvt_branch(0)
    sm1, _ = softmax_lines(1, True)
    ex = sm1[-16:]
    for x in sm1[:-16]:
        g(x)
    g("s_waitcnt vmcnt(0)")
    for x in pv_lines(0):
        g(x)
        if ex:
            g(ex.pop(0))
    for x in ex:
        g(x)
    g.stamp('smax')
    cvt_branch(1)
    OUT = V_ACC
    unp = []
    for rnd in range(2):
        for i in range(8):
            src = V_RES + 4 * rnd + (i >> 1)
            unp.append(f"v_and_b32 {v(OUT+8*rnd+i)}, 0xffff0000, {v(src)}" if i & 1 else
                       f"v_lshlrev_b32 {v(OUT+8*rnd+i)}, 16, {v(src)}")
    g(f"v_mov_b32 {v(V_T4)}, {v(MX)}")
    g(f"v_mov_b32 {v(V_T5)}, {v(LS)}")
    w0 = [f"ds_write_b128 {v(V_RW)}, {v(OA+(2*m+h)*4,4)} offset:{2*m*8192+h*1024}" for m in range(3) for h in range(2)]
    w0.append(f"ds_write_b64 {v(V_MW)}, {v(V_T4,2)}")
    for n, x in enumerate(pv_lines(1)):
        g(x)
        if n % 2 == 1:
            g(w0.pop(0))
        else:
            g(unp.pop(0))
    g.stamp('pvdone')
    for x in unp[:3]:
        g(x)
    unp = unp[3:]
    for m in range(3):
        for h in range(2):
            g(f"ds_write_b128 {v(V_RW)}, {v(OA+24+(2*m+h)*4,4)} offset:{(2*m+1)*8192+h*1024}")
            g(unp.pop(0))
    g(f"""
    v_mov_b32 {v(V_T6)}, {v(MX+1)}
    v_mov_b32 {v(V_T7)}, {v(LS+4)}
    ds_write_b64 {v(V_MW)}, {v(V_T6,2)} offset:128
    s_waitcnt lgkmcnt(0)
    s_barrier
    """)
    g.stamp('redbar')
    ML = V_ACC + 16
    FW = V_ACC + 24
    RD = V_BUF
    for w in range(4):
        g(f"ds_read_b64 {v(ML+2*w,2)}, {v(V_MR)} offset:{w*256}")
    for w in range(4):
        for h in range(2):
            g(f"ds_read_b128 {v(RD+w*8+h*4,4)}, {v(V_RR)} offset:{w*2048+h*1024}")
    g(f"""
    s_waitcnt lgkmcnt(8)
    v_max3_f32 {v(V_T3)}, {v(ML)}, {v(ML+2)}, {v(ML+4)}
    v_max_f32 {v(V_T3)}, {v(V_T3)}, {v(ML+6)}
    """)
    for w in range(4):
        g(f"v_sub_f32 {v(FW+2*w)}, {v(ML+2*w)}, {v(V_T3)}")
    for w in range(4):
        g(f"v_exp_f32 {v(FW+2*w)}, {v(FW+2*w)}")
    g(f"""
    s_waitcnt lgkmcnt(2)
    s_cmp_ge_u32 {s(S_W)}, 2
    s_cbranch_scc1 L_nord2
    """)
    for w in range(4):
        for h in range(2):
            g(f"ds_read_b128 {v(RD+32+w*8+h*4,4)}, {v(V_RR)} offset:{32768+w*2048+h*1024}")
    g(f"""
    s_waitcnt lgkmcnt(8)
    s_branch L_rd1
    L_nord2:
    s_waitcnt lgkmcnt(0)
    L_rd1:
    v_mul_f32 {v(V_T3)}, {v(FW)}, {v(ML+1)}
    v_fmac_f32 {v(V_T3)}, {v(FW+2)}, {v(ML+3)}
    v_fmac_f32 {v(V_T3)}, {v(FW+4)}, {v(ML+5)}
    v_fmac_f32 {v(V_T3)}, {v(FW+6)}, {v(ML+7)}
    v_rcp_f32 {v(V_T3)}, {v(V_T3)}
    s_nop 0
    """)
    for w in range(4):
        g(f"v_mul_f32 {v(FW+2*w)}, {v(FW+2*w)}, {v(V_T3)}")
        g(f"v_mov_b32 {v(FW+2*w+1)}, {v(FW+2*w)}")
    osc = " sc1" if g.opts.get("outsc1", 0) else (" nt" if g.opts.get("outnt", 0) else "")
    for rnd in range(2):
        if rnd == 1:
            g(f"""
            s_cmp_ge_u32 {s(S_W)}, 2
            s_cbranch_scc1 L_fin
            """)
        for w in range(4):
            if rnd == 1:
                g(f"s_waitcnt lgkmcnt({6-2*w})")
            for i in range(4):
                g(f"v_pk_fma_f32 {v(OUT+8*rnd+2*i,2)}, {v(RD+32*rnd+w*8+2*i,2)}, {v(FW+2*w,2)}, {v(OUT+8*rnd+2*i,2)}")
        PK = V_ACC + 32 + 4 * rnd
        for i in range(4):
            g(f"v_cvt_pk_bf16_f32 {v(PK+i)}, {v(OUT+8*rnd+2*i)}, {v(OUT+8*rnd+2*i+1)}")
        if rnd == 0:
            g(f"buffer_store_dwordx4 {v(PK,4)}, {v(V_OO)}, {s(SRD_OUT,4)}, {s(S_O0)} offen{osc}")
        else:
            g(f"buffer_store_dwordx4 {v(PK,4)}, {v(V_OO)}, {s(SRD_OUT,4)}, {s(S_O1)} offen offset:128{osc}")
    g("L_fin:")


def epilogue(g):
    g(f"""
    s_or_b32 {s(S_T0)}, s2, {s(S_W)}
    s_cmp_lg_u32 {s(S_T0)}, 0
    s_cbranch_scc1 L_nononce
    s_mov_b64 exec, 1
    buffer_store_dword {v(V_NONCE)}, {v(V_ZERO)}, {s(SRD_WS,4)}, 0 offen
    s_mov_b64 exec, -1
    L_nononce:
    """)
    if g.stamps:
        g(f"""
        s_cmp_lg_u32 {s(S_W)}, 0
        s_cbranch_scc1 L_end
        s_waitcnt vmcnt(0)
        s_memtime s[98:99]
        s_memrealtime s[100:101]
        s_waitcnt lgkmcnt(0)
        s_lshl_b32 {s(S_T0)}, s2, 8
        s_add_u32 {s(S_T0)}, {s(S_T0)}, {WS_STAMP}
        v_mov_b32 {v(V_T1)}, 0
        s_mov_b64 exec, 1
        """)
        for i in range(20):
            g(f"v_mov_b32 {v(V_T0)}, s{S_STAMP+i}")
            g(f"buffer_store_dword {v(V_T0)}, {v(V_T1)}, {s(SRD_WS,4)}, {s(S_T0)} offen offset:{4*i}")
            g("s_nop 1")
    g("L_end:")
    g("s_endpgm")


def build(stamps=False, opts=None):
    g = G(stamps, opts)
    prologue(g)
    g("s_cbranch_scc1 L_products")
    p0_issue(g)
    g("s_branch L_main")
    products(g)
    products_body(g)
    g("L_main:")
    p0_main(g)
    p1(g)
    nk = p2(g)
    p3(g, nk)
    epilogue(g)
    g("L_code_end:")
    hdr = f"""; TimeSformer divided space-time attention block, one persistent launch (256 workgroups, one per CU).
; @launch grid=(256,1,1) block=(256,1,1) lds={LDS_SIZE}
.amdgcn_target "amdgcn-amd-amdhsa--gfx950"
.text
.globl {KNAME}
.p2align 8
.type {KNAME},@function
{KNAME}:
"""
    ftr = f"""
.section .rodata,"a"
.p2align 6
.amdhsa_kernel {KNAME}
  .amdhsa_next_free_vgpr 512
  .amdhsa_next_free_sgpr 102
  .amdhsa_accum_offset 256
  .amdhsa_group_segment_fixed_size 0
  .amdhsa_kernarg_size 64
  .amdhsa_user_sgpr_count 2
  .amdhsa_user_sgpr_kernarg_segment_ptr 1
  .amdhsa_system_sgpr_workgroup_id_x 1
.end_amdhsa_kernel
"""
    return hdr + "\n".join(g.L) + ftr


if __name__ == "__main__":
    out = sys.argv[1]
    stamps = None
    opts = {}
    for x in sys.argv[2:]:
        if x.startswith("--stamps="):
            stamps = ["start"] + x.split("=")[1].split(",")
            assert len(stamps) <= 7
        elif "=" in x:
            k, val = x.split("=")
            opts[k] = int(val)
    open(out, "w").write(build(stamps, opts))
```

```python
import sys, math

KNAME = "standalone__video_timesformer__vision_kernel"

WS_NONCE = 0
WS_FXCC = 0x1000
WS_FP = 0x9000
WS_FX = 0xD000
WS_F2 = 0x13000
WS_SP = 0x1B000
WS_STX = 0x7B000
WS_SQ = 0xAB000
WS_WVOT = 0xB3000
WS_WS2 = 0xFB000
WS_X1 = 0x18B000
WS_QP = 0x30B000
WS_VP = 0x48B000
WS_STAMP = 0x60B000
WS_SIZE = WS_STAMP + 256 * 256

L_W = 0
L_WVO = 98304
L_CT0 = 147456
L_CT1 = L_CT0 + 1024
L_CT2 = L_CT1 + 512
L_ML = L_CT2 + 1024
L_ST = L_ML + 1024
L_SG = L_ST + 3072
LDS_SIZE = L_SG + 512

SPIN_LIMIT = 40000
SCALE_LOG2E = (384 ** -0.5) * math.log2(math.e)


def f2u(x):
    import struct
    return struct.unpack("<I", struct.pack("<f", x))[0]


class G:
    def __init__(self, stamps=False, opts=None):
        self.L = []
        self.stamps = stamps
        self.nstamp = 0
        self.uid = 0
        self.opts = opts or {}

    def __call__(self, s):
        for line in s.split("\n"):
            line = line.strip()
            if line:
                self.L.append("    " + line if not line.endswith(":") else line)

    def label(self, p):
        self.uid += 1
        return f"L_{p}_{self.uid}"

    def nop(self, n):
        while n > 0:
            k = min(n, 16)
            self(f"s_nop {k-1}")
            n -= k

    def stamp(self, name, wait=True):
        if self.stamps and name in self.stamps:
            idx = 1 + self.stamps.index(name)
            self(f"s_memtime s[{S_STAMP+2*idx}:{S_STAMP+2*idx+1}]")
            if wait:
                self("s_waitcnt lgkmcnt(0)")


def v(a, n=1):
    return f"v{a}" if n == 1 else f"v[{a}:{a+n-1}]"


def a(x, n=1):
    return f"a{x}" if n == 1 else f"a[{x}:{x+n-1}]"


def s(x, n=1):
    return f"s{x}" if n == 1 else f"s[{x}:{x+n-1}]"


S_X, S_WQT, S_WOT, S_WQS, S_WOS, S_OUT, S_DBG, S_WS = 4, 6, 8, 10, 12, 14, 16, 18
S_G8, S_J, S_W, S_NONCE, S_ME = 20, 21, 22, 23, 24
S_RB = 25
S_T0, S_T1, S_T2, S_T3 = 27, 28, 29, 30
S_SPIN = 31
SRD_WS = 32
SRD_A = 36
SRD_B = 40
SRD_OUT = 44
S_VALID = 48
S_G0 = 50
S_TAG = 52
S_M = 56
S_ONES = 58
S_RQ = 59
S_CS = 60
S_SLOW = 61
S_F1 = 62
S_F2 = 63
S_T4, S_T5, S_T6, S_T7 = 64, 65, 66, 67
S_DIAG = 100
S_STAMP = 82

V_TID, V_L, V_I, V_G = 0, 1, 2, 3
V_T0, V_T1, V_T2, V_T3, V_T4, V_T5, V_T6, V_T7 = 4, 5, 6, 7, 8, 9, 10, 11
V_ONES = 12
V_XF = 16
V_MU = 64
V_R = 66
V_MEAN = 67
V_L16 = 68
V_MASK = 69
V_S1A, V_S1B, V_S2A, V_S2B = 70, 71, 72, 73
V_AD = 74
V_BUF = 80
V_ACC = 144
V_MISC = 192
V_ZERO, V_NONCE, V_PA, V_PB = 228, 229, 230, 231


def row_stats_dots(g, lo, hi):
    for r in range(lo, hi):
        g(f"v_dot2c_f32_bf16 {v(V_S1A + (r & 1))}, {s(S_ONES)}, {v(V_XF + r)}")
        g(f"v_dot2c_f32_bf16 {v(V_S2A + (r & 1))}, {v(V_XF + r)}, {v(V_XF + r)}")


def xlane_sum(g, r, t, op="v_add_f32"):
    g(f"v_mov_b32 {v(t)}, {v(r)}")
    g.nop(2)
    g(f"v_permlane16_swap_b32 {v(r)}, {v(t)}")
    g.nop(1)
    g(f"{op} {v(r)}, {v(r)}, {v(t)}")
    g(f"v_mov_b32 {v(t)}, {v(r)}")
    g.nop(2)
    g(f"v_permlane32_swap_b32 {v(r)}, {v(t)}")
    g.nop(1)
    g(f"{op} {v(r)}, {v(r)}, {v(t)}")


def row_stats_finish(g):
    g.nop(3)
    g(f"v_add_f32 {v(V_S1A)}, {v(V_S1A)}, {v(V_S1B)}")
    g(f"v_add_f32 {v(V_S2A)}, {v(V_S2A)}, {v(V_S2B)}")
    xlane_sum(g, V_S1A, V_T0)
    xlane_sum(g, V_S2A, V_T1)
    g(f"""
    v_mul_f32 {v(V_MEAN)}, {f2u(1/384.):#x}, {v(V_S1A)}
    v_mul_f32 {v(V_T0)}, {f2u(1/384.):#x}, {v(V_S2A)}
    v_fma_f32 {v(V_T0)}, -{v(V_MEAN)}, {v(V_MEAN)}, {v(V_T0)}
    v_max_f32 {v(V_T0)}, 0, {v(V_T0)}
    v_add_f32 {v(V_T0)}, {f2u(1e-5):#x}, {v(V_T0)}
    v_rsq_f32 {v(V_R)}, {v(V_T0)}
    v_cvt_pk_bf16_f32 {v(V_T1)}, -{v(V_MEAN)}, -{v(V_MEAN)}
    v_lshlrev_b32 {v(V_T1)}, 16, {v(V_T1)}
    v_sub_f32 {v(V_T1)}, -{v(V_MEAN)}, {v(V_T1)}
    v_cvt_pk_bf16_f32 {v(V_T1)}, -{v(V_MEAN)}, {v(V_T1)}
    v_cndmask_b32 {v(V_MU)}, 0, {v(V_T1)}, {s(S_G0,2)}
    v_cndmask_b32 {v(V_MU+1)}, 0, {v(V_T1)}, {s(S_G0,2)}
    """)


def mean_rstd(g, s1, s2, mean, rstd):
    g(f"""
    v_mul_f32 {v(mean)}, {f2u(1/384.):#x}, {v(s1)}
    v_mul_f32 {v(rstd)}, {f2u(1/384.):#x}, {v(s2)}
    v_fma_f32 {v(rstd)}, -{v(mean)}, {v(mean)}, {v(rstd)}
    v_max_f32 {v(rstd)}, 0, {v(rstd)}
    v_add_f32 {v(rstd)}, {f2u(1e-5):#x}, {v(rstd)}
    v_rsq_f32 {v(rstd)}, {v(rstd)}
    """)


def mu_operand(g, mean):
    g(f"""
    v_cvt_pk_bf16_f32 {v(V_T1)}, -{v(mean)}, -{v(mean)}
    v_lshlrev_b32 {v(V_T1)}, 16, {v(V_T1)}
    v_sub_f32 {v(V_T1)}, -{v(mean)}, {v(V_T1)}
    v_cvt_pk_bf16_f32 {v(V_T1)}, -{v(mean)}, {v(V_T1)}
    v_cndmask_b32 {v(V_MU)}, 0, {v(V_T1)}, {s(S_G0,2)}
    v_cndmask_b32 {v(V_MU+1)}, 0, {v(V_T1)}, {s(S_G0,2)}
    """)


def colsum_pack(g, src, dst):
    g(f"""
    v_cvt_pk_bf16_f32 {v(dst)}, {v(src)}, {v(src)}
    v_lshlrev_b32 {v(dst+1)}, 16, {v(dst)}
    v_sub_f32 {v(dst+1)}, {v(src)}, {v(dst+1)}
    v_cvt_pk_bf16_f32 {v(dst+1)}, {v(dst+1)}, {v(dst+1)}
    """)


def poll(g, voff, soff, want, name):
    lp, done = g.label(name), g.label(name + "_ok")
    g(f"s_mov_b32 {s(S_SPIN)}, {SPIN_LIMIT}")
    g(f"{lp}:")
    g(f"""
    buffer_load_dword {v(V_T7)}, {v(voff)}, {s(SRD_WS,4)}, {soff} offen sc1
    s_waitcnt vmcnt(0)
    v_cmp_ne_u32 vcc, {want}, {v(V_T7)}
    s_cbranch_vccz {done}
    s_sub_u32 {s(S_SPIN)}, {s(S_SPIN)}, 1
    s_cbranch_scc0 {lp}
    {done}:
    """)


def mfma32(g, d, A, B, c=None):
    g(f"v_mfma_f32_16x16x32_bf16 {d}, {A}, {B}, {c if c is not None else d}")


def mfma16(g, d, A, B, c=None):
    g(f"v_mfma_f32_16x16x16_bf16 {d}, {A}, {B}, {c if c is not None else d}")


def pipelined(g, items, depth_reads, group=1):
    n = len(items)
    issued = 0
    cum = [0]
    for it in items:
        cum.append(cum[-1] + len(it[0]))
    for i in range(0, n, group):
        hi = min(i + group, n)
        while issued < n and (issued < hi or cum[issued + 1] - cum[i] <= depth_reads):
            if len(items[issued]) > 2:
                for p in items[issued][2]:
                    g(p)
            for r in items[issued][0]:
                g(r)
            issued += 1
        g(f"s_waitcnt lgkmcnt({cum[issued] - cum[hi]})")
        for k in range(i, hi):
            for c in items[k][1]:
                g(c)


def capture(g, fn):
    keep = g.L
    g.L = []
    fn()
    out = [x.strip() for x in g.L]
    g.L = keep
    return out


def prologue(g):
    g(f"""
    s_cmp_ge_u32 s2, 256
    s_cbranch_scc1 L_end
    s_load_dwordx16 s[4:19], s[0:1], 0
    """)
    if g.stamps:
        for i in range(S_STAMP, 100):
            g(f"s_mov_b32 s{i}, 0")
        g(f"s_memrealtime s[{S_STAMP}:{S_STAMP+1}]")
        g.stamp('start', False)
    g(f"""
    s_and_b32 {s(S_G8)}, s2, 7
    s_lshr_b32 {s(S_J)}, s2, 3
    v_lshrrev_b32 {v(V_T0)}, 6, v0
    v_and_b32 {v(V_L)}, 63, v0
    v_readfirstlane_b32 {s(S_W)}, {v(V_T0)}
    v_and_b32 {v(V_I)}, 15, v0
    v_bfe_u32 {v(V_G)}, v0, 4, 2
    v_lshlrev_b32 {v(V_L16)}, 4, {v(V_L)}
    s_lshr_b32 {s(S_RQ)}, {s(S_J)}, 3
    s_and_b32 {s(S_CS)}, {s(S_J)}, 7
    s_lshl_b32 {s(S_RB)}, {s(S_RQ)}, 3
    s_add_u32 {s(S_RB)}, {s(S_RB)}, {s(S_G8)}
    s_mov_b32 {s(SRD_A+3)}, 0x20000
    s_mov_b32 {s(SRD_B+3)}, 0x20000
    s_mov_b32 {s(SRD_WS+3)}, 0x20000
    s_mov_b32 {s(SRD_WS+2)}, {WS_SIZE}
    """)
    p0_pre(g)
    g(f"""
    s_cmp_ge_u32 {s(S_CS)}, 6
    s_waitcnt lgkmcnt(0)
    s_load_dword {s(S_NONCE)}, {s(S_WS,2)}, {WS_NONCE}
    """)


def touches(g):
    lb = g.label("pc")
    g(f"""
    s_getpc_b64 {s(S_M,2)}
    {lb}:
    s_lshl_b32 {s(S_T0)}, {s(S_J)}, 2
    s_add_u32 {s(S_T0)}, {s(S_T0)}, {s(S_W)}
    s_lshl_b32 {s(S_T0)}, {s(S_T0)}, 8
    s_min_u32 {s(S_T0)}, {s(S_T0)}, L_code_end-{lb}-256
    v_lshlrev_b32 {v(V_T0)}, 7, {v(V_L)}
    v_add_u32 {v(V_T1)}, {s(S_T0)}, {v(V_T0)}
    s_mov_b64 exec, {3 if g.opts.get("codepf", 1) else 1}
    global_load_dword {v(V_MISC+62)}, {v(V_T1)}, {s(S_M,2)}
    s_mul_i32 {s(S_T0)}, {s(S_W)}, {16*98304}
    v_mul_u32_u24 {v(V_T1)}, 98304, {v(V_L)}
    v_add_u32 {v(V_T1)}, {s(S_T0)}, {v(V_T1)}
    s_mov_b64 exec, {0xffff if g.opts.get("wstouch", 0) else 1}
    global_load_dword {v(V_MISC+63)}, {v(V_T1)}, {s(S_WS,2)} offset:64
    s_mov_b64 exec, -1
    """)


def common_consts(g):
    g(f"""
    s_mov_b32 {s(SRD_WS)}, {s(S_WS)}
    s_mov_b32 {s(SRD_WS+1)}, {s(S_WS+1)}
    s_mov_b32 {s(SRD_OUT)}, {s(S_OUT)}
    s_mov_b32 {s(SRD_OUT+1)}, {s(S_OUT+1)}
    s_mov_b32 {s(SRD_OUT+2)}, 1572864
    s_mov_b32 {s(SRD_OUT+3)}, 0x20000
    s_mov_b32 {s(S_ONES)}, 0x3f803f80
    s_getreg_b32 {s(S_ME)}, hwreg(HW_REG_XCC_ID, 0, 3)
    v_mov_b32 {v(V_ONES)}, {s(S_ONES)}
    v_mov_b32 {v(V_ONES+1)}, {s(S_ONES)}
    v_mov_b32 {v(V_ONES+2)}, {s(S_ONES)}
    v_mov_b32 {v(V_ONES+3)}, {s(S_ONES)}
    v_mov_b32 {v(V_MASK)}, 0xffffff00
    v_mov_b32 {v(V_ZERO)}, 0
    v_cmp_eq_u32 {s(S_G0,2)}, 0, {v(V_G)}
    v_lshrrev_b32 {v(V_T0)}, 1, {v(V_G)}
    v_lshrrev_b32 {v(V_T1)}, 3, {v(V_I)}
    v_cmp_eq_u32 {s(S_VALID,2)}, {v(V_T0)}, {v(V_T1)}
    v_lshrrev_b32 {v(V_T1)}, 2, {v(V_I)}
    v_cmp_eq_u32 {s(S_DIAG,2)}, {v(V_G)}, {v(V_T1)}
    """)
    g(f"""
    v_subrev_u32 {v(V_T0)}, 32, {v(V_L)}
    v_min_u32 {v(V_T0)}, 5, {v(V_T0)}
    v_mul_u32_u24 {v(V_T0)}, 768, {v(V_T0)}
    s_min_u32 {s(S_T0)}, {s(S_CS)}, 5
    s_lshl_b32 {s(S_T0)}, {s(S_T0)}, 7
    s_add_u32 {s(S_T0)}, {s(S_T0)}, {WS_FP}
    v_add_u32 {v(V_T0)}, {s(S_T0)}, {v(V_T0)}
    s_lshl_b32 {s(S_T0)}, {s(S_G8)}, 7
    s_add_u32 {s(S_T0)}, {s(S_T0)}, {WS_FXCC}
    v_lshlrev_b32 {v(V_T1)}, 10, {v(V_L)}
    v_add_u32 {v(V_T1)}, {s(S_T0)}, {v(V_T1)}
    v_cmp_gt_u32 vcc, 32, {v(V_L)}
    v_min_u32 {v(V_PB)}, 35, {v(V_L)}
    v_lshlrev_b32 {v(V_PB)}, 7, {v(V_PB)}
    v_cndmask_b32 {v(V_PA)}, {v(V_T0)}, {v(V_T1)}, vcc
    s_cmp_lt_u32 {s(S_CS)}, 4
    s_cselect_b32 {s(S_T0)}, 0, {36*128}
    s_add_u32 {s(S_T0)}, {s(S_T0)}, {WS_FP+36*128}
    v_add_u32 {v(V_PB)}, {s(S_T0)}, {v(V_PB)}
    """)


def nonce_and_publish(g):
    g(f"""
    s_waitcnt lgkmcnt(0)
    s_and_b32 {s(S_T0)}, {s(S_NONCE)}, 0x78787878
    s_add_u32 {s(S_T0)}, {s(S_T0)}, 0x08080808
    s_and_b32 {s(S_T1)}, {s(S_NONCE)}, 0x80808080
    s_xor_b32 {s(S_NONCE)}, {s(S_T0)}, {s(S_T1)}
    s_or_b32 {s(S_ME)}, {s(S_ME)}, {s(S_NONCE)}
    s_lshl_b32 {s(S_T0)}, s2, 7
    s_add_u32 {s(S_T0)}, {s(S_T0)}, {WS_FXCC}
    v_mov_b32 {v(V_T0)}, {s(S_ME)}
    v_mov_b32 {v(V_NONCE)}, {s(S_NONCE)}
    s_mov_b64 exec, 1
    buffer_store_dword {v(V_T0)}, {v(V_ZERO)}, {s(SRD_WS,4)}, {s(S_T0)} offen sc1
    s_mov_b64 exec, -1
    s_and_b32 {s(S_TAG)}, {s(S_NONCE)}, 0xff
    s_bfe_u32 {s(S_TAG+1)}, {s(S_NONCE)}, 0x80008
    s_bfe_u32 {s(S_TAG+2)}, {s(S_NONCE)}, 0x80010
    s_lshr_b32 {s(S_TAG+3)}, {s(S_NONCE)}, 24
    """)


def flag_store(g, soff):
    sk = g.label("nofl")
    g(f"""
    s_cmp_lg_u32 {s(S_W)}, 0
    s_cbranch_scc1 {sk}
    s_mov_b64 exec, 1
    buffer_store_dword {v(V_NONCE)}, {v(V_ZERO)}, {s(SRD_WS,4)}, {soff} offen sc1
    s_mov_b64 exec, -1
    {sk}:
    """)


def pa_eval(g):
    g(f"""
    v_and_b32 {v(V_T6)}, -8, {v(V_T7)}
    v_cmp_ne_u32 vcc, {s(S_NONCE)}, {v(V_T6)}
    s_mov_b32 {s(S_F1)}, vcc_lo
    s_mov_b32 {s(S_F2)}, vcc_hi
    v_cmp_ne_u32 vcc, {s(S_ME)}, {v(V_T7)}
    s_mov_b32 {s(S_SLOW)}, vcc_lo
    """)


def pa_wait(g, reg, name):
    lp, done = g.label(name), g.label(name + "_ok")
    g(f"""
    s_cmp_eq_u32 {s(reg)}, 0
    s_cbranch_scc1 {done}
    s_mov_b32 {s(S_SPIN)}, {SPIN_LIMIT}
    {lp}:
    buffer_load_dword {v(V_T7)}, {v(V_PA)}, {s(SRD_WS,4)}, 0 offen sc1
    s_waitcnt vmcnt(0)
    """)
    pa_eval(g)
    g(f"""
    s_cmp_eq_u32 {s(reg)}, 0
    s_cbranch_scc1 {done}
    s_sub_u32 {s(S_SPIN)}, {s(S_SPIN)}, 1
    s_cbranch_scc0 {lp}
    {done}:
    """)


def both_modes(g, emit):
    ls, le = g.label("slow"), g.label("join")
    g(f"""
    s_cmp_lg_u32 {s(S_SLOW)}, 0
    s_cbranch_scc1 {ls}
    """)
    emit("")
    g(f"s_branch {le}")
    g(f"{ls}:")
    emit(" sc1")
    g(f"{le}:")


S_WD0, S_WD1 = S_T6, S_T7
S_SPO = S_T4
S_WV, S_WVI = 0, 1
XR = V_MISC
VW = V_MISC + 8
VS = V_MISC + 12
RS = V_MISC + 16
FS = V_MISC + 20
V_XO = V_MISC + 13
S_XO = 26


def wchunk(g):
    g(f"s_mov_b32 m0, {s(S_WD1)}")
    g(f"s_add_u32 {s(S_WD1)}, {s(S_WD1)}, 16384")
    for q in range(4):
        g(f"buffer_load_dwordx4 {v(VW+q)}, {s(SRD_B,4)}, {s(S_WD0)} offen offset:{q*1024} lds")
    g(f"s_add_u32 {s(S_WD0)}, {s(S_WD0)}, {8*18432}")


def wvo_group(g, st):
    g(f"""
    s_add_u32 m0, {s(S_SIG2)}, {L_WVO + st*16384}
    s_add_u32 {s(S_T1)}, {s(S_WV)}, {st*16384}
    """)
    for q in range(4):
        g(f"buffer_load_dwordx4 {v(V_L16)}, {s(SRD_WS,4)}, {s(S_T1)} offen offset:{q*1024} sc1 lds")


S_CH, S_WSTEP, S_XSTEP, S_SIG2, S_XR = 68, 69, 70, 71, 72
S_X1O, S_FXO, S_STO = 73, 74, 75
A1 = [236, 237, 238]
C1 = [239, 240]
XA = 241


def p0_issue(g):
    S_CB = S_CS
    g(f"""
    s_mov_b32 {s(SRD_A)}, {s(S_X)}
    s_mov_b32 {s(SRD_A+1)}, {s(S_X+1)}
    s_mov_b32 {s(SRD_A+2)}, 1572864
    s_sub_u32 {s(SRD_B)}, {s(S_WQT)}, 4096
    s_subb_u32 {s(SRD_B+1)}, {s(S_WQT+1)}, 0
    s_mov_b32 {s(SRD_B+2)}, {884736+4096}
    """)
    g.stamp('x0', False)
    XF0 = g.opts.get("xfirst", 4)
    for ks in range(XF0):
        g(f"buffer_load_dwordx4 {v(V_XF+4*ks,4)}, {v(V_XO)}, {s(SRD_A,4)}, {s(S_XO)} offen offset:{ks*64}")
    wchunk(g)
    for ks in range(XF0, g.opts.get("xinit", 8)):
        g(f"buffer_load_dwordx4 {v(V_XF+4*ks,4)}, {v(V_XO)}, {s(SRD_A,4)}, {s(S_XO)} offen offset:{ks*64}")
    g.stamp('dmaiss', False)


def p0_pre(g):
    S_CB = S_CS
    g(f"""
    v_lshrrev_b32 {v(V_T1)}, 3, {v(V_L)}
    v_mul_u32_u24 {v(V_T2)}, 2304, {v(V_T1)}
    v_and_b32 {v(V_T1)}, 2, {v(V_T1)}
    v_and_b32 {v(V_T3)}, 7, {v(V_L)}
    v_xor_b32 {v(V_T3)}, {v(V_T3)}, {v(V_T1)}
    v_lshl_add_u32 {v(V_T2)}, {v(V_T3)}, 4, {v(V_T2)}
    v_add_u32 {v(VW)}, 4096, {v(V_T2)}
    v_xor_b32 {v(V_T3)}, 64, {v(V_T2)}
    v_add_u32 {v(VW+1)}, {4096+18432-1024}, {v(V_T3)}
    v_add_u32 {v(VW+2)}, {4096+768-2048}, {v(V_T2)}
    v_add_u32 {v(VW+3)}, {4096+18432+768-3072}, {v(V_T3)}
    s_mul_i32 {s(S_WD0)}, {s(S_W)}, {2*18432}
    s_lshl_b32 {s(S_T1)}, {s(S_CB)}, 7
    s_add_u32 {s(S_WD0)}, {s(S_WD0)}, {s(S_T1)}
    s_lshl_b32 {s(S_WD1)}, {s(S_W)}, 12
    v_and_b32 {v(V_T0)}, 7, {v(V_I)}
    v_mul_u32_u24 {v(V_T0)}, 196608, {v(V_T0)}
    v_lshrrev_b32 {v(V_T1)}, 3, {v(V_I)}
    v_mul_u32_u24 {v(V_T1)}, 768, {v(V_T1)}
    v_lshlrev_b32 {v(V_T2)}, 4, {v(V_G)}
    v_add3_u32 {v(V_XO)}, {v(V_T0)}, {v(V_T1)}, {v(V_T2)}
    s_lshl_b32 {s(S_T0)}, {s(S_RB)}, 2
    s_add_u32 {s(S_T0)}, {s(S_T0)}, {s(S_W)}
    s_mul_i32 {s(S_XO)}, {s(S_T0)}, 1536
    s_add_u32 {s(S_XR)}, {s(S_XO)}, {s(S_T1)}
    """)


def p0_main(g):
    ACCQ, ACCK = V_ACC, V_ACC + 16
    SX, SXX = V_ACC + 40, V_ACC + 44
    SEL, NM, DB = V_BUF, V_BUF + 8, V_BUF + 16
    S_CB = S_CS
    touches(g)
    common_consts(g)
    g(f"""
    v_lshrrev_b32 {v(V_T0)}, 1, {v(V_G)}
    v_lshlrev_b32 {v(V_T0)}, 12, {v(V_T0)}
    v_and_b32 {v(V_T1)}, 1, {v(V_G)}
    v_lshl_add_u32 {v(V_T0)}, {v(V_T1)}, 10, {v(V_T0)}
    v_lshrrev_b32 {v(V_T2)}, 2, {v(V_I)}
    v_lshl_add_u32 {v(V_T0)}, {v(V_T2)}, 7, {v(V_T0)}
    v_lshrrev_b32 {v(V_T2)}, 3, {v(V_I)}
    v_lshl_or_b32 {v(V_T2)}, {v(V_T1)}, 1, {v(V_T2)}
    v_lshl_add_u32 {v(V_T0)}, {v(V_T2)}, 5, {v(V_T0)}
    v_and_b32 {v(V_T2)}, 3, {v(V_I)}
    v_lshl_add_u32 {v(V_AD)}, {v(V_T2)}, 3, {v(V_T0)}
    v_xor_b32 {v(V_AD+1)}, 32, {v(V_AD)}
    v_xor_b32 {v(V_AD+2)}, 64, {v(V_AD)}
    v_xor_b32 {v(V_AD+3)}, 96, {v(V_AD)}
    v_cmp_eq_u32 s[4:5], 1, {v(V_T2)}
    v_cmp_eq_u32 s[6:7], 2, {v(V_T2)}
    v_cmp_eq_u32 s[8:9], 3, {v(V_T2)}
    v_and_b32 {v(V_T0)}, 7, {v(V_L)}
    v_lshl_add_u32 {v(V_T0)}, {v(V_G)}, 3, {v(V_T0)}
    v_lshlrev_b32 {v(VS)}, 4, {v(V_T0)}
    s_lshl_b32 {s(S_SPO)}, {s(S_XO)}, 1
    s_add_u32 {s(S_SPO)}, {s(S_SPO)}, {WS_SP}
    s_lshl_b32 {s(S_SIG2)}, {s(S_W)}, 12
    s_mul_i32 {s(S_WV)}, {s(S_CB)}, 49152
    s_add_u32 {s(S_WV)}, {s(S_WV)}, {s(S_SIG2)}
    s_add_u32 {s(S_WV)}, {s(S_WV)}, {WS_WVOT}
    s_lshl_b32 {s(S_T1)}, {s(S_CB)}, 9
    s_add_u32 {s(S_CH)}, {s(S_SPO)}, {s(S_T1)}
    """)
    g(f"""
    v_and_b32 {v(V_T0)}, 1, {v(V_I)}
    v_lshlrev_b32 {v(V_T0)}, 4, {v(V_T0)}
    v_mov_b32 {v(V_T1)}, 0x3f80
    v_lshlrev_b32 {v(V_T0)}, {v(V_T0)}, {v(V_T1)}
    v_cndmask_b32 {v(V_T0)}, 0, {v(V_T0)}, {s(S_DIAG,2)}
    v_and_b32 {v(V_T1)}, 2, {v(V_I)}
    v_cmp_eq_u32 vcc, 0, {v(V_T1)}
    v_mov_b32 {v(SEL+2)}, 0
    v_mov_b32 {v(SEL+3)}, 0
    v_cndmask_b32 {v(SEL)}, 0, {v(V_T0)}, vcc
    v_cndmask_b32 {v(SEL+1)}, {v(V_T0)}, 0, vcc
    v_mov_b32 {v(SEL+4)}, 0
    v_mov_b32 {v(SEL+5)}, 0
    v_mov_b32 {v(SEL+6)}, {v(SEL)}
    v_mov_b32 {v(SEL+7)}, {v(SEL+1)}
    """)
    XF0, XI = g.opts.get("xfirst", 4), g.opts.get("xinit", 8)
    for ks in range(XI, 12):
        g(f"buffer_load_dwordx4 {v(V_XF+4*ks,4)}, {v(V_XO)}, {s(SRD_A,4)}, {s(S_XO)} offen offset:{ks*64}")
    p1_setup(g)
    nonce_and_publish(g)
    order = ([f"x{k}" for k in range(XF0)] + ["A0"] * 4 + [f"x{k}" for k in range(XF0, XI)] + ["t"] * 2 +
             [f"x{k}" for k in range(XI, 12)] + ["t"])
    pend = []
    ptag = []

    def queue(fn, tag, n):
        pend.extend(capture(g, fn))
        ptag.extend([tag] * n)

    def pop_vm():
        out = []
        while pend:
            x = pend.pop(0)
            out.append(x)
            if x.startswith("buffer") or x.startswith("global"):
                order.append(ptag.pop(0))
                if any(y.startswith("buffer") or y.startswith("global") for y in pend):
                    break
        return out

    def need(tag):
        last = len(order) - 1 - order[::-1].index(tag)
        return f"s_waitcnt vmcnt({len(order) - 1 - last})"
    for j in range(1, 4):
        queue(lambda: wchunk(g), f"A{j}", 4)
    for ks in range(12):
        xf = v(V_XF + 4 * ks, 4)
        if ks % 2 == 0:
            g(need(f"x{ks+1}"))
            if ks == 0:
                g.stamp('xarr0', False)
        mfma32(g, v(SXX, 4), xf, xf, "0" if ks == 0 else None)
        mfma32(g, v(SX, 4), v(V_ONES, 4), xf, "0" if ks == 0 else None)
        if ks % 3 == 2:
            for x in pop_vm():
                g(x)
    g.stamp('xarr', False)
    g.nop(7)
    g(f"""
    v_mul_f32 {v(NM)}, {f2u(-1/384.):#x}, {v(SX)}
    v_mul_f32 {v(NM+1)}, {f2u(-1/384.):#x}, {v(SX)}
    v_mul_f32 {v(NM+2)}, {f2u(-1/384.):#x}, {v(SX)}
    v_mul_f32 {v(NM+3)}, {f2u(-1/384.):#x}, {v(SX)}
    v_cndmask_b32 {v(SXX)}, {v(SXX)}, {v(SXX+1)}, s[4:5]
    v_cndmask_b32 {v(SXX)}, {v(SXX)}, {v(SXX+2)}, s[6:7]
    """)
    fin = capture(g, lambda: (g(f"v_cndmask_b32 {v(SXX)}, {v(SXX)}, {v(SXX+3)}, s[8:9]"),
                              g(f"v_cndmask_b32 {v(SXX)}, 0, {v(SXX)}, {s(S_DIAG,2)}"),
                              xlane_sum(g, SXX, V_T0), mean_rstd(g, SX, SXX, V_MEAN, V_R)))
    LAG = 2
    for ks in range(12 + LAG):
        if ks < 12:
            d = DB + (ks % 4) * 8
            mfma32(g, v(d, 4), v(SEL, 4), v(V_XF + 4 * ks, 4), v(NM, 4))
            mfma32(g, v(d + 4, 4), v(SEL + 4, 4), v(V_XF + 4 * ks, 4), v(NM, 4))
        if ks < LAG or ks >= 12:
            for x in fin[:9]:
                g(x)
            if ks >= 12 and not fin:
                g.nop(2)
            fin = fin[9:]
        if ks >= LAG:
            d = DB + ((ks - LAG) % 4) * 8
            for q in range(4):
                g(f"v_cvt_pk_bf16_f32 {v(V_XF+4*(ks-LAG)+q)}, {v(d+2*q)}, {v(d+2*q+1)}")
        if ks % 2 == 1:
            for x in pop_vm():
                g(x)
    assert not fin
    g.stamp('cent', False)

    def resloads():
        for m in range(2):
            g(f"buffer_load_dwordx4 {v(XR+4*m,4)}, {v(V_XO)}, {s(SRD_A,4)}, {s(S_XR)} offen offset:{m*64}")
    queue(lambda: wchunk(g), "A4", 4)
    queue(lambda: wchunk(g), "A5", 4)
    queue(resloads, "r", 2)
    if g.opts.get("mt", 1):
        queue(lambda: g(f"""
        s_mov_b64 exec, 63
        global_load_dword {v(V_MISC+62)}, {v(V_MT)}, {s(S_M,2)}
        s_mov_b64 exec, -1
        """), "m", 1)
    items = []
    nb = 0
    for j in range(6):
        for n, (kk, mat, sl) in enumerate([(kk, mat, sl) for kk in range(2) for mat in range(2) for sl in range(4)]):
            ks = 2 * j + kk
            b = V_BUF + (nb % 16) * 4
            nb += 1
            off = (ks % 6) * 8192 + mat * 2048
            rd = [f"ds_read_b64_tr_b16 {v(b,2)}, {v(V_AD+sl)} offset:{off}",
                  f"ds_read_b64_tr_b16 {v(b+2,2)}, {v(V_AD+sl)} offset:{off+512}"]
            acc = (ACCQ if mat == 0 else ACCK) + 4 * sl
            cm = [f"v_mfma_f32_16x16x32_bf16 {v(acc,4)}, {v(b,4)}, {v(V_XF+4*ks,4)}, {'0' if ks == 0 else v(acc,4)}"]
            pre = []
            if n == 0:
                pre += [need(f"A{j}"), "s_barrier"]
                pre += capture(g, lambda: g.stamp(f'chunk{j}', False))
                if j == 3:
                    pre += [f"v_add_u32 {v(V_AD+q)}, 49152, {v(V_AD+q)}" for q in range(4)]
                if j == g.opts.get("pj", 4):
                    pre += [f"buffer_load_dword {v(V_T7)}, {v(V_PA)}, {s(SRD_WS,4)}, 0 offen sc1"]
                    order.append("p")
            if n % 3 == 1:
                x = pop_vm()
                pre += x
            items.append([rd, cm, pre])
    assert not pend
    QF, KF = V_ACC + 32, V_ACC + 40
    ev = ["s_waitcnt vmcnt(0)"] + capture(g, lambda: pa_eval(g))
    for n in range(4):
        items[84 + n][1] += ev[2 * n:2 * n + 2]
    for n in range(4):
        pass
    pipelined(g, items, 14, group=1)
    for i in range(8):
        g(f"v_cvt_pk_bf16_f32 {v(QF+i)}, {v(ACCQ+2*i)}, {v(ACCQ+2*i+1)}")
    for i in range(8):
        g(f"v_cvt_pk_bf16_f32 {v(KF+i)}, {v(ACCK+2*i)}, {v(ACCK+2*i+1)}")
    SS = V_BUF + 32
    g.nop(1)
    mfma32(g, v(SS, 4), v(KF, 4), v(QF, 4), "0")
    mfma32(g, v(SS, 4), v(KF + 4, 4), v(QF + 4, 4))
    pa_wait(g, S_F1, "xcc")
    g.nop(6)
    for r in range(4):
        g(f"v_bfi_b32 {v(SS+r)}, {v(V_MASK)}, {v(SS+r)}, {s(S_TAG+r)}")
    g(f"s_mov_b64 exec, {s(S_VALID,2)}")
    both_modes(g, lambda sc: g(f"buffer_store_dwordx4 {v(SS,4)}, {v(VS)}, {s(SRD_WS,4)}, {s(S_CH)} offen{sc}"))
    g("s_mov_b64 exec, -1")
    g.stamp('sstored')


def ws2_dma(g, lo=0, hi=18):
    assert lo in (0, 9) and hi in (9, 18)
    if lo == 0:
        g(f"""
        s_mul_i32 {s(S_T2)}, {s(S_CS)}, 73728
        s_add_u32 {s(S_T2)}, {s(S_T2)}, {WS_WS2}
        s_mul_i32 {s(S_T1)}, {s(S_W)}, 18432
        s_bitcmp1_b32 {s(S_RQ)}, 0
        s_cselect_b32 {s(S_T0)}, 9216, 0
        """)
    for half in range(lo // 9, hi // 9):
        if half:
            g(f"s_xor_b32 {s(S_T0)}, {s(S_T0)}, 9216")
        g(f"s_add_u32 m0, {s(S_T1)}, {s(S_T0)}")
        g(f"s_add_u32 {s(S_T3)}, {s(S_T2)}, m0")
        for blk in range(9):
            g(f"buffer_load_dwordx4 {v(V_L16)}, {s(SRD_WS,4)}, {s(S_T3)} offen offset:{(blk%4)*1024} sc1 lds")
            if blk % 4 == 3:
                g(f"s_add_u32 m0, m0, 4096")
                g(f"s_add_u32 {s(S_T3)}, {s(S_T3)}, 4096")


def p1_setup(g):
    S_CB = S_CS
    g(f"""
    v_add_u32 {v(A1[0])}, {L_WVO}, {v(V_L16)}
    s_lshl_b32 {s(S_T1)}, {s(S_W)}, 10
    v_add_u32 {v(A1[1])}, {s(S_T1)}, {v(A1[0])}
    v_lshlrev_b32 {v(V_T0)}, 3, {v(V_I)}
    v_add_u32 {v(C1[0])}, {L_CT1}, {v(V_T0)}
    s_lshl_b32 {s(S_T0)}, {s(S_W)}, 7
    v_add_u32 {v(C1[1])}, {s(S_T0)}, {v(C1[0])}
    v_add_u32 {v(A1[2])}, {L_SG-L_CT1}, {v(C1[1])}
    v_and_b32 {v(V_T0)}, 7, {v(V_I)}
    v_mul_u32_u24 {v(V_T0)}, 196608, {v(V_T0)}
    v_lshrrev_b32 {v(V_T1)}, 3, {v(V_I)}
    v_lshlrev_b32 {v(V_T1)}, 6, {v(V_T1)}
    v_lshlrev_b32 {v(V_T6)}, 4, {v(V_G)}
    v_add3_u32 {v(XA)}, {v(V_T0)}, {v(V_T1)}, {v(V_T6)}
    s_lshl_b32 {s(S_X1O)}, {s(S_RB)}, 2
    s_add_u32 {s(S_X1O)}, {s(S_X1O)}, {s(S_W)}
    s_mul_i32 {s(S_X1O)}, {s(S_X1O)}, 1536
    s_lshl_b32 {s(S_T1)}, {s(S_CB)}, 8
    s_add_u32 {s(S_X1O)}, {s(S_X1O)}, {s(S_T1)}
    s_add_u32 {s(S_X1O)}, {s(S_X1O)}, {WS_X1}
    s_mul_i32 {s(S_FXO)}, {s(S_RB)}, 6
    s_add_u32 {s(S_FXO)}, {s(S_FXO)}, {s(S_CB)}
    s_lshl_b32 {s(S_T1)}, {s(S_FXO)}, 2
    s_lshl_b32 {s(S_FXO)}, {s(S_FXO)}, 7
    s_add_u32 {s(S_FXO)}, {s(S_FXO)}, {WS_FX}
    s_add_u32 {s(S_STO)}, {s(S_FXO)}, {WS_STX-WS_FX}
    v_and_b32 {v(V_T0)}, 7, {v(V_L)}
    v_mul_u32_u24 {v(V_T0)}, {6*32*128}, {v(V_T0)}
    v_and_b32 {v(V_T1)}, -8, {v(V_L)}
    v_add_u32 {v(XA+1)}, {v(V_T0)}, {v(V_T1)}
    v_lshlrev_b32 {v(XA+2)}, 3, {v(V_L)}
    v_add_u32 {v(XA+2)}, {L_SG}, {v(XA+2)}
    s_add_u32 {s(S_T1)}, {s(S_T1)}, {s(S_W)}
    s_mul_i32 {s(S_T2)}, {s(S_T1)}, 2304
    s_add_u32 {s(S_T2)}, {s(S_T2)}, 1536
    s_mul_i32 {s(S_T3)}, {s(S_T1)}, 768
    s_sub_u32 {s(S_T3)}, {s(S_T3)}, {384*768}
    s_cmp_lt_u32 {s(S_T1)}, 384
    s_cselect_b32 {s(S_T2)}, {s(S_T2)}, {s(S_T3)}
    s_cselect_b32 {s(S_M)}, {s(S_WQS)}, {s(S_WOS)}
    s_cselect_b32 {s(S_M+1)}, {s(S_WQS+1)}, {s(S_WOS+1)}
    v_lshlrev_b32 {v(V_MT)}, 7, {v(V_L)}
    v_add_u32 {v(V_MT)}, {s(S_T2)}, {v(V_MT)}
    """)


V_MT = 245


def p1(g):
    Z = V_ACC
    CS = V_ACC + 16
    XC = V_ACC + 20

    def shadow():
        g(f"v_lshlrev_b32 {v(V_T0)}, 4, {v(V_G)}")
        for e in range(4):
            g(f"ds_bpermute_b32 {v(RS+e)}, {v(V_T0)}, {v(V_R)} offset:{4*e}")
        for m in range(2):
            for par in range(2):
                for r in range(4):
                    src = XR + 4 * m + 2 * par + (r >> 1)
                    d = XC + (2 * m + par) * 4 + r
                    if r & 1:
                        g(f"v_and_b32 {v(d)}, 0xffff0000, {v(src)}")
                    else:
                        g(f"v_lshlrev_b32 {v(d)}, 16, {v(src)}")
        g(f"v_mul_f32 {v(V_T1)}, {f2u(SCALE_LOG2E):#x}, {v(V_R)}")
        g("s_waitcnt lgkmcnt(0)")
        for e in range(4):
            g(f"v_mul_f32 {v(FS+e)}, {v(V_T1)}, {v(RS+e)}")
        p2_setup(g)
    AOP = VW
    SPR = [V_ACC + 36, V_ACC + 40, V_ACC + 44, 220, 224, 248]

    def sloads():
        for c in range(6):
            g(f"buffer_load_dwordx4 {v(SPR[c],4)}, {v(VS)}, {s(SRD_WS,4)}, {s(S_SPO)} offen offset:{c*512} sc1")

    def scheck():
        for c in range(6):
            for r in range(4):
                g(f"v_xor_b32 {v(SPR[c]+r)}, {s(S_TAG+r)}, {v(SPR[c]+r)}")
            if c == 0:
                g(f"v_or_b32 {v(V_T2)}, {v(SPR[0])}, {v(SPR[0]+1)}")
            else:
                g(f"v_or3_b32 {v(V_T2)}, {v(V_T2)}, {v(SPR[c])}, {v(SPR[c]+1)}")
            g(f"v_or3_b32 {v(V_T2)}, {v(V_T2)}, {v(SPR[c]+2)}, {v(SPR[c]+3)}")
        g(f"v_and_b32 {v(V_T2)}, 0xff, {v(V_T2)}")

    def softmax(pk):
        T = SPR[5]
        if pk:
            for c in (1, 3, 5):
                for h in range(2):
                    g(f"v_pk_add_f32 {v(SPR[c]+2*h,2)}, {v(SPR[c]+2*h,2)}, {v(SPR[c-1]+2*h,2)}")
            for c in (3, 5):
                for h in range(2):
                    g(f"v_pk_add_f32 {v(SPR[c]+2*h,2)}, {v(SPR[c]+2*h,2)}, {v(SPR[c-2]+2*h,2)}")
        else:
            for c in (1, 3, 5):
                for r in range(4):
                    g(f"v_add_f32 {v(SPR[c]+r)}, {v(SPR[c]+r)}, {v(SPR[c-1]+r)}")
            for c in (3, 5):
                for r in range(4):
                    g(f"v_add_f32 {v(SPR[c]+r)}, {v(SPR[c]+r)}, {v(SPR[c-2]+r)}")
        for r in range(4):
            g(f"v_mul_f32 {v(T+r)}, {v(T+r)}, {v(FS+r)}")
        g(f"""
        v_max3_f32 {v(V_T0)}, {v(T)}, {v(T+1)}, {v(T+2)}
        v_max_f32 {v(V_T0)}, {v(V_T0)}, {v(T+3)}
        v_mov_b32 {v(V_T1)}, {v(V_T0)}
        s_nop 1
        v_permlane16_swap_b32 {v(V_T0)}, {v(V_T1)}
        s_nop 0
        v_max_f32 {v(V_T0)}, {v(V_T0)}, {v(V_T1)}
        """)
        for r in range(4):
            g(f"v_sub_f32 {v(T+r)}, {v(T+r)}, {v(V_T0)}")
        for r in range(4):
            g(f"v_exp_f32 {v(T+r)}, {v(T+r)}")
        g(f"""
        s_nop 0
        v_add_f32 {v(V_T0)}, {v(T)}, {v(T+1)}
        v_add_f32 {v(V_T1)}, {v(T+2)}, {v(T+3)}
        v_add_f32 {v(V_T0)}, {v(V_T0)}, {v(V_T1)}
        v_mov_b32 {v(V_T1)}, {v(V_T0)}
        v_mul_f32 {v(T)}, {v(T)}, {v(RS)}
        v_mul_f32 {v(T+1)}, {v(T+1)}, {v(RS+1)}
        v_permlane16_swap_b32 {v(V_T0)}, {v(V_T1)}
        v_mul_f32 {v(T+2)}, {v(T+2)}, {v(RS+2)}
        v_add_f32 {v(V_T0)}, {v(V_T0)}, {v(V_T1)}
        v_rcp_f32 {v(V_T0)}, {v(V_T0)}
        v_mul_f32 {v(T+3)}, {v(T+3)}, {v(RS+3)}
        v_cndmask_b32 {v(V_T0)}, 0, {v(V_T0)}, {s(S_VALID,2)}
        """)
        for r in range(4):
            g(f"v_mul_f32 {v(T+r)}, {v(T+r)}, {v(V_T0)}")
        g(f"""
        v_cvt_pk_bf16_f32 {v(AOP)}, {v(T)}, {v(T+1)}
        v_cvt_pk_bf16_f32 {v(AOP+1)}, {v(T+2)}, {v(T+3)}
        """)
    g(f"""
    s_cmp_eq_u32 {s(S_F2)}, 0
    s_cbranch_scc1 L_wvo_go
    """)
    g(f"buffer_load_dword {v(V_T7)}, {v(V_PA)}, {s(SRD_WS,4)}, 0 offen sc1")
    shadow()
    g("s_waitcnt vmcnt(0)")
    pa_eval(g)
    pa_wait(g, S_F2, "wvo")
    for st in range(3):
        wvo_group(g, st)
    g("s_branch L_wvo_on")
    g("L_wvo_go:")
    for st in range(3):
        wvo_group(g, st)
    shadow()
    g("L_wvo_on:")
    sloads()
    g(f"buffer_load_dword {v(V_T7)}, {v(V_PB)}, {s(SRD_WS,4)}, 0 offen sc1")
    g.stamp('wvoflag')
    fill = ["s_waitcnt vmcnt(0)"] + capture(g, lambda: (scheck(), softmax(False)))
    items = []
    for ks in range(12):
        for c in range(4):
            n = ks * 4 + c
            b = V_BUF + (n % 16) * 4
            rd = [f"ds_read_b128 {v(b,4)}, {v(A1[0])} offset:{ks*4096+c*1024}"]
            cc = "0" if ks == 0 else v(Z + 4 * c, 4)
            cm = [f"v_mfma_f32_16x16x32_bf16 {v(Z+4*c,4)}, {v(V_XF+4*ks,4)}, {v(b,4)}, {cc}"]
            pre = []
            if ks % 4 == 0 and c == 0:
                pre = [f"s_waitcnt vmcnt({15-ks})", "s_barrier"] + capture(g, lambda: g.stamp(f'wvo{ks//4}', False))
            if n >= g.opts.get("sfill", 26):
                cm += fill[:2]
                fill = fill[2:]
            items.append((rd, cm, pre))
    pipelined(g, items, 10, group=1)
    ZB = V_BUF + 8
    for x in fill:
        g(x)
    g(f"""
    v_cmp_ne_u32 vcc, {s(S_NONCE)}, {v(V_T7)}
    s_or_b32 {s(S_F2)}, vcc_lo, vcc_hi
    v_cmp_ne_u32 vcc, 0, {v(V_T2)}
    """)
    for c in range(4):
        g(f"v_cvt_pk_bf16_f32 {v(ZB+2*c)}, {v(Z+4*c)}, {v(Z+4*c+1)}")
        g(f"v_cvt_pk_bf16_f32 {v(ZB+2*c+1)}, {v(Z+4*c+2)}, {v(Z+4*c+3)}")
    g.stamp('zdone')
    g(f"""
    s_cbranch_vccz L_sok
    s_mov_b32 {s(S_SPIN)}, {SPIN_LIMIT}
    L_spoll:
    """)
    sloads()
    g("s_waitcnt vmcnt(0)")
    scheck()
    g(f"""
    v_cmp_ne_u32 vcc, 0, {v(V_T2)}
    s_cbranch_vccz L_sre
    s_sub_u32 {s(S_SPIN)}, {s(S_SPIN)}, 1
    s_cbranch_scc0 L_spoll
    L_sre:
    """)
    softmax(True)
    g.nop(2)
    g("L_sok:")
    g.stamp('sok')
    for c in range(4):
        mfma16(g, v(XC + 4 * c, 4), v(ZB + 2 * c, 2), v(AOP, 2))
    g.nop(5)
    OB = V_BUF + 48
    for m in range(2):
        for i in range(4):
            g(f"v_cvt_pk_bf16_f32 {v(OB+4*m+i)}, {v(XC+8*m+2*i)}, {v(XC+8*m+2*i+1)}")
        g(f"buffer_store_dwordx4 {v(OB+4*m,4)}, {v(XA)}, {s(SRD_WS,4)}, {s(S_X1O)} offen offset:{m*128} sc1")
    g.stamp('x1st')
    S1, S2 = Z, Z + 4
    mfma32(g, v(S2, 4), v(OB, 4), v(OB, 4), "0")
    mfma32(g, v(S1, 4), v(V_ONES, 4), v(OB, 4), "0")
    mfma32(g, v(S2, 4), v(OB + 4, 4), v(OB + 4, 4))
    mfma32(g, v(S1, 4), v(V_ONES, 4), v(OB + 4, 4))
    g.nop(7)
    g(f"""
    v_cndmask_b32 {v(S2)}, {v(S2)}, {v(S2+1)}, s[4:5]
    v_cndmask_b32 {v(S2)}, {v(S2)}, {v(S2+2)}, s[6:7]
    v_cndmask_b32 {v(S1+1)}, {v(S2)}, {v(S2+3)}, s[8:9]
    s_mov_b64 exec, {s(S_DIAG,2)}
    ds_write_b64 {v(A1[2])}, {v(S1,2)}
    s_mov_b64 exec, -1
    s_waitcnt lgkmcnt(0)
    s_barrier
    s_cmp_lg_u32 {s(S_W)}, 0
    s_cbranch_scc1 L_nostx
    ds_read_b64 {v(V_T0,2)}, {v(XA+2)}
    s_waitcnt lgkmcnt(0)
    buffer_store_dwordx2 {v(V_T0,2)}, {v(XA+1)}, {s(SRD_WS,4)}, {s(S_STO)} offen sc1
    L_nostx:
    s_cmp_lg_u32 {s(S_F2)}, 0
    s_cbranch_scc1 L_x1_late
    """)
    ws2_dma(g, 0, 9)
    g(f"""
    s_waitcnt vmcnt(9)
    s_barrier
    """)
    flag_store(g, s(S_FXO))
    g.stamp('x1flag')
    ws2_dma(g, 9, 18)
    g(f"""
    s_branch L_p2
    L_x1_late:
    s_waitcnt vmcnt(0)
    s_barrier
    """)
    flag_store(g, s(S_FXO))
    g.stamp('x1flag')
    g("L_ws_late:")
    poll(g, V_PB, "0", s(S_NONCE), "pws")
    ws2_dma(g)


S_TILE, S_PROD, S_KB, S_NB = S_T4, S_T5, S_T6, S_T7
S_PA, S_PB, S_PU, S_PS = S_F2, S_SLOW, S_SPIN, 26
S_PW, S_PO0, S_PO1, S_PF = 68, 16, 17, 25
V_PAO = V_MISC + 14


def pstamp(g, name):
    if g.stamps and name in g.stamps:
        sk = g.label("ps")
        g(f"s_cmp_ge_u32 {s(S_TILE)}, 64")
        g(f"s_cbranch_scc1 {sk}")
        g.stamp(name, False)
        g(f"{sk}:")


def prod_issue(g, n0):
    g(f"""
    s_mul_hi_u32 {s(S_PROD)}, {s(S_TILE)}, {(2**32 + 35)//36}
    s_mul_i32 {s(S_T0)}, {s(S_PROD)}, 36
    s_sub_u32 {s(S_NB)}, {s(S_TILE)}, {s(S_T0)}
    s_mul_hi_u32 {s(S_KB)}, {s(S_NB)}, {(2**32 + 5)//6}
    s_mul_i32 {s(S_T0)}, {s(S_KB)}, 6
    s_sub_u32 {s(S_NB)}, {s(S_NB)}, {s(S_T0)}
    s_add_u32 {s(S_PU)}, {s(S_KB)}, {s(S_NB)}
    s_cmp_ge_u32 {s(S_PU)}, 6
    s_cselect_b32 {s(S_T0)}, 6, 0
    s_sub_u32 {s(S_PU)}, {s(S_PU)}, {s(S_T0)}
    """)
    if not g.opts.get("rot", 0):
        g(f"s_mov_b32 {s(S_PU)}, 0")
    g(f"""
    s_cmp_eq_u32 {s(S_PROD)}, 0
    s_cselect_b32 {s(SRD_A)}, {s(S_WQT)}, {s(S_WQS)}
    s_cselect_b32 {s(SRD_A+1)}, {s(S_WQT+1)}, {s(S_WQS+1)}
    s_cselect_b32 {s(SRD_B)}, {s(S_WOT)}, {s(S_WOS)}
    s_cselect_b32 {s(SRD_B+1)}, {s(S_WOT+1)}, {s(S_WOS+1)}
    s_mov_b32 {s(SRD_A+2)}, 884736
    v_mul_u32_u24 {v(V_T0)}, 2304, {v(V_I)}
    v_lshl_add_u32 {v(V_PAO)}, {v(V_G)}, 4, {v(V_T0)}
    s_lshl_b32 {s(S_PA)}, {s(S_KB)}, 2
    s_add_u32 {s(S_PA)}, {s(S_PA)}, {s(S_W)}
    s_mul_i32 {s(S_PA)}, {s(S_PA)}, {16*2304}
    s_lshl_b32 {s(S_T0)}, {s(S_PU)}, 7
    s_add_u32 {s(S_PA)}, {s(S_PA)}, {s(S_T0)}
    s_lshl_b32 {s(S_T1)}, {s(S_NB)}, 2
    s_add_u32 {s(S_T1)}, {s(S_T1)}, {s(S_W)}
    s_mul_i32 {s(S_T1)}, {s(S_T1)}, {16*2304}
    s_add_u32 {s(S_T1)}, {s(S_T1)}, 768
    s_mul_i32 {s(S_T2)}, {s(S_W)}, {2*6144}
    s_lshl_b32 {s(S_T3)}, {s(S_NB)}, 7
    s_add_u32 {s(S_T2)}, {s(S_T2)}, {s(S_T3)}
    s_mov_b32 {s(S_T3)}, {8*6144}
    s_cmp_eq_u32 {s(S_PROD)}, 1
    s_cselect_b32 {s(SRD_B)}, {s(S_WQS)}, {s(SRD_B)}
    s_cselect_b32 {s(SRD_B+1)}, {s(S_WQS+1)}, {s(SRD_B+1)}
    s_cselect_b32 {s(SRD_B+2)}, {s(SRD_A+2)}, 294912
    s_cselect_b32 {s(S_PB)}, {s(S_T1)}, {s(S_T2)}
    s_cselect_b32 {s(S_PS)}, 128, {s(S_T3)}
    s_cselect_b32 {s(S_T0)}, 0, 1536
    s_cselect_b32 {s(S_T1)}, 1, 0
    s_cselect_b32 {s(S_T2)}, 7, 2
    s_movk_i32 {s(S_T3)}, 768
    s_cselect_b32 {s(S_T3)}, 2304, {s(S_T3)}
    s_add_u32 {s(S_PA)}, {s(S_PA)}, {s(S_T0)}
    s_mul_i32 {s(S_T0)}, {s(S_PU)}, {s(S_PS)}
    s_add_u32 {s(S_PB)}, {s(S_PB)}, {s(S_T0)}
    v_lshrrev_b32 {v(V_T1)}, 3, {v(V_L)}
    v_mul_u32_u24 {v(V_T2)}, {s(S_T3)}, {v(V_T1)}
    v_lshrrev_b32 {v(V_T1)}, {s(S_T1)}, {v(V_T1)}
    v_and_b32 {v(V_T1)}, {s(S_T2)}, {v(V_T1)}
    v_and_b32 {v(V_T3)}, 7, {v(V_L)}
    v_xor_b32 {v(V_T3)}, {v(V_T3)}, {v(V_T1)}
    v_lshl_add_u32 {v(VW)}, {v(V_T3)}, 4, {v(V_T2)}
    v_xor_b32 {v(V_T3)}, 64, {v(VW)}
    s_lshl_b32 {s(S_T3)}, {s(S_T3)}, 3
    s_sub_u32 {s(S_T3)}, {s(S_T3)}, 1024
    v_add_u32 {v(VW+1)}, {s(S_T3)}, {v(V_T3)}
    s_mul_i32 {s(S_PW)}, {s(S_PS)}, -5
    s_lshl_b32 {s(S_T1)}, {s(S_W)}, 11
    s_mov_b32 m0, {s(S_T1)}
    """)
    pstamp(g, 'x0')
    prod_units(g, 0, n0)
    pstamp(g, 'dmaiss')


def prod_units(g, lo, hi):
    for j in range(lo, hi):
        g(f"buffer_load_dwordx4 {v(VW)}, {s(SRD_B,4)}, {s(S_PB)} offen lds")
        g(f"buffer_load_dwordx4 {v(VW+1)}, {s(SRD_B,4)}, {s(S_PB)} offen offset:1024 lds")
        for q in range(2):
            g(f"buffer_load_dwordx4 {v(V_XF+8*j+4*q,4)}, {v(V_PAO)}, {s(SRD_A,4)}, {s(S_PA)} offen offset:{q*64}")
        if j < 5:
            g(f"""
            s_add_u32 {s(S_PU)}, {s(S_PU)}, 1
            s_cmp_eq_u32 {s(S_PU)}, 6
            s_cselect_b32 {s(S_T0)}, {s(S_PW)}, {s(S_PS)}
            s_cselect_b32 {s(S_T1)}, -5, 1
            s_add_u32 {s(S_PB)}, {s(S_PB)}, {s(S_T0)}
            s_lshl_b32 {s(S_T1)}, {s(S_T1)}, 7
            s_add_u32 {s(S_PA)}, {s(S_PA)}, {s(S_T1)}
            s_add_u32 m0, m0, 8192
            s_nop 0
            """)


def products(g):
    ACC = V_ACC
    g(f"""
    L_products:
    s_lshl_b32 {s(S_TILE)}, {s(S_G8)}, 3
    s_lshl_b32 {s(S_T0)}, {s(S_RQ)}, 1
    s_add_u32 {s(S_TILE)}, {s(S_TILE)}, {s(S_T0)}
    s_add_u32 {s(S_TILE)}, {s(S_TILE)}, {s(S_CS)}
    s_sub_u32 {s(S_TILE)}, {s(S_TILE)}, 6
    """)
    prod_issue(g, g.opts.get("pah", 3))
    g("s_branch L_prod_first")


def products_body(g):
    ACC = V_ACC
    g("L_prod_first:")
    touches(g)
    common_consts(g)
    nonce_and_publish(g)
    g(f"""
    L_prod_body:
    v_lshrrev_b32 {v(V_T0)}, 2, {v(V_I)}
    v_and_b32 {v(V_T0)}, 1, {v(V_T0)}
    v_lshlrev_b32 {v(V_T0)}, 10, {v(V_T0)}
    v_lshrrev_b32 {v(V_T1)}, 1, {v(V_G)}
    v_lshl_add_u32 {v(V_T0)}, {v(V_T1)}, 8, {v(V_T0)}
    v_and_b32 {v(V_T1)}, 1, {v(V_G)}
    v_lshl_add_u32 {v(V_T0)}, {v(V_T1)}, 7, {v(V_T0)}
    v_lshrrev_b32 {v(V_T1)}, 3, {v(V_I)}
    v_lshl_add_u32 {v(V_T0)}, {v(V_T1)}, 6, {v(V_T0)}
    v_and_b32 {v(V_T1)}, 3, {v(V_I)}
    v_lshl_add_u32 {v(V_T5)}, {v(V_T1)}, 4, {v(V_T0)}
    s_lshr_b32 {s(S_T0)}, {s(S_W)}, 1
    s_lshl_b32 {s(S_T1)}, {s(S_KB)}, 1
    s_add_u32 {s(S_T0)}, {s(S_T0)}, {s(S_T1)}
    s_and_b32 {s(S_T1)}, {s(S_W)}, 1
    s_lshl_b32 {s(S_T1)}, {s(S_T1)}, 9
    v_add_u32 {v(V_T5)}, {s(S_T1)}, {v(V_T5)}
    s_cmp_eq_u32 {s(S_PROD)}, 0
    s_cbranch_scc0 L_prod_ws2
    s_mul_i32 {s(S_T1)}, {s(S_NB)}, 49152
    s_lshl_b32 {s(S_T0)}, {s(S_T0)}, 12
    s_add_u32 {s(S_T0)}, {s(S_T0)}, {s(S_T1)}
    s_add_u32 {s(S_PO0)}, {s(S_T0)}, {WS_WVOT}
    s_add_u32 {s(S_PO1)}, {s(S_PO0)}, 2048
    s_branch L_prod_ad
    L_prod_ws2:
    s_mul_i32 {s(S_T0)}, {s(S_T0)}, 6144
    s_sub_u32 {s(S_T1)}, {s(S_PROD)}, 1
    s_mul_i32 {s(S_T1)}, {s(S_T1)}, {4*73728}
    s_add_u32 {s(S_T0)}, {s(S_T0)}, {s(S_T1)}
    s_add_u32 {s(S_T0)}, {s(S_T0)}, {WS_WS2}
    """)
    for aa, dst in ((0, S_PO0), (1, S_PO1)):
        g(f"""
        s_lshl_b32 {s(S_T3)}, {s(S_NB)}, 1
        s_add_u32 {s(S_T3)}, {s(S_T3)}, {aa}
        s_mul_hi_u32 {s(dst)}, {s(S_T3)}, {(2**32+2)//3}
        s_mul_i32 {s(S_T1)}, {s(dst)}, 3
        s_sub_u32 {s(S_T3)}, {s(S_T3)}, {s(S_T1)}
        s_mul_i32 {s(dst)}, {s(dst)}, 73728
        s_lshl_b32 {s(S_T3)}, {s(S_T3)}, 11
        s_add_u32 {s(dst)}, {s(dst)}, {s(S_T3)}
        s_add_u32 {s(dst)}, {s(dst)}, {s(S_T0)}
        """)
    g(f"""
    L_prod_ad:
    s_lshl_b32 {s(S_PF)}, {s(S_TILE)}, 7
    s_add_u32 {s(S_PF)}, {s(S_PF)}, {WS_FP}
    s_cmp_eq_u32 {s(S_PROD)}, 1
    s_cbranch_scc1 L_prod_rows
    v_lshlrev_b32 {v(V_T0)}, 10, {v(V_G)}
    v_lshrrev_b32 {v(V_T2)}, 2, {v(V_I)}
    v_lshl_add_u32 {v(V_T0)}, {v(V_T2)}, 7, {v(V_T0)}
    v_and_b32 {v(V_T1)}, 1, {v(V_G)}
    v_lshrrev_b32 {v(V_T2)}, 3, {v(V_I)}
    v_lshl_or_b32 {v(V_T2)}, {v(V_T1)}, 1, {v(V_T2)}
    v_lshl_add_u32 {v(V_T0)}, {v(V_T2)}, 5, {v(V_T0)}
    v_and_b32 {v(V_T2)}, 3, {v(V_I)}
    v_lshl_add_u32 {v(V_AD)}, {v(V_T2)}, 3, {v(V_T0)}
    v_xor_b32 {v(V_AD+1)}, 32, {v(V_AD)}
    v_xor_b32 {v(V_AD+2)}, 64, {v(V_AD)}
    v_xor_b32 {v(V_AD+3)}, 96, {v(V_AD)}
    """)

    def gemm(tr):
        PAH = g.opts.get("pah", 3)
        order = [f"U{j}" for j in range(PAH) for _ in range(4)]
        spread = capture(g, lambda: prod_units(g, PAH, 6))
        nu = 4 * PAH
        if g.opts.get("pburst", 1):
            for x in spread:
                g(x)
            order = [f"U{j}" for j in range(6) for _ in range(4)]
            spread = []
        items = []
        for ks in range(12):
            for c in range(4):
                b = V_BUF + ((ks * 4 + c) % 16) * 4
                if tr:
                    rd = [f"ds_read_b64_tr_b16 {v(b,2)}, {v(V_AD+c)} offset:{ks*4096}",
                          f"ds_read_b64_tr_b16 {v(b+2,2)}, {v(V_AD+c)} offset:{ks*4096+512}"]
                else:
                    rd = [f"ds_read_b128 {v(b,4)}, {v(V_AD+(ks&1))} offset:{(ks>>1)*8192+c*2048}"]
                cc = "0" if ks == 0 else v(ACC + 4 * c, 4)
                pre = []
                if ks % 2 == 0 and c == 0:
                    last = len(order) - 1 - order[::-1].index(f"U{ks//2}")
                    pre = [f"s_waitcnt vmcnt({len(order)-1-last})", "s_barrier"]
                    if tr and ks in (0, 4, 10):
                        pre += capture(g, lambda: pstamp(g, f'chunk{ {0:0,4:1,10:2}[ks] }'))
                if c % 2 == 0:
                    while spread:
                        x = spread.pop(0)
                        pre.append(x)
                        if x.startswith("buffer"):
                            order.append(f"U{nu//4}")
                            nu += 1
                            break
                items.append((rd, [f"v_mfma_f32_16x16x32_bf16 {v(ACC+4*c,4)}, {v(V_XF+4*ks,4)}, {v(b,4)}, {cc}"], pre))
        assert not [x for x in spread if x.startswith("buffer")]
        pipelined(g, items, 14 if tr else 10, group=1)
    gemm(True)
    PK = V_BUF
    g("L_prod_epi:")
    g.nop(5)
    for c in range(4):
        g(f"v_cvt_pk_bf16_f32 {v(PK+2*c)}, {v(ACC+4*c)}, {v(ACC+4*c+1)}")
        g(f"v_cvt_pk_bf16_f32 {v(PK+2*c+1)}, {v(ACC+4*c+2)}, {v(ACC+4*c+3)}")
    g(f"""
    v_permlane16_swap_b32 {v(PK)}, {v(PK+2)}
    v_permlane16_swap_b32 {v(PK+1)}, {v(PK+3)}
    v_permlane16_swap_b32 {v(PK+4)}, {v(PK+6)}
    v_permlane16_swap_b32 {v(PK+5)}, {v(PK+7)}
    buffer_store_dwordx4 {v(PK,4)}, {v(V_T5)}, {s(SRD_WS,4)}, {s(S_PO0)} offen sc1
    buffer_store_dwordx4 {v(PK+4,4)}, {v(V_T5)}, {s(SRD_WS,4)}, {s(S_PO1)} offen sc1
    """)
    pstamp(g, 'chunk3')
    g(f"""
    s_add_u32 {s(S_TILE)}, {s(S_TILE)}, 64
    s_cmp_ge_u32 {s(S_TILE)}, 108
    s_cbranch_scc1 L_prod_last
    s_barrier
    """)
    P2N = g.opts.get("p2n", 1)
    prod_issue(g, P2N)
    g(f"""
    s_waitcnt vmcnt({4*P2N})
    s_barrier
    """)
    flag_store(g, s(S_PF))
    g.stamp('chunk5')
    prod_units(g, P2N, g.opts.get("pah", 3))
    g(f"""
    s_branch L_prod_body
    L_prod_last:
    s_waitcnt vmcnt(0)
    s_barrier
    """)
    flag_store(g, s(S_PF))
    g(f"s_mov_b32 {s(S_F1)}, 1")
    g.stamp('sstored')
    p2_setup(g)
    pa_wait(g, S_F1, "pxcc")
    g("s_branch L_ws_late")
    g(f"""
    L_prod_rows:
    v_lshrrev_b32 {v(V_T0)}, 1, {v(V_I)}
    v_xor_b32 {v(V_T0)}, {v(V_T0)}, {v(V_G)}
    v_lshlrev_b32 {v(V_T0)}, 4, {v(V_T0)}
    v_lshl_add_u32 {v(V_AD)}, {v(V_I)}, 7, {v(V_T0)}
    v_xor_b32 {v(V_AD+1)}, 64, {v(V_AD)}
    """)
    gemm(False)
    g("s_branch L_prod_epi")


A_K = 0
A_V = 144
V_RES = V_MISC + 28
RK = V_MISC
BK = 232
SG = 248
A2 = [70, 71, 72, 73, 79]
V_KO, VST, V_L16H = 78, 206, 216
VTB = 217
V_I4 = 244
VC2 = 232
V_FXP = 235
S_KS = [76, 77, 78, 79]
S_R0, S_R1, S_STX, S_FXP, S_O1, S_O0, S_FL = 80, 81, 14, 15, 3, 18, 19


def kreg(slot, ks):
    return v(V_XF + 4 * ks, 4) if slot == 0 else a(A_K + (slot - 1) * 48 + 4 * ks, 4)


def p2_setup(g):
    T0, T1, T2 = V_T0, V_T1, V_T6
    g(f"""
    s_lshl_b32 {s(S_T1)}, {s(S_W)}, 10
    v_add_u32 {v(A2[0])}, {s(S_T1)}, {v(V_L16)}
    s_and_b32 {s(S_T1)}, {s(S_W)}, 1
    s_lshl_b32 {s(S_T1)}, {s(S_T1)}, 10
    s_add_u32 {s(S_T1)}, {s(S_T1)}, 4096
    v_add_u32 {v(A2[1])}, {s(S_T1)}, {v(V_L16)}
    v_add_u32 {v(A2[2])}, 36864, {v(V_L16)}
    v_add_u32 {v(A2[3])}, 36864, {v(A2[0])}
    v_add_u32 {v(A2[4])}, 36864, {v(A2[1])}
    v_lshrrev_b32 {v(T2)}, 2, {v(V_I)}
    v_lshlrev_b32 {v(T0)}, 2, {v(T2)}
    v_bfe_u32 {v(T1)}, {v(V_I)}, 1, 1
    v_add_u32 {v(T0)}, {v(T0)}, {v(T1)}
    v_mul_u32_u24 {v(T0)}, 1536, {v(T0)}
    v_and_b32 {v(T1)}, 1, {v(V_I)}
    v_lshl_add_u32 {v(T0)}, {v(T1)}, 6, {v(T0)}
    v_lshl_add_u32 {v(V_KO)}, {v(V_G)}, 4, {v(T0)}
    v_xor_b32 {v(T0)}, {s(S_RQ)}, {v(V_G)}
    v_lshrrev_b32 {v(T1)}, 1, {v(T0)}
    v_lshl_add_u32 {v(T1)}, {v(T1)}, 2, {v(T2)}
    v_mul_u32_u24 {v(T1)}, 768, {v(T1)}
    v_and_b32 {v(T0)}, 1, {v(T0)}
    v_lshl_add_u32 {v(T1)}, {v(T0)}, 5, {v(T1)}
    v_and_b32 {v(T0)}, 3, {v(V_I)}
    v_lshl_add_u32 {v(VST)}, {v(T0)}, 3, {v(T1)}
    s_mul_i32 {s(S_STX)}, {s(S_G8)}, {6*32*128}
    s_mul_i32 {s(S_T1)}, {s(S_W)}, {48*128}
    s_add_u32 {s(S_STX)}, {s(S_STX)}, {s(S_T1)}
    s_add_u32 {s(S_STX)}, {s(S_STX)}, {WS_STX}
    s_add_u32 {s(S_FXP)}, {s(S_T1)}, {WS_FX}
    s_mul_i32 {s(S_T1)}, {s(S_W)}, 768
    s_add_u32 {s(S_T1)}, {s(S_T1)}, {L_ST}
    v_lshlrev_b32 {v(T0)}, 2, {v(V_L)}
    v_add_u32 {v(VTB)}, {s(S_T1)}, {v(T0)}
    v_lshlrev_b32 {v(V_I4)}, 2, {v(V_I)}
    v_lshlrev_b32 {v(VTB+1)}, 4, {v(V_G)}
    v_add_u32 {v(VTB+2)}, {s(S_T1)}, {v(VTB+1)}
    v_lshlrev_b32 {v(T0)}, 3, {v(V_I)}
    v_add_u32 {v(VC2)}, {L_CT2}, {v(T0)}
    s_lshl_b32 {s(S_T1)}, {s(S_W)}, 7
    v_add_u32 {v(VC2+1)}, {s(S_T1)}, {v(VC2)}
    s_and_b32 {s(S_T1)}, {s(S_T1)}, 128
    v_add_u32 {v(VC2+2)}, {s(S_T1)}, {v(VC2)}
    v_min_u32 {v(V_FXP)}, 47, {v(V_L)}
    v_lshlrev_b32 {v(V_FXP)}, 7, {v(V_FXP)}
    v_add_u32 {v(V_L16H)}, 4096, {v(V_L16)}
    s_lshl_b32 {s(S_T3)}, {s(S_G8)}, 2
    s_add_u32 {s(S_T3)}, {s(S_T3)}, {s(S_W)}
    s_mul_i32 {s(S_T3)}, {s(S_T3)}, {32*1536}
    s_add_u32 {s(S_T3)}, {s(S_T3)}, {WS_X1}
    s_lshr_b32 {s(S_T2)}, {s(S_RQ)}, 1
    s_mul_i32 {s(S_T2)}, {s(S_T2)}, {16*1536}
    s_and_b32 {s(S_T1)}, {s(S_RQ)}, 1
    s_mul_i32 {s(S_T1)}, {s(S_T1)}, {2*1536}
    s_add_u32 {s(S_KS[0])}, {s(S_T3)}, {s(S_T2)}
    s_sub_u32 {s(S_KS[2])}, {s(S_T3)}, {s(S_T2)}
    s_add_u32 {s(S_KS[2])}, {s(S_KS[2])}, {16*1536}
    s_sub_u32 {s(S_KS[1])}, {s(S_KS[0])}, {s(S_T1)}
    s_add_u32 {s(S_KS[1])}, {s(S_KS[1])}, {2*1536}
    s_sub_u32 {s(S_KS[3])}, {s(S_KS[2])}, {s(S_T1)}
    s_add_u32 {s(S_KS[3])}, {s(S_KS[3])}, {2*1536}
    s_add_u32 {s(S_KS[0])}, {s(S_KS[0])}, {s(S_T1)}
    s_add_u32 {s(S_KS[2])}, {s(S_KS[2])}, {s(S_T1)}
    s_bfe_u32 {s(S_R1)}, {s(S_J)}, 0x10002
    s_lshl_b32 {s(S_R1)}, {s(S_R1)}, 1
    s_and_b32 {s(S_T1)}, {s(S_W)}, 1
    s_add_u32 {s(S_R1)}, {s(S_R1)}, {s(S_T1)}
    s_sub_u32 {s(S_R1)}, {s(S_R1)}, {s(S_W)}
    s_mul_i32 {s(S_R1)}, {s(S_R1)}, {32*1536}
    s_add_u32 {s(S_R1)}, {s(S_R1)}, {s(S_KS[0])}
    s_and_b32 {s(S_T1)}, {s(S_J)}, 3
    s_mul_i32 {s(S_T1)}, {s(S_T1)}, 384
    s_add_u32 {s(S_R1)}, {s(S_R1)}, {s(S_T1)}
    s_lshr_b32 {s(S_T1)}, {s(S_W)}, 1
    s_lshl_b32 {s(S_T1)}, {s(S_T1)}, 7
    s_add_u32 {s(S_R0)}, {s(S_T1)}, {s(S_R1)}
    s_lshl_b32 {s(S_FL)}, s2, 7
    s_lshl_b32 {s(S_T1)}, {s(S_W)}, 2
    s_add_u32 {s(S_FL)}, {s(S_FL)}, {s(S_T1)}
    s_add_u32 {s(S_FL)}, {s(S_FL)}, {WS_F2}
    s_lshl_b32 {s(S_T3)}, {s(S_G8)}, 2
    s_add_u32 {s(S_O0)}, {s(S_T3)}, {s(S_RQ)}
    s_lshl_b32 {s(S_O0)}, {s(S_O0)}, 2
    s_add_u32 {s(S_O1)}, {s(S_O0)}, {s(S_W)}
    s_mul_i32 {s(S_O1)}, {s(S_O1)}, 12288
    s_mul_i32 {s(S_T2)}, {s(S_CS)}, 3072
    s_add_u32 {s(S_O1)}, {s(S_O1)}, {s(S_T2)}
    s_add_u32 {s(S_O1)}, {s(S_O1)}, {WS_QP}
    s_add_u32 {s(S_O0)}, {s(S_O0)}, {s(S_CS)}
    s_lshl_b32 {s(S_O0)}, {s(S_O0)}, 2
    s_add_u32 {s(S_O0)}, {s(S_O0)}, {s(S_W)}
    s_lshl_b32 {s(S_O0)}, {s(S_O0)}, 6
    s_add_u32 {s(S_O0)}, {s(S_O0)}, {WS_SQ}
    s_add_u32 {s(S_T3)}, {s(S_T3)}, {s(S_CS)}
    s_mul_i32 {s(S_T3)}, {s(S_T3)}, 49152
    s_lshl_b32 {s(S_T2)}, {s(S_W)}, 1
    s_lshr_b32 {s(S_T1)}, {s(S_RQ)}, 1
    s_add_u32 {s(S_T2)}, {s(S_T2)}, {s(S_T1)}
    s_mul_i32 {s(S_T2)}, {s(S_T2)}, 6144
    s_add_u32 {s(S_T3)}, {s(S_T3)}, {s(S_T2)}
    s_and_b32 {s(S_T2)}, {s(S_RQ)}, 1
    s_lshl_b32 {s(S_T2)}, {s(S_T2)}, 3
    s_add_u32 {s(S_T3)}, {s(S_T3)}, {s(S_T2)}
    s_add_u32 {s(S_T3)}, {s(S_T3)}, {WS_VP-4*49152}
    s_cmp_lt_u32 {s(S_CS)}, 4
    s_cselect_b32 {s(S_O1)}, {s(S_O1)}, {s(S_T3)}
    """)


KL = ([f"buffer_load_dwordx4 {kreg(sl,ks)}, {v(V_KO)}, {s(SRD_WS,4)}, {s(S_KS[sl])} offen offset:{ks*128} sc1"
       for sl in range(4) for ks in range(12)] +
      [f"buffer_load_dwordx4 {v(V_RES,4)}, {v(V_KO)}, {s(SRD_WS,4)}, {s(S_R0)} offen sc1",
       f"buffer_load_dwordx4 {v(V_RES+4,4)}, {v(V_KO)}, {s(SRD_WS,4)}, {s(S_R1)} offen offset:256 sc1"])


def p2(g):
    ACC = V_ACC
    CS = V_ACC + 24
    CT = V_ACC + 32
    RT = V_MISC + 16
    STP = V_MISC
    KM, KR, KB = V_MISC + 12, V_MISC + 13, V_MISC + 20
    g(f"""
    L_p2:
    s_waitcnt vmcnt(0)
    s_barrier
    """)
    g.stamp('wsland')
    items = []
    for ks in range(12):
        for q in range(2):
            b = V_BUF + ((ks * 2 + q) % 16) * 4
            ad = A2[q + (3 if ks >= 6 else 0)]
            rd = [f"ds_read_b128 {v(b,4)}, {v(ad)} offset:{(ks%6)*6144}"]
            cc = "0" if ks == 0 else v(CS + 4 * q, 4)
            items.append((rd, [f"v_mfma_f32_16x16x32_bf16 {v(CS+4*q,4)}, {v(V_ONES,4)}, {v(b,4)}, {cc}"]))
    g(f"buffer_load_dword {v(V_T7)}, {v(V_FXP)}, {s(SRD_WS,4)}, {s(S_FXP)} offen sc1")
    pipelined(g, items, 12, group=2)
    g.nop(8)
    colsum_pack(g, CS, SG)
    colsum_pack(g, CS + 4, SG + 2)
    g(f"""
    ds_write_b64 {v(VC2+1)}, {v(SG,2)}
    ds_write_b64 {v(VC2+2)}, {v(SG+2,2)} offset:512
    s_mov_b32 {s(S_SPIN)}, {SPIN_LIMIT}
    """)
    g.stamp('ws2rdy')
    g(f"""
    L_px:
    s_waitcnt vmcnt(0)
    v_cmp_ne_u32 vcc, {s(S_NONCE)}, {v(V_T7)}
    s_cbranch_vccz L_pxok
    buffer_load_dword {v(V_T7)}, {v(V_FXP)}, {s(SRD_WS,4)}, {s(S_FXP)} offen sc1
    s_sub_u32 {s(S_SPIN)}, {s(S_SPIN)}, 1
    s_cbranch_scc0 L_px
    L_pxok:
    """)
    g.stamp('x1ok')
    for x in KL[:2]:
        g(x)
    for cb in range(6):
        g(f"buffer_load_dwordx2 {v(STP+2*cb,2)}, {v(VST)}, {s(SRD_WS,4)}, {s(S_STX)} offen offset:{cb*128} sc1")
    for x in KL[2:12]:
        g(x)
    g(f"""
    s_waitcnt lgkmcnt(0)
    s_barrier
    """)
    for c in range(6):
        g(f"ds_read_b64 {v(CT+2*c,2)}, {v(VC2)} offset:{c*128}")
    g(f"""
    s_waitcnt lgkmcnt(0)
    s_cmp_lt_u32 {s(S_CS)}, 4
    s_cbranch_scc0 L_p2_v
    """)

    def stats():
        for c in range(1, 6):
            g(f"v_add_f32 {v(STP)}, {v(STP)}, {v(STP+2*c)}")
            g(f"v_add_f32 {v(STP+1)}, {v(STP+1)}, {v(STP+2*c+1)}")
        mean_rstd(g, STP, STP + 1, KM, KR)
        for src, dst in ((KM, V_MEAN), (KR, V_R)):
            g(f"v_mov_b32 {v(dst)}, {v(src)}")
            g(f"v_mov_b32 {v(V_T0)}, {v(src)}")
            g.nop(2)
            g(f"v_permlane16_swap_b32 {v(dst)}, {v(V_T0)}")
            g.nop(1)
            g(f"v_mov_b32 {v(V_T0)}, {v(dst)}")
            g.nop(2)
            g(f"v_permlane32_swap_b32 {v(dst)}, {v(V_T0)}")
            g.nop(1)
        mu_operand(g, V_MEAN)
        g(f"""
        v_mul_f32 {v(KB)}, {v(KM)}, {v(KR)}
        v_mul_f32 {v(V_T0)}, {f2u(SCALE_LOG2E):#x}, {v(V_R)}
        v_mov_b32 {v(V_T1)}, {v(V_T0)}
        """)
    KIN = g.opts.get("kin", 20)
    KA = g.opts.get("kafter", 8)
    KB4 = g.opts.get("kpoll", 6)
    for typ in range(2):
        if typ == 1:
            g("L_p2_v:")
        g.stamp('k0')
        items = []
        order = ["K0", "K1"] + ["s"] * 6 + [f"K{q}" for q in range(2, 12)]
        nk = 12
        slots = [round((q + 0.5) * 72 / KIN) for q in range(KIN)] if KIN else []
        fill = capture(g, stats)
        for ks in range(12):
            for c in range(6):
                n = ks * 6 + c
                b = V_BUF + (n % 16) * 4
                ad = V_L16 if ks < 6 else A2[2]
                rd = [f"ds_read_b128 {v(b,4)}, {v(ad)} offset:{(ks%6)*6144+c*1024}"]
                cc = "0" if ks == 0 else v(ACC + 4 * c, 4)
                cm = []
                if c == 0:
                    cm.append(f"s_waitcnt vmcnt({len(order) - 1 - order.index(f'K{ks}')})")
                if typ == 0:
                    cm.append(f"v_mfma_f32_16x16x32_bf16 {v(ACC+4*c,4)}, {v(b,4)}, {v(V_XF+4*ks,4)}, {cc}")
                else:
                    cm.append(f"v_mfma_f32_16x16x32_bf16 {v(ACC+4*c,4)}, {v(V_XF+4*ks,4)}, {v(b,4)}, {cc}")
                if n >= 14 and fill:
                    cm.append(fill.pop(0))
                for _ in range(slots.count(n)):
                    cm.append(KL[nk])
                    order.append(f"K{nk}")
                    nk += 1
                items.append((rd, cm))
        assert not fill
        pipelined(g, items, 12, group=2)
        g.stamp('p2gemm')
        PK = V_BUF
        if typ == 0:
            for c in range(6):
                mfma16(g, v(ACC + 4 * c, 4), v(CT + 2 * c, 2), v(V_MU, 2))
            g.nop(3)
            for m in range(3):
                for i in range(4 * m, 4 * m + 4):
                    g(f"v_pk_mul_f32 {v(ACC+2*i,2)}, {v(ACC+2*i,2)}, {v(V_T0,2)}")
            for i in range(12):
                g(f"v_cvt_pk_bf16_f32 {v(PK+i)}, {v(ACC+2*i)}, {v(ACC+2*i+1)}")
            g.nop(1)
            for m in range(3):
                mfma32(g, v(CS, 4), v(V_ONES, 4), v(PK + 4 * m, 4), "0" if m == 0 else None)

            def st(sc):
                for m in range(3):
                    g(f"buffer_store_dwordx4 {v(PK+4*m,4)}, {v(V_L16)}, {s(SRD_WS,4)}, {s(S_O1)} offen offset:{m*1024}{sc}")
                g(f"""
                s_nop 3
                s_mov_b64 exec, {s(S_G0,2)}
                buffer_store_dword {v(CS)}, {v(V_I4)}, {s(SRD_WS,4)}, {s(S_O0)} offen{sc}
                s_mov_b64 exec, -1
                """)
            both_modes(g, st)
        else:
            for e in range(4):
                g(f"ds_bpermute_b32 {v(RT+e)}, {v(VTB+1)}, {v(KR)} offset:{4*e}")
            for c in range(6):
                mfma16(g, v(ACC + 4 * c, 4), v(V_MU, 2), v(CT + 2 * c, 2))
            g.nop(2)
            g("s_waitcnt lgkmcnt(0)")
            for c in range(6):
                for h in range(2):
                    g(f"v_pk_mul_f32 {v(ACC+4*c+2*h,2)}, {v(ACC+4*c+2*h,2)}, {v(RT+2*h,2)}")
            for i in range(12):
                g(f"v_cvt_pk_bf16_f32 {v(PK+i)}, {v(ACC+2*i)}, {v(ACC+2*i+1)}")

            def st(sc):
                for c in range(6):
                    vo, off = (V_L16, c * 1024) if c < 4 else (V_L16H, (c - 4) * 1024)
                    g(f"buffer_store_dwordx2 {v(PK+2*c,2)}, {v(vo)}, {s(SRD_WS,4)}, {s(S_O1)} offen offset:{off}{sc}")
            both_modes(g, st)
        if typ == 0:
            g("s_branch L_p2_done")
    g("L_p2_done:")
    g.stamp('p2st')
    for x in KL[nk:nk + KA]:
        g(x)
    g(f"""
    ds_write_b32 {v(VTB)}, {v(KR)}
    ds_write_b32 {v(VTB)}, {v(KB)} offset:256
    """)
    p3_setup(g)
    g(f"s_waitcnt vmcnt({KA}) lgkmcnt(0)")
    g("s_mov_b64 exec, 1")
    both_modes(g, lambda sc: g(f"buffer_store_dword {v(V_NONCE)}, {v(V_ZERO)}, {s(SRD_WS,4)}, {s(S_FL)} offen{sc}"))
    g("s_mov_b64 exec, -1")
    g.stamp('p2flag')
    for x in KL[nk + KA:nk + KA + KB4]:
        g(x)
    for sl in range(4):
        g(f"ds_read_b128 {v(RK+4*sl,4)}, {v(VTB+2)} offset:{sl*64}")
        g(f"ds_read_b128 {v(BK+4*sl,4)}, {v(VTB+2)} offset:{256+sl*64}")
    return nk + KA + KB4


S_Q, S_SQ, S_V0, S_V1 = S_TAG, S_TAG + 1, S_TAG + 2, S_TAG + 3


def p3_setup(g):
    g(f"""
    v_bfe_u32 {v(V_T0)}, {v(V_L)}, 2, 2
    s_and_b32 {s(S_T5)}, {s(S_J)}, 3
    s_add_u32 {s(S_T1)}, {s(S_T5)}, 4
    v_lshlrev_b32 {v(V_T2)}, 3, {v(V_T0)}
    v_add_u32 {v(V_T2)}, {s(S_T1)}, {v(V_T2)}
    s_lshl_b32 {s(S_T1)}, {s(S_RQ)}, 3
    v_add_u32 {v(V_T0)}, {s(S_T1)}, {v(V_T0)}
    v_and_b32 {v(V_T6)}, 16, {v(V_L)}
    v_cmp_eq_u32 vcc, 0, {v(V_T6)}
    s_lshl_b32 {s(S_T0)}, {s(S_G8)}, 7
    s_add_u32 {s(S_T0)}, {s(S_T0)}, {WS_F2}
    v_cndmask_b32 {v(V_T0)}, {v(V_T2)}, {v(V_T0)}, vcc
    v_lshlrev_b32 {v(V_T0)}, 10, {v(V_T0)}
    v_and_b32 {v(V_T1)}, 3, {v(V_L)}
    v_lshl_add_u32 {v(V_T0)}, {v(V_T1)}, 2, {v(V_T0)}
    s_bfe_u32 {s(S_T4)}, {s(S_J)}, 0x10002
    s_lshl_b32 {s(S_T6)}, {s(S_G8)}, 2
    s_add_u32 {s(S_T7)}, {s(S_T6)}, {s(S_T5)}
    s_add_u32 {s(S_T6)}, {s(S_T6)}, {s(S_RQ)}
    s_lshl_b32 {s(S_Q)}, {s(S_T6)}, 1
    s_add_u32 {s(S_Q)}, {s(S_Q)}, {s(S_T4)}
    s_mul_i32 {s(S_Q)}, {s(S_Q)}, 24576
    s_mul_i32 {s(S_T2)}, {s(S_W)}, 6144
    s_add_u32 {s(S_Q)}, {s(S_Q)}, {s(S_T2)}
    s_add_u32 {s(S_Q)}, {s(S_Q)}, {WS_QP}
    s_add_u32 m0, {s(S_T2)}, {L_WVO}
    s_lshl_b32 {s(S_SQ)}, {s(S_T6)}, 10
    s_lshl_b32 {s(S_T2)}, {s(S_T4)}, 7
    s_add_u32 {s(S_SQ)}, {s(S_SQ)}, {s(S_T2)}
    s_add_u32 {s(S_SQ)}, {s(S_SQ)}, {WS_SQ}
    s_mul_i32 {s(S_V1)}, {s(S_T7)}, 49152
    s_mul_i32 {s(S_T2)}, {s(S_W)}, 12288
    s_add_u32 {s(S_V1)}, {s(S_V1)}, {s(S_T2)}
    s_add_u32 {s(S_V1)}, {s(S_V1)}, {WS_VP}
    s_lshr_b32 {s(S_T2)}, {s(S_RQ)}, 1
    s_mul_i32 {s(S_T2)}, {s(S_T2)}, 6144
    s_add_u32 {s(S_V0)}, {s(S_V1)}, {s(S_T2)}
    s_sub_u32 {s(S_V1)}, {s(S_V1)}, {s(S_T2)}
    s_add_u32 {s(S_V1)}, {s(S_V1)}, 6144
    s_add_u32 {s(S_T3)}, {s(S_Q)}, 4096
    v_lshl_add_u32 {v(V_T5)}, {v(V_G)}, 8, {v(V_I4)}
    v_add_u32 {v(V_AD)}, {L_WVO}, {v(V_L16)}
    """)
    g(f"""
    s_lshl_b32 {s(S_T1)}, {s(S_W)}, 11
    v_add_u32 {v(V_AD+1)}, {s(S_T1)}, {v(V_L16)}
    s_lshl_b32 {s(S_T1)}, {s(S_W)}, 8
    s_add_u32 {s(S_T1)}, {s(S_T1)}, {L_ML}
    v_lshlrev_b32 {v(V_T1)}, 3, {v(V_I)}
    v_add_u32 {v(V_AD+2)}, {s(S_T1)}, {v(V_T1)}
    s_and_b32 {s(S_T7)}, {s(S_W)}, 1
    s_lshl_b32 {s(S_T1)}, {s(S_T7)}, 7
    s_add_u32 {s(S_T1)}, {s(S_T1)}, {L_ML}
    v_add_u32 {v(V_AD+3)}, {s(S_T1)}, {v(V_T1)}
    s_lshl_b32 {s(S_T1)}, {s(S_W)}, 13
    v_add_u32 {v(213)}, {s(S_T1)}, {v(V_L16)}
    s_lshl_b32 {s(S_O1)}, {s(S_T4)}, 1
    s_add_u32 {s(S_O1)}, {s(S_O1)}, {s(S_T7)}
    s_lshl_b32 {s(S_O1)}, {s(S_O1)}, 6
    s_lshr_b32 {s(S_T2)}, {s(S_RQ)}, 1
    s_lshl_b32 {s(S_T2)}, {s(S_T2)}, 5
    s_add_u32 {s(S_O1)}, {s(S_O1)}, {s(S_T2)}
    s_and_b32 {s(S_T2)}, {s(S_RQ)}, 1
    s_lshl_b32 {s(S_T2)}, {s(S_T2)}, 2
    s_add_u32 {s(S_O1)}, {s(S_O1)}, {s(S_T2)}
    s_lshl_b32 {s(S_T2)}, {s(S_G8)}, 8
    s_add_u32 {s(S_O1)}, {s(S_O1)}, {s(S_T2)}
    s_mul_i32 {s(S_O1)}, {s(S_O1)}, 768
    s_mul_i32 {s(S_T2)}, {s(S_T5)}, 192
    s_add_u32 {s(S_O1)}, {s(S_O1)}, {s(S_T2)}
    s_lshr_b32 {s(S_T2)}, {s(S_W)}, 1
    s_lshl_b32 {s(S_T2)}, {s(S_T2)}, 6
    s_add_u32 {s(S_O0)}, {s(S_T2)}, {s(S_O1)}
    v_lshrrev_b32 {v(V_T2)}, 2, {v(V_I)}
    v_lshlrev_b32 {v(V_T2)}, 3, {v(V_T2)}
    v_and_b32 {v(V_T3)}, 3, {v(V_I)}
    v_add_u32 {v(V_T2)}, {v(V_T2)}, {v(V_T3)}
    v_mul_u32_u24 {v(V_T2)}, 768, {v(V_T2)}
    v_lshl_add_u32 {v(A2[0])}, {v(V_G)}, 4, {v(V_T2)}
    """)


def p3(g, nk):
    SA = V_ACC
    LS = V_ACC + 32
    MX = V_ACC + 40
    SQ = V_ACC + 42
    OA = V_BUF
    QB = V_BUF + 48
    PF = V_XF
    BS = OA
    V_RW, V_MW, V_MR, V_RR, V_OO = V_AD + 1, V_AD + 2, V_AD + 3, 213, A2[0]
    poll(g, V_T0, s(S_T0), s(S_NONCE), "p2f")
    g.stamp('e3ok')
    for q in range(4):
        g(f"buffer_load_dwordx4 {v(V_L16)}, {s(SRD_WS,4)}, {s(S_Q)} offen offset:{q*1024} sc1 lds")
    g(f"s_add_u32 m0, m0, 4096")
    for u in range(2):
        g(f"buffer_load_dword {v(SQ+u)}, {v(V_T5)}, {s(SRD_WS,4)}, {s(S_SQ)} offen offset:{u*64} sc1")
    for q in range(2):
        g(f"buffer_load_dwordx4 {v(V_L16)}, {s(SRD_WS,4)}, {s(S_T3)} offen offset:{q*1024} sc1 lds")
    vl = []
    for pr, so in ((0, S_V0), (1, S_V1)):
        for c in range(6):
            vo, off = (V_L16, c * 1024) if c < 4 else (V_L16H, (c - 4) * 1024)
            vl.append(f"buffer_load_dwordx4 {a(A_V+(pr*6+c)*4,4)}, {v(vo)}, {s(SRD_WS,4)}, {s(so)} offen offset:{off} sc1")
    late = KL[nk:48] + vl + KL[48:]
    nkl = 48 - min(nk, 48)
    PRE = g.opts.get("p3pre", 0)
    for x in late[:PRE]:
        g(x)
    g(f"""
    s_waitcnt vmcnt({PRE}) lgkmcnt(0)
    s_barrier
    """)
    g.stamp('qland')
    issued = PRE

    def softmax_lines(u, pk):
        d = SA + u * 16
        TMP = SG + 4 * u
        L = []
        if pk:
            for i in range(8):
                L.append(f"v_pk_fma_f32 {v(d+2*i,2)}, {v(d+2*i,2)}, {v(RK+2*i,2)}, {v(BS+16*u+2*i,2)} neg_lo:[0,0,1] neg_hi:[0,0,1]")
        else:
            for i in range(16):
                L.append(f"v_fma_f32 {v(d+i)}, {v(d+i)}, {v(RK+i)}, -{v(BS+16*u+i)}")
        nf = len(L)
        L.append(f"v_max3_f32 {v(MX+u)}, {v(d)}, {v(d+1)}, {v(d+2)}")
        for i in range(3, 15, 2):
            L.append(f"v_max3_f32 {v(MX+u)}, {v(MX+u)}, {v(d+i)}, {v(d+i+1)}")
        L.append(f"v_max_f32 {v(MX+u)}, {v(MX+u)}, {v(d+15)}")
        L += capture(g, lambda: xlane_sum(g, MX + u, TMP + 2, "v_max_f32"))
        if pk:
            L.append(f"v_mov_b32 {v(TMP)}, {v(MX+u)}")
            L.append(f"v_mov_b32 {v(TMP+1)}, {v(MX+u)}")
            for i in range(8):
                L.append(f"v_pk_add_f32 {v(d+2*i,2)}, {v(d+2*i,2)}, {v(TMP,2)} neg_lo:[0,1] neg_hi:[0,1]")
        else:
            for i in range(16):
                L.append(f"v_sub_f32 {v(d+i)}, {v(d+i)}, {v(MX+u)}")
        for i in range(16):
            L.append(f"v_exp_f32 {v(d+i)}, {v(d+i)}")
        return L, nf
    pre0 = capture(g, lambda: (xlane_sum(g, SQ, SG), xlane_sum(g, SQ + 1, SG + 4)))
    for u in range(2):
        for i in range(16):
            pre0.append(f"v_mul_f32 {v(BS+16*u+i)}, {v(BK+i)}, {v(SQ+u)}")
    OV = g.opts.get("ov", 1)
    sm0, _ = softmax_lines(0, not OV)
    items = []
    nq = 0
    rest = late[PRE:]
    LSPAN = g.opts.get("lspan", 47)
    lpos = [int(q * LSPAN / max(len(rest), 1)) for q in range(len(rest))]
    for ph, (slots, u) in enumerate((((0, 1), 0), ((0, 1), 1), ((2, 3), 0), ((2, 3), 1))):
        for ks in range(12):
            b = QB + (nq % 4) * 4
            nq += 1
            rd = [f"ds_read_b128 {v(b,4)}, {v(V_AD)} offset:{u*12288+ks*1024}"]
            cm = []
            for sl in slots:
                kidx = sl * 12 + ks
                if kidx >= nk and u == 0:
                    cm.append(f"s_waitcnt vmcnt({issued - (kidx - nk) - 1})")
                d = SA + u * 16 + sl * 4
                cc = "0" if ks == 0 else v(d, 4)
                cm.append(f"v_mfma_f32_16x16x32_bf16 {v(d,4)}, {kreg(sl,ks)}, {v(b,4)}, {cc}")
                if ph < 2:
                    pos = ph * 24 + ks * 2 + (sl & 1)
                    k = lpos.count(pos)
                    for _ in range(k):
                        cm.append(rest.pop(0))
                        issued += 1
                    if not k and pre0:
                        cm += pre0[:2]
                        pre0 = pre0[2:]
                if ph == 2 and pre0:
                    cm += pre0[:2]
                    pre0 = pre0[2:]
                if ph == 3 and OV and ks >= 2:
                    take = 1 if sm0 and sm0[0].startswith("v_exp") else 2
                    cm += sm0[:take]
                    sm0 = sm0[take:]
            items.append((rd, cm))
        if ph == 1:
            assert not rest, len(rest)
    assert not pre0
    pipelined(g, items, 3)
    for x in sm0:
        g(x)
    g.stamp('sdone')

    def cvts(u, odd):
        L = []
        for sl in range(4):
            for h in range(2):
                dst = PF + u * 8 + (sl >> 1) * 4 + ((sl & 1) ^ odd) * 2 + h
                src = SA + u * 16 + sl * 4 + 2 * h
                L.append(f"v_cvt_pk_bf16_f32 {v(dst)}, {v(src)}, {v(src+1)}")
        return L

    def cvt_branch(u):
        lo, lj = g.label("odd"), g.label("cj")
        g(f"s_bitcmp1_b32 {s(S_RQ)}, 0")
        g(f"s_cbranch_scc1 {lo}")
        for x in cvts(u, 0):
            g(x)
        g(f"s_branch {lj}")
        g(f"{lo}:")
        for x in cvts(u, 1):
            g(x)
        g(f"{lj}:")

    def pv_lines(u):
        L = []
        for pr in range(2):
            p = v(PF + u * 8 + pr * 4, 4)
            for c in range(6):
                d = OA + u * 24 + c * 4
                L.append(f"v_mfma_f32_16x16x32_bf16 {v(d,4)}, {a(A_V+(pr*6+c)*4,4)}, {p}, {'0' if pr == 0 else v(d,4)}")
            L.append(f"v_mfma_f32_16x16x32_bf16 {v(LS+4*u,4)}, {v(V_ONES,4)}, {p}, {'0' if pr == 0 else v(LS+4*u,4)}")
        return L
    cvt_branch(0)
    sm1, _ = softmax_lines(1, True)
    ex = sm1[-16:]
    for x in sm1[:-16]:
        g(x)
    g("s_waitcnt vmcnt(0)")
    for x in pv_lines(0):
        g(x)
        if ex:
            g(ex.pop(0))
    for x in ex:
        g(x)
    g.stamp('smax')
    cvt_branch(1)
    OUT = V_ACC
    unp = []
    for rnd in range(2):
        for i in range(8):
            src = V_RES + 4 * rnd + (i >> 1)
            unp.append(f"v_and_b32 {v(OUT+8*rnd+i)}, 0xffff0000, {v(src)}" if i & 1 else
                       f"v_lshlrev_b32 {v(OUT+8*rnd+i)}, 16, {v(src)}")
    g(f"v_mov_b32 {v(V_T4)}, {v(MX)}")
    g(f"v_mov_b32 {v(V_T5)}, {v(LS)}")
    w0 = [f"ds_write_b128 {v(V_RW)}, {v(OA+(2*m+h)*4,4)} offset:{2*m*8192+h*1024}" for m in range(3) for h in range(2)]
    w0.append(f"ds_write_b64 {v(V_MW)}, {v(V_T4,2)}")
    for n, x in enumerate(pv_lines(1)):
        g(x)
        if n % 2 == 1:
            g(w0.pop(0))
        else:
            g(unp.pop(0))
    g.stamp('pvdone')
    for x in unp[:3]:
        g(x)
    unp = unp[3:]
    for m in range(3):
        for h in range(2):
            g(f"ds_write_b128 {v(V_RW)}, {v(OA+24+(2*m+h)*4,4)} offset:{(2*m+1)*8192+h*1024}")
            g(unp.pop(0))
    g(f"""
    v_mov_b32 {v(V_T6)}, {v(MX+1)}
    v_mov_b32 {v(V_T7)}, {v(LS+4)}
    ds_write_b64 {v(V_MW)}, {v(V_T6,2)} offset:128
    s_waitcnt lgkmcnt(0)
    s_barrier
    """)
    g.stamp('redbar')
    ML = V_ACC + 16
    FW = V_ACC + 24
    RD = V_BUF
    for w in range(4):
        g(f"ds_read_b64 {v(ML+2*w,2)}, {v(V_MR)} offset:{w*256}")
    for w in range(4):
        for h in range(2):
            g(f"ds_read_b128 {v(RD+w*8+h*4,4)}, {v(V_RR)} offset:{w*2048+h*1024}")
    g(f"""
    s_waitcnt lgkmcnt(8)
    v_max3_f32 {v(V_T3)}, {v(ML)}, {v(ML+2)}, {v(ML+4)}
    v_max_f32 {v(V_T3)}, {v(V_T3)}, {v(ML+6)}
    """)
    for w in range(4):
        g(f"v_sub_f32 {v(FW+2*w)}, {v(ML+2*w)}, {v(V_T3)}")
    for w in range(4):
        g(f"v_exp_f32 {v(FW+2*w)}, {v(FW+2*w)}")
    g(f"""
    s_waitcnt lgkmcnt(2)
    s_cmp_ge_u32 {s(S_W)}, 2
    s_cbranch_scc1 L_nord2
    """)
    for w in range(4):
        for h in range(2):
            g(f"ds_read_b128 {v(RD+32+w*8+h*4,4)}, {v(V_RR)} offset:{32768+w*2048+h*1024}")
    g(f"""
    s_waitcnt lgkmcnt(8)
    s_branch L_rd1
    L_nord2:
    s_waitcnt lgkmcnt(0)
    L_rd1:
    v_mul_f32 {v(V_T3)}, {v(FW)}, {v(ML+1)}
    v_fmac_f32 {v(V_T3)}, {v(FW+2)}, {v(ML+3)}
    v_fmac_f32 {v(V_T3)}, {v(FW+4)}, {v(ML+5)}
    v_fmac_f32 {v(V_T3)}, {v(FW+6)}, {v(ML+7)}
    v_rcp_f32 {v(V_T3)}, {v(V_T3)}
    s_nop 0
    """)
    for w in range(4):
        g(f"v_mul_f32 {v(FW+2*w)}, {v(FW+2*w)}, {v(V_T3)}")
        g(f"v_mov_b32 {v(FW+2*w+1)}, {v(FW+2*w)}")
    osc = " sc1" if g.opts.get("outsc1", 0) else (" nt" if g.opts.get("outnt", 0) else "")
    for rnd in range(2):
        if rnd == 1:
            g(f"""
            s_cmp_ge_u32 {s(S_W)}, 2
            s_cbranch_scc1 L_fin
            """)
        for w in range(4):
            if rnd == 1:
                g(f"s_waitcnt lgkmcnt({6-2*w})")
            for i in range(4):
                g(f"v_pk_fma_f32 {v(OUT+8*rnd+2*i,2)}, {v(RD+32*rnd+w*8+2*i,2)}, {v(FW+2*w,2)}, {v(OUT+8*rnd+2*i,2)}")
        PK = V_ACC + 32 + 4 * rnd
        if rnd == 0 and g.opts.get("perturb", 0):
            g(f"""
            s_or_b32 {s(S_T0)}, s2, {s(S_W)}
            s_cmp_lg_u32 {s(S_T0)}, 0
            s_cbranch_scc1 L_nopert
            s_mov_b64 exec, 1
            v_add_f32 {v(OUT)}, {f2u(g.opts["perturb"]/1000.):#x}, {v(OUT)}
            s_mov_b64 exec, -1
            L_nopert:
            """)
        for i in range(4):
            g(f"v_cvt_pk_bf16_f32 {v(PK+i)}, {v(OUT+8*rnd+2*i)}, {v(OUT+8*rnd+2*i+1)}")
        if rnd == 0:
            g(f"buffer_store_dwordx4 {v(PK,4)}, {v(V_OO)}, {s(SRD_OUT,4)}, {s(S_O0)} offen{osc}")
        else:
            g(f"buffer_store_dwordx4 {v(PK,4)}, {v(V_OO)}, {s(SRD_OUT,4)}, {s(S_O1)} offen offset:128{osc}")
    g("L_fin:")


def epilogue(g):
    g(f"""
    s_or_b32 {s(S_T0)}, s2, {s(S_W)}
    s_cmp_lg_u32 {s(S_T0)}, 0
    s_cbranch_scc1 L_nononce
    s_mov_b64 exec, 1
    buffer_store_dword {v(V_NONCE)}, {v(V_ZERO)}, {s(SRD_WS,4)}, 0 offen
    s_mov_b64 exec, -1
    L_nononce:
    """)
    if g.stamps:
        g(f"""
        s_cmp_lg_u32 {s(S_W)}, 0
        s_cbranch_scc1 L_end
        s_waitcnt vmcnt(0)
        s_memtime s[98:99]
        s_memrealtime s[100:101]
        s_waitcnt lgkmcnt(0)
        s_lshl_b32 {s(S_T0)}, s2, 8
        s_add_u32 {s(S_T0)}, {s(S_T0)}, {WS_STAMP}
        v_mov_b32 {v(V_T1)}, 0
        s_mov_b64 exec, 1
        """)
        for i in range(20):
            g(f"v_mov_b32 {v(V_T0)}, s{S_STAMP+i}")
            g(f"buffer_store_dword {v(V_T0)}, {v(V_T1)}, {s(SRD_WS,4)}, {s(S_T0)} offen offset:{4*i}")
            g("s_nop 1")
    g("L_end:")
    g("s_endpgm")


def build(stamps=False, opts=None):
    g = G(stamps, opts)
    prologue(g)
    g("s_cbranch_scc1 L_products")
    p0_issue(g)
    g("s_branch L_main")
    products(g)
    products_body(g)
    g("L_main:")
    p0_main(g)
    p1(g)
    nk = p2(g)
    p3(g, nk)
    epilogue(g)
    g("L_code_end:")
    hdr = f"""; TimeSformer divided space-time attention block, one persistent launch (256 workgroups, one per CU).
; @launch grid=(256,1,1) block=(256,1,1) lds={LDS_SIZE}
.amdgcn_target "amdgcn-amd-amdhsa--gfx950"
.text
.globl {KNAME}
.p2align 8
.type {KNAME},@function
{KNAME}:
"""
    ftr = f"""
.section .rodata,"a"
.p2align 6
.amdhsa_kernel {KNAME}
  .amdhsa_next_free_vgpr 512
  .amdhsa_next_free_sgpr 102
  .amdhsa_accum_offset 256
  .amdhsa_group_segment_fixed_size 0
  .amdhsa_kernarg_size 64
  .amdhsa_user_sgpr_count 2
  .amdhsa_user_sgpr_kernarg_segment_ptr 1
  .amdhsa_system_sgpr_workgroup_id_x 1
.end_amdhsa_kernel
"""
    return hdr + "\n".join(g.L) + ftr


if __name__ == "__main__":
    out = sys.argv[1]
    stamps = None
    opts = {}
    for x in sys.argv[2:]:
        if x.startswith("--stamps="):
            stamps = ["start"] + x.split("=")[1].split(",")
            assert len(stamps) <= 7
        elif "=" in x:
            k, val = x.split("=")
            opts[k] = int(val)
    open(out, "w").write(build(stamps, opts))
```

```python
import sys, math

KNAME = "standalone__video_timesformer__vision_kernel"

WS_NONCE = 0
WS_FXCC = 0x1000
WS_F2 = 0x13000
WS_SP = 0x1B000
WS_STX = 0x7B000
WS_SQ = 0xAB000
WS_WVOT = 0xB3000
WS_WS2 = 0xFB000
WS_X1 = 0x18B000
WS_QP = 0x30B000
WS_VP = 0x48B000
WS_CSP = 0x60B000
WS_FP = 0x617000
FP_REP = 96 * 128
WS_FX = WS_FP + 8 * FP_REP
FX_REP = 192 * 128
WS_STAMP = WS_FX + 8 * FX_REP
WS_SIZE = WS_STAMP + 256 * 256

L_W = 0
L_WVO = 98304
L_T = 81920
L_CT0 = 147456
L_CT1 = L_CT0 + 1024
L_CT2 = L_CT1 + 512
L_ML = L_CT2 + 1024
L_ST = L_ML + 1024
L_SG = L_ST + 3072
LDS_SIZE = L_SG + 512

SPIN_LIMIT = 40000
SCALE_LOG2E = (384 ** -0.5) * math.log2(math.e)


def f2u(x):
    import struct
    return struct.unpack("<I", struct.pack("<f", x))[0]


DBG_STAMPS = ['chunk0', 'sstored', 'x1flag', 'k0', 'e3ok', 'pvdone']


class G:
    def __init__(self, stamps=False, opts=None):
        self.L = []
        self.stamps = stamps
        self.nstamp = 0
        self.uid = 0
        self.opts = opts or {}

    def __call__(self, s):
        for line in s.split("\n"):
            line = line.strip()
            if line:
                self.L.append("    " + line if not line.endswith(":") else line)

    def label(self, p):
        self.uid += 1
        return f"L_{p}_{self.uid}"

    def nop(self, n):
        while n > 0:
            k = min(n, 16)
            self(f"s_nop {k-1}")
            n -= k

    def stamp(self, name, wait=True):
        if self.opts.get("dbg", 0) and name in DBG_STAMPS:
            k = 86 + 2 * DBG_STAMPS.index(name)
            self(f"s_memrealtime s[{k}:{k+1}]")
        if self.stamps and name in self.stamps:
            idx = 1 + self.stamps.index(name)
            self(f"s_memtime s[{S_STAMP+2*idx}:{S_STAMP+2*idx+1}]")
            if wait:
                self("s_waitcnt lgkmcnt(0)")


def v(a, n=1):
    return f"v{a}" if n == 1 else f"v[{a}:{a+n-1}]"


def a(x, n=1):
    return f"a{x}" if n == 1 else f"a[{x}:{x+n-1}]"


def s(x, n=1):
    return f"s{x}" if n == 1 else f"s[{x}:{x+n-1}]"


S_X, S_WQT, S_WOT, S_WQS, S_WOS, S_OUT, S_DBG, S_WS = 4, 6, 8, 10, 12, 14, 16, 18
S_G8, S_J, S_W, S_NONCE, S_ME = 20, 21, 22, 23, 24
S_RB = 25
S_T0, S_T1, S_T2, S_T3 = 27, 28, 29, 30
S_SPIN = 31
SRD_WS = 32
SRD_A = 36
SRD_B = 40
SRD_OUT = 44
S_VALID = 48
S_G0 = 50
S_TAG = 52
S_M = 56
S_ONES = 58
S_RQ = 59
S_CS = 60
S_SLOW = 61
S_F1 = 62
S_F2 = 63
S_T4, S_T5, S_T6, S_T7 = 64, 65, 66, 67
S_DIAG = 100
S_STAMP = 82

V_TID, V_L, V_I, V_G = 0, 1, 2, 3
V_T0, V_T1, V_T2, V_T3, V_T4, V_T5, V_T6, V_T7 = 4, 5, 6, 7, 8, 9, 10, 11
V_ONES = 12
V_XF = 16
V_MU = 64
V_R = 66
V_MEAN = 67
V_L16 = 68
V_MASK = 69
V_S1A, V_S1B, V_S2A, V_S2B = 70, 71, 72, 73
V_AD = 74
V_BUF = 80
V_ACC = 144
V_MISC = 192
V_ZERO, V_NONCE, V_PA, V_PB = 228, 229, 230, 231
V_PS = 246


def row_stats_dots(g, lo, hi):
    for r in range(lo, hi):
        g(f"v_dot2c_f32_bf16 {v(V_S1A + (r & 1))}, {s(S_ONES)}, {v(V_XF + r)}")
        g(f"v_dot2c_f32_bf16 {v(V_S2A + (r & 1))}, {v(V_XF + r)}, {v(V_XF + r)}")


def xlane_sum(g, r, t, op="v_add_f32"):
    g(f"v_mov_b32 {v(t)}, {v(r)}")
    g.nop(2)
    g(f"v_permlane16_swap_b32 {v(r)}, {v(t)}")
    g.nop(1)
    g(f"{op} {v(r)}, {v(r)}, {v(t)}")
    g(f"v_mov_b32 {v(t)}, {v(r)}")
    g.nop(2)
    g(f"v_permlane32_swap_b32 {v(r)}, {v(t)}")
    g.nop(1)
    g(f"{op} {v(r)}, {v(r)}, {v(t)}")


def row_stats_finish(g):
    g.nop(3)
    g(f"v_add_f32 {v(V_S1A)}, {v(V_S1A)}, {v(V_S1B)}")
    g(f"v_add_f32 {v(V_S2A)}, {v(V_S2A)}, {v(V_S2B)}")
    xlane_sum(g, V_S1A, V_T0)
    xlane_sum(g, V_S2A, V_T1)
    g(f"""
    v_mul_f32 {v(V_MEAN)}, {f2u(1/384.):#x}, {v(V_S1A)}
    v_mul_f32 {v(V_T0)}, {f2u(1/384.):#x}, {v(V_S2A)}
    v_fma_f32 {v(V_T0)}, -{v(V_MEAN)}, {v(V_MEAN)}, {v(V_T0)}
    v_max_f32 {v(V_T0)}, 0, {v(V_T0)}
    v_add_f32 {v(V_T0)}, {f2u(1e-5):#x}, {v(V_T0)}
    v_rsq_f32 {v(V_R)}, {v(V_T0)}
    v_cvt_pk_bf16_f32 {v(V_T1)}, -{v(V_MEAN)}, -{v(V_MEAN)}
    v_lshlrev_b32 {v(V_T1)}, 16, {v(V_T1)}
    v_sub_f32 {v(V_T1)}, -{v(V_MEAN)}, {v(V_T1)}
    v_cvt_pk_bf16_f32 {v(V_T1)}, -{v(V_MEAN)}, {v(V_T1)}
    v_cndmask_b32 {v(V_MU)}, 0, {v(V_T1)}, {s(S_G0,2)}
    v_cndmask_b32 {v(V_MU+1)}, 0, {v(V_T1)}, {s(S_G0,2)}
    """)


def mean_rstd(g, s1, s2, mean, rstd):
    g(f"""
    v_mul_f32 {v(mean)}, {f2u(1/384.):#x}, {v(s1)}
    v_mul_f32 {v(rstd)}, {f2u(1/384.):#x}, {v(s2)}
    v_fma_f32 {v(rstd)}, -{v(mean)}, {v(mean)}, {v(rstd)}
    v_max_f32 {v(rstd)}, 0, {v(rstd)}
    v_add_f32 {v(rstd)}, {f2u(1e-5):#x}, {v(rstd)}
    v_rsq_f32 {v(rstd)}, {v(rstd)}
    """)


def mu_operand(g, mean):
    g(f"""
    v_cvt_pk_bf16_f32 {v(V_T1)}, -{v(mean)}, -{v(mean)}
    v_lshlrev_b32 {v(V_T1)}, 16, {v(V_T1)}
    v_sub_f32 {v(V_T1)}, -{v(mean)}, {v(V_T1)}
    v_cvt_pk_bf16_f32 {v(V_T1)}, -{v(mean)}, {v(V_T1)}
    v_cndmask_b32 {v(V_MU)}, 0, {v(V_T1)}, {s(S_G0,2)}
    v_cndmask_b32 {v(V_MU+1)}, 0, {v(V_T1)}, {s(S_G0,2)}
    """)


def colsum_pack(g, src, dst):
    g(f"""
    v_cvt_pk_bf16_f32 {v(dst)}, {v(src)}, {v(src)}
    v_lshlrev_b32 {v(dst+1)}, 16, {v(dst)}
    v_sub_f32 {v(dst+1)}, {v(src)}, {v(dst+1)}
    v_cvt_pk_bf16_f32 {v(dst+1)}, {v(dst+1)}, {v(dst+1)}
    """)


def poll(g, voff, soff, want, name, slp=0):
    lp, done = g.label(name), g.label(name + "_ok")
    g(f"s_mov_b32 {s(S_SPIN)}, {SPIN_LIMIT}")
    g(f"{lp}:")
    g(f"""
    buffer_load_dword {v(V_T7)}, {v(voff)}, {s(SRD_WS,4)}, {soff} offen sc1
    s_waitcnt vmcnt(0)
    v_cmp_ne_u32 vcc, {want}, {v(V_T7)}
    s_cbranch_vccz {done}
    {'s_sleep %d' % slp if slp else ''}
    s_sub_u32 {s(S_SPIN)}, {s(S_SPIN)}, 1
    s_cbranch_scc0 {lp}
    {done}:
    """)


def mfma32(g, d, A, B, c=None):
    g(f"v_mfma_f32_16x16x32_bf16 {d}, {A}, {B}, {c if c is not None else d}")


def mfma16(g, d, A, B, c=None):
    g(f"v_mfma_f32_16x16x16_bf16 {d}, {A}, {B}, {c if c is not None else d}")


def pipelined(g, items, depth_reads, group=1):
    n = len(items)
    issued = 0
    cum = [0]
    for it in items:
        cum.append(cum[-1] + len(it[0]))
    for i in range(0, n, group):
        hi = min(i + group, n)
        while issued < n and (issued < hi or cum[issued + 1] - cum[i] <= depth_reads):
            if len(items[issued]) > 2:
                for p in items[issued][2]:
                    g(p)
            for r in items[issued][0]:
                g(r)
            issued += 1
        g(f"s_waitcnt lgkmcnt({cum[issued] - cum[hi]})")
        for k in range(i, hi):
            for c in items[k][1]:
                g(c)


def capture(g, fn):
    keep = g.L
    g.L = []
    fn()
    out = [x.strip() for x in g.L]
    g.L = keep
    return out


def prologue(g):
    g(f"""
    s_cmp_ge_u32 s2, 256
    s_cbranch_scc1 L_end
    s_load_dwordx16 s[4:19], s[0:1], 0
    """)
    if g.opts.get("dbg", 0):
        g("s_load_dwordx2 s[82:83], s[0:1], 48")
        g("s_memrealtime s[84:85]")
    if g.stamps:
        for i in range(S_STAMP, 100):
            g(f"s_mov_b32 s{i}, 0")
        g(f"s_memrealtime s[{S_STAMP}:{S_STAMP+1}]")
        g.stamp('start', False)
    g(f"""
    s_and_b32 {s(S_G8)}, s2, 7
    s_lshr_b32 {s(S_J)}, s2, 3
    v_lshrrev_b32 {v(V_T0)}, 6, v0
    v_and_b32 {v(V_L)}, 63, v0
    v_readfirstlane_b32 {s(S_W)}, {v(V_T0)}
    v_and_b32 {v(V_I)}, 15, v0
    v_bfe_u32 {v(V_G)}, v0, 4, 2
    v_lshlrev_b32 {v(V_L16)}, 4, {v(V_L)}
    """)
    if g.opts.get("codepf", 1):
        NL = g.opts.get("cpl", 2)
        g(f"""
        s_getpc_b64 {s(S_M,2)}
        L_pc:
        s_lshl_b32 {s(S_T0)}, {s(S_J)}, 2
        s_add_u32 {s(S_T0)}, {s(S_T0)}, {s(S_W)}
        s_mul_i32 {s(S_T0)}, {s(S_T0)}, {128*NL}
        s_min_u32 {s(S_T0)}, {s(S_T0)}, L_code_end-L_pc-{128*NL}
        v_lshlrev_b32 {v(V_T0)}, 7, {v(V_L)}
        v_add_u32 {v(V_T1)}, {s(S_T0)}, {v(V_T0)}
        s_mov_b64 exec, {(1 << NL) - 1}
        global_load_dword {v(V_MISC+62)}, {v(V_T1)}, {s(S_M,2)}
        s_mov_b64 exec, -1
        """)
    g(f"""
    s_lshr_b32 {s(S_RQ)}, {s(S_J)}, 3
    s_and_b32 {s(S_CS)}, {s(S_J)}, 7
    s_lshl_b32 {s(S_RB)}, {s(S_RQ)}, 3
    s_add_u32 {s(S_RB)}, {s(S_RB)}, {s(S_G8)}
    s_mov_b32 {s(SRD_A+3)}, 0x20000
    s_mov_b32 {s(SRD_B+3)}, 0x20000
    s_mov_b32 {s(SRD_WS+3)}, 0x20000
    s_mov_b32 {s(SRD_WS+2)}, {WS_SIZE}
    s_cmp_ge_u32 {s(S_CS)}, 6
    s_cbranch_scc1 L_products
    """)
    p0_pre(g)
    g(f"""
    s_waitcnt lgkmcnt(0)
    s_load_dword {s(S_NONCE)}, {s(S_WS,2)}, {WS_NONCE}
    """)


def common_consts(g):
    g(f"""
    s_mov_b32 {s(SRD_WS)}, {s(S_WS)}
    s_mov_b32 {s(SRD_WS+1)}, {s(S_WS+1)}
    s_mov_b32 {s(SRD_OUT)}, {s(S_OUT)}
    s_mov_b32 {s(SRD_OUT+1)}, {s(S_OUT+1)}
    s_mov_b32 {s(SRD_OUT+2)}, 1572864
    s_mov_b32 {s(SRD_OUT+3)}, 0x20000
    s_mov_b32 {s(S_ONES)}, 0x3f803f80
    s_getreg_b32 {s(S_ME)}, hwreg(HW_REG_XCC_ID, 0, 3)
    v_mov_b32 {v(V_ONES)}, {s(S_ONES)}
    v_mov_b32 {v(V_ONES+1)}, {s(S_ONES)}
    v_mov_b32 {v(V_ONES+2)}, {s(S_ONES)}
    v_mov_b32 {v(V_ONES+3)}, {s(S_ONES)}
    v_mov_b32 {v(V_MASK)}, 0xffffff00
    v_mov_b32 {v(V_ZERO)}, 0
    v_cmp_eq_u32 {s(S_G0,2)}, 0, {v(V_G)}
    v_lshrrev_b32 {v(V_T0)}, 1, {v(V_G)}
    v_lshrrev_b32 {v(V_T1)}, 3, {v(V_I)}
    v_cmp_eq_u32 {s(S_VALID,2)}, {v(V_T0)}, {v(V_T1)}
    v_lshrrev_b32 {v(V_T1)}, 2, {v(V_I)}
    v_cmp_eq_u32 {s(S_DIAG,2)}, {v(V_G)}, {v(V_T1)}
    """)
    g(f"""
    s_lshl_b32 {s(S_T0)}, {s(S_G8)}, 7
    s_add_u32 {s(S_T0)}, {s(S_T0)}, {WS_FXCC}
    v_and_b32 {v(V_T1)}, 31, {v(V_L)}
    v_lshlrev_b32 {v(V_T1)}, 10, {v(V_T1)}
    v_add_u32 {v(V_PA)}, {s(S_T0)}, {v(V_T1)}
    v_min_u32 {v(V_PB)}, 11, {v(V_L)}
    s_mul_i32 {s(S_T1)}, {s(S_G8)}, {FP_REP}
    v_lshlrev_b32 {v(V_PB)}, 7, {v(V_PB)}
    s_cmp_lt_u32 {s(S_CS)}, 4
    s_cselect_b32 {s(S_T0)}, 0, {12*128}
    s_add_u32 {s(S_T0)}, {s(S_T0)}, {WS_FP+36*128}
    s_add_u32 {s(S_T0)}, {s(S_T0)}, {s(S_T1)}
    v_add_u32 {v(V_PB)}, {s(S_T0)}, {v(V_PB)}
    v_min_u32 {v(V_T0)}, 5, {v(V_L)}
    v_mul_u32_u24 {v(V_T0)}, 768, {v(V_T0)}
    s_lshl_b32 {s(S_T0)}, {s(S_CS)}, 7
    s_add_u32 {s(S_T0)}, {s(S_T0)}, {s(S_T1)}
    s_add_u32 {s(S_T0)}, {s(S_T0)}, {WS_FP}
    v_add_u32 {v(V_PS)}, {s(S_T0)}, {v(V_T0)}
    """)


def nonce_and_publish(g):
    g(f"""
    s_waitcnt lgkmcnt(0)
    s_and_b32 {s(S_T0)}, {s(S_NONCE)}, 0x78787878
    s_add_u32 {s(S_T0)}, {s(S_T0)}, 0x08080808
    s_and_b32 {s(S_T1)}, {s(S_NONCE)}, 0x80808080
    s_xor_b32 {s(S_NONCE)}, {s(S_T0)}, {s(S_T1)}
    s_or_b32 {s(S_ME)}, {s(S_ME)}, {s(S_NONCE)}
    s_lshl_b32 {s(S_T0)}, s2, 7
    s_add_u32 {s(S_T0)}, {s(S_T0)}, {WS_FXCC}
    v_mov_b32 {v(V_T0)}, {s(S_ME)}
    v_mov_b32 {v(V_NONCE)}, {s(S_NONCE)}
    s_mov_b64 exec, 1
    buffer_store_dword {v(V_T0)}, {v(V_ZERO)}, {s(SRD_WS,4)}, {s(S_T0)} offen sc1
    s_mov_b64 exec, -1
    s_and_b32 {s(S_TAG)}, {s(S_NONCE)}, 0xff
    s_bfe_u32 {s(S_TAG+1)}, {s(S_NONCE)}, 0x80008
    s_bfe_u32 {s(S_TAG+2)}, {s(S_NONCE)}, 0x80010
    s_lshr_b32 {s(S_TAG+3)}, {s(S_NONCE)}, 24
    """)


def flag_store(g, soff, rep):
    sk = g.label("nofl")
    g(f"""
    s_cmp_lg_u32 {s(S_W)}, 0
    s_cbranch_scc1 {sk}
    v_mul_u32_u24 {v(V_T0)}, {rep}, {v(V_L)}
    s_mov_b64 exec, 0xff
    buffer_store_dword {v(V_NONCE)}, {v(V_T0)}, {s(SRD_WS,4)}, {soff} offen sc1
    s_mov_b64 exec, -1
    {sk}:
    """)


def pa_eval(g):
    g(f"""
    v_and_b32 {v(V_T6)}, -8, {v(V_T7)}
    v_cmp_ne_u32 vcc, {s(S_NONCE)}, {v(V_T6)}
    s_mov_b32 {s(S_F1)}, vcc_lo
    v_cmp_ne_u32 vcc, {s(S_ME)}, {v(V_T7)}
    s_mov_b32 {s(S_SLOW)}, vcc_lo
    """)


def pa_wait(g, reg, name):
    lp, done = g.label(name), g.label(name + "_ok")
    g(f"""
    s_cmp_eq_u32 {s(reg)}, 0
    s_cbranch_scc1 {done}
    s_mov_b32 {s(S_SPIN)}, {SPIN_LIMIT}
    {lp}:
    buffer_load_dword {v(V_T7)}, {v(V_PA)}, {s(SRD_WS,4)}, 0 offen sc1
    s_waitcnt vmcnt(0)
    """)
    pa_eval(g)
    g(f"""
    s_cmp_eq_u32 {s(reg)}, 0
    s_cbranch_scc1 {done}
    s_sub_u32 {s(S_SPIN)}, {s(S_SPIN)}, 1
    s_cbranch_scc0 {lp}
    {done}:
    """)


def both_modes(g, emit):
    ls, le = g.label("slow"), g.label("join")
    g(f"""
    s_cmp_lg_u32 {s(S_SLOW)}, 0
    s_cbranch_scc1 {ls}
    """)
    emit(" sc1" if g.opts.get("allsc1", 0) else (" nt" if g.opts.get("fastnt", 0) else ""))
    g(f"s_branch {le}")
    g(f"{ls}:")
    emit(" sc1")
    g(f"{le}:")


S_WD0, S_WD1 = S_T6, S_T7
S_SPO = S_T4
S_WV, S_WVI = 0, 1
XR = V_MISC
VW = V_MISC + 8
VS = V_MISC + 12
RS = V_MISC + 16
FS = V_MISC + 20
V_XO = V_MISC + 14
S_XO = 26


def wchunk(g):
    g(f"s_mov_b32 m0, {s(S_WD1)}")
    g(f"s_add_u32 {s(S_WD1)}, {s(S_WD1)}, 16384")
    for q in range(4):
        g(f"buffer_load_dwordx4 {v(VW+q)}, {s(SRD_B,4)}, {s(S_WD0)} offen offset:{q*1024} lds")
    g(f"s_add_u32 {s(S_WD0)}, {s(S_WD0)}, {8*18432}")


def wvo_group(g, st, srd=SRD_WS):
    g(f"""
    s_add_u32 m0, {s(S_SIG2)}, {L_WVO + st*16384}
    s_add_u32 {s(S_T1)}, {s(S_WV)}, {st*16384}
    """)
    for q in range(4):
        g(f"buffer_load_dwordx4 {v(V_L16)}, {s(srd,4)}, {s(S_T1)} offen offset:{q*1024} sc1 lds")


SMR = [V_T2, V_T3, V_T4, V_T5]
S_RETRY = 70


def sample(dst):
    return f"buffer_load_dword {v(dst)}, {v(V_PS)}, {s(SRD_WS,4)}, 0 offen sc1"


S_CH, S_WSTEP, S_XSTEP, S_SIG2, S_XR = 68, 69, 70, 71, 72
S_X1O, S_FXO, S_STO = 73, 74, 75
A1 = [236, 237, 238]
C1 = [239, 240]
XA = 241


def row_dma(g, srd, vo, so, seg):
    g(f"buffer_load_dwordx4 {v(vo)}, {s(srd,4)}, {s(so)} offen lds")
    g(f"buffer_load_dwordx4 {v(vo+1)}, {s(srd,4)}, {s(so)} offen offset:1024 lds")


def p0_issue(g):
    g(f"""
    s_sub_u32 {s(SRD_A)}, {s(S_X)}, 1024
    s_subb_u32 {s(SRD_A+1)}, {s(S_X+1)}, 0
    s_mov_b32 {s(SRD_A+2)}, {1572864+1024}
    s_sub_u32 {s(SRD_B)}, {s(S_WQT)}, 4096
    s_subb_u32 {s(SRD_B+1)}, {s(S_WQT+1)}, 0
    s_mov_b32 {s(SRD_B+2)}, {884736+4096}
    """)
    g.stamp('x0', False)
    for seg in range(6):
        row_dma(g, SRD_A, V_XO, S_XO, seg)
        if seg < 5:
            g(f"s_add_u32 m0, m0, 2048")
            g(f"s_add_u32 {s(S_XO)}, {s(S_XO)}, 128")
    for _ in range(g.opts.get("c0", 1)):
        wchunk(g)
    g.stamp('dmaiss', False)


def p0_pre(g):
    S_CB = S_CS
    g(f"""
    v_lshrrev_b32 {v(V_T1)}, 3, {v(V_L)}
    v_mul_u32_u24 {v(V_T2)}, 2304, {v(V_T1)}
    v_and_b32 {v(V_T1)}, 2, {v(V_T1)}
    v_and_b32 {v(V_T3)}, 7, {v(V_L)}
    v_xor_b32 {v(V_T3)}, {v(V_T3)}, {v(V_T1)}
    v_lshl_add_u32 {v(V_T2)}, {v(V_T3)}, 4, {v(V_T2)}
    v_add_u32 {v(VW)}, 4096, {v(V_T2)}
    v_xor_b32 {v(V_T3)}, 64, {v(V_T2)}
    v_add_u32 {v(VW+1)}, {4096+18432-1024}, {v(V_T3)}
    v_add_u32 {v(VW+2)}, {4096+768-2048}, {v(V_T2)}
    v_add_u32 {v(VW+3)}, {4096+18432+768-3072}, {v(V_T3)}
    s_mul_i32 {s(S_WD0)}, {s(S_W)}, {2*18432}
    s_lshl_b32 {s(S_T1)}, {s(S_CB)}, 7
    s_add_u32 {s(S_WD0)}, {s(S_WD0)}, {s(S_T1)}
    s_lshl_b32 {s(S_WD1)}, {s(S_W)}, 12
    v_lshrrev_b32 {v(V_T0)}, 3, {v(V_L)}
    v_mul_u32_u24 {v(V_T2)}, 196608, {v(V_T0)}
    v_lshrrev_b32 {v(V_T0)}, 1, {v(V_T0)}
    v_and_b32 {v(V_T1)}, 7, {v(V_L)}
    v_xor_b32 {v(V_T1)}, {v(V_T1)}, {v(V_T0)}
    v_lshl_add_u32 {v(V_T2)}, {v(V_T1)}, 4, {v(V_T2)}
    v_add_u32 {v(V_XO)}, 1024, {v(V_T2)}
    v_xor_b32 {v(V_T2)}, 64, {v(V_T2)}
    v_add_u32 {v(V_XO+1)}, 768, {v(V_T2)}
    s_lshl_b32 {s(S_T0)}, {s(S_RB)}, 2
    s_add_u32 {s(S_T0)}, {s(S_T0)}, {s(S_W)}
    s_mul_i32 {s(S_XO)}, {s(S_T0)}, 1536
    s_lshl_b32 {s(S_SPO)}, {s(S_XO)}, 1
    s_mul_i32 {s(S_XR)}, {s(S_W)}, 12288
    s_add_u32 {s(S_XR)}, {s(S_XR)}, {L_WVO}
    s_mov_b32 m0, {s(S_XR)}
    """)


def p0_main(g):
    ACCQ, ACCK = V_ACC, V_ACC + 16
    SX, SXX = V_ACC + 40, V_ACC + 44
    SEL, NM, DB = V_BUF, V_BUF + 8, V_BUF + 16
    S_CB = S_CS
    common_consts(g)
    g(f"""
    v_lshrrev_b32 {v(V_T0)}, 1, {v(V_G)}
    v_lshlrev_b32 {v(V_T0)}, 12, {v(V_T0)}
    v_and_b32 {v(V_T1)}, 1, {v(V_G)}
    v_lshl_add_u32 {v(V_T0)}, {v(V_T1)}, 10, {v(V_T0)}
    v_lshrrev_b32 {v(V_T2)}, 2, {v(V_I)}
    v_lshl_add_u32 {v(V_T0)}, {v(V_T2)}, 7, {v(V_T0)}
    v_lshrrev_b32 {v(V_T2)}, 3, {v(V_I)}
    v_lshl_or_b32 {v(V_T2)}, {v(V_T1)}, 1, {v(V_T2)}
    v_lshl_add_u32 {v(V_T0)}, {v(V_T2)}, 5, {v(V_T0)}
    v_and_b32 {v(V_T2)}, 3, {v(V_I)}
    v_lshl_add_u32 {v(V_AD)}, {v(V_T2)}, 3, {v(V_T0)}
    v_xor_b32 {v(V_AD+1)}, 32, {v(V_AD)}
    v_xor_b32 {v(V_AD+2)}, 64, {v(V_AD)}
    v_xor_b32 {v(V_AD+3)}, 96, {v(V_AD)}
    v_cmp_eq_u32 s[4:5], 1, {v(V_T2)}
    v_cmp_eq_u32 s[6:7], 2, {v(V_T2)}
    v_cmp_eq_u32 s[8:9], 3, {v(V_T2)}
    v_and_b32 {v(V_T0)}, 7, {v(V_L)}
    v_lshl_add_u32 {v(V_T0)}, {v(V_G)}, 3, {v(V_T0)}
    v_lshlrev_b32 {v(VS)}, 4, {v(V_T0)}
    s_add_u32 {s(S_SPO)}, {s(S_SPO)}, {WS_SP}
    v_lshrrev_b32 {v(V_T0)}, 1, {v(V_I)}
    v_xor_b32 {v(V_T0)}, {v(V_T0)}, {v(V_G)}
    v_lshlrev_b32 {v(V_T0)}, 4, {v(V_T0)}
    v_lshl_add_u32 {v(V_T0)}, {v(V_I)}, 7, {v(V_T0)}
    v_add_u32 {v(V_T2)}, {s(S_XR)}, {v(V_T0)}
    v_xor_b32 {v(V_T3)}, 64, {v(V_T2)}
    s_lshl_b32 {s(S_T1)}, {s(S_CB)}, 11
    v_add_u32 {v(V_T4)}, {s(S_T1)}, {v(V_T2)}
    v_add_u32 {v(V_T5)}, {s(S_T1)}, {v(V_T3)}
    s_lshl_b32 {s(S_SIG2)}, {s(S_W)}, 12
    s_mul_i32 {s(S_WV)}, {s(S_CB)}, 49152
    s_add_u32 {s(S_WV)}, {s(S_WV)}, {s(S_SIG2)}
    s_add_u32 {s(S_WV)}, {s(S_WV)}, {WS_WVOT}
    s_lshl_b32 {s(S_T1)}, {s(S_CB)}, 9
    s_add_u32 {s(S_CH)}, {s(S_SPO)}, {s(S_T1)}
    """)
    g(f"""
    v_and_b32 {v(V_T0)}, 1, {v(V_I)}
    v_lshlrev_b32 {v(V_T0)}, 4, {v(V_T0)}
    v_mov_b32 {v(V_T1)}, 0x3f80
    v_lshlrev_b32 {v(V_T0)}, {v(V_T0)}, {v(V_T1)}
    v_cndmask_b32 {v(V_T0)}, 0, {v(V_T0)}, {s(S_DIAG,2)}
    v_and_b32 {v(V_T1)}, 2, {v(V_I)}
    v_cmp_eq_u32 vcc, 0, {v(V_T1)}
    v_mov_b32 {v(SEL+2)}, 0
    v_mov_b32 {v(SEL+3)}, 0
    v_cndmask_b32 {v(SEL)}, 0, {v(V_T0)}, vcc
    v_cndmask_b32 {v(SEL+1)}, {v(V_T0)}, 0, vcc
    v_mov_b32 {v(SEL+4)}, 0
    v_mov_b32 {v(SEL+5)}, 0
    v_mov_b32 {v(SEL+6)}, {v(SEL)}
    v_mov_b32 {v(SEL+7)}, {v(SEL+1)}
    """)
    p1_setup(g)
    C0, C1_ = g.opts.get("c0", 1), g.opts.get("c1", 2)
    order = [f"x{k//2}" for k in range(12)] + [f"A{j}" for j in range(C0) for _ in range(4)]
    for j in range(C0, C1_):
        wchunk(g)
        order += [f"A{j}"] * 4
    nonce_and_publish(g)
    order += ["t"]
    pend = []
    ptag = []

    def queue(fn, tag, n):
        pend.extend(capture(g, fn))
        ptag.extend([tag] * n)

    def pop_vm():
        out = []
        while pend:
            x = pend.pop(0)
            out.append(x)
            if x.startswith("buffer") or x.startswith("global"):
                order.append(ptag.pop(0))
                if any(y.startswith("buffer") or y.startswith("global") for y in pend):
                    break
        return out

    def need(tag):
        last = len(order) - 1 - order[::-1].index(tag)
        return f"s_waitcnt vmcnt({len(order) - 1 - last})"
    def mtouch():
        g(f"""
        s_mov_b64 exec, 0xffffff
        global_load_dword {v(V_MISC+62)}, {v(V_MT)}, s[16:17]
        s_mov_b64 exec, -1
        """)
    if g.opts.get("mt", 0) == 1:
        mtouch()
        order.append("m")
    NQ = C1_ + 3
    PAJ = g.opts.get("paj", 4)

    def qchunk(j):
        queue(lambda: wchunk(g), f"A{j}", 4)
    for j in range(C1_, min(NQ, 6)):
        qchunk(j)
    items = []
    for ks in range(12):
        xf = v(V_XF + 4 * ks, 4)
        pre = []
        if ks % 4 == 0:
            pre = [need(f"x{ks//2+1}")] + (capture(g, lambda: g.stamp('xarr0', False)) if ks == 0 else [])
        if ks % 4 == 2:
            pre += pop_vm()
        rd = [f"ds_read_b128 {xf}, {v(V_T2+(ks&1))} offset:{(ks>>1)*2048}"]
        if ks == 11:
            rd += [f"ds_read_b128 {v(XR,4)}, {v(V_T4)}", f"ds_read_b128 {v(XR+4,4)}, {v(V_T5)}"]
        cm = capture(g, lambda: (mfma32(g, v(SXX, 4), xf, xf, "0" if ks == 0 else None),
                                 mfma32(g, v(SX, 4), v(V_ONES, 4), xf, "0" if ks == 0 else None)))
        items.append((rd, cm, pre))
    pipelined(g, items, 6)
    g.stamp('xarr', False)
    g.nop(8)
    g(f"""
    v_mul_f32 {v(NM)}, {f2u(-1/384.):#x}, {v(SX)}
    v_mul_f32 {v(NM+1)}, {f2u(-1/384.):#x}, {v(SX)}
    v_mul_f32 {v(NM+2)}, {f2u(-1/384.):#x}, {v(SX)}
    v_mul_f32 {v(NM+3)}, {f2u(-1/384.):#x}, {v(SX)}
    v_cndmask_b32 {v(SXX)}, {v(SXX)}, {v(SXX+1)}, s[4:5]
    v_cndmask_b32 {v(SXX)}, {v(SXX)}, {v(SXX+2)}, s[6:7]
    """)
    fin = capture(g, lambda: (g(f"v_cndmask_b32 {v(SXX)}, {v(SXX)}, {v(SXX+3)}, s[8:9]"),
                              g(f"v_cndmask_b32 {v(SXX)}, 0, {v(SXX)}, {s(S_DIAG,2)}"),
                              xlane_sum(g, SXX, V_T0), mean_rstd(g, SX, SXX, V_MEAN, V_R)))
    LAG = 2
    for ks in range(12 + LAG):
        if ks < 12:
            d = DB + (ks % 4) * 8
            mfma32(g, v(d, 4), v(SEL, 4), v(V_XF + 4 * ks, 4), v(NM, 4))
            mfma32(g, v(d + 4, 4), v(SEL + 4, 4), v(V_XF + 4 * ks, 4), v(NM, 4))
        if ks < LAG or ks >= 12:
            for x in fin[:9]:
                g(x)
            if ks >= 12 and not fin:
                g.nop(2)
            fin = fin[9:]
        if ks >= LAG:
            d = DB + ((ks - LAG) % 4) * 8
            for q in range(4):
                g(f"v_cvt_pk_bf16_f32 {v(V_XF+4*(ks-LAG)+q)}, {v(d+2*q)}, {v(d+2*q+1)}")
        if ks % 2 == 1:
            for x in pop_vm():
                g(x)
    assert not fin
    g.stamp('cent', False)
    if g.opts.get("mt", 0) == 2:
        mtouch()
        order.append("m")

    for j in range(NQ, 6):
        qchunk(j)
    MT = g.opts.get("mt", 0)
    if MT == 3:
        queue(mtouch, "m", 1)
    SMP = [g.opts.get("s0", 70), g.opts.get("s1", 82), g.opts.get("s2", 94)]
    items = []
    nb = 0
    for j in range(6):
        for n, (kk, mat, sl) in enumerate([(kk, mat, sl) for kk in range(2) for mat in range(2) for sl in range(4)]):
            ks = 2 * j + kk
            b = V_BUF + (nb % 16) * 4
            nb += 1
            off = (ks % 6) * 8192 + mat * 2048
            rd = [f"ds_read_b64_tr_b16 {v(b,2)}, {v(V_AD+sl)} offset:{off}",
                  f"ds_read_b64_tr_b16 {v(b+2,2)}, {v(V_AD+sl)} offset:{off+512}"]
            acc = (ACCQ if mat == 0 else ACCK) + 4 * sl
            cm = [f"v_mfma_f32_16x16x32_bf16 {v(acc,4)}, {v(b,4)}, {v(V_XF+4*ks,4)}, {'0' if ks == 0 else v(acc,4)}"]
            pre = []
            if n == 0:
                pre += [need(f"A{j}"), "s_barrier"]
                pre += capture(g, lambda: g.stamp(f'chunk{j}', False))
                if j == 3:
                    pre += [f"v_add_u32 {v(V_AD+q)}, 49152, {v(V_AD+q)}" for q in range(4)]
                if j == g.opts.get("pj", 2):
                    pre.append(f"buffer_load_dword {v(V_T7)}, {v(V_PA)}, {s(SRD_WS,4)}, 0 offen sc1")
                    order.append("p")
            if 16 * j + n == g.opts.get("s0", 86):
                assert not pend
                pre += ["s_waitcnt vmcnt(0)", sample(V_T5)] + capture(g, lambda: pa_eval(g))
            if n % 3 == 1:
                x = pop_vm()
                pre += x
            items.append([rd, cm, pre])
    assert not pend
    QF, KF = V_ACC + 32, V_ACC + 40
    pipelined(g, items, 14, group=1)
    for i in range(8):
        g(f"v_cvt_pk_bf16_f32 {v(QF+i)}, {v(ACCQ+2*i)}, {v(ACCQ+2*i+1)}")
    for i in range(8):
        g(f"v_cvt_pk_bf16_f32 {v(KF+i)}, {v(ACCK+2*i)}, {v(ACCK+2*i+1)}")
    SS = V_BUF + 32
    g.nop(1)
    mfma32(g, v(SS, 4), v(KF, 4), v(QF, 4), "0")
    mfma32(g, v(SS, 4), v(KF + 4, 4), v(QF + 4, 4))
    pa_wait(g, S_F1, "xcc")
    g.nop(6)
    for r in range(4):
        g(f"v_bfi_b32 {v(SS+r)}, {v(V_MASK)}, {v(SS+r)}, {s(S_TAG+r)}")
    g(f"s_mov_b64 exec, {s(S_VALID,2)}")
    both_modes(g, lambda sc: g(f"buffer_store_dwordx4 {v(SS,4)}, {v(VS)}, {s(SRD_WS,4)}, {s(S_CH)} offen{sc}"))
    g("s_mov_b64 exec, -1")
    g.stamp('sstored')


CSL = V_BUF


def ws2_dma(g, half):
    if half == 1:
        g(f"""
        s_mul_i32 {s(S_T2)}, {s(S_CS)}, 3072
        s_add_u32 {s(S_T2)}, {s(S_T2)}, {WS_CSP}
        v_lshlrev_b32 {v(V_T6)}, 3, {v(V_L)}
        """)
        for c in range(6):
            g(f"buffer_load_dwordx2 {v(CSL+4*c,2)}, {v(V_T6)}, {s(SRD_WS,4)}, {s(S_T2)} offen offset:{c*512} sc1")
    g(f"""
    s_mul_i32 {s(S_T2)}, {s(S_CS)}, 73728
    s_mul_i32 {s(S_T1)}, {s(S_W)}, 9216
    s_bitcmp{1-half}_b32 {s(S_RQ)}, 0
    s_cselect_b32 {s(S_T3)}, 36864, 0
    s_add_u32 m0, {s(S_T1)}, {s(S_T3)}
    s_add_u32 {s(S_T2)}, {s(S_T2)}, {WS_WS2}
    s_add_u32 {s(S_T3)}, {s(S_T2)}, m0
    """)
    for blk in range(9):
        g(f"buffer_load_dwordx4 {v(V_L16)}, {s(SRD_WS,4)}, {s(S_T3)} offen offset:{(blk%4)*1024} sc1 lds")
        if blk % 4 == 3:
            g(f"s_add_u32 m0, m0, 4096")
            g(f"s_add_u32 {s(S_T3)}, {s(S_T3)}, 4096")


def p1_setup(g):
    S_CB = S_CS
    g(f"""
    v_add_u32 {v(A1[0])}, {L_WVO}, {v(V_L16)}
    v_lshlrev_b32 {v(V_T0)}, 3, {v(V_I)}
    s_lshl_b32 {s(S_T0)}, {s(S_W)}, 7
    s_add_u32 {s(S_T0)}, {s(S_T0)}, {L_SG}
    v_add_u32 {v(A1[2])}, {s(S_T0)}, {v(V_T0)}
    v_and_b32 {v(V_T0)}, 7, {v(V_I)}
    v_lshrrev_b32 {v(V_T1)}, 3, {v(V_I)}
    v_lshl_add_u32 {v(V_T1)}, {v(V_G)}, 3, {v(V_T1)}
    s_lshl_b32 {s(S_T1)}, {s(S_W)}, 1
    v_add_u32 {v(V_T1)}, {s(S_T1)}, {v(V_T1)}
    v_xor_b32 {v(V_T1)}, {v(V_T1)}, {v(V_T0)}
    v_lshlrev_b32 {v(V_T1)}, 4, {v(V_T1)}
    v_lshl_add_u32 {v(V_T1)}, {v(V_T0)}, 10, {v(V_T1)}
    v_add_u32 {v(A1[1])}, {L_T}, {v(V_T1)}
    v_xor_b32 {v(V_T0)}, {s(S_T1)}, {v(V_L)}
    v_lshlrev_b32 {v(V_T0)}, 4, {v(V_T0)}
    s_lshl_b32 {s(S_T2)}, {s(S_W)}, 11
    s_add_u32 {s(S_T2)}, {s(S_T2)}, {L_T}
    v_add_u32 {v(C1[0])}, {s(S_T2)}, {v(V_T0)}
    v_xor_b32 {v(C1[1])}, 16, {v(C1[0])}
    v_lshrrev_b32 {v(V_T0)}, 3, {v(V_L)}
    v_lshlrev_b32 {v(V_T0)}, 8, {v(V_T0)}
    v_and_b32 {v(V_T1)}, 7, {v(V_L)}
    v_lshl_add_u32 {v(XA)}, {v(V_T1)}, 4, {v(V_T0)}
    s_mul_i32 {s(S_X1O)}, {s(S_W)}, {2*196608}
    s_lshr_b32 {s(S_T1)}, {s(S_RB)}, 1
    s_mul_i32 {s(S_T1)}, {s(S_T1)}, 12288
    s_add_u32 {s(S_X1O)}, {s(S_X1O)}, {s(S_T1)}
    s_and_b32 {s(S_T1)}, {s(S_RB)}, 1
    s_lshl_b32 {s(S_T1)}, {s(S_T1)}, 7
    s_add_u32 {s(S_X1O)}, {s(S_X1O)}, {s(S_T1)}
    s_lshl_b32 {s(S_T1)}, {s(S_CB)}, 11
    s_add_u32 {s(S_X1O)}, {s(S_X1O)}, {s(S_T1)}
    s_add_u32 {s(S_X1O)}, {s(S_X1O)}, {WS_X1}
    s_add_u32 {s(S_WSTEP)}, {s(S_X1O)}, 196608
    s_mul_i32 {s(S_FXO)}, {s(S_RB)}, 6
    s_add_u32 {s(S_FXO)}, {s(S_FXO)}, {s(S_CB)}
    s_lshl_b32 {s(S_T1)}, {s(S_FXO)}, 2
    s_lshl_b32 {s(S_FXO)}, {s(S_FXO)}, 7
    s_add_u32 {s(S_FXO)}, {s(S_FXO)}, {WS_FX}
    s_sub_u32 {s(S_STO)}, {s(S_FXO)}, {WS_FX-WS_STX}
    v_and_b32 {v(V_T0)}, 7, {v(V_L)}
    v_mul_u32_u24 {v(V_T0)}, {6*32*128}, {v(V_T0)}
    v_and_b32 {v(V_T1)}, -8, {v(V_L)}
    v_add_u32 {v(XA+1)}, {v(V_T0)}, {v(V_T1)}
    v_lshlrev_b32 {v(XA+2)}, 3, {v(V_L)}
    v_add_u32 {v(XA+2)}, {L_SG}, {v(XA+2)}
    """)


V_MT = 245


def p1(g):
    Z = V_ACC
    CS = V_ACC + 16
    XC = V_ACC + 20

    def shadow():
        g(f"v_lshlrev_b32 {v(V_T0)}, 4, {v(V_G)}")
        for e in range(4):
            g(f"ds_bpermute_b32 {v(RS+e)}, {v(V_T0)}, {v(V_R)} offset:{4*e}")
        for m in range(2):
            for par in range(2):
                for r in range(4):
                    src = XR + 4 * m + 2 * par + (r >> 1)
                    d = XC + (2 * m + par) * 4 + r
                    if r & 1:
                        g(f"v_and_b32 {v(d)}, 0xffff0000, {v(src)}")
                    else:
                        g(f"v_lshlrev_b32 {v(d)}, 16, {v(src)}")
        g(f"v_mul_f32 {v(V_T1)}, {f2u(SCALE_LOG2E):#x}, {v(V_R)}")
        g("s_waitcnt lgkmcnt(0)")
        for e in range(4):
            g(f"v_mul_f32 {v(FS+e)}, {v(V_T1)}, {v(RS+e)}")
    AOP = VW
    SPR = [V_ACC + 36, V_ACC + 40, V_ACC + 44, 220, 224, 248]

    def sloads():
        for c in range(6):
            g(f"buffer_load_dwordx4 {v(SPR[c],4)}, {v(VS)}, {s(SRD_WS,4)}, {s(S_SPO)} offen offset:{c*512} sc1")

    def scheck():
        for c in range(6):
            for r in range(4):
                g(f"v_xor_b32 {v(SPR[c]+r)}, {s(S_TAG+r)}, {v(SPR[c]+r)}")
            if c == 0:
                g(f"v_or_b32 {v(V_T2)}, {v(SPR[0])}, {v(SPR[0]+1)}")
            else:
                g(f"v_or3_b32 {v(V_T2)}, {v(V_T2)}, {v(SPR[c])}, {v(SPR[c]+1)}")
            g(f"v_or3_b32 {v(V_T2)}, {v(V_T2)}, {v(SPR[c]+2)}, {v(SPR[c]+3)}")
        g(f"v_and_b32 {v(V_T2)}, 0xff, {v(V_T2)}")

    def softmax(pk):
        T = SPR[5]
        if pk:
            for c in (1, 3, 5):
                for h in range(2):
                    g(f"v_pk_add_f32 {v(SPR[c]+2*h,2)}, {v(SPR[c]+2*h,2)}, {v(SPR[c-1]+2*h,2)}")
            for c in (3, 5):
                for h in range(2):
                    g(f"v_pk_add_f32 {v(SPR[c]+2*h,2)}, {v(SPR[c]+2*h,2)}, {v(SPR[c-2]+2*h,2)}")
        else:
            for c in (1, 3, 5):
                for r in range(4):
                    g(f"v_add_f32 {v(SPR[c]+r)}, {v(SPR[c]+r)}, {v(SPR[c-1]+r)}")
            for c in (3, 5):
                for r in range(4):
                    g(f"v_add_f32 {v(SPR[c]+r)}, {v(SPR[c]+r)}, {v(SPR[c-2]+r)}")
        for r in range(4):
            g(f"v_mul_f32 {v(T+r)}, {v(T+r)}, {v(FS+r)}")
        g(f"""
        v_max3_f32 {v(V_T0)}, {v(T)}, {v(T+1)}, {v(T+2)}
        v_max_f32 {v(V_T0)}, {v(V_T0)}, {v(T+3)}
        v_mov_b32 {v(V_T1)}, {v(V_T0)}
        s_nop 1
        v_permlane16_swap_b32 {v(V_T0)}, {v(V_T1)}
        s_nop 0
        v_max_f32 {v(V_T0)}, {v(V_T0)}, {v(V_T1)}
        """)
        for r in range(4):
            g(f"v_sub_f32 {v(T+r)}, {v(T+r)}, {v(V_T0)}")
        for r in range(4):
            g(f"v_exp_f32 {v(T+r)}, {v(T+r)}")
        g(f"""
        s_nop 0
        v_add_f32 {v(V_T0)}, {v(T)}, {v(T+1)}
        v_add_f32 {v(V_T1)}, {v(T+2)}, {v(T+3)}
        v_add_f32 {v(V_T0)}, {v(V_T0)}, {v(V_T1)}
        v_mov_b32 {v(V_T1)}, {v(V_T0)}
        v_mul_f32 {v(T)}, {v(T)}, {v(RS)}
        v_mul_f32 {v(T+1)}, {v(T+1)}, {v(RS+1)}
        v_permlane16_swap_b32 {v(V_T0)}, {v(V_T1)}
        v_mul_f32 {v(T+2)}, {v(T+2)}, {v(RS+2)}
        v_add_f32 {v(V_T0)}, {v(V_T0)}, {v(V_T1)}
        v_rcp_f32 {v(V_T0)}, {v(V_T0)}
        v_mul_f32 {v(T+3)}, {v(T+3)}, {v(RS+3)}
        v_cndmask_b32 {v(V_T0)}, 0, {v(V_T0)}, {s(S_VALID,2)}
        """)
        for r in range(4):
            g(f"v_mul_f32 {v(T+r)}, {v(T+r)}, {v(V_T0)}")
        g(f"""
        v_cvt_pk_bf16_f32 {v(AOP)}, {v(T)}, {v(T+1)}
        v_cvt_pk_bf16_f32 {v(AOP+1)}, {v(T+2)}, {v(T+3)}
        """)
    g(f"""
    s_waitcnt vmcnt(1)
    v_cmp_ne_u32 vcc, {s(S_NONCE)}, {v(V_T5)}
    s_cbranch_vccz L_wvo_go
    """)
    shadow()
    poll(g, V_PS, "0", s(S_NONCE), "wvo", g.opts.get("slp", 2))
    for st in range(3):
        wvo_group(g, st)
    g("s_branch L_wvo_on")
    g("L_wvo_go:")
    for st in range(3):
        wvo_group(g, st)
    shadow()
    g("L_wvo_on:")
    late = capture(g, sloads)
    nl = 0
    g.stamp('wvoflag')
    fill = ["s_waitcnt vmcnt(0)"] + capture(g, lambda: (scheck(), softmax(g.opts.get('sfill', 48) >= 48)))
    items = []
    for ks in range(12):
        for c in range(4):
            n = ks * 4 + c
            b = V_BUF + (n % 16) * 4
            rd = [f"ds_read_b128 {v(b,4)}, {v(A1[0])} offset:{ks*4096+c*1024}"]
            cc = "0" if ks == 0 else v(Z + 4 * c, 4)
            cm = [f"v_mfma_f32_16x16x32_bf16 {v(Z+4*c,4)}, {v(V_XF+4*ks,4)}, {v(b,4)}, {cc}"]
            pre = []
            if ks % 4 == 0 and c == 0:
                pre = [f"s_waitcnt vmcnt({8-ks+nl})", "s_barrier"] + capture(g, lambda: g.stamp(f'wvo{ks//4}', False))
            if late and n % 2 == 1 and n >= g.opts.get("sl0", 1):
                pre.append(late.pop(0))
                nl += 1
            if n >= g.opts.get("sfill", 48):
                cm += fill[:2]
                fill = fill[2:]
            items.append((rd, cm, pre))
    pipelined(g, items, 10, group=1)
    ZB = V_BUF + 8
    for x in fill:
        g(x)
    g(f"""
    v_cmp_ne_u32 vcc, 0, {v(V_T2)}
    s_nop 1
    """)
    for c in range(4):
        g(f"v_cvt_pk_bf16_f32 {v(ZB+2*c)}, {v(Z+4*c)}, {v(Z+4*c+1)}")
        g(f"v_cvt_pk_bf16_f32 {v(ZB+2*c+1)}, {v(Z+4*c+2)}, {v(Z+4*c+3)}")
    g.stamp('zdone')
    g(f"""
    s_cbranch_vccz L_sok
    s_mov_b32 {s(S_SPIN)}, {SPIN_LIMIT}
    L_spoll:
    """)
    sloads()
    g("s_waitcnt vmcnt(0)")
    scheck()
    g(f"""
    v_cmp_ne_u32 vcc, 0, {v(V_T2)}
    s_cbranch_vccz L_sre
    s_sub_u32 {s(S_SPIN)}, {s(S_SPIN)}, 1
    s_cbranch_scc0 L_spoll
    L_sre:
    """)
    softmax(True)
    g.nop(2)
    g("L_sok:")
    g.stamp('sok')
    g(f"buffer_load_dword {v(V_T7)}, {v(V_PB)}, {s(SRD_WS,4)}, 0 offen sc1")
    for c in range(4):
        mfma16(g, v(XC + 4 * c, 4), v(ZB + 2 * c, 2), v(AOP, 2))
    g.nop(5)
    OB = V_BUF + 48
    for m in range(2):
        for i in range(4):
            g(f"v_cvt_pk_bf16_f32 {v(OB+4*m+i)}, {v(XC+8*m+2*i)}, {v(XC+8*m+2*i+1)}")
        g(f"ds_write_b128 {v(A1[1])}, {v(OB+4*m,4)} offset:{m*512}")
    S1, S2 = Z, Z + 4
    mfma32(g, v(S2, 4), v(OB, 4), v(OB, 4), "0")
    mfma32(g, v(S1, 4), v(V_ONES, 4), v(OB, 4), "0")
    mfma32(g, v(S2, 4), v(OB + 4, 4), v(OB + 4, 4))
    mfma32(g, v(S1, 4), v(V_ONES, 4), v(OB + 4, 4))
    g.nop(7)
    g(f"""
    v_cndmask_b32 {v(S2)}, {v(S2)}, {v(S2+1)}, s[4:5]
    v_cndmask_b32 {v(S2)}, {v(S2)}, {v(S2+2)}, s[6:7]
    v_cndmask_b32 {v(S1+1)}, {v(S2)}, {v(S2+3)}, s[8:9]
    s_mov_b64 exec, {s(S_DIAG,2)}
    ds_write_b64 {v(A1[2])}, {v(S1,2)}
    s_mov_b64 exec, -1
    s_waitcnt lgkmcnt(0)
    s_barrier
    ds_read_b128 {v(OB,4)}, {v(C1[0])}
    ds_read_b128 {v(OB+4,4)}, {v(C1[1])} offset:1024
    ds_read_b64 {v(V_T0,2)}, {v(XA+2)}
    s_waitcnt lgkmcnt(2)
    buffer_store_dwordx4 {v(OB,4)}, {v(XA)}, {s(SRD_WS,4)}, {s(S_X1O)} offen sc1
    s_waitcnt lgkmcnt(1)
    buffer_store_dwordx4 {v(OB+4,4)}, {v(XA)}, {s(SRD_WS,4)}, {s(S_WSTEP)} offen sc1
    s_cmp_lg_u32 {s(S_W)}, 0
    s_cbranch_scc1 L_nostx
    s_waitcnt lgkmcnt(0)
    buffer_store_dwordx2 {v(V_T0,2)}, {v(XA+1)}, {s(SRD_WS,4)}, {s(S_STO)} offen sc1
    """)
    g.stamp('x1st')
    g(f"""
    s_waitcnt vmcnt(3)
    s_branch L_stx2
    L_nostx:
    s_waitcnt vmcnt(2)
    L_stx2:
    v_cmp_ne_u32 vcc, {s(S_NONCE)}, {v(V_T7)}
    s_cbranch_vccnz L_x1_late
    """)
    ws2_dma(g, 0)
    g(f"""
    s_waitcnt vmcnt(9)
    s_barrier
    """)
    flag_store(g, s(S_FXO), FX_REP)
    g.stamp('x1flag')
    g(f"""
    s_branch L_p2
    L_x1_late:
    s_waitcnt vmcnt(0)
    s_barrier
    """)
    flag_store(g, s(S_FXO), FX_REP)
    g.stamp('x1flag')
    g("L_ws_late:")
    poll(g, V_PB, "0", s(S_NONCE), "pws", g.opts.get("slp", 2))
    ws2_dma(g, 0)


S_TILE, S_PROD, S_KB, S_NB = S_T4, S_T5, S_T6, S_T7
S_PA, S_PB, S_PS = S_F2, S_SLOW, 26
S_PO0, S_PO1, S_PF = 16, 17, 25
V_PAO = V_MISC + 14
S_PU, S_PW = 69, 70
S_PM = 68
L_PA = 49152


def prod_pre(g):
    g(f"""
    s_lshl_b32 {s(S_T0)}, {s(S_RQ)}, 1
    s_add_u32 {s(S_T0)}, {s(S_T0)}, {s(S_CS)}
    s_sub_u32 {s(S_T0)}, {s(S_T0)}, 6
    s_mul_i32 {s(S_TILE)}, {s(S_G8)}, 5
    s_add_u32 {s(S_TILE)}, {s(S_TILE)}, {s(S_T0)}
    s_sub_u32 {s(S_TILE)}, {s(S_TILE)}, 3
    s_cmp_ge_u32 {s(S_TILE)}, 36
    s_cselect_b32 {s(S_TILE)}, 60, {s(S_TILE)}
    s_mul_i32 {s(S_T1)}, {s(S_G8)}, 3
    s_add_u32 {s(S_T1)}, {s(S_T1)}, {s(S_T0)}
    s_add_u32 {s(S_T1)}, {s(S_T1)}, 36
    s_cmp_lt_u32 {s(S_T0)}, 3
    s_cselect_b32 {s(S_TILE)}, {s(S_T1)}, {s(S_TILE)}
    s_mul_hi_u32 {s(S_KB)}, {s(S_TILE)}, {(2**32 + 5)//6}
    s_mul_i32 {s(S_T0)}, {s(S_KB)}, 6
    s_sub_u32 {s(S_NB)}, {s(S_TILE)}, {s(S_T0)}
    s_sub_u32 {s(S_T0)}, {s(S_KB)}, 4
    s_lshr_b32 {s(S_PROD)}, {s(S_T0)}, 1
    s_and_b32 {s(S_T0)}, {s(S_KB)}, 1
    s_mul_i32 {s(S_T0)}, {s(S_T0)}, 3
    s_cmp_lt_u32 {s(S_TILE)}, 36
    s_cselect_b32 {s(S_PROD)}, 0, {s(S_PROD)}
    s_cselect_b32 {s(S_KB)}, {s(S_KB)}, {s(S_T0)}
    s_lshl_b32 {s(S_PA)}, {s(S_KB)}, 2
    s_add_u32 {s(S_PA)}, {s(S_PA)}, {s(S_W)}
    s_mul_i32 {s(S_PA)}, {s(S_PA)}, {16*2304}
    s_lshl_b32 {s(S_T1)}, {s(S_NB)}, 2
    s_add_u32 {s(S_T1)}, {s(S_T1)}, {s(S_W)}
    s_mul_i32 {s(S_T1)}, {s(S_T1)}, {16*2304}
    s_add_u32 {s(S_T1)}, {s(S_T1)}, 768
    s_mul_i32 {s(S_T2)}, {s(S_W)}, {2*6144}
    s_lshl_b32 {s(S_T3)}, {s(S_NB)}, 7
    s_add_u32 {s(S_T2)}, {s(S_T2)}, {s(S_T3)}
    s_mov_b32 {s(S_T3)}, {8*6144}
    s_cmp_eq_u32 {s(S_PROD)}, 1
    s_cselect_b32 {s(S_PB)}, {s(S_T1)}, {s(S_T2)}
    s_cselect_b32 {s(S_PS)}, 128, {s(S_T3)}
    s_cselect_b32 {s(S_T0)}, 0, 1536
    s_cselect_b32 {s(S_T1)}, 1, 0
    s_cselect_b32 {s(S_T2)}, 7, 2
    s_movk_i32 {s(S_T3)}, 768
    s_cselect_b32 {s(S_T3)}, 2304, {s(S_T3)}
    s_add_u32 {s(S_PA)}, {s(S_PA)}, {s(S_T0)}
    v_lshrrev_b32 {v(V_T1)}, 3, {v(V_L)}
    v_mul_u32_u24 {v(V_T2)}, {s(S_T3)}, {v(V_T1)}
    v_lshrrev_b32 {v(V_T1)}, {s(S_T1)}, {v(V_T1)}
    v_and_b32 {v(V_T1)}, {s(S_T2)}, {v(V_T1)}
    v_and_b32 {v(V_T3)}, 7, {v(V_L)}
    v_xor_b32 {v(V_T3)}, {v(V_T3)}, {v(V_T1)}
    v_lshl_add_u32 {v(VW)}, {v(V_T3)}, 4, {v(V_T2)}
    v_xor_b32 {v(V_T3)}, 64, {v(VW)}
    s_lshl_b32 {s(S_T3)}, {s(S_T3)}, 3
    s_sub_u32 {s(S_T3)}, {s(S_T3)}, 1024
    v_add_u32 {v(VW+1)}, {s(S_T3)}, {v(V_T3)}
    v_lshrrev_b32 {v(V_T1)}, 3, {v(V_L)}
    v_mul_u32_u24 {v(V_T2)}, 2304, {v(V_T1)}
    v_lshrrev_b32 {v(V_T1)}, 1, {v(V_T1)}
    v_and_b32 {v(V_T3)}, 7, {v(V_L)}
    v_xor_b32 {v(V_T3)}, {v(V_T3)}, {v(V_T1)}
    v_lshl_add_u32 {v(V_PAO)}, {v(V_T3)}, 4, {v(V_T2)}
    v_xor_b32 {v(V_T3)}, 64, {v(V_PAO)}
    v_add_u32 {v(V_PAO+1)}, {18432-1024}, {v(V_T3)}
    s_lshl_b32 {s(S_PM)}, {s(S_W)}, 11
    s_lshl_b32 {s(S_PU)}, {s(S_NB)}, 1
    s_cmp_ge_u32 {s(S_PU)}, 6
    s_cselect_b32 {s(S_T0)}, 6, 0
    s_sub_u32 {s(S_PU)}, {s(S_PU)}, {s(S_T0)}
    s_cmp_eq_u32 {s(S_PROD)}, 0
    s_cselect_b32 {s(S_PU)}, {s(S_NB) if g.opts.get("rot1", 0) else 0}, {s(S_PU) if g.opts.get("rot3", 0) else 0}
    s_lshl_b32 {s(S_T0)}, {s(S_PU)}, 7
    s_add_u32 {s(S_PA)}, {s(S_PA)}, {s(S_T0)}
    s_mul_i32 {s(S_T0)}, {s(S_PU)}, {s(S_PS)}
    s_add_u32 {s(S_PB)}, {s(S_PB)}, {s(S_T0)}
    s_mul_i32 {s(S_PW)}, {s(S_PS)}, -5
    """)


def aslot(j, t, nt):
    return L_PA + ((j % 4) * 3 + t) * 8192 if nt == 3 else L_PA + j * 8192


def prod_unit(g, j, nt):
    g(f"s_add_u32 m0, {s(S_PM)}, {j*8192}")
    g(f"s_add_u32 {s(S_PU)}, {s(S_PU)}, 1")
    g(f"buffer_load_dwordx4 {v(VW)}, {s(SRD_B,4)}, {s(S_PB)} offen lds")
    g(f"buffer_load_dwordx4 {v(VW+1)}, {s(SRD_B,4)}, {s(S_PB)} offen offset:1024 lds")
    for t in range(nt):
        g(f"s_add_u32 m0, {s(S_PM)}, {aslot(j, t, nt)}")
        g(f"s_add_u32 {s(S_T0)}, {s(S_PA)}, {t*64*2304}")
        row_dma(g, SRD_A, V_PAO, S_T0, j)
    if j < 5:
        g(f"""
        s_cmp_eq_u32 {s(S_PU)}, 6
        s_cselect_b32 {s(S_T0)}, {s(S_PW)}, {s(S_PS)}
        s_cselect_b32 {s(S_T1)}, -5, 1
        s_add_u32 {s(S_PB)}, {s(S_PB)}, {s(S_T0)}
        s_lshl_b32 {s(S_T1)}, {s(S_T1)}, 7
        s_add_u32 {s(S_PA)}, {s(S_PA)}, {s(S_T1)}
        """)


def products(g):
    g(f"""
    L_products:
    """)
    prod_pre(g)
    g(f"""
    s_waitcnt lgkmcnt(0)
    s_load_dword {s(S_NONCE)}, {s(S_WS,2)}, {WS_NONCE}
    s_cmp_eq_u32 {s(S_PROD)}, 0
    s_cselect_b32 {s(SRD_A)}, {s(S_WQT)}, {s(S_WQS)}
    s_cselect_b32 {s(SRD_A+1)}, {s(S_WQT+1)}, {s(S_WQS+1)}
    s_cselect_b32 {s(SRD_B)}, {s(S_WOT)}, {s(S_WOS)}
    s_cselect_b32 {s(SRD_B+1)}, {s(S_WOT+1)}, {s(S_WOS+1)}
    s_mov_b32 {s(SRD_A+2)}, 884736
    s_cmp_eq_u32 {s(S_PROD)}, 1
    s_cselect_b32 {s(SRD_B)}, {s(S_WQS)}, {s(SRD_B)}
    s_cselect_b32 {s(SRD_B+1)}, {s(S_WQS+1)}, {s(SRD_B+1)}
    s_cselect_b32 {s(SRD_B+2)}, {s(SRD_A+2)}, 294912
    s_cmp_ge_u32 {s(S_TILE)}, 36
    s_cbranch_scc1 L_prod3
    """)
    g.stamp('x0', False)
    for j in range(3):
        prod_unit(g, j, 1)
    g(f"""
    s_branch L_prod_body
    L_prod3:
    s_cmp_ge_u32 {s(S_TILE)}, 60
    s_cbranch_scc1 L_prod_idle
    """)
    prod_unit(g, 0, 3)
    g("s_branch L_prod3_body")


def products_body(g):
    ACC = V_ACC
    PK = V_BUF
    CSA, SELP, V_CSO = V_MISC, V_MISC + 16, V_MISC + 20
    S_PC0, S_PC1 = 71, 72

    def setup():
        common_consts(g)
        g(f"""
        v_lshrrev_b32 {v(V_T0)}, 2, {v(V_I)}
        v_and_b32 {v(V_T0)}, 1, {v(V_T0)}
        v_lshlrev_b32 {v(V_T0)}, 10, {v(V_T0)}
        v_lshrrev_b32 {v(V_T1)}, 1, {v(V_G)}
        v_lshl_add_u32 {v(V_T0)}, {v(V_T1)}, 8, {v(V_T0)}
        v_and_b32 {v(V_T1)}, 1, {v(V_G)}
        v_lshl_add_u32 {v(V_T0)}, {v(V_T1)}, 7, {v(V_T0)}
        v_lshrrev_b32 {v(V_T1)}, 3, {v(V_I)}
        v_lshl_add_u32 {v(V_T0)}, {v(V_T1)}, 6, {v(V_T0)}
        v_and_b32 {v(V_T1)}, 3, {v(V_I)}
        v_lshl_add_u32 {v(V_T5)}, {v(V_T1)}, 4, {v(V_T0)}
        s_and_b32 {s(S_T1)}, {s(S_W)}, 1
        s_lshl_b32 {s(S_T1)}, {s(S_T1)}, 9
        v_add_u32 {v(V_T5)}, {s(S_T1)}, {v(V_T5)}
        s_lshl_b32 {s(S_PF)}, {s(S_TILE)}, 7
        s_add_u32 {s(S_PF)}, {s(S_PF)}, {WS_FP}
        s_lshr_b32 {s(S_T0)}, {s(S_W)}, 1
        s_lshl_b32 {s(S_T1)}, {s(S_KB)}, 1
        s_add_u32 {s(S_T3)}, {s(S_T0)}, {s(S_T1)}
        v_lshrrev_b32 {v(V_T0)}, 1, {v(V_I)}
        v_xor_b32 {v(V_T0)}, {v(V_T0)}, {v(V_G)}
        v_lshlrev_b32 {v(V_T0)}, 4, {v(V_T0)}
        v_lshl_add_u32 {v(V_T3)}, {v(V_I)}, 7, {v(V_T0)}
        s_add_u32 {s(S_T0)}, {s(S_PM)}, {L_PA}
        v_add_u32 {v(A2[0])}, {s(S_T0)}, {v(V_T3)}
        v_xor_b32 {v(A2[1])}, 64, {v(A2[0])}
        v_add_u32 {v(A2[2])}, 49152, {v(A2[0])}
        v_add_u32 {v(A2[3])}, 49152, {v(A2[1])}
        """)

    def tr_addr():
        g(f"""
        v_lshlrev_b32 {v(V_T0)}, 10, {v(V_G)}
        v_lshrrev_b32 {v(V_T2)}, 2, {v(V_I)}
        v_lshl_add_u32 {v(V_T0)}, {v(V_T2)}, 7, {v(V_T0)}
        v_and_b32 {v(V_T1)}, 1, {v(V_G)}
        v_lshrrev_b32 {v(V_T2)}, 3, {v(V_I)}
        v_lshl_or_b32 {v(V_T2)}, {v(V_T1)}, 1, {v(V_T2)}
        v_lshl_add_u32 {v(V_T0)}, {v(V_T2)}, 5, {v(V_T0)}
        v_and_b32 {v(V_T2)}, 3, {v(V_I)}
        v_lshl_add_u32 {v(V_AD)}, {v(V_T2)}, 3, {v(V_T0)}
        v_xor_b32 {v(V_AD+1)}, 32, {v(V_AD)}
        v_xor_b32 {v(V_AD+2)}, 64, {v(V_AD)}
        v_xor_b32 {v(V_AD+3)}, 96, {v(V_AD)}
        """)

    def gemm(tr, nt, order, later):
        items = []
        spread = []
        for ks in range(12):
            for c in range(4):
                b = V_BUF + ((ks * 4 + c) % 16) * 4
                if tr:
                    rd = [f"ds_read_b64_tr_b16 {v(b,2)}, {v(V_AD+c)} offset:{ks*4096}",
                          f"ds_read_b64_tr_b16 {v(b+2,2)}, {v(V_AD+c)} offset:{ks*4096+512}"]
                else:
                    rd = [f"ds_read_b128 {v(b,4)}, {v(V_AD+(ks&1))} offset:{(ks>>1)*8192+c*2048}"]
                pre = []
                if ks % 2 == 0 and c == 0:
                    for u in later.get(ks // 2, []):
                        if nt == 1:
                            pre += capture(g, lambda: prod_unit(g, u, nt))
                            order += [f"U{u}"] * (2 + 2 * nt)
                        else:
                            spread += capture(g, lambda: prod_unit(g, u, nt))
                            stag = f"U{u}"
                    last = len(order) - 1 - order[::-1].index(f"U{ks//2}")
                    pre += [f"s_waitcnt vmcnt({len(order)-1-last})", "s_barrier"]
                    if ks in (0, 4, 10):
                        pre += capture(g, lambda: g.stamp(f'chunk{ {0:0,4:1,10:2}[ks] }', False))
                while spread:
                    x = spread.pop(0)
                    pre.append(x)
                    if x.startswith("buffer"):
                        order.append(stag)
                        if any(y.startswith("buffer") for y in spread):
                            break
                cm = []
                for t in range(nt):
                    d = ACC + 16 * t + 4 * c
                    af = V_XF + ((ks % 4) * 3 + t) * 4
                    if c == 0:
                        o = aslot(ks // 2, t, nt) - L_PA
                        rd.append(f"ds_read_b128 {v(af,4)}, {v(A2[(ks&1) + 2*(o >= 49152)])} offset:{o % 49152}")
                    cm.append(f"v_mfma_f32_16x16x32_bf16 {v(d,4)}, {v(af,4)}, {v(b,4)}, {'0' if ks == 0 else v(d,4)}")
                items.append((rd, cm, pre))
        pipelined(g, items, 14 if tr else 10, group=1)

    def epi(nt):
        g.nop(5 if nt == 1 else 1)
        for t in range(nt):
            P = PK + 8 * t
            for c in range(4):
                g(f"v_cvt_pk_bf16_f32 {v(P+2*c)}, {v(ACC+16*t+4*c)}, {v(ACC+16*t+4*c+1)}")
                g(f"v_cvt_pk_bf16_f32 {v(P+2*c+1)}, {v(ACC+16*t+4*c+2)}, {v(ACC+16*t+4*c+3)}")
            g(f"""
            v_permlane16_swap_b32 {v(P)}, {v(P+2)}
            v_permlane16_swap_b32 {v(P+1)}, {v(P+3)}
            v_permlane16_swap_b32 {v(P+4)}, {v(P+6)}
            v_permlane16_swap_b32 {v(P+5)}, {v(P+7)}
            buffer_store_dwordx4 {v(P,4)}, {v(V_T5)}, {s(SRD_WS,4)}, {s(S_PO0)} offen sc1
            buffer_store_dwordx4 {v(P+4,4)}, {v(V_T5)}, {s(SRD_WS,4)}, {s(S_PO1)} offen sc1
            """)
            if nt == 3:
                for aa in range(2):
                    mfma32(g, v(CSA + 4 * aa, 4), v(SELP, 4), v(P + 4 * aa, 4), "0" if t == 0 else None)
            if t < nt - 1:
                g(f"v_add_u32 {v(V_T5)}, {2*6144}, {v(V_T5)}")
        if nt == 3:
            g.nop(7)
            g(f"""
            s_mov_b32 exec_lo, 0xffff
            s_mov_b32 exec_hi, 0xffff
            buffer_store_dword {v(CSA)}, {v(V_CSO)}, {s(SRD_WS,4)}, {s(S_PC0)} offen sc1
            buffer_store_dword {v(CSA+4)}, {v(V_CSO)}, {s(SRD_WS,4)}, {s(S_PC1)} offen sc1
            s_mov_b64 exec, -1
            """)

    g("L_prod_body:")
    setup()
    g(f"""
    s_mul_i32 {s(S_T1)}, {s(S_NB)}, 49152
    s_lshl_b32 {s(S_T0)}, {s(S_T3)}, 12
    s_add_u32 {s(S_T0)}, {s(S_T0)}, {s(S_T1)}
    s_add_u32 {s(S_PO0)}, {s(S_T0)}, {WS_WVOT}
    s_add_u32 {s(S_PO1)}, {s(S_PO0)}, 2048
    """)
    tr_addr()
    nonce_and_publish(g)
    gemm(True, 1, [f"U{j}" for j in range(3) for _ in range(4)] + ["t"], {0: [3, 4, 5]})
    epi(1)
    g(f"""
    L_prod_fin:
    """)
    g.stamp('chunk3')
    g(f"""
    s_waitcnt vmcnt(0)
    s_barrier
    """)
    flag_store(g, s(S_PF), FP_REP)
    g.stamp('chunk5')
    g(f"""
    s_cmp_ge_u32 {s(S_TILE)}, 36
    s_cbranch_scc1 L_prod_out
    L_prod_help:
    """)
    if g.opts.get("help", 1):
        g(f"""
        s_lshl_b32 {s(S_T0)}, {s(S_RQ)}, 1
        s_add_u32 {s(S_T0)}, {s(S_T0)}, {s(S_CS)}
        s_sub_u32 {s(S_T0)}, {s(S_T0)}, 9
        s_lshl_b32 {s(S_T0)}, {s(S_T0)}, 2
        s_add_u32 {s(S_T0)}, {s(S_T0)}, {s(S_W)}
        s_mov_b32 {s(SRD_A)}, {s(S_WQS)}
        s_mov_b32 {s(SRD_A+1)}, {s(S_WQS+1)}
        s_mov_b32 {s(SRD_A+2)}, 884736
        v_mul_u32_u24 {v(V_T0)}, 43, {v(V_L)}
        v_lshrrev_b32 {v(V_T0)}, 8, {v(V_T0)}
        v_mul_u32_u24 {v(V_T0)}, {2304-768}, {v(V_T0)}
        v_lshl_add_u32 {v(V_T0)}, {v(V_L)}, 7, {v(V_T0)}
        s_bfe_u32 {s(S_T2)}, {s(S_G8)}, 0x10001
        s_cmp_ge_u32 {s(S_G8)}, 4
        s_cselect_b32 {s(S_T3)}, 1536, 0
        s_mov_b32 {s(S_T4)}, {10*2304}
        s_cmp_lt_u32 {s(S_T0)}, 10
        s_cbranch_scc1 L_help_go
        s_sub_u32 {s(S_T0)}, {s(S_T0)}, 10
        s_and_b32 {s(S_T2)}, {s(S_G8)}, 1
        s_movk_i32 {s(S_T3)}, 768
        s_cmp_lt_u32 {s(S_G8)}, 4
        s_cbranch_scc1 L_help_go
        s_mov_b32 {s(SRD_A)}, {s(S_WOS)}
        s_mov_b32 {s(SRD_A+1)}, {s(S_WOS+1)}
        s_mov_b32 {s(SRD_A+2)}, 294912
        v_mul_u32_u24 {v(V_T0)}, 86, {v(V_L)}
        v_lshrrev_b32 {v(V_T0)}, 8, {v(V_T0)}
        v_mul_u32_u24 {v(V_T0)}, {768-384}, {v(V_T0)}
        v_lshl_add_u32 {v(V_T0)}, {v(V_L)}, 7, {v(V_T0)}
        s_mul_i32 {s(S_T3)}, {s(S_T2)}, 384
        s_mov_b32 {s(S_T2)}, 0
        s_mov_b32 {s(S_T4)}, {20*768}
        L_help_go:
        s_mul_i32 {s(S_T2)}, {s(S_T2)}, {192*2304}
        s_add_u32 {s(S_T2)}, {s(S_T2)}, {s(S_T3)}
        s_mul_i32 {s(S_T0)}, {s(S_T0)}, {s(S_T4)}
        s_lshl_b32 {s(S_T0)}, {s(S_T0)}, 1
        s_add_u32 {s(S_T0)}, {s(S_T0)}, {s(S_T2)}
        s_add_u32 {s(S_T1)}, {s(S_T0)}, {s(S_T4)}
        s_mov_b32 exec_hi, 0x0fffffff
        buffer_load_dword {v(V_MISC+60)}, {v(V_T0)}, {s(SRD_A,4)}, {s(S_T0)} offen
        buffer_load_dword {v(V_MISC+61)}, {v(V_T0)}, {s(SRD_A,4)}, {s(S_T1)} offen
        s_mov_b32 exec_hi, -1
        """)
    g("L_prod_out:")
    g(f"s_mov_b32 {s(S_F1)}, 1")
    p2_setup(g)
    poll(g, V_PB, "0", s(S_NONCE), "pwsp", g.opts.get("pslp", 8))
    ws2_dma(g, 0)
    ws2_dma(g, 1)
    pa_wait(g, S_F1, "pxcc")
    g("s_branch L_p2c")
    g("L_prod3_body:")
    setup()
    g(f"""
    s_mul_i32 {s(S_T0)}, {s(S_T3)}, 6144
    s_sub_u32 {s(S_T1)}, {s(S_PROD)}, 1
    s_mul_i32 {s(S_T1)}, {s(S_T1)}, {4*73728}
    s_add_u32 {s(S_T0)}, {s(S_T0)}, {s(S_T1)}
    s_add_u32 {s(S_T0)}, {s(S_T0)}, {WS_WS2}
    """)
    g(f"""
    s_sub_u32 {s(S_T1)}, {s(S_PROD)}, 1
    s_mul_i32 {s(S_T2)}, {s(S_T1)}, {4*3072}
    s_cmp_eq_u32 {s(S_KB)}, 0
    s_cselect_b32 {s(S_T1)}, 0, 256
    s_add_u32 {s(S_T2)}, {s(S_T2)}, {s(S_T1)}
    s_lshr_b32 {s(S_T1)}, {s(S_W)}, 1
    s_lshl_b32 {s(S_T1)}, {s(S_T1)}, 7
    s_add_u32 {s(S_T2)}, {s(S_T2)}, {s(S_T1)}
    s_and_b32 {s(S_T1)}, {s(S_W)}, 1
    s_lshl_b32 {s(S_T1)}, {s(S_T1)}, 2
    s_add_u32 {s(S_T2)}, {s(S_T2)}, {s(S_T1)}
    s_add_u32 {s(S_T2)}, {s(S_T2)}, {WS_CSP}
    v_bfe_u32 {v(V_T0)}, {v(V_I)}, 2, 1
    v_lshlrev_b32 {v(V_T0)}, 9, {v(V_T0)}
    v_lshrrev_b32 {v(V_T1)}, 1, {v(V_G)}
    v_lshl_add_u32 {v(V_T0)}, {v(V_T1)}, 6, {v(V_T0)}
    v_lshrrev_b32 {v(V_T1)}, 3, {v(V_I)}
    v_lshl_add_u32 {v(V_T0)}, {v(V_T1)}, 5, {v(V_T0)}
    v_and_b32 {v(V_T2)}, 3, {v(V_I)}
    v_lshl_add_u32 {v(V_CSO)}, {v(V_T2)}, 3, {v(V_T0)}
    v_and_b32 {v(V_T0)}, 1, {v(V_G)}
    v_cmp_eq_u32 vcc, {v(V_T0)}, {v(V_T1)}
    s_nop 1
    v_cndmask_b32 {v(SELP)}, 0, {v(V_ONES)}, vcc
    v_cndmask_b32 {v(SELP+1)}, 0, {v(V_ONES)}, vcc
    v_cndmask_b32 {v(SELP+2)}, 0, {v(V_ONES)}, vcc
    v_cndmask_b32 {v(SELP+3)}, 0, {v(V_ONES)}, vcc
    """)
    for aa, dst, dc in ((0, S_PO0, S_PC0), (1, S_PO1, S_PC1)):
        g(f"""
        s_lshl_b32 {s(S_T3)}, {s(S_NB)}, 1
        s_add_u32 {s(S_T3)}, {s(S_T3)}, {aa}
        s_mul_hi_u32 {s(dst)}, {s(S_T3)}, {(2**32+2)//3}
        s_mul_i32 {s(S_T1)}, {s(dst)}, 3
        s_lshl_b32 {s(dc)}, {s(S_T3)}, 10
        s_add_u32 {s(dc)}, {s(dc)}, {s(S_T2)}
        s_sub_u32 {s(S_T3)}, {s(S_T3)}, {s(S_T1)}
        s_mul_i32 {s(dst)}, {s(dst)}, 73728
        s_lshl_b32 {s(S_T3)}, {s(S_T3)}, 11
        s_add_u32 {s(dst)}, {s(dst)}, {s(S_T3)}
        s_add_u32 {s(dst)}, {s(dst)}, {s(S_T0)}
        """)
    nonce_and_publish(g)
    prod_unit(g, 1, 3)
    o3 = ["U0"] * 8 + ["t"] + ["U1"] * 8
    l3 = {0: [2], 1: [3], 2: [4], 3: [5]}
    g(f"""
    s_cmp_eq_u32 {s(S_PROD)}, 1
    s_cbranch_scc1 L_prod_rows
    """)
    tr_addr()
    gemm(True, 3, list(o3), l3)
    g("L_prod_epi3:")
    epi(3)
    g("s_branch L_prod_fin")
    g(f"""
    L_prod_rows:
    v_mov_b32 {v(V_AD)}, {v(V_T3)}
    v_xor_b32 {v(V_AD+1)}, 64, {v(V_T3)}
    """)
    gemm(False, 3, list(o3), l3)
    g("s_branch L_prod_epi3")
    g("L_prod_idle:")
    common_consts(g)
    nonce_and_publish(g)
    g("s_branch L_prod_help")


A_K = 0
A_V = 144
V_RES = V_MISC + 28
RK = V_MISC
BK = 232
SG = 248
A2 = [70, 71, 72, 73, 79]
V_KO, VST, V_L16H = 78, 206, 216
VTB = 217
V_I4 = 244
VC2 = 232
V_FXP = 235
S_KS = [76, 77, 78, 79]
S_R0, S_R1, S_STX, S_FXP, S_O1, S_O0, S_FL = 80, 81, 14, 15, 3, 18, 19


def kreg(slot, ks):
    return v(V_XF + 4 * ks, 4) if slot == 0 else a(A_K + (slot - 1) * 48 + 4 * ks, 4)


def p2_setup(g):
    T0, T1, T2 = V_T0, V_T1, V_T6
    g(f"""
    v_add_u32 {v(A2[2])}, 36864, {v(V_L16)}
    v_add_u32 {v(V_KO)}, 8192, {v(V_L16)}
    v_xor_b32 {v(T0)}, {s(S_RQ)}, {v(V_G)}
    v_lshrrev_b32 {v(T1)}, 3, {v(V_I)}
    v_lshl_add_u32 {v(T1)}, {v(T0)}, 1, {v(T1)}
    v_mul_u32_u24 {v(T1)}, 768, {v(T1)}
    v_and_b32 {v(T0)}, 7, {v(V_I)}
    v_lshl_add_u32 {v(VST)}, {v(T0)}, 3, {v(T1)}
    s_mul_i32 {s(S_STX)}, {s(S_G8)}, {6*32*128}
    s_mul_i32 {s(S_T1)}, {s(S_W)}, {48*128}
    s_add_u32 {s(S_STX)}, {s(S_STX)}, {s(S_T1)}
    s_add_u32 {s(S_STX)}, {s(S_STX)}, {WS_STX}
    s_mul_i32 {s(S_FXP)}, {s(S_G8)}, {FX_REP}
    s_add_u32 {s(S_FXP)}, {s(S_FXP)}, {s(S_T1)}
    s_add_u32 {s(S_FXP)}, {s(S_FXP)}, {WS_FX}
    s_mul_i32 {s(S_T1)}, {s(S_W)}, 768
    s_add_u32 {s(S_T1)}, {s(S_T1)}, {L_ST}
    v_lshlrev_b32 {v(T0)}, 2, {v(V_L)}
    v_add_u32 {v(VTB)}, {s(S_T1)}, {v(T0)}
    v_lshlrev_b32 {v(V_I4)}, 2, {v(V_I)}
    v_lshlrev_b32 {v(VTB+1)}, 4, {v(V_G)}
    v_add_u32 {v(VTB+2)}, {s(S_T1)}, {v(VTB+1)}
    v_min_u32 {v(V_FXP)}, 47, {v(V_L)}
    v_lshlrev_b32 {v(V_FXP)}, 7, {v(V_FXP)}
    v_add_u32 {v(V_L16H)}, 4096, {v(V_L16)}
    s_lshl_b32 {s(S_T3)}, {s(S_G8)}, 2
    s_add_u32 {s(S_T3)}, {s(S_T3)}, {s(S_W)}
    s_mul_i32 {s(S_T3)}, {s(S_T3)}, {32*1536}
    s_add_u32 {s(S_T3)}, {s(S_T3)}, {WS_X1}
    s_xor_b32 {s(S_T1)}, {s(S_RQ)}, 0
    s_mul_i32 {s(S_T1)}, {s(S_T1)}, 12288
    s_add_u32 {s(S_KS[0])}, {s(S_T3)}, {s(S_T1)}
    s_xor_b32 {s(S_T1)}, {s(S_RQ)}, 1
    s_mul_i32 {s(S_T1)}, {s(S_T1)}, 12288
    s_add_u32 {s(S_KS[1])}, {s(S_T3)}, {s(S_T1)}
    s_xor_b32 {s(S_T1)}, {s(S_RQ)}, 2
    s_mul_i32 {s(S_T1)}, {s(S_T1)}, 12288
    s_add_u32 {s(S_KS[2])}, {s(S_T3)}, {s(S_T1)}
    s_xor_b32 {s(S_T1)}, {s(S_RQ)}, 3
    s_mul_i32 {s(S_T1)}, {s(S_T1)}, 12288
    s_add_u32 {s(S_KS[3])}, {s(S_T3)}, {s(S_T1)}
    s_bfe_u32 {s(S_R1)}, {s(S_J)}, 0x10002
    s_lshl_b32 {s(S_R1)}, {s(S_R1)}, 1
    s_and_b32 {s(S_T1)}, {s(S_W)}, 1
    s_add_u32 {s(S_R1)}, {s(S_R1)}, {s(S_T1)}
    s_sub_u32 {s(S_R1)}, {s(S_R1)}, {s(S_W)}
    s_mul_i32 {s(S_R1)}, {s(S_R1)}, {32*1536}
    s_add_u32 {s(S_R1)}, {s(S_R1)}, {s(S_KS[0])}
    s_and_b32 {s(S_T1)}, {s(S_J)}, 3
    s_mul_i32 {s(S_T1)}, {s(S_T1)}, 3072
    s_add_u32 {s(S_R1)}, {s(S_R1)}, {s(S_T1)}
    s_lshr_b32 {s(S_T1)}, {s(S_W)}, 1
    s_lshl_b32 {s(S_T1)}, {s(S_T1)}, 10
    s_add_u32 {s(S_R0)}, {s(S_T1)}, {s(S_R1)}
    s_lshl_b32 {s(S_FL)}, s2, 7
    s_lshl_b32 {s(S_T1)}, {s(S_W)}, 2
    s_add_u32 {s(S_FL)}, {s(S_FL)}, {s(S_T1)}
    s_add_u32 {s(S_FL)}, {s(S_FL)}, {WS_F2}
    s_lshl_b32 {s(S_T3)}, {s(S_G8)}, 2
    s_add_u32 {s(S_O0)}, {s(S_T3)}, {s(S_RQ)}
    s_lshl_b32 {s(S_O0)}, {s(S_O0)}, 2
    s_add_u32 {s(S_O1)}, {s(S_O0)}, {s(S_W)}
    s_mul_i32 {s(S_O1)}, {s(S_O1)}, 12288
    s_mul_i32 {s(S_T2)}, {s(S_CS)}, 3072
    s_add_u32 {s(S_O1)}, {s(S_O1)}, {s(S_T2)}
    s_add_u32 {s(S_O1)}, {s(S_O1)}, {WS_QP}
    s_add_u32 {s(S_O0)}, {s(S_O0)}, {s(S_CS)}
    s_lshl_b32 {s(S_O0)}, {s(S_O0)}, 2
    s_add_u32 {s(S_O0)}, {s(S_O0)}, {s(S_W)}
    s_lshl_b32 {s(S_O0)}, {s(S_O0)}, 6
    s_add_u32 {s(S_O0)}, {s(S_O0)}, {WS_SQ}
    s_add_u32 {s(S_T3)}, {s(S_T3)}, {s(S_CS)}
    s_mul_i32 {s(S_T3)}, {s(S_T3)}, 49152
    s_lshl_b32 {s(S_T2)}, {s(S_W)}, 1
    s_lshr_b32 {s(S_T1)}, {s(S_RQ)}, 1
    s_add_u32 {s(S_T2)}, {s(S_T2)}, {s(S_T1)}
    s_mul_i32 {s(S_T2)}, {s(S_T2)}, 6144
    s_add_u32 {s(S_T3)}, {s(S_T3)}, {s(S_T2)}
    s_and_b32 {s(S_T2)}, {s(S_RQ)}, 1
    s_lshl_b32 {s(S_T2)}, {s(S_T2)}, 3
    s_add_u32 {s(S_T3)}, {s(S_T3)}, {s(S_T2)}
    s_add_u32 {s(S_T3)}, {s(S_T3)}, {WS_VP-4*49152}
    s_cmp_lt_u32 {s(S_CS)}, 4
    s_cselect_b32 {s(S_O1)}, {s(S_O1)}, {s(S_T3)}
    """)


KL = ([f"buffer_load_dwordx4 {kreg(sl,ks)}, {v((V_L16, V_L16H, V_KO)[ks//4])}, {s(SRD_WS,4)}, {s(S_KS[sl])} offen offset:{(ks%4)*1024} sc1"
       for sl in range(4) for ks in range(12)] +
      [f"buffer_load_dwordx4 {v(V_RES,4)}, {v(V_L16)}, {s(SRD_WS,4)}, {s(S_R0)} offen sc1",
       f"buffer_load_dwordx4 {v(V_RES+4,4)}, {v(V_L16)}, {s(SRD_WS,4)}, {s(S_R1)} offen offset:2048 sc1"])


def colsums(g):
    CT = V_ACC + 32
    for c in range(6):
        g(f"v_add_f32 {v(CSL+4*c)}, {v(CSL+4*c)}, {v(CSL+4*c+1)}")
    for sw in ("v_permlane16_swap_b32", "v_permlane32_swap_b32"):
        for c in range(6):
            g(f"v_mov_b32 {v(CSL+4*c+1)}, {v(CSL+4*c)}")
        for c in range(6):
            g(f"{sw} {v(CSL+4*c)}, {v(CSL+4*c+1)}")
        for c in range(6):
            g(f"v_add_f32 {v(CSL+4*c)}, {v(CSL+4*c)}, {v(CSL+4*c+1)}")
    for c in range(6):
        colsum_pack(g, CSL + 4 * c, CT + 2 * c)


def k0_issue(g):
    STP = V_MISC
    for x in KL[:2]:
        g(x)
    for cb in range(6):
        g(f"buffer_load_dwordx2 {v(STP+2*cb,2)}, {v(VST)}, {s(SRD_WS,4)}, {s(S_STX)} offen offset:{cb*128} sc1")
    for x in KL[2:12]:
        g(x)


def p2(g):
    ACC = V_ACC
    CS = V_ACC + 24
    CT = V_ACC + 32
    RT = V_MISC + 16
    STP = V_MISC
    KM, KR, KB = V_MISC + 12, V_MISC + 13, V_MISC + 20
    g("L_p2:")
    ws2_dma(g, 1)
    p2_setup(g)
    g("L_p2c:")
    FXW = g.opts.get("fxw", 1)
    fx = f"buffer_load_dword {v(V_T7)}, {v(V_FXP)}, {s(SRD_WS,4)}, {s(S_FXP)} offen sc1"
    if FXW == 0:
        g(fx)
    g(f"s_waitcnt vmcnt({10 if FXW == 0 else 9})")
    g.stamp('wsland')
    colsums(g)
    if FXW >= 2:
        g(f"s_waitcnt vmcnt({(0, 0, 4, 0)[FXW]})")
    if FXW:
        g(fx)
    g(f"s_mov_b32 {s(S_SPIN)}, {SPIN_LIMIT}")
    g.stamp('ws2rdy')
    g(f"""
    L_px:
    s_waitcnt vmcnt(0)
    v_cmp_ne_u32 vcc, {s(S_NONCE)}, {v(V_T7)}
    s_cbranch_vccz L_pxok
    {'s_sleep %d' % g.opts.get("slp", 2) if g.opts.get("slp", 2) else ''}
    buffer_load_dword {v(V_T7)}, {v(V_FXP)}, {s(SRD_WS,4)}, {s(S_FXP)} offen sc1
    s_sub_u32 {s(S_SPIN)}, {s(S_SPIN)}, 1
    s_cbranch_scc0 L_px
    L_pxok:
    """)
    g.stamp('x1ok')
    k0_issue(g)
    g("L_p2_go:")
    g(f"""
    s_barrier
    s_cmp_lt_u32 {s(S_CS)}, 4
    s_cbranch_scc0 L_p2_v
    """)

    def stats():
        for c in range(1, 6):
            g(f"v_add_f32 {v(STP)}, {v(STP)}, {v(STP+2*c)}")
            g(f"v_add_f32 {v(STP+1)}, {v(STP+1)}, {v(STP+2*c+1)}")
        mean_rstd(g, STP, STP + 1, KM, KR)
        for src, dst in ((KM, V_MEAN), (KR, V_R)):
            g(f"v_mov_b32 {v(dst)}, {v(src)}")
            g(f"v_mov_b32 {v(V_T0)}, {v(src)}")
            g.nop(2)
            g(f"v_permlane16_swap_b32 {v(dst)}, {v(V_T0)}")
            g.nop(1)
            g(f"v_mov_b32 {v(V_T0)}, {v(dst)}")
            g.nop(2)
            g(f"v_permlane32_swap_b32 {v(dst)}, {v(V_T0)}")
            g.nop(1)
        mu_operand(g, V_MEAN)
        g(f"""
        v_mul_f32 {v(KB)}, {v(KM)}, {v(KR)}
        v_mul_f32 {v(V_T0)}, {f2u(SCALE_LOG2E):#x}, {v(V_R)}
        v_mov_b32 {v(V_T1)}, {v(V_T0)}
        """)
    KIN = g.opts.get("kin", 28)
    KA = g.opts.get("kafter", 8)
    KB4 = g.opts.get("kpoll", 0)
    for typ in range(2):
        if typ == 1:
            g("L_p2_v:")
        g.stamp('k0')
        items = []
        order = ["K0", "K1"] + ["s"] * 6 + [f"K{q}" for q in range(2, 12)]
        nk = 12
        slots = [round((q + 0.5) * 72 / KIN) for q in range(KIN)] if KIN else []
        fill = capture(g, stats)
        for ks in range(12):
            for c in range(6):
                n = ks * 6 + c
                b = V_BUF + (n % 16) * 4
                ad = V_L16 if ks < 6 else A2[2]
                rd = [f"ds_read_b128 {v(b,4)}, {v(ad)} offset:{(ks%6)*6144+c*1024}"]
                cc = "0" if ks == 0 else v(ACC + 4 * c, 4)
                cm = []
                if c == 0:
                    cm.append(f"s_waitcnt vmcnt({len(order) - 1 - order.index(f'K{ks}')})")
                if typ == 0:
                    cm.append(f"v_mfma_f32_16x16x32_bf16 {v(ACC+4*c,4)}, {v(b,4)}, {v(V_XF+4*ks,4)}, {cc}")
                else:
                    cm.append(f"v_mfma_f32_16x16x32_bf16 {v(ACC+4*c,4)}, {v(V_XF+4*ks,4)}, {v(b,4)}, {cc}")
                if n >= 14 and fill:
                    cm.append(fill.pop(0))
                for _ in range(slots.count(n)):
                    cm.append(KL[nk])
                    order.append(f"K{nk}")
                    nk += 1
                items.append((rd, cm))
        assert not fill
        pipelined(g, items, 12, group=2)
        g.stamp('p2gemm')
        PK = V_BUF
        if typ == 0:
            for c in range(6):
                mfma16(g, v(ACC + 4 * c, 4), v(CT + 2 * c, 2), v(V_MU, 2))
            g.nop(3)
            for m in range(3):
                for i in range(4 * m, 4 * m + 4):
                    g(f"v_pk_mul_f32 {v(ACC+2*i,2)}, {v(ACC+2*i,2)}, {v(V_T0,2)}")
            for i in range(12):
                g(f"v_cvt_pk_bf16_f32 {v(PK+i)}, {v(ACC+2*i)}, {v(ACC+2*i+1)}")
            g.nop(1)
            for m in range(3):
                mfma32(g, v(CS, 4), v(V_ONES, 4), v(PK + 4 * m, 4), "0" if m == 0 else None)

            def st(sc):
                for m in range(3):
                    g(f"buffer_store_dwordx4 {v(PK+4*m,4)}, {v(V_L16)}, {s(SRD_WS,4)}, {s(S_O1)} offen offset:{m*1024}{sc}")
                g(f"""
                s_nop 3
                s_mov_b64 exec, {s(S_G0,2)}
                buffer_store_dword {v(CS)}, {v(V_I4)}, {s(SRD_WS,4)}, {s(S_O0)} offen{sc}
                s_mov_b64 exec, -1
                """)
            both_modes(g, st)
        else:
            for e in range(4):
                g(f"ds_bpermute_b32 {v(RT+e)}, {v(VTB+1)}, {v(KR)} offset:{4*e}")
            for c in range(6):
                mfma16(g, v(ACC + 4 * c, 4), v(V_MU, 2), v(CT + 2 * c, 2))
            g.nop(2)
            g("s_waitcnt lgkmcnt(0)")
            for c in range(6):
                for h in range(2):
                    g(f"v_pk_mul_f32 {v(ACC+4*c+2*h,2)}, {v(ACC+4*c+2*h,2)}, {v(RT+2*h,2)}")
            for i in range(12):
                g(f"v_cvt_pk_bf16_f32 {v(PK+i)}, {v(ACC+2*i)}, {v(ACC+2*i+1)}")

            def st(sc):
                for c in range(6):
                    vo, off = (V_L16, c * 1024) if c < 4 else (V_L16H, (c - 4) * 1024)
                    g(f"buffer_store_dwordx2 {v(PK+2*c,2)}, {v(vo)}, {s(SRD_WS,4)}, {s(S_O1)} offen offset:{off}{sc}")
            both_modes(g, st)
        if typ == 0:
            g("s_branch L_p2_done")
    g("L_p2_done:")
    g.stamp('p2st')
    for x in KL[nk:nk + KA]:
        g(x)
    g(f"""
    ds_write_b32 {v(VTB)}, {v(KR)}
    ds_write_b32 {v(VTB)}, {v(KB)} offset:256
    """)
    p3_setup(g)
    g(f"s_waitcnt vmcnt({KA}) lgkmcnt(0)")
    g("s_mov_b64 exec, 1")
    both_modes(g, lambda sc: g(f"buffer_store_dword {v(V_NONCE)}, {v(V_ZERO)}, {s(SRD_WS,4)}, {s(S_FL)} offen{sc}"))
    g("s_mov_b64 exec, -1")
    g.stamp('p2flag')
    for x in KL[nk + KA:nk + KA + KB4]:
        g(x)
    for sl in range(4):
        g(f"ds_read_b128 {v(RK+4*sl,4)}, {v(VTB+2)} offset:{sl*64}")
        g(f"ds_read_b128 {v(BK+4*sl,4)}, {v(VTB+2)} offset:{256+sl*64}")
    return nk + KA + KB4


S_Q, S_SQ, S_V0, S_V1 = S_TAG, S_TAG + 1, S_TAG + 2, S_TAG + 3


def p3_setup(g):
    g(f"""
    v_bfe_u32 {v(V_T0)}, {v(V_L)}, 2, 2
    s_and_b32 {s(S_T5)}, {s(S_J)}, 3
    s_add_u32 {s(S_T1)}, {s(S_T5)}, 4
    v_lshlrev_b32 {v(V_T2)}, 3, {v(V_T0)}
    v_add_u32 {v(V_T2)}, {s(S_T1)}, {v(V_T2)}
    s_lshl_b32 {s(S_T1)}, {s(S_RQ)}, 3
    v_add_u32 {v(V_T0)}, {s(S_T1)}, {v(V_T0)}
    v_and_b32 {v(V_T6)}, 16, {v(V_L)}
    v_cmp_eq_u32 vcc, 0, {v(V_T6)}
    s_lshl_b32 {s(S_T0)}, {s(S_G8)}, 7
    s_add_u32 {s(S_T0)}, {s(S_T0)}, {WS_F2}
    v_cndmask_b32 {v(V_T0)}, {v(V_T2)}, {v(V_T0)}, vcc
    v_lshlrev_b32 {v(V_T0)}, 10, {v(V_T0)}
    v_and_b32 {v(V_T1)}, 3, {v(V_L)}
    v_lshl_add_u32 {v(V_T0)}, {v(V_T1)}, 2, {v(V_T0)}
    s_bfe_u32 {s(S_T4)}, {s(S_J)}, 0x10002
    s_lshl_b32 {s(S_T6)}, {s(S_G8)}, 2
    s_add_u32 {s(S_T7)}, {s(S_T6)}, {s(S_T5)}
    s_add_u32 {s(S_T6)}, {s(S_T6)}, {s(S_RQ)}
    s_lshl_b32 {s(S_Q)}, {s(S_T6)}, 1
    s_add_u32 {s(S_Q)}, {s(S_Q)}, {s(S_T4)}
    s_mul_i32 {s(S_Q)}, {s(S_Q)}, 24576
    s_mul_i32 {s(S_T2)}, {s(S_W)}, 3072
    s_add_u32 {s(S_Q)}, {s(S_Q)}, {s(S_T2)}
    s_add_u32 {s(S_Q)}, {s(S_Q)}, {WS_QP}
    s_add_u32 m0, {s(S_T2)}, {L_WVO}
    s_lshl_b32 {s(S_SQ)}, {s(S_T6)}, 10
    s_lshl_b32 {s(S_T2)}, {s(S_T4)}, 7
    s_add_u32 {s(S_SQ)}, {s(S_SQ)}, {s(S_T2)}
    s_add_u32 {s(S_SQ)}, {s(S_SQ)}, {WS_SQ}
    s_mul_i32 {s(S_V1)}, {s(S_T7)}, 49152
    s_mul_i32 {s(S_T2)}, {s(S_W)}, 12288
    s_add_u32 {s(S_V1)}, {s(S_V1)}, {s(S_T2)}
    s_add_u32 {s(S_V1)}, {s(S_V1)}, {WS_VP}
    s_lshr_b32 {s(S_T2)}, {s(S_RQ)}, 1
    s_mul_i32 {s(S_T2)}, {s(S_T2)}, 6144
    s_add_u32 {s(S_V0)}, {s(S_V1)}, {s(S_T2)}
    s_sub_u32 {s(S_V1)}, {s(S_V1)}, {s(S_T2)}
    s_add_u32 {s(S_V1)}, {s(S_V1)}, 6144
    s_add_u32 {s(S_T3)}, {s(S_Q)}, 12288
    v_lshl_add_u32 {v(V_T5)}, {v(V_G)}, 8, {v(V_I4)}
    v_add_u32 {v(V_AD)}, {L_WVO}, {v(V_L16)}
    """)
    g(f"""
    s_lshl_b32 {s(S_T1)}, {s(S_W)}, 11
    v_add_u32 {v(V_AD+1)}, {s(S_T1)}, {v(V_L16)}
    s_lshl_b32 {s(S_T1)}, {s(S_W)}, 8
    s_add_u32 {s(S_T1)}, {s(S_T1)}, {L_ML}
    v_lshlrev_b32 {v(V_T1)}, 3, {v(V_I)}
    v_add_u32 {v(V_AD+2)}, {s(S_T1)}, {v(V_T1)}
    s_and_b32 {s(S_T7)}, {s(S_W)}, 1
    s_lshl_b32 {s(S_T1)}, {s(S_T7)}, 7
    s_add_u32 {s(S_T1)}, {s(S_T1)}, {L_ML}
    v_add_u32 {v(V_AD+3)}, {s(S_T1)}, {v(V_T1)}
    s_lshl_b32 {s(S_T1)}, {s(S_W)}, 13
    v_add_u32 {v(213)}, {s(S_T1)}, {v(V_L16)}
    s_lshl_b32 {s(S_O1)}, {s(S_T4)}, 1
    s_add_u32 {s(S_O1)}, {s(S_O1)}, {s(S_T7)}
    s_lshl_b32 {s(S_O1)}, {s(S_O1)}, 6
    s_lshl_b32 {s(S_T2)}, {s(S_RQ)}, 4
    s_add_u32 {s(S_O1)}, {s(S_O1)}, {s(S_T2)}
    s_lshl_b32 {s(S_T2)}, {s(S_G8)}, 8
    s_add_u32 {s(S_O1)}, {s(S_O1)}, {s(S_T2)}
    s_mul_i32 {s(S_O1)}, {s(S_O1)}, 768
    s_mul_i32 {s(S_T2)}, {s(S_T5)}, 192
    s_add_u32 {s(S_O1)}, {s(S_O1)}, {s(S_T2)}
    s_lshr_b32 {s(S_T2)}, {s(S_W)}, 1
    s_lshl_b32 {s(S_T2)}, {s(S_T2)}, 6
    s_add_u32 {s(S_O0)}, {s(S_T2)}, {s(S_O1)}
    v_mul_u32_u24 {v(V_T2)}, 768, {v(V_I)}
    v_lshl_add_u32 {v(A2[0])}, {v(V_G)}, 4, {v(V_T2)}
    """)


def p3(g, nk):
    SA = V_ACC
    LS = V_ACC + 32
    MX = V_ACC + 40
    SQ = V_ACC + 42
    OA = V_BUF
    QB = V_BUF + 32
    PF = V_XF
    BS = OA
    V_RW, V_MW, V_MR, V_RR, V_OO = V_AD + 1, V_AD + 2, V_AD + 3, 213, A2[0]
    poll(g, V_T0, s(S_T0), s(S_NONCE), "p2f")
    g.stamp('e3ok')
    for u in range(2):
        g(f"buffer_load_dword {v(SQ+u)}, {v(V_T5)}, {s(SRD_WS,4)}, {s(S_SQ)} offen offset:{u*64} sc1")
    for q in range(3):
        g(f"buffer_load_dwordx4 {v(V_L16)}, {s(SRD_WS,4)}, {s(S_Q)} offen offset:{q*1024} sc1 lds")
    g(f"s_add_u32 m0, m0, 12288")
    g("s_nop 0")
    for q in range(3):
        g(f"buffer_load_dwordx4 {v(V_L16)}, {s(SRD_WS,4)}, {s(S_T3)} offen offset:{q*1024} sc1 lds")
    vl = []
    for pr, so in ((0, S_V0), (1, S_V1)):
        for c in range(6):
            vo, off = (V_L16, c * 1024) if c < 4 else (V_L16H, (c - 4) * 1024)
            vl.append(f"buffer_load_dwordx4 {a(A_V+(pr*6+c)*4,4)}, {v(vo)}, {s(SRD_WS,4)}, {s(so)} offen offset:{off} sc1")
    late = KL[nk:48] + vl + KL[48:]
    nkl = 48 - min(nk, 48)
    g("s_waitcnt vmcnt(6) lgkmcnt(0)")
    for u in range(2):
        g(f"v_mov_b32 {v(SG+u)}, {v(SQ+u)}")
    g.nop(1)
    for u in range(2):
        g(f"v_permlane16_swap_b32 {v(SQ+u)}, {v(SG+u)}")
    for u in range(2):
        g(f"v_add_f32 {v(SQ+u)}, {v(SQ+u)}, {v(SG+u)}")
    for u in range(2):
        g(f"v_mov_b32 {v(SG+u)}, {v(SQ+u)}")
    g.nop(1)
    for u in range(2):
        g(f"v_permlane32_swap_b32 {v(SQ+u)}, {v(SG+u)}")
    for u in range(2):
        g(f"v_add_f32 {v(SG+2+2*u)}, {v(SQ+u)}, {v(SG+u)}")
        g(f"v_add_f32 {v(SG+3+2*u)}, {v(SQ+u)}, {v(SG+u)}")
    for u in range(2):
        for i in range(8):
            g(f"v_pk_mul_f32 {v(BS+16*u+2*i,2)}, {v(BK+2*i,2)}, {v(SG+2+2*u,2)}")
    g(f"""
    s_waitcnt vmcnt(3)
    s_barrier
    """)
    g.stamp('qland')

    def softmax_lines(u, pk):
        d = SA + u * 16
        TMP = SG + 4 * u
        L = []
        if pk:
            for i in range(8):
                L.append(f"v_pk_fma_f32 {v(d+2*i,2)}, {v(d+2*i,2)}, {v(RK+2*i,2)}, {v(BS+16*u+2*i,2)} neg_lo:[0,0,1] neg_hi:[0,0,1]")
        else:
            for i in range(16):
                L.append(f"v_fma_f32 {v(d+i)}, {v(d+i)}, {v(RK+i)}, -{v(BS+16*u+i)}")
        nf = len(L)
        L.append(f"v_max3_f32 {v(MX+u)}, {v(d)}, {v(d+1)}, {v(d+2)}")
        for i in range(3, 15, 2):
            L.append(f"v_max3_f32 {v(MX+u)}, {v(MX+u)}, {v(d+i)}, {v(d+i+1)}")
        L.append(f"v_max_f32 {v(MX+u)}, {v(MX+u)}, {v(d+15)}")
        L += capture(g, lambda: xlane_sum(g, MX + u, TMP + 2, "v_max_f32"))
        if pk:
            L.append(f"v_mov_b32 {v(TMP)}, {v(MX+u)}")
            L.append(f"v_mov_b32 {v(TMP+1)}, {v(MX+u)}")
            for i in range(8):
                L.append(f"v_pk_add_f32 {v(d+2*i,2)}, {v(d+2*i,2)}, {v(TMP,2)} neg_lo:[0,1] neg_hi:[0,1]")
        else:
            for i in range(16):
                L.append(f"v_sub_f32 {v(d+i)}, {v(d+i)}, {v(MX+u)}")
        for i in range(16):
            L.append(f"v_exp_f32 {v(d+i)}, {v(d+i)}")
        return L, nf
    OV = g.opts.get("ov", 0)
    sm0, _ = softmax_lines(0, not OV)
    items = []
    rest = list(late)
    issued = 0
    LSPAN = g.opts.get("lspan", 80)
    L0 = g.opts.get("l0", 0)
    lpos = [L0 + int(q * (LSPAN - L0) / max(len(rest), 1)) for q in range(len(rest))]
    for u in range(2):
        for ks in range(12):
            b = QB + ((u * 12 + ks) % 8) * 4
            rd = [f"ds_read_b128 {v(b,4)}, {v(V_AD)} offset:{u*12288+ks*1024}"]
            cm = []
            for sl in range(4):
                kidx = sl * 12 + ks
                if kidx >= nk and u == 0:
                    assert issued - (kidx - nk) - 1 >= 0
                    cm.append(f"s_waitcnt vmcnt({issued - (kidx - nk) - 1})")
                d = SA + u * 16 + sl * 4
                cm.append(f"v_mfma_f32_16x16x32_bf16 {v(d,4)}, {kreg(sl,ks)}, {v(b,4)}, {'0' if ks == 0 else v(d,4)}")
                pos = u * 48 + ks * 4 + sl
                for _ in range(lpos.count(pos)):
                    cm.append(rest.pop(0))
                    issued += 1
                if u == 1 and OV and pos >= 50:
                    take = 1 if sm0 and sm0[0].startswith("v_exp") and g.opts.get("e1", 0) else 2
                    cm += sm0[:take]
                    sm0 = sm0[take:]
            pre = []
            items.append((rd, cm, pre, issued))
    assert not rest
    QD = g.opts.get('qd', 4)
    before = items[12 - QD - 1][3]
    items[12][2].extend([f"s_waitcnt vmcnt({before})", "s_barrier"])
    pipelined(g, items, QD)
    for x in sm0:
        g(x)
    g.stamp('sdone')

    def cvts(u, odd):
        L = []
        for sl in range(4):
            for h in range(2):
                dst = PF + u * 8 + (sl >> 1) * 4 + ((sl & 1) ^ odd) * 2 + h
                src = SA + u * 16 + sl * 4 + 2 * h
                L.append(f"v_cvt_pk_bf16_f32 {v(dst)}, {v(src)}, {v(src+1)}")
        return L

    def cvt_branch(u):
        lo, lj = g.label("odd"), g.label("cj")
        g(f"s_bitcmp1_b32 {s(S_RQ)}, 0")
        g(f"s_cbranch_scc1 {lo}")
        for x in cvts(u, 0):
            g(x)
        g(f"s_branch {lj}")
        g(f"{lo}:")
        for x in cvts(u, 1):
            g(x)
        g(f"{lj}:")

    def pv_lines(u):
        L = []
        for pr in range(2):
            p = v(PF + u * 8 + pr * 4, 4)
            for c in range(6):
                d = OA + u * 24 + c * 4
                L.append(f"v_mfma_f32_16x16x32_bf16 {v(d,4)}, {a(A_V+(pr*6+c)*4,4)}, {p}, {'0' if pr == 0 else v(d,4)}")
            L.append(f"v_mfma_f32_16x16x32_bf16 {v(LS+4*u,4)}, {v(V_ONES,4)}, {p}, {'0' if pr == 0 else v(LS+4*u,4)}")
        return L
    cvt_branch(0)
    sm1, _ = softmax_lines(1, True)
    ex = sm1[-16:]
    for x in sm1[:-16]:
        g(x)
    g("s_waitcnt vmcnt(0)")
    for x in pv_lines(0):
        g(x)
        if ex:
            g(ex.pop(0))
    for x in ex:
        g(x)
    g.stamp('smax')
    cvt_branch(1)
    OUT = V_ACC
    unp = []
    for rnd in range(2):
        for i in range(8):
            src = V_RES + 4 * rnd + (i >> 1)
            unp.append(f"v_and_b32 {v(OUT+8*rnd+i)}, 0xffff0000, {v(src)}" if i & 1 else
                       f"v_lshlrev_b32 {v(OUT+8*rnd+i)}, 16, {v(src)}")
    g(f"v_mov_b32 {v(V_T4)}, {v(MX)}")
    g(f"v_mov_b32 {v(V_T5)}, {v(LS)}")
    w0 = [f"ds_write_b128 {v(V_RW)}, {v(OA+(2*m+h)*4,4)} offset:{2*m*8192+h*1024}" for m in range(3) for h in range(2)]
    w0.append(f"ds_write_b64 {v(V_MW)}, {v(V_T4,2)}")
    for n, x in enumerate(pv_lines(1)):
        g(x)
        if n % 2 == 1:
            g(w0.pop(0))
        else:
            g(unp.pop(0))
    g.stamp('pvdone')
    for x in unp[:3]:
        g(x)
    unp = unp[3:]
    for m in range(3):
        for h in range(2):
            g(f"ds_write_b128 {v(V_RW)}, {v(OA+24+(2*m+h)*4,4)} offset:{(2*m+1)*8192+h*1024}")
            g(unp.pop(0))
    g(f"""
    v_mov_b32 {v(V_T6)}, {v(MX+1)}
    v_mov_b32 {v(V_T7)}, {v(LS+4)}
    ds_write_b64 {v(V_MW)}, {v(V_T6,2)} offset:128
    s_waitcnt lgkmcnt(0)
    s_barrier
    """)
    g.stamp('redbar')
    ML = V_ACC + 16
    FW = V_ACC + 24
    RD = V_BUF
    for w in range(4):
        g(f"ds_read_b64 {v(ML+2*w,2)}, {v(V_MR)} offset:{w*256}")
    for w in range(4):
        for h in range(2):
            g(f"ds_read_b128 {v(RD+w*8+h*4,4)}, {v(V_RR)} offset:{w*2048+h*1024}")
    g(f"""
    s_waitcnt lgkmcnt(8)
    v_max3_f32 {v(V_T3)}, {v(ML)}, {v(ML+2)}, {v(ML+4)}
    v_max_f32 {v(V_T3)}, {v(V_T3)}, {v(ML+6)}
    """)
    for w in range(4):
        g(f"v_sub_f32 {v(FW+2*w)}, {v(ML+2*w)}, {v(V_T3)}")
    for w in range(4):
        g(f"v_exp_f32 {v(FW+2*w)}, {v(FW+2*w)}")
    g(f"""
    s_waitcnt lgkmcnt(2)
    s_cmp_ge_u32 {s(S_W)}, 2
    s_cbranch_scc1 L_nord2
    """)
    for w in range(4):
        for h in range(2):
            g(f"ds_read_b128 {v(RD+32+w*8+h*4,4)}, {v(V_RR)} offset:{32768+w*2048+h*1024}")
    g(f"""
    s_waitcnt lgkmcnt(8)
    s_branch L_rd1
    L_nord2:
    s_waitcnt lgkmcnt(0)
    L_rd1:
    v_mul_f32 {v(V_T3)}, {v(FW)}, {v(ML+1)}
    v_fmac_f32 {v(V_T3)}, {v(FW+2)}, {v(ML+3)}
    v_fmac_f32 {v(V_T3)}, {v(FW+4)}, {v(ML+5)}
    v_fmac_f32 {v(V_T3)}, {v(FW+6)}, {v(ML+7)}
    v_rcp_f32 {v(V_T3)}, {v(V_T3)}
    s_nop 0
    """)
    for w in range(4):
        g(f"v_mul_f32 {v(FW+2*w)}, {v(FW+2*w)}, {v(V_T3)}")
        g(f"v_mov_b32 {v(FW+2*w+1)}, {v(FW+2*w)}")
    osc = " sc1" if g.opts.get("outsc1", 0) else (" nt" if g.opts.get("outnt", 0) else "")
    for rnd in range(2):
        if rnd == 1:
            g(f"""
            s_cmp_ge_u32 {s(S_W)}, 2
            s_cbranch_scc1 L_fin
            """)
        for w in range(4):
            if rnd == 1:
                g(f"s_waitcnt lgkmcnt({6-2*w})")
            for i in range(4):
                g(f"v_pk_fma_f32 {v(OUT+8*rnd+2*i,2)}, {v(RD+32*rnd+w*8+2*i,2)}, {v(FW+2*w,2)}, {v(OUT+8*rnd+2*i,2)}")
        PK = V_ACC + 32 + 4 * rnd
        if rnd == 0 and g.opts.get("perturb", 0):
            g(f"""
            s_or_b32 {s(S_T0)}, s2, {s(S_W)}
            s_cmp_lg_u32 {s(S_T0)}, 0
            s_cbranch_scc1 L_nopert
            s_mov_b64 exec, 1
            v_add_f32 {v(OUT)}, {f2u(g.opts["perturb"]/1000.):#x}, {v(OUT)}
            s_mov_b64 exec, -1
            L_nopert:
            """)
        for i in range(4):
            g(f"v_cvt_pk_bf16_f32 {v(PK+i)}, {v(OUT+8*rnd+2*i)}, {v(OUT+8*rnd+2*i+1)}")
        if rnd == 0:
            g(f"buffer_store_dwordx4 {v(PK,4)}, {v(V_OO)}, {s(SRD_OUT,4)}, {s(S_O0)} offen{osc}")
        else:
            g(f"buffer_store_dwordx4 {v(PK,4)}, {v(V_OO)}, {s(SRD_OUT,4)}, {s(S_O1)} offen offset:128{osc}")
    g("L_fin:")


def epilogue(g):
    g(f"""
    s_or_b32 {s(S_T0)}, s2, {s(S_W)}
    s_cmp_lg_u32 {s(S_T0)}, 0
    s_cbranch_scc1 L_nononce
    s_mov_b64 exec, 1
    buffer_store_dword {v(V_NONCE)}, {v(V_ZERO)}, {s(SRD_WS,4)}, 0 offen
    s_mov_b64 exec, -1
    L_nononce:
    """)
    if g.stamps:
        g(f"""
        s_cmp_lg_u32 {s(S_W)}, 0
        s_cbranch_scc1 L_end
        s_waitcnt vmcnt(0)
        s_memtime s[98:99]
        s_memrealtime s[100:101]
        s_waitcnt lgkmcnt(0)
        s_lshl_b32 {s(S_T0)}, s2, 8
        s_add_u32 {s(S_T0)}, {s(S_T0)}, {WS_STAMP}
        v_mov_b32 {v(V_T1)}, 0
        s_mov_b64 exec, 1
        """)
        for i in range(20):
            g(f"v_mov_b32 {v(V_T0)}, s{S_STAMP+i}")
            g(f"buffer_store_dword {v(V_T0)}, {v(V_T1)}, {s(SRD_WS,4)}, {s(S_T0)} offen offset:{4*i}")
            g("s_nop 1")
    if g.opts.get("dbg", 0):
        g(f"""
        s_cmp_lg_u32 {s(S_W)}, 0
        s_cbranch_scc1 L_end
        s_cmp_ge_u32 {s(S_CS)}, 6
        s_cbranch_scc1 L_end
        s_waitcnt vmcnt(0)
        s_memrealtime s[98:99]
        s_waitcnt lgkmcnt(0)
        s_not_b32 s84, s84
        v_mov_b32 {v(V_T1)}, 0
        s_mov_b64 exec, 1
        """)
        for i in range(8):
            g(f"v_mov_b32 {v(V_T0)}, s{84+2*i}")
            g(f"global_atomic_umax {v(V_T1)}, {v(V_T0)}, s[82:83] offset:{4*i}")
            g("s_nop 1")
    g("L_end:")
    g("s_endpgm")


def build(stamps=False, opts=None):
    g = G(stamps, opts)
    prologue(g)
    p0_issue(g)
    g("s_branch L_main")
    products(g)
    g("L_main:")
    p0_main(g)
    p1(g)
    nk = p2(g)
    p3(g, nk)
    epilogue(g)
    products_body(g)
    g("L_code_end:")
    hdr = f"""; TimeSformer divided space-time attention block, one persistent launch (256 workgroups, one per CU).
{('; wsstamp:%d' % WS_STAMP + chr(10)) if stamps else ''}; @launch grid=(256,1,1) block=(256,1,1) lds={LDS_SIZE}
.amdgcn_target "amdgcn-amd-amdhsa--gfx950"
.text
.globl {KNAME}
.p2align 8
.type {KNAME},@function
{KNAME}:
"""
    ftr = f"""
.section .rodata,"a"
.p2align 6
.amdhsa_kernel {KNAME}
  .amdhsa_next_free_vgpr 512
  .amdhsa_next_free_sgpr 102
  .amdhsa_accum_offset 256
  .amdhsa_group_segment_fixed_size 0
  .amdhsa_kernarg_size 64
  .amdhsa_user_sgpr_count 2
  .amdhsa_user_sgpr_kernarg_segment_ptr 1
  .amdhsa_system_sgpr_workgroup_id_x 1
.end_amdhsa_kernel
"""
    return hdr + "\n".join(g.L) + ftr


if __name__ == "__main__":
    out = sys.argv[1]
    stamps = None
    opts = {}
    for x in sys.argv[2:]:
        if x.startswith("--stamps="):
            stamps = ["start"] + x.split("=")[1].split(",")
            assert len(stamps) <= 7
        elif "=" in x:
            k, val = x.split("=")
            opts[k] = int(val)
    open(out, "w").write(build(stamps, opts))
```

```python
import sys, math

KNAME = "standalone__video_timesformer__vision_kernel"

WS_NONCE = 0
WS_FXCC = 0x1000
WS_F2 = 0x13000
WS_SP = 0x1B000
WS_STX = 0x7B000
WS_SQ = 0xAB000
WS_WVOT = 0xB3000
WS_WS2 = 0xFB000
WS_X1 = 0x18B000
WS_QP = 0x30B000
WS_VP = 0x48B000
WS_CSP = 0x60B000
WS_FP = 0x617000
FP_REP = 96 * 128
WS_FX = WS_FP + 8 * FP_REP
FX_REP = 192 * 128
WS_STAMP = WS_FX + 8 * FX_REP
WS_SIZE = WS_STAMP + 256 * 256

L_W = 0
L_WVO = 98304
L_T = 81920
L_CT0 = 147456
L_CT1 = L_CT0 + 1024
L_CT2 = L_CT1 + 512
L_ML = L_CT2 + 1024
L_ST = L_ML + 1024
L_SG = L_ST + 3072
LDS_SIZE = L_SG + 512

SPIN_LIMIT = 40000
SCALE_LOG2E = (384 ** -0.5) * math.log2(math.e)


def f2u(x):
    import struct
    return struct.unpack("<I", struct.pack("<f", x))[0]


DBG_STAMPS = ['chunk0', 'sstored', 'x1flag', 'k0', 'e3ok', 'pvdone']


class G:
    def __init__(self, stamps=False, opts=None):
        self.L = []
        self.stamps = stamps
        self.nstamp = 0
        self.uid = 0
        self.opts = opts or {}

    def __call__(self, s):
        for line in s.split("\n"):
            line = line.strip()
            if line:
                self.L.append("    " + line if not line.endswith(":") else line)

    def label(self, p):
        self.uid += 1
        return f"L_{p}_{self.uid}"

    def nop(self, n):
        while n > 0:
            k = min(n, 16)
            self(f"s_nop {k-1}")
            n -= k

    def stamp(self, name, wait=True):
        if self.opts.get("dbg", 0) and name in DBG_STAMPS:
            k = 86 + 2 * DBG_STAMPS.index(name)
            self(f"s_memrealtime s[{k}:{k+1}]")
        if self.stamps and name in self.stamps:
            idx = 1 + self.stamps.index(name)
            self(f"s_memtime s[{S_STAMP+2*idx}:{S_STAMP+2*idx+1}]")
            if wait:
                self("s_waitcnt lgkmcnt(0)")


def v(a, n=1):
    return f"v{a}" if n == 1 else f"v[{a}:{a+n-1}]"


def a(x, n=1):
    return f"a{x}" if n == 1 else f"a[{x}:{x+n-1}]"


def s(x, n=1):
    return f"s{x}" if n == 1 else f"s[{x}:{x+n-1}]"


S_X, S_WQT, S_WOT, S_WQS, S_WOS, S_OUT, S_DBG, S_WS = 4, 6, 8, 10, 12, 14, 16, 18
S_G8, S_J, S_W, S_NONCE, S_ME = 20, 21, 22, 23, 24
S_RB = 25
S_T0, S_T1, S_T2, S_T3 = 27, 28, 29, 30
S_SPIN = 31
SRD_WS = 32
SRD_A = 36
SRD_B = 40
SRD_OUT = 44
S_VALID = 48
S_G0 = 50
S_TAG = 52
S_M = 56
S_ONES = 58
S_RQ = 59
S_CS = 60
S_SLOW = 61
S_F1 = 62
S_F2 = 63
S_T4, S_T5, S_T6, S_T7 = 64, 65, 66, 67
S_DIAG = 100
S_STAMP = 82

V_TID, V_L, V_I, V_G = 0, 1, 2, 3
V_T0, V_T1, V_T2, V_T3, V_T4, V_T5, V_T6, V_T7 = 4, 5, 6, 7, 8, 9, 10, 11
V_ONES = 12
V_XF = 16
V_MU = 64
V_R = 66
V_MEAN = 67
V_L16 = 68
V_MASK = 69
V_S1A, V_S1B, V_S2A, V_S2B = 70, 71, 72, 73
V_AD = 74
V_BUF = 80
V_ACC = 144
V_MISC = 192
V_ZERO, V_NONCE, V_PA, V_PB = 228, 229, 230, 231
V_PS = 246


def row_stats_dots(g, lo, hi):
    for r in range(lo, hi):
        g(f"v_dot2c_f32_bf16 {v(V_S1A + (r & 1))}, {s(S_ONES)}, {v(V_XF + r)}")
        g(f"v_dot2c_f32_bf16 {v(V_S2A + (r & 1))}, {v(V_XF + r)}, {v(V_XF + r)}")


def xlane_sum(g, r, t, op="v_add_f32"):
    g(f"v_mov_b32 {v(t)}, {v(r)}")
    g.nop(2)
    g(f"v_permlane16_swap_b32 {v(r)}, {v(t)}")
    g.nop(1)
    g(f"{op} {v(r)}, {v(r)}, {v(t)}")
    g(f"v_mov_b32 {v(t)}, {v(r)}")
    g.nop(2)
    g(f"v_permlane32_swap_b32 {v(r)}, {v(t)}")
    g.nop(1)
    g(f"{op} {v(r)}, {v(r)}, {v(t)}")


def row_stats_finish(g):
    g.nop(3)
    g(f"v_add_f32 {v(V_S1A)}, {v(V_S1A)}, {v(V_S1B)}")
    g(f"v_add_f32 {v(V_S2A)}, {v(V_S2A)}, {v(V_S2B)}")
    xlane_sum(g, V_S1A, V_T0)
    xlane_sum(g, V_S2A, V_T1)
    g(f"""
    v_mul_f32 {v(V_MEAN)}, {f2u(1/384.):#x}, {v(V_S1A)}
    v_mul_f32 {v(V_T0)}, {f2u(1/384.):#x}, {v(V_S2A)}
    v_fma_f32 {v(V_T0)}, -{v(V_MEAN)}, {v(V_MEAN)}, {v(V_T0)}
    v_max_f32 {v(V_T0)}, 0, {v(V_T0)}
    v_add_f32 {v(V_T0)}, {f2u(1e-5):#x}, {v(V_T0)}
    v_rsq_f32 {v(V_R)}, {v(V_T0)}
    v_cvt_pk_bf16_f32 {v(V_T1)}, -{v(V_MEAN)}, -{v(V_MEAN)}
    v_lshlrev_b32 {v(V_T1)}, 16, {v(V_T1)}
    v_sub_f32 {v(V_T1)}, -{v(V_MEAN)}, {v(V_T1)}
    v_cvt_pk_bf16_f32 {v(V_T1)}, -{v(V_MEAN)}, {v(V_T1)}
    v_cndmask_b32 {v(V_MU)}, 0, {v(V_T1)}, {s(S_G0,2)}
    v_cndmask_b32 {v(V_MU+1)}, 0, {v(V_T1)}, {s(S_G0,2)}
    """)


def mean_rstd(g, s1, s2, mean, rstd):
    g(f"""
    v_mul_f32 {v(mean)}, {f2u(1/384.):#x}, {v(s1)}
    v_mul_f32 {v(rstd)}, {f2u(1/384.):#x}, {v(s2)}
    v_fma_f32 {v(rstd)}, -{v(mean)}, {v(mean)}, {v(rstd)}
    v_max_f32 {v(rstd)}, 0, {v(rstd)}
    v_add_f32 {v(rstd)}, {f2u(1e-5):#x}, {v(rstd)}
    v_rsq_f32 {v(rstd)}, {v(rstd)}
    """)


def mu_operand(g, mean):
    g(f"""
    v_cvt_pk_bf16_f32 {v(V_T1)}, -{v(mean)}, -{v(mean)}
    v_lshlrev_b32 {v(V_T1)}, 16, {v(V_T1)}
    v_sub_f32 {v(V_T1)}, -{v(mean)}, {v(V_T1)}
    v_cvt_pk_bf16_f32 {v(V_T1)}, -{v(mean)}, {v(V_T1)}
    v_cndmask_b32 {v(V_MU)}, 0, {v(V_T1)}, {s(S_G0,2)}
    v_cndmask_b32 {v(V_MU+1)}, 0, {v(V_T1)}, {s(S_G0,2)}
    """)


def colsum_pack(g, src, dst):
    g(f"""
    v_cvt_pk_bf16_f32 {v(dst)}, {v(src)}, {v(src)}
    v_lshlrev_b32 {v(dst+1)}, 16, {v(dst)}
    v_sub_f32 {v(dst+1)}, {v(src)}, {v(dst+1)}
    v_cvt_pk_bf16_f32 {v(dst+1)}, {v(dst+1)}, {v(dst+1)}
    """)


def poll(g, voff, soff, want, name, slp=0):
    lp, done = g.label(name), g.label(name + "_ok")
    g(f"s_mov_b32 {s(S_SPIN)}, {SPIN_LIMIT}")
    g(f"{lp}:")
    g(f"""
    buffer_load_dword {v(V_T7)}, {v(voff)}, {s(SRD_WS,4)}, {soff} offen sc1
    s_waitcnt vmcnt(0)
    v_cmp_ne_u32 vcc, {want}, {v(V_T7)}
    s_cbranch_vccz {done}
    {'s_sleep %d' % slp if slp else ''}
    s_sub_u32 {s(S_SPIN)}, {s(S_SPIN)}, 1
    s_cbranch_scc0 {lp}
    {done}:
    """)


def mfma32(g, d, A, B, c=None):
    g(f"v_mfma_f32_16x16x32_bf16 {d}, {A}, {B}, {c if c is not None else d}")


def mfma16(g, d, A, B, c=None):
    g(f"v_mfma_f32_16x16x16_bf16 {d}, {A}, {B}, {c if c is not None else d}")


def pipelined(g, items, depth_reads, group=1):
    n = len(items)
    issued = 0
    cum = [0]
    for it in items:
        cum.append(cum[-1] + len(it[0]))
    for i in range(0, n, group):
        hi = min(i + group, n)
        while issued < n and (issued < hi or cum[issued + 1] - cum[i] <= depth_reads):
            if len(items[issued]) > 2:
                for p in items[issued][2]:
                    g(p)
            for r in items[issued][0]:
                g(r)
            issued += 1
        g(f"s_waitcnt lgkmcnt({cum[issued] - cum[hi]})")
        for k in range(i, hi):
            for c in items[k][1]:
                g(c)


def capture(g, fn):
    keep = g.L
    g.L = []
    fn()
    out = [x.strip() for x in g.L]
    g.L = keep
    return out


def prologue(g):
    g(f"""
    s_cmp_ge_u32 s2, 256
    s_cbranch_scc1 L_end
    s_load_dwordx16 s[4:19], s[0:1], 0
    """)
    if g.opts.get("dbg", 0):
        g("s_load_dwordx2 s[82:83], s[0:1], 48")
        g("s_memrealtime s[84:85]")
    if g.stamps:
        for i in range(S_STAMP, 100):
            g(f"s_mov_b32 s{i}, 0")
        g(f"s_memrealtime s[{S_STAMP}:{S_STAMP+1}]")
        g.stamp('start', False)
    g(f"""
    s_and_b32 {s(S_G8)}, s2, 7
    s_lshr_b32 {s(S_J)}, s2, 3
    v_lshrrev_b32 {v(V_T0)}, 6, v0
    v_and_b32 {v(V_L)}, 63, v0
    v_readfirstlane_b32 {s(S_W)}, {v(V_T0)}
    v_and_b32 {v(V_I)}, 15, v0
    v_bfe_u32 {v(V_G)}, v0, 4, 2
    v_lshlrev_b32 {v(V_L16)}, 4, {v(V_L)}
    """)
    if g.opts.get("codepf", 1):
        NL = g.opts.get("cpl", 2)
        g(f"""
        s_getpc_b64 {s(S_M,2)}
        L_pc:
        s_lshl_b32 {s(S_T0)}, {s(S_J)}, 2
        s_add_u32 {s(S_T0)}, {s(S_T0)}, {s(S_W)}
        s_mul_i32 {s(S_T0)}, {s(S_T0)}, {128*NL}
        s_min_u32 {s(S_T0)}, {s(S_T0)}, L_code_end-L_pc-{128*NL}
        v_lshlrev_b32 {v(V_T0)}, 7, {v(V_L)}
        v_add_u32 {v(V_T1)}, {s(S_T0)}, {v(V_T0)}
        s_mov_b64 exec, {(1 << NL) - 1}
        global_load_dword {v(V_MISC+62)}, {v(V_T1)}, {s(S_M,2)}
        s_mov_b64 exec, -1
        """)
    g(f"""
    s_lshr_b32 {s(S_RQ)}, {s(S_J)}, 3
    s_and_b32 {s(S_CS)}, {s(S_J)}, 7
    s_lshl_b32 {s(S_RB)}, {s(S_RQ)}, 3
    s_add_u32 {s(S_RB)}, {s(S_RB)}, {s(S_G8)}
    s_mov_b32 {s(SRD_A+3)}, 0x20000
    s_mov_b32 {s(SRD_B+3)}, 0x20000
    s_mov_b32 {s(SRD_WS+3)}, 0x20000
    s_mov_b32 {s(SRD_WS+2)}, {WS_SIZE}
    s_cmp_ge_u32 {s(S_CS)}, 6
    s_cbranch_scc1 L_products
    """)
    p0_pre(g)
    g(f"""
    s_waitcnt lgkmcnt(0)
    s_load_dword {s(S_NONCE)}, {s(S_WS,2)}, {WS_NONCE}
    """)


def common_consts(g):
    g(f"""
    s_mov_b32 {s(SRD_WS)}, {s(S_WS)}
    s_mov_b32 {s(SRD_WS+1)}, {s(S_WS+1)}
    s_mov_b32 {s(SRD_OUT)}, {s(S_OUT)}
    s_mov_b32 {s(SRD_OUT+1)}, {s(S_OUT+1)}
    s_mov_b32 {s(SRD_OUT+2)}, 1572864
    s_mov_b32 {s(SRD_OUT+3)}, 0x20000
    s_mov_b32 {s(S_ONES)}, 0x3f803f80
    s_getreg_b32 {s(S_ME)}, hwreg(HW_REG_XCC_ID, 0, 3)
    v_mov_b32 {v(V_ONES)}, {s(S_ONES)}
    v_mov_b32 {v(V_ONES+1)}, {s(S_ONES)}
    v_mov_b32 {v(V_ONES+2)}, {s(S_ONES)}
    v_mov_b32 {v(V_ONES+3)}, {s(S_ONES)}
    v_mov_b32 {v(V_MASK)}, 0xffffff00
    v_mov_b32 {v(V_ZERO)}, 0
    v_cmp_eq_u32 {s(S_G0,2)}, 0, {v(V_G)}
    v_lshrrev_b32 {v(V_T0)}, 1, {v(V_G)}
    v_lshrrev_b32 {v(V_T1)}, 3, {v(V_I)}
    v_cmp_eq_u32 {s(S_VALID,2)}, {v(V_T0)}, {v(V_T1)}
    v_lshrrev_b32 {v(V_T1)}, 2, {v(V_I)}
    v_cmp_eq_u32 {s(S_DIAG,2)}, {v(V_G)}, {v(V_T1)}
    """)
    g(f"""
    s_lshl_b32 {s(S_T0)}, {s(S_G8)}, 7
    s_add_u32 {s(S_T0)}, {s(S_T0)}, {WS_FXCC}
    v_and_b32 {v(V_T1)}, 31, {v(V_L)}
    v_lshlrev_b32 {v(V_T1)}, 10, {v(V_T1)}
    v_add_u32 {v(V_PA)}, {s(S_T0)}, {v(V_T1)}
    v_min_u32 {v(V_PB)}, 11, {v(V_L)}
    s_mul_i32 {s(S_T1)}, {s(S_G8)}, {FP_REP}
    v_lshlrev_b32 {v(V_PB)}, 7, {v(V_PB)}
    s_cmp_lt_u32 {s(S_CS)}, 4
    s_cselect_b32 {s(S_T0)}, 0, {12*128}
    s_add_u32 {s(S_T0)}, {s(S_T0)}, {WS_FP+36*128}
    s_add_u32 {s(S_T0)}, {s(S_T0)}, {s(S_T1)}
    v_add_u32 {v(V_PB)}, {s(S_T0)}, {v(V_PB)}
    v_min_u32 {v(V_T0)}, 5, {v(V_L)}
    v_mul_u32_u24 {v(V_T0)}, 768, {v(V_T0)}
    s_lshl_b32 {s(S_T0)}, {s(S_CS)}, 7
    s_add_u32 {s(S_T0)}, {s(S_T0)}, {s(S_T1)}
    s_add_u32 {s(S_T0)}, {s(S_T0)}, {WS_FP}
    v_add_u32 {v(V_PS)}, {s(S_T0)}, {v(V_T0)}
    """)


def nonce_and_publish(g):
    g(f"""
    s_waitcnt lgkmcnt(0)
    s_and_b32 {s(S_T0)}, {s(S_NONCE)}, 0x78787878
    s_add_u32 {s(S_T0)}, {s(S_T0)}, 0x08080808
    s_and_b32 {s(S_T1)}, {s(S_NONCE)}, 0x80808080
    s_xor_b32 {s(S_NONCE)}, {s(S_T0)}, {s(S_T1)}
    s_or_b32 {s(S_ME)}, {s(S_ME)}, {s(S_NONCE)}
    s_lshl_b32 {s(S_T0)}, s2, 7
    s_add_u32 {s(S_T0)}, {s(S_T0)}, {WS_FXCC}
    v_mov_b32 {v(V_T0)}, {s(S_ME)}
    v_mov_b32 {v(V_NONCE)}, {s(S_NONCE)}
    s_mov_b64 exec, 1
    buffer_store_dword {v(V_T0)}, {v(V_ZERO)}, {s(SRD_WS,4)}, {s(S_T0)} offen sc1
    s_mov_b64 exec, -1
    s_and_b32 {s(S_TAG)}, {s(S_NONCE)}, 0xff
    s_bfe_u32 {s(S_TAG+1)}, {s(S_NONCE)}, 0x80008
    s_bfe_u32 {s(S_TAG+2)}, {s(S_NONCE)}, 0x80010
    s_lshr_b32 {s(S_TAG+3)}, {s(S_NONCE)}, 24
    """)


def flag_store(g, soff, rep):
    sk = g.label("nofl")
    g(f"""
    s_cmp_lg_u32 {s(S_W)}, 0
    s_cbranch_scc1 {sk}
    v_mul_u32_u24 {v(V_T0)}, {rep}, {v(V_L)}
    s_mov_b64 exec, 0xff
    buffer_store_dword {v(V_NONCE)}, {v(V_T0)}, {s(SRD_WS,4)}, {soff} offen sc1
    s_mov_b64 exec, -1
    {sk}:
    """)


def pa_eval(g):
    g(f"""
    v_and_b32 {v(V_T6)}, -8, {v(V_T7)}
    v_cmp_ne_u32 vcc, {s(S_NONCE)}, {v(V_T6)}
    s_mov_b32 {s(S_F1)}, vcc_lo
    v_cmp_ne_u32 vcc, {s(S_ME)}, {v(V_T7)}
    s_mov_b32 {s(S_SLOW)}, vcc_lo
    """)


def pa_wait(g, reg, name):
    lp, done = g.label(name), g.label(name + "_ok")
    g(f"""
    s_cmp_eq_u32 {s(reg)}, 0
    s_cbranch_scc1 {done}
    s_mov_b32 {s(S_SPIN)}, {SPIN_LIMIT}
    {lp}:
    buffer_load_dword {v(V_T7)}, {v(V_PA)}, {s(SRD_WS,4)}, 0 offen sc1
    s_waitcnt vmcnt(0)
    """)
    pa_eval(g)
    g(f"""
    s_cmp_eq_u32 {s(reg)}, 0
    s_cbranch_scc1 {done}
    s_sub_u32 {s(S_SPIN)}, {s(S_SPIN)}, 1
    s_cbranch_scc0 {lp}
    {done}:
    """)


def both_modes(g, emit):
    ls, le = g.label("slow"), g.label("join")
    g(f"""
    s_cmp_lg_u32 {s(S_SLOW)}, 0
    s_cbranch_scc1 {ls}
    """)
    emit(" sc1" if g.opts.get("allsc1", 0) else (" nt" if g.opts.get("fastnt", 0) else ""))
    g(f"s_branch {le}")
    g(f"{ls}:")
    emit(" sc1")
    g(f"{le}:")


S_WD0, S_WD1 = S_T6, S_T7
S_SPO = S_T4
S_WV, S_WVI = 0, 1
XR = V_MISC
VW = V_MISC + 8
VS = V_MISC + 12
RS = V_MISC + 16
FS = V_MISC + 20
V_XO = V_MISC + 14
S_XO = 26


def wchunk(g):
    g(f"s_mov_b32 m0, {s(S_WD1)}")
    g(f"s_add_u32 {s(S_WD1)}, {s(S_WD1)}, 16384")
    for q in range(4):
        g(f"buffer_load_dwordx4 {v(VW+q)}, {s(SRD_B,4)}, {s(S_WD0)} offen offset:{q*1024} lds")
    g(f"s_add_u32 {s(S_WD0)}, {s(S_WD0)}, {8*18432}")


def wvo_group(g, st, srd=SRD_WS):
    g(f"""
    s_add_u32 m0, {s(S_SIG2)}, {L_WVO + st*16384}
    s_add_u32 {s(S_T1)}, {s(S_WV)}, {st*16384}
    """)
    for q in range(4):
        g(f"buffer_load_dwordx4 {v(V_L16)}, {s(srd,4)}, {s(S_T1)} offen offset:{q*1024} sc1 lds")


SMR = [V_T2, V_T3, V_T4, V_T5]
S_RETRY = 70


def sample(dst):
    return f"buffer_load_dword {v(dst)}, {v(V_PS)}, {s(SRD_WS,4)}, 0 offen sc1"


S_CH, S_WSTEP, S_XSTEP, S_SIG2, S_XR = 68, 69, 70, 71, 72
S_X1O, S_FXO, S_STO = 73, 74, 75
A1 = [236, 237, 238]
C1 = [239, 240]
XA = 241


def row_dma(g, srd, vo, so, seg):
    g(f"buffer_load_dwordx4 {v(vo)}, {s(srd,4)}, {s(so)} offen lds")
    g(f"buffer_load_dwordx4 {v(vo+1)}, {s(srd,4)}, {s(so)} offen offset:1024 lds")


def p0_issue(g):
    g(f"""
    s_sub_u32 {s(SRD_A)}, {s(S_X)}, 1024
    s_subb_u32 {s(SRD_A+1)}, {s(S_X+1)}, 0
    s_mov_b32 {s(SRD_A+2)}, {1572864+1024}
    s_sub_u32 {s(SRD_B)}, {s(S_WQT)}, 4096
    s_subb_u32 {s(SRD_B+1)}, {s(S_WQT+1)}, 0
    s_mov_b32 {s(SRD_B+2)}, {884736+4096}
    """)
    g.stamp('x0', False)
    for seg in range(6):
        row_dma(g, SRD_A, V_XO, S_XO, seg)
        if seg < 5:
            g(f"s_add_u32 m0, m0, 2048")
            g(f"s_add_u32 {s(S_XO)}, {s(S_XO)}, 128")
    for _ in range(g.opts.get("c0", 1)):
        wchunk(g)
    g.stamp('dmaiss', False)


def p0_pre(g):
    S_CB = S_CS
    g(f"""
    v_lshrrev_b32 {v(V_T1)}, 3, {v(V_L)}
    v_mul_u32_u24 {v(V_T2)}, 2304, {v(V_T1)}
    v_and_b32 {v(V_T1)}, 2, {v(V_T1)}
    v_and_b32 {v(V_T3)}, 7, {v(V_L)}
    v_xor_b32 {v(V_T3)}, {v(V_T3)}, {v(V_T1)}
    v_lshl_add_u32 {v(V_T2)}, {v(V_T3)}, 4, {v(V_T2)}
    v_add_u32 {v(VW)}, 4096, {v(V_T2)}
    v_xor_b32 {v(V_T3)}, 64, {v(V_T2)}
    v_add_u32 {v(VW+1)}, {4096+18432-1024}, {v(V_T3)}
    v_add_u32 {v(VW+2)}, {4096+768-2048}, {v(V_T2)}
    v_add_u32 {v(VW+3)}, {4096+18432+768-3072}, {v(V_T3)}
    s_mul_i32 {s(S_WD0)}, {s(S_W)}, {2*18432}
    s_lshl_b32 {s(S_T1)}, {s(S_CB)}, 7
    s_add_u32 {s(S_WD0)}, {s(S_WD0)}, {s(S_T1)}
    s_lshl_b32 {s(S_WD1)}, {s(S_W)}, 12
    v_lshrrev_b32 {v(V_T0)}, 3, {v(V_L)}
    v_mul_u32_u24 {v(V_T2)}, 196608, {v(V_T0)}
    v_lshrrev_b32 {v(V_T0)}, 1, {v(V_T0)}
    v_and_b32 {v(V_T1)}, 7, {v(V_L)}
    v_xor_b32 {v(V_T1)}, {v(V_T1)}, {v(V_T0)}
    v_lshl_add_u32 {v(V_T2)}, {v(V_T1)}, 4, {v(V_T2)}
    v_add_u32 {v(V_XO)}, 1024, {v(V_T2)}
    v_xor_b32 {v(V_T2)}, 64, {v(V_T2)}
    v_add_u32 {v(V_XO+1)}, 768, {v(V_T2)}
    s_lshl_b32 {s(S_T0)}, {s(S_RB)}, 2
    s_add_u32 {s(S_T0)}, {s(S_T0)}, {s(S_W)}
    s_mul_i32 {s(S_XO)}, {s(S_T0)}, 1536
    s_lshl_b32 {s(S_SPO)}, {s(S_XO)}, 1
    s_mul_i32 {s(S_XR)}, {s(S_W)}, 12288
    s_add_u32 {s(S_XR)}, {s(S_XR)}, {L_WVO}
    s_mov_b32 m0, {s(S_XR)}
    """)


def p0_main(g):
    ACCQ, ACCK = V_ACC, V_ACC + 16
    SX, SXX = V_ACC + 40, V_ACC + 44
    SEL, NM, DB = V_BUF, V_BUF + 8, V_BUF + 16
    S_CB = S_CS
    common_consts(g)
    g(f"""
    v_lshrrev_b32 {v(V_T0)}, 1, {v(V_G)}
    v_lshlrev_b32 {v(V_T0)}, 12, {v(V_T0)}
    v_and_b32 {v(V_T1)}, 1, {v(V_G)}
    v_lshl_add_u32 {v(V_T0)}, {v(V_T1)}, 10, {v(V_T0)}
    v_lshrrev_b32 {v(V_T2)}, 2, {v(V_I)}
    v_lshl_add_u32 {v(V_T0)}, {v(V_T2)}, 7, {v(V_T0)}
    v_lshrrev_b32 {v(V_T2)}, 3, {v(V_I)}
    v_lshl_or_b32 {v(V_T2)}, {v(V_T1)}, 1, {v(V_T2)}
    v_lshl_add_u32 {v(V_T0)}, {v(V_T2)}, 5, {v(V_T0)}
    v_and_b32 {v(V_T2)}, 3, {v(V_I)}
    v_lshl_add_u32 {v(V_AD)}, {v(V_T2)}, 3, {v(V_T0)}
    v_xor_b32 {v(V_AD+1)}, 32, {v(V_AD)}
    v_xor_b32 {v(V_AD+2)}, 64, {v(V_AD)}
    v_xor_b32 {v(V_AD+3)}, 96, {v(V_AD)}
    v_cmp_eq_u32 s[4:5], 1, {v(V_T2)}
    v_cmp_eq_u32 s[6:7], 2, {v(V_T2)}
    v_cmp_eq_u32 s[8:9], 3, {v(V_T2)}
    v_and_b32 {v(V_T0)}, 7, {v(V_L)}
    v_lshl_add_u32 {v(V_T0)}, {v(V_G)}, 3, {v(V_T0)}
    v_lshlrev_b32 {v(VS)}, 4, {v(V_T0)}
    s_add_u32 {s(S_SPO)}, {s(S_SPO)}, {WS_SP}
    v_lshrrev_b32 {v(V_T0)}, 1, {v(V_I)}
    v_xor_b32 {v(V_T0)}, {v(V_T0)}, {v(V_G)}
    v_lshlrev_b32 {v(V_T0)}, 4, {v(V_T0)}
    v_lshl_add_u32 {v(V_T0)}, {v(V_I)}, 7, {v(V_T0)}
    v_add_u32 {v(V_T2)}, {s(S_XR)}, {v(V_T0)}
    v_xor_b32 {v(V_T3)}, 64, {v(V_T2)}
    s_lshl_b32 {s(S_T1)}, {s(S_CB)}, 11
    v_add_u32 {v(V_T4)}, {s(S_T1)}, {v(V_T2)}
    v_add_u32 {v(V_T5)}, {s(S_T1)}, {v(V_T3)}
    s_lshl_b32 {s(S_SIG2)}, {s(S_W)}, 12
    s_mul_i32 {s(S_WV)}, {s(S_CB)}, 49152
    s_add_u32 {s(S_WV)}, {s(S_WV)}, {s(S_SIG2)}
    s_add_u32 {s(S_WV)}, {s(S_WV)}, {WS_WVOT}
    s_lshl_b32 {s(S_T1)}, {s(S_CB)}, 9
    s_add_u32 {s(S_CH)}, {s(S_SPO)}, {s(S_T1)}
    """)
    g(f"""
    v_and_b32 {v(V_T0)}, 1, {v(V_I)}
    v_lshlrev_b32 {v(V_T0)}, 4, {v(V_T0)}
    v_mov_b32 {v(V_T1)}, 0x3f80
    v_lshlrev_b32 {v(V_T0)}, {v(V_T0)}, {v(V_T1)}
    v_cndmask_b32 {v(V_T0)}, 0, {v(V_T0)}, {s(S_DIAG,2)}
    v_and_b32 {v(V_T1)}, 2, {v(V_I)}
    v_cmp_eq_u32 vcc, 0, {v(V_T1)}
    v_mov_b32 {v(SEL+2)}, 0
    v_mov_b32 {v(SEL+3)}, 0
    v_cndmask_b32 {v(SEL)}, 0, {v(V_T0)}, vcc
    v_cndmask_b32 {v(SEL+1)}, {v(V_T0)}, 0, vcc
    v_mov_b32 {v(SEL+4)}, 0
    v_mov_b32 {v(SEL+5)}, 0
    v_mov_b32 {v(SEL+6)}, {v(SEL)}
    v_mov_b32 {v(SEL+7)}, {v(SEL+1)}
    """)
    p1_setup(g)
    C0, C1_ = g.opts.get("c0", 1), g.opts.get("c1", 2)
    order = [f"x{k//2}" for k in range(12)] + [f"A{j}" for j in range(C0) for _ in range(4)]
    for j in range(C0, C1_):
        wchunk(g)
        order += [f"A{j}"] * 4
    nonce_and_publish(g)
    order += ["t"]
    pend = []
    ptag = []

    def queue(fn, tag, n):
        pend.extend(capture(g, fn))
        ptag.extend([tag] * n)

    def pop_vm():
        out = []
        while pend:
            x = pend.pop(0)
            out.append(x)
            if x.startswith("buffer") or x.startswith("global"):
                order.append(ptag.pop(0))
                if any(y.startswith("buffer") or y.startswith("global") for y in pend):
                    break
        return out

    def need(tag):
        last = len(order) - 1 - order[::-1].index(tag)
        return f"s_waitcnt vmcnt({len(order) - 1 - last})"
    def mtouch():
        g(f"""
        s_mov_b64 exec, 0xffffff
        global_load_dword {v(V_MISC+62)}, {v(V_MT)}, s[16:17]
        s_mov_b64 exec, -1
        """)
    if g.opts.get("mt", 0) == 1:
        mtouch()
        order.append("m")
    NQ = C1_ + 3
    PAJ = g.opts.get("paj", 4)

    def qchunk(j):
        queue(lambda: wchunk(g), f"A{j}", 4)
    for j in range(C1_, min(NQ, 6)):
        qchunk(j)
    items = []
    for ks in range(12):
        xf = v(V_XF + 4 * ks, 4)
        pre = []
        if ks % 4 == 0:
            pre = [need(f"x{ks//2+1}")] + (capture(g, lambda: g.stamp('xarr0', False)) if ks == 0 else [])
        if ks % 4 == 2:
            pre += pop_vm()
        rd = [f"ds_read_b128 {xf}, {v(V_T2+(ks&1))} offset:{(ks>>1)*2048}"]
        if ks == 11:
            rd += [f"ds_read_b128 {v(XR,4)}, {v(V_T4)}", f"ds_read_b128 {v(XR+4,4)}, {v(V_T5)}"]
        cm = capture(g, lambda: (mfma32(g, v(SXX, 4), xf, xf, "0" if ks == 0 else None),
                                 mfma32(g, v(SX, 4), v(V_ONES, 4), xf, "0" if ks == 0 else None)))
        items.append((rd, cm, pre))
    pipelined(g, items, 6)
    g.stamp('xarr', False)
    g.nop(8)
    g(f"""
    v_mul_f32 {v(NM)}, {f2u(-1/384.):#x}, {v(SX)}
    v_mul_f32 {v(NM+1)}, {f2u(-1/384.):#x}, {v(SX)}
    v_mul_f32 {v(NM+2)}, {f2u(-1/384.):#x}, {v(SX)}
    v_mul_f32 {v(NM+3)}, {f2u(-1/384.):#x}, {v(SX)}
    v_cndmask_b32 {v(SXX)}, {v(SXX)}, {v(SXX+1)}, s[4:5]
    v_cndmask_b32 {v(SXX)}, {v(SXX)}, {v(SXX+2)}, s[6:7]
    """)
    fin = capture(g, lambda: (g(f"v_cndmask_b32 {v(SXX)}, {v(SXX)}, {v(SXX+3)}, s[8:9]"),
                              g(f"v_cndmask_b32 {v(SXX)}, 0, {v(SXX)}, {s(S_DIAG,2)}"),
                              xlane_sum(g, SXX, V_T0), mean_rstd(g, SX, SXX, V_MEAN, V_R)))
    LAG = 2
    for ks in range(12 + LAG):
        if ks < 12:
            d = DB + (ks % 4) * 8
            mfma32(g, v(d, 4), v(SEL, 4), v(V_XF + 4 * ks, 4), v(NM, 4))
            mfma32(g, v(d + 4, 4), v(SEL + 4, 4), v(V_XF + 4 * ks, 4), v(NM, 4))
        if ks < LAG or ks >= 12:
            for x in fin[:9]:
                g(x)
            if ks >= 12 and not fin:
                g.nop(2)
            fin = fin[9:]
        if ks >= LAG:
            d = DB + ((ks - LAG) % 4) * 8
            for q in range(4):
                g(f"v_cvt_pk_bf16_f32 {v(V_XF+4*(ks-LAG)+q)}, {v(d+2*q)}, {v(d+2*q+1)}")
        if ks % 2 == 1:
            for x in pop_vm():
                g(x)
    assert not fin
    g.stamp('cent', False)
    if g.opts.get("mt", 0) == 2:
        mtouch()
        order.append("m")

    for j in range(NQ, 6):
        qchunk(j)
    MT = g.opts.get("mt", 0)
    if MT == 3:
        queue(mtouch, "m", 1)
    SMP = [g.opts.get("s0", 70), g.opts.get("s1", 82), g.opts.get("s2", 94)]
    items = []
    nb = 0
    for j in range(6):
        for n, (kk, mat, sl) in enumerate([(kk, mat, sl) for kk in range(2) for mat in range(2) for sl in range(4)]):
            ks = 2 * j + kk
            b = V_BUF + (nb % 16) * 4
            nb += 1
            off = (ks % 6) * 8192 + mat * 2048
            rd = [f"ds_read_b64_tr_b16 {v(b,2)}, {v(V_AD+sl)} offset:{off}",
                  f"ds_read_b64_tr_b16 {v(b+2,2)}, {v(V_AD+sl)} offset:{off+512}"]
            acc = (ACCQ if mat == 0 else ACCK) + 4 * sl
            cm = [f"v_mfma_f32_16x16x32_bf16 {v(acc,4)}, {v(b,4)}, {v(V_XF+4*ks,4)}, {'0' if ks == 0 else v(acc,4)}"]
            pre = []
            if n == 0:
                pre += [need(f"A{j}"), "s_barrier"]
                pre += capture(g, lambda: g.stamp(f'chunk{j}', False))
                if j == 3:
                    pre += [f"v_add_u32 {v(V_AD+q)}, 49152, {v(V_AD+q)}" for q in range(4)]
                if j == g.opts.get("pj", 2):
                    pre.append(f"buffer_load_dword {v(V_T7)}, {v(V_PA)}, {s(SRD_WS,4)}, 0 offen sc1")
                    order.append("p")
            if 16 * j + n == g.opts.get("s0", 86):
                assert not pend
                pre += ["s_waitcnt vmcnt(0)", sample(V_T5)] + capture(g, lambda: pa_eval(g))
            if n % 3 == 1:
                x = pop_vm()
                pre += x
            items.append([rd, cm, pre])
    assert not pend
    QF, KF = V_ACC + 32, V_ACC + 40
    pipelined(g, items, 14, group=1)
    for i in range(8):
        g(f"v_cvt_pk_bf16_f32 {v(QF+i)}, {v(ACCQ+2*i)}, {v(ACCQ+2*i+1)}")
    for i in range(8):
        g(f"v_cvt_pk_bf16_f32 {v(KF+i)}, {v(ACCK+2*i)}, {v(ACCK+2*i+1)}")
    SS = V_BUF + 32
    g.nop(1)
    mfma32(g, v(SS, 4), v(KF, 4), v(QF, 4), "0")
    mfma32(g, v(SS, 4), v(KF + 4, 4), v(QF + 4, 4))
    pa_wait(g, S_F1, "xcc")
    g.nop(6)
    for r in range(4):
        g(f"v_bfi_b32 {v(SS+r)}, {v(V_MASK)}, {v(SS+r)}, {s(S_TAG+r)}")
    g(f"s_mov_b64 exec, {s(S_VALID,2)}")
    both_modes(g, lambda sc: g(f"buffer_store_dwordx4 {v(SS,4)}, {v(VS)}, {s(SRD_WS,4)}, {s(S_CH)} offen{sc}"))
    g("s_mov_b64 exec, -1")
    g.stamp('sstored')


CSL = V_BUF


def ws2_dma(g, half):
    if half == 1:
        g(f"""
        s_mul_i32 {s(S_T2)}, {s(S_CS)}, 3072
        s_add_u32 {s(S_T2)}, {s(S_T2)}, {WS_CSP}
        v_lshlrev_b32 {v(V_T6)}, 3, {v(V_L)}
        """)
        for c in range(6):
            g(f"buffer_load_dwordx2 {v(CSL+4*c,2)}, {v(V_T6)}, {s(SRD_WS,4)}, {s(S_T2)} offen offset:{c*512} sc1")
    g(f"""
    s_mul_i32 {s(S_T2)}, {s(S_CS)}, 73728
    s_mul_i32 {s(S_T1)}, {s(S_W)}, 9216
    s_bitcmp{1-half}_b32 {s(S_RQ)}, 0
    s_cselect_b32 {s(S_T3)}, 36864, 0
    s_add_u32 m0, {s(S_T1)}, {s(S_T3)}
    s_add_u32 {s(S_T2)}, {s(S_T2)}, {WS_WS2}
    s_add_u32 {s(S_T3)}, {s(S_T2)}, m0
    """)
    for blk in range(9):
        g(f"buffer_load_dwordx4 {v(V_L16)}, {s(SRD_WS,4)}, {s(S_T3)} offen offset:{(blk%4)*1024} sc1 lds")
        if blk % 4 == 3:
            g(f"s_add_u32 m0, m0, 4096")
            g(f"s_add_u32 {s(S_T3)}, {s(S_T3)}, 4096")


def p1_setup(g):
    S_CB = S_CS
    g(f"""
    v_add_u32 {v(A1[0])}, {L_WVO}, {v(V_L16)}
    v_lshlrev_b32 {v(V_T0)}, 3, {v(V_I)}
    s_lshl_b32 {s(S_T0)}, {s(S_W)}, 7
    s_add_u32 {s(S_T0)}, {s(S_T0)}, {L_SG}
    v_add_u32 {v(A1[2])}, {s(S_T0)}, {v(V_T0)}
    v_and_b32 {v(V_T0)}, 7, {v(V_I)}
    v_lshrrev_b32 {v(V_T1)}, 3, {v(V_I)}
    v_lshl_add_u32 {v(V_T1)}, {v(V_G)}, 3, {v(V_T1)}
    s_lshl_b32 {s(S_T1)}, {s(S_W)}, 1
    v_add_u32 {v(V_T1)}, {s(S_T1)}, {v(V_T1)}
    v_xor_b32 {v(V_T1)}, {v(V_T1)}, {v(V_T0)}
    v_lshlrev_b32 {v(V_T1)}, 4, {v(V_T1)}
    v_lshl_add_u32 {v(V_T1)}, {v(V_T0)}, 10, {v(V_T1)}
    v_add_u32 {v(A1[1])}, {L_T}, {v(V_T1)}
    v_xor_b32 {v(V_T0)}, {s(S_T1)}, {v(V_L)}
    v_lshlrev_b32 {v(V_T0)}, 4, {v(V_T0)}
    s_lshl_b32 {s(S_T2)}, {s(S_W)}, 11
    s_add_u32 {s(S_T2)}, {s(S_T2)}, {L_T}
    v_add_u32 {v(C1[0])}, {s(S_T2)}, {v(V_T0)}
    v_xor_b32 {v(C1[1])}, 16, {v(C1[0])}
    v_lshrrev_b32 {v(V_T0)}, 3, {v(V_L)}
    v_lshlrev_b32 {v(V_T0)}, 8, {v(V_T0)}
    v_and_b32 {v(V_T1)}, 7, {v(V_L)}
    v_lshl_add_u32 {v(XA)}, {v(V_T1)}, 4, {v(V_T0)}
    s_mul_i32 {s(S_X1O)}, {s(S_W)}, {2*196608}
    s_lshr_b32 {s(S_T1)}, {s(S_RB)}, 1
    s_mul_i32 {s(S_T1)}, {s(S_T1)}, 12288
    s_add_u32 {s(S_X1O)}, {s(S_X1O)}, {s(S_T1)}
    s_and_b32 {s(S_T1)}, {s(S_RB)}, 1
    s_lshl_b32 {s(S_T1)}, {s(S_T1)}, 7
    s_add_u32 {s(S_X1O)}, {s(S_X1O)}, {s(S_T1)}
    s_lshl_b32 {s(S_T1)}, {s(S_CB)}, 11
    s_add_u32 {s(S_X1O)}, {s(S_X1O)}, {s(S_T1)}
    s_add_u32 {s(S_X1O)}, {s(S_X1O)}, {WS_X1}
    s_add_u32 {s(S_WSTEP)}, {s(S_X1O)}, 196608
    s_mul_i32 {s(S_FXO)}, {s(S_RB)}, 6
    s_add_u32 {s(S_FXO)}, {s(S_FXO)}, {s(S_CB)}
    s_lshl_b32 {s(S_T1)}, {s(S_FXO)}, 2
    s_lshl_b32 {s(S_FXO)}, {s(S_FXO)}, 7
    s_add_u32 {s(S_FXO)}, {s(S_FXO)}, {WS_FX}
    s_sub_u32 {s(S_STO)}, {s(S_FXO)}, {WS_FX-WS_STX}
    v_and_b32 {v(V_T0)}, 7, {v(V_L)}
    v_mul_u32_u24 {v(V_T0)}, {6*32*128}, {v(V_T0)}
    v_and_b32 {v(V_T1)}, -8, {v(V_L)}
    v_add_u32 {v(XA+1)}, {v(V_T0)}, {v(V_T1)}
    v_lshlrev_b32 {v(XA+2)}, 3, {v(V_L)}
    v_add_u32 {v(XA+2)}, {L_SG}, {v(XA+2)}
    """)


V_MT = 245


def p1(g):
    Z = V_ACC
    CS = V_ACC + 16
    XC = V_ACC + 20

    def shadow():
        g(f"v_lshlrev_b32 {v(V_T0)}, 4, {v(V_G)}")
        for e in range(4):
            g(f"ds_bpermute_b32 {v(RS+e)}, {v(V_T0)}, {v(V_R)} offset:{4*e}")
        for m in range(2):
            for par in range(2):
                for r in range(4):
                    src = XR + 4 * m + 2 * par + (r >> 1)
                    d = XC + (2 * m + par) * 4 + r
                    if r & 1:
                        g(f"v_and_b32 {v(d)}, 0xffff0000, {v(src)}")
                    else:
                        g(f"v_lshlrev_b32 {v(d)}, 16, {v(src)}")
        g(f"v_mul_f32 {v(V_T1)}, {f2u(SCALE_LOG2E):#x}, {v(V_R)}")
        g("s_waitcnt lgkmcnt(0)")
        for e in range(4):
            g(f"v_mul_f32 {v(FS+e)}, {v(V_T1)}, {v(RS+e)}")
    AOP = VW
    SPR = [V_ACC + 36, V_ACC + 40, V_ACC + 44, 220, 224, 248]

    def sloads():
        for c in range(6):
            g(f"buffer_load_dwordx4 {v(SPR[c],4)}, {v(VS)}, {s(SRD_WS,4)}, {s(S_SPO)} offen offset:{c*512} sc1")

    def scheck():
        for c in range(6):
            for r in range(4):
                g(f"v_xor_b32 {v(SPR[c]+r)}, {s(S_TAG+r)}, {v(SPR[c]+r)}")
            if c == 0:
                g(f"v_or_b32 {v(V_T2)}, {v(SPR[0])}, {v(SPR[0]+1)}")
            else:
                g(f"v_or3_b32 {v(V_T2)}, {v(V_T2)}, {v(SPR[c])}, {v(SPR[c]+1)}")
            g(f"v_or3_b32 {v(V_T2)}, {v(V_T2)}, {v(SPR[c]+2)}, {v(SPR[c]+3)}")
        g(f"v_and_b32 {v(V_T2)}, 0xff, {v(V_T2)}")

    def softmax(pk):
        T = SPR[5]
        if pk:
            for c in (1, 3, 5):
                for h in range(2):
                    g(f"v_pk_add_f32 {v(SPR[c]+2*h,2)}, {v(SPR[c]+2*h,2)}, {v(SPR[c-1]+2*h,2)}")
            for c in (3, 5):
                for h in range(2):
                    g(f"v_pk_add_f32 {v(SPR[c]+2*h,2)}, {v(SPR[c]+2*h,2)}, {v(SPR[c-2]+2*h,2)}")
        else:
            for c in (1, 3, 5):
                for r in range(4):
                    g(f"v_add_f32 {v(SPR[c]+r)}, {v(SPR[c]+r)}, {v(SPR[c-1]+r)}")
            for c in (3, 5):
                for r in range(4):
                    g(f"v_add_f32 {v(SPR[c]+r)}, {v(SPR[c]+r)}, {v(SPR[c-2]+r)}")
        for r in range(4):
            g(f"v_mul_f32 {v(T+r)}, {v(T+r)}, {v(FS+r)}")
        g(f"""
        v_max3_f32 {v(V_T0)}, {v(T)}, {v(T+1)}, {v(T+2)}
        v_max_f32 {v(V_T0)}, {v(V_T0)}, {v(T+3)}
        v_mov_b32 {v(V_T1)}, {v(V_T0)}
        s_nop 1
        v_permlane16_swap_b32 {v(V_T0)}, {v(V_T1)}
        s_nop 0
        v_max_f32 {v(V_T0)}, {v(V_T0)}, {v(V_T1)}
        """)
        for r in range(4):
            g(f"v_sub_f32 {v(T+r)}, {v(T+r)}, {v(V_T0)}")
        for r in range(4):
            g(f"v_exp_f32 {v(T+r)}, {v(T+r)}")
        g(f"""
        s_nop 0
        v_add_f32 {v(V_T0)}, {v(T)}, {v(T+1)}
        v_add_f32 {v(V_T1)}, {v(T+2)}, {v(T+3)}
        v_add_f32 {v(V_T0)}, {v(V_T0)}, {v(V_T1)}
        v_mov_b32 {v(V_T1)}, {v(V_T0)}
        v_mul_f32 {v(T)}, {v(T)}, {v(RS)}
        v_mul_f32 {v(T+1)}, {v(T+1)}, {v(RS+1)}
        v_permlane16_swap_b32 {v(V_T0)}, {v(V_T1)}
        v_mul_f32 {v(T+2)}, {v(T+2)}, {v(RS+2)}
        v_add_f32 {v(V_T0)}, {v(V_T0)}, {v(V_T1)}
        v_rcp_f32 {v(V_T0)}, {v(V_T0)}
        v_mul_f32 {v(T+3)}, {v(T+3)}, {v(RS+3)}
        v_cndmask_b32 {v(V_T0)}, 0, {v(V_T0)}, {s(S_VALID,2)}
        """)
        for r in range(4):
            g(f"v_mul_f32 {v(T+r)}, {v(T+r)}, {v(V_T0)}")
        g(f"""
        v_cvt_pk_bf16_f32 {v(AOP)}, {v(T)}, {v(T+1)}
        v_cvt_pk_bf16_f32 {v(AOP+1)}, {v(T+2)}, {v(T+3)}
        """)
    g(f"""
    s_waitcnt vmcnt(1)
    v_cmp_ne_u32 vcc, {s(S_NONCE)}, {v(V_T5)}
    s_cbranch_vccz L_wvo_go
    """)
    shadow()
    poll(g, V_PS, "0", s(S_NONCE), "wvo", g.opts.get("slp", 2))
    for st in range(3):
        wvo_group(g, st)
    g("s_branch L_wvo_on")
    g("L_wvo_go:")
    for st in range(3):
        wvo_group(g, st)
    shadow()
    g("L_wvo_on:")
    late = capture(g, sloads)
    nl = 0
    g.stamp('wvoflag')
    fill = ["s_waitcnt vmcnt(0)"] + capture(g, lambda: (scheck(), softmax(g.opts.get('sfill', 48) >= 48)))
    items = []
    for ks in range(12):
        for c in range(4):
            n = ks * 4 + c
            b = V_BUF + (n % 16) * 4
            rd = [f"ds_read_b128 {v(b,4)}, {v(A1[0])} offset:{ks*4096+c*1024}"]
            cc = "0" if ks == 0 else v(Z + 4 * c, 4)
            cm = [f"v_mfma_f32_16x16x32_bf16 {v(Z+4*c,4)}, {v(V_XF+4*ks,4)}, {v(b,4)}, {cc}"]
            pre = []
            if ks % 4 == 0 and c == 0:
                pre = [f"s_waitcnt vmcnt({8-ks+nl})", "s_barrier"] + capture(g, lambda: g.stamp(f'wvo{ks//4}', False))
            if late and n % 2 == 1 and n >= g.opts.get("sl0", 1):
                pre.append(late.pop(0))
                nl += 1
            if n >= g.opts.get("sfill", 48):
                cm += fill[:2]
                fill = fill[2:]
            items.append((rd, cm, pre))
    pipelined(g, items, 10, group=1)
    ZB = V_BUF + 8
    for x in fill:
        g(x)
    g(f"""
    v_cmp_ne_u32 vcc, 0, {v(V_T2)}
    s_nop 1
    """)
    for c in range(4):
        g(f"v_cvt_pk_bf16_f32 {v(ZB+2*c)}, {v(Z+4*c)}, {v(Z+4*c+1)}")
        g(f"v_cvt_pk_bf16_f32 {v(ZB+2*c+1)}, {v(Z+4*c+2)}, {v(Z+4*c+3)}")
    g.stamp('zdone')
    g(f"""
    s_cbranch_vccz L_sok
    s_mov_b32 {s(S_SPIN)}, {SPIN_LIMIT}
    L_spoll:
    """)
    sloads()
    g("s_waitcnt vmcnt(0)")
    scheck()
    g(f"""
    v_cmp_ne_u32 vcc, 0, {v(V_T2)}
    s_cbranch_vccz L_sre
    s_sub_u32 {s(S_SPIN)}, {s(S_SPIN)}, 1
    s_cbranch_scc0 L_spoll
    L_sre:
    """)
    softmax(True)
    g.nop(2)
    g("L_sok:")
    g.stamp('sok')
    g(f"buffer_load_dword {v(V_T7)}, {v(V_PB)}, {s(SRD_WS,4)}, 0 offen sc1")
    for c in range(4):
        mfma16(g, v(XC + 4 * c, 4), v(ZB + 2 * c, 2), v(AOP, 2))
    g.nop(5)
    OB = V_BUF + 48
    for m in range(2):
        for i in range(4):
            g(f"v_cvt_pk_bf16_f32 {v(OB+4*m+i)}, {v(XC+8*m+2*i)}, {v(XC+8*m+2*i+1)}")
        g(f"ds_write_b128 {v(A1[1])}, {v(OB+4*m,4)} offset:{m*512}")
    S1, S2 = Z, Z + 4
    mfma32(g, v(S2, 4), v(OB, 4), v(OB, 4), "0")
    mfma32(g, v(S1, 4), v(V_ONES, 4), v(OB, 4), "0")
    mfma32(g, v(S2, 4), v(OB + 4, 4), v(OB + 4, 4))
    mfma32(g, v(S1, 4), v(V_ONES, 4), v(OB + 4, 4))
    g.nop(7)
    g(f"""
    v_cndmask_b32 {v(S2)}, {v(S2)}, {v(S2+1)}, s[4:5]
    v_cndmask_b32 {v(S2)}, {v(S2)}, {v(S2+2)}, s[6:7]
    v_cndmask_b32 {v(S1+1)}, {v(S2)}, {v(S2+3)}, s[8:9]
    s_mov_b64 exec, {s(S_DIAG,2)}
    ds_write_b64 {v(A1[2])}, {v(S1,2)}
    s_mov_b64 exec, -1
    s_waitcnt lgkmcnt(0)
    s_barrier
    ds_read_b128 {v(OB,4)}, {v(C1[0])}
    ds_read_b128 {v(OB+4,4)}, {v(C1[1])} offset:1024
    ds_read_b64 {v(V_T0,2)}, {v(XA+2)}
    s_waitcnt lgkmcnt(2)
    buffer_store_dwordx4 {v(OB,4)}, {v(XA)}, {s(SRD_WS,4)}, {s(S_X1O)} offen sc1
    s_waitcnt lgkmcnt(1)
    buffer_store_dwordx4 {v(OB+4,4)}, {v(XA)}, {s(SRD_WS,4)}, {s(S_WSTEP)} offen sc1
    s_cmp_lg_u32 {s(S_W)}, 0
    s_cbranch_scc1 L_nostx
    s_waitcnt lgkmcnt(0)
    buffer_store_dwordx2 {v(V_T0,2)}, {v(XA+1)}, {s(SRD_WS,4)}, {s(S_STO)} offen sc1
    """)
    g.stamp('x1st')
    g(f"""
    s_waitcnt vmcnt(3)
    s_branch L_stx2
    L_nostx:
    s_waitcnt vmcnt(2)
    L_stx2:
    v_cmp_ne_u32 vcc, {s(S_NONCE)}, {v(V_T7)}
    s_cbranch_vccnz L_x1_late
    """)
    ws2_dma(g, 0)
    g(f"""
    s_waitcnt vmcnt(9)
    s_barrier
    """)
    flag_store(g, s(S_FXO), FX_REP)
    g.stamp('x1flag')
    g(f"""
    s_branch L_p2
    L_x1_late:
    s_waitcnt vmcnt(0)
    s_barrier
    """)
    flag_store(g, s(S_FXO), FX_REP)
    g.stamp('x1flag')
    g("L_ws_late:")
    poll(g, V_PB, "0", s(S_NONCE), "pws", g.opts.get("slp", 2))
    ws2_dma(g, 0)


S_TILE, S_PROD, S_KB, S_NB = S_T4, S_T5, S_T6, S_T7
S_PA, S_PB, S_PS = S_F2, S_SLOW, 26
S_PO0, S_PO1, S_PF = 16, 17, 25
V_PAO = V_MISC + 14
S_PU, S_PW = 69, 70
S_PM = 68
L_PA = 49152


def prod_pre(g):
    g(f"""
    s_lshl_b32 {s(S_T0)}, {s(S_RQ)}, 1
    s_add_u32 {s(S_T0)}, {s(S_T0)}, {s(S_CS)}
    s_sub_u32 {s(S_T0)}, {s(S_T0)}, 6
    s_mul_i32 {s(S_TILE)}, {s(S_G8)}, 5
    s_add_u32 {s(S_TILE)}, {s(S_TILE)}, {s(S_T0)}
    s_sub_u32 {s(S_TILE)}, {s(S_TILE)}, 3
    s_cmp_ge_u32 {s(S_TILE)}, 36
    s_cselect_b32 {s(S_TILE)}, 60, {s(S_TILE)}
    s_mul_i32 {s(S_T1)}, {s(S_G8)}, 3
    s_add_u32 {s(S_T1)}, {s(S_T1)}, {s(S_T0)}
    s_add_u32 {s(S_T1)}, {s(S_T1)}, 36
    s_cmp_lt_u32 {s(S_T0)}, 3
    s_cselect_b32 {s(S_TILE)}, {s(S_T1)}, {s(S_TILE)}
    s_mul_hi_u32 {s(S_KB)}, {s(S_TILE)}, {(2**32 + 5)//6}
    s_mul_i32 {s(S_T0)}, {s(S_KB)}, 6
    s_sub_u32 {s(S_NB)}, {s(S_TILE)}, {s(S_T0)}
    s_sub_u32 {s(S_T0)}, {s(S_KB)}, 4
    s_lshr_b32 {s(S_PROD)}, {s(S_T0)}, 1
    s_and_b32 {s(S_T0)}, {s(S_KB)}, 1
    s_mul_i32 {s(S_T0)}, {s(S_T0)}, 3
    s_cmp_lt_u32 {s(S_TILE)}, 36
    s_cselect_b32 {s(S_PROD)}, 0, {s(S_PROD)}
    s_cselect_b32 {s(S_KB)}, {s(S_KB)}, {s(S_T0)}
    s_lshl_b32 {s(S_PA)}, {s(S_KB)}, 2
    s_add_u32 {s(S_PA)}, {s(S_PA)}, {s(S_W)}
    s_mul_i32 {s(S_PA)}, {s(S_PA)}, {16*2304}
    s_lshl_b32 {s(S_T1)}, {s(S_NB)}, 2
    s_add_u32 {s(S_T1)}, {s(S_T1)}, {s(S_W)}
    s_mul_i32 {s(S_T1)}, {s(S_T1)}, {16*2304}
    s_add_u32 {s(S_T1)}, {s(S_T1)}, 768
    s_mul_i32 {s(S_T2)}, {s(S_W)}, {2*6144}
    s_lshl_b32 {s(S_T3)}, {s(S_NB)}, 7
    s_add_u32 {s(S_T2)}, {s(S_T2)}, {s(S_T3)}
    s_mov_b32 {s(S_T3)}, {8*6144}
    s_cmp_eq_u32 {s(S_PROD)}, 1
    s_cselect_b32 {s(S_PB)}, {s(S_T1)}, {s(S_T2)}
    s_cselect_b32 {s(S_PS)}, 128, {s(S_T3)}
    s_cselect_b32 {s(S_T0)}, 0, 1536
    s_cselect_b32 {s(S_T1)}, 1, 0
    s_cselect_b32 {s(S_T2)}, 7, 2
    s_movk_i32 {s(S_T3)}, 768
    s_cselect_b32 {s(S_T3)}, 2304, {s(S_T3)}
    s_add_u32 {s(S_PA)}, {s(S_PA)}, {s(S_T0)}
    v_lshrrev_b32 {v(V_T1)}, 3, {v(V_L)}
    v_mul_u32_u24 {v(V_T2)}, {s(S_T3)}, {v(V_T1)}
    v_lshrrev_b32 {v(V_T1)}, {s(S_T1)}, {v(V_T1)}
    v_and_b32 {v(V_T1)}, {s(S_T2)}, {v(V_T1)}
    v_and_b32 {v(V_T3)}, 7, {v(V_L)}
    v_xor_b32 {v(V_T3)}, {v(V_T3)}, {v(V_T1)}
    v_lshl_add_u32 {v(VW)}, {v(V_T3)}, 4, {v(V_T2)}
    v_xor_b32 {v(V_T3)}, 64, {v(VW)}
    s_lshl_b32 {s(S_T3)}, {s(S_T3)}, 3
    s_sub_u32 {s(S_T3)}, {s(S_T3)}, 1024
    v_add_u32 {v(VW+1)}, {s(S_T3)}, {v(V_T3)}
    v_lshrrev_b32 {v(V_T1)}, 3, {v(V_L)}
    v_mul_u32_u24 {v(V_T2)}, 2304, {v(V_T1)}
    v_lshrrev_b32 {v(V_T1)}, 1, {v(V_T1)}
    v_and_b32 {v(V_T3)}, 7, {v(V_L)}
    v_xor_b32 {v(V_T3)}, {v(V_T3)}, {v(V_T1)}
    v_lshl_add_u32 {v(V_PAO)}, {v(V_T3)}, 4, {v(V_T2)}
    v_xor_b32 {v(V_T3)}, 64, {v(V_PAO)}
    v_add_u32 {v(V_PAO+1)}, {18432-1024}, {v(V_T3)}
    s_lshl_b32 {s(S_PM)}, {s(S_W)}, 11
    s_lshl_b32 {s(S_PU)}, {s(S_NB)}, 1
    s_cmp_ge_u32 {s(S_PU)}, 6
    s_cselect_b32 {s(S_T0)}, 6, 0
    s_sub_u32 {s(S_PU)}, {s(S_PU)}, {s(S_T0)}
    s_cmp_eq_u32 {s(S_PROD)}, 0
    s_cselect_b32 {s(S_PU)}, {s(S_NB) if g.opts.get("rot1", 0) else 0}, {s(S_PU) if g.opts.get("rot3", 0) else 0}
    s_lshl_b32 {s(S_T0)}, {s(S_PU)}, 7
    s_add_u32 {s(S_PA)}, {s(S_PA)}, {s(S_T0)}
    s_mul_i32 {s(S_T0)}, {s(S_PU)}, {s(S_PS)}
    s_add_u32 {s(S_PB)}, {s(S_PB)}, {s(S_T0)}
    s_mul_i32 {s(S_PW)}, {s(S_PS)}, -5
    """)


def aslot(j, t, nt):
    return L_PA + ((j % 4) * 3 + t) * 8192 if nt == 3 else L_PA + j * 8192


def prod_unit(g, j, nt):
    g(f"s_add_u32 m0, {s(S_PM)}, {j*8192}")
    g(f"s_add_u32 {s(S_PU)}, {s(S_PU)}, 1")
    g(f"buffer_load_dwordx4 {v(VW)}, {s(SRD_B,4)}, {s(S_PB)} offen lds")
    g(f"buffer_load_dwordx4 {v(VW+1)}, {s(SRD_B,4)}, {s(S_PB)} offen offset:1024 lds")
    for t in range(nt):
        g(f"s_add_u32 m0, {s(S_PM)}, {aslot(j, t, nt)}")
        g(f"s_add_u32 {s(S_T0)}, {s(S_PA)}, {t*64*2304}")
        row_dma(g, SRD_A, V_PAO, S_T0, j)
    if j < 5:
        g(f"""
        s_cmp_eq_u32 {s(S_PU)}, 6
        s_cselect_b32 {s(S_T0)}, {s(S_PW)}, {s(S_PS)}
        s_cselect_b32 {s(S_T1)}, -5, 1
        s_add_u32 {s(S_PB)}, {s(S_PB)}, {s(S_T0)}
        s_lshl_b32 {s(S_T1)}, {s(S_T1)}, 7
        s_add_u32 {s(S_PA)}, {s(S_PA)}, {s(S_T1)}
        """)


def products(g):
    g(f"""
    L_products:
    """)
    prod_pre(g)
    g(f"""
    s_waitcnt lgkmcnt(0)
    s_load_dword {s(S_NONCE)}, {s(S_WS,2)}, {WS_NONCE}
    s_cmp_eq_u32 {s(S_PROD)}, 0
    s_cselect_b32 {s(SRD_A)}, {s(S_WQT)}, {s(S_WQS)}
    s_cselect_b32 {s(SRD_A+1)}, {s(S_WQT+1)}, {s(S_WQS+1)}
    s_cselect_b32 {s(SRD_B)}, {s(S_WOT)}, {s(S_WOS)}
    s_cselect_b32 {s(SRD_B+1)}, {s(S_WOT+1)}, {s(S_WOS+1)}
    s_mov_b32 {s(SRD_A+2)}, 884736
    s_cmp_eq_u32 {s(S_PROD)}, 1
    s_cselect_b32 {s(SRD_B)}, {s(S_WQS)}, {s(SRD_B)}
    s_cselect_b32 {s(SRD_B+1)}, {s(S_WQS+1)}, {s(SRD_B+1)}
    s_cselect_b32 {s(SRD_B+2)}, {s(SRD_A+2)}, 294912
    s_cmp_ge_u32 {s(S_TILE)}, 36
    s_cbranch_scc1 L_prod3
    """)
    g.stamp('x0', False)
    for j in range(3):
        prod_unit(g, j, 1)
    g(f"""
    s_branch L_prod_body
    L_prod3:
    s_cmp_ge_u32 {s(S_TILE)}, 60
    s_cbranch_scc1 L_prod_idle
    """)
    prod_unit(g, 0, 3)
    g("s_branch L_prod3_body")


def products_body(g):
    ACC = V_ACC
    PK = V_BUF
    CSA, SELP, V_CSO = V_MISC, V_MISC + 16, V_MISC + 20
    S_PC0, S_PC1 = 71, 72

    def setup():
        common_consts(g)
        g(f"""
        v_lshrrev_b32 {v(V_T0)}, 2, {v(V_I)}
        v_and_b32 {v(V_T0)}, 1, {v(V_T0)}
        v_lshlrev_b32 {v(V_T0)}, 10, {v(V_T0)}
        v_lshrrev_b32 {v(V_T1)}, 1, {v(V_G)}
        v_lshl_add_u32 {v(V_T0)}, {v(V_T1)}, 8, {v(V_T0)}
        v_and_b32 {v(V_T1)}, 1, {v(V_G)}
        v_lshl_add_u32 {v(V_T0)}, {v(V_T1)}, 7, {v(V_T0)}
        v_lshrrev_b32 {v(V_T1)}, 3, {v(V_I)}
        v_lshl_add_u32 {v(V_T0)}, {v(V_T1)}, 6, {v(V_T0)}
        v_and_b32 {v(V_T1)}, 3, {v(V_I)}
        v_lshl_add_u32 {v(V_T5)}, {v(V_T1)}, 4, {v(V_T0)}
        s_and_b32 {s(S_T1)}, {s(S_W)}, 1
        s_lshl_b32 {s(S_T1)}, {s(S_T1)}, 9
        v_add_u32 {v(V_T5)}, {s(S_T1)}, {v(V_T5)}
        s_lshl_b32 {s(S_PF)}, {s(S_TILE)}, 7
        s_add_u32 {s(S_PF)}, {s(S_PF)}, {WS_FP}
        s_lshr_b32 {s(S_T0)}, {s(S_W)}, 1
        s_lshl_b32 {s(S_T1)}, {s(S_KB)}, 1
        s_add_u32 {s(S_T3)}, {s(S_T0)}, {s(S_T1)}
        v_lshrrev_b32 {v(V_T0)}, 1, {v(V_I)}
        v_xor_b32 {v(V_T0)}, {v(V_T0)}, {v(V_G)}
        v_lshlrev_b32 {v(V_T0)}, 4, {v(V_T0)}
        v_lshl_add_u32 {v(V_T3)}, {v(V_I)}, 7, {v(V_T0)}
        s_add_u32 {s(S_T0)}, {s(S_PM)}, {L_PA}
        v_add_u32 {v(A2[0])}, {s(S_T0)}, {v(V_T3)}
        v_xor_b32 {v(A2[1])}, 64, {v(A2[0])}
        v_add_u32 {v(A2[2])}, 49152, {v(A2[0])}
        v_add_u32 {v(A2[3])}, 49152, {v(A2[1])}
        """)

    def tr_addr():
        g(f"""
        v_lshlrev_b32 {v(V_T0)}, 10, {v(V_G)}
        v_lshrrev_b32 {v(V_T2)}, 2, {v(V_I)}
        v_lshl_add_u32 {v(V_T0)}, {v(V_T2)}, 7, {v(V_T0)}
        v_and_b32 {v(V_T1)}, 1, {v(V_G)}
        v_lshrrev_b32 {v(V_T2)}, 3, {v(V_I)}
        v_lshl_or_b32 {v(V_T2)}, {v(V_T1)}, 1, {v(V_T2)}
        v_lshl_add_u32 {v(V_T0)}, {v(V_T2)}, 5, {v(V_T0)}
        v_and_b32 {v(V_T2)}, 3, {v(V_I)}
        v_lshl_add_u32 {v(V_AD)}, {v(V_T2)}, 3, {v(V_T0)}
        v_xor_b32 {v(V_AD+1)}, 32, {v(V_AD)}
        v_xor_b32 {v(V_AD+2)}, 64, {v(V_AD)}
        v_xor_b32 {v(V_AD+3)}, 96, {v(V_AD)}
        """)

    def gemm(tr, nt, order, later):
        items = []
        spread = []
        for ks in range(12):
            for c in range(4):
                b = V_BUF + ((ks * 4 + c) % 16) * 4
                if tr:
                    rd = [f"ds_read_b64_tr_b16 {v(b,2)}, {v(V_AD+c)} offset:{ks*4096}",
                          f"ds_read_b64_tr_b16 {v(b+2,2)}, {v(V_AD+c)} offset:{ks*4096+512}"]
                else:
                    rd = [f"ds_read_b128 {v(b,4)}, {v(V_AD+(ks&1))} offset:{(ks>>1)*8192+c*2048}"]
                pre = []
                if ks % 2 == 0 and c == 0:
                    for u in later.get(ks // 2, []):
                        if nt == 1:
                            pre += capture(g, lambda: prod_unit(g, u, nt))
                            order += [f"U{u}"] * (2 + 2 * nt)
                        else:
                            spread += capture(g, lambda: prod_unit(g, u, nt))
                            stag = f"U{u}"
                    last = len(order) - 1 - order[::-1].index(f"U{ks//2}")
                    pre += [f"s_waitcnt vmcnt({len(order)-1-last})", "s_barrier"]
                    if ks in (0, 4, 10):
                        pre += capture(g, lambda: g.stamp(f'chunk{ {0:0,4:1,10:2}[ks] }', False))
                while spread:
                    x = spread.pop(0)
                    pre.append(x)
                    if x.startswith("buffer"):
                        order.append(stag)
                        if any(y.startswith("buffer") for y in spread):
                            break
                cm = []
                for t in range(nt):
                    d = ACC + 16 * t + 4 * c
                    af = V_XF + ((ks % 4) * 3 + t) * 4
                    if c == 0:
                        o = aslot(ks // 2, t, nt) - L_PA
                        rd.append(f"ds_read_b128 {v(af,4)}, {v(A2[(ks&1) + 2*(o >= 49152)])} offset:{o % 49152}")
                    cm.append(f"v_mfma_f32_16x16x32_bf16 {v(d,4)}, {v(af,4)}, {v(b,4)}, {'0' if ks == 0 else v(d,4)}")
                items.append((rd, cm, pre))
        pipelined(g, items, 14 if tr else 10, group=1)

    def epi(nt):
        g.nop(5 if nt == 1 else 1)
        for t in range(nt):
            P = PK + 8 * t
            for c in range(4):
                g(f"v_cvt_pk_bf16_f32 {v(P+2*c)}, {v(ACC+16*t+4*c)}, {v(ACC+16*t+4*c+1)}")
                g(f"v_cvt_pk_bf16_f32 {v(P+2*c+1)}, {v(ACC+16*t+4*c+2)}, {v(ACC+16*t+4*c+3)}")
            g(f"""
            v_permlane16_swap_b32 {v(P)}, {v(P+2)}
            v_permlane16_swap_b32 {v(P+1)}, {v(P+3)}
            v_permlane16_swap_b32 {v(P+4)}, {v(P+6)}
            v_permlane16_swap_b32 {v(P+5)}, {v(P+7)}
            buffer_store_dwordx4 {v(P,4)}, {v(V_T5)}, {s(SRD_WS,4)}, {s(S_PO0)} offen sc1
            buffer_store_dwordx4 {v(P+4,4)}, {v(V_T5)}, {s(SRD_WS,4)}, {s(S_PO1)} offen sc1
            """)
            if nt == 3:
                for aa in range(2):
                    mfma32(g, v(CSA + 4 * aa, 4), v(SELP, 4), v(P + 4 * aa, 4), "0" if t == 0 else None)
            if t < nt - 1:
                g(f"v_add_u32 {v(V_T5)}, {2*6144}, {v(V_T5)}")
        if nt == 3:
            g.nop(7)
            g(f"""
            s_mov_b32 exec_lo, 0xffff
            s_mov_b32 exec_hi, 0xffff
            buffer_store_dword {v(CSA)}, {v(V_CSO)}, {s(SRD_WS,4)}, {s(S_PC0)} offen sc1
            buffer_store_dword {v(CSA+4)}, {v(V_CSO)}, {s(SRD_WS,4)}, {s(S_PC1)} offen sc1
            s_mov_b64 exec, -1
            """)

    g("L_prod_body:")
    setup()
    g(f"""
    s_mul_i32 {s(S_T1)}, {s(S_NB)}, 49152
    s_lshl_b32 {s(S_T0)}, {s(S_T3)}, 12
    s_add_u32 {s(S_T0)}, {s(S_T0)}, {s(S_T1)}
    s_add_u32 {s(S_PO0)}, {s(S_T0)}, {WS_WVOT}
    s_add_u32 {s(S_PO1)}, {s(S_PO0)}, 2048
    """)
    tr_addr()
    nonce_and_publish(g)
    gemm(True, 1, [f"U{j}" for j in range(3) for _ in range(4)] + ["t"], {0: [3, 4, 5]})
    epi(1)
    g(f"""
    L_prod_fin:
    """)
    g.stamp('chunk3')
    g(f"""
    s_waitcnt vmcnt(0)
    s_barrier
    """)
    flag_store(g, s(S_PF), FP_REP)
    g.stamp('chunk5')
    g(f"""
    s_cmp_ge_u32 {s(S_TILE)}, 36
    s_cbranch_scc1 L_prod_out
    L_prod_help:
    """)
    if g.opts.get("help", 1):
        g(f"""
        s_lshl_b32 {s(S_T0)}, {s(S_RQ)}, 1
        s_add_u32 {s(S_T0)}, {s(S_T0)}, {s(S_CS)}
        s_sub_u32 {s(S_T0)}, {s(S_T0)}, 9
        s_lshl_b32 {s(S_T0)}, {s(S_T0)}, 2
        s_add_u32 {s(S_T0)}, {s(S_T0)}, {s(S_W)}
        s_mov_b32 {s(SRD_A)}, {s(S_WQS)}
        s_mov_b32 {s(SRD_A+1)}, {s(S_WQS+1)}
        s_mov_b32 {s(SRD_A+2)}, 884736
        v_mul_u32_u24 {v(V_T0)}, 43, {v(V_L)}
        v_lshrrev_b32 {v(V_T0)}, 8, {v(V_T0)}
        v_mul_u32_u24 {v(V_T0)}, {2304-768}, {v(V_T0)}
        v_lshl_add_u32 {v(V_T0)}, {v(V_L)}, 7, {v(V_T0)}
        s_bfe_u32 {s(S_T2)}, {s(S_G8)}, 0x10001
        s_cmp_ge_u32 {s(S_G8)}, 4
        s_cselect_b32 {s(S_T3)}, 1536, 0
        s_mov_b32 {s(S_T4)}, {10*2304}
        s_cmp_lt_u32 {s(S_T0)}, 10
        s_cbranch_scc1 L_help_go
        s_sub_u32 {s(S_T0)}, {s(S_T0)}, 10
        s_and_b32 {s(S_T2)}, {s(S_G8)}, 1
        s_movk_i32 {s(S_T3)}, 768
        s_cmp_lt_u32 {s(S_G8)}, 4
        s_cbranch_scc1 L_help_go
        s_mov_b32 {s(SRD_A)}, {s(S_WOS)}
        s_mov_b32 {s(SRD_A+1)}, {s(S_WOS+1)}
        s_mov_b32 {s(SRD_A+2)}, 294912
        v_mul_u32_u24 {v(V_T0)}, 86, {v(V_L)}
        v_lshrrev_b32 {v(V_T0)}, 8, {v(V_T0)}
        v_mul_u32_u24 {v(V_T0)}, {768-384}, {v(V_T0)}
        v_lshl_add_u32 {v(V_T0)}, {v(V_L)}, 7, {v(V_T0)}
        s_mul_i32 {s(S_T3)}, {s(S_T2)}, 384
        s_mov_b32 {s(S_T2)}, 0
        s_mov_b32 {s(S_T4)}, {20*768}
        L_help_go:
        s_mul_i32 {s(S_T2)}, {s(S_T2)}, {192*2304}
        s_add_u32 {s(S_T2)}, {s(S_T2)}, {s(S_T3)}
        s_mul_i32 {s(S_T0)}, {s(S_T0)}, {s(S_T4)}
        s_lshl_b32 {s(S_T0)}, {s(S_T0)}, 1
        s_add_u32 {s(S_T0)}, {s(S_T0)}, {s(S_T2)}
        s_add_u32 {s(S_T1)}, {s(S_T0)}, {s(S_T4)}
        s_mov_b32 exec_hi, 0x0fffffff
        buffer_load_dword {v(V_MISC+60)}, {v(V_T0)}, {s(SRD_A,4)}, {s(S_T0)} offen
        buffer_load_dword {v(V_MISC+61)}, {v(V_T0)}, {s(SRD_A,4)}, {s(S_T1)} offen
        s_mov_b32 exec_hi, -1
        """)
    g("L_prod_out:")
    g(f"s_mov_b32 {s(S_F1)}, 1")
    p2_setup(g)
    poll(g, V_PB, "0", s(S_NONCE), "pwsp", g.opts.get("pslp", 8))
    ws2_dma(g, 0)
    ws2_dma(g, 1)
    pa_wait(g, S_F1, "pxcc")
    g("s_branch L_p2c")
    g("L_prod3_body:")
    setup()
    g(f"""
    s_mul_i32 {s(S_T0)}, {s(S_T3)}, 6144
    s_sub_u32 {s(S_T1)}, {s(S_PROD)}, 1
    s_mul_i32 {s(S_T1)}, {s(S_T1)}, {4*73728}
    s_add_u32 {s(S_T0)}, {s(S_T0)}, {s(S_T1)}
    s_add_u32 {s(S_T0)}, {s(S_T0)}, {WS_WS2}
    """)
    g(f"""
    s_sub_u32 {s(S_T1)}, {s(S_PROD)}, 1
    s_mul_i32 {s(S_T2)}, {s(S_T1)}, {4*3072}
    s_cmp_eq_u32 {s(S_KB)}, 0
    s_cselect_b32 {s(S_T1)}, 0, 256
    s_add_u32 {s(S_T2)}, {s(S_T2)}, {s(S_T1)}
    s_lshr_b32 {s(S_T1)}, {s(S_W)}, 1
    s_lshl_b32 {s(S_T1)}, {s(S_T1)}, 7
    s_add_u32 {s(S_T2)}, {s(S_T2)}, {s(S_T1)}
    s_and_b32 {s(S_T1)}, {s(S_W)}, 1
    s_lshl_b32 {s(S_T1)}, {s(S_T1)}, 2
    s_add_u32 {s(S_T2)}, {s(S_T2)}, {s(S_T1)}
    s_add_u32 {s(S_T2)}, {s(S_T2)}, {WS_CSP}
    v_bfe_u32 {v(V_T0)}, {v(V_I)}, 2, 1
    v_lshlrev_b32 {v(V_T0)}, 9, {v(V_T0)}
    v_lshrrev_b32 {v(V_T1)}, 1, {v(V_G)}
    v_lshl_add_u32 {v(V_T0)}, {v(V_T1)}, 6, {v(V_T0)}
    v_lshrrev_b32 {v(V_T1)}, 3, {v(V_I)}
    v_lshl_add_u32 {v(V_T0)}, {v(V_T1)}, 5, {v(V_T0)}
    v_and_b32 {v(V_T2)}, 3, {v(V_I)}
    v_lshl_add_u32 {v(V_CSO)}, {v(V_T2)}, 3, {v(V_T0)}
    v_and_b32 {v(V_T0)}, 1, {v(V_G)}
    v_cmp_eq_u32 vcc, {v(V_T0)}, {v(V_T1)}
    s_nop 1
    v_cndmask_b32 {v(SELP)}, 0, {v(V_ONES)}, vcc
    v_cndmask_b32 {v(SELP+1)}, 0, {v(V_ONES)}, vcc
    v_cndmask_b32 {v(SELP+2)}, 0, {v(V_ONES)}, vcc
    v_cndmask_b32 {v(SELP+3)}, 0, {v(V_ONES)}, vcc
    """)
    for aa, dst, dc in ((0, S_PO0, S_PC0), (1, S_PO1, S_PC1)):
        g(f"""
        s_lshl_b32 {s(S_T3)}, {s(S_NB)}, 1
        s_add_u32 {s(S_T3)}, {s(S_T3)}, {aa}
        s_mul_hi_u32 {s(dst)}, {s(S_T3)}, {(2**32+2)//3}
        s_mul_i32 {s(S_T1)}, {s(dst)}, 3
        s_lshl_b32 {s(dc)}, {s(S_T3)}, 10
        s_add_u32 {s(dc)}, {s(dc)}, {s(S_T2)}
        s_sub_u32 {s(S_T3)}, {s(S_T3)}, {s(S_T1)}
        s_mul_i32 {s(dst)}, {s(dst)}, 73728
        s_lshl_b32 {s(S_T3)}, {s(S_T3)}, 11
        s_add_u32 {s(dst)}, {s(dst)}, {s(S_T3)}
        s_add_u32 {s(dst)}, {s(dst)}, {s(S_T0)}
        """)
    nonce_and_publish(g)
    prod_unit(g, 1, 3)
    o3 = ["U0"] * 8 + ["t"] + ["U1"] * 8
    l3 = {0: [2], 1: [3], 2: [4], 3: [5]}
    g(f"""
    s_cmp_eq_u32 {s(S_PROD)}, 1
    s_cbranch_scc1 L_prod_rows
    """)
    tr_addr()
    gemm(True, 3, list(o3), l3)
    g("L_prod_epi3:")
    epi(3)
    g("s_branch L_prod_fin")
    g(f"""
    L_prod_rows:
    v_mov_b32 {v(V_AD)}, {v(V_T3)}
    v_xor_b32 {v(V_AD+1)}, 64, {v(V_T3)}
    """)
    gemm(False, 3, list(o3), l3)
    g("s_branch L_prod_epi3")
    g("L_prod_idle:")
    common_consts(g)
    nonce_and_publish(g)
    g("s_branch L_prod_help")


A_K = 0
A_V = 144
V_RES = V_MISC + 28
RK = V_MISC
BK = 232
SG = 248
A2 = [70, 71, 72, 73, 79]
V_KO, VST, V_L16H = 78, 206, 216
VTB = 217
V_I4 = 244
VC2 = 232
V_FXP = 235
S_KS = [76, 77, 78, 79]
S_R0, S_R1, S_STX, S_FXP, S_O1, S_O0, S_FL = 80, 81, 14, 15, 3, 18, 19


def kreg(slot, ks):
    return v(V_XF + 4 * ks, 4) if slot == 0 else a(A_K + (slot - 1) * 48 + 4 * ks, 4)


def p2_setup(g):
    T0, T1, T2 = V_T0, V_T1, V_T6
    g(f"""
    v_add_u32 {v(A2[2])}, 36864, {v(V_L16)}
    v_add_u32 {v(V_KO)}, 8192, {v(V_L16)}
    v_xor_b32 {v(T0)}, {s(S_RQ)}, {v(V_G)}
    v_lshrrev_b32 {v(T1)}, 3, {v(V_I)}
    v_lshl_add_u32 {v(T1)}, {v(T0)}, 1, {v(T1)}
    v_mul_u32_u24 {v(T1)}, 768, {v(T1)}
    v_and_b32 {v(T0)}, 7, {v(V_I)}
    v_lshl_add_u32 {v(VST)}, {v(T0)}, 3, {v(T1)}
    s_mul_i32 {s(S_STX)}, {s(S_G8)}, {6*32*128}
    s_mul_i32 {s(S_T1)}, {s(S_W)}, {48*128}
    s_add_u32 {s(S_STX)}, {s(S_STX)}, {s(S_T1)}
    s_add_u32 {s(S_STX)}, {s(S_STX)}, {WS_STX}
    s_mul_i32 {s(S_FXP)}, {s(S_G8)}, {FX_REP}
    s_add_u32 {s(S_FXP)}, {s(S_FXP)}, {s(S_T1)}
    s_add_u32 {s(S_FXP)}, {s(S_FXP)}, {WS_FX}
    s_mul_i32 {s(S_T1)}, {s(S_W)}, 768
    s_add_u32 {s(S_T1)}, {s(S_T1)}, {L_ST}
    v_lshlrev_b32 {v(T0)}, 2, {v(V_L)}
    v_add_u32 {v(VTB)}, {s(S_T1)}, {v(T0)}
    v_lshlrev_b32 {v(V_I4)}, 2, {v(V_I)}
    v_lshlrev_b32 {v(VTB+1)}, 4, {v(V_G)}
    v_add_u32 {v(VTB+2)}, {s(S_T1)}, {v(VTB+1)}
    v_min_u32 {v(V_FXP)}, 47, {v(V_L)}
    v_lshlrev_b32 {v(V_FXP)}, 7, {v(V_FXP)}
    v_add_u32 {v(V_L16H)}, 4096, {v(V_L16)}
    s_lshl_b32 {s(S_T3)}, {s(S_G8)}, 2
    s_add_u32 {s(S_T3)}, {s(S_T3)}, {s(S_W)}
    s_mul_i32 {s(S_T3)}, {s(S_T3)}, {32*1536}
    s_add_u32 {s(S_T3)}, {s(S_T3)}, {WS_X1}
    s_xor_b32 {s(S_T1)}, {s(S_RQ)}, 0
    s_mul_i32 {s(S_T1)}, {s(S_T1)}, 12288
    s_add_u32 {s(S_KS[0])}, {s(S_T3)}, {s(S_T1)}
    s_xor_b32 {s(S_T1)}, {s(S_RQ)}, 1
    s_mul_i32 {s(S_T1)}, {s(S_T1)}, 12288
    s_add_u32 {s(S_KS[1])}, {s(S_T3)}, {s(S_T1)}
    s_xor_b32 {s(S_T1)}, {s(S_RQ)}, 2
    s_mul_i32 {s(S_T1)}, {s(S_T1)}, 12288
    s_add_u32 {s(S_KS[2])}, {s(S_T3)}, {s(S_T1)}
    s_xor_b32 {s(S_T1)}, {s(S_RQ)}, 3
    s_mul_i32 {s(S_T1)}, {s(S_T1)}, 12288
    s_add_u32 {s(S_KS[3])}, {s(S_T3)}, {s(S_T1)}
    s_bfe_u32 {s(S_R1)}, {s(S_J)}, 0x10002
    s_lshl_b32 {s(S_R1)}, {s(S_R1)}, 1
    s_and_b32 {s(S_T1)}, {s(S_W)}, 1
    s_add_u32 {s(S_R1)}, {s(S_R1)}, {s(S_T1)}
    s_sub_u32 {s(S_R1)}, {s(S_R1)}, {s(S_W)}
    s_mul_i32 {s(S_R1)}, {s(S_R1)}, {32*1536}
    s_add_u32 {s(S_R1)}, {s(S_R1)}, {s(S_KS[0])}
    s_and_b32 {s(S_T1)}, {s(S_J)}, 3
    s_mul_i32 {s(S_T1)}, {s(S_T1)}, 3072
    s_add_u32 {s(S_R1)}, {s(S_R1)}, {s(S_T1)}
    s_lshr_b32 {s(S_T1)}, {s(S_W)}, 1
    s_lshl_b32 {s(S_T1)}, {s(S_T1)}, 10
    s_add_u32 {s(S_R0)}, {s(S_T1)}, {s(S_R1)}
    s_lshl_b32 {s(S_FL)}, s2, 7
    s_lshl_b32 {s(S_T1)}, {s(S_W)}, 2
    s_add_u32 {s(S_FL)}, {s(S_FL)}, {s(S_T1)}
    s_add_u32 {s(S_FL)}, {s(S_FL)}, {WS_F2}
    s_lshl_b32 {s(S_T3)}, {s(S_G8)}, 2
    s_add_u32 {s(S_O0)}, {s(S_T3)}, {s(S_RQ)}
    s_lshl_b32 {s(S_O0)}, {s(S_O0)}, 2
    s_add_u32 {s(S_O1)}, {s(S_O0)}, {s(S_W)}
    s_mul_i32 {s(S_O1)}, {s(S_O1)}, 12288
    s_mul_i32 {s(S_T2)}, {s(S_CS)}, 3072
    s_add_u32 {s(S_O1)}, {s(S_O1)}, {s(S_T2)}
    s_add_u32 {s(S_O1)}, {s(S_O1)}, {WS_QP}
    s_add_u32 {s(S_O0)}, {s(S_O0)}, {s(S_CS)}
    s_lshl_b32 {s(S_O0)}, {s(S_O0)}, 2
    s_add_u32 {s(S_O0)}, {s(S_O0)}, {s(S_W)}
    s_lshl_b32 {s(S_O0)}, {s(S_O0)}, 6
    s_add_u32 {s(S_O0)}, {s(S_O0)}, {WS_SQ}
    s_add_u32 {s(S_T3)}, {s(S_T3)}, {s(S_CS)}
    s_mul_i32 {s(S_T3)}, {s(S_T3)}, 49152
    s_lshl_b32 {s(S_T2)}, {s(S_W)}, 1
    s_lshr_b32 {s(S_T1)}, {s(S_RQ)}, 1
    s_add_u32 {s(S_T2)}, {s(S_T2)}, {s(S_T1)}
    s_mul_i32 {s(S_T2)}, {s(S_T2)}, 6144
    s_add_u32 {s(S_T3)}, {s(S_T3)}, {s(S_T2)}
    s_and_b32 {s(S_T2)}, {s(S_RQ)}, 1
    s_lshl_b32 {s(S_T2)}, {s(S_T2)}, 3
    s_add_u32 {s(S_T3)}, {s(S_T3)}, {s(S_T2)}
    s_add_u32 {s(S_T3)}, {s(S_T3)}, {WS_VP-4*49152}
    s_cmp_lt_u32 {s(S_CS)}, 4
    s_cselect_b32 {s(S_O1)}, {s(S_O1)}, {s(S_T3)}
    """)


KL = ([f"buffer_load_dwordx4 {kreg(sl,ks)}, {v((V_L16, V_L16H, V_KO)[ks//4])}, {s(SRD_WS,4)}, {s(S_KS[sl])} offen offset:{(ks%4)*1024} sc1"
       for sl in range(4) for ks in range(12)] +
      [f"buffer_load_dwordx4 {v(V_RES,4)}, {v(V_L16)}, {s(SRD_WS,4)}, {s(S_R0)} offen sc1",
       f"buffer_load_dwordx4 {v(V_RES+4,4)}, {v(V_L16)}, {s(SRD_WS,4)}, {s(S_R1)} offen offset:2048 sc1"])


def colsums(g):
    CT = V_ACC + 32
    for c in range(6):
        g(f"v_add_f32 {v(CSL+4*c)}, {v(CSL+4*c)}, {v(CSL+4*c+1)}")
    for sw in ("v_permlane16_swap_b32", "v_permlane32_swap_b32"):
        for c in range(6):
            g(f"v_mov_b32 {v(CSL+4*c+1)}, {v(CSL+4*c)}")
        for c in range(6):
            g(f"{sw} {v(CSL+4*c)}, {v(CSL+4*c+1)}")
        for c in range(6):
            g(f"v_add_f32 {v(CSL+4*c)}, {v(CSL+4*c)}, {v(CSL+4*c+1)}")
    for c in range(6):
        colsum_pack(g, CSL + 4 * c, CT + 2 * c)


def k0_issue(g):
    STP = V_MISC
    for x in KL[:2]:
        g(x)
    for cb in range(6):
        g(f"buffer_load_dwordx2 {v(STP+2*cb,2)}, {v(VST)}, {s(SRD_WS,4)}, {s(S_STX)} offen offset:{cb*128} sc1")
    for x in KL[2:12]:
        g(x)


def p2(g):
    ACC = V_ACC
    CS = V_ACC + 24
    CT = V_ACC + 32
    RT = V_MISC + 16
    STP = V_MISC
    KM, KR, KB = V_MISC + 12, V_MISC + 13, V_MISC + 20
    g("L_p2:")
    ws2_dma(g, 1)
    p2_setup(g)
    g("L_p2c:")
    FXW = g.opts.get("fxw", 1)
    fx = f"buffer_load_dword {v(V_T7)}, {v(V_FXP)}, {s(SRD_WS,4)}, {s(S_FXP)} offen sc1"
    if FXW == 0:
        g(fx)
    g(f"s_waitcnt vmcnt({10 if FXW == 0 else 9})")
    g.stamp('wsland')
    colsums(g)
    if FXW >= 2:
        g(f"s_waitcnt vmcnt({(0, 0, 4, 0)[FXW]})")
    if FXW:
        g(fx)
    g(f"s_mov_b32 {s(S_SPIN)}, {SPIN_LIMIT}")
    g.stamp('ws2rdy')
    g(f"""
    L_px:
    s_waitcnt vmcnt(0)
    v_cmp_ne_u32 vcc, {s(S_NONCE)}, {v(V_T7)}
    s_cbranch_vccz L_pxok
    {'s_sleep %d' % g.opts.get("slp", 2) if g.opts.get("slp", 2) else ''}
    buffer_load_dword {v(V_T7)}, {v(V_FXP)}, {s(SRD_WS,4)}, {s(S_FXP)} offen sc1
    s_sub_u32 {s(S_SPIN)}, {s(S_SPIN)}, 1
    s_cbranch_scc0 L_px
    L_pxok:
    """)
    g.stamp('x1ok')
    k0_issue(g)
    g("L_p2_go:")
    g(f"""
    s_barrier
    s_cmp_lt_u32 {s(S_CS)}, 4
    s_cbranch_scc0 L_p2_v
    """)

    def stats():
        for c in range(1, 6):
            g(f"v_add_f32 {v(STP)}, {v(STP)}, {v(STP+2*c)}")
            g(f"v_add_f32 {v(STP+1)}, {v(STP+1)}, {v(STP+2*c+1)}")
        mean_rstd(g, STP, STP + 1, KM, KR)
        for src, dst in ((KM, V_MEAN), (KR, V_R)):
            g(f"v_mov_b32 {v(dst)}, {v(src)}")
            g(f"v_mov_b32 {v(V_T0)}, {v(src)}")
            g.nop(2)
            g(f"v_permlane16_swap_b32 {v(dst)}, {v(V_T0)}")
            g.nop(1)
            g(f"v_mov_b32 {v(V_T0)}, {v(dst)}")
            g.nop(2)
            g(f"v_permlane32_swap_b32 {v(dst)}, {v(V_T0)}")
            g.nop(1)
        mu_operand(g, V_MEAN)
        g(f"""
        v_mul_f32 {v(KB)}, {v(KM)}, {v(KR)}
        v_mul_f32 {v(V_T0)}, {f2u(SCALE_LOG2E):#x}, {v(V_R)}
        v_mov_b32 {v(V_T1)}, {v(V_T0)}
        """)
    KIN = g.opts.get("kin", 28)
    KA = g.opts.get("kafter", 8)
    KB4 = g.opts.get("kpoll", 0)
    for typ in range(2):
        if typ == 1:
            g("L_p2_v:")
        g.stamp('k0')
        items = []
        order = ["K0", "K1"] + ["s"] * 6 + [f"K{q}" for q in range(2, 12)]
        nk = 12
        slots = [round((q + 0.5) * 72 / KIN) for q in range(KIN)] if KIN else []
        fill = capture(g, stats)
        for ks in range(12):
            for c in range(6):
                n = ks * 6 + c
                b = V_BUF + (n % 16) * 4
                ad = V_L16 if ks < 6 else A2[2]
                rd = [f"ds_read_b128 {v(b,4)}, {v(ad)} offset:{(ks%6)*6144+c*1024}"]
                cc = "0" if ks == 0 else v(ACC + 4 * c, 4)
                cm = []
                if c == 0:
                    cm.append(f"s_waitcnt vmcnt({len(order) - 1 - order.index(f'K{ks}')})")
                if typ == 0:
                    cm.append(f"v_mfma_f32_16x16x32_bf16 {v(ACC+4*c,4)}, {v(b,4)}, {v(V_XF+4*ks,4)}, {cc}")
                else:
                    cm.append(f"v_mfma_f32_16x16x32_bf16 {v(ACC+4*c,4)}, {v(V_XF+4*ks,4)}, {v(b,4)}, {cc}")
                if n >= 14 and fill:
                    cm.append(fill.pop(0))
                for _ in range(slots.count(n)):
                    cm.append(KL[nk])
                    order.append(f"K{nk}")
                    nk += 1
                items.append((rd, cm))
        assert not fill
        pipelined(g, items, 12, group=2)
        g.stamp('p2gemm')
        PK = V_BUF
        if typ == 0:
            for c in range(6):
                mfma16(g, v(ACC + 4 * c, 4), v(CT + 2 * c, 2), v(V_MU, 2))
            g.nop(3)
            for m in range(3):
                for i in range(4 * m, 4 * m + 4):
                    g(f"v_pk_mul_f32 {v(ACC+2*i,2)}, {v(ACC+2*i,2)}, {v(V_T0,2)}")
            for i in range(12):
                g(f"v_cvt_pk_bf16_f32 {v(PK+i)}, {v(ACC+2*i)}, {v(ACC+2*i+1)}")
            g.nop(1)
            for m in range(3):
                mfma32(g, v(CS, 4), v(V_ONES, 4), v(PK + 4 * m, 4), "0" if m == 0 else None)

            def st(sc):
                for m in range(3):
                    g(f"buffer_store_dwordx4 {v(PK+4*m,4)}, {v(V_L16)}, {s(SRD_WS,4)}, {s(S_O1)} offen offset:{m*1024}{sc}")
                g(f"""
                s_nop 3
                s_mov_b64 exec, {s(S_G0,2)}
                buffer_store_dword {v(CS)}, {v(V_I4)}, {s(SRD_WS,4)}, {s(S_O0)} offen{sc}
                s_mov_b64 exec, -1
                """)
            both_modes(g, st)
        else:
            for e in range(4):
                g(f"ds_bpermute_b32 {v(RT+e)}, {v(VTB+1)}, {v(KR)} offset:{4*e}")
            for c in range(6):
                mfma16(g, v(ACC + 4 * c, 4), v(V_MU, 2), v(CT + 2 * c, 2))
            g.nop(2)
            g("s_waitcnt lgkmcnt(0)")
            for c in range(6):
                for h in range(2):
                    g(f"v_pk_mul_f32 {v(ACC+4*c+2*h,2)}, {v(ACC+4*c+2*h,2)}, {v(RT+2*h,2)}")
            for i in range(12):
                g(f"v_cvt_pk_bf16_f32 {v(PK+i)}, {v(ACC+2*i)}, {v(ACC+2*i+1)}")

            def st(sc):
                for c in range(6):
                    vo, off = (V_L16, c * 1024) if c < 4 else (V_L16H, (c - 4) * 1024)
                    g(f"buffer_store_dwordx2 {v(PK+2*c,2)}, {v(vo)}, {s(SRD_WS,4)}, {s(S_O1)} offen offset:{off}{sc}")
            both_modes(g, st)
        if typ == 0:
            g("s_branch L_p2_done")
    g("L_p2_done:")
    g.stamp('p2st')
    for x in KL[nk:nk + KA]:
        g(x)
    g(f"""
    ds_write_b32 {v(VTB)}, {v(KR)}
    ds_write_b32 {v(VTB)}, {v(KB)} offset:256
    """)
    p3_setup(g)
    g(f"s_waitcnt vmcnt({KA}) lgkmcnt(0)")
    g("s_mov_b64 exec, 1")
    both_modes(g, lambda sc: g(f"buffer_store_dword {v(V_NONCE)}, {v(V_ZERO)}, {s(SRD_WS,4)}, {s(S_FL)} offen{sc}"))
    g("s_mov_b64 exec, -1")
    g.stamp('p2flag')
    for x in KL[nk + KA:nk + KA + KB4]:
        g(x)
    for sl in range(4):
        g(f"ds_read_b128 {v(RK+4*sl,4)}, {v(VTB+2)} offset:{sl*64}")
        g(f"ds_read_b128 {v(BK+4*sl,4)}, {v(VTB+2)} offset:{256+sl*64}")
    return nk + KA + KB4


S_Q, S_SQ, S_V0, S_V1 = S_TAG, S_TAG + 1, S_TAG + 2, S_TAG + 3


def p3_setup(g):
    g(f"""
    v_bfe_u32 {v(V_T0)}, {v(V_L)}, 2, 2
    s_and_b32 {s(S_T5)}, {s(S_J)}, 3
    s_add_u32 {s(S_T1)}, {s(S_T5)}, 4
    v_lshlrev_b32 {v(V_T2)}, 3, {v(V_T0)}
    v_add_u32 {v(V_T2)}, {s(S_T1)}, {v(V_T2)}
    s_lshl_b32 {s(S_T1)}, {s(S_RQ)}, 3
    v_add_u32 {v(V_T0)}, {s(S_T1)}, {v(V_T0)}
    v_and_b32 {v(V_T6)}, 16, {v(V_L)}
    v_cmp_eq_u32 vcc, 0, {v(V_T6)}
    s_lshl_b32 {s(S_T0)}, {s(S_G8)}, 7
    s_add_u32 {s(S_T0)}, {s(S_T0)}, {WS_F2}
    v_cndmask_b32 {v(V_T0)}, {v(V_T2)}, {v(V_T0)}, vcc
    v_lshlrev_b32 {v(V_T0)}, 10, {v(V_T0)}
    v_and_b32 {v(V_T1)}, 3, {v(V_L)}
    v_lshl_add_u32 {v(V_T0)}, {v(V_T1)}, 2, {v(V_T0)}
    s_bfe_u32 {s(S_T4)}, {s(S_J)}, 0x10002
    s_lshl_b32 {s(S_T6)}, {s(S_G8)}, 2
    s_add_u32 {s(S_T7)}, {s(S_T6)}, {s(S_T5)}
    s_add_u32 {s(S_T6)}, {s(S_T6)}, {s(S_RQ)}
    s_lshl_b32 {s(S_Q)}, {s(S_T6)}, 1
    s_add_u32 {s(S_Q)}, {s(S_Q)}, {s(S_T4)}
    s_mul_i32 {s(S_Q)}, {s(S_Q)}, 24576
    s_mul_i32 {s(S_T2)}, {s(S_W)}, 3072
    s_add_u32 {s(S_Q)}, {s(S_Q)}, {s(S_T2)}
    s_add_u32 {s(S_Q)}, {s(S_Q)}, {WS_QP}
    s_add_u32 m0, {s(S_T2)}, {L_WVO}
    s_lshl_b32 {s(S_SQ)}, {s(S_T6)}, 10
    s_lshl_b32 {s(S_T2)}, {s(S_T4)}, 7
    s_add_u32 {s(S_SQ)}, {s(S_SQ)}, {s(S_T2)}
    s_add_u32 {s(S_SQ)}, {s(S_SQ)}, {WS_SQ}
    s_mul_i32 {s(S_V1)}, {s(S_T7)}, 49152
    s_mul_i32 {s(S_T2)}, {s(S_W)}, 12288
    s_add_u32 {s(S_V1)}, {s(S_V1)}, {s(S_T2)}
    s_add_u32 {s(S_V1)}, {s(S_V1)}, {WS_VP}
    s_lshr_b32 {s(S_T2)}, {s(S_RQ)}, 1
    s_mul_i32 {s(S_T2)}, {s(S_T2)}, 6144
    s_add_u32 {s(S_V0)}, {s(S_V1)}, {s(S_T2)}
    s_sub_u32 {s(S_V1)}, {s(S_V1)}, {s(S_T2)}
    s_add_u32 {s(S_V1)}, {s(S_V1)}, 6144
    s_add_u32 {s(S_T3)}, {s(S_Q)}, 12288
    v_lshl_add_u32 {v(V_T5)}, {v(V_G)}, 8, {v(V_I4)}
    v_add_u32 {v(V_AD)}, {L_WVO}, {v(V_L16)}
    """)
    g(f"""
    s_lshl_b32 {s(S_T1)}, {s(S_W)}, 11
    v_add_u32 {v(V_AD+1)}, {s(S_T1)}, {v(V_L16)}
    s_lshl_b32 {s(S_T1)}, {s(S_W)}, 8
    s_add_u32 {s(S_T1)}, {s(S_T1)}, {L_ML}
    v_lshlrev_b32 {v(V_T1)}, 3, {v(V_I)}
    v_add_u32 {v(V_AD+2)}, {s(S_T1)}, {v(V_T1)}
    s_and_b32 {s(S_T7)}, {s(S_W)}, 1
    s_lshl_b32 {s(S_T1)}, {s(S_T7)}, 7
    s_add_u32 {s(S_T1)}, {s(S_T1)}, {L_ML}
    v_add_u32 {v(V_AD+3)}, {s(S_T1)}, {v(V_T1)}
    s_lshl_b32 {s(S_T1)}, {s(S_W)}, 13
    v_add_u32 {v(213)}, {s(S_T1)}, {v(V_L16)}
    s_lshl_b32 {s(S_O1)}, {s(S_T4)}, 1
    s_add_u32 {s(S_O1)}, {s(S_O1)}, {s(S_T7)}
    s_lshl_b32 {s(S_O1)}, {s(S_O1)}, 6
    s_lshl_b32 {s(S_T2)}, {s(S_RQ)}, 4
    s_add_u32 {s(S_O1)}, {s(S_O1)}, {s(S_T2)}
    s_lshl_b32 {s(S_T2)}, {s(S_G8)}, 8
    s_add_u32 {s(S_O1)}, {s(S_O1)}, {s(S_T2)}
    s_mul_i32 {s(S_O1)}, {s(S_O1)}, 768
    s_mul_i32 {s(S_T2)}, {s(S_T5)}, 192
    s_add_u32 {s(S_O1)}, {s(S_O1)}, {s(S_T2)}
    s_lshr_b32 {s(S_T2)}, {s(S_W)}, 1
    s_lshl_b32 {s(S_T2)}, {s(S_T2)}, 6
    s_add_u32 {s(S_O0)}, {s(S_T2)}, {s(S_O1)}
    v_mul_u32_u24 {v(V_T2)}, 768, {v(V_I)}
    v_lshl_add_u32 {v(A2[0])}, {v(V_G)}, 4, {v(V_T2)}
    """)


def wbl2(g):
    sk = g.label("nowb")
    g(f"""
    s_lshl_b32 {s(S_T0)}, {s(S_J)}, 2
    s_add_u32 {s(S_T0)}, {s(S_T0)}, {s(S_W)}
    s_and_b32 {s(S_T0)}, {s(S_T0)}, {g.opts.get("wbm", 127)}
    s_cmp_lg_u32 {s(S_T0)}, 3
    s_cbranch_scc1 {sk}
    buffer_wbl2 sc1
    {sk}:
    """)


def p3(g, nk):
    SA = V_ACC
    LS = V_ACC + 32
    MX = V_ACC + 40
    SQ = V_ACC + 42
    OA = V_BUF
    QB = V_BUF + 32
    PF = V_XF
    BS = OA
    V_RW, V_MW, V_MR, V_RR, V_OO = V_AD + 1, V_AD + 2, V_AD + 3, 213, A2[0]
    poll(g, V_T0, s(S_T0), s(S_NONCE), "p2f")
    g.stamp('e3ok')
    for u in range(2):
        g(f"buffer_load_dword {v(SQ+u)}, {v(V_T5)}, {s(SRD_WS,4)}, {s(S_SQ)} offen offset:{u*64} sc1")
    for q in range(3):
        g(f"buffer_load_dwordx4 {v(V_L16)}, {s(SRD_WS,4)}, {s(S_Q)} offen offset:{q*1024} sc1 lds")
    g(f"s_add_u32 m0, m0, 12288")
    g("s_nop 0")
    for q in range(3):
        g(f"buffer_load_dwordx4 {v(V_L16)}, {s(SRD_WS,4)}, {s(S_T3)} offen offset:{q*1024} sc1 lds")
    vl = []
    for pr, so in ((0, S_V0), (1, S_V1)):
        for c in range(6):
            vo, off = (V_L16, c * 1024) if c < 4 else (V_L16H, (c - 4) * 1024)
            vl.append(f"buffer_load_dwordx4 {a(A_V+(pr*6+c)*4,4)}, {v(vo)}, {s(SRD_WS,4)}, {s(so)} offen offset:{off} sc1")
    late = KL[nk:48] + vl + KL[48:]
    nkl = 48 - min(nk, 48)
    g("s_waitcnt vmcnt(6) lgkmcnt(0)")
    for u in range(2):
        g(f"v_mov_b32 {v(SG+u)}, {v(SQ+u)}")
    g.nop(1)
    for u in range(2):
        g(f"v_permlane16_swap_b32 {v(SQ+u)}, {v(SG+u)}")
    for u in range(2):
        g(f"v_add_f32 {v(SQ+u)}, {v(SQ+u)}, {v(SG+u)}")
    for u in range(2):
        g(f"v_mov_b32 {v(SG+u)}, {v(SQ+u)}")
    g.nop(1)
    for u in range(2):
        g(f"v_permlane32_swap_b32 {v(SQ+u)}, {v(SG+u)}")
    for u in range(2):
        g(f"v_add_f32 {v(SG+2+2*u)}, {v(SQ+u)}, {v(SG+u)}")
        g(f"v_add_f32 {v(SG+3+2*u)}, {v(SQ+u)}, {v(SG+u)}")
    for u in range(2):
        for i in range(8):
            g(f"v_pk_mul_f32 {v(BS+16*u+2*i,2)}, {v(BK+2*i,2)}, {v(SG+2+2*u,2)}")
    g(f"""
    s_waitcnt vmcnt(3)
    s_barrier
    """)
    g.stamp('qland')

    def softmax_lines(u, pk):
        d = SA + u * 16
        TMP = SG + 4 * u
        L = []
        if pk:
            for i in range(8):
                L.append(f"v_pk_fma_f32 {v(d+2*i,2)}, {v(d+2*i,2)}, {v(RK+2*i,2)}, {v(BS+16*u+2*i,2)} neg_lo:[0,0,1] neg_hi:[0,0,1]")
        else:
            for i in range(16):
                L.append(f"v_fma_f32 {v(d+i)}, {v(d+i)}, {v(RK+i)}, -{v(BS+16*u+i)}")
        nf = len(L)
        L.append(f"v_max3_f32 {v(MX+u)}, {v(d)}, {v(d+1)}, {v(d+2)}")
        for i in range(3, 15, 2):
            L.append(f"v_max3_f32 {v(MX+u)}, {v(MX+u)}, {v(d+i)}, {v(d+i+1)}")
        L.append(f"v_max_f32 {v(MX+u)}, {v(MX+u)}, {v(d+15)}")
        L += capture(g, lambda: xlane_sum(g, MX + u, TMP + 2, "v_max_f32"))
        if pk:
            L.append(f"v_mov_b32 {v(TMP)}, {v(MX+u)}")
            L.append(f"v_mov_b32 {v(TMP+1)}, {v(MX+u)}")
            for i in range(8):
                L.append(f"v_pk_add_f32 {v(d+2*i,2)}, {v(d+2*i,2)}, {v(TMP,2)} neg_lo:[0,1] neg_hi:[0,1]")
        else:
            for i in range(16):
                L.append(f"v_sub_f32 {v(d+i)}, {v(d+i)}, {v(MX+u)}")
        for i in range(16):
            L.append(f"v_exp_f32 {v(d+i)}, {v(d+i)}")
        return L, nf
    OV = g.opts.get("ov", 0)
    sm0, _ = softmax_lines(0, not OV)
    items = []
    rest = list(late)
    issued = 0
    LSPAN = g.opts.get("lspan", 80)
    L0 = g.opts.get("l0", 0)
    lpos = [L0 + int(q * (LSPAN - L0) / max(len(rest), 1)) for q in range(len(rest))]
    for u in range(2):
        for ks in range(12):
            b = QB + ((u * 12 + ks) % 8) * 4
            rd = [f"ds_read_b128 {v(b,4)}, {v(V_AD)} offset:{u*12288+ks*1024}"]
            cm = []
            for sl in range(4):
                kidx = sl * 12 + ks
                if kidx >= nk and u == 0:
                    assert issued - (kidx - nk) - 1 >= 0
                    cm.append(f"s_waitcnt vmcnt({issued - (kidx - nk) - 1})")
                d = SA + u * 16 + sl * 4
                cm.append(f"v_mfma_f32_16x16x32_bf16 {v(d,4)}, {kreg(sl,ks)}, {v(b,4)}, {'0' if ks == 0 else v(d,4)}")
                pos = u * 48 + ks * 4 + sl
                for _ in range(lpos.count(pos)):
                    cm.append(rest.pop(0))
                    issued += 1
                if u == 1 and OV and pos >= 50:
                    take = 1 if sm0 and sm0[0].startswith("v_exp") and g.opts.get("e1", 0) else 2
                    cm += sm0[:take]
                    sm0 = sm0[take:]
            pre = []
            items.append((rd, cm, pre, issued))
    assert not rest
    QD = g.opts.get('qd', 4)
    before = items[12 - QD - 1][3]
    items[12][2].extend([f"s_waitcnt vmcnt({before})", "s_barrier"])
    if g.opts.get("wb", 0) == 1:
        items[12][2].extend(capture(g, lambda: wbl2(g)))
    pipelined(g, items, QD)
    for x in sm0:
        g(x)
    g.stamp('sdone')

    def cvts(u, odd):
        L = []
        for sl in range(4):
            for h in range(2):
                dst = PF + u * 8 + (sl >> 1) * 4 + ((sl & 1) ^ odd) * 2 + h
                src = SA + u * 16 + sl * 4 + 2 * h
                L.append(f"v_cvt_pk_bf16_f32 {v(dst)}, {v(src)}, {v(src+1)}")
        return L

    def cvt_branch(u):
        lo, lj = g.label("odd"), g.label("cj")
        g(f"s_bitcmp1_b32 {s(S_RQ)}, 0")
        g(f"s_cbranch_scc1 {lo}")
        for x in cvts(u, 0):
            g(x)
        g(f"s_branch {lj}")
        g(f"{lo}:")
        for x in cvts(u, 1):
            g(x)
        g(f"{lj}:")

    def pv_lines(u):
        L = []
        for pr in range(2):
            p = v(PF + u * 8 + pr * 4, 4)
            for c in range(6):
                d = OA + u * 24 + c * 4
                L.append(f"v_mfma_f32_16x16x32_bf16 {v(d,4)}, {a(A_V+(pr*6+c)*4,4)}, {p}, {'0' if pr == 0 else v(d,4)}")
            L.append(f"v_mfma_f32_16x16x32_bf16 {v(LS+4*u,4)}, {v(V_ONES,4)}, {p}, {'0' if pr == 0 else v(LS+4*u,4)}")
        return L
    cvt_branch(0)
    sm1, _ = softmax_lines(1, True)
    ex = sm1[-16:]
    for x in sm1[:-16]:
        g(x)
    g("s_waitcnt vmcnt(0)")
    if g.opts.get("wb", 0) == 2:
        wbl2(g)
    for x in pv_lines(0):
        g(x)
        if ex:
            g(ex.pop(0))
    for x in ex:
        g(x)
    g.stamp('smax')
    cvt_branch(1)
    OUT = V_ACC
    unp = []
    for rnd in range(2):
        for i in range(8):
            src = V_RES + 4 * rnd + (i >> 1)
            unp.append(f"v_and_b32 {v(OUT+8*rnd+i)}, 0xffff0000, {v(src)}" if i & 1 else
                       f"v_lshlrev_b32 {v(OUT+8*rnd+i)}, 16, {v(src)}")
    g(f"v_mov_b32 {v(V_T4)}, {v(MX)}")
    g(f"v_mov_b32 {v(V_T5)}, {v(LS)}")
    w0 = [f"ds_write_b128 {v(V_RW)}, {v(OA+(2*m+h)*4,4)} offset:{2*m*8192+h*1024}" for m in range(3) for h in range(2)]
    w0.append(f"ds_write_b64 {v(V_MW)}, {v(V_T4,2)}")
    for n, x in enumerate(pv_lines(1)):
        g(x)
        if n % 2 == 1:
            g(w0.pop(0))
        else:
            g(unp.pop(0))
    g.stamp('pvdone')
    for x in unp[:3]:
        g(x)
    unp = unp[3:]
    for m in range(3):
        for h in range(2):
            g(f"ds_write_b128 {v(V_RW)}, {v(OA+24+(2*m+h)*4,4)} offset:{(2*m+1)*8192+h*1024}")
            g(unp.pop(0))
    g(f"""
    v_mov_b32 {v(V_T6)}, {v(MX+1)}
    v_mov_b32 {v(V_T7)}, {v(LS+4)}
    ds_write_b64 {v(V_MW)}, {v(V_T6,2)} offset:128
    s_waitcnt lgkmcnt(0)
    s_barrier
    """)
    g.stamp('redbar')
    ML = V_ACC + 16
    FW = V_ACC + 24
    RD = V_BUF
    for w in range(4):
        g(f"ds_read_b64 {v(ML+2*w,2)}, {v(V_MR)} offset:{w*256}")
    for w in range(4):
        for h in range(2):
            g(f"ds_read_b128 {v(RD+w*8+h*4,4)}, {v(V_RR)} offset:{w*2048+h*1024}")
    g(f"""
    s_waitcnt lgkmcnt(8)
    v_max3_f32 {v(V_T3)}, {v(ML)}, {v(ML+2)}, {v(ML+4)}
    v_max_f32 {v(V_T3)}, {v(V_T3)}, {v(ML+6)}
    """)
    for w in range(4):
        g(f"v_sub_f32 {v(FW+2*w)}, {v(ML+2*w)}, {v(V_T3)}")
    for w in range(4):
        g(f"v_exp_f32 {v(FW+2*w)}, {v(FW+2*w)}")
    g(f"""
    s_waitcnt lgkmcnt(2)
    s_cmp_ge_u32 {s(S_W)}, 2
    s_cbranch_scc1 L_nord2
    """)
    for w in range(4):
        for h in range(2):
            g(f"ds_read_b128 {v(RD+32+w*8+h*4,4)}, {v(V_RR)} offset:{32768+w*2048+h*1024}")
    g(f"""
    s_waitcnt lgkmcnt(8)
    s_branch L_rd1
    L_nord2:
    s_waitcnt lgkmcnt(0)
    L_rd1:
    v_mul_f32 {v(V_T3)}, {v(FW)}, {v(ML+1)}
    v_fmac_f32 {v(V_T3)}, {v(FW+2)}, {v(ML+3)}
    v_fmac_f32 {v(V_T3)}, {v(FW+4)}, {v(ML+5)}
    v_fmac_f32 {v(V_T3)}, {v(FW+6)}, {v(ML+7)}
    v_rcp_f32 {v(V_T3)}, {v(V_T3)}
    s_nop 0
    """)
    for w in range(4):
        g(f"v_mul_f32 {v(FW+2*w)}, {v(FW+2*w)}, {v(V_T3)}")
        g(f"v_mov_b32 {v(FW+2*w+1)}, {v(FW+2*w)}")
    osc = " sc1" if g.opts.get("outsc1", 1) else (" nt" if g.opts.get("outnt", 0) else "")
    for rnd in range(2):
        if rnd == 1:
            g(f"""
            s_cmp_ge_u32 {s(S_W)}, 2
            s_cbranch_scc1 L_fin
            """)
        for w in range(4):
            if rnd == 1:
                g(f"s_waitcnt lgkmcnt({6-2*w})")
            for i in range(4):
                g(f"v_pk_fma_f32 {v(OUT+8*rnd+2*i,2)}, {v(RD+32*rnd+w*8+2*i,2)}, {v(FW+2*w,2)}, {v(OUT+8*rnd+2*i,2)}")
        PK = V_ACC + 32 + 4 * rnd
        if rnd == 0 and g.opts.get("perturb", 0):
            g(f"""
            s_or_b32 {s(S_T0)}, s2, {s(S_W)}
            s_cmp_lg_u32 {s(S_T0)}, 0
            s_cbranch_scc1 L_nopert
            s_mov_b64 exec, 1
            v_add_f32 {v(OUT)}, {f2u(g.opts["perturb"]/1000.):#x}, {v(OUT)}
            s_mov_b64 exec, -1
            L_nopert:
            """)
        for i in range(4):
            g(f"v_cvt_pk_bf16_f32 {v(PK+i)}, {v(OUT+8*rnd+2*i)}, {v(OUT+8*rnd+2*i+1)}")
        if rnd == 0:
            g(f"buffer_store_dwordx4 {v(PK,4)}, {v(V_OO)}, {s(SRD_OUT,4)}, {s(S_O0)} offen{osc}")
        else:
            g(f"buffer_store_dwordx4 {v(PK,4)}, {v(V_OO)}, {s(SRD_OUT,4)}, {s(S_O1)} offen offset:128{osc}")
    g("L_fin:")


def epilogue(g):
    g(f"""
    s_or_b32 {s(S_T0)}, s2, {s(S_W)}
    s_cmp_lg_u32 {s(S_T0)}, 0
    s_cbranch_scc1 L_nononce
    s_mov_b64 exec, 1
    buffer_store_dword {v(V_NONCE)}, {v(V_ZERO)}, {s(SRD_WS,4)}, 0 offen
    s_mov_b64 exec, -1
    L_nononce:
    """)
    if g.stamps:
        g(f"""
        s_cmp_lg_u32 {s(S_W)}, 0
        s_cbranch_scc1 L_end
        s_waitcnt vmcnt(0)
        s_memtime s[98:99]
        s_memrealtime s[100:101]
        s_waitcnt lgkmcnt(0)
        s_lshl_b32 {s(S_T0)}, s2, 8
        s_add_u32 {s(S_T0)}, {s(S_T0)}, {WS_STAMP}
        v_mov_b32 {v(V_T1)}, 0
        s_mov_b64 exec, 1
        """)
        for i in range(20):
            g(f"v_mov_b32 {v(V_T0)}, s{S_STAMP+i}")
            g(f"buffer_store_dword {v(V_T0)}, {v(V_T1)}, {s(SRD_WS,4)}, {s(S_T0)} offen offset:{4*i}")
            g("s_nop 1")
    if g.opts.get("dbg", 0):
        g(f"""
        s_cmp_lg_u32 {s(S_W)}, 0
        s_cbranch_scc1 L_end
        s_cmp_ge_u32 {s(S_CS)}, 6
        s_cbranch_scc1 L_end
        s_waitcnt vmcnt(0)
        s_memrealtime s[98:99]
        s_waitcnt lgkmcnt(0)
        s_not_b32 s84, s84
        v_mov_b32 {v(V_T1)}, 0
        s_mov_b64 exec, 1
        """)
        for i in range(8):
            g(f"v_mov_b32 {v(V_T0)}, s{84+2*i}")
            g(f"global_atomic_umax {v(V_T1)}, {v(V_T0)}, s[82:83] offset:{4*i}")
            g("s_nop 1")
    g("L_end:")
    g("s_endpgm")


def build(stamps=False, opts=None):
    g = G(stamps, opts)
    prologue(g)
    p0_issue(g)
    g("s_branch L_main")
    products(g)
    g("L_main:")
    p0_main(g)
    p1(g)
    nk = p2(g)
    p3(g, nk)
    epilogue(g)
    products_body(g)
    g("L_code_end:")
    hdr = f"""; TimeSformer divided space-time attention block, one persistent launch (256 workgroups, one per CU).
{('; wsstamp:%d' % WS_STAMP + chr(10)) if stamps else ''}; @launch grid=(256,1,1) block=(256,1,1) lds={LDS_SIZE}
.amdgcn_target "amdgcn-amd-amdhsa--gfx950"
.text
.globl {KNAME}
.p2align 8
.type {KNAME},@function
{KNAME}:
"""
    ftr = f"""
.section .rodata,"a"
.p2align 6
.amdhsa_kernel {KNAME}
  .amdhsa_next_free_vgpr 512
  .amdhsa_next_free_sgpr 102
  .amdhsa_accum_offset 256
  .amdhsa_group_segment_fixed_size 0
  .amdhsa_kernarg_size 64
  .amdhsa_user_sgpr_count 2
  .amdhsa_user_sgpr_kernarg_segment_ptr 1
  .amdhsa_system_sgpr_workgroup_id_x 1
.end_amdhsa_kernel
"""
    return hdr + "\n".join(g.L) + ftr


if __name__ == "__main__":
    out = sys.argv[1]
    stamps = None
    opts = {}
    for x in sys.argv[2:]:
        if x.startswith("--stamps="):
            stamps = ["start"] + x.split("=")[1].split(",")
            assert len(stamps) <= 7
        elif "=" in x:
            k, val = x.split("=")
            opts[k] = int(val)
    open(out, "w").write(build(stamps, opts))
```

```python
import sys, math

KNAME = "standalone__video_timesformer__vision_kernel"

WS_NONCE = 0
WS_FXCC = 0x1000
WS_F2 = 0x13000
WS_SP = 0x1B000
WS_STX = 0x7B000
WS_WVOT = 0xB3000
WS_WS2 = 0xFB000
WS_X1 = 0x18B000
WS_QP = 0x30B000
WS_VP = 0x48B000
WS_CSP = 0x60B000
WS_FP = 0x617000
FP_REP = 96 * 128
WS_SQ = WS_FP + 8 * FP_REP
WS_STAMP = WS_SQ + 0x10000
WS_SIZE = WS_STAMP + 256 * 256

L_W = 0
L_WVO = 98304
L_T = 81920
L_CT0 = 147456
L_CT1 = L_CT0 + 1024
L_CT2 = L_CT1 + 512
L_ML = L_CT2 + 1024
L_ST = L_ML + 1024
L_SG = L_ST + 3072
LDS_SIZE = L_SG + 512

SPIN_LIMIT = 40000
SCALE_LOG2E = (384 ** -0.5) * math.log2(math.e)


def f2u(x):
    import struct
    return struct.unpack("<I", struct.pack("<f", x))[0]


DBG_STAMPS = ['chunk0', 'sstored', 'x1flag', 'k0', 'e3ok', 'pvdone']


class G:
    def __init__(self, stamps=False, opts=None):
        self.L = []
        self.stamps = stamps
        self.nstamp = 0
        self.uid = 0
        self.opts = opts or {}

    def __call__(self, s):
        for line in s.split("\n"):
            line = line.strip()
            if line:
                self.L.append("    " + line if not line.endswith(":") else line)

    def label(self, p):
        self.uid += 1
        return f"L_{p}_{self.uid}"

    def nop(self, n):
        while n > 0:
            k = min(n, 16)
            self(f"s_nop {k-1}")
            n -= k

    def stamp(self, name, wait=True):
        if self.opts.get("dbg", 0) and name in DBG_STAMPS:
            k = 86 + 2 * DBG_STAMPS.index(name)
            self(f"s_memrealtime s[{k}:{k+1}]")
        if self.stamps and name in self.stamps:
            idx = 1 + self.stamps.index(name)
            self(f"s_memtime s[{S_STAMP+2*idx}:{S_STAMP+2*idx+1}]")
            if wait:
                self("s_waitcnt lgkmcnt(0)")


def v(a, n=1):
    return f"v{a}" if n == 1 else f"v[{a}:{a+n-1}]"


def a(x, n=1):
    return f"a{x}" if n == 1 else f"a[{x}:{x+n-1}]"


def s(x, n=1):
    return f"s{x}" if n == 1 else f"s[{x}:{x+n-1}]"


S_X, S_WQT, S_WOT, S_WQS, S_WOS, S_OUT, S_DBG, S_WS = 4, 6, 8, 10, 12, 14, 16, 18
S_G8, S_J, S_W, S_NONCE, S_ME = 20, 21, 22, 23, 24
S_RB = 25
S_T0, S_T1, S_T2, S_T3 = 27, 28, 29, 30
S_SPIN = 31
SRD_WS = 32
SRD_A = 36
SRD_B = 40
SRD_OUT = 44
S_VALID = 48
S_G0 = 50
S_TAG = 52
S_M = 56
S_ONES = 58
S_RQ = 59
S_CS = 60
S_SLOW = 61
S_F1 = 62
S_F2 = 63
S_T4, S_T5, S_T6, S_T7 = 64, 65, 66, 67
S_DIAG = 100
S_STAMP = 82

V_TID, V_L, V_I, V_G = 0, 1, 2, 3
V_T0, V_T1, V_T2, V_T3, V_T4, V_T5, V_T6, V_T7 = 4, 5, 6, 7, 8, 9, 10, 11
V_ONES = 12
V_XF = 16
V_MU = 64
V_R = 66
V_MEAN = 67
V_L16 = 68
V_MASK = 69
V_S1A, V_S1B, V_S2A, V_S2B = 70, 71, 72, 73
V_AD = 74
V_BUF = 80
V_ACC = 144
V_MISC = 192
V_ZERO, V_NONCE, V_PA, V_PB = 228, 229, 230, 231
V_PS = 246


def row_stats_dots(g, lo, hi):
    for r in range(lo, hi):
        g(f"v_dot2c_f32_bf16 {v(V_S1A + (r & 1))}, {s(S_ONES)}, {v(V_XF + r)}")
        g(f"v_dot2c_f32_bf16 {v(V_S2A + (r & 1))}, {v(V_XF + r)}, {v(V_XF + r)}")


def xlane_sum(g, r, t, op="v_add_f32"):
    g(f"v_mov_b32 {v(t)}, {v(r)}")
    g.nop(2)
    g(f"v_permlane16_swap_b32 {v(r)}, {v(t)}")
    g.nop(1)
    g(f"{op} {v(r)}, {v(r)}, {v(t)}")
    g(f"v_mov_b32 {v(t)}, {v(r)}")
    g.nop(2)
    g(f"v_permlane32_swap_b32 {v(r)}, {v(t)}")
    g.nop(1)
    g(f"{op} {v(r)}, {v(r)}, {v(t)}")


def row_stats_finish(g):
    g.nop(3)
    g(f"v_add_f32 {v(V_S1A)}, {v(V_S1A)}, {v(V_S1B)}")
    g(f"v_add_f32 {v(V_S2A)}, {v(V_S2A)}, {v(V_S2B)}")
    xlane_sum(g, V_S1A, V_T0)
    xlane_sum(g, V_S2A, V_T1)
    g(f"""
    v_mul_f32 {v(V_MEAN)}, {f2u(1/384.):#x}, {v(V_S1A)}
    v_mul_f32 {v(V_T0)}, {f2u(1/384.):#x}, {v(V_S2A)}
    v_fma_f32 {v(V_T0)}, -{v(V_MEAN)}, {v(V_MEAN)}, {v(V_T0)}
    v_max_f32 {v(V_T0)}, 0, {v(V_T0)}
    v_add_f32 {v(V_T0)}, {f2u(1e-5):#x}, {v(V_T0)}
    v_rsq_f32 {v(V_R)}, {v(V_T0)}
    v_cvt_pk_bf16_f32 {v(V_T1)}, -{v(V_MEAN)}, -{v(V_MEAN)}
    v_lshlrev_b32 {v(V_T1)}, 16, {v(V_T1)}
    v_sub_f32 {v(V_T1)}, -{v(V_MEAN)}, {v(V_T1)}
    v_cvt_pk_bf16_f32 {v(V_T1)}, -{v(V_MEAN)}, {v(V_T1)}
    v_cndmask_b32 {v(V_MU)}, 0, {v(V_T1)}, {s(S_G0,2)}
    v_cndmask_b32 {v(V_MU+1)}, 0, {v(V_T1)}, {s(S_G0,2)}
    """)


def mean_rstd(g, s1, s2, mean, rstd):
    g(f"""
    v_mul_f32 {v(mean)}, {f2u(1/384.):#x}, {v(s1)}
    v_mul_f32 {v(rstd)}, {f2u(1/384.):#x}, {v(s2)}
    v_fma_f32 {v(rstd)}, -{v(mean)}, {v(mean)}, {v(rstd)}
    v_max_f32 {v(rstd)}, 0, {v(rstd)}
    v_add_f32 {v(rstd)}, {f2u(1e-5):#x}, {v(rstd)}
    v_rsq_f32 {v(rstd)}, {v(rstd)}
    """)


def mu_operand(g, mean, dst=V_MU):
    g(f"""
    v_cvt_pk_bf16_f32 {v(V_T1)}, -{v(mean)}, -{v(mean)}
    v_lshlrev_b32 {v(V_T1)}, 16, {v(V_T1)}
    v_sub_f32 {v(V_T1)}, -{v(mean)}, {v(V_T1)}
    v_cvt_pk_bf16_f32 {v(V_T1)}, -{v(mean)}, {v(V_T1)}
    v_cndmask_b32 {v(dst)}, 0, {v(V_T1)}, {s(S_G0,2)}
    v_cndmask_b32 {v(dst+1)}, 0, {v(V_T1)}, {s(S_G0,2)}
    """)


def colsum_pack(g, src, dst):
    g(f"""
    v_cvt_pk_bf16_f32 {v(dst)}, {v(src)}, {v(src)}
    v_lshlrev_b32 {v(dst+1)}, 16, {v(dst)}
    v_sub_f32 {v(dst+1)}, {v(src)}, {v(dst+1)}
    v_cvt_pk_bf16_f32 {v(dst+1)}, {v(dst+1)}, {v(dst+1)}
    """)


def poll(g, voff, soff, want, name, slp=0):
    lp, done = g.label(name), g.label(name + "_ok")
    g(f"s_mov_b32 {s(S_SPIN)}, {SPIN_LIMIT}")
    g(f"{lp}:")
    g(f"""
    buffer_load_dword {v(V_T7)}, {v(voff)}, {s(SRD_WS,4)}, {soff} offen sc1
    s_waitcnt vmcnt(0)
    v_cmp_ne_u32 vcc, {want}, {v(V_T7)}
    s_cbranch_vccz {done}
    {'s_sleep %d' % slp if slp else ''}
    s_sub_u32 {s(S_SPIN)}, {s(S_SPIN)}, 1
    s_cbranch_scc0 {lp}
    {done}:
    """)


def mfma32(g, d, A, B, c=None):
    g(f"v_mfma_f32_16x16x32_bf16 {d}, {A}, {B}, {c if c is not None else d}")


def mfma16(g, d, A, B, c=None):
    g(f"v_mfma_f32_16x16x16_bf16 {d}, {A}, {B}, {c if c is not None else d}")


def pipelined(g, items, depth_reads, group=1):
    n = len(items)
    issued = 0
    cum = [0]
    for it in items:
        cum.append(cum[-1] + len(it[0]))
    for i in range(0, n, group):
        hi = min(i + group, n)
        while issued < n and (issued < hi or cum[issued + 1] - cum[i] <= depth_reads):
            if len(items[issued]) > 2:
                for p in items[issued][2]:
                    g(p)
            for r in items[issued][0]:
                g(r)
            issued += 1
        g(f"s_waitcnt lgkmcnt({cum[issued] - cum[hi]})")
        for k in range(i, hi):
            for c in items[k][1]:
                g(c)


def capture(g, fn):
    keep = g.L
    g.L = []
    fn()
    out = [x.strip() for x in g.L]
    g.L = keep
    return out


def prologue(g):
    g(f"""
    s_cmp_ge_u32 s2, 256
    s_cbranch_scc1 L_end
    s_load_dwordx16 s[4:19], s[0:1], 0
    """)
    if g.opts.get("dbg", 0):
        g("s_load_dwordx2 s[82:83], s[0:1], 48")
        g("s_memrealtime s[84:85]")
    if g.stamps:
        for i in range(S_STAMP, 100):
            g(f"s_mov_b32 s{i}, 0")
        g(f"s_memrealtime s[{S_STAMP}:{S_STAMP+1}]")
        g.stamp('start', False)
    g(f"""
    s_and_b32 {s(S_G8)}, s2, 7
    s_lshr_b32 {s(S_J)}, s2, 3
    v_lshrrev_b32 {v(V_T0)}, 6, v0
    v_and_b32 {v(V_L)}, 63, v0
    v_readfirstlane_b32 {s(S_W)}, {v(V_T0)}
    v_and_b32 {v(V_I)}, 15, v0
    v_bfe_u32 {v(V_G)}, v0, 4, 2
    v_lshlrev_b32 {v(V_L16)}, 4, {v(V_L)}
    """)
    if g.opts.get("codepf", 1):
        NL = g.opts.get("cpl", 2)
        g(f"""
        s_getpc_b64 {s(S_M,2)}
        L_pc:
        s_lshl_b32 {s(S_T0)}, {s(S_J)}, 2
        s_add_u32 {s(S_T0)}, {s(S_T0)}, {s(S_W)}
        s_mul_i32 {s(S_T0)}, {s(S_T0)}, {128*NL}
        s_min_u32 {s(S_T0)}, {s(S_T0)}, L_code_end-L_pc-{128*NL}
        v_lshlrev_b32 {v(V_T0)}, 7, {v(V_L)}
        v_add_u32 {v(V_T1)}, {s(S_T0)}, {v(V_T0)}
        s_mov_b64 exec, {(1 << NL) - 1}
        global_load_dword {v(V_MISC+62)}, {v(V_T1)}, {s(S_M,2)}
        s_mov_b64 exec, -1
        """)
    g(f"""
    s_lshr_b32 {s(S_RQ)}, {s(S_J)}, 3
    s_and_b32 {s(S_CS)}, {s(S_J)}, 7
    s_lshl_b32 {s(S_RB)}, {s(S_RQ)}, 3
    s_add_u32 {s(S_RB)}, {s(S_RB)}, {s(S_G8)}
    s_mov_b32 {s(SRD_A+3)}, 0x20000
    s_mov_b32 {s(SRD_B+3)}, 0x20000
    s_mov_b32 {s(SRD_WS+3)}, 0x20000
    s_mov_b32 {s(SRD_WS+2)}, {WS_SIZE}
    s_cmp_ge_u32 {s(S_CS)}, 6
    s_cbranch_scc1 L_products
    """)
    p0_pre(g)
    g(f"""
    s_waitcnt lgkmcnt(0)
    s_load_dword {s(S_NONCE)}, {s(S_WS,2)}, {WS_NONCE}
    """)


def common_consts(g):
    g(f"""
    s_mov_b32 {s(SRD_WS)}, {s(S_WS)}
    s_mov_b32 {s(SRD_WS+1)}, {s(S_WS+1)}
    s_mov_b32 {s(SRD_OUT)}, {s(S_OUT)}
    s_mov_b32 {s(SRD_OUT+1)}, {s(S_OUT+1)}
    s_mov_b32 {s(SRD_OUT+2)}, 1572864
    s_mov_b32 {s(SRD_OUT+3)}, 0x20000
    s_mov_b32 {s(S_ONES)}, 0x3f803f80
    s_getreg_b32 {s(S_ME)}, hwreg(HW_REG_XCC_ID, 0, 3)
    v_mov_b32 {v(V_ONES)}, {s(S_ONES)}
    v_mov_b32 {v(V_ONES+1)}, {s(S_ONES)}
    v_mov_b32 {v(V_ONES+2)}, {s(S_ONES)}
    v_mov_b32 {v(V_ONES+3)}, {s(S_ONES)}
    v_mov_b32 {v(V_MASK)}, 0xffffff00
    v_mov_b32 {v(V_ZERO)}, 0
    v_cmp_eq_u32 {s(S_G0,2)}, 0, {v(V_G)}
    v_lshrrev_b32 {v(V_T0)}, 1, {v(V_G)}
    v_lshrrev_b32 {v(V_T1)}, 3, {v(V_I)}
    v_cmp_eq_u32 {s(S_VALID,2)}, {v(V_T0)}, {v(V_T1)}
    v_lshrrev_b32 {v(V_T1)}, 2, {v(V_I)}
    v_cmp_eq_u32 {s(S_DIAG,2)}, {v(V_G)}, {v(V_T1)}
    """)
    g(f"""
    s_lshl_b32 {s(S_T0)}, {s(S_G8)}, 7
    s_add_u32 {s(S_T0)}, {s(S_T0)}, {WS_FXCC}
    v_and_b32 {v(V_T1)}, 31, {v(V_L)}
    v_lshlrev_b32 {v(V_T1)}, 10, {v(V_T1)}
    v_add_u32 {v(V_PA)}, {s(S_T0)}, {v(V_T1)}
    v_min_u32 {v(V_PB)}, 11, {v(V_L)}
    s_mul_i32 {s(S_T1)}, {s(S_G8)}, {FP_REP}
    v_lshlrev_b32 {v(V_PB)}, 7, {v(V_PB)}
    s_bitcmp0_b32 {s(S_J)}, 3
    s_cselect_b32 {s(S_T0)}, 0, {12*128}
    s_add_u32 {s(S_T0)}, {s(S_T0)}, {WS_FP+36*128}
    s_add_u32 {s(S_T0)}, {s(S_T0)}, {s(S_T1)}
    v_add_u32 {v(V_PB)}, {s(S_T0)}, {v(V_PB)}
    v_min_u32 {v(V_T0)}, 5, {v(V_L)}
    v_mul_u32_u24 {v(V_T0)}, 768, {v(V_T0)}
    s_lshl_b32 {s(S_T0)}, {s(S_CS)}, 7
    s_add_u32 {s(S_T0)}, {s(S_T0)}, {s(S_T1)}
    s_add_u32 {s(S_T0)}, {s(S_T0)}, {WS_FP}
    v_add_u32 {v(V_PS)}, {s(S_T0)}, {v(V_T0)}
    """)


def nonce_and_publish(g):
    g(f"""
    s_waitcnt lgkmcnt(0)
    s_and_b32 {s(S_T0)}, {s(S_NONCE)}, 0x78787878
    s_add_u32 {s(S_T0)}, {s(S_T0)}, 0x08080808
    s_and_b32 {s(S_T1)}, {s(S_NONCE)}, 0x80808080
    s_xor_b32 {s(S_NONCE)}, {s(S_T0)}, {s(S_T1)}
    s_or_b32 {s(S_ME)}, {s(S_ME)}, {s(S_NONCE)}
    s_lshl_b32 {s(S_T0)}, s2, 7
    s_add_u32 {s(S_T0)}, {s(S_T0)}, {WS_FXCC}
    v_mov_b32 {v(V_T0)}, {s(S_ME)}
    v_mov_b32 {v(V_NONCE)}, {s(S_NONCE)}
    s_mov_b64 exec, 1
    buffer_store_dword {v(V_T0)}, {v(V_ZERO)}, {s(SRD_WS,4)}, {s(S_T0)} offen sc1
    s_mov_b64 exec, -1
    s_and_b32 {s(S_TAG)}, {s(S_NONCE)}, 0xff
    s_bfe_u32 {s(S_TAG+1)}, {s(S_NONCE)}, 0x80008
    s_bfe_u32 {s(S_TAG+2)}, {s(S_NONCE)}, 0x80010
    s_lshr_b32 {s(S_TAG+3)}, {s(S_NONCE)}, 24
    """)


def flag_store(g, soff, rep):
    sk = g.label("nofl")
    g(f"""
    s_cmp_lg_u32 {s(S_W)}, 0
    s_cbranch_scc1 {sk}
    v_mul_u32_u24 {v(V_T0)}, {rep}, {v(V_L)}
    s_mov_b64 exec, 0xff
    buffer_store_dword {v(V_NONCE)}, {v(V_T0)}, {s(SRD_WS,4)}, {soff} offen sc1
    s_mov_b64 exec, -1
    {sk}:
    """)


def pa_eval(g):
    g(f"""
    v_and_b32 {v(V_T6)}, -8, {v(V_T7)}
    v_cmp_ne_u32 vcc, {s(S_NONCE)}, {v(V_T6)}
    s_mov_b32 {s(S_F1)}, vcc_lo
    v_cmp_ne_u32 vcc, {s(S_ME)}, {v(V_T7)}
    s_mov_b32 {s(S_SLOW)}, vcc_lo
    """)


def pa_wait(g, reg, name):
    lp, done = g.label(name), g.label(name + "_ok")
    g(f"""
    s_cmp_eq_u32 {s(reg)}, 0
    s_cbranch_scc1 {done}
    s_mov_b32 {s(S_SPIN)}, {SPIN_LIMIT}
    {lp}:
    buffer_load_dword {v(V_T7)}, {v(V_PA)}, {s(SRD_WS,4)}, 0 offen sc1
    s_waitcnt vmcnt(0)
    """)
    pa_eval(g)
    g(f"""
    s_cmp_eq_u32 {s(reg)}, 0
    s_cbranch_scc1 {done}
    s_sub_u32 {s(S_SPIN)}, {s(S_SPIN)}, 1
    s_cbranch_scc0 {lp}
    {done}:
    """)


def both_modes(g, emit):
    ls, le = g.label("slow"), g.label("join")
    g(f"""
    s_cmp_lg_u32 {s(S_SLOW)}, 0
    s_cbranch_scc1 {ls}
    """)
    emit(" sc1" if g.opts.get("allsc1", 0) else (" nt" if g.opts.get("fastnt", 0) else ""))
    g(f"s_branch {le}")
    g(f"{ls}:")
    emit(" sc1")
    g(f"{le}:")


S_WD0, S_WD1 = S_T6, S_T7
S_SPO = S_T4
S_WV, S_WVI = 0, 1
XR = V_MISC
VW = V_MISC + 8
VS = V_MISC + 12
RS = V_MISC + 16
FS = V_MISC + 20
V_XO = V_MISC + 14
S_XO = 26


def wchunk(g):
    g(f"s_mov_b32 m0, {s(S_WD1)}")
    g(f"s_add_u32 {s(S_WD1)}, {s(S_WD1)}, 16384")
    for q in range(4):
        g(f"buffer_load_dwordx4 {v(VW+q)}, {s(SRD_B,4)}, {s(S_WD0)} offen offset:{q*1024} lds")
    g(f"s_add_u32 {s(S_WD0)}, {s(S_WD0)}, {8*18432}")


def wvo_group(g, st, srd=SRD_WS):
    g(f"""
    s_add_u32 m0, {s(S_SIG2)}, {L_WVO + st*16384}
    s_add_u32 {s(S_T1)}, {s(S_WV)}, {st*16384}
    """)
    for q in range(4):
        g(f"buffer_load_dwordx4 {v(V_L16)}, {s(srd,4)}, {s(S_T1)} offen offset:{q*1024} sc1 lds")


SMR = [V_T2, V_T3, V_T4, V_T5]
S_RETRY = 70
NANQ = 220


def sample(dst):
    return f"buffer_load_dword {v(dst)}, {v(V_PS)}, {s(SRD_WS,4)}, 0 offen sc1"


S_CH, S_WSTEP, S_XSTEP, S_SIG2, S_XR = 68, 69, 70, 71, 72
S_X1O, S_FXO, S_STO = 73, 74, 75
A1 = [236, 237, 238]
C1 = [239, 240]
XA = 241


def row_dma(g, srd, vo, so, seg):
    g(f"buffer_load_dwordx4 {v(vo)}, {s(srd,4)}, {s(so)} offen lds")
    g(f"buffer_load_dwordx4 {v(vo+1)}, {s(srd,4)}, {s(so)} offen offset:1024 lds")


def p0_issue(g):
    g(f"""
    s_sub_u32 {s(SRD_A)}, {s(S_X)}, 1024
    s_subb_u32 {s(SRD_A+1)}, {s(S_X+1)}, 0
    s_mov_b32 {s(SRD_A+2)}, {1572864+1024}
    s_sub_u32 {s(SRD_B)}, {s(S_WQT)}, 4096
    s_subb_u32 {s(SRD_B+1)}, {s(S_WQT+1)}, 0
    s_mov_b32 {s(SRD_B+2)}, {884736+4096}
    """)
    g.stamp('x0', False)
    for seg in range(6):
        row_dma(g, SRD_A, V_XO, S_XO, seg)
        if seg < 5:
            g(f"s_add_u32 m0, m0, 2048")
            g(f"s_add_u32 {s(S_XO)}, {s(S_XO)}, 128")
    for _ in range(g.opts.get("c0", 1)):
        wchunk(g)
    g.stamp('dmaiss', False)


def p0_pre(g):
    S_CB = S_CS
    g(f"""
    v_lshrrev_b32 {v(V_T1)}, 3, {v(V_L)}
    v_mul_u32_u24 {v(V_T2)}, 2304, {v(V_T1)}
    v_and_b32 {v(V_T1)}, 2, {v(V_T1)}
    v_and_b32 {v(V_T3)}, 7, {v(V_L)}
    v_xor_b32 {v(V_T3)}, {v(V_T3)}, {v(V_T1)}
    v_lshl_add_u32 {v(V_T2)}, {v(V_T3)}, 4, {v(V_T2)}
    v_add_u32 {v(VW)}, 4096, {v(V_T2)}
    v_xor_b32 {v(V_T3)}, 64, {v(V_T2)}
    v_add_u32 {v(VW+1)}, {4096+18432-1024}, {v(V_T3)}
    v_add_u32 {v(VW+2)}, {4096+768-2048}, {v(V_T2)}
    v_add_u32 {v(VW+3)}, {4096+18432+768-3072}, {v(V_T3)}
    s_mul_i32 {s(S_WD0)}, {s(S_W)}, {2*18432}
    s_lshl_b32 {s(S_T1)}, {s(S_CB)}, 7
    s_add_u32 {s(S_WD0)}, {s(S_WD0)}, {s(S_T1)}
    s_lshl_b32 {s(S_WD1)}, {s(S_W)}, 12
    v_lshrrev_b32 {v(V_T0)}, 3, {v(V_L)}
    v_mul_u32_u24 {v(V_T2)}, 196608, {v(V_T0)}
    v_lshrrev_b32 {v(V_T0)}, 1, {v(V_T0)}
    v_and_b32 {v(V_T1)}, 7, {v(V_L)}
    v_xor_b32 {v(V_T1)}, {v(V_T1)}, {v(V_T0)}
    v_lshl_add_u32 {v(V_T2)}, {v(V_T1)}, 4, {v(V_T2)}
    v_add_u32 {v(V_XO)}, 1024, {v(V_T2)}
    v_xor_b32 {v(V_T2)}, 64, {v(V_T2)}
    v_add_u32 {v(V_XO+1)}, 768, {v(V_T2)}
    s_lshl_b32 {s(S_T0)}, {s(S_RB)}, 2
    s_add_u32 {s(S_T0)}, {s(S_T0)}, {s(S_W)}
    s_mul_i32 {s(S_XO)}, {s(S_T0)}, 1536
    s_lshl_b32 {s(S_SPO)}, {s(S_XO)}, 1
    s_mul_i32 {s(S_XR)}, {s(S_W)}, 12288
    s_add_u32 {s(S_XR)}, {s(S_XR)}, {L_WVO}
    s_mov_b32 m0, {s(S_XR)}
    """)


def p0_main(g):
    ACCQ, ACCK = V_ACC, V_ACC + 16
    SX, SXX = V_ACC + 40, V_ACC + 44
    SEL, NM, DB = V_BUF, V_BUF + 8, V_BUF + 16
    S_CB = S_CS
    common_consts(g)
    g(f"""
    v_lshrrev_b32 {v(V_T0)}, 1, {v(V_G)}
    v_lshlrev_b32 {v(V_T0)}, 12, {v(V_T0)}
    v_and_b32 {v(V_T1)}, 1, {v(V_G)}
    v_lshl_add_u32 {v(V_T0)}, {v(V_T1)}, 10, {v(V_T0)}
    v_lshrrev_b32 {v(V_T2)}, 2, {v(V_I)}
    v_lshl_add_u32 {v(V_T0)}, {v(V_T2)}, 7, {v(V_T0)}
    v_lshrrev_b32 {v(V_T2)}, 3, {v(V_I)}
    v_lshl_or_b32 {v(V_T2)}, {v(V_T1)}, 1, {v(V_T2)}
    v_lshl_add_u32 {v(V_T0)}, {v(V_T2)}, 5, {v(V_T0)}
    v_and_b32 {v(V_T2)}, 3, {v(V_I)}
    v_lshl_add_u32 {v(V_AD)}, {v(V_T2)}, 3, {v(V_T0)}
    v_xor_b32 {v(V_AD+1)}, 32, {v(V_AD)}
    v_xor_b32 {v(V_AD+2)}, 64, {v(V_AD)}
    v_xor_b32 {v(V_AD+3)}, 96, {v(V_AD)}
    v_cmp_eq_u32 s[4:5], 1, {v(V_T2)}
    v_cmp_eq_u32 s[6:7], 2, {v(V_T2)}
    v_cmp_eq_u32 s[8:9], 3, {v(V_T2)}
    v_and_b32 {v(V_T0)}, 7, {v(V_L)}
    v_lshl_add_u32 {v(V_T0)}, {v(V_G)}, 3, {v(V_T0)}
    v_lshlrev_b32 {v(VS)}, 4, {v(V_T0)}
    s_add_u32 {s(S_SPO)}, {s(S_SPO)}, {WS_SP}
    v_lshrrev_b32 {v(V_T0)}, 1, {v(V_I)}
    v_xor_b32 {v(V_T0)}, {v(V_T0)}, {v(V_G)}
    v_lshlrev_b32 {v(V_T0)}, 4, {v(V_T0)}
    v_lshl_add_u32 {v(V_T0)}, {v(V_I)}, 7, {v(V_T0)}
    v_add_u32 {v(V_T2)}, {s(S_XR)}, {v(V_T0)}
    v_xor_b32 {v(V_T3)}, 64, {v(V_T2)}
    s_lshl_b32 {s(S_T1)}, {s(S_CB)}, 11
    v_add_u32 {v(V_T4)}, {s(S_T1)}, {v(V_T2)}
    v_add_u32 {v(V_T5)}, {s(S_T1)}, {v(V_T3)}
    s_lshl_b32 {s(S_SIG2)}, {s(S_W)}, 12
    s_mul_i32 {s(S_WV)}, {s(S_CB)}, 49152
    s_add_u32 {s(S_WV)}, {s(S_WV)}, {s(S_SIG2)}
    s_add_u32 {s(S_WV)}, {s(S_WV)}, {WS_WVOT}
    s_lshl_b32 {s(S_T1)}, {s(S_CB)}, 9
    s_add_u32 {s(S_CH)}, {s(S_SPO)}, {s(S_T1)}
    """)
    g(f"""
    v_and_b32 {v(V_T0)}, 1, {v(V_I)}
    v_lshlrev_b32 {v(V_T0)}, 4, {v(V_T0)}
    v_mov_b32 {v(V_T1)}, 0x3f80
    v_lshlrev_b32 {v(V_T0)}, {v(V_T0)}, {v(V_T1)}
    v_cndmask_b32 {v(V_T0)}, 0, {v(V_T0)}, {s(S_DIAG,2)}
    v_and_b32 {v(V_T1)}, 2, {v(V_I)}
    v_cmp_eq_u32 vcc, 0, {v(V_T1)}
    v_mov_b32 {v(SEL+2)}, 0
    v_mov_b32 {v(SEL+3)}, 0
    v_cndmask_b32 {v(SEL)}, 0, {v(V_T0)}, vcc
    v_cndmask_b32 {v(SEL+1)}, {v(V_T0)}, 0, vcc
    v_mov_b32 {v(SEL+4)}, 0
    v_mov_b32 {v(SEL+5)}, 0
    v_mov_b32 {v(SEL+6)}, {v(SEL)}
    v_mov_b32 {v(SEL+7)}, {v(SEL+1)}
    """)
    p1_setup(g)
    for q in range(4):
        g(f"v_mov_b32 {v(NANQ+q)}, -1")
    C0, C1_ = g.opts.get("c0", 1), g.opts.get("c1", 2)
    order = [f"x{k//2}" for k in range(12)] + [f"A{j}" for j in range(C0) for _ in range(4)]
    for j in range(C0, C1_):
        wchunk(g)
        order += [f"A{j}"] * 4
    nonce_and_publish(g)
    order += ["t"]
    pend = []
    ptag = []

    def queue(fn, tag, n):
        pend.extend(capture(g, fn))
        ptag.extend([tag] * n)

    def pop_vm():
        out = []
        while pend:
            x = pend.pop(0)
            out.append(x)
            if x.startswith("buffer") or x.startswith("global"):
                order.append(ptag.pop(0))
                if any(y.startswith("buffer") or y.startswith("global") for y in pend):
                    break
        return out

    def need(tag):
        last = len(order) - 1 - order[::-1].index(tag)
        return f"s_waitcnt vmcnt({len(order) - 1 - last})"
    def mtouch():
        g(f"""
        s_mov_b64 exec, 0xffffff
        global_load_dword {v(V_MISC+62)}, {v(V_MT)}, s[16:17]
        s_mov_b64 exec, -1
        """)
    if g.opts.get("mt", 0) == 1:
        mtouch()
        order.append("m")
    NQ = C1_ + 3
    PAJ = g.opts.get("paj", 4)

    def qchunk(j):
        queue(lambda: wchunk(g), f"A{j}", 4)
    for j in range(C1_, min(NQ, 6)):
        qchunk(j)
    items = []
    for ks in range(12):
        xf = v(V_XF + 4 * ks, 4)
        pre = []
        if ks % 4 == 0:
            pre = [need(f"x{ks//2+1}")] + (capture(g, lambda: g.stamp('xarr0', False)) if ks == 0 else [])
        if ks % 4 == 2:
            pre += pop_vm()
        rd = [f"ds_read_b128 {xf}, {v(V_T2+(ks&1))} offset:{(ks>>1)*2048}"]
        if ks == 11:
            rd += [f"ds_read_b128 {v(XR,4)}, {v(V_T4)}", f"ds_read_b128 {v(XR+4,4)}, {v(V_T5)}"]
        cm = capture(g, lambda: (mfma32(g, v(SXX, 4), xf, xf, "0" if ks == 0 else None),
                                 mfma32(g, v(SX, 4), v(V_ONES, 4), xf, "0" if ks == 0 else None)))
        items.append((rd, cm, pre))
    pipelined(g, items, 6)
    g.stamp('xarr', False)
    g.nop(8)
    g(f"""
    v_mul_f32 {v(NM)}, {f2u(-1/384.):#x}, {v(SX)}
    v_mul_f32 {v(NM+1)}, {f2u(-1/384.):#x}, {v(SX)}
    v_mul_f32 {v(NM+2)}, {f2u(-1/384.):#x}, {v(SX)}
    v_mul_f32 {v(NM+3)}, {f2u(-1/384.):#x}, {v(SX)}
    v_cndmask_b32 {v(SXX)}, {v(SXX)}, {v(SXX+1)}, s[4:5]
    v_cndmask_b32 {v(SXX)}, {v(SXX)}, {v(SXX+2)}, s[6:7]
    """)
    fin = capture(g, lambda: (g(f"v_cndmask_b32 {v(SXX)}, {v(SXX)}, {v(SXX+3)}, s[8:9]"),
                              g(f"v_cndmask_b32 {v(SXX)}, 0, {v(SXX)}, {s(S_DIAG,2)}"),
                              xlane_sum(g, SXX, V_T0), mean_rstd(g, SX, SXX, V_MEAN, V_R)))
    LAG = 2
    for ks in range(12 + LAG):
        if ks < 12:
            d = DB + (ks % 4) * 8
            mfma32(g, v(d, 4), v(SEL, 4), v(V_XF + 4 * ks, 4), v(NM, 4))
            mfma32(g, v(d + 4, 4), v(SEL + 4, 4), v(V_XF + 4 * ks, 4), v(NM, 4))
        if ks < LAG or ks >= 12:
            for x in fin[:9]:
                g(x)
            if ks >= 12 and not fin:
                g.nop(2)
            fin = fin[9:]
        if ks >= LAG:
            d = DB + ((ks - LAG) % 4) * 8
            for q in range(4):
                g(f"v_cvt_pk_bf16_f32 {v(V_XF+4*(ks-LAG)+q)}, {v(d+2*q)}, {v(d+2*q+1)}")
        if ks % 2 == 1:
            for x in pop_vm():
                g(x)
    assert not fin
    g.stamp('cent', False)
    if g.opts.get("mt", 0) == 2:
        mtouch()
        order.append("m")

    for j in range(NQ, 6):
        qchunk(j)
    def mark():
        for so in (S_X1O, S_WSTEP):
            g(f"buffer_store_dwordx4 {v(NANQ,4)}, {v(XA)}, {s(SRD_WS,4)}, {s(so)} offen sc1")
    queue(mark, "c", 2)
    MT = g.opts.get("mt", 0)
    if MT == 3:
        queue(mtouch, "m", 1)
    SMP = [g.opts.get("s0", 70), g.opts.get("s1", 82), g.opts.get("s2", 94)]
    items = []
    nb = 0
    for j in range(6):
        for n, (kk, mat, sl) in enumerate([(kk, mat, sl) for kk in range(2) for mat in range(2) for sl in range(4)]):
            ks = 2 * j + kk
            b = V_BUF + (nb % 16) * 4
            nb += 1
            off = (ks % 6) * 8192 + mat * 2048
            rd = [f"ds_read_b64_tr_b16 {v(b,2)}, {v(V_AD+sl)} offset:{off}",
                  f"ds_read_b64_tr_b16 {v(b+2,2)}, {v(V_AD+sl)} offset:{off+512}"]
            acc = (ACCQ if mat == 0 else ACCK) + 4 * sl
            cm = [f"v_mfma_f32_16x16x32_bf16 {v(acc,4)}, {v(b,4)}, {v(V_XF+4*ks,4)}, {'0' if ks == 0 else v(acc,4)}"]
            pre = []
            if n == 0:
                pre += [need(f"A{j}"), "s_barrier"]
                pre += capture(g, lambda: g.stamp(f'chunk{j}', False))
                if j == 3:
                    pre += [f"v_add_u32 {v(V_AD+q)}, 49152, {v(V_AD+q)}" for q in range(4)]
                if j == g.opts.get("pj", 2):
                    pre.append(f"buffer_load_dword {v(V_T7)}, {v(V_PA)}, {s(SRD_WS,4)}, 0 offen sc1")
                    order.append("p")
            if 16 * j + n == g.opts.get("s0", 86):
                assert not pend
                pre += ["s_waitcnt vmcnt(0)", sample(V_T5)] + capture(g, lambda: pa_eval(g))
            if n % 3 == 1:
                x = pop_vm()
                pre += x
            items.append([rd, cm, pre])
    assert not pend
    QF, KF = V_ACC + 32, V_ACC + 40
    pipelined(g, items, 14, group=1)
    for i in range(8):
        g(f"v_cvt_pk_bf16_f32 {v(QF+i)}, {v(ACCQ+2*i)}, {v(ACCQ+2*i+1)}")
    for i in range(8):
        g(f"v_cvt_pk_bf16_f32 {v(KF+i)}, {v(ACCK+2*i)}, {v(ACCK+2*i+1)}")
    SS = V_BUF + 32
    g.nop(1)
    mfma32(g, v(SS, 4), v(KF, 4), v(QF, 4), "0")
    mfma32(g, v(SS, 4), v(KF + 4, 4), v(QF + 4, 4))
    pa_wait(g, S_F1, "xcc")
    g.nop(6)
    for r in range(4):
        g(f"v_bfi_b32 {v(SS+r)}, {v(V_MASK)}, {v(SS+r)}, {s(S_TAG+r)}")
    g(f"s_mov_b64 exec, {s(S_VALID,2)}")
    both_modes(g, lambda sc: g(f"buffer_store_dwordx4 {v(SS,4)}, {v(VS)}, {s(SRD_WS,4)}, {s(S_CH)} offen{sc}"))
    g("s_mov_b64 exec, -1")
    g.stamp('sstored')


CSL = V_BUF


def kpos(g, q, scale, base):
    g(f"""
    s_add_u32 {s(S_T1)}, {s(S_RHO)}, {q}
    s_cmp_ge_u32 {s(S_T1)}, 12
    s_cselect_b32 {s(S_T2)}, 12, 0
    s_sub_u32 {s(S_T1)}, {s(S_T1)}, {s(S_T2)}
    s_mul_i32 {s(S_T1)}, {s(S_T1)}, {scale}
    s_add_u32 m0, {s(S_T1)}, {base}
    """)


def ws2_dma(g):
    for c in range(3):
        g(f"buffer_load_dwordx2 {v(CSL+4*c,2)}, {v(V_L8)}, {s(SRD_WS,4)}, {s(S_CP0 if c < 2 else S_CP1)} offen offset:{c*512} sc1")
    for q in range(3):
        kpos(g, q, 3072, 0)
        g(f"s_add_u32 {s(S_T1)}, {s(S_WD0)}, {q*6144}")
        g(f"s_add_u32 {s(S_T2)}, {s(S_WD1)}, {q*6144}")
        g(f"buffer_load_dwordx4 {v(V_L16)}, {s(SRD_WS,4)}, {s(S_T1)} offen sc1 lds")
        g(f"buffer_load_dwordx4 {v(V_L16)}, {s(SRD_WS,4)}, {s(S_T1)} offen offset:1024 sc1 lds")
        g(f"buffer_load_dwordx4 {v(V_L16)}, {s(SRD_WS,4)}, {s(S_T2)} offen offset:2048 sc1 lds")


def p1_setup(g):
    S_CB = S_CS
    g(f"""
    v_add_u32 {v(A1[0])}, {L_WVO}, {v(V_L16)}
    v_lshlrev_b32 {v(V_T0)}, 3, {v(V_I)}
    s_lshl_b32 {s(S_T0)}, {s(S_W)}, 7
    s_add_u32 {s(S_T0)}, {s(S_T0)}, {L_SG}
    v_add_u32 {v(A1[2])}, {s(S_T0)}, {v(V_T0)}
    v_and_b32 {v(V_T0)}, 7, {v(V_I)}
    v_lshrrev_b32 {v(V_T1)}, 3, {v(V_I)}
    v_lshl_add_u32 {v(V_T1)}, {v(V_G)}, 3, {v(V_T1)}
    s_lshl_b32 {s(S_T1)}, {s(S_W)}, 1
    v_add_u32 {v(V_T1)}, {s(S_T1)}, {v(V_T1)}
    v_xor_b32 {v(V_T1)}, {v(V_T1)}, {v(V_T0)}
    v_lshlrev_b32 {v(V_T1)}, 4, {v(V_T1)}
    v_lshl_add_u32 {v(V_T1)}, {v(V_T0)}, 10, {v(V_T1)}
    v_add_u32 {v(A1[1])}, {L_T}, {v(V_T1)}
    v_xor_b32 {v(V_T0)}, {s(S_T1)}, {v(V_L)}
    v_lshlrev_b32 {v(V_T0)}, 4, {v(V_T0)}
    s_lshl_b32 {s(S_T2)}, {s(S_W)}, 11
    s_add_u32 {s(S_T2)}, {s(S_T2)}, {L_T}
    v_add_u32 {v(C1[0])}, {s(S_T2)}, {v(V_T0)}
    v_xor_b32 {v(C1[1])}, 16, {v(C1[0])}
    v_lshrrev_b32 {v(V_T0)}, 3, {v(V_L)}
    v_lshlrev_b32 {v(V_T0)}, 8, {v(V_T0)}
    v_and_b32 {v(V_T1)}, 7, {v(V_L)}
    v_lshl_add_u32 {v(XA)}, {v(V_T1)}, 4, {v(V_T0)}
    s_mul_i32 {s(S_X1O)}, {s(S_W)}, {2*196608}
    s_lshr_b32 {s(S_T1)}, {s(S_RB)}, 1
    s_mul_i32 {s(S_T1)}, {s(S_T1)}, 12288
    s_add_u32 {s(S_X1O)}, {s(S_X1O)}, {s(S_T1)}
    s_and_b32 {s(S_T1)}, {s(S_RB)}, 1
    s_lshl_b32 {s(S_T1)}, {s(S_T1)}, 7
    s_add_u32 {s(S_X1O)}, {s(S_X1O)}, {s(S_T1)}
    s_lshl_b32 {s(S_T1)}, {s(S_CB)}, 11
    s_add_u32 {s(S_X1O)}, {s(S_X1O)}, {s(S_T1)}
    s_add_u32 {s(S_X1O)}, {s(S_X1O)}, {WS_X1}
    s_add_u32 {s(S_WSTEP)}, {s(S_X1O)}, 196608
    s_mul_i32 {s(S_FXO)}, {s(S_RB)}, 6
    s_add_u32 {s(S_FXO)}, {s(S_FXO)}, {s(S_CB)}
    s_lshl_b32 {s(S_T1)}, {s(S_FXO)}, 2
    s_lshl_b32 {s(S_FXO)}, {s(S_FXO)}, 7
    s_add_u32 {s(S_STO)}, {s(S_FXO)}, {WS_STX}
    v_and_b32 {v(V_T0)}, 7, {v(V_L)}
    v_mul_u32_u24 {v(V_T0)}, {6*32*128}, {v(V_T0)}
    v_and_b32 {v(V_T1)}, -8, {v(V_L)}
    v_add_u32 {v(XA+1)}, {v(V_T0)}, {v(V_T1)}
    v_lshlrev_b32 {v(XA+2)}, 3, {v(V_L)}
    v_add_u32 {v(XA+2)}, {L_SG}, {v(XA+2)}
    """)


V_MT = 245


def p1(g):
    Z = V_ACC
    CS = V_ACC + 16
    XC = V_ACC + 20

    def shadow():
        g(f"v_lshlrev_b32 {v(V_T0)}, 4, {v(V_G)}")
        for e in range(4):
            g(f"ds_bpermute_b32 {v(RS+e)}, {v(V_T0)}, {v(V_R)} offset:{4*e}")
        for m in range(2):
            for par in range(2):
                for r in range(4):
                    src = XR + 4 * m + 2 * par + (r >> 1)
                    d = XC + (2 * m + par) * 4 + r
                    if r & 1:
                        g(f"v_and_b32 {v(d)}, 0xffff0000, {v(src)}")
                    else:
                        g(f"v_lshlrev_b32 {v(d)}, 16, {v(src)}")
        g(f"v_mul_f32 {v(V_T1)}, {f2u(SCALE_LOG2E):#x}, {v(V_R)}")
        g("s_waitcnt lgkmcnt(0)")
        for e in range(4):
            g(f"v_mul_f32 {v(FS+e)}, {v(V_T1)}, {v(RS+e)}")
        p2_setup(g)
    AOP = VW
    SPR = [V_ACC + 36, V_ACC + 40, V_ACC + 44, 220, 224, 248]

    def sloads():
        for c in range(6):
            g(f"buffer_load_dwordx4 {v(SPR[c],4)}, {v(VS)}, {s(SRD_WS,4)}, {s(S_SPO)} offen offset:{c*512} sc1")

    def scheck():
        for c in range(6):
            for r in range(4):
                g(f"v_xor_b32 {v(SPR[c]+r)}, {s(S_TAG+r)}, {v(SPR[c]+r)}")
            if c == 0:
                g(f"v_or_b32 {v(V_T2)}, {v(SPR[0])}, {v(SPR[0]+1)}")
            else:
                g(f"v_or3_b32 {v(V_T2)}, {v(V_T2)}, {v(SPR[c])}, {v(SPR[c]+1)}")
            g(f"v_or3_b32 {v(V_T2)}, {v(V_T2)}, {v(SPR[c]+2)}, {v(SPR[c]+3)}")
        g(f"v_and_b32 {v(V_T2)}, 0xff, {v(V_T2)}")

    def softmax(pk):
        T = SPR[5]
        if pk:
            for c in (1, 3, 5):
                for h in range(2):
                    g(f"v_pk_add_f32 {v(SPR[c]+2*h,2)}, {v(SPR[c]+2*h,2)}, {v(SPR[c-1]+2*h,2)}")
            for c in (3, 5):
                for h in range(2):
                    g(f"v_pk_add_f32 {v(SPR[c]+2*h,2)}, {v(SPR[c]+2*h,2)}, {v(SPR[c-2]+2*h,2)}")
        else:
            for c in (1, 3, 5):
                for r in range(4):
                    g(f"v_add_f32 {v(SPR[c]+r)}, {v(SPR[c]+r)}, {v(SPR[c-1]+r)}")
            for c in (3, 5):
                for r in range(4):
                    g(f"v_add_f32 {v(SPR[c]+r)}, {v(SPR[c]+r)}, {v(SPR[c-2]+r)}")
        for r in range(4):
            g(f"v_mul_f32 {v(T+r)}, {v(T+r)}, {v(FS+r)}")
        g(f"""
        v_max3_f32 {v(V_T0)}, {v(T)}, {v(T+1)}, {v(T+2)}
        v_max_f32 {v(V_T0)}, {v(V_T0)}, {v(T+3)}
        v_mov_b32 {v(V_T1)}, {v(V_T0)}
        s_nop 1
        v_permlane16_swap_b32 {v(V_T0)}, {v(V_T1)}
        s_nop 0
        v_max_f32 {v(V_T0)}, {v(V_T0)}, {v(V_T1)}
        """)
        for r in range(4):
            g(f"v_sub_f32 {v(T+r)}, {v(T+r)}, {v(V_T0)}")
        for r in range(4):
            g(f"v_exp_f32 {v(T+r)}, {v(T+r)}")
        g(f"""
        s_nop 0
        v_add_f32 {v(V_T0)}, {v(T)}, {v(T+1)}
        v_add_f32 {v(V_T1)}, {v(T+2)}, {v(T+3)}
        v_add_f32 {v(V_T0)}, {v(V_T0)}, {v(V_T1)}
        v_mov_b32 {v(V_T1)}, {v(V_T0)}
        v_mul_f32 {v(T)}, {v(T)}, {v(RS)}
        v_mul_f32 {v(T+1)}, {v(T+1)}, {v(RS+1)}
        v_permlane16_swap_b32 {v(V_T0)}, {v(V_T1)}
        v_mul_f32 {v(T+2)}, {v(T+2)}, {v(RS+2)}
        v_add_f32 {v(V_T0)}, {v(V_T0)}, {v(V_T1)}
        v_rcp_f32 {v(V_T0)}, {v(V_T0)}
        v_mul_f32 {v(T+3)}, {v(T+3)}, {v(RS+3)}
        v_cndmask_b32 {v(V_T0)}, 0, {v(V_T0)}, {s(S_VALID,2)}
        """)
        for r in range(4):
            g(f"v_mul_f32 {v(T+r)}, {v(T+r)}, {v(V_T0)}")
        g(f"""
        v_cvt_pk_bf16_f32 {v(AOP)}, {v(T)}, {v(T+1)}
        v_cvt_pk_bf16_f32 {v(AOP+1)}, {v(T+2)}, {v(T+3)}
        """)
    g(f"""
    s_waitcnt vmcnt(1)
    v_cmp_ne_u32 vcc, {s(S_NONCE)}, {v(V_T5)}
    s_cbranch_vccz L_wvo_go
    """)
    sh = capture(g, shadow)
    SPL = g.opts.get("spl", 40)
    for x in sh[:SPL]:
        g(x)
    g(sample(V_T5))
    for x in sh[SPL:]:
        g(x)
    sloads()
    g(f"""
    s_waitcnt vmcnt(6)
    v_cmp_ne_u32 vcc, {s(S_NONCE)}, {v(V_T5)}
    s_cbranch_vccz L_wvo_l2
    """)
    poll(g, V_PS, "0", s(S_NONCE), "wvo", g.opts.get("slp", 2))
    g("L_wvo_l2:")
    g.stamp('wlate')
    for st in range(3):
        wvo_group(g, st)
    g("s_waitcnt vmcnt(12)")
    scheck()
    g(f"""
    v_cmp_ne_u32 vcc, 0, {v(V_T2)}
    s_or_b32 {s(S_WVI)}, vcc_lo, vcc_hi
    s_cbranch_scc1 L_wvo_on
    """)
    softmax(True)
    g("s_branch L_wvo_on")
    g("L_wvo_go:")
    for st in range(3):
        wvo_group(g, st)
    shadow()
    g(f"s_mov_b32 {s(S_WVI)}, 1")
    g("L_wvo_on:")
    late = capture(g, sloads)
    nl = 0
    g.stamp('wvoflag')
    fill = ["s_waitcnt vmcnt(0)"] + capture(g, lambda: (scheck(), softmax(g.opts.get('sfill', 48) >= 48)))
    items = []
    for ks in range(12):
        for c in range(4):
            n = ks * 4 + c
            b = V_BUF + (n % 16) * 4
            rd = [f"ds_read_b128 {v(b,4)}, {v(A1[0])} offset:{ks*4096+c*1024}"]
            cc = "0" if ks == 0 else v(Z + 4 * c, 4)
            cm = [f"v_mfma_f32_16x16x32_bf16 {v(Z+4*c,4)}, {v(V_XF+4*ks,4)}, {v(b,4)}, {cc}"]
            pre = []
            if ks % 4 == 0 and c == 0:
                pre = [f"s_waitcnt vmcnt({8-ks+nl})", "s_barrier"] + capture(g, lambda: g.stamp(f'wvo{ks//4}', False))
            if late and n % 2 == 1 and n >= g.opts.get("sl0", 1):
                pre.append(late.pop(0))
                nl += 1
            if n >= g.opts.get("sfill", 48):
                cm += fill[:2]
                fill = fill[2:]
            items.append((rd, cm, pre))
    pipelined(g, items, 10, group=1)
    ZB = V_BUF + 8
    g(f"""
    s_mov_b64 vcc, 0
    s_cmp_eq_u32 {s(S_WVI)}, 0
    s_cbranch_scc1 L_s_have
    """)
    for x in fill:
        g(x)
    g(f"""
    v_cmp_ne_u32 vcc, 0, {v(V_T2)}
    L_s_have:
    s_nop 1
    """)
    for c in range(4):
        g(f"v_cvt_pk_bf16_f32 {v(ZB+2*c)}, {v(Z+4*c)}, {v(Z+4*c+1)}")
        g(f"v_cvt_pk_bf16_f32 {v(ZB+2*c+1)}, {v(Z+4*c+2)}, {v(Z+4*c+3)}")
    g.stamp('zdone')
    g(f"""
    s_cbranch_vccz L_sok
    s_mov_b32 {s(S_SPIN)}, {SPIN_LIMIT}
    L_spoll:
    """)
    sloads()
    g("s_waitcnt vmcnt(0)")
    scheck()
    g(f"""
    v_cmp_ne_u32 vcc, 0, {v(V_T2)}
    s_cbranch_vccz L_sre
    s_sub_u32 {s(S_SPIN)}, {s(S_SPIN)}, 1
    s_cbranch_scc0 L_spoll
    L_sre:
    """)
    softmax(True)
    g.nop(2)
    g("L_sok:")
    g.stamp('sok')
    g(f"buffer_load_dword {v(V_T7)}, {v(V_PB)}, {s(SRD_WS,4)}, 0 offen sc1")
    for c in range(4):
        mfma16(g, v(XC + 4 * c, 4), v(ZB + 2 * c, 2), v(AOP, 2))
    g.nop(5)
    OB = V_BUF + 48
    for m in range(2):
        for i in range(4):
            g(f"v_cvt_pk_bf16_f32 {v(OB+4*m+i)}, {v(XC+8*m+2*i)}, {v(XC+8*m+2*i+1)}")
        g(f"ds_write_b128 {v(A1[1])}, {v(OB+4*m,4)} offset:{m*512}")
    S1, S2 = Z, Z + 4
    mfma32(g, v(S2, 4), v(OB, 4), v(OB, 4), "0")
    mfma32(g, v(S1, 4), v(V_ONES, 4), v(OB, 4), "0")
    mfma32(g, v(S2, 4), v(OB + 4, 4), v(OB + 4, 4))
    mfma32(g, v(S1, 4), v(V_ONES, 4), v(OB + 4, 4))
    g.nop(7)
    g(f"""
    v_cndmask_b32 {v(S2)}, {v(S2)}, {v(S2+1)}, s[4:5]
    v_cndmask_b32 {v(S2)}, {v(S2)}, {v(S2+2)}, s[6:7]
    v_cndmask_b32 {v(S1+1)}, {v(S2)}, {v(S2+3)}, s[8:9]
    s_mov_b64 exec, {s(S_DIAG,2)}
    ds_write_b64 {v(A1[2])}, {v(S1,2)}
    s_mov_b64 exec, -1
    s_waitcnt lgkmcnt(0)
    s_barrier
    ds_read_b128 {v(OB,4)}, {v(C1[0])}
    ds_read_b128 {v(OB+4,4)}, {v(C1[1])} offset:1024
    ds_read_b64 {v(V_T0,2)}, {v(XA+2)}
    s_waitcnt lgkmcnt(2)
    buffer_store_dwordx4 {v(OB,4)}, {v(XA)}, {s(SRD_WS,4)}, {s(S_X1O)} offen sc1
    s_waitcnt lgkmcnt(1)
    buffer_store_dwordx4 {v(OB+4,4)}, {v(XA)}, {s(SRD_WS,4)}, {s(S_WSTEP)} offen sc1
    s_cmp_lg_u32 {s(S_W)}, 0
    s_cbranch_scc1 L_nostx
    s_waitcnt lgkmcnt(0)
    v_bfi_b32 {v(V_T0)}, {v(V_MASK)}, {v(V_T0)}, {s(S_TAG)}
    v_bfi_b32 {v(V_T1)}, {v(V_MASK)}, {v(V_T1)}, {s(S_TAG+1)}
    buffer_store_dwordx2 {v(V_T0,2)}, {v(XA+1)}, {s(SRD_WS,4)}, {s(S_STO)} offen sc1
    """)
    g.stamp('x1st')
    g(f"""
    s_waitcnt vmcnt(3)
    s_branch L_stx2
    L_nostx:
    s_waitcnt vmcnt(2)
    L_stx2:
    v_cmp_ne_u32 vcc, {s(S_NONCE)}, {v(V_T7)}
    s_cbranch_vccz L_p2
    """)
    poll(g, V_PB, "0", s(S_NONCE), "pws", g.opts.get("slp", 2))
    g.stamp('late')


S_TILE, S_PROD, S_KB, S_NB = S_T4, S_T5, S_T6, S_T7
S_PA, S_PB, S_PS = S_F2, S_SLOW, 26
S_PO0, S_PO1, S_PF = 16, 17, 25
V_PAO = V_MISC + 14
S_PU, S_PW = 69, 70
S_PM = 68
L_PA = 49152


def prod_pre(g):
    g(f"""
    s_lshl_b32 {s(S_T0)}, {s(S_RQ)}, 1
    s_add_u32 {s(S_T0)}, {s(S_T0)}, {s(S_CS)}
    s_sub_u32 {s(S_T0)}, {s(S_T0)}, 6
    s_mul_i32 {s(S_TILE)}, {s(S_G8)}, 5
    s_add_u32 {s(S_TILE)}, {s(S_TILE)}, {s(S_T0)}
    s_sub_u32 {s(S_TILE)}, {s(S_TILE)}, 3
    s_cmp_ge_u32 {s(S_TILE)}, 36
    s_cselect_b32 {s(S_TILE)}, 60, {s(S_TILE)}
    s_mul_i32 {s(S_T1)}, {s(S_G8)}, 3
    s_add_u32 {s(S_T1)}, {s(S_T1)}, {s(S_T0)}
    s_add_u32 {s(S_T1)}, {s(S_T1)}, 36
    s_cmp_lt_u32 {s(S_T0)}, 3
    s_cselect_b32 {s(S_TILE)}, {s(S_T1)}, {s(S_TILE)}
    s_mul_hi_u32 {s(S_KB)}, {s(S_TILE)}, {(2**32 + 5)//6}
    s_mul_i32 {s(S_T0)}, {s(S_KB)}, 6
    s_sub_u32 {s(S_NB)}, {s(S_TILE)}, {s(S_T0)}
    s_sub_u32 {s(S_T0)}, {s(S_KB)}, 4
    s_lshr_b32 {s(S_PROD)}, {s(S_T0)}, 1
    s_and_b32 {s(S_T0)}, {s(S_KB)}, 1
    s_mul_i32 {s(S_T0)}, {s(S_T0)}, 3
    s_cmp_lt_u32 {s(S_TILE)}, 36
    s_cselect_b32 {s(S_PROD)}, 0, {s(S_PROD)}
    s_cselect_b32 {s(S_KB)}, {s(S_KB)}, {s(S_T0)}
    s_lshl_b32 {s(S_PA)}, {s(S_KB)}, 2
    s_add_u32 {s(S_PA)}, {s(S_PA)}, {s(S_W)}
    s_mul_i32 {s(S_PA)}, {s(S_PA)}, {16*2304}
    s_lshl_b32 {s(S_T1)}, {s(S_NB)}, 2
    s_add_u32 {s(S_T1)}, {s(S_T1)}, {s(S_W)}
    s_mul_i32 {s(S_T1)}, {s(S_T1)}, {16*2304}
    s_add_u32 {s(S_T1)}, {s(S_T1)}, 768
    s_mul_i32 {s(S_T2)}, {s(S_W)}, {2*6144}
    s_lshl_b32 {s(S_T3)}, {s(S_NB)}, 7
    s_add_u32 {s(S_T2)}, {s(S_T2)}, {s(S_T3)}
    s_mov_b32 {s(S_T3)}, {8*6144}
    s_cmp_eq_u32 {s(S_PROD)}, 1
    s_cselect_b32 {s(S_PB)}, {s(S_T1)}, {s(S_T2)}
    s_cselect_b32 {s(S_PS)}, 128, {s(S_T3)}
    s_cselect_b32 {s(S_T0)}, 0, 1536
    s_cselect_b32 {s(S_T1)}, 1, 0
    s_cselect_b32 {s(S_T2)}, 7, 2
    s_movk_i32 {s(S_T3)}, 768
    s_cselect_b32 {s(S_T3)}, 2304, {s(S_T3)}
    s_add_u32 {s(S_PA)}, {s(S_PA)}, {s(S_T0)}
    v_lshrrev_b32 {v(V_T1)}, 3, {v(V_L)}
    v_mul_u32_u24 {v(V_T2)}, {s(S_T3)}, {v(V_T1)}
    v_lshrrev_b32 {v(V_T1)}, {s(S_T1)}, {v(V_T1)}
    v_and_b32 {v(V_T1)}, {s(S_T2)}, {v(V_T1)}
    v_and_b32 {v(V_T3)}, 7, {v(V_L)}
    v_xor_b32 {v(V_T3)}, {v(V_T3)}, {v(V_T1)}
    v_lshl_add_u32 {v(VW)}, {v(V_T3)}, 4, {v(V_T2)}
    v_xor_b32 {v(V_T3)}, 64, {v(VW)}
    s_lshl_b32 {s(S_T3)}, {s(S_T3)}, 3
    s_sub_u32 {s(S_T3)}, {s(S_T3)}, 1024
    v_add_u32 {v(VW+1)}, {s(S_T3)}, {v(V_T3)}
    v_lshrrev_b32 {v(V_T1)}, 3, {v(V_L)}
    v_mul_u32_u24 {v(V_T2)}, 2304, {v(V_T1)}
    v_lshrrev_b32 {v(V_T1)}, 1, {v(V_T1)}
    v_and_b32 {v(V_T3)}, 7, {v(V_L)}
    v_xor_b32 {v(V_T3)}, {v(V_T3)}, {v(V_T1)}
    v_lshl_add_u32 {v(V_PAO)}, {v(V_T3)}, 4, {v(V_T2)}
    v_xor_b32 {v(V_T3)}, 64, {v(V_PAO)}
    v_add_u32 {v(V_PAO+1)}, {18432-1024}, {v(V_T3)}
    s_lshl_b32 {s(S_PM)}, {s(S_W)}, 11
    """)


def aslot(j, t, nt):
    return L_PA + ((j % 4) * 3 + t) * 8192 if nt == 3 else L_PA + j * 8192


def prod_unit(g, j, nt):
    g(f"s_add_u32 m0, {s(S_PM)}, {j*8192}")
    g(f"s_add_u32 {s(S_T0)}, {s(S_PA)}, {j*128}")
    g(f"buffer_load_dwordx4 {v(VW)}, {s(SRD_B,4)}, {s(S_PB)} offen lds")
    g(f"buffer_load_dwordx4 {v(VW+1)}, {s(SRD_B,4)}, {s(S_PB)} offen offset:1024 lds")
    for t in range(nt):
        g(f"s_add_u32 m0, {s(S_PM)}, {aslot(j, t, nt)}")
        g(f"s_add_u32 {s(S_PB)}, {s(S_PB)}, {s(S_PS)}" if t == 0 else f"s_add_u32 {s(S_T0)}, {s(S_T0)}, {64*2304}")
        row_dma(g, SRD_A, V_PAO, S_T0, j)


def products(g):
    g(f"""
    L_products:
    """)
    prod_pre(g)
    g(f"""
    s_waitcnt lgkmcnt(0)
    s_load_dword {s(S_NONCE)}, {s(S_WS,2)}, {WS_NONCE}
    s_cmp_eq_u32 {s(S_PROD)}, 0
    s_cselect_b32 {s(SRD_A)}, {s(S_WQT)}, {s(S_WQS)}
    s_cselect_b32 {s(SRD_A+1)}, {s(S_WQT+1)}, {s(S_WQS+1)}
    s_cselect_b32 {s(SRD_B)}, {s(S_WOT)}, {s(S_WOS)}
    s_cselect_b32 {s(SRD_B+1)}, {s(S_WOT+1)}, {s(S_WOS+1)}
    s_mov_b32 {s(SRD_A+2)}, 884736
    s_cmp_eq_u32 {s(S_PROD)}, 1
    s_cselect_b32 {s(SRD_B)}, {s(S_WQS)}, {s(SRD_B)}
    s_cselect_b32 {s(SRD_B+1)}, {s(S_WQS+1)}, {s(SRD_B+1)}
    s_cselect_b32 {s(SRD_B+2)}, {s(SRD_A+2)}, 294912
    s_cmp_ge_u32 {s(S_TILE)}, 36
    s_cbranch_scc1 L_prod3
    """)
    g.stamp('x0', False)
    for j in range(3):
        prod_unit(g, j, 1)
    g(f"""
    s_branch L_prod_body
    L_prod3:
    s_cmp_ge_u32 {s(S_TILE)}, 60
    s_cbranch_scc1 L_prod_idle
    """)
    prod_unit(g, 0, 3)
    g("s_branch L_prod3_body")


def products_body(g):
    ACC = V_ACC
    PK = V_BUF
    CSA, SELP, V_CSO = V_MISC, V_MISC + 16, V_MISC + 20
    S_PC0, S_PC1 = 71, 72

    def setup():
        common_consts(g)
        g(f"""
        v_lshrrev_b32 {v(V_T0)}, 2, {v(V_I)}
        v_and_b32 {v(V_T0)}, 1, {v(V_T0)}
        v_lshlrev_b32 {v(V_T0)}, 10, {v(V_T0)}
        v_lshrrev_b32 {v(V_T1)}, 1, {v(V_G)}
        v_lshl_add_u32 {v(V_T0)}, {v(V_T1)}, 8, {v(V_T0)}
        v_and_b32 {v(V_T1)}, 1, {v(V_G)}
        v_lshl_add_u32 {v(V_T0)}, {v(V_T1)}, 7, {v(V_T0)}
        v_lshrrev_b32 {v(V_T1)}, 3, {v(V_I)}
        v_lshl_add_u32 {v(V_T0)}, {v(V_T1)}, 6, {v(V_T0)}
        v_and_b32 {v(V_T1)}, 3, {v(V_I)}
        v_lshl_add_u32 {v(V_T5)}, {v(V_T1)}, 4, {v(V_T0)}
        s_and_b32 {s(S_T1)}, {s(S_W)}, 1
        s_lshl_b32 {s(S_T1)}, {s(S_T1)}, 9
        v_add_u32 {v(V_T5)}, {s(S_T1)}, {v(V_T5)}
        s_lshl_b32 {s(S_PF)}, {s(S_TILE)}, 7
        s_add_u32 {s(S_PF)}, {s(S_PF)}, {WS_FP}
        s_lshr_b32 {s(S_T0)}, {s(S_W)}, 1
        s_lshl_b32 {s(S_T1)}, {s(S_KB)}, 1
        s_add_u32 {s(S_T3)}, {s(S_T0)}, {s(S_T1)}
        v_lshrrev_b32 {v(V_T0)}, 1, {v(V_I)}
        v_xor_b32 {v(V_T0)}, {v(V_T0)}, {v(V_G)}
        v_lshlrev_b32 {v(V_T0)}, 4, {v(V_T0)}
        v_lshl_add_u32 {v(V_T3)}, {v(V_I)}, 7, {v(V_T0)}
        s_add_u32 {s(S_T0)}, {s(S_PM)}, {L_PA}
        v_add_u32 {v(A2[0])}, {s(S_T0)}, {v(V_T3)}
        v_xor_b32 {v(A2[1])}, 64, {v(A2[0])}
        v_add_u32 {v(A2[2])}, 49152, {v(A2[0])}
        v_add_u32 {v(A2[3])}, 49152, {v(A2[1])}
        """)

    def tr_addr():
        g(f"""
        v_lshlrev_b32 {v(V_T0)}, 10, {v(V_G)}
        v_lshrrev_b32 {v(V_T2)}, 2, {v(V_I)}
        v_lshl_add_u32 {v(V_T0)}, {v(V_T2)}, 7, {v(V_T0)}
        v_and_b32 {v(V_T1)}, 1, {v(V_G)}
        v_lshrrev_b32 {v(V_T2)}, 3, {v(V_I)}
        v_lshl_or_b32 {v(V_T2)}, {v(V_T1)}, 1, {v(V_T2)}
        v_lshl_add_u32 {v(V_T0)}, {v(V_T2)}, 5, {v(V_T0)}
        v_and_b32 {v(V_T2)}, 3, {v(V_I)}
        v_lshl_add_u32 {v(V_AD)}, {v(V_T2)}, 3, {v(V_T0)}
        v_xor_b32 {v(V_AD+1)}, 32, {v(V_AD)}
        v_xor_b32 {v(V_AD+2)}, 64, {v(V_AD)}
        v_xor_b32 {v(V_AD+3)}, 96, {v(V_AD)}
        """)

    def gemm(tr, nt, order, later, extra=None):
        items = []
        spread = []
        for ks in range(12):
            for c in range(4):
                b = V_BUF + ((ks * 4 + c) % 16) * 4
                if tr:
                    rd = [f"ds_read_b64_tr_b16 {v(b,2)}, {v(V_AD+c)} offset:{ks*4096}",
                          f"ds_read_b64_tr_b16 {v(b+2,2)}, {v(V_AD+c)} offset:{ks*4096+512}"]
                else:
                    rd = [f"ds_read_b128 {v(b,4)}, {v(V_AD+(ks&1))} offset:{(ks>>1)*8192+c*2048}"]
                pre = []
                if ks % 2 == 0 and c == 0:
                    for u in later.get(ks // 2, []):
                        if nt == 1:
                            pre += capture(g, lambda: prod_unit(g, u, nt))
                            order += [f"U{u}"] * (2 + 2 * nt)
                        else:
                            spread += capture(g, lambda: prod_unit(g, u, nt))
                            stag = f"U{u}"
                    last = len(order) - 1 - order[::-1].index(f"U{ks//2}")
                    pre += [f"s_waitcnt vmcnt({len(order)-1-last})", "s_barrier"]
                    if ks in (0, 4, 10):
                        pre += capture(g, lambda: g.stamp(f'chunk{ {0:0,4:1,10:2}[ks] }', False))
                    if extra and ks in extra:
                        pre += extra[ks]
                        order += ["h"] * 2
                while spread:
                    x = spread.pop(0)
                    pre.append(x)
                    if x.startswith("buffer"):
                        order.append(stag)
                        if any(y.startswith("buffer") for y in spread):
                            break
                cm = []
                for t in range(nt):
                    d = ACC + 16 * t + 4 * c
                    af = V_XF + ((ks % 4) * 3 + t) * 4
                    if c == 0:
                        o = aslot(ks // 2, t, nt) - L_PA
                        rd.append(f"ds_read_b128 {v(af,4)}, {v(A2[(ks&1) + 2*(o >= 49152)])} offset:{o % 49152}")
                    cm.append(f"v_mfma_f32_16x16x32_bf16 {v(d,4)}, {v(af,4)}, {v(b,4)}, {'0' if ks == 0 else v(d,4)}")
                items.append((rd, cm, pre))
        pipelined(g, items, 14 if tr else 10, group=g.opts.get('pg', 1) if nt == 3 else 1)

    def epi(nt):
        g.nop(5 if nt == 1 else 1)
        for t in range(nt):
            P = PK + 8 * t
            for c in range(4):
                g(f"v_cvt_pk_bf16_f32 {v(P+2*c)}, {v(ACC+16*t+4*c)}, {v(ACC+16*t+4*c+1)}")
                g(f"v_cvt_pk_bf16_f32 {v(P+2*c+1)}, {v(ACC+16*t+4*c+2)}, {v(ACC+16*t+4*c+3)}")
            g(f"""
            v_permlane16_swap_b32 {v(P)}, {v(P+2)}
            v_permlane16_swap_b32 {v(P+1)}, {v(P+3)}
            v_permlane16_swap_b32 {v(P+4)}, {v(P+6)}
            v_permlane16_swap_b32 {v(P+5)}, {v(P+7)}
            buffer_store_dwordx4 {v(P,4)}, {v(V_T5)}, {s(SRD_WS,4)}, {s(S_PO0)} offen sc1
            buffer_store_dwordx4 {v(P+4,4)}, {v(V_T5)}, {s(SRD_WS,4)}, {s(S_PO1)} offen sc1
            """)
            if nt == 3:
                for aa in range(2):
                    mfma32(g, v(CSA + 4 * aa, 4), v(SELP, 4), v(P + 4 * aa, 4), "0" if t == 0 else None)
            if t < nt - 1:
                g(f"v_add_u32 {v(V_T5)}, {2*6144}, {v(V_T5)}")
        if nt == 3:
            g.nop(7)
            g(f"""
            s_mov_b32 exec_lo, 0xffff
            s_mov_b32 exec_hi, 0xffff
            buffer_store_dword {v(CSA)}, {v(V_CSO)}, {s(SRD_WS,4)}, {s(S_PC0)} offen sc1
            buffer_store_dword {v(CSA+4)}, {v(V_CSO)}, {s(SRD_WS,4)}, {s(S_PC1)} offen sc1
            s_mov_b64 exec, -1
            """)

    def helper():
        lb = g.label('help')
        S_HT, SRD_H = 73, SRD_B
        g(f"""
        s_lshl_b32 {s(S_T0)}, {s(S_RQ)}, 1
        s_add_u32 {s(S_T0)}, {s(S_T0)}, {s(S_CS)}
        s_sub_u32 {s(S_T0)}, {s(S_T0)}, 9
        s_lshl_b32 {s(S_T0)}, {s(S_T0)}, 2
        s_add_u32 {s(S_T0)}, {s(S_T0)}, {s(S_W)}
        s_mov_b32 {s(SRD_H)}, {s(S_WQS)}
        s_mov_b32 {s(SRD_H+1)}, {s(S_WQS+1)}
        s_mov_b32 {s(SRD_H+2)}, 884736
        v_mul_u32_u24 {v(V_T0)}, 43, {v(V_L)}
        v_lshrrev_b32 {v(V_T0)}, 8, {v(V_T0)}
        v_mul_u32_u24 {v(V_T0)}, {2304-768}, {v(V_T0)}
        v_lshl_add_u32 {v(V_T0)}, {v(V_L)}, 7, {v(V_T0)}
        s_bfe_u32 {s(S_T2)}, {s(S_G8)}, 0x10001
        s_cmp_ge_u32 {s(S_G8)}, 4
        s_cselect_b32 {s(S_T3)}, 1536, 0
        s_mov_b32 {s(S_HT)}, {10*2304}
        s_cmp_lt_u32 {s(S_T0)}, 10
        s_cbranch_scc1 {lb}
        s_sub_u32 {s(S_T0)}, {s(S_T0)}, 10
        s_and_b32 {s(S_T2)}, {s(S_G8)}, 1
        s_movk_i32 {s(S_T3)}, 768
        s_cmp_lt_u32 {s(S_G8)}, 4
        s_cbranch_scc1 {lb}
        s_mov_b32 {s(SRD_H)}, {s(S_WOS)}
        s_mov_b32 {s(SRD_H+1)}, {s(S_WOS+1)}
        s_mov_b32 {s(SRD_H+2)}, 294912
        v_mul_u32_u24 {v(V_T0)}, 86, {v(V_L)}
        v_lshrrev_b32 {v(V_T0)}, 8, {v(V_T0)}
        v_mul_u32_u24 {v(V_T0)}, {768-384}, {v(V_T0)}
        v_lshl_add_u32 {v(V_T0)}, {v(V_L)}, 7, {v(V_T0)}
        s_mul_i32 {s(S_T3)}, {s(S_T2)}, 384
        s_mov_b32 {s(S_T2)}, 0
        s_mov_b32 {s(S_HT)}, {20*768}
        {lb}:
        s_mul_i32 {s(S_T2)}, {s(S_T2)}, {192*2304}
        s_add_u32 {s(S_T2)}, {s(S_T2)}, {s(S_T3)}
        s_mul_i32 {s(S_T0)}, {s(S_T0)}, {s(S_HT)}
        s_lshl_b32 {s(S_T0)}, {s(S_T0)}, 1
        s_add_u32 {s(S_T0)}, {s(S_T0)}, {s(S_T2)}
        s_add_u32 {s(S_T1)}, {s(S_T0)}, {s(S_HT)}
        s_mov_b32 exec_hi, 0x0fffffff
        buffer_load_dword {v(V_MISC+60)}, {v(V_T0)}, {s(SRD_H,4)}, {s(S_T0)} offen
        buffer_load_dword {v(V_MISC+61)}, {v(V_T0)}, {s(SRD_H,4)}, {s(S_T1)} offen
        s_mov_b32 exec_hi, -1
        """)

    g("L_prod_body:")
    setup()
    g(f"""
    s_mul_i32 {s(S_T1)}, {s(S_NB)}, 49152
    s_lshl_b32 {s(S_T0)}, {s(S_T3)}, 12
    s_add_u32 {s(S_T0)}, {s(S_T0)}, {s(S_T1)}
    s_add_u32 {s(S_PO0)}, {s(S_T0)}, {WS_WVOT}
    s_add_u32 {s(S_PO1)}, {s(S_PO0)}, 2048
    """)
    tr_addr()
    nonce_and_publish(g)
    for j in range(3, 6):
        prod_unit(g, j, 1)
    o1 = [f"U{j}" for j in range(3) for _ in range(4)] + ["t"] + [f"U{j}" for j in range(3, 6) for _ in range(4)]
    if g.opts.get("help", 1) == 2:
        helper()
        o1 += ["h"] * 2
    HK = g.opts.get("hk", 0)
    gemm(True, 1, o1, {}, extra={HK: capture(g, helper)} if g.opts.get("help", 1) == 3 else None)
    epi(1)
    g(f"""
    L_prod_fin:
    """)
    g.stamp('chunk3')
    p2_setup(g)
    g(f"""
    s_waitcnt vmcnt(0)
    s_barrier
    """)
    flag_store(g, s(S_PF), FP_REP)
    g.stamp('chunk5')
    g(f"""
    s_cmp_ge_u32 {s(S_TILE)}, 36
    s_cbranch_scc1 L_prod_out2
    L_prod_help:
    """)
    if g.opts.get("help", 1) == 1:
        helper()
    g("L_prod_out:")
    g(f"s_mov_b32 {s(S_F1)}, 1")
    poll(g, V_PB, "0", s(S_NONCE), "pwsp", g.opts.get("pslp", 8))
    g("L_prod_out2:")
    g(f"s_mov_b32 {s(S_F1)}, 1")
    poll(g, V_PB, "0", s(S_NONCE), "pwsq", g.opts.get("tslp", 1))
    ws2_dma(g)
    pa_wait(g, S_F1, "pxcc")
    g("s_branch L_p2c")
    g("L_prod3_body:")
    setup()
    g(f"""
    s_mul_i32 {s(S_T0)}, {s(S_T3)}, 6144
    s_sub_u32 {s(S_T1)}, {s(S_PROD)}, 1
    s_mul_i32 {s(S_T1)}, {s(S_T1)}, {4*73728}
    s_add_u32 {s(S_T0)}, {s(S_T0)}, {s(S_T1)}
    s_add_u32 {s(S_T0)}, {s(S_T0)}, {WS_WS2}
    """)
    g(f"""
    s_sub_u32 {s(S_T1)}, {s(S_PROD)}, 1
    s_mul_i32 {s(S_T2)}, {s(S_T1)}, {4*3072}
    s_cmp_eq_u32 {s(S_KB)}, 0
    s_cselect_b32 {s(S_T1)}, 0, 256
    s_add_u32 {s(S_T2)}, {s(S_T2)}, {s(S_T1)}
    s_lshr_b32 {s(S_T1)}, {s(S_W)}, 1
    s_lshl_b32 {s(S_T1)}, {s(S_T1)}, 7
    s_add_u32 {s(S_T2)}, {s(S_T2)}, {s(S_T1)}
    s_and_b32 {s(S_T1)}, {s(S_W)}, 1
    s_lshl_b32 {s(S_T1)}, {s(S_T1)}, 2
    s_add_u32 {s(S_T2)}, {s(S_T2)}, {s(S_T1)}
    s_add_u32 {s(S_T2)}, {s(S_T2)}, {WS_CSP}
    v_bfe_u32 {v(V_T0)}, {v(V_I)}, 2, 1
    v_lshlrev_b32 {v(V_T0)}, 9, {v(V_T0)}
    v_lshrrev_b32 {v(V_T1)}, 1, {v(V_G)}
    v_lshl_add_u32 {v(V_T0)}, {v(V_T1)}, 6, {v(V_T0)}
    v_lshrrev_b32 {v(V_T1)}, 3, {v(V_I)}
    v_lshl_add_u32 {v(V_T0)}, {v(V_T1)}, 5, {v(V_T0)}
    v_and_b32 {v(V_T2)}, 3, {v(V_I)}
    v_lshl_add_u32 {v(V_CSO)}, {v(V_T2)}, 3, {v(V_T0)}
    v_and_b32 {v(V_T0)}, 1, {v(V_G)}
    v_cmp_eq_u32 vcc, {v(V_T0)}, {v(V_T1)}
    s_nop 1
    v_cndmask_b32 {v(SELP)}, 0, {v(V_ONES)}, vcc
    v_cndmask_b32 {v(SELP+1)}, 0, {v(V_ONES)}, vcc
    v_cndmask_b32 {v(SELP+2)}, 0, {v(V_ONES)}, vcc
    v_cndmask_b32 {v(SELP+3)}, 0, {v(V_ONES)}, vcc
    """)
    for aa, dst, dc in ((0, S_PO0, S_PC0), (1, S_PO1, S_PC1)):
        g(f"""
        s_lshl_b32 {s(S_T3)}, {s(S_NB)}, 1
        s_add_u32 {s(S_T3)}, {s(S_T3)}, {aa}
        s_mul_hi_u32 {s(dst)}, {s(S_T3)}, {(2**32+2)//3}
        s_mul_i32 {s(S_T1)}, {s(dst)}, 3
        s_lshl_b32 {s(dc)}, {s(S_T3)}, 10
        s_add_u32 {s(dc)}, {s(dc)}, {s(S_T2)}
        s_sub_u32 {s(S_T3)}, {s(S_T3)}, {s(S_T1)}
        s_mul_i32 {s(dst)}, {s(dst)}, 73728
        s_lshl_b32 {s(S_T3)}, {s(S_T3)}, 11
        s_add_u32 {s(dst)}, {s(dst)}, {s(S_T3)}
        s_add_u32 {s(dst)}, {s(dst)}, {s(S_T0)}
        """)
    nonce_and_publish(g)
    prod_unit(g, 1, 3)
    o3 = ["U0"] * 8 + ["t"] + ["U1"] * 8
    l3 = {0: [2], 1: [3], 2: [4], 3: [5]}
    if g.opts.get("u2", 0):
        prod_unit(g, 2, 3)
        o3 += ["U2"] * 8
        l3 = {1: [3], 2: [4], 3: [5]}
    g(f"""
    s_cmp_eq_u32 {s(S_PROD)}, 1
    s_cbranch_scc1 L_prod_rows
    """)
    tr_addr()
    gemm(True, 3, list(o3), l3)
    g("L_prod_epi3:")
    epi(3)
    g("s_branch L_prod_fin")
    g(f"""
    L_prod_rows:
    v_mov_b32 {v(V_AD)}, {v(V_T3)}
    v_xor_b32 {v(V_AD+1)}, 64, {v(V_T3)}
    """)
    gemm(False, 3, list(o3), l3)
    g("s_branch L_prod_epi3")
    g("L_prod_idle:")
    common_consts(g)
    nonce_and_publish(g)
    p2_setup(g)
    if g.opts.get("help", 1) > 1:
        helper()
    g("s_branch L_prod_help")


A_K = 0
A_V = 144
V_RES = V_MISC + 28
RK = V_MISC
BK = 232
SG = 248
A2 = [70, 71, 72, 73, 79]
V_KO, VST, V_L16H = 78, 206, 216
VTB = 217
V_I8 = 244
S_RH2 = 74
VC2 = 232
V_FXP = 235
V_P3F, V_SQA, V_RSA, V_P3V = 188, 189, 190, 191
S_P3F, S_Q2, S_U0, S_U1 = 4, 5, 6, 7
S_QM = [8, 9, 10]
S_KS = [76, 77, 78, 79]
S_R0, S_R1, S_STX, S_FXP, S_O1, S_O0, S_FL = 80, 81, 14, 15, 3, 18, 19


def kreg(slot, ks):
    return v(V_XF + 4 * ks, 4) if slot == 0 else a(A_K + (slot - 1) * 48 + 4 * ks, 4)


S_CP0, S_CP1, S_O2 = 15, 16, 17
S_RHO = 26
VK = [71, 79, 78]
V_L8 = 73


def p2_setup(g):
    T0, T1 = V_T0, V_T1
    g(f"""
    s_lshr_b32 {s(S_RH2)}, {s(S_J)}, 4
    s_lshl_b32 {s(S_RH2)}, {s(S_RH2)}, 1
    s_and_b32 {s(S_T1)}, {s(S_J)}, 15
    s_mul_i32 {s(S_T2)}, {s(S_T1)}, 43
    s_lshr_b32 {s(S_T2)}, {s(S_T2)}, 7
    s_mul_i32 {s(S_T2)}, {s(S_T2)}, 3
    s_sub_u32 {s(S_RHO)}, {s(S_T1)}, {s(S_T2)}
    s_mul_i32 {s(S_RHO)}, {s(S_RHO)}, {4 if g.opts.get("krot", 0) else 0}
    s_lshl_b32 {s(S_T1)}, {s(S_RHO)}, 10
    v_add_u32 {v(VK[0])}, {s(S_T1)}, {v(V_L16)}
    s_add_u32 {s(S_T1)}, {s(S_T1)}, 4096
    s_cmp_eq_u32 {s(S_T1)}, 12288
    s_cselect_b32 {s(S_T1)}, 0, {s(S_T1)}
    v_add_u32 {v(VK[1])}, {s(S_T1)}, {v(V_L16)}
    s_add_u32 {s(S_T1)}, {s(S_T1)}, 4096
    s_cmp_eq_u32 {s(S_T1)}, 12288
    s_cselect_b32 {s(S_T1)}, 0, {s(S_T1)}
    v_add_u32 {v(VK[2])}, {s(S_T1)}, {v(V_L16)}
    s_mul_i32 {s(S_T1)}, {s(S_W)}, 3
    s_add_u32 {s(S_T1)}, {s(S_T1)}, 12
    s_sub_u32 {s(S_RHO)}, {s(S_T1)}, {s(S_RHO)}
    v_add_u32 {v(V_L16H)}, 4096, {v(V_L16)}
    v_lshlrev_b32 {v(V_L8)}, 3, {v(V_L)}
    v_xor_b32 {v(T0)}, {s(S_RH2)}, {v(V_G)}
    v_lshrrev_b32 {v(T1)}, 3, {v(V_I)}
    v_lshl_add_u32 {v(T1)}, {v(T0)}, 1, {v(T1)}
    v_mul_u32_u24 {v(T1)}, 768, {v(T1)}
    v_and_b32 {v(T0)}, 7, {v(V_I)}
    v_lshl_add_u32 {v(VST)}, {v(T0)}, 3, {v(T1)}
    s_mul_i32 {s(S_STX)}, {s(S_G8)}, {6*32*128}
    s_mul_i32 {s(S_T1)}, {s(S_W)}, {48*128}
    s_add_u32 {s(S_STX)}, {s(S_STX)}, {s(S_T1)}
    s_add_u32 {s(S_STX)}, {s(S_STX)}, {WS_STX}
    s_mul_i32 {s(S_T1)}, {s(S_W)}, 768
    s_add_u32 {s(S_T1)}, {s(S_T1)}, {L_ST}
    v_lshlrev_b32 {v(T0)}, 2, {v(V_L)}
    v_add_u32 {v(VTB)}, {s(S_T1)}, {v(T0)}
    v_lshlrev_b32 {v(V_I8)}, 3, {v(V_I)}
    v_lshlrev_b32 {v(VTB+1)}, 4, {v(V_G)}
    v_add_u32 {v(VTB+2)}, {s(S_T1)}, {v(VTB+1)}
    s_lshl_b32 {s(S_T3)}, {s(S_G8)}, 2
    s_add_u32 {s(S_T3)}, {s(S_T3)}, {s(S_W)}
    s_mul_i32 {s(S_T3)}, {s(S_T3)}, 49152
    s_add_u32 {s(S_T3)}, {s(S_T3)}, {WS_X1}
    s_mul_i32 {s(S_T1)}, {s(S_RH2)}, 12288
    s_add_u32 {s(S_KS[0])}, {s(S_T3)}, {s(S_T1)}
    s_add_u32 {s(S_KS[1])}, {s(S_KS[0])}, 12288
    s_sub_u32 {s(S_KS[2])}, {s(S_T3)}, {s(S_T1)}
    s_add_u32 {s(S_KS[2])}, {s(S_KS[2])}, 24576
    s_add_u32 {s(S_KS[3])}, {s(S_KS[2])}, 12288
    s_bfe_u32 {s(S_T1)}, {s(S_J)}, 0x20002
    s_sub_u32 {s(S_R1)}, {s(S_T1)}, {s(S_W)}
    s_mul_i32 {s(S_R1)}, {s(S_R1)}, 49152
    s_add_u32 {s(S_R1)}, {s(S_R1)}, {s(S_KS[0])}
    s_and_b32 {s(S_T1)}, {s(S_W)}, 1
    s_mul_i32 {s(S_T1)}, {s(S_T1)}, 12288
    s_add_u32 {s(S_R1)}, {s(S_R1)}, {s(S_T1)}
    s_and_b32 {s(S_T1)}, {s(S_J)}, 3
    s_mul_i32 {s(S_T1)}, {s(S_T1)}, 3072
    s_add_u32 {s(S_R1)}, {s(S_R1)}, {s(S_T1)}
    s_lshr_b32 {s(S_T1)}, {s(S_W)}, 1
    s_lshl_b32 {s(S_T1)}, {s(S_T1)}, 10
    s_add_u32 {s(S_R0)}, {s(S_T1)}, {s(S_R1)}
    s_lshl_b32 {s(S_FL)}, s2, 7
    s_lshl_b32 {s(S_T1)}, {s(S_W)}, 2
    s_add_u32 {s(S_FL)}, {s(S_FL)}, {s(S_T1)}
    s_add_u32 {s(S_FL)}, {s(S_FL)}, {WS_F2}
    s_bfe_u32 {s(S_T3)}, {s(S_J)}, 0x30001
    s_mul_i32 {s(S_WD0)}, {s(S_T3)}, 73728
    s_mul_i32 {s(S_T1)}, {s(S_W)}, 18432
    s_add_u32 {s(S_WD0)}, {s(S_WD0)}, {s(S_T1)}
    s_add_u32 {s(S_WD0)}, {s(S_WD0)}, {WS_WS2}
    s_mul_i32 {s(S_CP0)}, {s(S_T3)}, 3072
    s_add_u32 {s(S_CP0)}, {s(S_CP0)}, {WS_CSP}
    s_and_b32 {s(S_T2)}, {s(S_J)}, 1
    s_lshl_b32 {s(S_T1)}, {s(S_T2)}, 10
    s_add_u32 {s(S_WD1)}, {s(S_WD0)}, {s(S_T1)}
    s_lshl_b32 {s(S_T1)}, {s(S_T2)}, 12
    s_add_u32 {s(S_WD0)}, {s(S_WD0)}, {s(S_T1)}
    s_lshl_b32 {s(S_T1)}, {s(S_T2)}, 9
    s_add_u32 {s(S_CP1)}, {s(S_CP0)}, {s(S_T1)}
    s_lshl_b32 {s(S_T1)}, {s(S_T2)}, 11
    s_add_u32 {s(S_CP0)}, {s(S_CP0)}, {s(S_T1)}
    """)
    g(f"""
    s_lshl_b32 {s(S_O0)}, {s(S_G8)}, 2
    s_add_u32 {s(S_O0)}, {s(S_O0)}, {s(S_RH2)}
    s_lshl_b32 {s(S_O0)}, {s(S_O0)}, 1
    s_add_u32 {s(S_O0)}, {s(S_O0)}, {s(S_W)}
    s_mul_i32 {s(S_O1)}, {s(S_O0)}, 24576
    s_mul_i32 {s(S_T1)}, {s(S_T3)}, 3072
    s_add_u32 {s(S_O1)}, {s(S_O1)}, {s(S_T1)}
    s_add_u32 {s(S_O1)}, {s(S_O1)}, {WS_QP}
    s_lshl_b32 {s(S_T1)}, {s(S_T2)}, 3
    s_add_u32 {s(S_O2)}, {s(S_O1)}, {s(S_T1)}
    s_add_u32 {s(S_O2)}, {s(S_O2)}, 1024
    s_lshl_b32 {s(S_T1)}, {s(S_T2)}, 11
    s_add_u32 {s(S_O1)}, {s(S_O1)}, {s(S_T1)}
    s_lshl_b32 {s(S_O0)}, {s(S_O0)}, 10
    s_lshl_b32 {s(S_T1)}, {s(S_T3)}, 7
    s_add_u32 {s(S_O0)}, {s(S_O0)}, {s(S_T1)}
    s_lshl_b32 {s(S_T1)}, {s(S_T2)}, 2
    s_add_u32 {s(S_O0)}, {s(S_O0)}, {s(S_T1)}
    s_add_u32 {s(S_O0)}, {s(S_O0)}, {WS_SQ}
    s_bitcmp0_b32 {s(S_J)}, 3
    s_cbranch_scc1 {g.label("q") if False else "L_p2s_%d" % g.uid}
    s_lshl_b32 {s(S_O1)}, {s(S_G8)}, 2
    s_add_u32 {s(S_O1)}, {s(S_O1)}, {s(S_T3)}
    s_sub_u32 {s(S_O1)}, {s(S_O1)}, 4
    s_mul_i32 {s(S_O1)}, {s(S_O1)}, 49152
    s_lshl_b32 {s(S_T1)}, {s(S_W)}, 2
    s_add_u32 {s(S_T1)}, {s(S_T1)}, {s(S_RH2)}
    s_mul_i32 {s(S_T1)}, {s(S_T1)}, 3072
    s_add_u32 {s(S_O1)}, {s(S_O1)}, {s(S_T1)}
    s_add_u32 {s(S_O1)}, {s(S_O1)}, {WS_VP}
    s_lshl_b32 {s(S_T1)}, {s(S_T2)}, 10
    s_add_u32 {s(S_O2)}, {s(S_O1)}, {s(S_T1)}
    s_lshl_b32 {s(S_T1)}, {s(S_T2)}, 12
    s_add_u32 {s(S_O1)}, {s(S_O1)}, {s(S_T1)}
    L_p2s_{g.uid}:
    """)
    g.uid += 1


KORD = [(sl, ks) for ks in range(12) for sl in range(2)] + [(sl, ks) for sl in (2, 3) for ks in range(12)]
KL = ([f"buffer_load_dwordx4 {kreg(sl,ks)}, {v(VK[ks//4])}, {s(SRD_WS,4)}, {s(S_KS[sl])} offen offset:{(ks%4)*1024} sc1"
       for sl, ks in KORD] +
      [f"buffer_load_dwordx4 {v(V_RES,4)}, {v(V_RSA)}, {s(SRD_WS,4)}, {s(S_R0)} offen sc1",
       f"buffer_load_dwordx4 {v(V_RES+4,4)}, {v(V_RSA)}, {s(SRD_WS,4)}, {s(S_R1)} offen offset:2048 sc1"])


def colsums(g):
    CT = V_ACC + 32
    for c in range(3):
        g(f"v_add_f32 {v(CSL+4*c)}, {v(CSL+4*c)}, {v(CSL+4*c+1)}")
    for sw in ("v_permlane16_swap_b32", "v_permlane32_swap_b32"):
        for c in range(3):
            g(f"v_mov_b32 {v(CSL+4*c+1)}, {v(CSL+4*c)}")
        for c in range(3):
            g(f"{sw} {v(CSL+4*c)}, {v(CSL+4*c+1)}")
        for c in range(3):
            g(f"v_add_f32 {v(CSL+4*c)}, {v(CSL+4*c)}, {v(CSL+4*c+1)}")
    for c in range(3):
        colsum_pack(g, CSL + 4 * c, CT + 2 * c)


def p2(g):
    ACC = V_ACC
    CS = V_ACC + 24
    CT = V_ACC + 32
    RT = 232
    MU2 = [V_MU, 240]
    SC2 = [V_T0, 242]
    STP = V_MISC
    KM, KR, KB = V_MISC + 12, V_MISC + 13, V_MISC + 20
    g("L_p2:")
    g.stamp('early')
    ws2_dma(g)
    g("L_p2c:")

    def stx():
        for cb in range(6):
            g(f"buffer_load_dwordx2 {v(STP+2*cb,2)}, {v(VST)}, {s(SRD_WS,4)}, {s(S_STX)} offen offset:{cb*128} sc1")
    FXW = g.opts.get("fxw", 1)
    if FXW == 0:
        stx()
    g(f"s_waitcnt vmcnt({9 + 6 * (FXW == 0)})")
    g.stamp('wsland')
    colsums(g)
    g(f"""
    s_mov_b32 {s(S_SPIN)}, {SPIN_LIMIT}
    s_mov_b32 {s(S_RETRY)}, 64
    {'s_branch L_px1' if FXW == 0 else ''}
    L_px:
    """)
    stx()
    g("L_px1:")
    g("s_waitcnt vmcnt(0)")
    for cb in range(6):
        for h in range(2):
            g(f"v_xor_b32 {v(STP+2*cb+h)}, {s(S_TAG+h)}, {v(STP+2*cb+h)}")
    g(f"v_or3_b32 {v(V_T0)}, {v(STP)}, {v(STP+1)}, {v(STP+2)}")
    for q in range(3, 11, 2):
        g(f"v_or3_b32 {v(V_T0)}, {v(V_T0)}, {v(STP+q)}, {v(STP+q+1)}")
    g(f"""
    v_or_b32 {v(V_T0)}, {v(V_T0)}, {v(STP+11)}
    v_and_b32 {v(V_T0)}, 0xff, {v(V_T0)}
    v_cmp_ne_u32 vcc, 0, {v(V_T0)}
    s_cbranch_vccz L_pxok
    s_sleep {g.opts.get("slp", 2)}
    s_sub_u32 {s(S_SPIN)}, {s(S_SPIN)}, 1
    s_cbranch_scc0 L_px
    L_pxok:
    """)
    g.stamp('x1ok')
    K0N = g.opts.get("k0n", 12)
    for x in KL[:K0N]:
        g(x)
    g(f"""
    s_barrier
    s_bitcmp0_b32 {s(S_J)}, 3
    s_cbranch_scc0 L_p2_v
    """)

    def stats(typ):
        for c in range(1, 6):
            g(f"v_pk_add_f32 {v(STP,2)}, {v(STP,2)}, {v(STP+2*c,2)}")
        mean_rstd(g, STP, STP + 1, KM, KR)
        g.nop(1)
        g(f"v_mul_f32 {v(KB)}, {v(KM)}, {v(KR)}")
        g(f"""
        ds_write_b32 {v(VTB)}, {v(KR)}
        ds_write_b32 {v(VTB)}, {v(KB)} offset:256
        """)
        for src, d0, d1 in ((KM, V_MEAN, STP + 2), (KR, V_R, STP + 3))[:2 - typ]:
            g(f"v_mov_b32 {v(d0)}, {v(src)}")
            g(f"v_mov_b32 {v(d1)}, {v(src)}")
            g.nop(2)
            g(f"v_permlane16_swap_b32 {v(d0)}, {v(d1)}")
            g.nop(1)
            g(f"v_mov_b32 {v(STP+4)}, {v(d0)}")
            g(f"v_mov_b32 {v(STP+5)}, {v(d1)}")
            g.nop(2)
            g(f"v_permlane32_swap_b32 {v(d0)}, {v(STP+4)}")
            g(f"v_permlane32_swap_b32 {v(d1)}, {v(STP+5)}")
            g.nop(1)
        mu_operand(g, V_MEAN, MU2[0])
        mu_operand(g, STP + 2, MU2[1])
        if typ == 0:
            for u, r in ((0, V_R), (1, STP + 3)):
                g(f"v_mul_f32 {v(SC2[u])}, {f2u(SCALE_LOG2E):#x}, {v(r)}")
                g(f"v_mul_f32 {v(SC2[u]+1)}, {f2u(SCALE_LOG2E):#x}, {v(r)}")
        else:
            g("s_waitcnt lgkmcnt(0)")
            for u in range(2):
                g(f"ds_read_b128 {v(RT+4*u,4)}, {v(VTB+2)} offset:{u*64}")
    KIN = g.opts.get("kin", 24)
    KA = g.opts.get("kafter", 4)
    KB4 = g.opts.get("kpoll", 0)
    for typ in range(2):
        if typ == 1:
            g("L_p2_v:")
        stats(typ)
        p3_setup(g)
        g("s_waitcnt lgkmcnt(0)")
        g(f"L_p2_go{typ}:")
        g.stamp('k0')
        items = []
        nk = K0N
        urgent = 24 - K0N
        slots = [q * g.opts.get("ku", 2) for q in range(urgent)]
        s0 = slots[-1] + 2 if slots else 0
        slots += [s0 + round((q + 0.5) * (72 - s0) / max(KIN - urgent, 1)) for q in range(KIN - urgent)]
        for ks in range(12):
            for c in range(3):
                n = ks * 3 + c
                b = V_BUF + (n % 16) * 4
                rd = [f"ds_read_b128 {v(b,4)}, {v(V_L16)} offset:{n*1024}"]
                cm = []
                for u in range(2):
                    d = ACC + 12 * u + 4 * c
                    if c == 0:
                        assert nk - 1 - (2 * ks + u) >= 0
                        cm.append(f"s_waitcnt vmcnt({nk - 1 - (2 * ks + u)})")
                    A, B = (v(b, 4), kreg(u, ks)) if typ == 0 else (kreg(u, ks), v(b, 4))
                    cm.append(f"v_mfma_f32_16x16x32_bf16 {v(d,4)}, {A}, {B}, {'0' if ks == 0 else v(d,4)}")
                    for _ in range(slots.count(2 * n + u)):
                        cm.append(KL[nk])
                        nk += 1
                items.append((rd, cm))
        pipelined(g, items, 8, group=1)
        g.stamp('p2gemm')
        PK = V_BUF
        for u in range(2):
            for c in range(3):
                d = ACC + 12 * u + 4 * c
                A, B = (v(CT + 2 * c, 2), v(MU2[u], 2)) if typ == 0 else (v(MU2[u], 2), v(CT + 2 * c, 2))
                mfma16(g, v(d, 4), A, B)
        g.nop(3)
        if typ == 0:
            for i in range(6):
                g(f"v_pk_mul_f32 {v(ACC+2*i,2)}, {v(ACC+2*i,2)}, {v(SC2[0],2)}")
            g(f"v_cmp_u_f32 vcc, {v(ACC)}, {v(ACC+12)}")
            g("s_cbranch_vccnz L_p2_redo")
            g("L_p2_q_on:")
            for i in range(6, 12):
                g(f"v_pk_mul_f32 {v(ACC+2*i,2)}, {v(ACC+2*i,2)}, {v(SC2[1],2)}")
            for u in range(2):
                for i in range(6):
                    g(f"v_cvt_pk_bf16_f32 {v(PK+8*u+i)}, {v(ACC+12*u+2*i)}, {v(ACC+12*u+2*i+1)}")
            g.nop(1)
            for u in range(2):
                mfma32(g, v(CS + 4 * u, 4), v(V_ONES, 4), v(PK + 8 * u, 4), "0")
            for u in range(2):
                mfma16(g, v(CS + 4 * u, 4), v(V_ONES, 2), v(PK + 8 * u + 4, 2))

            def st(sc):
                g(f"""
                s_add_u32 {s(S_T1)}, {s(S_O1)}, 12288
                s_add_u32 {s(S_T2)}, {s(S_O2)}, 12288
                buffer_store_dwordx4 {v(PK,4)}, {v(V_L16)}, {s(SRD_WS,4)}, {s(S_O1)} offen{sc}
                buffer_store_dwordx4 {v(PK+8,4)}, {v(V_L16)}, {s(SRD_WS,4)}, {s(S_T1)} offen{sc}
                buffer_store_dwordx2 {v(PK+4,2)}, {v(V_L16)}, {s(SRD_WS,4)}, {s(S_O2)} offen{sc}
                buffer_store_dwordx2 {v(PK+12,2)}, {v(V_L16)}, {s(SRD_WS,4)}, {s(S_T2)} offen{sc}
                s_mov_b64 exec, {s(S_G0,2)}
                buffer_store_dword {v(CS)}, {v(V_I8)}, {s(SRD_WS,4)}, {s(S_O0)} offen{sc}
                buffer_store_dword {v(CS+4)}, {v(V_I8)}, {s(SRD_WS,4)}, {s(S_O0)} offen offset:512{sc}
                s_mov_b64 exec, -1
                """)
            both_modes(g, st)
            g("s_branch L_p2_done")
        else:
            for c in range(3):
                for h in range(2):
                    g(f"v_pk_mul_f32 {v(ACC+4*c+2*h,2)}, {v(ACC+4*c+2*h,2)}, {v(RT+2*h,2)}")
            g(f"""
            v_pk_add_f32 {v(CS,2)}, {v(ACC,2)}, {v(ACC+12,2)}
            v_pk_add_f32 {v(CS+2,2)}, {v(ACC+2,2)}, {v(ACC+14,2)}
            v_pk_add_f32 {v(CS,2)}, {v(CS,2)}, {v(CS+2,2)}
            v_cmp_u_f32 vcc, {v(CS)}, {v(CS+1)}
            s_cbranch_vccnz L_p2_redo
            L_p2_v_on:
            """)
            for c in range(3):
                for h in range(2):
                    g(f"v_pk_mul_f32 {v(ACC+12+4*c+2*h,2)}, {v(ACC+12+4*c+2*h,2)}, {v(RT+4+2*h,2)}")
            for c in range(3):
                for u in range(2):
                    for h in range(2):
                        d = ACC + 12 * u + 4 * c + 2 * h
                        g(f"v_cvt_pk_bf16_f32 {v(PK+4*c+2*u+h)}, {v(d)}, {v(d+1)}")

            def st(sc):
                g(f"""
                buffer_store_dwordx4 {v(PK,4)}, {v(V_L16)}, {s(SRD_WS,4)}, {s(S_O1)} offen{sc}
                buffer_store_dwordx4 {v(PK+4,4)}, {v(V_L16)}, {s(SRD_WS,4)}, {s(S_O1)} offen offset:1024{sc}
                buffer_store_dwordx4 {v(PK+8,4)}, {v(V_L16)}, {s(SRD_WS,4)}, {s(S_O2)} offen offset:2048{sc}
                """)
            both_modes(g, st)
    g("L_p2_done:")
    g.stamp('p2st')
    for x in KL[nk:nk + KA]:
        g(x)
    g(f"s_waitcnt vmcnt({KA})")
    g("s_mov_b64 exec, 1")
    both_modes(g, lambda sc: g(f"buffer_store_dword {v(V_NONCE)}, {v(V_ZERO)}, {s(SRD_WS,4)}, {s(S_FL)} offen{sc}"))
    g("s_mov_b64 exec, -1")
    g.stamp('p2flag')
    for x in KL[nk + KA:nk + KA + KB4]:
        g(x)
    for sl in range(4):
        g(f"ds_read_b128 {v(RK+4*sl,4)}, {v(VTB+2)} offset:{sl*64}")
        g(f"ds_read_b128 {v(BK+4*sl,4)}, {v(VTB+2)} offset:{256+sl*64}")
    return nk + KA + KB4


S_Q, S_SQ, S_V0, S_V1 = S_TAG, S_TAG + 1, S_TAG + 2, S_TAG + 3


def p3_setup(g):
    g(f"""
    s_and_b32 {s(S_T5)}, {s(S_J)}, 3
    s_bfe_u32 {s(S_T4)}, {s(S_J)}, 0x20002
    s_lshl_b32 {s(S_P3F)}, {s(S_G8)}, 7
    s_add_u32 {s(S_P3F)}, {s(S_P3F)}, {WS_F2}
    v_and_b32 {v(V_T2)}, 7, {v(V_L)}
    v_lshlrev_b32 {v(V_T2)}, 10, {v(V_T2)}
    s_lshl_b32 {s(S_T1)}, {s(S_RH2)}, 13
    s_lshl_b32 {s(S_T2)}, {s(S_T4)}, 2
    s_add_u32 {s(S_T1)}, {s(S_T1)}, {s(S_T2)}
    v_add_u32 {v(V_P3F)}, {s(S_T1)}, {v(V_T2)}
    """)


def p3_setup2(g):
    g(f"""
    v_and_b32 {v(V_T2)}, 1, {v(V_L)}
    v_lshlrev_b32 {v(V_T2)}, 10, {v(V_T2)}
    v_and_b32 {v(V_T3)}, 2, {v(V_L)}
    v_lshl_add_u32 {v(V_T2)}, {v(V_T3)}, 13, {v(V_T2)}
    s_lshl_b32 {s(S_T1)}, {s(S_T5)}, 11
    s_lshl_b32 {s(S_T2)}, {s(S_W)}, 2
    s_add_u32 {s(S_T1)}, {s(S_T1)}, {s(S_T2)}
    s_add_u32 {s(S_T1)}, {s(S_T1)}, 8192
    v_add_u32 {v(V_P3V)}, {s(S_T1)}, {v(V_T2)}
    s_lshl_b32 {s(S_T6)}, {s(S_G8)}, 2
    s_add_u32 {s(S_T7)}, {s(S_T6)}, {s(S_T5)}
    s_add_u32 {s(S_T6)}, {s(S_T6)}, {s(S_RH2)}
    s_lshl_b32 {s(S_T6)}, {s(S_T6)}, 1
    s_add_u32 {s(S_T6)}, {s(S_T6)}, {s(S_T4)}
    s_mul_i32 {s(S_Q)}, {s(S_T6)}, 24576
    s_mul_i32 {s(S_T2)}, {s(S_W)}, 3072
    s_add_u32 {s(S_Q)}, {s(S_Q)}, {s(S_T2)}
    s_add_u32 {s(S_Q)}, {s(S_Q)}, {WS_QP}
    s_lshl_b32 {s(S_SQ)}, {s(S_T6)}, 10
    s_add_u32 {s(S_SQ)}, {s(S_SQ)}, {WS_SQ}
    s_mul_i32 {s(S_V1)}, {s(S_T7)}, 49152
    s_mul_i32 {s(S_T2)}, {s(S_W)}, 12288
    s_add_u32 {s(S_V1)}, {s(S_V1)}, {s(S_T2)}
    s_add_u32 {s(S_V1)}, {s(S_V1)}, {WS_VP}
    s_mul_i32 {s(S_T2)}, {s(S_RH2)}, 3072
    s_add_u32 {s(S_V0)}, {s(S_V1)}, {s(S_T2)}
    s_sub_u32 {s(S_V1)}, {s(S_V1)}, {s(S_T2)}
    s_add_u32 {s(S_V1)}, {s(S_V1)}, 6144
    s_add_u32 {s(S_Q2)}, {s(S_Q)}, 12288
    v_add_u32 {v(V_AD)}, {L_WVO}, {v(V_L16)}
    """)
    for q in range(3):
        kpos(g, q, 1024, L_WVO - q * 1024)
        g(f"s_mov_b32 {s(S_QM[q])}, m0")
    g(f"""
    v_bfe_u32 {v(V_T2)}, {v(V_I)}, 1, 2
    v_xor_b32 {v(V_T2)}, {v(V_T2)}, {v(V_G)}
    v_lshl_add_u32 {v(V_T2)}, {v(V_I)}, 2, {v(V_T2)}
    v_lshlrev_b32 {v(V_T2)}, 4, {v(V_T2)}
    s_lshl_b32 {s(S_T1)}, {s(S_W)}, 11
    v_add_u32 {v(V_AD+1)}, {s(S_T1)}, {v(V_T2)}
    s_lshl_b32 {s(S_T1)}, {s(S_W)}, 8
    s_add_u32 {s(S_T1)}, {s(S_T1)}, {L_ML}
    v_lshlrev_b32 {v(V_T3)}, 3, {v(V_I)}
    v_add_u32 {v(V_AD+2)}, {s(S_T1)}, {v(V_T3)}
    s_and_b32 {s(S_T7)}, {s(S_W)}, 1
    s_lshl_b32 {s(S_T1)}, {s(S_T7)}, 7
    s_add_u32 {s(S_T1)}, {s(S_T1)}, {L_ML}
    v_lshrrev_b32 {v(V_T4)}, 2, {v(V_L)}
    v_lshlrev_b32 {v(V_T3)}, 3, {v(V_T4)}
    v_add_u32 {v(V_AD+3)}, {s(S_T1)}, {v(V_T3)}
    v_bfe_u32 {v(V_T3)}, {v(V_L)}, 3, 2
    v_xor_b32 {v(V_T3)}, {v(V_T3)}, {v(V_L)}
    v_lshlrev_b32 {v(V_T3)}, 4, {v(V_T3)}
    s_lshl_b32 {s(S_T1)}, {s(S_W)}, 13
    v_add_u32 {v(213)}, {s(S_T1)}, {v(V_T3)}
    v_and_b32 {v(V_T3)}, 3, {v(V_L)}
    v_lshlrev_b32 {v(V_T2)}, 4, {v(V_T4)}
    v_lshl_add_u32 {v(V_RSA)}, {v(V_T3)}, 8, {v(V_T2)}
    s_lshl_b32 {s(S_U1)}, {s(S_T4)}, 2
    s_add_u32 {s(S_U1)}, {s(S_U1)}, {s(S_RH2)}
    s_add_u32 {s(S_U1)}, {s(S_U1)}, {s(S_T7)}
    s_lshl_b32 {s(S_U1)}, {s(S_U1)}, 4
    s_lshl_b32 {s(S_T2)}, {s(S_G8)}, 8
    s_add_u32 {s(S_U1)}, {s(S_U1)}, {s(S_T2)}
    s_mul_i32 {s(S_U1)}, {s(S_U1)}, 768
    s_mul_i32 {s(S_T2)}, {s(S_T5)}, 192
    s_add_u32 {s(S_U1)}, {s(S_U1)}, {s(S_T2)}
    s_lshr_b32 {s(S_T2)}, {s(S_W)}, 1
    s_lshl_b32 {s(S_T2)}, {s(S_T2)}, 6
    s_add_u32 {s(S_U0)}, {s(S_T2)}, {s(S_U1)}
    v_mul_u32_u24 {v(V_T4)}, 768, {v(V_T4)}
    v_lshl_add_u32 {v(A2[0])}, {v(V_T3)}, 4, {v(V_T4)}
    """)


def kcheck(g):
    for n in range(24):
        mfma32(g, v(V_ACC + 32 + 4 * (n & 1), 4), v(V_ONES, 4), kreg(2 + n // 12, n % 12), "0" if n < 2 else None)


def wbl2(g):
    sk = g.label("nowb")
    g(f"""
    s_lshl_b32 {s(S_T0)}, {s(S_J)}, 2
    s_add_u32 {s(S_T0)}, {s(S_T0)}, {s(S_W)}
    s_and_b32 {s(S_T0)}, {s(S_T0)}, {g.opts.get("wbm", 127)}
    s_cmp_lg_u32 {s(S_T0)}, 3
    s_cbranch_scc1 {sk}
    buffer_wbl2 sc1
    {sk}:
    """)


def p3(g, nk):
    SA = V_ACC
    LS = V_ACC + 32
    MX = V_ACC + 40
    SQ = V_ACC + 42
    OA = V_BUF
    QB = V_BUF + 32
    PF = V_XF
    BS = OA
    V_RW, V_MW, V_MR, V_RR, V_OO = V_AD + 1, V_AD + 2, V_AD + 3, 213, A2[0]
    g(f"buffer_load_dword {v(V_T7)}, {v(V_P3F)}, {s(SRD_WS,4)}, {s(S_P3F)} offen sc1") if g.opts.get("pf", 1) else None
    p3_setup2(g)
    if g.opts.get("pf", 1):
        g(f"""
        s_waitcnt vmcnt(0)
        v_cmp_ne_u32 vcc, {s(S_NONCE)}, {v(V_T7)}
        s_cbranch_vccz L_e3ok
        """)
    poll(g, V_P3F, s(S_P3F), s(S_NONCE), "p2f")
    g("L_e3ok:")
    g.stamp('e3ok')
    for u in range(2):
        g(f"buffer_load_dwordx2 {v(SG+4+2*u,2)}, {v(V_L8)}, {s(SRD_WS,4)}, {s(S_SQ)} offen offset:{u*512} sc1")

    def qdma(u, so):
        for q in range(3):
            g(f"s_add_u32 m0, {s(S_QM[q])}, {u*12288}")
            g("s_nop 0")
            g(f"buffer_load_dwordx4 {v(V_L16)}, {s(SRD_WS,4)}, {s(so)} offen offset:{q*1024} sc1 lds")
    qdma(0, S_Q)
    q1 = capture(g, lambda: qdma(1, S_Q2))
    early = ["\n".join(q1[3*q:3*q+3]) for q in range(3)] + [f"buffer_load_dword {v(V_T7)}, {v(V_P3V)}, {s(SRD_WS,4)}, {s(S_P3F)} offen sc1"]
    vl = []
    for pr, so in ((0, S_V0), (1, S_V1)):
        for c in range(6):
            vo, off = (V_L16, c * 1024) if c < 4 else (V_L16H, (c - 4) * 1024)
            vl.append(f"buffer_load_dwordx4 {a(A_V+(pr*6+c)*4,4)}, {v(vo)}, {s(SRD_WS,4)}, {s(so)} offen offset:{off} sc1")
    late = KL[nk:48] + vl + KL[48:]
    nkl = 48 - min(nk, 48)
    late = early + late
    PRE = g.opts.get("p3pre", 4)
    for x in late[:PRE]:
        g(x)
    g(f"s_waitcnt vmcnt({3 + PRE}) lgkmcnt(0)")
    for u in range(2):
        g(f"v_add_f32 {v(SQ+u)}, {v(SG+4+2*u)}, {v(SG+5+2*u)}")
    for u in range(2):
        g(f"v_mov_b32 {v(SG+u)}, {v(SQ+u)}")
    g.nop(1)
    for u in range(2):
        g(f"v_permlane16_swap_b32 {v(SQ+u)}, {v(SG+u)}")
    for u in range(2):
        g(f"v_add_f32 {v(SQ+u)}, {v(SQ+u)}, {v(SG+u)}")
    for u in range(2):
        g(f"v_mov_b32 {v(SG+u)}, {v(SQ+u)}")
    g.nop(1)
    for u in range(2):
        g(f"v_permlane32_swap_b32 {v(SQ+u)}, {v(SG+u)}")
    for u in range(2):
        g(f"v_add_f32 {v(SG+2+2*u)}, {v(SQ+u)}, {v(SG+u)}")
        g(f"v_add_f32 {v(SG+3+2*u)}, {v(SQ+u)}, {v(SG+u)}")
    for u in range(2):
        for i in range(8):
            g(f"v_pk_mul_f32 {v(BS+16*u+2*i,2)}, {v(BK+2*i,2)}, {v(SG+2+2*u,2)}")
    g(f"""
    s_waitcnt vmcnt({PRE})
    s_barrier
    """)
    g.stamp('qland')

    def softmax_lines(u, pk):
        d = SA + u * 16
        TMP = SG + 4 * u
        L = []
        if pk:
            for i in range(8):
                L.append(f"v_pk_fma_f32 {v(d+2*i,2)}, {v(d+2*i,2)}, {v(RK+2*i,2)}, {v(BS+16*u+2*i,2)} neg_lo:[0,0,1] neg_hi:[0,0,1]")
        else:
            for i in range(16):
                L.append(f"v_fma_f32 {v(d+i)}, {v(d+i)}, {v(RK+i)}, -{v(BS+16*u+i)}")
        nf = len(L)
        L.append(f"v_max3_f32 {v(MX+u)}, {v(d)}, {v(d+1)}, {v(d+2)}")
        for i in range(3, 15, 2):
            L.append(f"v_max3_f32 {v(MX+u)}, {v(MX+u)}, {v(d+i)}, {v(d+i+1)}")
        L.append(f"v_max_f32 {v(MX+u)}, {v(MX+u)}, {v(d+15)}")
        L += capture(g, lambda: xlane_sum(g, MX + u, TMP + 2, "v_max_f32"))
        if pk:
            L.append(f"v_mov_b32 {v(TMP)}, {v(MX+u)}")
            L.append(f"v_mov_b32 {v(TMP+1)}, {v(MX+u)}")
            for i in range(8):
                L.append(f"v_pk_add_f32 {v(d+2*i,2)}, {v(d+2*i,2)}, {v(TMP,2)} neg_lo:[0,1] neg_hi:[0,1]")
        else:
            for i in range(16):
                L.append(f"v_sub_f32 {v(d+i)}, {v(d+i)}, {v(MX+u)}")
        for i in range(16):
            L.append(f"v_exp_f32 {v(d+i)}, {v(d+i)}")
        return L, nf
    OV = g.opts.get("ov", 0)
    sm0, _ = softmax_lines(0, not OV)
    items = []
    rest = list(late[PRE:])
    issued = PRE
    nk2 = nkl + 4 - PRE
    KD = g.opts.get("kd", 2)
    L0 = max(g.opts.get("l0", 4), nk2 * KD + 2)
    LSPAN = g.opts.get("lspan", 84)
    lpos = [q * KD for q in range(nk2)] + [L0 + int(q * (LSPAN - L0) / 14) for q in range(14)]
    vchk = capture(g, lambda: (g(f"""
    s_waitcnt vmcnt(@V@)
    v_cmp_ne_u32 vcc, {s(S_NONCE)}, {v(V_T7)}
    s_cbranch_vccz L_v_ok
    """), poll(g, V_P3V, s(S_P3F), s(S_NONCE), "pv"), g("L_v_ok:")))
    pos = 0
    for ph, (slots, u) in enumerate((((0, 1), 0), ((0, 1), 1), ((2, 3), 0), ((2, 3), 1))):
        for ks in range(12):
            b = QB + ((ph * 12 + ks) % 8) * 4
            rd = [f"ds_read_b128 {v(b,4)}, {v(V_AD)} offset:{u*12288+ks*1024}"]
            cm = []
            for sl in slots:
                kidx = KORD.index((sl, ks))
                if kidx >= nk and u == 0:
                    assert issued - (4 + kidx - nk) - 1 >= 0
                    cm.append(f"s_waitcnt vmcnt({issued - (4 + kidx - nk) - 1})")
                d = SA + u * 16 + sl * 4
                cm.append(f"v_mfma_f32_16x16x32_bf16 {v(d,4)}, {kreg(sl,ks)}, {v(b,4)}, {'0' if ks == 0 else v(d,4)}")
                if pos == L0:
                    cm += [x.replace("@V@", str(issued - 4)) for x in vchk]
                for _ in range(lpos.count(pos)):
                    cm.append(rest.pop(0))
                    issued += 1
                pos += 1
            items.append((rd, cm, [], issued))
    assert not rest
    QD = g.opts.get('qd', 6)
    assert items[12 - QD - 1][3] >= 3
    items[12][2].extend([f"s_waitcnt vmcnt({items[12 - QD - 1][3] - 3})", "s_barrier"])
    if g.opts.get("wb", 2) == 1:
        items[12][2].extend(capture(g, lambda: wbl2(g)))
    pipelined(g, items, QD)
    g(f"""
    L_k_chk:
    v_cmp_u_f32 {s(S_M,2)}, {v(SA+8)}, {v(SA+9)}
    v_cmp_u_f32 s[12:13], {v(SA+10)}, {v(SA+11)}
    v_cmp_u_f32 s[14:15], {v(SA+12)}, {v(SA+13)}
    v_cmp_u_f32 vcc, {v(SA+14)}, {v(SA+15)}
    s_or_b64 {s(S_M,2)}, {s(S_M,2)}, s[12:13]
    s_or_b64 vcc, vcc, s[14:15]
    s_or_b64 vcc, vcc, {s(S_M,2)}
    s_cbranch_scc1 L_k_redo
    L_k_ok:
    """)
    for x in sm0:
        g(x)
    g.stamp('sdone')

    def cvts(u, odd):
        L = []
        for sl in range(4):
            for h in range(2):
                dst = PF + u * 8 + (sl >> 1) * 4 + ((sl & 1) ^ odd) * 2 + h
                src = SA + u * 16 + sl * 4 + 2 * h
                L.append(f"v_cvt_pk_bf16_f32 {v(dst)}, {v(src)}, {v(src+1)}")
        return L

    def cvt_branch(u):
        g.nop(1)
        for x in cvts(u, 0):
            g(x)

    def pv_lines(u):
        L = []
        for pr in range(2):
            p = v(PF + u * 8 + pr * 4, 4)
            for c in range(6):
                d = OA + u * 24 + c * 4
                L.append(f"v_mfma_f32_16x16x32_bf16 {v(d,4)}, {a(A_V+(pr*6+c)*4,4)}, {p}, {'0' if pr == 0 else v(d,4)}")
            L.append(f"v_mfma_f32_16x16x32_bf16 {v(LS+4*u,4)}, {v(V_ONES,4)}, {p}, {'0' if pr == 0 else v(LS+4*u,4)}")
        return L
    cvt_branch(0)
    sm1, _ = softmax_lines(1, True)
    ex = sm1[-16:]
    for x in sm1[:-16]:
        g(x)
    g("s_waitcnt vmcnt(0)")
    if g.opts.get("wb", 2) == 2:
        wbl2(g)
    for x in pv_lines(0):
        g(x)
        if ex:
            g(ex.pop(0))
    for x in ex:
        g(x)
    g.stamp('smax')
    cvt_branch(1)
    OUT = V_ACC
    unp = []
    for rnd in range(2):
        for i in range(8):
            src = V_RES + 4 * rnd + (i >> 1)
            unp.append(f"v_and_b32 {v(OUT+8*rnd+i)}, 0xffff0000, {v(src)}" if i & 1 else
                       f"v_lshlrev_b32 {v(OUT+8*rnd+i)}, 16, {v(src)}")
    g(f"v_mov_b32 {v(V_T4)}, {v(MX)}")
    g(f"v_mov_b32 {v(V_T5)}, {v(LS)}")
    w0 = [f"ds_write_b128 {v(V_RW)}, {v(OA+(2*m+h)*4,4)} offset:{2*m*8192+h*1024}" for m in range(3) for h in range(2)]
    w0.append(f"ds_write_b64 {v(V_MW)}, {v(V_T4,2)}")
    for n, x in enumerate(pv_lines(1)):
        g(x)
        if n % 2 == 1:
            g(w0.pop(0))
        else:
            g(unp.pop(0))
    g.stamp('pvdone')
    for x in unp[:3]:
        g(x)
    unp = unp[3:]
    for m in range(3):
        for h in range(2):
            g(f"ds_write_b128 {v(V_RW)}, {v(OA+24+(2*m+h)*4,4)} offset:{(2*m+1)*8192+h*1024}")
            g(unp.pop(0))
    g(f"""
    v_mov_b32 {v(V_T6)}, {v(MX+1)}
    v_mov_b32 {v(V_T7)}, {v(LS+4)}
    ds_write_b64 {v(V_MW)}, {v(V_T6,2)} offset:128
    s_waitcnt lgkmcnt(0)
    s_barrier
    """)
    g.stamp('redbar')
    ML = V_ACC + 16
    FW = V_ACC + 24
    RD = V_BUF
    for w in range(4):
        g(f"ds_read_b64 {v(ML+2*w,2)}, {v(V_MR)} offset:{w*256}")
    for w in range(4):
        for h in range(2):
            g(f"ds_read_b128 {v(RD+w*8+h*4,4)}, {v(V_RR)} offset:{w*2048+h*1024}")
    g(f"""
    s_waitcnt lgkmcnt(8)
    v_max3_f32 {v(V_T3)}, {v(ML)}, {v(ML+2)}, {v(ML+4)}
    v_max_f32 {v(V_T3)}, {v(V_T3)}, {v(ML+6)}
    """)
    for w in range(4):
        g(f"v_sub_f32 {v(FW+2*w)}, {v(ML+2*w)}, {v(V_T3)}")
    for w in range(4):
        g(f"v_exp_f32 {v(FW+2*w)}, {v(FW+2*w)}")
    g(f"""
    s_waitcnt lgkmcnt(2)
    s_cmp_ge_u32 {s(S_W)}, 2
    s_cbranch_scc1 L_nord2
    """)
    for w in range(4):
        for h in range(2):
            g(f"ds_read_b128 {v(RD+32+w*8+h*4,4)}, {v(V_RR)} offset:{32768+w*2048+h*1024}")
    g(f"""
    s_waitcnt lgkmcnt(8)
    s_branch L_rd1
    L_nord2:
    s_waitcnt lgkmcnt(0)
    L_rd1:
    v_mul_f32 {v(V_T3)}, {v(FW)}, {v(ML+1)}
    v_fmac_f32 {v(V_T3)}, {v(FW+2)}, {v(ML+3)}
    v_fmac_f32 {v(V_T3)}, {v(FW+4)}, {v(ML+5)}
    v_fmac_f32 {v(V_T3)}, {v(FW+6)}, {v(ML+7)}
    v_rcp_f32 {v(V_T3)}, {v(V_T3)}
    s_nop 0
    """)
    for w in range(4):
        g(f"v_mul_f32 {v(FW+2*w)}, {v(FW+2*w)}, {v(V_T3)}")
        g(f"v_mov_b32 {v(FW+2*w+1)}, {v(FW+2*w)}")
    osc = " sc1" if g.opts.get("outsc1", 0) else (" nt" if g.opts.get("outnt", 0) else "")
    for rnd in range(2):
        if rnd == 1:
            g(f"""
            s_cmp_ge_u32 {s(S_W)}, 2
            s_cbranch_scc1 L_fin
            """)
        for w in range(4):
            if rnd == 1:
                g(f"s_waitcnt lgkmcnt({6-2*w})")
            for i in range(4):
                g(f"v_pk_fma_f32 {v(OUT+8*rnd+2*i,2)}, {v(RD+32*rnd+w*8+2*i,2)}, {v(FW+2*w,2)}, {v(OUT+8*rnd+2*i,2)}")
        PK = V_ACC + 32 + 4 * rnd
        if rnd == 0 and g.opts.get("perturb", 0):
            g(f"""
            s_or_b32 {s(S_T0)}, s2, {s(S_W)}
            s_cmp_lg_u32 {s(S_T0)}, 0
            s_cbranch_scc1 L_nopert
            s_mov_b64 exec, 1
            v_add_f32 {v(OUT)}, {f2u(g.opts["perturb"]/1000.):#x}, {v(OUT)}
            s_mov_b64 exec, -1
            L_nopert:
            """)
        for i in range(4):
            g(f"v_cvt_pk_bf16_f32 {v(PK+i)}, {v(OUT+8*rnd+2*i)}, {v(OUT+8*rnd+2*i+1)}")
        if rnd == 0:
            g(f"buffer_store_dwordx4 {v(PK,4)}, {v(V_OO)}, {s(SRD_OUT,4)}, {s(S_U0)} offen{osc}")
        else:
            g(f"buffer_store_dwordx4 {v(PK,4)}, {v(V_OO)}, {s(SRD_OUT,4)}, {s(S_U1)} offen offset:128{osc}")
    g("L_fin:")


def redo_blocks(g):
    g(f"""
    L_p2_redo:
    s_sub_u32 {s(S_RETRY)}, {s(S_RETRY)}, 1
    s_cbranch_scc1 L_p2_give
    s_waitcnt vmcnt(0)
    """)
    for x in KL[:24]:
        g(x)
    g(f"""
    s_waitcnt vmcnt(0)
    s_bitcmp0_b32 {s(S_J)}, 3
    s_cbranch_scc1 L_p2_go0
    s_branch L_p2_go1
    L_p2_give:
    s_mov_b32 {s(S_RETRY)}, 0
    s_bitcmp0_b32 {s(S_J)}, 3
    s_cbranch_scc1 L_p2_q_on
    s_branch L_p2_v_on
    L_k_redo:
    s_sub_u32 {s(S_RETRY)}, {s(S_RETRY)}, 1
    s_cbranch_scc1 L_k_ok
    """)
    for x in KL[24:48]:
        g(x)
    g("s_waitcnt vmcnt(0)")
    items = []
    for u in range(2):
        for ks in range(12):
            b = V_BUF + 32 + ((u * 12 + ks) % 8) * 4
            cm = []
            for sl in (2, 3):
                d = V_ACC + u * 16 + sl * 4
                cm.append(f"v_mfma_f32_16x16x32_bf16 {v(d,4)}, {kreg(sl,ks)}, {v(b,4)}, {'0' if ks == 0 else v(d,4)}")
            items.append(([f"ds_read_b128 {v(b,4)}, {v(V_AD)} offset:{u*12288+ks*1024}"], cm))
    pipelined(g, items, 6)
    g("s_branch L_k_chk")


def epilogue(g):
    g(f"""
    s_or_b32 {s(S_T0)}, s2, {s(S_W)}
    s_cmp_lg_u32 {s(S_T0)}, 0
    s_cbranch_scc1 L_nononce
    s_mov_b64 exec, 1
    buffer_store_dword {v(V_NONCE)}, {v(V_ZERO)}, {s(SRD_WS,4)}, 0 offen
    s_mov_b64 exec, -1
    L_nononce:
    """)
    if g.stamps:
        g(f"""
        s_cmp_lg_u32 {s(S_W)}, 0
        s_cbranch_scc1 L_end
        s_waitcnt vmcnt(0)
        s_memtime s[98:99]
        s_memrealtime s[100:101]
        s_waitcnt lgkmcnt(0)
        s_lshl_b32 {s(S_T0)}, s2, 8
        s_add_u32 {s(S_T0)}, {s(S_T0)}, {WS_STAMP}
        v_mov_b32 {v(V_T1)}, 0
        s_mov_b64 exec, 1
        """)
        for i in range(20):
            g(f"v_mov_b32 {v(V_T0)}, s{S_STAMP+i}")
            g(f"buffer_store_dword {v(V_T0)}, {v(V_T1)}, {s(SRD_WS,4)}, {s(S_T0)} offen offset:{4*i}")
            g("s_nop 1")
    if g.opts.get("dbg", 0):
        g(f"""
        s_cmp_lg_u32 {s(S_W)}, 0
        s_cbranch_scc1 L_end
        s_cmp_ge_u32 {s(S_CS)}, 6
        s_cbranch_scc1 L_end
        s_waitcnt vmcnt(0)
        s_memrealtime s[98:99]
        s_waitcnt lgkmcnt(0)
        s_not_b32 s84, s84
        v_mov_b32 {v(V_T1)}, 0
        s_mov_b64 exec, 1
        """)
        for i in range(8):
            g(f"v_mov_b32 {v(V_T0)}, s{84+2*i}")
            g(f"global_atomic_umax {v(V_T1)}, {v(V_T0)}, s[82:83] offset:{4*i}")
            g("s_nop 1")
    g("L_end:")
    g("s_endpgm")


def build(stamps=False, opts=None):
    g = G(stamps, opts)
    prologue(g)
    p0_issue(g)
    g("s_branch L_main")
    products(g)
    g("L_main:")
    p0_main(g)
    p1(g)
    nk = p2(g)
    p3(g, nk)
    epilogue(g)
    redo_blocks(g)
    products_body(g)
    g("L_code_end:")
    hdr = f"""; TimeSformer divided space-time attention block, one persistent launch (256 workgroups, one per CU).
{('; wsstamp:%d' % WS_STAMP + chr(10)) if stamps else ''}; @launch grid=(256,1,1) block=(256,1,1) lds={LDS_SIZE}
.amdgcn_target "amdgcn-amd-amdhsa--gfx950"
.text
.globl {KNAME}
.p2align 8
.type {KNAME},@function
{KNAME}:
"""
    ftr = f"""
.section .rodata,"a"
.p2align 6
.amdhsa_kernel {KNAME}
  .amdhsa_next_free_vgpr 512
  .amdhsa_next_free_sgpr 102
  .amdhsa_accum_offset 256
  .amdhsa_group_segment_fixed_size 0
  .amdhsa_kernarg_size 64
  .amdhsa_user_sgpr_count 2
  .amdhsa_user_sgpr_kernarg_segment_ptr 1
  .amdhsa_system_sgpr_workgroup_id_x 1
.end_amdhsa_kernel
"""
    return hdr + "\n".join(g.L) + ftr


if __name__ == "__main__":
    out = sys.argv[1]
    stamps = None
    opts = {}
    for x in sys.argv[2:]:
        if x.startswith("--stamps="):
            stamps = ["start"] + x.split("=")[1].split(",")
            assert len(stamps) <= 7
        elif "=" in x:
            k, val = x.split("=")
            opts[k] = int(val)
    open(out, "w").write(build(stamps, opts))
```

```python
import sys, math

KNAME = "standalone__video_timesformer__vision_kernel"

WS_NONCE = 0
WS_FXCC = 0x1000
WS_F2 = 0x13000
WS_SP = 0x1B000
WS_STX = 0x7B000
WS_WVOT = 0xB3000
WS_WS2 = 0xFB000
WS_X1 = 0x18B000
WS_QP = 0x30B000
WS_VP = 0x48B000
WS_CSP = 0x60B000
WS_FP = 0x617000
FP_REP = 96 * 128
WS_SQ = WS_FP + 8 * FP_REP
WS_STAMP = WS_SQ + 0x10000
WS_SIZE = WS_STAMP + 256 * 256

L_W = 0
L_WVO = 98304
L_T = 81920
L_CT0 = 147456
L_CT1 = L_CT0 + 1024
L_CT2 = L_CT1 + 512
L_ML = L_CT2 + 1024
L_ST = L_ML + 1024
L_SG = L_ST + 3072
LDS_SIZE = L_SG + 512

SPIN_LIMIT = 40000
SCALE_LOG2E = (384 ** -0.5) * math.log2(math.e)


def f2u(x):
    import struct
    return struct.unpack("<I", struct.pack("<f", x))[0]


DBG_STAMPS = ['xarr0', 'chunk0', 'sstored', 'x1st', 'x1ok', 'e3ok']


class G:
    def __init__(self, stamps=False, opts=None):
        self.L = []
        self.stamps = stamps
        self.nstamp = 0
        self.uid = 0
        self.opts = opts or {}

    def __call__(self, s):
        for line in s.split("\n"):
            line = line.strip()
            if line:
                self.L.append("    " + line if not line.endswith(":") else line)

    def label(self, p):
        self.uid += 1
        return f"L_{p}_{self.uid}"

    def nop(self, n):
        while n > 0:
            k = min(n, 16)
            self(f"s_nop {k-1}")
            n -= k

    def stamp(self, name, wait=True):
        if self.opts.get("dbg", 0) and name in DBG_STAMPS:
            k = 86 + 2 * DBG_STAMPS.index(name)
            self(f"s_memrealtime s[{k}:{k+1}]")
        if self.stamps and name in self.stamps:
            idx = 1 + self.stamps.index(name)
            self(f"s_memtime s[{S_STAMP+2*idx}:{S_STAMP+2*idx+1}]")
            if wait:
                self("s_waitcnt lgkmcnt(0)")


def v(a, n=1):
    return f"v{a}" if n == 1 else f"v[{a}:{a+n-1}]"


def a(x, n=1):
    return f"a{x}" if n == 1 else f"a[{x}:{x+n-1}]"


def s(x, n=1):
    return f"s{x}" if n == 1 else f"s[{x}:{x+n-1}]"


S_X, S_WQT, S_WOT, S_WQS, S_WOS, S_OUT, S_DBG, S_WS = 4, 6, 8, 10, 12, 14, 16, 18
S_G8, S_J, S_W, S_NONCE, S_ME = 20, 21, 22, 23, 24
S_RB = 25
S_T0, S_T1, S_T2, S_T3 = 27, 28, 29, 30
S_SPIN = 31
SRD_WS = 32
SRD_A = 36
SRD_B = 40
SRD_OUT = 44
S_VALID = 48
S_G0 = 50
S_TAG = 52
S_M = 56
S_ONES = 58
S_RQ = 59
S_CS = 60
S_SLOW = 61
S_F1 = 62
S_F2 = 63
S_T4, S_T5, S_T6, S_T7 = 64, 65, 66, 67
S_DIAG = 100
S_STAMP = 82

V_TID, V_L, V_I, V_G = 0, 1, 2, 3
V_T0, V_T1, V_T2, V_T3, V_T4, V_T5, V_T6, V_T7 = 4, 5, 6, 7, 8, 9, 10, 11
V_ONES = 12
V_XF = 16
V_MU = 64
V_R = 66
V_MEAN = 67
V_L16 = 68
V_MASK = 69
V_S1A, V_S1B, V_S2A, V_S2B = 70, 71, 72, 73
V_AD = 74
V_BUF = 80
V_ACC = 144
V_MISC = 192
V_ZERO, V_NONCE, V_PA, V_PB = 228, 229, 230, 231
V_PS = 246


def row_stats_dots(g, lo, hi):
    for r in range(lo, hi):
        g(f"v_dot2c_f32_bf16 {v(V_S1A + (r & 1))}, {s(S_ONES)}, {v(V_XF + r)}")
        g(f"v_dot2c_f32_bf16 {v(V_S2A + (r & 1))}, {v(V_XF + r)}, {v(V_XF + r)}")


def xlane_sum(g, r, t, op="v_add_f32"):
    g(f"v_mov_b32 {v(t)}, {v(r)}")
    g.nop(2)
    g(f"v_permlane16_swap_b32 {v(r)}, {v(t)}")
    g.nop(1)
    g(f"{op} {v(r)}, {v(r)}, {v(t)}")
    g(f"v_mov_b32 {v(t)}, {v(r)}")
    g.nop(2)
    g(f"v_permlane32_swap_b32 {v(r)}, {v(t)}")
    g.nop(1)
    g(f"{op} {v(r)}, {v(r)}, {v(t)}")


def row_stats_finish(g):
    g.nop(3)
    g(f"v_add_f32 {v(V_S1A)}, {v(V_S1A)}, {v(V_S1B)}")
    g(f"v_add_f32 {v(V_S2A)}, {v(V_S2A)}, {v(V_S2B)}")
    xlane_sum(g, V_S1A, V_T0)
    xlane_sum(g, V_S2A, V_T1)
    g(f"""
    v_mul_f32 {v(V_MEAN)}, {f2u(1/384.):#x}, {v(V_S1A)}
    v_mul_f32 {v(V_T0)}, {f2u(1/384.):#x}, {v(V_S2A)}
    v_fma_f32 {v(V_T0)}, -{v(V_MEAN)}, {v(V_MEAN)}, {v(V_T0)}
    v_max_f32 {v(V_T0)}, 0, {v(V_T0)}
    v_add_f32 {v(V_T0)}, {f2u(1e-5):#x}, {v(V_T0)}
    v_rsq_f32 {v(V_R)}, {v(V_T0)}
    v_cvt_pk_bf16_f32 {v(V_T1)}, -{v(V_MEAN)}, -{v(V_MEAN)}
    v_lshlrev_b32 {v(V_T1)}, 16, {v(V_T1)}
    v_sub_f32 {v(V_T1)}, -{v(V_MEAN)}, {v(V_T1)}
    v_cvt_pk_bf16_f32 {v(V_T1)}, -{v(V_MEAN)}, {v(V_T1)}
    v_cndmask_b32 {v(V_MU)}, 0, {v(V_T1)}, {s(S_G0,2)}
    v_cndmask_b32 {v(V_MU+1)}, 0, {v(V_T1)}, {s(S_G0,2)}
    """)


def mean_rstd(g, s1, s2, mean, rstd):
    g(f"""
    v_mul_f32 {v(mean)}, {f2u(1/384.):#x}, {v(s1)}
    v_mul_f32 {v(rstd)}, {f2u(1/384.):#x}, {v(s2)}
    v_fma_f32 {v(rstd)}, -{v(mean)}, {v(mean)}, {v(rstd)}
    v_max_f32 {v(rstd)}, 0, {v(rstd)}
    v_add_f32 {v(rstd)}, {f2u(1e-5):#x}, {v(rstd)}
    v_rsq_f32 {v(rstd)}, {v(rstd)}
    """)


def mu_operand(g, mean, dst=V_MU):
    g(f"""
    v_cvt_pk_bf16_f32 {v(V_T1)}, -{v(mean)}, -{v(mean)}
    v_lshlrev_b32 {v(V_T1)}, 16, {v(V_T1)}
    v_sub_f32 {v(V_T1)}, -{v(mean)}, {v(V_T1)}
    v_cvt_pk_bf16_f32 {v(V_T1)}, -{v(mean)}, {v(V_T1)}
    v_cndmask_b32 {v(dst)}, 0, {v(V_T1)}, {s(S_G0,2)}
    v_cndmask_b32 {v(dst+1)}, 0, {v(V_T1)}, {s(S_G0,2)}
    """)


def colsum_pack(g, src, dst):
    g(f"""
    v_cvt_pk_bf16_f32 {v(dst)}, {v(src)}, {v(src)}
    v_lshlrev_b32 {v(dst+1)}, 16, {v(dst)}
    v_sub_f32 {v(dst+1)}, {v(src)}, {v(dst+1)}
    v_cvt_pk_bf16_f32 {v(dst+1)}, {v(dst+1)}, {v(dst+1)}
    """)


def poll(g, voff, soff, want, name, slp=0):
    lp, done = g.label(name), g.label(name + "_ok")
    g(f"s_mov_b32 {s(S_SPIN)}, {SPIN_LIMIT}")
    g(f"{lp}:")
    g(f"""
    buffer_load_dword {v(V_T7)}, {v(voff)}, {s(SRD_WS,4)}, {soff} offen sc1
    s_waitcnt vmcnt(0)
    v_cmp_ne_u32 vcc, {want}, {v(V_T7)}
    s_cbranch_vccz {done}
    {'s_sleep %d' % slp if slp else ''}
    s_sub_u32 {s(S_SPIN)}, {s(S_SPIN)}, 1
    s_cbranch_scc0 {lp}
    {done}:
    """)


def mfma32(g, d, A, B, c=None):
    g(f"v_mfma_f32_16x16x32_bf16 {d}, {A}, {B}, {c if c is not None else d}")


def mfma16(g, d, A, B, c=None):
    g(f"v_mfma_f32_16x16x16_bf16 {d}, {A}, {B}, {c if c is not None else d}")


def pipelined(g, items, depth_reads, group=1):
    n = len(items)
    issued = 0
    cum = [0]
    for it in items:
        cum.append(cum[-1] + len(it[0]))
    for i in range(0, n, group):
        hi = min(i + group, n)
        while issued < n and (issued < hi or cum[issued + 1] - cum[i] <= depth_reads):
            if len(items[issued]) > 2:
                for p in items[issued][2]:
                    g(p)
            for r in items[issued][0]:
                g(r)
            issued += 1
        g(f"s_waitcnt lgkmcnt({cum[issued] - cum[hi]})")
        for k in range(i, hi):
            for c in items[k][1]:
                g(c)


def capture(g, fn):
    keep = g.L
    g.L = []
    fn()
    out = [x.strip() for x in g.L]
    g.L = keep
    return out


def prologue(g):
    g(f"""
    s_cmp_ge_u32 s2, 256
    s_cbranch_scc1 L_end
    s_load_dwordx16 s[4:19], s[0:1], 0
    """)
    if g.opts.get("dbg", 0):
        g("s_load_dwordx2 s[82:83], s[0:1], 48")
        g("s_memrealtime s[84:85]")
    if g.stamps:
        for i in range(S_STAMP, 100):
            g(f"s_mov_b32 s{i}, 0")
        g(f"s_memrealtime s[{S_STAMP}:{S_STAMP+1}]")
        g.stamp('start', False)
    g(f"""
    s_and_b32 {s(S_G8)}, s2, 7
    s_lshr_b32 {s(S_J)}, s2, 3
    v_lshrrev_b32 {v(V_T0)}, 6, v0
    v_and_b32 {v(V_L)}, 63, v0
    v_readfirstlane_b32 {s(S_W)}, {v(V_T0)}
    v_and_b32 {v(V_I)}, 15, v0
    v_bfe_u32 {v(V_G)}, v0, 4, 2
    v_lshlrev_b32 {v(V_L16)}, 4, {v(V_L)}
    """)
    if g.opts.get("codepf", 1):
        NL = g.opts.get("cpl", 3)
        g(f"""
        s_getpc_b64 {s(S_M,2)}
        L_pc:
        s_lshl_b32 {s(S_T0)}, {s(S_J)}, 2
        s_add_u32 {s(S_T0)}, {s(S_T0)}, {s(S_W)}
        s_mul_i32 {s(S_T0)}, {s(S_T0)}, {128*NL}
        s_min_u32 {s(S_T0)}, {s(S_T0)}, L_code_end-L_pc-{128*NL}
        v_lshlrev_b32 {v(V_T0)}, 7, {v(V_L)}
        v_add_u32 {v(V_T1)}, {s(S_T0)}, {v(V_T0)}
        s_mov_b64 exec, {(1 << NL) - 1}
        global_load_dword {v(V_MISC+62)}, {v(V_T1)}, {s(S_M,2)}
        s_mov_b64 exec, -1
        """)
    g(f"""
    s_lshr_b32 {s(S_RQ)}, {s(S_J)}, 3
    s_and_b32 {s(S_CS)}, {s(S_J)}, 7
    s_lshl_b32 {s(S_RB)}, {s(S_RQ)}, 3
    s_add_u32 {s(S_RB)}, {s(S_RB)}, {s(S_G8)}
    s_mov_b32 {s(SRD_A+3)}, 0x20000
    s_mov_b32 {s(SRD_B+3)}, 0x20000
    s_mov_b32 {s(SRD_WS+3)}, 0x20000
    s_mov_b32 {s(SRD_WS+2)}, {WS_SIZE}
    s_cmp_ge_u32 {s(S_CS)}, 6
    s_cbranch_scc1 L_products
    """)
    p0_pre(g)
    g(f"""
    s_waitcnt lgkmcnt(0)
    s_load_dword {s(S_NONCE)}, {s(S_WS,2)}, {WS_NONCE}
    """)


def common_consts(g):
    g(f"""
    s_mov_b32 {s(SRD_WS)}, {s(S_WS)}
    s_mov_b32 {s(SRD_WS+1)}, {s(S_WS+1)}
    s_mov_b32 {s(SRD_OUT)}, {s(S_OUT)}
    s_mov_b32 {s(SRD_OUT+1)}, {s(S_OUT+1)}
    s_mov_b32 {s(SRD_OUT+2)}, 1572864
    s_mov_b32 {s(SRD_OUT+3)}, 0x20000
    s_mov_b32 {s(S_ONES)}, 0x3f803f80
    s_getreg_b32 {s(S_ME)}, hwreg(HW_REG_XCC_ID, 0, 3)
    v_mov_b32 {v(V_ONES)}, {s(S_ONES)}
    v_mov_b32 {v(V_ONES+1)}, {s(S_ONES)}
    v_mov_b32 {v(V_ONES+2)}, {s(S_ONES)}
    v_mov_b32 {v(V_ONES+3)}, {s(S_ONES)}
    v_mov_b32 {v(V_MASK)}, 0xffffff00
    v_mov_b32 {v(V_ZERO)}, 0
    v_cmp_eq_u32 {s(S_G0,2)}, 0, {v(V_G)}
    v_lshrrev_b32 {v(V_T0)}, 1, {v(V_G)}
    v_lshrrev_b32 {v(V_T1)}, 3, {v(V_I)}
    v_cmp_eq_u32 {s(S_VALID,2)}, {v(V_T0)}, {v(V_T1)}
    v_lshrrev_b32 {v(V_T1)}, 2, {v(V_I)}
    v_cmp_eq_u32 {s(S_DIAG,2)}, {v(V_G)}, {v(V_T1)}
    """)
    g(f"""
    s_lshl_b32 {s(S_T0)}, {s(S_G8)}, 7
    s_add_u32 {s(S_T0)}, {s(S_T0)}, {WS_FXCC}
    v_and_b32 {v(V_T1)}, 31, {v(V_L)}
    v_lshlrev_b32 {v(V_T1)}, 10, {v(V_T1)}
    v_add_u32 {v(V_PA)}, {s(S_T0)}, {v(V_T1)}
    v_min_u32 {v(V_PB)}, 11, {v(V_L)}
    s_mul_i32 {s(S_T1)}, {s(S_G8)}, {FP_REP}
    v_lshlrev_b32 {v(V_PB)}, 7, {v(V_PB)}
    s_bitcmp0_b32 {s(S_J)}, 3
    s_cselect_b32 {s(S_T0)}, 0, {12*128}
    s_add_u32 {s(S_T0)}, {s(S_T0)}, {WS_FP+36*128}
    s_add_u32 {s(S_T0)}, {s(S_T0)}, {s(S_T1)}
    v_add_u32 {v(V_PB)}, {s(S_T0)}, {v(V_PB)}
    v_min_u32 {v(V_T0)}, 5, {v(V_L)}
    v_mul_u32_u24 {v(V_T0)}, 768, {v(V_T0)}
    s_lshl_b32 {s(S_T0)}, {s(S_CS)}, 7
    s_add_u32 {s(S_T0)}, {s(S_T0)}, {s(S_T1)}
    s_add_u32 {s(S_T0)}, {s(S_T0)}, {WS_FP}
    v_add_u32 {v(V_PS)}, {s(S_T0)}, {v(V_T0)}
    """)


def nonce_and_publish(g):
    g(f"""
    s_waitcnt lgkmcnt(0)
    s_and_b32 {s(S_T0)}, {s(S_NONCE)}, 0x78787878
    s_add_u32 {s(S_T0)}, {s(S_T0)}, 0x08080808
    s_and_b32 {s(S_T1)}, {s(S_NONCE)}, 0x80808080
    s_xor_b32 {s(S_NONCE)}, {s(S_T0)}, {s(S_T1)}
    s_or_b32 {s(S_ME)}, {s(S_ME)}, {s(S_NONCE)}
    s_lshl_b32 {s(S_T0)}, s2, 7
    s_add_u32 {s(S_T0)}, {s(S_T0)}, {WS_FXCC}
    v_mov_b32 {v(V_T0)}, {s(S_ME)}
    v_mov_b32 {v(V_NONCE)}, {s(S_NONCE)}
    s_mov_b64 exec, 1
    buffer_store_dword {v(V_T0)}, {v(V_ZERO)}, {s(SRD_WS,4)}, {s(S_T0)} offen sc1
    """)
    if g.opts.get("tlb", 0):
        sh = g.opts.get("tlbs", 19)
        g(f"""
        s_mov_b64 exec, {(1 << min(16, (WS_SIZE >> sh) + 1)) - 1}
        v_lshlrev_b32 {v(V_T1)}, {sh}, {v(V_L)}
        v_add_u32 {v(V_T1)}, 64, {v(V_T1)}
        buffer_load_dword {v(254)}, {v(V_T1)}, {s(SRD_WS,4)}, 0 offen
        buffer_load_dword {v(255)}, {v(V_T1)}, {s(SRD_OUT,4)}, 0 offen
        """)
    g(f"""
    s_mov_b64 exec, -1
    s_and_b32 {s(S_TAG)}, {s(S_NONCE)}, 0xff
    s_bfe_u32 {s(S_TAG+1)}, {s(S_NONCE)}, 0x80008
    s_bfe_u32 {s(S_TAG+2)}, {s(S_NONCE)}, 0x80010
    s_lshr_b32 {s(S_TAG+3)}, {s(S_NONCE)}, 24
    """)


def flag_store(g, soff, rep):
    sk = g.label("nofl")
    g(f"""
    s_cmp_lg_u32 {s(S_W)}, 0
    s_cbranch_scc1 {sk}
    v_mul_u32_u24 {v(V_T0)}, {rep}, {v(V_L)}
    s_mov_b64 exec, 0xff
    buffer_store_dword {v(V_NONCE)}, {v(V_T0)}, {s(SRD_WS,4)}, {soff} offen sc1
    s_mov_b64 exec, -1
    {sk}:
    """)


def pa_eval(g):
    g(f"""
    v_and_b32 {v(V_T6)}, -8, {v(V_T7)}
    v_cmp_ne_u32 vcc, {s(S_NONCE)}, {v(V_T6)}
    s_mov_b32 {s(S_F1)}, vcc_lo
    v_cmp_ne_u32 vcc, {s(S_ME)}, {v(V_T7)}
    s_mov_b32 {s(S_SLOW)}, vcc_lo
    """)


def pa_wait(g, reg, name):
    lp, done = g.label(name), g.label(name + "_ok")
    g(f"""
    s_cmp_eq_u32 {s(reg)}, 0
    s_cbranch_scc1 {done}
    s_mov_b32 {s(S_SPIN)}, {SPIN_LIMIT}
    {lp}:
    buffer_load_dword {v(V_T7)}, {v(V_PA)}, {s(SRD_WS,4)}, 0 offen sc1
    s_waitcnt vmcnt(0)
    """)
    pa_eval(g)
    g(f"""
    s_cmp_eq_u32 {s(reg)}, 0
    s_cbranch_scc1 {done}
    s_sub_u32 {s(S_SPIN)}, {s(S_SPIN)}, 1
    s_cbranch_scc0 {lp}
    {done}:
    """)


def both_modes(g, emit):
    ls, le = g.label("slow"), g.label("join")
    g(f"""
    s_cmp_lg_u32 {s(S_SLOW)}, 0
    s_cbranch_scc1 {ls}
    """)
    emit(" sc1" if g.opts.get("allsc1", 0) else (" nt" if g.opts.get("fastnt", 0) else ""))
    g(f"s_branch {le}")
    g(f"{ls}:")
    emit(" sc1")
    g(f"{le}:")


S_WD0, S_WD1 = S_T6, S_T7
S_SPO = S_T4
S_WV, S_WVI = 0, 1
XR = V_MISC
VW = V_MISC + 8
VS = V_MISC + 12
RS = V_MISC + 16
FS = V_MISC + 20
V_XO = V_MISC + 14
S_XO = 26


def wchunk(g):
    g(f"s_mov_b32 m0, {s(S_WD1)}")
    g(f"s_add_u32 {s(S_WD1)}, {s(S_WD1)}, 16384")
    for q in range(4):
        g(f"buffer_load_dwordx4 {v(VW+q)}, {s(SRD_B,4)}, {s(S_WD0)} offen offset:{q*1024} lds")
    g(f"s_add_u32 {s(S_WD0)}, {s(S_WD0)}, {8*18432}")


def wvo_group(g, st, srd=SRD_WS):
    g(f"""
    s_add_u32 m0, {s(S_SIG2)}, {L_WVO + st*16384}
    s_add_u32 {s(S_T1)}, {s(S_WV)}, {st*16384}
    """)
    for q in range(4):
        g(f"buffer_load_dwordx4 {v(V_L16)}, {s(srd,4)}, {s(S_T1)} offen offset:{q*1024} sc1 lds")


SMR = [V_T2, V_T3, V_T4, V_T5]
S_RETRY = 70
NANQ = 220


def sample(dst):
    return f"buffer_load_dword {v(dst)}, {v(V_PS)}, {s(SRD_WS,4)}, 0 offen sc1"


S_CH, S_WSTEP, S_XSTEP, S_SIG2, S_XR = 68, 69, 70, 71, 72
S_X1O, S_FXO, S_STO = 73, 74, 75
A1 = [236, 237, 238]
C1 = [239, 240]
XA = 241


def row_dma(g, srd, vo, so, seg):
    g(f"buffer_load_dwordx4 {v(vo)}, {s(srd,4)}, {s(so)} offen lds")
    g(f"buffer_load_dwordx4 {v(vo+1)}, {s(srd,4)}, {s(so)} offen offset:1024 lds")


def p0_issue(g):
    g(f"""
    s_sub_u32 {s(SRD_A)}, {s(S_X)}, 1024
    s_subb_u32 {s(SRD_A+1)}, {s(S_X+1)}, 0
    s_mov_b32 {s(SRD_A+2)}, {1572864+1024}
    s_sub_u32 {s(SRD_B)}, {s(S_WQT)}, 4096
    s_subb_u32 {s(SRD_B+1)}, {s(S_WQT+1)}, 0
    s_mov_b32 {s(SRD_B+2)}, {884736+4096}
    """)
    g.stamp('x0', False)
    for seg in range(6):
        row_dma(g, SRD_A, V_XO, S_XO, seg)
        if seg < 5:
            g(f"s_add_u32 m0, m0, 2048")
            g(f"s_add_u32 {s(S_XO)}, {s(S_XO)}, 128")
    for _ in range(g.opts.get("c0", 1)):
        wchunk(g)
    g.stamp('dmaiss', False)


def p0_pre(g):
    S_CB = S_CS
    g(f"""
    v_lshrrev_b32 {v(V_T1)}, 3, {v(V_L)}
    v_mul_u32_u24 {v(V_T2)}, 2304, {v(V_T1)}
    v_and_b32 {v(V_T1)}, 2, {v(V_T1)}
    v_and_b32 {v(V_T3)}, 7, {v(V_L)}
    v_xor_b32 {v(V_T3)}, {v(V_T3)}, {v(V_T1)}
    v_lshl_add_u32 {v(V_T2)}, {v(V_T3)}, 4, {v(V_T2)}
    v_add_u32 {v(VW)}, 4096, {v(V_T2)}
    v_xor_b32 {v(V_T3)}, 64, {v(V_T2)}
    v_add_u32 {v(VW+1)}, {4096+18432-1024}, {v(V_T3)}
    v_add_u32 {v(VW+2)}, {4096+768-2048}, {v(V_T2)}
    v_add_u32 {v(VW+3)}, {4096+18432+768-3072}, {v(V_T3)}
    s_mul_i32 {s(S_WD0)}, {s(S_W)}, {2*18432}
    s_lshl_b32 {s(S_T1)}, {s(S_CB)}, 7
    s_add_u32 {s(S_WD0)}, {s(S_WD0)}, {s(S_T1)}
    s_lshl_b32 {s(S_WD1)}, {s(S_W)}, 12
    v_lshrrev_b32 {v(V_T0)}, 3, {v(V_L)}
    v_mul_u32_u24 {v(V_T2)}, 196608, {v(V_T0)}
    v_lshrrev_b32 {v(V_T0)}, 1, {v(V_T0)}
    v_and_b32 {v(V_T1)}, 7, {v(V_L)}
    v_xor_b32 {v(V_T1)}, {v(V_T1)}, {v(V_T0)}
    v_lshl_add_u32 {v(V_T2)}, {v(V_T1)}, 4, {v(V_T2)}
    v_add_u32 {v(V_XO)}, 1024, {v(V_T2)}
    v_xor_b32 {v(V_T2)}, 64, {v(V_T2)}
    v_add_u32 {v(V_XO+1)}, 768, {v(V_T2)}
    s_lshl_b32 {s(S_T0)}, {s(S_RB)}, 2
    s_add_u32 {s(S_T0)}, {s(S_T0)}, {s(S_W)}
    s_mul_i32 {s(S_XO)}, {s(S_T0)}, 1536
    s_lshl_b32 {s(S_SPO)}, {s(S_XO)}, 1
    s_mul_i32 {s(S_XR)}, {s(S_W)}, 12288
    s_add_u32 {s(S_XR)}, {s(S_XR)}, {L_WVO}
    s_mov_b32 m0, {s(S_XR)}
    """)


def p0_main(g):
    ACCQ, ACCK = V_ACC, V_ACC + 16
    SX, SXX = V_ACC + 40, V_ACC + 44
    SEL, NM, DB = V_BUF, V_BUF + 8, V_BUF + 16
    S_CB = S_CS
    common_consts(g)
    g(f"""
    v_lshrrev_b32 {v(V_T0)}, 1, {v(V_G)}
    v_lshlrev_b32 {v(V_T0)}, 12, {v(V_T0)}
    v_and_b32 {v(V_T1)}, 1, {v(V_G)}
    v_lshl_add_u32 {v(V_T0)}, {v(V_T1)}, 10, {v(V_T0)}
    v_lshrrev_b32 {v(V_T2)}, 2, {v(V_I)}
    v_lshl_add_u32 {v(V_T0)}, {v(V_T2)}, 7, {v(V_T0)}
    v_lshrrev_b32 {v(V_T2)}, 3, {v(V_I)}
    v_lshl_or_b32 {v(V_T2)}, {v(V_T1)}, 1, {v(V_T2)}
    v_lshl_add_u32 {v(V_T0)}, {v(V_T2)}, 5, {v(V_T0)}
    v_and_b32 {v(V_T2)}, 3, {v(V_I)}
    v_lshl_add_u32 {v(V_AD)}, {v(V_T2)}, 3, {v(V_T0)}
    v_xor_b32 {v(V_AD+1)}, 32, {v(V_AD)}
    v_xor_b32 {v(V_AD+2)}, 64, {v(V_AD)}
    v_xor_b32 {v(V_AD+3)}, 96, {v(V_AD)}
    v_cmp_eq_u32 s[4:5], 1, {v(V_T2)}
    v_cmp_eq_u32 s[6:7], 2, {v(V_T2)}
    v_cmp_eq_u32 s[8:9], 3, {v(V_T2)}
    v_and_b32 {v(V_T0)}, 7, {v(V_L)}
    v_lshl_add_u32 {v(V_T0)}, {v(V_G)}, 3, {v(V_T0)}
    v_lshlrev_b32 {v(VS)}, 4, {v(V_T0)}
    s_add_u32 {s(S_SPO)}, {s(S_SPO)}, {WS_SP}
    v_lshrrev_b32 {v(V_T0)}, 1, {v(V_I)}
    v_xor_b32 {v(V_T0)}, {v(V_T0)}, {v(V_G)}
    v_lshlrev_b32 {v(V_T0)}, 4, {v(V_T0)}
    v_lshl_add_u32 {v(V_T0)}, {v(V_I)}, 7, {v(V_T0)}
    v_add_u32 {v(V_T2)}, {s(S_XR)}, {v(V_T0)}
    v_xor_b32 {v(V_T3)}, 64, {v(V_T2)}
    s_lshl_b32 {s(S_T1)}, {s(S_CB)}, 11
    v_add_u32 {v(V_T4)}, {s(S_T1)}, {v(V_T2)}
    v_add_u32 {v(V_T5)}, {s(S_T1)}, {v(V_T3)}
    s_lshl_b32 {s(S_SIG2)}, {s(S_W)}, 12
    s_mul_i32 {s(S_WV)}, {s(S_CB)}, 49152
    s_add_u32 {s(S_WV)}, {s(S_WV)}, {s(S_SIG2)}
    s_add_u32 {s(S_WV)}, {s(S_WV)}, {WS_WVOT}
    s_lshl_b32 {s(S_T1)}, {s(S_CB)}, 9
    s_add_u32 {s(S_CH)}, {s(S_SPO)}, {s(S_T1)}
    """)
    g(f"""
    v_and_b32 {v(V_T0)}, 1, {v(V_I)}
    v_lshlrev_b32 {v(V_T0)}, 4, {v(V_T0)}
    v_mov_b32 {v(V_T1)}, 0x3f80
    v_lshlrev_b32 {v(V_T0)}, {v(V_T0)}, {v(V_T1)}
    v_cndmask_b32 {v(V_T0)}, 0, {v(V_T0)}, {s(S_DIAG,2)}
    v_and_b32 {v(V_T1)}, 2, {v(V_I)}
    v_cmp_eq_u32 vcc, 0, {v(V_T1)}
    v_mov_b32 {v(SEL+2)}, 0
    v_mov_b32 {v(SEL+3)}, 0
    v_cndmask_b32 {v(SEL)}, 0, {v(V_T0)}, vcc
    v_cndmask_b32 {v(SEL+1)}, {v(V_T0)}, 0, vcc
    v_mov_b32 {v(SEL+4)}, 0
    v_mov_b32 {v(SEL+5)}, 0
    v_mov_b32 {v(SEL+6)}, {v(SEL)}
    v_mov_b32 {v(SEL+7)}, {v(SEL+1)}
    """)
    p1_setup(g)
    for q in range(4):
        g(f"v_mov_b32 {v(NANQ+q)}, -1")
    C0, C1_ = g.opts.get("c0", 1), g.opts.get("c1", 2)
    order = [f"x{k//2}" for k in range(12)] + [f"A{j}" for j in range(C0) for _ in range(4)]
    for j in range(C0, C1_):
        wchunk(g)
        order += [f"A{j}"] * 4
    nonce_and_publish(g)
    order += ["t"] * (1 + 2 * g.opts.get("tlb", 0))
    pend = []
    ptag = []

    def queue(fn, tag, n):
        pend.extend(capture(g, fn))
        ptag.extend([tag] * n)

    def pop_vm():
        out = []
        while pend:
            x = pend.pop(0)
            out.append(x)
            if x.startswith("buffer") or x.startswith("global"):
                order.append(ptag.pop(0))
                if any(y.startswith("buffer") or y.startswith("global") for y in pend):
                    break
        return out

    def need(tag):
        last = len(order) - 1 - order[::-1].index(tag)
        return f"s_waitcnt vmcnt({len(order) - 1 - last})"
    def mtouch():
        g(f"""
        s_mov_b64 exec, 0xffffff
        global_load_dword {v(V_MISC+62)}, {v(V_MT)}, s[16:17]
        s_mov_b64 exec, -1
        """)
    if g.opts.get("mt", 0) == 1:
        mtouch()
        order.append("m")
    NQ = C1_ + 3
    PAJ = g.opts.get("paj", 4)

    def qchunk(j):
        queue(lambda: wchunk(g), f"A{j}", 4)
    for j in range(C1_, min(NQ, 6)):
        qchunk(j)
    items = []
    for ks in range(12):
        xf = v(V_XF + 4 * ks, 4)
        pre = []
        if ks % 4 == 0:
            pre = [need(f"x{ks//2+1}")] + (capture(g, lambda: g.stamp('xarr0', False)) if ks == 0 else [])
        if ks % 4 == 2:
            pre += pop_vm()
        rd = [f"ds_read_b128 {xf}, {v(V_T2+(ks&1))} offset:{(ks>>1)*2048}"]
        if ks == 11:
            rd += [f"ds_read_b128 {v(XR,4)}, {v(V_T4)}", f"ds_read_b128 {v(XR+4,4)}, {v(V_T5)}"]
        cm = capture(g, lambda: (mfma32(g, v(SXX, 4), xf, xf, "0" if ks == 0 else None),
                                 mfma32(g, v(SX, 4), v(V_ONES, 4), xf, "0" if ks == 0 else None)))
        items.append((rd, cm, pre))
    pipelined(g, items, 6)
    g.stamp('xarr', False)
    g.nop(8)
    g(f"""
    v_mul_f32 {v(NM)}, {f2u(-1/384.):#x}, {v(SX)}
    v_mul_f32 {v(NM+1)}, {f2u(-1/384.):#x}, {v(SX)}
    v_mul_f32 {v(NM+2)}, {f2u(-1/384.):#x}, {v(SX)}
    v_mul_f32 {v(NM+3)}, {f2u(-1/384.):#x}, {v(SX)}
    v_cndmask_b32 {v(SXX)}, {v(SXX)}, {v(SXX+1)}, s[4:5]
    v_cndmask_b32 {v(SXX)}, {v(SXX)}, {v(SXX+2)}, s[6:7]
    """)
    fin = capture(g, lambda: (g(f"v_cndmask_b32 {v(SXX)}, {v(SXX)}, {v(SXX+3)}, s[8:9]"),
                              g(f"v_cndmask_b32 {v(SXX)}, 0, {v(SXX)}, {s(S_DIAG,2)}"),
                              xlane_sum(g, SXX, V_T0), mean_rstd(g, SX, SXX, V_MEAN, V_R)))
    LAG = 2
    for ks in range(12 + LAG):
        if ks < 12:
            d = DB + (ks % 4) * 8
            mfma32(g, v(d, 4), v(SEL, 4), v(V_XF + 4 * ks, 4), v(NM, 4))
            mfma32(g, v(d + 4, 4), v(SEL + 4, 4), v(V_XF + 4 * ks, 4), v(NM, 4))
        if ks < LAG or ks >= 12:
            for x in fin[:9]:
                g(x)
            if ks >= 12 and not fin:
                g.nop(2)
            fin = fin[9:]
        if ks >= LAG:
            d = DB + ((ks - LAG) % 4) * 8
            for q in range(4):
                g(f"v_cvt_pk_bf16_f32 {v(V_XF+4*(ks-LAG)+q)}, {v(d+2*q)}, {v(d+2*q+1)}")
        if ks % 2 == 1:
            for x in pop_vm():
                g(x)
    assert not fin
    g.stamp('cent', False)
    if g.opts.get("mt", 0) == 2:
        mtouch()
        order.append("m")

    for j in range(NQ, 6):
        qchunk(j)
    def mark():
        for so in (S_X1O, S_WSTEP):
            g(f"buffer_store_dwordx4 {v(NANQ,4)}, {v(XA)}, {s(SRD_WS,4)}, {s(so)} offen sc1")
    queue(mark, "c", 2)
    MT = g.opts.get("mt", 0)
    if MT == 3:
        queue(mtouch, "m", 1)
    SMP = [g.opts.get("s0", 70), g.opts.get("s1", 82), g.opts.get("s2", 94)]
    items = []
    nb = 0
    for j in range(6):
        for n, (kk, mat, sl) in enumerate([(kk, mat, sl) for kk in range(2) for mat in range(2) for sl in range(4)]):
            ks = 2 * j + kk
            b = V_BUF + (nb % 16) * 4
            nb += 1
            off = (ks % 6) * 8192 + mat * 2048
            rd = [f"ds_read_b64_tr_b16 {v(b,2)}, {v(V_AD+sl)} offset:{off}",
                  f"ds_read_b64_tr_b16 {v(b+2,2)}, {v(V_AD+sl)} offset:{off+512}"]
            acc = (ACCQ if mat == 0 else ACCK) + 4 * sl
            cm = [f"v_mfma_f32_16x16x32_bf16 {v(acc,4)}, {v(b,4)}, {v(V_XF+4*ks,4)}, {'0' if ks == 0 else v(acc,4)}"]
            pre = []
            if n == 0:
                pre += [need(f"A{j}"), "s_barrier"]
                pre += capture(g, lambda: g.stamp(f'chunk{j}', False))
                if j == 3:
                    pre += [f"v_add_u32 {v(V_AD+q)}, 49152, {v(V_AD+q)}" for q in range(4)]
                if j == g.opts.get("pj", 2):
                    pre.append(f"buffer_load_dword {v(V_T7)}, {v(V_PA)}, {s(SRD_WS,4)}, 0 offen sc1")
                    order.append("p")
            if 16 * j + n == g.opts.get("s0", 86):
                assert not pend
                pre += ["s_waitcnt vmcnt(0)", sample(V_T5)] + capture(g, lambda: pa_eval(g))
            if n % 3 == 1:
                x = pop_vm()
                pre += x
            items.append([rd, cm, pre])
    assert not pend
    QF, KF = V_ACC + 32, V_ACC + 40
    pipelined(g, items, 14, group=1)
    for i in range(8):
        g(f"v_cvt_pk_bf16_f32 {v(QF+i)}, {v(ACCQ+2*i)}, {v(ACCQ+2*i+1)}")
    for i in range(8):
        g(f"v_cvt_pk_bf16_f32 {v(KF+i)}, {v(ACCK+2*i)}, {v(ACCK+2*i+1)}")
    SS = V_BUF + 32
    g.nop(1)
    mfma32(g, v(SS, 4), v(KF, 4), v(QF, 4), "0")
    mfma32(g, v(SS, 4), v(KF + 4, 4), v(QF + 4, 4))
    pa_wait(g, S_F1, "xcc")
    g.nop(6)
    for r in range(4):
        g(f"v_bfi_b32 {v(SS+r)}, {v(V_MASK)}, {v(SS+r)}, {s(S_TAG+r)}")
    g(f"s_mov_b64 exec, {s(S_VALID,2)}")
    both_modes(g, lambda sc: g(f"buffer_store_dwordx4 {v(SS,4)}, {v(VS)}, {s(SRD_WS,4)}, {s(S_CH)} offen{sc}"))
    g("s_mov_b64 exec, -1")
    g.stamp('sstored')


CSL = V_BUF


def kpos(g, q, scale, base):
    g(f"""
    s_add_u32 {s(S_T1)}, {s(S_RHO)}, {q}
    s_cmp_ge_u32 {s(S_T1)}, 12
    s_cselect_b32 {s(S_T2)}, 12, 0
    s_sub_u32 {s(S_T1)}, {s(S_T1)}, {s(S_T2)}
    s_mul_i32 {s(S_T1)}, {s(S_T1)}, {scale}
    s_add_u32 m0, {s(S_T1)}, {base}
    """)


def ws2_dma(g):
    for c in range(3):
        g(f"buffer_load_dwordx2 {v(CSL+4*c,2)}, {v(V_L8)}, {s(SRD_WS,4)}, {s(S_CP0 if c < 2 else S_CP1)} offen offset:{c*512} sc1")
    for q in range(3):
        kpos(g, q, 3072, 0)
        g(f"s_add_u32 {s(S_T1)}, {s(S_WD0)}, {q*6144}")
        g(f"s_add_u32 {s(S_T2)}, {s(S_WD1)}, {q*6144}")
        g(f"buffer_load_dwordx4 {v(V_L16)}, {s(SRD_WS,4)}, {s(S_T1)} offen sc1 lds")
        g(f"buffer_load_dwordx4 {v(V_L16)}, {s(SRD_WS,4)}, {s(S_T1)} offen offset:1024 sc1 lds")
        g(f"buffer_load_dwordx4 {v(V_L16)}, {s(SRD_WS,4)}, {s(S_T2)} offen offset:2048 sc1 lds")


def p1_setup(g):
    S_CB = S_CS
    g(f"""
    v_add_u32 {v(A1[0])}, {L_WVO}, {v(V_L16)}
    v_lshlrev_b32 {v(V_T0)}, 3, {v(V_I)}
    s_lshl_b32 {s(S_T0)}, {s(S_W)}, 7
    s_add_u32 {s(S_T0)}, {s(S_T0)}, {L_SG}
    v_add_u32 {v(A1[2])}, {s(S_T0)}, {v(V_T0)}
    v_and_b32 {v(V_T0)}, 7, {v(V_I)}
    v_lshrrev_b32 {v(V_T1)}, 3, {v(V_I)}
    v_lshl_add_u32 {v(V_T1)}, {v(V_G)}, 3, {v(V_T1)}
    s_lshl_b32 {s(S_T1)}, {s(S_W)}, 1
    v_add_u32 {v(V_T1)}, {s(S_T1)}, {v(V_T1)}
    v_xor_b32 {v(V_T1)}, {v(V_T1)}, {v(V_T0)}
    v_lshlrev_b32 {v(V_T1)}, 4, {v(V_T1)}
    v_lshl_add_u32 {v(V_T1)}, {v(V_T0)}, 10, {v(V_T1)}
    v_add_u32 {v(A1[1])}, {L_T}, {v(V_T1)}
    v_xor_b32 {v(V_T0)}, {s(S_T1)}, {v(V_L)}
    v_lshlrev_b32 {v(V_T0)}, 4, {v(V_T0)}
    s_lshl_b32 {s(S_T2)}, {s(S_W)}, 11
    s_add_u32 {s(S_T2)}, {s(S_T2)}, {L_T}
    v_add_u32 {v(C1[0])}, {s(S_T2)}, {v(V_T0)}
    v_xor_b32 {v(C1[1])}, 16, {v(C1[0])}
    v_lshrrev_b32 {v(V_T0)}, 3, {v(V_L)}
    v_lshlrev_b32 {v(V_T0)}, 8, {v(V_T0)}
    v_and_b32 {v(V_T1)}, 7, {v(V_L)}
    v_lshl_add_u32 {v(XA)}, {v(V_T1)}, 4, {v(V_T0)}
    s_mul_i32 {s(S_X1O)}, {s(S_W)}, {2*196608}
    s_lshr_b32 {s(S_T1)}, {s(S_RB)}, 1
    s_mul_i32 {s(S_T1)}, {s(S_T1)}, 12288
    s_add_u32 {s(S_X1O)}, {s(S_X1O)}, {s(S_T1)}
    s_and_b32 {s(S_T1)}, {s(S_RB)}, 1
    s_lshl_b32 {s(S_T1)}, {s(S_T1)}, 7
    s_add_u32 {s(S_X1O)}, {s(S_X1O)}, {s(S_T1)}
    s_lshl_b32 {s(S_T1)}, {s(S_CB)}, 11
    s_add_u32 {s(S_X1O)}, {s(S_X1O)}, {s(S_T1)}
    s_add_u32 {s(S_X1O)}, {s(S_X1O)}, {WS_X1}
    s_add_u32 {s(S_WSTEP)}, {s(S_X1O)}, 196608
    s_mul_i32 {s(S_FXO)}, {s(S_RB)}, 6
    s_add_u32 {s(S_FXO)}, {s(S_FXO)}, {s(S_CB)}
    s_lshl_b32 {s(S_T1)}, {s(S_FXO)}, 2
    s_lshl_b32 {s(S_FXO)}, {s(S_FXO)}, 7
    s_add_u32 {s(S_STO)}, {s(S_FXO)}, {WS_STX}
    v_and_b32 {v(V_T0)}, 7, {v(V_L)}
    v_mul_u32_u24 {v(V_T0)}, {6*32*128}, {v(V_T0)}
    v_and_b32 {v(V_T1)}, -8, {v(V_L)}
    v_add_u32 {v(XA+1)}, {v(V_T0)}, {v(V_T1)}
    v_lshlrev_b32 {v(XA+2)}, 3, {v(V_L)}
    v_add_u32 {v(XA+2)}, {L_SG}, {v(XA+2)}
    """)


V_MT = 245


def p1(g):
    Z = V_ACC
    CS = V_ACC + 16
    XC = V_ACC + 20

    def shadow():
        g(f"v_lshlrev_b32 {v(V_T0)}, 4, {v(V_G)}")
        for e in range(4):
            g(f"ds_bpermute_b32 {v(RS+e)}, {v(V_T0)}, {v(V_R)} offset:{4*e}")
        for m in range(2):
            for par in range(2):
                for r in range(4):
                    src = XR + 4 * m + 2 * par + (r >> 1)
                    d = XC + (2 * m + par) * 4 + r
                    if r & 1:
                        g(f"v_and_b32 {v(d)}, 0xffff0000, {v(src)}")
                    else:
                        g(f"v_lshlrev_b32 {v(d)}, 16, {v(src)}")
        g(f"v_mul_f32 {v(V_T1)}, {f2u(SCALE_LOG2E):#x}, {v(V_R)}")
        g("s_waitcnt lgkmcnt(0)")
        for e in range(4):
            g(f"v_mul_f32 {v(FS+e)}, {v(V_T1)}, {v(RS+e)}")
        p2_setup(g)
    AOP = VW
    SPR = [V_ACC + 36, V_ACC + 40, V_ACC + 44, 220, 224, 248]

    def sloads():
        for c in range(6):
            g(f"buffer_load_dwordx4 {v(SPR[c],4)}, {v(VS)}, {s(SRD_WS,4)}, {s(S_SPO)} offen offset:{c*512} sc1")

    def scheck():
        for c in range(6):
            for r in range(4):
                g(f"v_xor_b32 {v(SPR[c]+r)}, {s(S_TAG+r)}, {v(SPR[c]+r)}")
            if c == 0:
                g(f"v_or_b32 {v(V_T2)}, {v(SPR[0])}, {v(SPR[0]+1)}")
            else:
                g(f"v_or3_b32 {v(V_T2)}, {v(V_T2)}, {v(SPR[c])}, {v(SPR[c]+1)}")
            g(f"v_or3_b32 {v(V_T2)}, {v(V_T2)}, {v(SPR[c]+2)}, {v(SPR[c]+3)}")
        g(f"v_and_b32 {v(V_T2)}, 0xff, {v(V_T2)}")

    def softmax(pk):
        T = SPR[5]
        if pk:
            for c in (1, 3, 5):
                for h in range(2):
                    g(f"v_pk_add_f32 {v(SPR[c]+2*h,2)}, {v(SPR[c]+2*h,2)}, {v(SPR[c-1]+2*h,2)}")
            for c in (3, 5):
                for h in range(2):
                    g(f"v_pk_add_f32 {v(SPR[c]+2*h,2)}, {v(SPR[c]+2*h,2)}, {v(SPR[c-2]+2*h,2)}")
        else:
            for c in (1, 3, 5):
                for r in range(4):
                    g(f"v_add_f32 {v(SPR[c]+r)}, {v(SPR[c]+r)}, {v(SPR[c-1]+r)}")
            for c in (3, 5):
                for r in range(4):
                    g(f"v_add_f32 {v(SPR[c]+r)}, {v(SPR[c]+r)}, {v(SPR[c-2]+r)}")
        for r in range(4):
            g(f"v_mul_f32 {v(T+r)}, {v(T+r)}, {v(FS+r)}")
        g(f"""
        v_max3_f32 {v(V_T0)}, {v(T)}, {v(T+1)}, {v(T+2)}
        v_max_f32 {v(V_T0)}, {v(V_T0)}, {v(T+3)}
        v_mov_b32 {v(V_T1)}, {v(V_T0)}
        s_nop 1
        v_permlane16_swap_b32 {v(V_T0)}, {v(V_T1)}
        s_nop 0
        v_max_f32 {v(V_T0)}, {v(V_T0)}, {v(V_T1)}
        """)
        for r in range(4):
            g(f"v_sub_f32 {v(T+r)}, {v(T+r)}, {v(V_T0)}")
        for r in range(4):
            g(f"v_exp_f32 {v(T+r)}, {v(T+r)}")
        g(f"""
        s_nop 0
        v_add_f32 {v(V_T0)}, {v(T)}, {v(T+1)}
        v_add_f32 {v(V_T1)}, {v(T+2)}, {v(T+3)}
        v_add_f32 {v(V_T0)}, {v(V_T0)}, {v(V_T1)}
        v_mov_b32 {v(V_T1)}, {v(V_T0)}
        v_mul_f32 {v(T)}, {v(T)}, {v(RS)}
        v_mul_f32 {v(T+1)}, {v(T+1)}, {v(RS+1)}
        v_permlane16_swap_b32 {v(V_T0)}, {v(V_T1)}
        v_mul_f32 {v(T+2)}, {v(T+2)}, {v(RS+2)}
        v_add_f32 {v(V_T0)}, {v(V_T0)}, {v(V_T1)}
        v_rcp_f32 {v(V_T0)}, {v(V_T0)}
        v_mul_f32 {v(T+3)}, {v(T+3)}, {v(RS+3)}
        v_cndmask_b32 {v(V_T0)}, 0, {v(V_T0)}, {s(S_VALID,2)}
        """)
        for r in range(4):
            g(f"v_mul_f32 {v(T+r)}, {v(T+r)}, {v(V_T0)}")
        g(f"""
        v_cvt_pk_bf16_f32 {v(AOP)}, {v(T)}, {v(T+1)}
        v_cvt_pk_bf16_f32 {v(AOP+1)}, {v(T+2)}, {v(T+3)}
        """)
    g(f"""
    s_waitcnt vmcnt(1)
    v_cmp_ne_u32 vcc, {s(S_NONCE)}, {v(V_T5)}
    s_cbranch_vccz L_wvo_go
    """)
    sh = capture(g, shadow)
    SPL = g.opts.get("spl", 40)
    for x in sh[:SPL]:
        g(x)
    g(sample(V_T5))
    for x in sh[SPL:]:
        g(x)
    sloads()
    g(f"""
    s_waitcnt vmcnt(6)
    v_cmp_ne_u32 vcc, {s(S_NONCE)}, {v(V_T5)}
    s_cbranch_vccz L_wvo_l2
    """)
    poll(g, V_PS, "0", s(S_NONCE), "wvo", g.opts.get("slp", 4))
    g("L_wvo_l2:")
    g.stamp('wlate')
    for st in range(3):
        wvo_group(g, st)
    g("s_waitcnt vmcnt(12)")
    scheck()
    g(f"""
    v_cmp_ne_u32 vcc, 0, {v(V_T2)}
    s_or_b32 {s(S_WVI)}, vcc_lo, vcc_hi
    s_cbranch_scc1 L_wvo_on
    """)
    softmax(True)
    g("s_branch L_wvo_on")
    g("L_wvo_go:")
    for st in range(3):
        wvo_group(g, st)
    shadow()
    g(f"s_mov_b32 {s(S_WVI)}, 1")
    g("L_wvo_on:")
    late = capture(g, sloads)
    nl = 0
    g.stamp('wvoflag')
    fill = ["s_waitcnt vmcnt(0)"] + capture(g, lambda: (scheck(), softmax(g.opts.get('sfill', 48) >= 48)))
    items = []
    for ks in range(12):
        for c in range(4):
            n = ks * 4 + c
            b = V_BUF + (n % 16) * 4
            rd = [f"ds_read_b128 {v(b,4)}, {v(A1[0])} offset:{ks*4096+c*1024}"]
            cc = "0" if ks == 0 else v(Z + 4 * c, 4)
            cm = [f"v_mfma_f32_16x16x32_bf16 {v(Z+4*c,4)}, {v(V_XF+4*ks,4)}, {v(b,4)}, {cc}"]
            pre = []
            if ks % 4 == 0 and c == 0:
                pre = [f"s_waitcnt vmcnt({8-ks+nl})", "s_barrier"] + capture(g, lambda: g.stamp(f'wvo{ks//4}', False))
            if late and n % 2 == 1 and n >= g.opts.get("sl0", 1):
                pre.append(late.pop(0))
                nl += 1
            if n >= g.opts.get("sfill", 48):
                cm += fill[:2]
                fill = fill[2:]
            items.append((rd, cm, pre))
    pipelined(g, items, 10, group=1)
    ZB = V_BUF + 8
    g(f"""
    s_mov_b64 vcc, 0
    s_cmp_eq_u32 {s(S_WVI)}, 0
    s_cbranch_scc1 L_s_have
    """)
    for x in fill:
        g(x)
    g(f"""
    v_cmp_ne_u32 vcc, 0, {v(V_T2)}
    L_s_have:
    s_nop 1
    """)
    for c in range(4):
        g(f"v_cvt_pk_bf16_f32 {v(ZB+2*c)}, {v(Z+4*c)}, {v(Z+4*c+1)}")
        g(f"v_cvt_pk_bf16_f32 {v(ZB+2*c+1)}, {v(Z+4*c+2)}, {v(Z+4*c+3)}")
    g.stamp('zdone')
    g(f"""
    s_cbranch_vccz L_sok
    s_mov_b32 {s(S_SPIN)}, {SPIN_LIMIT}
    L_spoll:
    """)
    sloads()
    g("s_waitcnt vmcnt(0)")
    scheck()
    g(f"""
    v_cmp_ne_u32 vcc, 0, {v(V_T2)}
    s_cbranch_vccz L_sre
    s_sub_u32 {s(S_SPIN)}, {s(S_SPIN)}, 1
    s_cbranch_scc0 L_spoll
    L_sre:
    """)
    softmax(True)
    g.nop(2)
    g("L_sok:")
    g.stamp('sok')
    g(f"buffer_load_dword {v(V_T7)}, {v(V_PB)}, {s(SRD_WS,4)}, 0 offen sc1")
    for c in range(4):
        mfma16(g, v(XC + 4 * c, 4), v(ZB + 2 * c, 2), v(AOP, 2))
    g.nop(5)
    OB = V_BUF + 48
    for m in range(2):
        for i in range(4):
            g(f"v_cvt_pk_bf16_f32 {v(OB+4*m+i)}, {v(XC+8*m+2*i)}, {v(XC+8*m+2*i+1)}")
        g(f"ds_write_b128 {v(A1[1])}, {v(OB+4*m,4)} offset:{m*512}")
    S1, S2 = Z, Z + 4
    mfma32(g, v(S2, 4), v(OB, 4), v(OB, 4), "0")
    mfma32(g, v(S1, 4), v(V_ONES, 4), v(OB, 4), "0")
    mfma32(g, v(S2, 4), v(OB + 4, 4), v(OB + 4, 4))
    mfma32(g, v(S1, 4), v(V_ONES, 4), v(OB + 4, 4))
    g.nop(7)
    g(f"""
    v_cndmask_b32 {v(S2)}, {v(S2)}, {v(S2+1)}, s[4:5]
    v_cndmask_b32 {v(S2)}, {v(S2)}, {v(S2+2)}, s[6:7]
    v_cndmask_b32 {v(S1+1)}, {v(S2)}, {v(S2+3)}, s[8:9]
    s_mov_b64 exec, {s(S_DIAG,2)}
    ds_write_b64 {v(A1[2])}, {v(S1,2)}
    s_mov_b64 exec, -1
    s_waitcnt lgkmcnt(0)
    s_barrier
    ds_read_b128 {v(OB,4)}, {v(C1[0])}
    ds_read_b128 {v(OB+4,4)}, {v(C1[1])} offset:1024
    ds_read_b64 {v(V_T0,2)}, {v(XA+2)}
    """)
    if g.opts.get("dbgearly", 0) & 4:
        g(f"""
        s_waitcnt lgkmcnt(0)
        v_bfi_b32 {v(V_T2)}, {v(V_MASK)}, {v(V_T0)}, {s(S_TAG)}
        v_bfi_b32 {v(V_T3)}, {v(V_MASK)}, {v(V_T1)}, {s(S_TAG+1)}
        buffer_store_dwordx2 {v(V_T2,2)}, {v(XA+1)}, {s(SRD_WS,4)}, {s(S_STO)} offen sc1
        s_and_b32 {s(S_T0)}, {s(S_RB)}, 3
        s_cmp_eq_u32 {s(S_T0)}, 1
        s_cbranch_scc0 L_dbg1
        s_sleep 127
        L_dbg1:
        s_waitcnt vmcnt(0)
        buffer_load_dword {v(V_T7)}, {v(V_PB)}, {s(SRD_WS,4)}, 0 offen sc1
        """)
    g(f"""
    s_waitcnt lgkmcnt(2)
    buffer_store_dwordx4 {v(OB,4)}, {v(XA)}, {s(SRD_WS,4)}, {s(S_X1O)} offen sc1
    s_waitcnt lgkmcnt(1)
    buffer_store_dwordx4 {v(OB+4,4)}, {v(XA)}, {s(SRD_WS,4)}, {s(S_WSTEP)} offen sc1
    s_cmp_lg_u32 {s(S_W)}, 0
    s_cbranch_scc1 L_nostx
    s_waitcnt lgkmcnt(0)
    v_bfi_b32 {v(V_T0)}, {v(V_MASK)}, {v(V_T0)}, {s(S_TAG)}
    v_bfi_b32 {v(V_T1)}, {v(V_MASK)}, {v(V_T1)}, {s(S_TAG+1)}
    buffer_store_dwordx2 {v(V_T0,2)}, {v(XA+1)}, {s(SRD_WS,4)}, {s(S_STO)} offen sc1
    """)
    g.stamp('x1st')
    g(f"""
    s_waitcnt vmcnt(3)
    s_branch L_stx2
    L_nostx:
    s_waitcnt vmcnt(2)
    L_stx2:
    v_cmp_ne_u32 vcc, {s(S_NONCE)}, {v(V_T7)}
    s_cbranch_vccz L_p2
    """)
    poll(g, V_PB, "0", s(S_NONCE), "pws", g.opts.get("slp", 4))
    g.stamp('late')


S_TILE, S_PROD, S_KB, S_NB = S_T4, S_T5, S_T6, S_T7
S_PA, S_PB, S_PS = S_F2, S_SLOW, 26
S_PO0, S_PO1, S_PF = 16, 17, 25
V_PAO = V_MISC + 14
S_PU, S_PW = 69, 70
S_PM = 68
L_PA = 49152


def prod_pre(g):
    g(f"""
    s_lshl_b32 {s(S_T0)}, {s(S_RQ)}, 1
    s_add_u32 {s(S_T0)}, {s(S_T0)}, {s(S_CS)}
    s_sub_u32 {s(S_T0)}, {s(S_T0)}, 6
    s_mul_i32 {s(S_TILE)}, {s(S_G8)}, 5
    s_add_u32 {s(S_TILE)}, {s(S_TILE)}, {s(S_T0)}
    s_sub_u32 {s(S_TILE)}, {s(S_TILE)}, 3
    s_cmp_ge_u32 {s(S_TILE)}, 36
    s_cselect_b32 {s(S_TILE)}, 60, {s(S_TILE)}
    s_mul_i32 {s(S_T1)}, {s(S_G8)}, 3
    s_add_u32 {s(S_T1)}, {s(S_T1)}, {s(S_T0)}
    s_add_u32 {s(S_T1)}, {s(S_T1)}, 36
    s_cmp_lt_u32 {s(S_T0)}, 3
    s_cselect_b32 {s(S_TILE)}, {s(S_T1)}, {s(S_TILE)}
    s_mul_hi_u32 {s(S_KB)}, {s(S_TILE)}, {(2**32 + 5)//6}
    s_mul_i32 {s(S_T0)}, {s(S_KB)}, 6
    s_sub_u32 {s(S_NB)}, {s(S_TILE)}, {s(S_T0)}
    s_sub_u32 {s(S_T0)}, {s(S_KB)}, 4
    s_lshr_b32 {s(S_PROD)}, {s(S_T0)}, 1
    s_and_b32 {s(S_T0)}, {s(S_KB)}, 1
    s_mul_i32 {s(S_T0)}, {s(S_T0)}, 3
    s_cmp_lt_u32 {s(S_TILE)}, 36
    s_cselect_b32 {s(S_PROD)}, 0, {s(S_PROD)}
    s_cselect_b32 {s(S_KB)}, {s(S_KB)}, {s(S_T0)}
    s_lshl_b32 {s(S_PA)}, {s(S_KB)}, 2
    s_add_u32 {s(S_PA)}, {s(S_PA)}, {s(S_W)}
    s_mul_i32 {s(S_PA)}, {s(S_PA)}, {16*2304}
    s_lshl_b32 {s(S_T1)}, {s(S_NB)}, 2
    s_add_u32 {s(S_T1)}, {s(S_T1)}, {s(S_W)}
    s_mul_i32 {s(S_T1)}, {s(S_T1)}, {16*2304}
    s_add_u32 {s(S_T1)}, {s(S_T1)}, 768
    s_mul_i32 {s(S_T2)}, {s(S_W)}, {2*6144}
    s_lshl_b32 {s(S_T3)}, {s(S_NB)}, 7
    s_add_u32 {s(S_T2)}, {s(S_T2)}, {s(S_T3)}
    s_mov_b32 {s(S_T3)}, {8*6144}
    s_cmp_eq_u32 {s(S_PROD)}, 1
    s_cselect_b32 {s(S_PB)}, {s(S_T1)}, {s(S_T2)}
    s_cselect_b32 {s(S_PS)}, 128, {s(S_T3)}
    s_cselect_b32 {s(S_T0)}, 0, 1536
    s_cselect_b32 {s(S_T1)}, 1, 0
    s_cselect_b32 {s(S_T2)}, 7, 2
    s_movk_i32 {s(S_T3)}, 768
    s_cselect_b32 {s(S_T3)}, 2304, {s(S_T3)}
    s_add_u32 {s(S_PA)}, {s(S_PA)}, {s(S_T0)}
    v_lshrrev_b32 {v(V_T1)}, 3, {v(V_L)}
    v_mul_u32_u24 {v(V_T2)}, {s(S_T3)}, {v(V_T1)}
    v_lshrrev_b32 {v(V_T1)}, {s(S_T1)}, {v(V_T1)}
    v_and_b32 {v(V_T1)}, {s(S_T2)}, {v(V_T1)}
    v_and_b32 {v(V_T3)}, 7, {v(V_L)}
    v_xor_b32 {v(V_T3)}, {v(V_T3)}, {v(V_T1)}
    v_lshl_add_u32 {v(VW)}, {v(V_T3)}, 4, {v(V_T2)}
    v_xor_b32 {v(V_T3)}, 64, {v(VW)}
    s_lshl_b32 {s(S_T3)}, {s(S_T3)}, 3
    s_sub_u32 {s(S_T3)}, {s(S_T3)}, 1024
    v_add_u32 {v(VW+1)}, {s(S_T3)}, {v(V_T3)}
    v_lshrrev_b32 {v(V_T1)}, 3, {v(V_L)}
    v_mul_u32_u24 {v(V_T2)}, 2304, {v(V_T1)}
    v_lshrrev_b32 {v(V_T1)}, 1, {v(V_T1)}
    v_and_b32 {v(V_T3)}, 7, {v(V_L)}
    v_xor_b32 {v(V_T3)}, {v(V_T3)}, {v(V_T1)}
    v_lshl_add_u32 {v(V_PAO)}, {v(V_T3)}, 4, {v(V_T2)}
    v_xor_b32 {v(V_T3)}, 64, {v(V_PAO)}
    v_add_u32 {v(V_PAO+1)}, {18432-1024}, {v(V_T3)}
    s_lshl_b32 {s(S_PM)}, {s(S_W)}, 11
    """)


def aslot(j, t, nt):
    return L_PA + ((j % 4) * 3 + t) * 8192 if nt == 3 else L_PA + j * 8192


def prod_unit(g, j, nt):
    g(f"s_add_u32 m0, {s(S_PM)}, {j*8192}")
    g(f"s_add_u32 {s(S_T0)}, {s(S_PA)}, {j*128}")
    g(f"buffer_load_dwordx4 {v(VW)}, {s(SRD_B,4)}, {s(S_PB)} offen lds")
    g(f"buffer_load_dwordx4 {v(VW+1)}, {s(SRD_B,4)}, {s(S_PB)} offen offset:1024 lds")
    for t in range(nt):
        g(f"s_add_u32 m0, {s(S_PM)}, {aslot(j, t, nt)}")
        g(f"s_add_u32 {s(S_PB)}, {s(S_PB)}, {s(S_PS)}" if t == 0 else f"s_add_u32 {s(S_T0)}, {s(S_T0)}, {64*2304}")
        row_dma(g, SRD_A, V_PAO, S_T0, j)


def products(g):
    g(f"""
    L_products:
    """)
    prod_pre(g)
    g(f"""
    s_waitcnt lgkmcnt(0)
    s_load_dword {s(S_NONCE)}, {s(S_WS,2)}, {WS_NONCE}
    s_cmp_eq_u32 {s(S_PROD)}, 0
    s_cselect_b32 {s(SRD_A)}, {s(S_WQT)}, {s(S_WQS)}
    s_cselect_b32 {s(SRD_A+1)}, {s(S_WQT+1)}, {s(S_WQS+1)}
    s_cselect_b32 {s(SRD_B)}, {s(S_WOT)}, {s(S_WOS)}
    s_cselect_b32 {s(SRD_B+1)}, {s(S_WOT+1)}, {s(S_WOS+1)}
    s_mov_b32 {s(SRD_A+2)}, 884736
    s_cmp_eq_u32 {s(S_PROD)}, 1
    s_cselect_b32 {s(SRD_B)}, {s(S_WQS)}, {s(SRD_B)}
    s_cselect_b32 {s(SRD_B+1)}, {s(S_WQS+1)}, {s(SRD_B+1)}
    s_cselect_b32 {s(SRD_B+2)}, {s(SRD_A+2)}, 294912
    s_cmp_ge_u32 {s(S_TILE)}, 36
    s_cbranch_scc1 L_prod3
    """)
    g.stamp('x0', False)
    for j in range(3):
        prod_unit(g, j, 1)
    g(f"""
    s_branch L_prod_body
    L_prod3:
    s_cmp_ge_u32 {s(S_TILE)}, 60
    s_cbranch_scc1 L_prod_idle
    """)
    prod_unit(g, 0, 3)
    g("s_branch L_prod3_body")


def products_body(g):
    ACC = V_ACC
    PK = V_BUF
    CSA, SELP, V_CSO = V_MISC, V_MISC + 16, V_MISC + 20
    S_PC0, S_PC1 = 71, 72

    def setup():
        common_consts(g)
        g(f"""
        v_lshrrev_b32 {v(V_T0)}, 2, {v(V_I)}
        v_and_b32 {v(V_T0)}, 1, {v(V_T0)}
        v_lshlrev_b32 {v(V_T0)}, 10, {v(V_T0)}
        v_lshrrev_b32 {v(V_T1)}, 1, {v(V_G)}
        v_lshl_add_u32 {v(V_T0)}, {v(V_T1)}, 8, {v(V_T0)}
        v_and_b32 {v(V_T1)}, 1, {v(V_G)}
        v_lshl_add_u32 {v(V_T0)}, {v(V_T1)}, 7, {v(V_T0)}
        v_lshrrev_b32 {v(V_T1)}, 3, {v(V_I)}
        v_lshl_add_u32 {v(V_T0)}, {v(V_T1)}, 6, {v(V_T0)}
        v_and_b32 {v(V_T1)}, 3, {v(V_I)}
        v_lshl_add_u32 {v(V_T5)}, {v(V_T1)}, 4, {v(V_T0)}
        s_and_b32 {s(S_T1)}, {s(S_W)}, 1
        s_lshl_b32 {s(S_T1)}, {s(S_T1)}, 9
        v_add_u32 {v(V_T5)}, {s(S_T1)}, {v(V_T5)}
        s_lshl_b32 {s(S_PF)}, {s(S_TILE)}, 7
        s_add_u32 {s(S_PF)}, {s(S_PF)}, {WS_FP}
        s_lshr_b32 {s(S_T0)}, {s(S_W)}, 1
        s_lshl_b32 {s(S_T1)}, {s(S_KB)}, 1
        s_add_u32 {s(S_T3)}, {s(S_T0)}, {s(S_T1)}
        v_lshrrev_b32 {v(V_T0)}, 1, {v(V_I)}
        v_xor_b32 {v(V_T0)}, {v(V_T0)}, {v(V_G)}
        v_lshlrev_b32 {v(V_T0)}, 4, {v(V_T0)}
        v_lshl_add_u32 {v(V_T3)}, {v(V_I)}, 7, {v(V_T0)}
        s_add_u32 {s(S_T0)}, {s(S_PM)}, {L_PA}
        v_add_u32 {v(A2[0])}, {s(S_T0)}, {v(V_T3)}
        v_xor_b32 {v(A2[1])}, 64, {v(A2[0])}
        v_add_u32 {v(A2[2])}, 49152, {v(A2[0])}
        v_add_u32 {v(A2[3])}, 49152, {v(A2[1])}
        """)

    def tr_addr():
        g(f"""
        v_lshlrev_b32 {v(V_T0)}, 10, {v(V_G)}
        v_lshrrev_b32 {v(V_T2)}, 2, {v(V_I)}
        v_lshl_add_u32 {v(V_T0)}, {v(V_T2)}, 7, {v(V_T0)}
        v_and_b32 {v(V_T1)}, 1, {v(V_G)}
        v_lshrrev_b32 {v(V_T2)}, 3, {v(V_I)}
        v_lshl_or_b32 {v(V_T2)}, {v(V_T1)}, 1, {v(V_T2)}
        v_lshl_add_u32 {v(V_T0)}, {v(V_T2)}, 5, {v(V_T0)}
        v_and_b32 {v(V_T2)}, 3, {v(V_I)}
        v_lshl_add_u32 {v(V_AD)}, {v(V_T2)}, 3, {v(V_T0)}
        v_xor_b32 {v(V_AD+1)}, 32, {v(V_AD)}
        v_xor_b32 {v(V_AD+2)}, 64, {v(V_AD)}
        v_xor_b32 {v(V_AD+3)}, 96, {v(V_AD)}
        """)

    def gemm(tr, nt, order, later, extra=None):
        items = []
        spread = []
        for ks in range(12):
            for c in range(4):
                b = V_BUF + ((ks * 4 + c) % 16) * 4
                if tr:
                    rd = [f"ds_read_b64_tr_b16 {v(b,2)}, {v(V_AD+c)} offset:{ks*4096}",
                          f"ds_read_b64_tr_b16 {v(b+2,2)}, {v(V_AD+c)} offset:{ks*4096+512}"]
                else:
                    rd = [f"ds_read_b128 {v(b,4)}, {v(V_AD+(ks&1))} offset:{(ks>>1)*8192+c*2048}"]
                pre = []
                if ks % 2 == 0 and c == 0:
                    for u in later.get(ks // 2, []):
                        if nt == 1:
                            pre += capture(g, lambda: prod_unit(g, u, nt))
                            order += [f"U{u}"] * (2 + 2 * nt)
                        else:
                            spread += capture(g, lambda: prod_unit(g, u, nt))
                            stag = f"U{u}"
                    last = len(order) - 1 - order[::-1].index(f"U{ks//2}")
                    pre += [f"s_waitcnt vmcnt({len(order)-1-last})", "s_barrier"]
                    if ks in (0, 4, 10):
                        pre += capture(g, lambda: g.stamp(f'chunk{ {0:0,4:1,10:2}[ks] }', False))
                    if extra and ks in extra:
                        pre += extra[ks]
                        order += ["h"] * 2
                while spread:
                    x = spread.pop(0)
                    pre.append(x)
                    if x.startswith("buffer"):
                        order.append(stag)
                        if any(y.startswith("buffer") for y in spread):
                            break
                cm = []
                for t in range(nt):
                    d = ACC + 16 * t + 4 * c
                    af = V_XF + ((ks % 4) * 3 + t) * 4
                    if c == 0:
                        o = aslot(ks // 2, t, nt) - L_PA
                        rd.append(f"ds_read_b128 {v(af,4)}, {v(A2[(ks&1) + 2*(o >= 49152)])} offset:{o % 49152}")
                    cm.append(f"v_mfma_f32_16x16x32_bf16 {v(d,4)}, {v(af,4)}, {v(b,4)}, {'0' if ks == 0 else v(d,4)}")
                items.append((rd, cm, pre))
        pipelined(g, items, 14 if tr else 10, group=g.opts.get('pg', 1) if nt == 3 else 1)

    def epi(nt):
        g.nop(5 if nt == 1 else 1)
        for t in range(nt):
            P = PK + 8 * t
            for c in range(4):
                g(f"v_cvt_pk_bf16_f32 {v(P+2*c)}, {v(ACC+16*t+4*c)}, {v(ACC+16*t+4*c+1)}")
                g(f"v_cvt_pk_bf16_f32 {v(P+2*c+1)}, {v(ACC+16*t+4*c+2)}, {v(ACC+16*t+4*c+3)}")
            g(f"""
            v_permlane16_swap_b32 {v(P)}, {v(P+2)}
            v_permlane16_swap_b32 {v(P+1)}, {v(P+3)}
            v_permlane16_swap_b32 {v(P+4)}, {v(P+6)}
            v_permlane16_swap_b32 {v(P+5)}, {v(P+7)}
            buffer_store_dwordx4 {v(P,4)}, {v(V_T5)}, {s(SRD_WS,4)}, {s(S_PO0)} offen sc1
            buffer_store_dwordx4 {v(P+4,4)}, {v(V_T5)}, {s(SRD_WS,4)}, {s(S_PO1)} offen sc1
            """)
            if nt == 3:
                for aa in range(2):
                    mfma32(g, v(CSA + 4 * aa, 4), v(SELP, 4), v(P + 4 * aa, 4), "0" if t == 0 else None)
            if t < nt - 1:
                g(f"v_add_u32 {v(V_T5)}, {2*6144}, {v(V_T5)}")
        if nt == 3:
            g.nop(7)
            g(f"""
            s_mov_b32 exec_lo, 0xffff
            s_mov_b32 exec_hi, 0xffff
            buffer_store_dword {v(CSA)}, {v(V_CSO)}, {s(SRD_WS,4)}, {s(S_PC0)} offen sc1
            buffer_store_dword {v(CSA+4)}, {v(V_CSO)}, {s(SRD_WS,4)}, {s(S_PC1)} offen sc1
            s_mov_b64 exec, -1
            """)

    def helper():
        lb = g.label('help')
        S_HT, SRD_H = 73, SRD_B
        g(f"""
        s_lshl_b32 {s(S_T0)}, {s(S_RQ)}, 1
        s_add_u32 {s(S_T0)}, {s(S_T0)}, {s(S_CS)}
        s_sub_u32 {s(S_T0)}, {s(S_T0)}, 9
        s_lshl_b32 {s(S_T0)}, {s(S_T0)}, 2
        s_add_u32 {s(S_T0)}, {s(S_T0)}, {s(S_W)}
        s_mov_b32 {s(SRD_H)}, {s(S_WQS)}
        s_mov_b32 {s(SRD_H+1)}, {s(S_WQS+1)}
        s_mov_b32 {s(SRD_H+2)}, 884736
        v_mul_u32_u24 {v(V_T0)}, 43, {v(V_L)}
        v_lshrrev_b32 {v(V_T0)}, 8, {v(V_T0)}
        v_mul_u32_u24 {v(V_T0)}, {2304-768}, {v(V_T0)}
        v_lshl_add_u32 {v(V_T0)}, {v(V_L)}, 7, {v(V_T0)}
        s_bfe_u32 {s(S_T2)}, {s(S_G8)}, 0x10001
        s_cmp_ge_u32 {s(S_G8)}, 4
        s_cselect_b32 {s(S_T3)}, 1536, 0
        s_mov_b32 {s(S_HT)}, {10*2304}
        s_cmp_lt_u32 {s(S_T0)}, 10
        s_cbranch_scc1 {lb}
        s_sub_u32 {s(S_T0)}, {s(S_T0)}, 10
        s_and_b32 {s(S_T2)}, {s(S_G8)}, 1
        s_movk_i32 {s(S_T3)}, 768
        s_cmp_lt_u32 {s(S_G8)}, 4
        s_cbranch_scc1 {lb}
        s_mov_b32 {s(SRD_H)}, {s(S_WOS)}
        s_mov_b32 {s(SRD_H+1)}, {s(S_WOS+1)}
        s_mov_b32 {s(SRD_H+2)}, 294912
        v_mul_u32_u24 {v(V_T0)}, 86, {v(V_L)}
        v_lshrrev_b32 {v(V_T0)}, 8, {v(V_T0)}
        v_mul_u32_u24 {v(V_T0)}, {768-384}, {v(V_T0)}
        v_lshl_add_u32 {v(V_T0)}, {v(V_L)}, 7, {v(V_T0)}
        s_mul_i32 {s(S_T3)}, {s(S_T2)}, 384
        s_mov_b32 {s(S_T2)}, 0
        s_mov_b32 {s(S_HT)}, {20*768}
        {lb}:
        s_mul_i32 {s(S_T2)}, {s(S_T2)}, {192*2304}
        s_add_u32 {s(S_T2)}, {s(S_T2)}, {s(S_T3)}
        s_mul_i32 {s(S_T0)}, {s(S_T0)}, {s(S_HT)}
        s_lshl_b32 {s(S_T0)}, {s(S_T0)}, 1
        s_add_u32 {s(S_T0)}, {s(S_T0)}, {s(S_T2)}
        s_add_u32 {s(S_T1)}, {s(S_T0)}, {s(S_HT)}
        s_mov_b32 exec_hi, 0x0fffffff
        buffer_load_dword {v(V_MISC+60)}, {v(V_T0)}, {s(SRD_H,4)}, {s(S_T0)} offen
        buffer_load_dword {v(V_MISC+61)}, {v(V_T0)}, {s(SRD_H,4)}, {s(S_T1)} offen
        s_mov_b32 exec_hi, -1
        """)

    g("L_prod_body:")
    setup()
    g(f"""
    s_mul_i32 {s(S_T1)}, {s(S_NB)}, 49152
    s_lshl_b32 {s(S_T0)}, {s(S_T3)}, 12
    s_add_u32 {s(S_T0)}, {s(S_T0)}, {s(S_T1)}
    s_add_u32 {s(S_PO0)}, {s(S_T0)}, {WS_WVOT}
    s_add_u32 {s(S_PO1)}, {s(S_PO0)}, 2048
    """)
    tr_addr()
    nonce_and_publish(g)
    for j in range(3, 6):
        prod_unit(g, j, 1)
    o1 = [f"U{j}" for j in range(3) for _ in range(4)] + ["t"] * (1 + 2 * g.opts.get("tlb", 0)) + [f"U{j}" for j in range(3, 6) for _ in range(4)]
    if g.opts.get("help", 1) == 2:
        helper()
        o1 += ["h"] * 2
    HK = g.opts.get("hk", 0)
    gemm(True, 1, o1, {}, extra={HK: capture(g, helper)} if g.opts.get("help", 1) == 3 else None)
    epi(1)
    g(f"""
    L_prod_fin:
    """)
    g.stamp('chunk3')
    g("""
    s_waitcnt vmcnt(0)
    s_barrier
    """)
    flag_store(g, s(S_PF), FP_REP)
    g.stamp('chunk5')
    g(f"""
    s_cmp_ge_u32 {s(S_TILE)}, 36
    s_cbranch_scc1 L_prod_out
    L_prod_help:
    """)
    if g.opts.get("help", 1) == 1:
        helper()
    g(f"""
    L_prod_out:
    s_sub_u32 {s(S_PF)}, {s(S_TILE)}, 36
    buffer_load_dword {v(V_T7)}, {v(V_PA)}, {s(SRD_WS,4)}, 0 offen sc1
    buffer_load_dword {v(V_T5)}, {v(V_PB)}, {s(SRD_WS,4)}, 0 offen sc1
    """)
    p2_setup(g)
    p3_setup(g)
    p3_setup2(g)
    g("s_waitcnt vmcnt(0)")
    pa_eval(g)
    pa_wait(g, S_F1, "pxcc")
    g(f"""
    v_cmp_ne_u32 vcc, {s(S_NONCE)}, {v(V_T5)}
    s_cbranch_vccz L_prod_go
    s_cmp_lt_u32 {s(S_PF)}, 24
    s_cbranch_scc1 L_prod_fast
    """)
    poll(g, V_PB, "0", s(S_NONCE), "pwsp", g.opts.get("pslp", 8))
    g("s_branch L_prod_go")
    g("L_prod_fast:")
    poll(g, V_PB, "0", s(S_NONCE), "pwsq", g.opts.get("tslp", 1))
    g("L_prod_go:")
    ws2_dma(g)
    g(f"s_waitcnt vmcnt({g.opts.get('pw', 0)})")
    g("s_branch L_p2d")
    g("L_prod3_body:")
    setup()
    g(f"""
    s_mul_i32 {s(S_T0)}, {s(S_T3)}, 6144
    s_sub_u32 {s(S_T1)}, {s(S_PROD)}, 1
    s_mul_i32 {s(S_T1)}, {s(S_T1)}, {4*73728}
    s_add_u32 {s(S_T0)}, {s(S_T0)}, {s(S_T1)}
    s_add_u32 {s(S_T0)}, {s(S_T0)}, {WS_WS2}
    """)
    g(f"""
    s_sub_u32 {s(S_T1)}, {s(S_PROD)}, 1
    s_mul_i32 {s(S_T2)}, {s(S_T1)}, {4*3072}
    s_cmp_eq_u32 {s(S_KB)}, 0
    s_cselect_b32 {s(S_T1)}, 0, 256
    s_add_u32 {s(S_T2)}, {s(S_T2)}, {s(S_T1)}
    s_lshr_b32 {s(S_T1)}, {s(S_W)}, 1
    s_lshl_b32 {s(S_T1)}, {s(S_T1)}, 7
    s_add_u32 {s(S_T2)}, {s(S_T2)}, {s(S_T1)}
    s_and_b32 {s(S_T1)}, {s(S_W)}, 1
    s_lshl_b32 {s(S_T1)}, {s(S_T1)}, 2
    s_add_u32 {s(S_T2)}, {s(S_T2)}, {s(S_T1)}
    s_add_u32 {s(S_T2)}, {s(S_T2)}, {WS_CSP}
    v_bfe_u32 {v(V_T0)}, {v(V_I)}, 2, 1
    v_lshlrev_b32 {v(V_T0)}, 9, {v(V_T0)}
    v_lshrrev_b32 {v(V_T1)}, 1, {v(V_G)}
    v_lshl_add_u32 {v(V_T0)}, {v(V_T1)}, 6, {v(V_T0)}
    v_lshrrev_b32 {v(V_T1)}, 3, {v(V_I)}
    v_lshl_add_u32 {v(V_T0)}, {v(V_T1)}, 5, {v(V_T0)}
    v_and_b32 {v(V_T2)}, 3, {v(V_I)}
    v_lshl_add_u32 {v(V_CSO)}, {v(V_T2)}, 3, {v(V_T0)}
    v_and_b32 {v(V_T0)}, 1, {v(V_G)}
    v_cmp_eq_u32 vcc, {v(V_T0)}, {v(V_T1)}
    s_nop 1
    v_cndmask_b32 {v(SELP)}, 0, {v(V_ONES)}, vcc
    v_cndmask_b32 {v(SELP+1)}, 0, {v(V_ONES)}, vcc
    v_cndmask_b32 {v(SELP+2)}, 0, {v(V_ONES)}, vcc
    v_cndmask_b32 {v(SELP+3)}, 0, {v(V_ONES)}, vcc
    """)
    for aa, dst, dc in ((0, S_PO0, S_PC0), (1, S_PO1, S_PC1)):
        g(f"""
        s_lshl_b32 {s(S_T3)}, {s(S_NB)}, 1
        s_add_u32 {s(S_T3)}, {s(S_T3)}, {aa}
        s_mul_hi_u32 {s(dst)}, {s(S_T3)}, {(2**32+2)//3}
        s_mul_i32 {s(S_T1)}, {s(dst)}, 3
        s_lshl_b32 {s(dc)}, {s(S_T3)}, 10
        s_add_u32 {s(dc)}, {s(dc)}, {s(S_T2)}
        s_sub_u32 {s(S_T3)}, {s(S_T3)}, {s(S_T1)}
        s_mul_i32 {s(dst)}, {s(dst)}, 73728
        s_lshl_b32 {s(S_T3)}, {s(S_T3)}, 11
        s_add_u32 {s(dst)}, {s(dst)}, {s(S_T3)}
        s_add_u32 {s(dst)}, {s(dst)}, {s(S_T0)}
        """)
    nonce_and_publish(g)
    prod_unit(g, 1, 3)
    o3 = ["U0"] * 8 + ["t"] * (1 + 2 * g.opts.get("tlb", 0)) + ["U1"] * 8
    l3 = {0: [2], 1: [3], 2: [4], 3: [5]}
    if g.opts.get("u2", 0):
        prod_unit(g, 2, 3)
        o3 += ["U2"] * 8
        l3 = {1: [3], 2: [4], 3: [5]}
    g(f"""
    s_cmp_eq_u32 {s(S_PROD)}, 1
    s_cbranch_scc1 L_prod_rows
    """)
    tr_addr()
    gemm(True, 3, list(o3), l3)
    g("L_prod_epi3:")
    epi(3)
    g("s_branch L_prod_fin")
    g(f"""
    L_prod_rows:
    v_mov_b32 {v(V_AD)}, {v(V_T3)}
    v_xor_b32 {v(V_AD+1)}, 64, {v(V_T3)}
    """)
    gemm(False, 3, list(o3), l3)
    g("s_branch L_prod_epi3")
    g("L_prod_idle:")
    common_consts(g)
    nonce_and_publish(g)
    if g.opts.get("help", 1) > 1:
        helper()
    g("s_branch L_prod_help")


A_K = 0
A_V = 144
V_RES = V_MISC + 28
RK = V_MISC
BK = 232
SG = 248
A2 = [70, 71, 72, 73, 79]
V_KO, VST, V_L16H = 78, 206, 216
VTB = 217
V_I8 = 244
S_RH2 = 74
VC2 = 232
V_FXP = 235
V_P3F, V_SQA, V_RSA, V_P3V = 188, 189, 190, 191
S_P3F, S_Q2, S_U0, S_U1 = 4, 5, 6, 7
S_QM = [8, 9, 10]
S_KS = [76, 77, 78, 79]
S_R0, S_R1, S_STX, S_FXP, S_O1, S_O0, S_FL = 80, 81, 14, 15, 3, 18, 19


def kreg(slot, ks):
    return v(V_XF + 4 * ks, 4) if slot == 0 else a(A_K + (slot - 1) * 48 + 4 * ks, 4)


S_CP0, S_CP1, S_O2 = 15, 16, 17
S_RHO = 26
VK = [71, 79, 78]
V_L8 = 73


def p2_setup(g):
    T0, T1 = V_T0, V_T1
    g(f"""
    s_lshr_b32 {s(S_RH2)}, {s(S_J)}, 4
    s_lshl_b32 {s(S_RH2)}, {s(S_RH2)}, 1
    s_and_b32 {s(S_T1)}, {s(S_J)}, 15
    s_mul_i32 {s(S_T2)}, {s(S_T1)}, 43
    s_lshr_b32 {s(S_T2)}, {s(S_T2)}, 7
    s_mul_i32 {s(S_T2)}, {s(S_T2)}, 3
    s_sub_u32 {s(S_RHO)}, {s(S_T1)}, {s(S_T2)}
    s_mul_i32 {s(S_RHO)}, {s(S_RHO)}, {4 if g.opts.get("krot", 0) else 0}
    s_lshl_b32 {s(S_T1)}, {s(S_RHO)}, 10
    v_add_u32 {v(VK[0])}, {s(S_T1)}, {v(V_L16)}
    s_add_u32 {s(S_T1)}, {s(S_T1)}, 4096
    s_cmp_eq_u32 {s(S_T1)}, 12288
    s_cselect_b32 {s(S_T1)}, 0, {s(S_T1)}
    v_add_u32 {v(VK[1])}, {s(S_T1)}, {v(V_L16)}
    s_add_u32 {s(S_T1)}, {s(S_T1)}, 4096
    s_cmp_eq_u32 {s(S_T1)}, 12288
    s_cselect_b32 {s(S_T1)}, 0, {s(S_T1)}
    v_add_u32 {v(VK[2])}, {s(S_T1)}, {v(V_L16)}
    s_mul_i32 {s(S_T1)}, {s(S_W)}, 3
    s_add_u32 {s(S_T1)}, {s(S_T1)}, 12
    s_sub_u32 {s(S_RHO)}, {s(S_T1)}, {s(S_RHO)}
    v_add_u32 {v(V_L16H)}, 4096, {v(V_L16)}
    v_lshlrev_b32 {v(V_L8)}, 3, {v(V_L)}
    v_xor_b32 {v(T0)}, {s(S_RH2)}, {v(V_G)}
    v_lshrrev_b32 {v(T1)}, 3, {v(V_I)}
    v_lshl_add_u32 {v(T1)}, {v(T0)}, 1, {v(T1)}
    v_mul_u32_u24 {v(T1)}, 768, {v(T1)}
    v_and_b32 {v(T0)}, 7, {v(V_I)}
    v_lshl_add_u32 {v(VST)}, {v(T0)}, 3, {v(T1)}
    s_mul_i32 {s(S_STX)}, {s(S_G8)}, {6*32*128}
    s_mul_i32 {s(S_T1)}, {s(S_W)}, {48*128}
    s_add_u32 {s(S_STX)}, {s(S_STX)}, {s(S_T1)}
    s_add_u32 {s(S_STX)}, {s(S_STX)}, {WS_STX}
    s_mul_i32 {s(S_T1)}, {s(S_W)}, 768
    s_add_u32 {s(S_T1)}, {s(S_T1)}, {L_ST}
    v_lshlrev_b32 {v(T0)}, 2, {v(V_L)}
    v_add_u32 {v(VTB)}, {s(S_T1)}, {v(T0)}
    v_lshlrev_b32 {v(V_I8)}, 3, {v(V_I)}
    v_lshlrev_b32 {v(VTB+1)}, 4, {v(V_G)}
    v_add_u32 {v(VTB+2)}, {s(S_T1)}, {v(VTB+1)}
    s_lshl_b32 {s(S_T3)}, {s(S_G8)}, 2
    s_add_u32 {s(S_T3)}, {s(S_T3)}, {s(S_W)}
    s_mul_i32 {s(S_T3)}, {s(S_T3)}, 49152
    s_add_u32 {s(S_T3)}, {s(S_T3)}, {WS_X1}
    s_mul_i32 {s(S_T1)}, {s(S_RH2)}, 12288
    s_add_u32 {s(S_KS[0])}, {s(S_T3)}, {s(S_T1)}
    s_add_u32 {s(S_KS[1])}, {s(S_KS[0])}, 12288
    s_sub_u32 {s(S_KS[2])}, {s(S_T3)}, {s(S_T1)}
    s_add_u32 {s(S_KS[2])}, {s(S_KS[2])}, 24576
    s_add_u32 {s(S_KS[3])}, {s(S_KS[2])}, 12288
    s_bfe_u32 {s(S_T1)}, {s(S_J)}, 0x20002
    s_sub_u32 {s(S_R1)}, {s(S_T1)}, {s(S_W)}
    s_mul_i32 {s(S_R1)}, {s(S_R1)}, 49152
    s_add_u32 {s(S_R1)}, {s(S_R1)}, {s(S_KS[0])}
    s_and_b32 {s(S_T1)}, {s(S_W)}, 1
    s_mul_i32 {s(S_T1)}, {s(S_T1)}, 12288
    s_add_u32 {s(S_R1)}, {s(S_R1)}, {s(S_T1)}
    s_and_b32 {s(S_T1)}, {s(S_J)}, 3
    s_mul_i32 {s(S_T1)}, {s(S_T1)}, 3072
    s_add_u32 {s(S_R1)}, {s(S_R1)}, {s(S_T1)}
    s_lshr_b32 {s(S_T1)}, {s(S_W)}, 1
    s_lshl_b32 {s(S_T1)}, {s(S_T1)}, 10
    s_add_u32 {s(S_R0)}, {s(S_T1)}, {s(S_R1)}
    s_lshl_b32 {s(S_FL)}, s2, 7
    s_lshl_b32 {s(S_T1)}, {s(S_W)}, 2
    s_add_u32 {s(S_FL)}, {s(S_FL)}, {s(S_T1)}
    s_add_u32 {s(S_FL)}, {s(S_FL)}, {WS_F2}
    s_bfe_u32 {s(S_T3)}, {s(S_J)}, 0x30001
    s_mul_i32 {s(S_WD0)}, {s(S_T3)}, 73728
    s_mul_i32 {s(S_T1)}, {s(S_W)}, 18432
    s_add_u32 {s(S_WD0)}, {s(S_WD0)}, {s(S_T1)}
    s_add_u32 {s(S_WD0)}, {s(S_WD0)}, {WS_WS2}
    s_mul_i32 {s(S_CP0)}, {s(S_T3)}, 3072
    s_add_u32 {s(S_CP0)}, {s(S_CP0)}, {WS_CSP}
    s_and_b32 {s(S_T2)}, {s(S_J)}, 1
    s_lshl_b32 {s(S_T1)}, {s(S_T2)}, 10
    s_add_u32 {s(S_WD1)}, {s(S_WD0)}, {s(S_T1)}
    s_lshl_b32 {s(S_T1)}, {s(S_T2)}, 12
    s_add_u32 {s(S_WD0)}, {s(S_WD0)}, {s(S_T1)}
    s_lshl_b32 {s(S_T1)}, {s(S_T2)}, 9
    s_add_u32 {s(S_CP1)}, {s(S_CP0)}, {s(S_T1)}
    s_lshl_b32 {s(S_T1)}, {s(S_T2)}, 11
    s_add_u32 {s(S_CP0)}, {s(S_CP0)}, {s(S_T1)}
    """)
    g(f"""
    s_lshl_b32 {s(S_O0)}, {s(S_G8)}, 2
    s_add_u32 {s(S_O0)}, {s(S_O0)}, {s(S_RH2)}
    s_lshl_b32 {s(S_O0)}, {s(S_O0)}, 1
    s_add_u32 {s(S_O0)}, {s(S_O0)}, {s(S_W)}
    s_mul_i32 {s(S_O1)}, {s(S_O0)}, 24576
    s_mul_i32 {s(S_T1)}, {s(S_T3)}, 3072
    s_add_u32 {s(S_O1)}, {s(S_O1)}, {s(S_T1)}
    s_add_u32 {s(S_O1)}, {s(S_O1)}, {WS_QP}
    s_lshl_b32 {s(S_T1)}, {s(S_T2)}, 3
    s_add_u32 {s(S_O2)}, {s(S_O1)}, {s(S_T1)}
    s_add_u32 {s(S_O2)}, {s(S_O2)}, 1024
    s_lshl_b32 {s(S_T1)}, {s(S_T2)}, 11
    s_add_u32 {s(S_O1)}, {s(S_O1)}, {s(S_T1)}
    s_lshl_b32 {s(S_O0)}, {s(S_O0)}, 10
    s_lshl_b32 {s(S_T1)}, {s(S_T3)}, 7
    s_add_u32 {s(S_O0)}, {s(S_O0)}, {s(S_T1)}
    s_lshl_b32 {s(S_T1)}, {s(S_T2)}, 2
    s_add_u32 {s(S_O0)}, {s(S_O0)}, {s(S_T1)}
    s_add_u32 {s(S_O0)}, {s(S_O0)}, {WS_SQ}
    s_bitcmp0_b32 {s(S_J)}, 3
    s_cbranch_scc1 {g.label("q") if False else "L_p2s_%d" % g.uid}
    s_lshl_b32 {s(S_O1)}, {s(S_G8)}, 2
    s_add_u32 {s(S_O1)}, {s(S_O1)}, {s(S_T3)}
    s_sub_u32 {s(S_O1)}, {s(S_O1)}, 4
    s_mul_i32 {s(S_O1)}, {s(S_O1)}, 49152
    s_lshl_b32 {s(S_T1)}, {s(S_W)}, 2
    s_add_u32 {s(S_T1)}, {s(S_T1)}, {s(S_RH2)}
    s_mul_i32 {s(S_T1)}, {s(S_T1)}, 3072
    s_add_u32 {s(S_O1)}, {s(S_O1)}, {s(S_T1)}
    s_add_u32 {s(S_O1)}, {s(S_O1)}, {WS_VP}
    s_lshl_b32 {s(S_T1)}, {s(S_T2)}, 10
    s_add_u32 {s(S_O2)}, {s(S_O1)}, {s(S_T1)}
    s_lshl_b32 {s(S_T1)}, {s(S_T2)}, 12
    s_add_u32 {s(S_O1)}, {s(S_O1)}, {s(S_T1)}
    L_p2s_{g.uid}:
    """)
    g.uid += 1


KORD = [(sl, ks) for ks in range(12) for sl in range(2)] + [(sl, ks) for sl in (2, 3) for ks in range(12)]
KL = ([f"buffer_load_dwordx4 {kreg(sl,ks)}, {v(VK[ks//4])}, {s(SRD_WS,4)}, {s(S_KS[sl])} offen offset:{(ks%4)*1024} sc1"
       for sl, ks in KORD] +
      [f"buffer_load_dwordx4 {v(V_RES,4)}, {v(V_RSA)}, {s(SRD_WS,4)}, {s(S_R0)} offen sc1",
       f"buffer_load_dwordx4 {v(V_RES+4,4)}, {v(V_RSA)}, {s(SRD_WS,4)}, {s(S_R1)} offen offset:2048 sc1"])


def colsums(g):
    CT = V_ACC + 32
    for c in range(3):
        g(f"v_add_f32 {v(CSL+4*c)}, {v(CSL+4*c)}, {v(CSL+4*c+1)}")
    for sw in ("v_permlane16_swap_b32", "v_permlane32_swap_b32"):
        for c in range(3):
            g(f"v_mov_b32 {v(CSL+4*c+1)}, {v(CSL+4*c)}")
        for c in range(3):
            g(f"{sw} {v(CSL+4*c)}, {v(CSL+4*c+1)}")
        for c in range(3):
            g(f"v_add_f32 {v(CSL+4*c)}, {v(CSL+4*c)}, {v(CSL+4*c+1)}")
    for c in range(3):
        colsum_pack(g, CSL + 4 * c, CT + 2 * c)


def p2(g):
    ACC = V_ACC
    CS = V_ACC + 24
    CT = V_ACC + 32
    RT = 232
    MU2 = [V_MU, 240]
    SC2 = [V_T0, 242]
    STP = V_MISC
    KM, KR, KB = V_MISC + 12, V_MISC + 13, V_MISC + 20
    g("L_p2:")
    g.stamp('early')
    ws2_dma(g)
    g("L_p2c:")

    def stx():
        for cb in range(6):
            g(f"buffer_load_dwordx2 {v(STP+2*cb,2)}, {v(VST)}, {s(SRD_WS,4)}, {s(S_STX)} offen offset:{cb*128} sc1")
    FXW = g.opts.get("fxw", 1)
    p3_setup(g)
    p3_setup2(g)
    g("L_p2d:")

    def qstores(sc, P):
        g(f"""
        s_add_u32 {s(S_T1)}, {s(S_O1)}, 12288
        s_add_u32 {s(S_T2)}, {s(S_O2)}, 12288
        buffer_store_dwordx4 {v(P[0],4)}, {v(V_L16)}, {s(SRD_WS,4)}, {s(S_O1)} offen{sc}
        buffer_store_dwordx4 {v(P[1],4)}, {v(V_L16)}, {s(SRD_WS,4)}, {s(S_T1)} offen{sc}
        buffer_store_dwordx2 {v(P[2],2)}, {v(V_L16)}, {s(SRD_WS,4)}, {s(S_O2)} offen{sc}
        buffer_store_dwordx2 {v(P[3],2)}, {v(V_L16)}, {s(SRD_WS,4)}, {s(S_T2)} offen{sc}
        """)
    g(f"""
    s_bitcmp1_b32 {s(S_J)}, 3
    s_cbranch_scc1 L_nomark
    """)
    for q in range(4):
        g(f"v_mov_b32 {v(NANQ+q)}, -1")
    both_modes(g, lambda sc: qstores(sc, [NANQ] * 4))
    assert FXW == 1
    g("""
    s_waitcnt vmcnt(13)
    s_branch L_marked
    L_nomark:
    s_waitcnt vmcnt(9)
    L_marked:
    """)
    g.stamp('wsland')
    colsums(g)
    g(f"""
    s_mov_b32 {s(S_SPIN)}, {SPIN_LIMIT}
    s_mov_b32 {s(S_RETRY)}, 64
    {'s_branch L_px1' if FXW == 0 else ''}
    L_px:
    """)
    stx()
    g("L_px1:")
    g("s_waitcnt vmcnt(0)")
    for cb in range(6):
        for h in range(2):
            g(f"v_xor_b32 {v(STP+2*cb+h)}, {s(S_TAG+h)}, {v(STP+2*cb+h)}")
    g(f"v_or3_b32 {v(V_T0)}, {v(STP)}, {v(STP+1)}, {v(STP+2)}")
    for q in range(3, 11, 2):
        g(f"v_or3_b32 {v(V_T0)}, {v(V_T0)}, {v(STP+q)}, {v(STP+q+1)}")
    g(f"""
    v_or_b32 {v(V_T0)}, {v(V_T0)}, {v(STP+11)}
    v_and_b32 {v(V_T0)}, 0xff, {v(V_T0)}
    v_cmp_ne_u32 vcc, 0, {v(V_T0)}
    s_cbranch_vccz L_pxok
    s_sleep {g.opts.get("slp", 4)}
    s_sub_u32 {s(S_SPIN)}, {s(S_SPIN)}, 1
    s_cbranch_scc0 L_px
    L_pxok:
    """)
    g.stamp('x1ok')
    K0N = g.opts.get("k0n", 12)
    for x in KL[:K0N]:
        g(x)
    g(f"""
    s_barrier
    s_bitcmp0_b32 {s(S_J)}, 3
    s_cbranch_scc0 L_p2_v
    """)

    def stats(typ):
        for c in range(1, 6):
            g(f"v_pk_add_f32 {v(STP,2)}, {v(STP,2)}, {v(STP+2*c,2)}")
        mean_rstd(g, STP, STP + 1, KM, KR)
        g.nop(1)
        g(f"v_mul_f32 {v(KB)}, {v(KM)}, {v(KR)}")
        g(f"""
        ds_write_b32 {v(VTB)}, {v(KR)}
        ds_write_b32 {v(VTB)}, {v(KB)} offset:256
        """)
        for src, d0, d1 in ((KM, V_MEAN, STP + 2), (KR, V_R, STP + 3))[:2 - typ]:
            g(f"v_mov_b32 {v(d0)}, {v(src)}")
            g(f"v_mov_b32 {v(d1)}, {v(src)}")
            g.nop(2)
            g(f"v_permlane16_swap_b32 {v(d0)}, {v(d1)}")
            g.nop(1)
            g(f"v_mov_b32 {v(STP+4)}, {v(d0)}")
            g(f"v_mov_b32 {v(STP+5)}, {v(d1)}")
            g.nop(2)
            g(f"v_permlane32_swap_b32 {v(d0)}, {v(STP+4)}")
            g(f"v_permlane32_swap_b32 {v(d1)}, {v(STP+5)}")
            g.nop(1)
        mu_operand(g, V_MEAN, MU2[0])
        mu_operand(g, STP + 2, MU2[1])
        if typ == 0:
            for u, r in ((0, V_R), (1, STP + 3)):
                g(f"v_mul_f32 {v(SC2[u])}, {f2u(SCALE_LOG2E):#x}, {v(r)}")
                g(f"v_mul_f32 {v(SC2[u]+1)}, {f2u(SCALE_LOG2E):#x}, {v(r)}")
        else:
            g("s_waitcnt lgkmcnt(0)")
            for u in range(2):
                g(f"ds_read_b128 {v(RT+4*u,4)}, {v(VTB+2)} offset:{u*64}")
    KIN = g.opts.get("kin", 24)
    KA = g.opts.get("kafter", 4)
    KB4 = g.opts.get("kpoll", 0)
    for typ in range(2):
        if typ == 1:
            g("L_p2_v:")
        stats(typ)
        g("s_waitcnt lgkmcnt(0)")
        g(f"L_p2_go{typ}:")
        g.stamp('k0')
        items = []
        nk = K0N
        urgent = 24 - K0N
        slots = [q * g.opts.get("ku", 2) for q in range(urgent)]
        s0 = slots[-1] + 2 if slots else 0
        slots += [s0 + round((q + 0.5) * (72 - s0) / max(KIN - urgent, 1)) for q in range(KIN - urgent)]
        for ks in range(12):
            for c in range(3):
                n = ks * 3 + c
                b = V_BUF + (n % 16) * 4
                rd = [f"ds_read_b128 {v(b,4)}, {v(V_L16)} offset:{n*1024}"]
                cm = []
                for u in range(2):
                    d = ACC + 12 * u + 4 * c
                    if c == 0:
                        assert nk - 1 - (2 * ks + u) >= 0
                        cm.append(f"s_waitcnt vmcnt({nk - 1 - (2 * ks + u)})")
                    A, B = (v(b, 4), kreg(u, ks)) if typ == 0 else (kreg(u, ks), v(b, 4))
                    cm.append(f"v_mfma_f32_16x16x32_bf16 {v(d,4)}, {A}, {B}, {'0' if ks == 0 else v(d,4)}")
                    for _ in range(slots.count(2 * n + u)):
                        cm.append(KL[nk])
                        nk += 1
                items.append((rd, cm))
        pipelined(g, items, 8, group=1)
        g.stamp('p2gemm')
        PK = V_BUF
        for u in range(2):
            for c in range(3):
                d = ACC + 12 * u + 4 * c
                A, B = (v(CT + 2 * c, 2), v(MU2[u], 2)) if typ == 0 else (v(MU2[u], 2), v(CT + 2 * c, 2))
                mfma16(g, v(d, 4), A, B)
        g.nop(3)
        if typ == 0:
            for i in range(6):
                g(f"v_pk_mul_f32 {v(ACC+2*i,2)}, {v(ACC+2*i,2)}, {v(SC2[0],2)}")
            g(f"v_cmp_u_f32 vcc, {v(ACC)}, {v(ACC+12)}")
            g("s_cbranch_vccnz L_p2_redo")
            g("L_p2_q_on:")
            for i in range(6, 12):
                g(f"v_pk_mul_f32 {v(ACC+2*i,2)}, {v(ACC+2*i,2)}, {v(SC2[1],2)}")
            for u in range(2):
                for i in range(6):
                    g(f"v_cvt_pk_bf16_f32 {v(PK+8*u+i)}, {v(ACC+12*u+2*i)}, {v(ACC+12*u+2*i+1)}")
            g.nop(1)
            for u in range(2):
                mfma32(g, v(CS + 4 * u, 4), v(V_ONES, 4), v(PK + 8 * u, 4), "0")
            for u in range(2):
                mfma16(g, v(CS + 4 * u, 4), v(V_ONES, 2), v(PK + 8 * u + 4, 2))

            def st(sc):
                qstores(sc, [PK, PK + 8, PK + 4, PK + 12])
                g(f"""
                v_bfi_b32 {v(CS)}, {v(V_MASK)}, {v(CS)}, {s(S_TAG+2)}
                v_bfi_b32 {v(CS+4)}, {v(V_MASK)}, {v(CS+4)}, {s(S_TAG+2)}
                {'s_sleep 60' if False else ''}
                s_mov_b64 exec, {s(S_G0,2)}
                buffer_store_dword {v(CS)}, {v(V_I8)}, {s(SRD_WS,4)}, {s(S_O0)} offen{sc}
                buffer_store_dword {v(CS+4)}, {v(V_I8)}, {s(SRD_WS,4)}, {s(S_O0)} offen offset:512{sc}
                s_mov_b64 exec, -1
                """)
            if g.opts.get("dbgearly", 0) & 8:
                g.nop(8)
                g(f"""
                v_bfi_b32 {v(CS+1)}, {v(V_MASK)}, {v(CS)}, {s(S_TAG+2)}
                v_bfi_b32 {v(CS+5)}, {v(V_MASK)}, {v(CS+4)}, {s(S_TAG+2)}
                s_mov_b64 exec, {s(S_G0,2)}
                buffer_store_dword {v(CS+1)}, {v(V_I8)}, {s(SRD_WS,4)}, {s(S_O0)} offen sc1
                buffer_store_dword {v(CS+5)}, {v(V_I8)}, {s(SRD_WS,4)}, {s(S_O0)} offen offset:512 sc1
                s_mov_b64 exec, -1
                s_waitcnt vmcnt(0)
                s_sleep 100
                """)
            both_modes(g, st)
            g.stamp('p2st')
            for x in KL[nk:nk + KA]:
                g(x)
            g("s_branch L_p2_done")
        else:
            for c in range(3):
                for h in range(2):
                    g(f"v_pk_mul_f32 {v(ACC+4*c+2*h,2)}, {v(ACC+4*c+2*h,2)}, {v(RT+2*h,2)}")
            g(f"""
            v_pk_add_f32 {v(CS,2)}, {v(ACC,2)}, {v(ACC+12,2)}
            v_pk_add_f32 {v(CS+2,2)}, {v(ACC+2,2)}, {v(ACC+14,2)}
            v_pk_add_f32 {v(CS,2)}, {v(CS,2)}, {v(CS+2,2)}
            v_cmp_u_f32 vcc, {v(CS)}, {v(CS+1)}
            s_cbranch_vccnz L_p2_redo
            L_p2_v_on:
            """)
            for c in range(3):
                for h in range(2):
                    g(f"v_pk_mul_f32 {v(ACC+12+4*c+2*h,2)}, {v(ACC+12+4*c+2*h,2)}, {v(RT+4+2*h,2)}")
            for c in range(3):
                for u in range(2):
                    for h in range(2):
                        d = ACC + 12 * u + 4 * c + 2 * h
                        g(f"v_cvt_pk_bf16_f32 {v(PK+4*c+2*u+h)}, {v(d)}, {v(d+1)}")

            def st(sc):
                g(f"""
                buffer_store_dwordx4 {v(PK,4)}, {v(V_L16)}, {s(SRD_WS,4)}, {s(S_O1)} offen{sc}
                buffer_store_dwordx4 {v(PK+4,4)}, {v(V_L16)}, {s(SRD_WS,4)}, {s(S_O1)} offen offset:1024{sc}
                buffer_store_dwordx4 {v(PK+8,4)}, {v(V_L16)}, {s(SRD_WS,4)}, {s(S_O2)} offen offset:2048{sc}
                """)
            both_modes(g, st)
    g.stamp('p2st')
    for x in KL[nk:nk + KA]:
        g(x)
    g(f"s_waitcnt vmcnt({KA})")
    g("s_mov_b64 exec, 1")
    both_modes(g, lambda sc: g(f"buffer_store_dword {v(V_NONCE)}, {v(V_ZERO)}, {s(SRD_WS,4)}, {s(S_FL)} offen{sc}"))
    g("s_mov_b64 exec, -1")
    g("L_p2_done:")
    g.stamp('p2flag')
    for x in KL[nk + KA:nk + KA + KB4]:
        g(x)
    for sl in range(4):
        g(f"ds_read_b128 {v(RK+4*sl,4)}, {v(VTB+2)} offset:{sl*64}")
        g(f"ds_read_b128 {v(BK+4*sl,4)}, {v(VTB+2)} offset:{256+sl*64}")
    return nk + KA + KB4


S_Q, S_SQ, S_V0, S_V1 = 0, 1, 72, 75


def p3_setup(g):
    g(f"""
    s_and_b32 {s(S_T5)}, {s(S_J)}, 3
    s_bfe_u32 {s(S_T4)}, {s(S_J)}, 0x20002
    s_lshl_b32 {s(S_P3F)}, {s(S_G8)}, 7
    s_add_u32 {s(S_P3F)}, {s(S_P3F)}, {WS_F2}
    v_and_b32 {v(V_T2)}, 7, {v(V_L)}
    v_lshlrev_b32 {v(V_T2)}, 10, {v(V_T2)}
    s_lshl_b32 {s(S_T1)}, {s(S_RH2)}, 13
    s_lshl_b32 {s(S_T2)}, {s(S_T4)}, 2
    s_add_u32 {s(S_T1)}, {s(S_T1)}, {s(S_T2)}
    v_add_u32 {v(V_P3F)}, {s(S_T1)}, {v(V_T2)}
    """)


def p3_setup2(g):
    g(f"""
    v_and_b32 {v(V_T2)}, 1, {v(V_L)}
    v_lshlrev_b32 {v(V_T2)}, 10, {v(V_T2)}
    v_and_b32 {v(V_T3)}, 2, {v(V_L)}
    v_lshl_add_u32 {v(V_T2)}, {v(V_T3)}, 13, {v(V_T2)}
    s_lshl_b32 {s(S_T1)}, {s(S_T5)}, 11
    s_lshl_b32 {s(S_T2)}, {s(S_W)}, 2
    s_add_u32 {s(S_T1)}, {s(S_T1)}, {s(S_T2)}
    s_add_u32 {s(S_T1)}, {s(S_T1)}, 8192
    v_add_u32 {v(V_P3V)}, {s(S_T1)}, {v(V_T2)}
    s_lshl_b32 {s(11)}, {s(S_G8)}, 2
    s_add_u32 {s(13)}, {s(11)}, {s(S_T5)}
    s_add_u32 {s(11)}, {s(11)}, {s(S_RH2)}
    s_lshl_b32 {s(11)}, {s(11)}, 1
    s_add_u32 {s(11)}, {s(11)}, {s(S_T4)}
    s_mul_i32 {s(S_Q)}, {s(11)}, 24576
    s_mul_i32 {s(S_T2)}, {s(S_W)}, 3072
    s_add_u32 {s(S_Q)}, {s(S_Q)}, {s(S_T2)}
    s_add_u32 {s(S_Q)}, {s(S_Q)}, {WS_QP}
    s_lshl_b32 {s(S_SQ)}, {s(11)}, 10
    s_add_u32 {s(S_SQ)}, {s(S_SQ)}, {WS_SQ}
    s_mul_i32 {s(S_V1)}, {s(13)}, 49152
    s_mul_i32 {s(S_T2)}, {s(S_W)}, 12288
    s_add_u32 {s(S_V1)}, {s(S_V1)}, {s(S_T2)}
    s_add_u32 {s(S_V1)}, {s(S_V1)}, {WS_VP}
    s_mul_i32 {s(S_T2)}, {s(S_RH2)}, 3072
    s_add_u32 {s(S_V0)}, {s(S_V1)}, {s(S_T2)}
    s_sub_u32 {s(S_V1)}, {s(S_V1)}, {s(S_T2)}
    s_add_u32 {s(S_V1)}, {s(S_V1)}, 6144
    s_add_u32 {s(S_Q2)}, {s(S_Q)}, 12288
    v_add_u32 {v(V_AD)}, {L_WVO}, {v(V_L16)}
    """)
    for q in range(3):
        kpos(g, q, 1024, L_WVO - q * 1024)
        g(f"s_mov_b32 {s(S_QM[q])}, m0")
    g(f"""
    v_bfe_u32 {v(V_T2)}, {v(V_I)}, 1, 2
    v_xor_b32 {v(V_T2)}, {v(V_T2)}, {v(V_G)}
    v_lshl_add_u32 {v(V_T2)}, {v(V_I)}, 2, {v(V_T2)}
    v_lshlrev_b32 {v(V_T2)}, 4, {v(V_T2)}
    s_lshl_b32 {s(S_T1)}, {s(S_W)}, 11
    v_add_u32 {v(V_AD+1)}, {s(S_T1)}, {v(V_T2)}
    s_lshl_b32 {s(S_T1)}, {s(S_W)}, 8
    s_add_u32 {s(S_T1)}, {s(S_T1)}, {L_ML}
    v_lshlrev_b32 {v(V_T3)}, 3, {v(V_I)}
    v_add_u32 {v(V_AD+2)}, {s(S_T1)}, {v(V_T3)}
    s_and_b32 {s(13)}, {s(S_W)}, 1
    s_lshl_b32 {s(S_T1)}, {s(13)}, 7
    s_add_u32 {s(S_T1)}, {s(S_T1)}, {L_ML}
    v_lshrrev_b32 {v(V_T4)}, 2, {v(V_L)}
    v_lshlrev_b32 {v(V_T3)}, 3, {v(V_T4)}
    v_add_u32 {v(V_AD+3)}, {s(S_T1)}, {v(V_T3)}
    v_bfe_u32 {v(V_T3)}, {v(V_L)}, 3, 2
    v_xor_b32 {v(V_T3)}, {v(V_T3)}, {v(V_L)}
    v_lshlrev_b32 {v(V_T3)}, 4, {v(V_T3)}
    s_lshl_b32 {s(S_T1)}, {s(S_W)}, 13
    v_add_u32 {v(213)}, {s(S_T1)}, {v(V_T3)}
    v_and_b32 {v(V_T3)}, 3, {v(V_L)}
    v_lshlrev_b32 {v(V_T2)}, 4, {v(V_T4)}
    v_lshl_add_u32 {v(V_RSA)}, {v(V_T3)}, 8, {v(V_T2)}
    s_lshl_b32 {s(S_U1)}, {s(S_T4)}, 2
    s_add_u32 {s(S_U1)}, {s(S_U1)}, {s(S_RH2)}
    s_add_u32 {s(S_U1)}, {s(S_U1)}, {s(13)}
    s_lshl_b32 {s(S_U1)}, {s(S_U1)}, 4
    s_lshl_b32 {s(S_T2)}, {s(S_G8)}, 8
    s_add_u32 {s(S_U1)}, {s(S_U1)}, {s(S_T2)}
    s_mul_i32 {s(S_U1)}, {s(S_U1)}, 768
    s_mul_i32 {s(S_T2)}, {s(S_T5)}, 192
    s_add_u32 {s(S_U1)}, {s(S_U1)}, {s(S_T2)}
    s_lshr_b32 {s(S_T2)}, {s(S_W)}, 1
    s_lshl_b32 {s(S_T2)}, {s(S_T2)}, 6
    s_add_u32 {s(S_U0)}, {s(S_T2)}, {s(S_U1)}
    v_mul_u32_u24 {v(V_T4)}, 768, {v(V_T4)}
    v_lshl_add_u32 {v(A2[0])}, {v(V_T3)}, 4, {v(V_T4)}
    """)


def kcheck(g):
    for n in range(24):
        mfma32(g, v(V_ACC + 32 + 4 * (n & 1), 4), v(V_ONES, 4), kreg(2 + n // 12, n % 12), "0" if n < 2 else None)


def wbl2(g):
    sk = g.label("nowb")
    g(f"""
    s_lshl_b32 {s(S_T0)}, {s(S_J)}, 2
    s_add_u32 {s(S_T0)}, {s(S_T0)}, {s(S_W)}
    s_and_b32 {s(S_T0)}, {s(S_T0)}, {g.opts.get("wbm", 127)}
    s_cmp_lg_u32 {s(S_T0)}, 3
    s_cbranch_scc1 {sk}
    buffer_wbl2 sc1
    {sk}:
    """)


def p3(g, nk):
    SA = V_ACC
    LS = V_ACC + 32
    MX = V_ACC + 40
    SQ = V_ACC + 42
    OA = V_BUF
    QB = V_BUF + 32
    PF = V_XF
    BS = OA
    V_RW, V_MW, V_MR, V_RR, V_OO = V_AD + 1, V_AD + 2, V_AD + 3, 213, A2[0]
    g(f"""
    s_mov_b32 {s(S_SPIN)}, {SPIN_LIMIT}
    L_e3:
    """)
    for u in range(2):
        g(f"buffer_load_dwordx2 {v(SG+4+2*u,2)}, {v(V_L8)}, {s(SRD_WS,4)}, {s(S_SQ)} offen offset:{u*512} sc1")
    g("s_waitcnt vmcnt(0)")
    for q in range(4):
        g(f"v_xor_b32 {v(SG+4+q)}, {s(S_TAG+2)}, {v(SG+4+q)}")
    g(f"""
    v_or3_b32 {v(V_T0)}, {v(SG+4)}, {v(SG+5)}, {v(SG+6)}
    v_or_b32 {v(V_T0)}, {v(V_T0)}, {v(SG+7)}
    v_and_b32 {v(V_T0)}, 0xff, {v(V_T0)}
    v_cmp_ne_u32 vcc, 0, {v(V_T0)}
    s_cbranch_vccz L_e3ok
    s_sub_u32 {s(S_SPIN)}, {s(S_SPIN)}, 1
    s_cbranch_scc0 L_e3
    L_e3ok:
    """)
    g.stamp('e3ok')

    def qdma(u, so):
        for q in range(3):
            g(f"s_add_u32 m0, {s(S_QM[q])}, {u*12288}")
            g("s_nop 0")
            g(f"buffer_load_dwordx4 {v(V_L16)}, {s(SRD_WS,4)}, {s(so)} offen offset:{q*1024} sc1 lds")
    qdma(0, S_Q)
    q1 = capture(g, lambda: qdma(1, S_Q2))
    early = ["\n".join(q1[3*q:3*q+3]) for q in range(3)] + [f"buffer_load_dword {v(V_T7)}, {v(V_P3V)}, {s(SRD_WS,4)}, {s(S_P3F)} offen sc1"]
    vl = []
    for pr, so in ((0, S_V0), (1, S_V1)):
        for c in range(6):
            vo, off = (V_L16, c * 1024) if c < 4 else (V_L16H, (c - 4) * 1024)
            vl.append(f"buffer_load_dwordx4 {a(A_V+(pr*6+c)*4,4)}, {v(vo)}, {s(SRD_WS,4)}, {s(so)} offen offset:{off} sc1")
    late = KL[nk:48] + vl + KL[48:]
    nkl = 48 - min(nk, 48)
    late = early + late
    PRE = g.opts.get("p3pre", 4)
    for x in late[:PRE]:
        g(x)
    g("s_waitcnt lgkmcnt(0)")
    for u in range(2):
        g(f"v_add_f32 {v(SQ+u)}, {v(SG+4+2*u)}, {v(SG+5+2*u)}")
    for u in range(2):
        g(f"v_mov_b32 {v(SG+u)}, {v(SQ+u)}")
    g.nop(1)
    for u in range(2):
        g(f"v_permlane16_swap_b32 {v(SQ+u)}, {v(SG+u)}")
    for u in range(2):
        g(f"v_add_f32 {v(SQ+u)}, {v(SQ+u)}, {v(SG+u)}")
    for u in range(2):
        g(f"v_mov_b32 {v(SG+u)}, {v(SQ+u)}")
    g.nop(1)
    for u in range(2):
        g(f"v_permlane32_swap_b32 {v(SQ+u)}, {v(SG+u)}")
    for u in range(2):
        g(f"v_add_f32 {v(SG+2+2*u)}, {v(SQ+u)}, {v(SG+u)}")
        g(f"v_add_f32 {v(SG+3+2*u)}, {v(SQ+u)}, {v(SG+u)}")
    for u in range(2):
        for i in range(8):
            g(f"v_pk_mul_f32 {v(BS+16*u+2*i,2)}, {v(BK+2*i,2)}, {v(SG+2+2*u,2)}")
    g(f"""
    s_waitcnt vmcnt({PRE})
    s_barrier
    """)
    g.stamp('qland')

    def softmax_lines(u, pk):
        d = SA + u * 16
        TMP = SG + 4 * u
        L = []
        if pk:
            for i in range(8):
                L.append(f"v_pk_fma_f32 {v(d+2*i,2)}, {v(d+2*i,2)}, {v(RK+2*i,2)}, {v(BS+16*u+2*i,2)} neg_lo:[0,0,1] neg_hi:[0,0,1]")
        else:
            for i in range(16):
                L.append(f"v_fma_f32 {v(d+i)}, {v(d+i)}, {v(RK+i)}, -{v(BS+16*u+i)}")
        nf = len(L)
        L.append(f"v_max3_f32 {v(MX+u)}, {v(d)}, {v(d+1)}, {v(d+2)}")
        for i in range(3, 15, 2):
            L.append(f"v_max3_f32 {v(MX+u)}, {v(MX+u)}, {v(d+i)}, {v(d+i+1)}")
        L.append(f"v_max_f32 {v(MX+u)}, {v(MX+u)}, {v(d+15)}")
        L += capture(g, lambda: xlane_sum(g, MX + u, TMP + 2, "v_max_f32"))
        if pk:
            L.append(f"v_mov_b32 {v(TMP)}, {v(MX+u)}")
            L.append(f"v_mov_b32 {v(TMP+1)}, {v(MX+u)}")
            for i in range(8):
                L.append(f"v_pk_add_f32 {v(d+2*i,2)}, {v(d+2*i,2)}, {v(TMP,2)} neg_lo:[0,1] neg_hi:[0,1]")
        else:
            for i in range(16):
                L.append(f"v_sub_f32 {v(d+i)}, {v(d+i)}, {v(MX+u)}")
        for i in range(16):
            L.append(f"v_exp_f32 {v(d+i)}, {v(d+i)}")
        return L, nf
    OV = g.opts.get("ov", 0)
    sm0, _ = softmax_lines(0, not OV)
    items = []
    rest = list(late[PRE:])
    issued = PRE
    nk2 = nkl + 4 - PRE
    KD = g.opts.get("kd", 2)
    L0 = max(g.opts.get("l0", 4), nk2 * KD + 2)
    LSPAN = g.opts.get("lspan", 84)
    lpos = [q * KD for q in range(nk2)] + [L0 + int(q * (LSPAN - L0) / 14) for q in range(14)]
    vchk = capture(g, lambda: (g(f"""
    s_waitcnt vmcnt(@V@)
    v_cmp_ne_u32 vcc, {s(S_NONCE)}, {v(V_T7)}
    s_cbranch_vccz L_v_ok
    """), poll(g, V_P3V, s(S_P3F), s(S_NONCE), "pv"), g("L_v_ok:")))
    pos = 0
    for ph, (slots, u) in enumerate((((0, 1), 0), ((0, 1), 1), ((2, 3), 0), ((2, 3), 1))):
        for ks in range(12):
            b = QB + ((ph * 12 + ks) % 8) * 4
            rd = [f"ds_read_b128 {v(b,4)}, {v(V_AD)} offset:{u*12288+ks*1024}"]
            cm = []
            for sl in slots:
                kidx = KORD.index((sl, ks))
                if kidx >= nk and u == 0:
                    assert issued - (4 + kidx - nk) - 1 >= 0
                    cm.append(f"s_waitcnt vmcnt({issued - (4 + kidx - nk) - 1})")
                d = SA + u * 16 + sl * 4
                cm.append(f"v_mfma_f32_16x16x32_bf16 {v(d,4)}, {kreg(sl,ks)}, {v(b,4)}, {'0' if ks == 0 else v(d,4)}")
                if pos == L0:
                    cm += [x.replace("@V@", str(issued - 4)) for x in vchk]
                for _ in range(lpos.count(pos)):
                    cm.append(rest.pop(0))
                    issued += 1
                pos += 1
            items.append((rd, cm, [], issued))
    assert not rest
    QD = g.opts.get('qd', 6)
    assert items[12 - QD - 1][3] >= 3
    items[12][2].extend([f"s_waitcnt vmcnt({items[12 - QD - 1][3] - 3})", "s_barrier"])
    if g.opts.get("wb", 2) == 1:
        items[12][2].extend(capture(g, lambda: wbl2(g)))
    pipelined(g, items, QD)
    g(f"""
    L_k_chk:
    v_cmp_u_f32 {s(S_M,2)}, {v(SA+8)}, {v(SA+9)}
    v_cmp_u_f32 s[16:17], {v(SA+10)}, {v(SA+11)}
    v_cmp_u_f32 s[14:15], {v(SA+12)}, {v(SA+13)}
    v_cmp_u_f32 vcc, {v(SA+14)}, {v(SA+15)}
    s_or_b64 {s(S_M,2)}, {s(S_M,2)}, s[16:17]
    s_or_b64 vcc, vcc, s[14:15]
    s_or_b64 {s(S_M,2)}, vcc, {s(S_M,2)}
    v_cmp_u_f32 vcc, {v(SA+16)}, {v(SA+16)}
    s_or_b64 vcc, vcc, {s(S_M,2)}
    s_cbranch_scc1 L_k_redo
    L_k_ok:
    """)
    for x in sm0:
        g(x)
    g.stamp('sdone')

    def cvts(u, odd):
        L = []
        for sl in range(4):
            for h in range(2):
                dst = PF + u * 8 + (sl >> 1) * 4 + ((sl & 1) ^ odd) * 2 + h
                src = SA + u * 16 + sl * 4 + 2 * h
                L.append(f"v_cvt_pk_bf16_f32 {v(dst)}, {v(src)}, {v(src+1)}")
        return L

    def cvt_branch(u):
        g.nop(1)
        for x in cvts(u, 0):
            g(x)

    def pv_lines(u):
        L = []
        for pr in range(2):
            p = v(PF + u * 8 + pr * 4, 4)
            for c in range(6):
                d = OA + u * 24 + c * 4
                L.append(f"v_mfma_f32_16x16x32_bf16 {v(d,4)}, {a(A_V+(pr*6+c)*4,4)}, {p}, {'0' if pr == 0 else v(d,4)}")
            L.append(f"v_mfma_f32_16x16x32_bf16 {v(LS+4*u,4)}, {v(V_ONES,4)}, {p}, {'0' if pr == 0 else v(LS+4*u,4)}")
        return L
    cvt_branch(0)
    sm1, _ = softmax_lines(1, True)
    ex = sm1[-16:]
    for x in sm1[:-16]:
        g(x)
    g("s_waitcnt vmcnt(0)")
    if g.opts.get("wb", 2) == 2:
        wbl2(g)
    for x in pv_lines(0):
        g(x)
        if ex:
            g(ex.pop(0))
    for x in ex:
        g(x)
    g.stamp('smax')
    cvt_branch(1)
    OUT = V_ACC
    unp = []
    for rnd in range(2):
        for i in range(8):
            src = V_RES + 4 * rnd + (i >> 1)
            unp.append(f"v_and_b32 {v(OUT+8*rnd+i)}, 0xffff0000, {v(src)}" if i & 1 else
                       f"v_lshlrev_b32 {v(OUT+8*rnd+i)}, 16, {v(src)}")
    g(f"v_mov_b32 {v(V_T4)}, {v(MX)}")
    g(f"v_mov_b32 {v(V_T5)}, {v(LS)}")
    w0 = [f"ds_write_b128 {v(V_RW)}, {v(OA+(2*m+h)*4,4)} offset:{2*m*8192+h*1024}" for m in range(3) for h in range(2)]
    w0.append(f"ds_write_b64 {v(V_MW)}, {v(V_T4,2)}")
    for n, x in enumerate(pv_lines(1)):
        g(x)
        if n % 2 == 1:
            g(w0.pop(0))
        else:
            g(unp.pop(0))
    g.stamp('pvdone')
    for x in unp[:3]:
        g(x)
    unp = unp[3:]
    for m in range(3):
        for h in range(2):
            g(f"ds_write_b128 {v(V_RW)}, {v(OA+24+(2*m+h)*4,4)} offset:{(2*m+1)*8192+h*1024}")
            g(unp.pop(0))
    g(f"""
    v_mov_b32 {v(V_T6)}, {v(MX+1)}
    v_mov_b32 {v(V_T7)}, {v(LS+4)}
    ds_write_b64 {v(V_MW)}, {v(V_T6,2)} offset:128
    s_waitcnt lgkmcnt(0)
    s_barrier
    """)
    g.stamp('redbar')
    ML = V_ACC + 16
    FW = V_ACC + 24
    RD = V_BUF
    for w in range(4):
        g(f"ds_read_b64 {v(ML+2*w,2)}, {v(V_MR)} offset:{w*256}")
    for w in range(4):
        for h in range(2):
            g(f"ds_read_b128 {v(RD+w*8+h*4,4)}, {v(V_RR)} offset:{w*2048+h*1024}")
    g(f"""
    s_waitcnt lgkmcnt(8)
    v_max3_f32 {v(V_T3)}, {v(ML)}, {v(ML+2)}, {v(ML+4)}
    v_max_f32 {v(V_T3)}, {v(V_T3)}, {v(ML+6)}
    """)
    for w in range(4):
        g(f"v_sub_f32 {v(FW+2*w)}, {v(ML+2*w)}, {v(V_T3)}")
    for w in range(4):
        g(f"v_exp_f32 {v(FW+2*w)}, {v(FW+2*w)}")
    g(f"""
    s_waitcnt lgkmcnt(2)
    s_cmp_ge_u32 {s(S_W)}, 2
    s_cbranch_scc1 L_nord2
    """)
    for w in range(4):
        for h in range(2):
            g(f"ds_read_b128 {v(RD+32+w*8+h*4,4)}, {v(V_RR)} offset:{32768+w*2048+h*1024}")
    g(f"""
    s_waitcnt lgkmcnt(8)
    s_branch L_rd1
    L_nord2:
    s_waitcnt lgkmcnt(0)
    L_rd1:
    v_mul_f32 {v(V_T3)}, {v(FW)}, {v(ML+1)}
    v_fmac_f32 {v(V_T3)}, {v(FW+2)}, {v(ML+3)}
    v_fmac_f32 {v(V_T3)}, {v(FW+4)}, {v(ML+5)}
    v_fmac_f32 {v(V_T3)}, {v(FW+6)}, {v(ML+7)}
    v_rcp_f32 {v(V_T3)}, {v(V_T3)}
    s_nop 0
    """)
    for w in range(4):
        g(f"v_mul_f32 {v(FW+2*w)}, {v(FW+2*w)}, {v(V_T3)}")
        g(f"v_mov_b32 {v(FW+2*w+1)}, {v(FW+2*w)}")
    osc = " sc1" if g.opts.get("outsc1", 0) else (" nt" if g.opts.get("outnt", 0) else "")
    for rnd in range(2):
        if rnd == 1:
            g(f"""
            s_cmp_ge_u32 {s(S_W)}, 2
            s_cbranch_scc1 L_fin
            """)
        for w in range(4):
            if rnd == 1:
                g(f"s_waitcnt lgkmcnt({6-2*w})")
            for i in range(4):
                g(f"v_pk_fma_f32 {v(OUT+8*rnd+2*i,2)}, {v(RD+32*rnd+w*8+2*i,2)}, {v(FW+2*w,2)}, {v(OUT+8*rnd+2*i,2)}")
        PK = V_ACC + 32 + 4 * rnd
        if rnd == 0 and g.opts.get("perturb", 0):
            g(f"""
            s_or_b32 {s(S_T0)}, s2, {s(S_W)}
            s_cmp_lg_u32 {s(S_T0)}, 0
            s_cbranch_scc1 L_nopert
            s_mov_b64 exec, 1
            v_add_f32 {v(OUT)}, {f2u(g.opts["perturb"]/1000.):#x}, {v(OUT)}
            s_mov_b64 exec, -1
            L_nopert:
            """)
        for i in range(4):
            g(f"v_cvt_pk_bf16_f32 {v(PK+i)}, {v(OUT+8*rnd+2*i)}, {v(OUT+8*rnd+2*i+1)}")
        if rnd == 0:
            g(f"buffer_store_dwordx4 {v(PK,4)}, {v(V_OO)}, {s(SRD_OUT,4)}, {s(S_U0)} offen{osc}")
        else:
            g(f"buffer_store_dwordx4 {v(PK,4)}, {v(V_OO)}, {s(SRD_OUT,4)}, {s(S_U1)} offen offset:128{osc}")
    g("L_fin:")


def redo_blocks(g):
    g(f"""
    L_p2_redo:
    s_sub_u32 {s(S_RETRY)}, {s(S_RETRY)}, 1
    s_cbranch_scc1 L_p2_give
    s_waitcnt vmcnt(0)
    """)
    g.stamp('redo')
    for x in KL[:24]:
        g(x)
    g(f"""
    s_waitcnt vmcnt(0)
    s_bitcmp0_b32 {s(S_J)}, 3
    s_cbranch_scc1 L_p2_go0
    s_branch L_p2_go1
    L_p2_give:
    s_mov_b32 {s(S_RETRY)}, 0
    s_bitcmp0_b32 {s(S_J)}, 3
    s_cbranch_scc1 L_p2_q_on
    s_branch L_p2_v_on
    L_k_redo:
    s_sub_u32 {s(S_RETRY)}, {s(S_RETRY)}, 1
    s_cbranch_scc1 L_k_ok
    """)
    g.stamp('redo')
    g("s_waitcnt vmcnt(0)")
    for x in KL[24:48]:
        g(x)
    g(f"""
    s_mul_i32 {s(S_T3)}, {s(S_W)}, 3072
    s_sub_u32 {s(S_T3)}, {s(S_Q)}, {s(S_T3)}
    s_mul_i32 {s(S_T0)}, {s(S_W)}, 3
    s_sub_u32 {s(S_RHO)}, {s(S_RHO)}, {s(S_T0)}
    s_mov_b32 {s(S_SPIN)}, 12
    L_q_rw:
    """)
    kpos(g, 0, 1024, L_WVO)
    g(f"""
    s_add_u32 {s(S_T1)}, {s(S_T3)}, 12288
    buffer_load_dwordx4 {v(V_L16)}, {s(SRD_WS,4)}, {s(S_T3)} offen sc1 lds
    s_add_u32 m0, m0, 12288
    s_add_u32 {s(S_T3)}, {s(S_T3)}, 1024
    buffer_load_dwordx4 {v(V_L16)}, {s(SRD_WS,4)}, {s(S_T1)} offen sc1 lds
    s_add_u32 {s(S_RHO)}, {s(S_RHO)}, 1
    s_sub_u32 {s(S_SPIN)}, {s(S_SPIN)}, 1
    s_cmp_lg_u32 {s(S_SPIN)}, 0
    s_cbranch_scc1 L_q_rw
    s_sub_u32 {s(S_T0)}, {s(S_T0)}, 12
    s_add_u32 {s(S_RHO)}, {s(S_RHO)}, {s(S_T0)}
    s_waitcnt vmcnt(0)
    """)
    items = []
    for u in range(2):
        for ks in range(12):
            b = V_BUF + 32 + ((u * 12 + ks) % 8) * 4
            cm = []
            for sl in range(4):
                d = V_ACC + u * 16 + sl * 4
                cm.append(f"v_mfma_f32_16x16x32_bf16 {v(d,4)}, {kreg(sl,ks)}, {v(b,4)}, {'0' if ks == 0 else v(d,4)}")
            items.append(([f"ds_read_b128 {v(b,4)}, {v(V_AD)} offset:{u*12288+ks*1024}"], cm))
    pipelined(g, items, 6)
    g.nop(8)
    g("s_branch L_k_chk")


def epilogue(g):
    g(f"""
    s_or_b32 {s(S_T0)}, s2, {s(S_W)}
    s_cmp_lg_u32 {s(S_T0)}, 0
    s_cbranch_scc1 L_nononce
    s_mov_b64 exec, 1
    buffer_store_dword {v(V_NONCE)}, {v(V_ZERO)}, {s(SRD_WS,4)}, 0 offen
    s_mov_b64 exec, -1
    L_nononce:
    """)
    if g.stamps:
        g(f"""
        s_cmp_lg_u32 {s(S_W)}, 0
        s_cbranch_scc1 L_end
        s_waitcnt vmcnt(0)
        s_memtime s[98:99]
        s_memrealtime s[100:101]
        s_waitcnt lgkmcnt(0)
        s_lshl_b32 {s(S_T0)}, s2, 8
        s_add_u32 {s(S_T0)}, {s(S_T0)}, {WS_STAMP}
        v_mov_b32 {v(V_T1)}, 0
        s_mov_b64 exec, 1
        """)
        for i in range(20):
            g(f"v_mov_b32 {v(V_T0)}, s{S_STAMP+i}")
            g(f"buffer_store_dword {v(V_T0)}, {v(V_T1)}, {s(SRD_WS,4)}, {s(S_T0)} offen offset:{4*i}")
            g("s_nop 1")
    if g.opts.get("dbg", 0):
        g(f"""
        s_cmp_lg_u32 {s(S_W)}, 0
        s_cbranch_scc1 L_end
        s_cmp_ge_u32 {s(S_CS)}, 6
        s_cbranch_scc1 L_end
        s_waitcnt vmcnt(0)
        s_memrealtime s[98:99]
        s_waitcnt lgkmcnt(0)
        s_not_b32 s84, s84
        v_mov_b32 {v(V_T1)}, 0
        s_mov_b64 exec, 1
        """)
        for i in range(8):
            g(f"v_mov_b32 {v(V_T0)}, s{84+2*i}")
            g(f"global_atomic_umax {v(V_T1)}, {v(V_T0)}, s[82:83] offset:{4*i}")
            g("s_nop 1")
    g("L_end:")
    g("s_endpgm")


def build(stamps=False, opts=None):
    g = G(stamps, opts)
    prologue(g)
    p0_issue(g)
    g("s_branch L_main")
    products(g)
    g("L_main:")
    p0_main(g)
    p1(g)
    nk = p2(g)
    p3(g, nk)
    epilogue(g)
    redo_blocks(g)
    products_body(g)
    g("L_code_end:")
    hdr = f"""; TimeSformer divided space-time attention block, one persistent launch (256 workgroups, one per CU).
{('; wsstamp:%d' % WS_STAMP + chr(10)) if stamps else ''}; @launch grid=(256,1,1) block=(256,1,1) lds={LDS_SIZE}
.amdgcn_target "amdgcn-amd-amdhsa--gfx950"
.text
.globl {KNAME}
.p2align 8
.type {KNAME},@function
{KNAME}:
"""
    ftr = f"""
.section .rodata,"a"
.p2align 6
.amdhsa_kernel {KNAME}
  .amdhsa_next_free_vgpr 512
  .amdhsa_next_free_sgpr 102
  .amdhsa_accum_offset 256
  .amdhsa_group_segment_fixed_size 0
  .amdhsa_kernarg_size 64
  .amdhsa_user_sgpr_count 2
  .amdhsa_user_sgpr_kernarg_segment_ptr 1
  .amdhsa_system_sgpr_workgroup_id_x 1
.end_amdhsa_kernel
"""
    return hdr + "\n".join(g.L) + ftr


if __name__ == "__main__":
    out = sys.argv[1]
    stamps = None
    opts = {}
    for x in sys.argv[2:]:
        if x.startswith("--stamps="):
            stamps = ["start"] + x.split("=")[1].split(",")
            assert len(stamps) <= 7
        elif "=" in x:
            k, val = x.split("=")
            opts[k] = int(val)
    open(out, "w").write(build(stamps, opts))
```

```python
import sys, math

KNAME = "standalone__video_timesformer__vision_kernel"

WS_NONCE = 0
WS_FXCC = 0x1000
WS_F2 = 0x13000
WS_SP = 0x1B000
WS_STX = 0x7B000
WS_WVOT = 0xB3000
WS_WS2 = 0xFB000
WS_X1 = 0x18B000
WS_QP = 0x30B000
WS_VP = 0x48B000
WS_CSP = 0x60B000
WS_FP = 0x617000
FP_REP = 96 * 128
WS_SQ = WS_FP + 8 * FP_REP
WS_STAMP = WS_SQ + 0x10000
WS_SIZE = WS_STAMP + 256 * 256

L_W = 0
L_WVO = 98304
L_T = 81920
L_CT0 = 147456
L_CT1 = L_CT0 + 1024
L_CT2 = L_CT1 + 512
L_ML = L_CT2 + 1024
L_ST = L_ML + 1024
L_SG = L_ST + 3072
LDS_SIZE = L_SG + 512

SPIN_LIMIT = 40000
SCALE_LOG2E = (384 ** -0.5) * math.log2(math.e)


def f2u(x):
    import struct
    return struct.unpack("<I", struct.pack("<f", x))[0]


DBG_STAMPS = ['xarr0', 'chunk0', 'sstored', 'x1st', 'x1ok', 'e3ok']


class G:
    def __init__(self, stamps=False, opts=None):
        self.L = []
        self.stamps = stamps
        self.nstamp = 0
        self.uid = 0
        self.opts = opts or {}

    def __call__(self, s):
        for line in s.split("\n"):
            line = line.strip()
            if line:
                self.L.append("    " + line if not line.endswith(":") else line)

    def label(self, p):
        self.uid += 1
        return f"L_{p}_{self.uid}"

    def nop(self, n):
        while n > 0:
            k = min(n, 16)
            self(f"s_nop {k-1}")
            n -= k

    def stamp(self, name, wait=True):
        if self.opts.get("dbg", 0) and name in DBG_STAMPS:
            k = 86 + 2 * DBG_STAMPS.index(name)
            self(f"s_memrealtime s[{k}:{k+1}]")
        if self.stamps and name in self.stamps:
            idx = 1 + self.stamps.index(name)
            self(f"s_memtime s[{S_STAMP+2*idx}:{S_STAMP+2*idx+1}]")
            if wait:
                self("s_waitcnt lgkmcnt(0)")


def v(a, n=1):
    return f"v{a}" if n == 1 else f"v[{a}:{a+n-1}]"


def a(x, n=1):
    return f"a{x}" if n == 1 else f"a[{x}:{x+n-1}]"


def s(x, n=1):
    return f"s{x}" if n == 1 else f"s[{x}:{x+n-1}]"


S_X, S_WQT, S_WOT, S_WQS, S_WOS, S_OUT, S_DBG, S_WS = 4, 6, 8, 10, 12, 14, 16, 18
S_G8, S_J, S_W, S_NONCE, S_ME = 20, 21, 22, 23, 24
S_RB = 25
S_T0, S_T1, S_T2, S_T3 = 27, 28, 29, 30
S_SPIN = 31
SRD_WS = 32
SRD_A = 36
SRD_B = 40
SRD_OUT = 44
S_VALID = 48
S_G0 = 50
S_TAG = 52
S_M = 56
S_ONES = 58
S_RQ = 59
S_CS = 60
S_SLOW = 61
S_F1 = 62
S_F2 = 63
S_T4, S_T5, S_T6, S_T7 = 64, 65, 66, 67
S_DIAG = 100
S_STAMP = 82

V_TID, V_L, V_I, V_G = 0, 1, 2, 3
V_T0, V_T1, V_T2, V_T3, V_T4, V_T5, V_T6, V_T7 = 4, 5, 6, 7, 8, 9, 10, 11
V_ONES = 12
V_XF = 16
V_MU = 64
V_R = 66
V_MEAN = 67
V_L16 = 68
V_MASK = 69
V_S1A, V_S1B, V_S2A, V_S2B = 70, 71, 72, 73
V_AD = 74
V_BUF = 80
V_ACC = 144
V_MISC = 192
V_ZERO, V_NONCE, V_PA, V_PB = 228, 229, 230, 231
V_PS = 246


def row_stats_dots(g, lo, hi):
    for r in range(lo, hi):
        g(f"v_dot2c_f32_bf16 {v(V_S1A + (r & 1))}, {s(S_ONES)}, {v(V_XF + r)}")
        g(f"v_dot2c_f32_bf16 {v(V_S2A + (r & 1))}, {v(V_XF + r)}, {v(V_XF + r)}")


def xlane_sum(g, r, t, op="v_add_f32"):
    g(f"v_mov_b32 {v(t)}, {v(r)}")
    g.nop(2)
    g(f"v_permlane16_swap_b32 {v(r)}, {v(t)}")
    g.nop(1)
    g(f"{op} {v(r)}, {v(r)}, {v(t)}")
    g(f"v_mov_b32 {v(t)}, {v(r)}")
    g.nop(2)
    g(f"v_permlane32_swap_b32 {v(r)}, {v(t)}")
    g.nop(1)
    g(f"{op} {v(r)}, {v(r)}, {v(t)}")


def row_stats_finish(g):
    g.nop(3)
    g(f"v_add_f32 {v(V_S1A)}, {v(V_S1A)}, {v(V_S1B)}")
    g(f"v_add_f32 {v(V_S2A)}, {v(V_S2A)}, {v(V_S2B)}")
    xlane_sum(g, V_S1A, V_T0)
    xlane_sum(g, V_S2A, V_T1)
    g(f"""
    v_mul_f32 {v(V_MEAN)}, {f2u(1/384.):#x}, {v(V_S1A)}
    v_mul_f32 {v(V_T0)}, {f2u(1/384.):#x}, {v(V_S2A)}
    v_fma_f32 {v(V_T0)}, -{v(V_MEAN)}, {v(V_MEAN)}, {v(V_T0)}
    v_max_f32 {v(V_T0)}, 0, {v(V_T0)}
    v_add_f32 {v(V_T0)}, {f2u(1e-5):#x}, {v(V_T0)}
    v_rsq_f32 {v(V_R)}, {v(V_T0)}
    v_cvt_pk_bf16_f32 {v(V_T1)}, -{v(V_MEAN)}, -{v(V_MEAN)}
    v_lshlrev_b32 {v(V_T1)}, 16, {v(V_T1)}
    v_sub_f32 {v(V_T1)}, -{v(V_MEAN)}, {v(V_T1)}
    v_cvt_pk_bf16_f32 {v(V_T1)}, -{v(V_MEAN)}, {v(V_T1)}
    v_cndmask_b32 {v(V_MU)}, 0, {v(V_T1)}, {s(S_G0,2)}
    v_cndmask_b32 {v(V_MU+1)}, 0, {v(V_T1)}, {s(S_G0,2)}
    """)


def mean_rstd(g, s1, s2, mean, rstd):
    g(f"""
    v_mul_f32 {v(mean)}, {f2u(1/384.):#x}, {v(s1)}
    v_mul_f32 {v(rstd)}, {f2u(1/384.):#x}, {v(s2)}
    v_fma_f32 {v(rstd)}, -{v(mean)}, {v(mean)}, {v(rstd)}
    v_max_f32 {v(rstd)}, 0, {v(rstd)}
    v_add_f32 {v(rstd)}, {f2u(1e-5):#x}, {v(rstd)}
    v_rsq_f32 {v(rstd)}, {v(rstd)}
    """)


def mu_operand(g, mean, dst=V_MU):
    g(f"""
    v_cvt_pk_bf16_f32 {v(V_T1)}, -{v(mean)}, -{v(mean)}
    v_lshlrev_b32 {v(V_T1)}, 16, {v(V_T1)}
    v_sub_f32 {v(V_T1)}, -{v(mean)}, {v(V_T1)}
    v_cvt_pk_bf16_f32 {v(V_T1)}, -{v(mean)}, {v(V_T1)}
    v_cndmask_b32 {v(dst)}, 0, {v(V_T1)}, {s(S_G0,2)}
    v_cndmask_b32 {v(dst+1)}, 0, {v(V_T1)}, {s(S_G0,2)}
    """)


def colsum_pack(g, src, dst):
    g(f"""
    v_cvt_pk_bf16_f32 {v(dst)}, {v(src)}, {v(src)}
    v_lshlrev_b32 {v(dst+1)}, 16, {v(dst)}
    v_sub_f32 {v(dst+1)}, {v(src)}, {v(dst+1)}
    v_cvt_pk_bf16_f32 {v(dst+1)}, {v(dst+1)}, {v(dst+1)}
    """)


def poll(g, voff, soff, want, name, slp=0):
    lp, done = g.label(name), g.label(name + "_ok")
    g(f"s_mov_b32 {s(S_SPIN)}, {SPIN_LIMIT}")
    g(f"{lp}:")
    g(f"""
    buffer_load_dword {v(V_T7)}, {v(voff)}, {s(SRD_WS,4)}, {soff} offen sc1
    s_waitcnt vmcnt(0)
    v_cmp_ne_u32 vcc, {want}, {v(V_T7)}
    s_cbranch_vccz {done}
    {'s_sleep %d' % slp if slp else ''}
    s_sub_u32 {s(S_SPIN)}, {s(S_SPIN)}, 1
    s_cbranch_scc0 {lp}
    {done}:
    """)


def mfma32(g, d, A, B, c=None):
    g(f"v_mfma_f32_16x16x32_bf16 {d}, {A}, {B}, {c if c is not None else d}")


def mfma16(g, d, A, B, c=None):
    g(f"v_mfma_f32_16x16x16_bf16 {d}, {A}, {B}, {c if c is not None else d}")


def pipelined(g, items, depth_reads, group=1):
    n = len(items)
    issued = 0
    cum = [0]
    for it in items:
        cum.append(cum[-1] + len(it[0]))
    for i in range(0, n, group):
        hi = min(i + group, n)
        while issued < n and (issued < hi or cum[issued + 1] - cum[i] <= depth_reads):
            if len(items[issued]) > 2:
                for p in items[issued][2]:
                    g(p)
            for r in items[issued][0]:
                g(r)
            issued += 1
        g(f"s_waitcnt lgkmcnt({cum[issued] - cum[hi]})")
        for k in range(i, hi):
            for c in items[k][1]:
                g(c)


def capture(g, fn):
    keep = g.L
    g.L = []
    fn()
    out = [x.strip() for x in g.L]
    g.L = keep
    return out


def prologue(g):
    g(f"""
    s_cmp_ge_u32 s2, 256
    s_cbranch_scc1 L_end
    s_load_dwordx16 s[4:19], s[0:1], 0
    """)
    if g.opts.get("dbg", 0):
        g("s_load_dwordx2 s[82:83], s[0:1], 48")
        g("s_memrealtime s[84:85]")
    if g.stamps:
        for i in range(S_STAMP, 100):
            g(f"s_mov_b32 s{i}, 0")
        g(f"s_memrealtime s[{S_STAMP}:{S_STAMP+1}]")
        g.stamp('start', False)
    g(f"""
    s_and_b32 {s(S_G8)}, s2, 7
    s_lshr_b32 {s(S_J)}, s2, 3
    v_lshrrev_b32 {v(V_T0)}, 6, v0
    v_and_b32 {v(V_L)}, 63, v0
    v_readfirstlane_b32 {s(S_W)}, {v(V_T0)}
    v_and_b32 {v(V_I)}, 15, v0
    v_bfe_u32 {v(V_G)}, v0, 4, 2
    v_lshlrev_b32 {v(V_L16)}, 4, {v(V_L)}
    """)
    if g.opts.get("codepf", 1):
        NL = g.opts.get("cpl", 3)
        g(f"""
        s_getpc_b64 {s(S_M,2)}
        L_pc:
        s_lshl_b32 {s(S_T0)}, {s(S_J)}, 2
        s_add_u32 {s(S_T0)}, {s(S_T0)}, {s(S_W)}
        s_mul_i32 {s(S_T0)}, {s(S_T0)}, {128*NL}
        s_min_u32 {s(S_T0)}, {s(S_T0)}, L_code_end-L_pc-{128*NL}
        v_lshlrev_b32 {v(V_T0)}, 7, {v(V_L)}
        v_add_u32 {v(V_T1)}, {s(S_T0)}, {v(V_T0)}
        s_mov_b64 exec, {(1 << NL) - 1}
        global_load_dword {v(V_MISC+62)}, {v(V_T1)}, {s(S_M,2)}
        s_mov_b64 exec, -1
        """)
    g(f"""
    s_lshr_b32 {s(S_RQ)}, {s(S_J)}, 3
    s_and_b32 {s(S_CS)}, {s(S_J)}, 7
    s_lshl_b32 {s(S_RB)}, {s(S_RQ)}, 3
    s_add_u32 {s(S_RB)}, {s(S_RB)}, {s(S_G8)}
    s_mov_b32 {s(SRD_A+3)}, 0x20000
    s_mov_b32 {s(SRD_B+3)}, 0x20000
    s_mov_b32 {s(SRD_WS+3)}, 0x20000
    s_mov_b32 {s(SRD_WS+2)}, {WS_SIZE}
    s_cmp_ge_u32 {s(S_CS)}, 6
    s_cbranch_scc1 L_products
    """)
    p0_pre(g)
    g(f"""
    s_waitcnt lgkmcnt(0)
    s_load_dword {s(S_NONCE)}, {s(S_WS,2)}, {WS_NONCE}
    """)


def common_consts(g):
    g(f"""
    s_mov_b32 {s(SRD_WS)}, {s(S_WS)}
    s_mov_b32 {s(SRD_WS+1)}, {s(S_WS+1)}
    s_mov_b32 {s(SRD_OUT)}, {s(S_OUT)}
    s_mov_b32 {s(SRD_OUT+1)}, {s(S_OUT+1)}
    s_mov_b32 {s(SRD_OUT+2)}, 1572864
    s_mov_b32 {s(SRD_OUT+3)}, 0x20000
    s_mov_b32 {s(S_ONES)}, 0x3f803f80
    s_getreg_b32 {s(S_ME)}, hwreg(HW_REG_XCC_ID, 0, 3)
    v_mov_b32 {v(V_ONES)}, {s(S_ONES)}
    v_mov_b32 {v(V_ONES+1)}, {s(S_ONES)}
    v_mov_b32 {v(V_ONES+2)}, {s(S_ONES)}
    v_mov_b32 {v(V_ONES+3)}, {s(S_ONES)}
    v_mov_b32 {v(V_MASK)}, 0xffffff00
    v_mov_b32 {v(V_ZERO)}, 0
    v_cmp_eq_u32 {s(S_G0,2)}, 0, {v(V_G)}
    v_lshrrev_b32 {v(V_T0)}, 1, {v(V_G)}
    v_lshrrev_b32 {v(V_T1)}, 3, {v(V_I)}
    v_cmp_eq_u32 {s(S_VALID,2)}, {v(V_T0)}, {v(V_T1)}
    v_lshrrev_b32 {v(V_T1)}, 2, {v(V_I)}
    v_cmp_eq_u32 {s(S_DIAG,2)}, {v(V_G)}, {v(V_T1)}
    """)
    g(f"""
    s_lshl_b32 {s(S_T0)}, {s(S_G8)}, 7
    s_add_u32 {s(S_T0)}, {s(S_T0)}, {WS_FXCC}
    v_and_b32 {v(V_T1)}, 31, {v(V_L)}
    v_lshlrev_b32 {v(V_T1)}, 10, {v(V_T1)}
    v_add_u32 {v(V_PA)}, {s(S_T0)}, {v(V_T1)}
    v_min_u32 {v(V_PB)}, 11, {v(V_L)}
    s_mul_i32 {s(S_T1)}, {s(S_G8)}, {FP_REP}
    v_lshlrev_b32 {v(V_PB)}, 7, {v(V_PB)}
    s_bitcmp0_b32 {s(S_J)}, 3
    s_cselect_b32 {s(S_T0)}, 0, {12*128}
    s_add_u32 {s(S_T0)}, {s(S_T0)}, {WS_FP+36*128}
    s_add_u32 {s(S_T0)}, {s(S_T0)}, {s(S_T1)}
    v_add_u32 {v(V_PB)}, {s(S_T0)}, {v(V_PB)}
    v_min_u32 {v(V_T0)}, 5, {v(V_L)}
    v_mul_u32_u24 {v(V_T0)}, 768, {v(V_T0)}
    s_lshl_b32 {s(S_T0)}, {s(S_CS)}, 7
    s_add_u32 {s(S_T0)}, {s(S_T0)}, {s(S_T1)}
    s_add_u32 {s(S_T0)}, {s(S_T0)}, {WS_FP}
    v_add_u32 {v(V_PS)}, {s(S_T0)}, {v(V_T0)}
    """)


def nonce_and_publish(g):
    g(f"""
    s_waitcnt lgkmcnt(0)
    s_and_b32 {s(S_T0)}, {s(S_NONCE)}, 0x78787878
    s_add_u32 {s(S_T0)}, {s(S_T0)}, 0x08080808
    s_and_b32 {s(S_T1)}, {s(S_NONCE)}, 0x80808080
    s_xor_b32 {s(S_NONCE)}, {s(S_T0)}, {s(S_T1)}
    s_or_b32 {s(S_ME)}, {s(S_ME)}, {s(S_NONCE)}
    s_lshl_b32 {s(S_T0)}, s2, 7
    s_add_u32 {s(S_T0)}, {s(S_T0)}, {WS_FXCC}
    v_mov_b32 {v(V_T0)}, {s(S_ME)}
    v_mov_b32 {v(V_NONCE)}, {s(S_NONCE)}
    s_mov_b64 exec, 1
    buffer_store_dword {v(V_T0)}, {v(V_ZERO)}, {s(SRD_WS,4)}, {s(S_T0)} offen sc1
    """)
    if g.opts.get("tlb", 0):
        sh = g.opts.get("tlbs", 19)
        g(f"""
        s_mov_b64 exec, {(1 << min(16, (WS_SIZE >> sh) + 1)) - 1}
        v_lshlrev_b32 {v(V_T1)}, {sh}, {v(V_L)}
        v_add_u32 {v(V_T1)}, 64, {v(V_T1)}
        buffer_load_dword {v(254)}, {v(V_T1)}, {s(SRD_WS,4)}, 0 offen
        buffer_load_dword {v(255)}, {v(V_T1)}, {s(SRD_OUT,4)}, 0 offen
        """)
    g(f"""
    s_mov_b64 exec, -1
    s_and_b32 {s(S_TAG)}, {s(S_NONCE)}, 0xff
    s_bfe_u32 {s(S_TAG+1)}, {s(S_NONCE)}, 0x80008
    s_bfe_u32 {s(S_TAG+2)}, {s(S_NONCE)}, 0x80010
    s_lshr_b32 {s(S_TAG+3)}, {s(S_NONCE)}, 24
    """)


def flag_store(g, soff, rep):
    sk = g.label("nofl")
    g(f"""
    s_cmp_lg_u32 {s(S_W)}, 0
    s_cbranch_scc1 {sk}
    v_mul_u32_u24 {v(V_T0)}, {rep}, {v(V_L)}
    s_mov_b64 exec, 0xff
    buffer_store_dword {v(V_NONCE)}, {v(V_T0)}, {s(SRD_WS,4)}, {soff} offen sc1
    s_mov_b64 exec, -1
    {sk}:
    """)


def pa_eval(g):
    g(f"""
    v_and_b32 {v(V_T6)}, -8, {v(V_T7)}
    v_cmp_ne_u32 vcc, {s(S_NONCE)}, {v(V_T6)}
    s_mov_b32 {s(S_F1)}, vcc_lo
    v_cmp_ne_u32 vcc, {s(S_ME)}, {v(V_T7)}
    s_mov_b32 {s(S_SLOW)}, vcc_lo
    """)


def pa_wait(g, reg, name):
    lp, done = g.label(name), g.label(name + "_ok")
    g(f"""
    s_cmp_eq_u32 {s(reg)}, 0
    s_cbranch_scc1 {done}
    s_mov_b32 {s(S_SPIN)}, {SPIN_LIMIT}
    {lp}:
    buffer_load_dword {v(V_T7)}, {v(V_PA)}, {s(SRD_WS,4)}, 0 offen sc1
    s_waitcnt vmcnt(0)
    """)
    pa_eval(g)
    g(f"""
    s_cmp_eq_u32 {s(reg)}, 0
    s_cbranch_scc1 {done}
    s_sub_u32 {s(S_SPIN)}, {s(S_SPIN)}, 1
    s_cbranch_scc0 {lp}
    {done}:
    """)


def both_modes(g, emit):
    ls, le = g.label("slow"), g.label("join")
    g(f"""
    s_cmp_lg_u32 {s(S_SLOW)}, 0
    s_cbranch_scc1 {ls}
    """)
    emit(" sc1" if g.opts.get("allsc1", 0) else (" nt" if g.opts.get("fastnt", 0) else ""))
    g(f"s_branch {le}")
    g(f"{ls}:")
    emit(" sc1")
    g(f"{le}:")


S_WD0, S_WD1 = S_T6, S_T7
S_SPO = S_T4
S_WV, S_WVI = 0, 1
XR = V_MISC
VW = V_MISC + 8
VS = V_MISC + 12
RS = V_MISC + 16
FS = V_MISC + 20
V_XO = V_MISC + 14
S_XO = 26


def wchunk(g):
    g(f"s_mov_b32 m0, {s(S_WD1)}")
    g(f"s_add_u32 {s(S_WD1)}, {s(S_WD1)}, 16384")
    for q in range(4):
        g(f"buffer_load_dwordx4 {v(VW+q)}, {s(SRD_B,4)}, {s(S_WD0)} offen offset:{q*1024} lds")
    g(f"s_add_u32 {s(S_WD0)}, {s(S_WD0)}, {8*18432}")


def wvo_group(g, st, srd=SRD_WS):
    g(f"""
    s_add_u32 m0, {s(S_SIG2)}, {L_WVO + st*16384}
    s_add_u32 {s(S_T1)}, {s(S_WV)}, {st*16384}
    """)
    for q in range(4):
        g(f"buffer_load_dwordx4 {v(V_L16)}, {s(srd,4)}, {s(S_T1)} offen offset:{q*1024} sc1 lds")


SMR = [V_T2, V_T3, V_T4, V_T5]
S_RETRY = 70
NANQ = 220
NANQ2 = 232


def sample(dst):
    return f"buffer_load_dword {v(dst)}, {v(V_PS)}, {s(SRD_WS,4)}, 0 offen sc1"


S_CH, S_WSTEP, S_XSTEP, S_SIG2, S_XR = 68, 69, 70, 71, 72
S_X1O, S_FXO, S_STO = 73, 74, 75
A1 = [236, 237, 238]
C1 = [239, 240]
XA = 241


def row_dma(g, srd, vo, so, seg):
    g(f"buffer_load_dwordx4 {v(vo)}, {s(srd,4)}, {s(so)} offen lds")
    g(f"buffer_load_dwordx4 {v(vo+1)}, {s(srd,4)}, {s(so)} offen offset:1024 lds")


def p0_issue(g):
    g(f"""
    s_sub_u32 {s(SRD_A)}, {s(S_X)}, 1024
    s_subb_u32 {s(SRD_A+1)}, {s(S_X+1)}, 0
    s_mov_b32 {s(SRD_A+2)}, {1572864+1024}
    s_sub_u32 {s(SRD_B)}, {s(S_WQT)}, 4096
    s_subb_u32 {s(SRD_B+1)}, {s(S_WQT+1)}, 0
    s_mov_b32 {s(SRD_B+2)}, {884736+4096}
    """)
    g.stamp('x0', False)
    for seg in range(6):
        row_dma(g, SRD_A, V_XO, S_XO, seg)
        if seg < 5:
            g(f"s_add_u32 m0, m0, 2048")
            g(f"s_add_u32 {s(S_XO)}, {s(S_XO)}, 128")
    WT = g.opts.get("wt", 0)
    if WT:
        g(f"""
        s_mul_i32 {s(S_T0)}, {s(S_RB)}, 6
        s_add_u32 {s(S_T0)}, {s(S_T0)}, {s(S_CS)}
        s_lshl_b32 {s(S_T0)}, {s(S_T0)}, 2
        s_add_u32 {s(S_T0)}, {s(S_T0)}, {s(S_W)}
        s_mul_i32 {s(S_T1)}, {s(S_T0)}, 2304
        s_add_u32 {s(S_T1)}, {s(S_T1)}, 1536
        s_mul_i32 {s(S_T2)}, {s(S_T0)}, 768
        s_sub_u32 {s(S_T2)}, {s(S_T2)}, {384*768}
        s_cmp_lt_u32 {s(S_T0)}, 384
        s_cselect_b32 {s(S_T1)}, {s(S_T1)}, {s(S_T2)}
        s_cselect_b32 {s(S_M)}, {s(S_WQT)}, {s(S_WOT)}
        s_cselect_b32 {s(S_M+1)}, {s(S_WQT+1)}, {s(S_WOT+1)}
        v_lshlrev_b32 {v(V_T0)}, 7, {v(V_L)}
        v_add_u32 {v(V_T0)}, {s(S_T1)}, {v(V_T0)}
        s_mov_b64 exec, 63
        global_load_dword {v(255)}, {v(V_T0)}, {s(S_M,2)}
        s_mov_b64 exec, -1
        """)
    for _ in range(g.opts.get("c0", 1)):
        wchunk(g)
    g.stamp('dmaiss', False)


def p0_pre(g):
    S_CB = S_CS
    g(f"""
    v_lshrrev_b32 {v(V_T1)}, 3, {v(V_L)}
    v_mul_u32_u24 {v(V_T2)}, 2304, {v(V_T1)}
    v_and_b32 {v(V_T1)}, 2, {v(V_T1)}
    v_and_b32 {v(V_T3)}, 7, {v(V_L)}
    v_xor_b32 {v(V_T3)}, {v(V_T3)}, {v(V_T1)}
    v_lshl_add_u32 {v(V_T2)}, {v(V_T3)}, 4, {v(V_T2)}
    v_add_u32 {v(VW)}, 4096, {v(V_T2)}
    v_xor_b32 {v(V_T3)}, 64, {v(V_T2)}
    v_add_u32 {v(VW+1)}, {4096+18432-1024}, {v(V_T3)}
    v_add_u32 {v(VW+2)}, {4096+768-2048}, {v(V_T2)}
    v_add_u32 {v(VW+3)}, {4096+18432+768-3072}, {v(V_T3)}
    s_mul_i32 {s(S_WD0)}, {s(S_W)}, {2*18432}
    s_lshl_b32 {s(S_T1)}, {s(S_CB)}, 7
    s_add_u32 {s(S_WD0)}, {s(S_WD0)}, {s(S_T1)}
    s_lshl_b32 {s(S_WD1)}, {s(S_W)}, 12
    v_lshrrev_b32 {v(V_T0)}, 3, {v(V_L)}
    v_mul_u32_u24 {v(V_T2)}, 196608, {v(V_T0)}
    v_lshrrev_b32 {v(V_T0)}, 1, {v(V_T0)}
    v_and_b32 {v(V_T1)}, 7, {v(V_L)}
    v_xor_b32 {v(V_T1)}, {v(V_T1)}, {v(V_T0)}
    v_lshl_add_u32 {v(V_T2)}, {v(V_T1)}, 4, {v(V_T2)}
    v_add_u32 {v(V_XO)}, 1024, {v(V_T2)}
    v_xor_b32 {v(V_T2)}, 64, {v(V_T2)}
    v_add_u32 {v(V_XO+1)}, 768, {v(V_T2)}
    s_lshl_b32 {s(S_T0)}, {s(S_RB)}, 2
    s_add_u32 {s(S_T0)}, {s(S_T0)}, {s(S_W)}
    s_mul_i32 {s(S_XO)}, {s(S_T0)}, 1536
    s_lshl_b32 {s(S_SPO)}, {s(S_XO)}, 1
    s_mul_i32 {s(S_XR)}, {s(S_W)}, 12288
    s_add_u32 {s(S_XR)}, {s(S_XR)}, {L_WVO}
    s_mov_b32 m0, {s(S_XR)}
    """)


def p0_main(g):
    ACCQ, ACCK = V_ACC, V_ACC + 16
    SX, SXX = V_ACC + 40, V_ACC + 44
    SEL, NM, DB = V_BUF, V_BUF + 8, V_BUF + 16
    S_CB = S_CS
    common_consts(g)
    g(f"""
    v_lshrrev_b32 {v(V_T0)}, 1, {v(V_G)}
    v_lshlrev_b32 {v(V_T0)}, 12, {v(V_T0)}
    v_and_b32 {v(V_T1)}, 1, {v(V_G)}
    v_lshl_add_u32 {v(V_T0)}, {v(V_T1)}, 10, {v(V_T0)}
    v_lshrrev_b32 {v(V_T2)}, 2, {v(V_I)}
    v_lshl_add_u32 {v(V_T0)}, {v(V_T2)}, 7, {v(V_T0)}
    v_lshrrev_b32 {v(V_T2)}, 3, {v(V_I)}
    v_lshl_or_b32 {v(V_T2)}, {v(V_T1)}, 1, {v(V_T2)}
    v_lshl_add_u32 {v(V_T0)}, {v(V_T2)}, 5, {v(V_T0)}
    v_and_b32 {v(V_T2)}, 3, {v(V_I)}
    v_lshl_add_u32 {v(V_AD)}, {v(V_T2)}, 3, {v(V_T0)}
    v_xor_b32 {v(V_AD+1)}, 32, {v(V_AD)}
    v_xor_b32 {v(V_AD+2)}, 64, {v(V_AD)}
    v_xor_b32 {v(V_AD+3)}, 96, {v(V_AD)}
    v_cmp_eq_u32 s[4:5], 1, {v(V_T2)}
    v_cmp_eq_u32 s[6:7], 2, {v(V_T2)}
    v_cmp_eq_u32 s[8:9], 3, {v(V_T2)}
    v_and_b32 {v(V_T0)}, 7, {v(V_L)}
    v_lshl_add_u32 {v(V_T0)}, {v(V_G)}, 3, {v(V_T0)}
    v_lshlrev_b32 {v(VS)}, 4, {v(V_T0)}
    s_add_u32 {s(S_SPO)}, {s(S_SPO)}, {WS_SP}
    v_lshrrev_b32 {v(V_T0)}, 1, {v(V_I)}
    v_xor_b32 {v(V_T0)}, {v(V_T0)}, {v(V_G)}
    v_lshlrev_b32 {v(V_T0)}, 4, {v(V_T0)}
    v_lshl_add_u32 {v(V_T0)}, {v(V_I)}, 7, {v(V_T0)}
    v_add_u32 {v(V_T2)}, {s(S_XR)}, {v(V_T0)}
    v_xor_b32 {v(V_T3)}, 64, {v(V_T2)}
    s_lshl_b32 {s(S_T1)}, {s(S_CB)}, 11
    v_add_u32 {v(V_T4)}, {s(S_T1)}, {v(V_T2)}
    v_add_u32 {v(V_T5)}, {s(S_T1)}, {v(V_T3)}
    s_lshl_b32 {s(S_SIG2)}, {s(S_W)}, 12
    s_mul_i32 {s(S_WV)}, {s(S_CB)}, 49152
    s_add_u32 {s(S_WV)}, {s(S_WV)}, {s(S_SIG2)}
    s_add_u32 {s(S_WV)}, {s(S_WV)}, {WS_WVOT}
    s_lshl_b32 {s(S_T1)}, {s(S_CB)}, 9
    s_add_u32 {s(S_CH)}, {s(S_SPO)}, {s(S_T1)}
    """)
    g(f"""
    v_and_b32 {v(V_T0)}, 1, {v(V_I)}
    v_lshlrev_b32 {v(V_T0)}, 4, {v(V_T0)}
    v_mov_b32 {v(V_T1)}, 0x3f80
    v_lshlrev_b32 {v(V_T0)}, {v(V_T0)}, {v(V_T1)}
    v_cndmask_b32 {v(V_T0)}, 0, {v(V_T0)}, {s(S_DIAG,2)}
    v_and_b32 {v(V_T1)}, 2, {v(V_I)}
    v_cmp_eq_u32 vcc, 0, {v(V_T1)}
    v_mov_b32 {v(SEL+2)}, 0
    v_mov_b32 {v(SEL+3)}, 0
    v_cndmask_b32 {v(SEL)}, 0, {v(V_T0)}, vcc
    v_cndmask_b32 {v(SEL+1)}, {v(V_T0)}, 0, vcc
    v_mov_b32 {v(SEL+4)}, 0
    v_mov_b32 {v(SEL+5)}, 0
    v_mov_b32 {v(SEL+6)}, {v(SEL)}
    v_mov_b32 {v(SEL+7)}, {v(SEL+1)}
    """)
    p1_setup(g)
    for q in range(4):
        g(f"v_mov_b32 {v(NANQ+q)}, -1")
        g(f"v_mov_b32 {v(NANQ2+q)}, -1")
    C0, C1_ = g.opts.get("c0", 1), g.opts.get("c1", 2)
    order = [f"x{k//2}" for k in range(12)] + ["w"] * g.opts.get("wt", 0) + [f"A{j}" for j in range(C0) for _ in range(4)]
    for j in range(C0, C1_):
        wchunk(g)
        order += [f"A{j}"] * 4
    nonce_and_publish(g)
    order += ["t"] * (1 + 2 * g.opts.get("tlb", 0))

    pend = []
    ptag = []

    def queue(fn, tag, n):
        pend.extend(capture(g, fn))
        ptag.extend([tag] * n)

    def pop_vm():
        out = []
        while pend:
            x = pend.pop(0)
            out.append(x)
            if x.startswith("buffer") or x.startswith("global"):
                order.append(ptag.pop(0))
                if any(y.startswith("buffer") or y.startswith("global") for y in pend):
                    break
        return out

    def need(tag):
        last = len(order) - 1 - order[::-1].index(tag)
        return f"s_waitcnt vmcnt({len(order) - 1 - last})"
    def mtouch():
        g(f"""
        s_mov_b64 exec, 0xffffff
        global_load_dword {v(V_MISC+62)}, {v(V_MT)}, s[16:17]
        s_mov_b64 exec, -1
        """)
    if g.opts.get("mt", 2) == 1:
        mtouch()
        order.append("m")
    NQ = C1_ + 3
    PAJ = g.opts.get("paj", 4)

    def qchunk(j):
        queue(lambda: wchunk(g), f"A{j}", 4)

    def mark():
        for so in (S_X1O, S_WSTEP):
            g(f"buffer_store_dwordx4 {v(NANQ,4)}, {v(XA)}, {s(SRD_WS,4)}, {s(so)} offen sc1")

    def side():
        queue(lambda: g(f"buffer_load_dword {v(254)}, {v(VS)}, {s(SRD_WS,4)}, {s(S_CH)} offen sc1"), "c", 1)
        queue(lambda: g(f"buffer_load_dword {v(254)}, {v(XA+1)}, {s(SRD_WS,4)}, {s(S_STO)} offen sc1"), "c", 1)
        if not g.opts.get("nomark", 0):
            queue(mark, "c", 2)
        elif g.opts["nomark"] == 2:
            queue(lambda: [g(f"buffer_load_dword {v(254)}, {v(XA)}, {s(SRD_WS,4)}, {s(so)} offen sc1") for so in (S_X1O, S_WSTEP)], "c", 2)
    MK = g.opts.get("mk", 2)
    if MK == 3:
        g(f"buffer_load_dword {v(254)}, {v(VS)}, {s(SRD_WS,4)}, {s(S_CH)} offen sc1")
        order.append("c")
    if MK == 0:
        side()
        while pend:
            for x in pop_vm():
                g(x)
    for j in range(C1_, min(NQ, 6)):
        qchunk(j)
        if MK == 1 and j == C1_ + g.opts.get("mkj", 0):
            side()
    items = []
    for ks in range(12):
        xf = v(V_XF + 4 * ks, 4)
        pre = []
        if ks % 4 == 0:
            pre = [need(f"x{ks//2+1}")] + (capture(g, lambda: g.stamp('xarr0', False)) if ks == 0 else [])
        if ks % 4 == 2:
            pre += pop_vm()
        rd = [f"ds_read_b128 {xf}, {v(V_T2+(ks&1))} offset:{(ks>>1)*2048}"]
        if ks == 11:
            rd += [f"ds_read_b128 {v(XR,4)}, {v(V_T4)}", f"ds_read_b128 {v(XR+4,4)}, {v(V_T5)}"]
        cm = capture(g, lambda: (mfma32(g, v(SXX, 4), xf, xf, "0" if ks == 0 else None),
                                 mfma32(g, v(SX, 4), v(V_ONES, 4), xf, "0" if ks == 0 else None)))
        items.append((rd, cm, pre))
    pipelined(g, items, 6)
    g.stamp('xarr', False)
    g.nop(8)
    g(f"""
    v_mul_f32 {v(NM)}, {f2u(-1/384.):#x}, {v(SX)}
    v_mul_f32 {v(NM+1)}, {f2u(-1/384.):#x}, {v(SX)}
    v_mul_f32 {v(NM+2)}, {f2u(-1/384.):#x}, {v(SX)}
    v_mul_f32 {v(NM+3)}, {f2u(-1/384.):#x}, {v(SX)}
    v_cndmask_b32 {v(SXX)}, {v(SXX)}, {v(SXX+1)}, s[4:5]
    v_cndmask_b32 {v(SXX)}, {v(SXX)}, {v(SXX+2)}, s[6:7]
    """)
    fin = capture(g, lambda: (g(f"v_cndmask_b32 {v(SXX)}, {v(SXX)}, {v(SXX+3)}, s[8:9]"),
                              g(f"v_cndmask_b32 {v(SXX)}, 0, {v(SXX)}, {s(S_DIAG,2)}"),
                              xlane_sum(g, SXX, V_T0), mean_rstd(g, SX, SXX, V_MEAN, V_R)))
    LAG = 2
    for ks in range(12 + LAG):
        if ks < 12:
            d = DB + (ks % 4) * 8
            mfma32(g, v(d, 4), v(SEL, 4), v(V_XF + 4 * ks, 4), v(NM, 4))
            mfma32(g, v(d + 4, 4), v(SEL + 4, 4), v(V_XF + 4 * ks, 4), v(NM, 4))
        if ks < LAG or ks >= 12:
            for x in fin[:9]:
                g(x)
            if ks >= 12 and not fin:
                g.nop(2)
            fin = fin[9:]
        if ks >= LAG:
            d = DB + ((ks - LAG) % 4) * 8
            for q in range(4):
                g(f"v_cvt_pk_bf16_f32 {v(V_XF+4*(ks-LAG)+q)}, {v(d+2*q)}, {v(d+2*q+1)}")
        if ks % 2 == 1:
            for x in pop_vm():
                g(x)
    assert not fin
    g.stamp('cent', False)
    if g.opts.get("mt", 2) == 2:
        mtouch()
        order.append("m")

    for j in range(NQ, 6):
        qchunk(j)
    UNI = g.opts.get("uni", 0)
    if UNI:
        assert pend and ptag[-1] == "A5"
        k = len(pend) - next(i for i, x in enumerate(reversed(pend)) if x.startswith("s_mov_b32 m0")) - 1
        pend.insert(k, f"buffer_load_dword {v(V_T7)}, {v(V_PA)}, {s(SRD_WS,4)}, 0 offen sc1")
        ptag.insert(len(ptag) - 4, "p")
    if MK == 2:
        side()
    MT = g.opts.get("mt", 2)
    if MT == 3:
        queue(mtouch, "m", 1)
    SMP = [g.opts.get("s0", 70), g.opts.get("s1", 82), g.opts.get("s2", 94)]
    items = []
    nb = 0
    for j in range(6):
        for n, (kk, mat, sl) in enumerate([(kk, mat, sl) for kk in range(2) for mat in range(2) for sl in range(4)]):
            ks = 2 * j + kk
            b = V_BUF + (nb % 16) * 4
            nb += 1
            off = (ks % 6) * 8192 + mat * 2048
            rd = [f"ds_read_b64_tr_b16 {v(b,2)}, {v(V_AD+sl)} offset:{off}",
                  f"ds_read_b64_tr_b16 {v(b+2,2)}, {v(V_AD+sl)} offset:{off+512}"]
            acc = (ACCQ if mat == 0 else ACCK) + 4 * sl
            cm = [f"v_mfma_f32_16x16x32_bf16 {v(acc,4)}, {v(b,4)}, {v(V_XF+4*ks,4)}, {'0' if ks == 0 else v(acc,4)}"]
            pre = []
            if n == 0:
                pre += [need(f"A{j}"), "s_barrier"]
                pre += capture(g, lambda: g.stamp(f'chunk{j}', False))
                if j == 3:
                    pre += [f"v_add_u32 {v(V_AD+q)}, 49152, {v(V_AD+q)}" for q in range(4)]
                if UNI and j == 5:
                    pre += capture(g, lambda: pa_eval(g))
                if j == g.opts.get("pj", 2) and not UNI:
                    pre.append(f"buffer_load_dword {v(V_T7)}, {v(V_PA)}, {s(SRD_WS,4)}, 0 offen sc1")
                    order.append("p")
            if 16 * j + n == g.opts.get("s0", 86):
                assert not pend
                pre += [sample(V_T5)] if UNI else ["s_waitcnt vmcnt(0)", sample(V_T5)] + capture(g, lambda: pa_eval(g))
            if n % 3 == 1:
                x = pop_vm()
                pre += x
            items.append([rd, cm, pre])
    assert not pend
    QF, KF = V_ACC + 32, V_ACC + 40
    pipelined(g, items, 14, group=1)
    for i in range(8):
        g(f"v_cvt_pk_bf16_f32 {v(QF+i)}, {v(ACCQ+2*i)}, {v(ACCQ+2*i+1)}")
    for i in range(8):
        g(f"v_cvt_pk_bf16_f32 {v(KF+i)}, {v(ACCK+2*i)}, {v(ACCK+2*i+1)}")
    SS = V_BUF + 32
    g.nop(1)
    mfma32(g, v(SS, 4), v(KF, 4), v(QF, 4), "0")
    mfma32(g, v(SS, 4), v(KF + 4, 4), v(QF + 4, 4))
    pa_wait(g, S_F1, "xcc")
    g.nop(6)
    for r in range(4):
        g(f"v_bfi_b32 {v(SS+r)}, {v(V_MASK)}, {v(SS+r)}, {s(S_TAG+r)}")
    g(f"s_mov_b64 exec, {s(S_VALID,2)}")
    both_modes(g, lambda sc: g(f"buffer_store_dwordx4 {v(SS,4)}, {v(VS)}, {s(SRD_WS,4)}, {s(S_CH)} offen{sc}"))
    g("s_mov_b64 exec, -1")
    g.stamp('sstored')


CSL = V_BUF


def kpos(g, q, scale, base):
    g(f"""
    s_add_u32 {s(S_T1)}, {s(S_RHO)}, {q}
    s_cmp_ge_u32 {s(S_T1)}, 12
    s_cselect_b32 {s(S_T2)}, 12, 0
    s_sub_u32 {s(S_T1)}, {s(S_T1)}, {s(S_T2)}
    s_mul_i32 {s(S_T1)}, {s(S_T1)}, {scale}
    s_add_u32 m0, {s(S_T1)}, {base}
    """)


def ws2_dma(g):
    for c in range(3):
        g(f"buffer_load_dwordx2 {v(CSL+4*c,2)}, {v(V_L8)}, {s(SRD_WS,4)}, {s(S_CP0 if c < 2 else S_CP1)} offen offset:{c*512} sc1")
    for q in range(3):
        kpos(g, q, 3072, 0)
        g(f"s_add_u32 {s(S_T1)}, {s(S_WD0)}, {q*6144}")
        g(f"s_add_u32 {s(S_T2)}, {s(S_WD1)}, {q*6144}")
        g(f"buffer_load_dwordx4 {v(V_L16)}, {s(SRD_WS,4)}, {s(S_T1)} offen sc1 lds")
        g(f"buffer_load_dwordx4 {v(V_L16)}, {s(SRD_WS,4)}, {s(S_T1)} offen offset:1024 sc1 lds")
        g(f"buffer_load_dwordx4 {v(V_L16)}, {s(SRD_WS,4)}, {s(S_T2)} offen offset:2048 sc1 lds")


def p1_setup(g):
    S_CB = S_CS
    g(f"""
    v_add_u32 {v(A1[0])}, {L_WVO}, {v(V_L16)}
    v_lshlrev_b32 {v(V_T0)}, 3, {v(V_I)}
    s_lshl_b32 {s(S_T0)}, {s(S_W)}, 7
    s_add_u32 {s(S_T0)}, {s(S_T0)}, {L_SG}
    v_add_u32 {v(A1[2])}, {s(S_T0)}, {v(V_T0)}
    v_and_b32 {v(V_T0)}, 7, {v(V_I)}
    v_lshrrev_b32 {v(V_T1)}, 3, {v(V_I)}
    v_lshl_add_u32 {v(V_T1)}, {v(V_G)}, 3, {v(V_T1)}
    s_lshl_b32 {s(S_T1)}, {s(S_W)}, 1
    v_add_u32 {v(V_T1)}, {s(S_T1)}, {v(V_T1)}
    v_xor_b32 {v(V_T1)}, {v(V_T1)}, {v(V_T0)}
    v_lshlrev_b32 {v(V_T1)}, 4, {v(V_T1)}
    v_lshl_add_u32 {v(V_T1)}, {v(V_T0)}, 10, {v(V_T1)}
    v_add_u32 {v(A1[1])}, {L_T}, {v(V_T1)}
    v_xor_b32 {v(V_T0)}, {s(S_T1)}, {v(V_L)}
    v_lshlrev_b32 {v(V_T0)}, 4, {v(V_T0)}
    s_lshl_b32 {s(S_T2)}, {s(S_W)}, 11
    s_add_u32 {s(S_T2)}, {s(S_T2)}, {L_T}
    v_add_u32 {v(C1[0])}, {s(S_T2)}, {v(V_T0)}
    v_xor_b32 {v(C1[1])}, 16, {v(C1[0])}
    v_lshrrev_b32 {v(V_T0)}, 3, {v(V_L)}
    v_lshlrev_b32 {v(V_T0)}, 8, {v(V_T0)}
    v_and_b32 {v(V_T1)}, 7, {v(V_L)}
    v_lshl_add_u32 {v(XA)}, {v(V_T1)}, 4, {v(V_T0)}
    s_mul_i32 {s(S_X1O)}, {s(S_W)}, {2*196608}
    s_lshr_b32 {s(S_T1)}, {s(S_RB)}, 1
    s_mul_i32 {s(S_T1)}, {s(S_T1)}, 12288
    s_add_u32 {s(S_X1O)}, {s(S_X1O)}, {s(S_T1)}
    s_and_b32 {s(S_T1)}, {s(S_RB)}, 1
    s_lshl_b32 {s(S_T1)}, {s(S_T1)}, 7
    s_add_u32 {s(S_X1O)}, {s(S_X1O)}, {s(S_T1)}
    s_lshl_b32 {s(S_T1)}, {s(S_CB)}, 11
    s_add_u32 {s(S_X1O)}, {s(S_X1O)}, {s(S_T1)}
    s_add_u32 {s(S_X1O)}, {s(S_X1O)}, {WS_X1}
    s_add_u32 {s(S_WSTEP)}, {s(S_X1O)}, 196608
    s_mul_i32 {s(S_FXO)}, {s(S_RB)}, 6
    s_add_u32 {s(S_FXO)}, {s(S_FXO)}, {s(S_CB)}
    s_lshl_b32 {s(S_T1)}, {s(S_FXO)}, 2
    s_lshl_b32 {s(S_FXO)}, {s(S_FXO)}, 7
    s_add_u32 {s(S_STO)}, {s(S_FXO)}, {WS_STX}
    v_and_b32 {v(V_T0)}, 7, {v(V_L)}
    v_mul_u32_u24 {v(V_T0)}, {6*32*128}, {v(V_T0)}
    v_and_b32 {v(V_T1)}, -8, {v(V_L)}
    v_add_u32 {v(XA+1)}, {v(V_T0)}, {v(V_T1)}
    v_lshlrev_b32 {v(XA+2)}, 3, {v(V_L)}
    v_add_u32 {v(XA+2)}, {L_SG}, {v(XA+2)}
    """)
    if g.opts.get("mt", 1):
        g(f"""
    s_mul_i32 {s(S_T1)}, {s(S_RQ)}, 6
    s_add_u32 {s(S_T1)}, {s(S_T1)}, {s(S_CB)}
    s_lshl_b32 {s(S_T1)}, {s(S_T1)}, 2
    s_add_u32 {s(S_T1)}, {s(S_T1)}, {s(S_W)}
    s_bfe_u32 {s(S_T2)}, {s(S_G8)}, 0x10001
    s_and_b32 {s(S_T3)}, {s(S_G8)}, 1
    v_mul_u32_u24 {v(V_T0)}, 43, {v(V_L)}
    v_lshrrev_b32 {v(V_T0)}, 8, {v(V_T0)}
    v_mul_u32_u24 {v(V_T0)}, {2304-768}, {v(V_T0)}
    v_lshl_add_u32 {v(V_MT)}, {v(V_L)}, 7, {v(V_T0)}
    v_mul_u32_u24 {v(V_T0)}, 86, {v(V_L)}
    v_lshrrev_b32 {v(V_T0)}, 8, {v(V_T0)}
    v_mul_u32_u24 {v(V_T0)}, {768-384}, {v(V_T0)}
    v_lshl_add_u32 {v(V_T1)}, {v(V_L)}, 7, {v(V_T0)}
    s_mov_b32 s16, {s(S_WQS)}
    s_mov_b32 s17, {s(S_WQS+1)}
    s_cmp_ge_u32 {s(S_T1)}, 48
    s_cbranch_scc1 L_mt_b
    s_mul_i32 {s(S_T2)}, {s(S_T2)}, {192*2304}
    s_mul_i32 {s(S_T1)}, {s(S_T1)}, {4*2304}
    s_add_u32 {s(S_T1)}, {s(S_T1)}, {s(S_T2)}
    s_cmp_ge_u32 {s(S_G8)}, 4
    s_cselect_b32 {s(S_T2)}, 1536, 0
    s_add_u32 {s(S_T1)}, {s(S_T1)}, {s(S_T2)}
    s_branch L_mt_e
    L_mt_b:
    s_sub_u32 {s(S_T1)}, {s(S_T1)}, 48
    s_cmp_ge_u32 {s(S_G8)}, 4
    s_cbranch_scc1 L_mt_c
    s_mul_i32 {s(S_T3)}, {s(S_T3)}, {192*2304}
    s_mul_i32 {s(S_T1)}, {s(S_T1)}, {4*2304}
    s_add_u32 {s(S_T1)}, {s(S_T1)}, {s(S_T3)}
    s_add_u32 {s(S_T1)}, {s(S_T1)}, 768
    s_branch L_mt_e
    L_mt_c:
    s_mul_i32 {s(S_T3)}, {s(S_T3)}, 384
    s_mul_i32 {s(S_T1)}, {s(S_T1)}, {8*768}
    s_add_u32 {s(S_T1)}, {s(S_T1)}, {s(S_T3)}
    s_mov_b32 s16, {s(S_WOS)}
    s_mov_b32 s17, {s(S_WOS+1)}
    v_mov_b32 {v(V_MT)}, {v(V_T1)}
    L_mt_e:
    v_add_u32 {v(V_MT)}, {s(S_T1)}, {v(V_MT)}
        """)


V_MT = 245


def p1(g):
    Z = V_ACC
    CS = V_ACC + 16
    XC = V_ACC + 20

    def shadow():
        g(f"v_lshlrev_b32 {v(V_T0)}, 4, {v(V_G)}")
        for e in range(4):
            g(f"ds_bpermute_b32 {v(RS+e)}, {v(V_T0)}, {v(V_R)} offset:{4*e}")
        for m in range(2):
            for par in range(2):
                for r in range(4):
                    src = XR + 4 * m + 2 * par + (r >> 1)
                    d = XC + (2 * m + par) * 4 + r
                    if r & 1:
                        g(f"v_and_b32 {v(d)}, 0xffff0000, {v(src)}")
                    else:
                        g(f"v_lshlrev_b32 {v(d)}, 16, {v(src)}")
        g(f"v_mul_f32 {v(V_T1)}, {f2u(SCALE_LOG2E):#x}, {v(V_R)}")
        g("s_waitcnt lgkmcnt(0)")
        for e in range(4):
            g(f"v_mul_f32 {v(FS+e)}, {v(V_T1)}, {v(RS+e)}")
        p2_setup(g)
    AOP = VW
    SPR = [V_ACC + 36, V_ACC + 40, V_ACC + 44, 220, 224, 248]

    def sloads():
        for c in range(6):
            g(f"buffer_load_dwordx4 {v(SPR[c],4)}, {v(VS)}, {s(SRD_WS,4)}, {s(S_SPO)} offen offset:{c*512} sc1")

    def scheck():
        for c in range(6):
            for r in range(4):
                g(f"v_xor_b32 {v(SPR[c]+r)}, {s(S_TAG+r)}, {v(SPR[c]+r)}")
            if c == 0:
                g(f"v_or_b32 {v(V_T2)}, {v(SPR[0])}, {v(SPR[0]+1)}")
            else:
                g(f"v_or3_b32 {v(V_T2)}, {v(V_T2)}, {v(SPR[c])}, {v(SPR[c]+1)}")
            g(f"v_or3_b32 {v(V_T2)}, {v(V_T2)}, {v(SPR[c]+2)}, {v(SPR[c]+3)}")
        g(f"v_and_b32 {v(V_T2)}, 0xff, {v(V_T2)}")

    def softmax(pk):
        T = SPR[5]
        if pk:
            for c in (1, 3, 5):
                for h in range(2):
                    g(f"v_pk_add_f32 {v(SPR[c]+2*h,2)}, {v(SPR[c]+2*h,2)}, {v(SPR[c-1]+2*h,2)}")
            for c in (3, 5):
                for h in range(2):
                    g(f"v_pk_add_f32 {v(SPR[c]+2*h,2)}, {v(SPR[c]+2*h,2)}, {v(SPR[c-2]+2*h,2)}")
        else:
            for c in (1, 3, 5):
                for r in range(4):
                    g(f"v_add_f32 {v(SPR[c]+r)}, {v(SPR[c]+r)}, {v(SPR[c-1]+r)}")
            for c in (3, 5):
                for r in range(4):
                    g(f"v_add_f32 {v(SPR[c]+r)}, {v(SPR[c]+r)}, {v(SPR[c-2]+r)}")
        for r in range(4):
            g(f"v_mul_f32 {v(T+r)}, {v(T+r)}, {v(FS+r)}")
        g(f"""
        v_max3_f32 {v(V_T0)}, {v(T)}, {v(T+1)}, {v(T+2)}
        v_max_f32 {v(V_T0)}, {v(V_T0)}, {v(T+3)}
        v_mov_b32 {v(V_T1)}, {v(V_T0)}
        s_nop 1
        v_permlane16_swap_b32 {v(V_T0)}, {v(V_T1)}
        s_nop 0
        v_max_f32 {v(V_T0)}, {v(V_T0)}, {v(V_T1)}
        """)
        for r in range(4):
            g(f"v_sub_f32 {v(T+r)}, {v(T+r)}, {v(V_T0)}")
        for r in range(4):
            g(f"v_exp_f32 {v(T+r)}, {v(T+r)}")
        g(f"""
        s_nop 0
        v_add_f32 {v(V_T0)}, {v(T)}, {v(T+1)}
        v_add_f32 {v(V_T1)}, {v(T+2)}, {v(T+3)}
        v_add_f32 {v(V_T0)}, {v(V_T0)}, {v(V_T1)}
        v_mov_b32 {v(V_T1)}, {v(V_T0)}
        v_mul_f32 {v(T)}, {v(T)}, {v(RS)}
        v_mul_f32 {v(T+1)}, {v(T+1)}, {v(RS+1)}
        v_permlane16_swap_b32 {v(V_T0)}, {v(V_T1)}
        v_mul_f32 {v(T+2)}, {v(T+2)}, {v(RS+2)}
        v_add_f32 {v(V_T0)}, {v(V_T0)}, {v(V_T1)}
        v_rcp_f32 {v(V_T0)}, {v(V_T0)}
        v_mul_f32 {v(T+3)}, {v(T+3)}, {v(RS+3)}
        v_cndmask_b32 {v(V_T0)}, 0, {v(V_T0)}, {s(S_VALID,2)}
        """)
        for r in range(4):
            g(f"v_mul_f32 {v(T+r)}, {v(T+r)}, {v(V_T0)}")
        g(f"""
        v_cvt_pk_bf16_f32 {v(AOP)}, {v(T)}, {v(T+1)}
        v_cvt_pk_bf16_f32 {v(AOP+1)}, {v(T+2)}, {v(T+3)}
        """)
    NS = 3 if g.opts.get("mk", 2) == 3 else 0

    def side3():
        if NS:
            for so in (S_X1O, S_WSTEP):
                g(f"buffer_store_dwordx4 {v(NANQ2,4)}, {v(XA)}, {s(SRD_WS,4)}, {s(so)} offen sc1")
            g(f"buffer_load_dword {v(254)}, {v(XA+1)}, {s(SRD_WS,4)}, {s(S_STO)} offen sc1")
    if not g.opts.get("uni", 0):
        g(f"""
        s_waitcnt vmcnt(1)
        v_cmp_ne_u32 vcc, {s(S_NONCE)}, {v(V_T5)}
        s_cbranch_vccz L_wvo_go
        """)
    sh = capture(g, shadow)
    SPL = g.opts.get("spl", 40)
    for x in sh[:SPL]:
        g(x)
    if g.opts.get("uni", 0) != 2:
        g(sample(V_T5))
    for x in sh[SPL:]:
        g(x)
    sloads()
    g(f"""
    s_waitcnt vmcnt(6)
    v_cmp_ne_u32 vcc, {s(S_NONCE)}, {v(V_T5)}
    s_cbranch_vccz L_wvo_l2
    """)
    poll(g, V_PS, "0", s(S_NONCE), "wvo", g.opts.get("slp", 4))
    g("L_wvo_l2:")
    g.stamp('wlate')
    for st in range(3):
        wvo_group(g, st)
    side3()
    g(f"s_waitcnt vmcnt({12 + NS})")
    scheck()
    g(f"""
    v_cmp_ne_u32 vcc, 0, {v(V_T2)}
    s_or_b32 {s(S_WVI)}, vcc_lo, vcc_hi
    s_cbranch_scc1 L_wvo_on
    """)
    softmax(True)
    g("s_branch L_wvo_on")
    g("L_wvo_go:")
    for st in range(3):
        wvo_group(g, st)
    side3()
    shadow()
    g(f"s_mov_b32 {s(S_WVI)}, 1")
    g("L_wvo_on:")
    late = capture(g, sloads)
    nl = NS
    g.stamp('wvoflag')
    fill = ["s_waitcnt vmcnt(0)"] + capture(g, lambda: (scheck(), softmax(g.opts.get('sfill', 48) >= 48)))
    items = []
    for ks in range(12):
        for c in range(4):
            n = ks * 4 + c
            b = V_BUF + (n % 16) * 4
            rd = [f"ds_read_b128 {v(b,4)}, {v(A1[0])} offset:{ks*4096+c*1024}"]
            cc = "0" if ks == 0 else v(Z + 4 * c, 4)
            cm = [f"v_mfma_f32_16x16x32_bf16 {v(Z+4*c,4)}, {v(V_XF+4*ks,4)}, {v(b,4)}, {cc}"]
            pre = []
            if ks % 4 == 0 and c == 0:
                pre = [f"s_waitcnt vmcnt({8-ks+nl})", "s_barrier"] + capture(g, lambda: g.stamp(f'wvo{ks//4}', False))
            if late and n % 2 == 1 and n >= g.opts.get("sl0", 1):
                pre.append(late.pop(0))
                nl += 1
            if n >= g.opts.get("sfill", 48):
                cm += fill[:2]
                fill = fill[2:]
            items.append((rd, cm, pre))
    pipelined(g, items, 10, group=1)
    ZB = V_BUF + 8
    g(f"""
    s_mov_b64 vcc, 0
    s_cmp_eq_u32 {s(S_WVI)}, 0
    s_cbranch_scc1 L_s_have
    """)
    for x in fill:
        g(x)
    g(f"""
    v_cmp_ne_u32 vcc, 0, {v(V_T2)}
    L_s_have:
    s_nop 1
    """)
    for c in range(4):
        g(f"v_cvt_pk_bf16_f32 {v(ZB+2*c)}, {v(Z+4*c)}, {v(Z+4*c+1)}")
        g(f"v_cvt_pk_bf16_f32 {v(ZB+2*c+1)}, {v(Z+4*c+2)}, {v(Z+4*c+3)}")
    g.stamp('zdone')
    g(f"""
    s_cbranch_vccz L_sok
    s_mov_b32 {s(S_SPIN)}, {SPIN_LIMIT}
    L_spoll:
    """)
    sloads()
    g("s_waitcnt vmcnt(0)")
    scheck()
    g(f"""
    v_cmp_ne_u32 vcc, 0, {v(V_T2)}
    s_cbranch_vccz L_sre
    s_sub_u32 {s(S_SPIN)}, {s(S_SPIN)}, 1
    s_cbranch_scc0 L_spoll
    L_sre:
    """)
    softmax(True)
    g.nop(2)
    g("L_sok:")
    g("s_waitcnt vmcnt(0)")
    g.stamp('sok')
    g(f"buffer_load_dword {v(V_T7)}, {v(V_PB)}, {s(SRD_WS,4)}, 0 offen sc1")
    for c in range(4):
        mfma16(g, v(XC + 4 * c, 4), v(ZB + 2 * c, 2), v(AOP, 2))
    g.nop(5)
    OB = V_BUF + 48
    for m in range(2):
        for i in range(4):
            g(f"v_cvt_pk_bf16_f32 {v(OB+4*m+i)}, {v(XC+8*m+2*i)}, {v(XC+8*m+2*i+1)}")
        g(f"ds_write_b128 {v(A1[1])}, {v(OB+4*m,4)} offset:{m*512}")
    S1, S2 = Z, Z + 4
    mfma32(g, v(S2, 4), v(OB, 4), v(OB, 4), "0")
    mfma32(g, v(S1, 4), v(V_ONES, 4), v(OB, 4), "0")
    mfma32(g, v(S2, 4), v(OB + 4, 4), v(OB + 4, 4))
    mfma32(g, v(S1, 4), v(V_ONES, 4), v(OB + 4, 4))
    g.nop(7)
    g(f"""
    v_cndmask_b32 {v(S2)}, {v(S2)}, {v(S2+1)}, s[4:5]
    v_cndmask_b32 {v(S2)}, {v(S2)}, {v(S2+2)}, s[6:7]
    v_cndmask_b32 {v(S1+1)}, {v(S2)}, {v(S2+3)}, s[8:9]
    s_mov_b64 exec, {s(S_DIAG,2)}
    ds_write_b64 {v(A1[2])}, {v(S1,2)}
    s_mov_b64 exec, -1
    s_waitcnt lgkmcnt(0)
    s_barrier
    ds_read_b128 {v(OB,4)}, {v(C1[0])}
    ds_read_b128 {v(OB+4,4)}, {v(C1[1])} offset:1024
    ds_read_b64 {v(V_T0,2)}, {v(XA+2)}
    """)
    if g.opts.get("dbgearly", 0) & 4:
        g(f"""
        s_waitcnt lgkmcnt(0)
        v_bfi_b32 {v(V_T2)}, {v(V_MASK)}, {v(V_T0)}, {s(S_TAG)}
        v_bfi_b32 {v(V_T3)}, {v(V_MASK)}, {v(V_T1)}, {s(S_TAG+1)}
        buffer_store_dwordx2 {v(V_T2,2)}, {v(XA+1)}, {s(SRD_WS,4)}, {s(S_STO)} offen sc1
        s_and_b32 {s(S_T0)}, {s(S_RB)}, 3
        s_cmp_eq_u32 {s(S_T0)}, 1
        s_cbranch_scc0 L_dbg1
        s_sleep 127
        L_dbg1:
        s_waitcnt vmcnt(0)
        buffer_load_dword {v(V_T7)}, {v(V_PB)}, {s(SRD_WS,4)}, 0 offen sc1
        """)
    g(f"""
    s_waitcnt lgkmcnt(2)
    buffer_store_dwordx4 {v(OB,4)}, {v(XA)}, {s(SRD_WS,4)}, {s(S_X1O)} offen sc1
    s_waitcnt lgkmcnt(1)
    buffer_store_dwordx4 {v(OB+4,4)}, {v(XA)}, {s(SRD_WS,4)}, {s(S_WSTEP)} offen sc1
    """)
    if g.opts.get("nomark", 0):
        g(f"""
        s_waitcnt vmcnt(2)
        v_cmp_ne_u32 vcc, {s(S_NONCE)}, {v(V_T7)}
        s_cbranch_vccnz L_nm_late
        """)
        ws2_dma(g)
        g(f"""
        s_waitcnt vmcnt(12)
        s_mov_b32 {s(S_T0)}, 0
        s_branch L_nm_j
        L_nm_late:
        s_waitcnt vmcnt(0)
        s_mov_b32 {s(S_T0)}, 1
        L_nm_j:
        s_barrier
        s_cmp_lg_u32 {s(S_W)}, 0
        s_cbranch_scc1 L_nm_k
        s_waitcnt lgkmcnt(0)
        v_bfi_b32 {v(V_T0)}, {v(V_MASK)}, {v(V_T0)}, {s(S_TAG)}
        v_bfi_b32 {v(V_T1)}, {v(V_MASK)}, {v(V_T1)}, {s(S_TAG+1)}
        buffer_store_dwordx2 {v(V_T0,2)}, {v(XA+1)}, {s(SRD_WS,4)}, {s(S_STO)} offen sc1
        """)
        g.stamp('x1st')
        g(f"""
        L_nm_k:
        s_cmp_eq_u32 {s(S_T0)}, 0
        s_cbranch_scc1 L_p2c
        """)
    else:
        g(f"""
    s_cmp_lg_u32 {s(S_W)}, 0
    s_cbranch_scc1 L_nostx
    s_waitcnt lgkmcnt(0)
    v_bfi_b32 {v(V_T0)}, {v(V_MASK)}, {v(V_T0)}, {s(S_TAG)}
    v_bfi_b32 {v(V_T1)}, {v(V_MASK)}, {v(V_T1)}, {s(S_TAG+1)}
    buffer_store_dwordx2 {v(V_T0,2)}, {v(XA+1)}, {s(SRD_WS,4)}, {s(S_STO)} offen sc1
        """)
        g.stamp('x1st')
        g(f"""
    s_waitcnt vmcnt(3)
    s_branch L_stx2
    L_nostx:
    s_waitcnt vmcnt(2)
    L_stx2:
    v_cmp_ne_u32 vcc, {s(S_NONCE)}, {v(V_T7)}
    s_cbranch_vccz L_p2
    """)
    poll(g, V_PB, "0", s(S_NONCE), "pws", g.opts.get("slp", 4))
    g.stamp('late')


S_TILE, S_PROD, S_KB, S_NB = S_T4, S_T5, S_T6, S_T7
S_PA, S_PB, S_PS = S_F2, S_SLOW, 26
S_PO0, S_PO1, S_PF = 16, 17, 25
V_PAO = V_MISC + 14
S_PU, S_PW = 69, 70
S_PM = 68
L_PA = 49152


def prod_pre(g):
    g(f"""
    s_lshl_b32 {s(S_T0)}, {s(S_RQ)}, 1
    s_add_u32 {s(S_T0)}, {s(S_T0)}, {s(S_CS)}
    s_sub_u32 {s(S_T0)}, {s(S_T0)}, 6
    s_mul_i32 {s(S_TILE)}, {s(S_G8)}, 5
    s_add_u32 {s(S_TILE)}, {s(S_TILE)}, {s(S_T0)}
    s_sub_u32 {s(S_TILE)}, {s(S_TILE)}, 3
    s_cmp_ge_u32 {s(S_TILE)}, 36
    s_cselect_b32 {s(S_TILE)}, 60, {s(S_TILE)}
    s_mul_i32 {s(S_T1)}, {s(S_G8)}, 3
    s_add_u32 {s(S_T1)}, {s(S_T1)}, {s(S_T0)}
    s_add_u32 {s(S_T1)}, {s(S_T1)}, 36
    s_cmp_lt_u32 {s(S_T0)}, 3
    s_cselect_b32 {s(S_TILE)}, {s(S_T1)}, {s(S_TILE)}
    s_mul_hi_u32 {s(S_KB)}, {s(S_TILE)}, {(2**32 + 5)//6}
    s_mul_i32 {s(S_T0)}, {s(S_KB)}, 6
    s_sub_u32 {s(S_NB)}, {s(S_TILE)}, {s(S_T0)}
    s_sub_u32 {s(S_T0)}, {s(S_KB)}, 4
    s_lshr_b32 {s(S_PROD)}, {s(S_T0)}, 1
    s_and_b32 {s(S_T0)}, {s(S_KB)}, 1
    s_mul_i32 {s(S_T0)}, {s(S_T0)}, 3
    s_cmp_lt_u32 {s(S_TILE)}, 36
    s_cselect_b32 {s(S_PROD)}, 0, {s(S_PROD)}
    s_cselect_b32 {s(S_KB)}, {s(S_KB)}, {s(S_T0)}
    s_lshl_b32 {s(S_PA)}, {s(S_KB)}, 2
    s_add_u32 {s(S_PA)}, {s(S_PA)}, {s(S_W)}
    s_mul_i32 {s(S_PA)}, {s(S_PA)}, {16*2304}
    s_lshl_b32 {s(S_T1)}, {s(S_NB)}, 2
    s_add_u32 {s(S_T1)}, {s(S_T1)}, {s(S_W)}
    s_mul_i32 {s(S_T1)}, {s(S_T1)}, {16*2304}
    s_add_u32 {s(S_T1)}, {s(S_T1)}, 768
    s_mul_i32 {s(S_T2)}, {s(S_W)}, {2*6144}
    s_lshl_b32 {s(S_T3)}, {s(S_NB)}, 7
    s_add_u32 {s(S_T2)}, {s(S_T2)}, {s(S_T3)}
    s_mov_b32 {s(S_T3)}, {8*6144}
    s_cmp_eq_u32 {s(S_PROD)}, 1
    s_cselect_b32 {s(S_PB)}, {s(S_T1)}, {s(S_T2)}
    s_cselect_b32 {s(S_PS)}, 128, {s(S_T3)}
    s_cselect_b32 {s(S_T0)}, 0, 1536
    s_cselect_b32 {s(S_T1)}, 1, 0
    s_cselect_b32 {s(S_T2)}, 7, 2
    s_movk_i32 {s(S_T3)}, 768
    s_cselect_b32 {s(S_T3)}, 2304, {s(S_T3)}
    s_add_u32 {s(S_PA)}, {s(S_PA)}, {s(S_T0)}
    v_lshrrev_b32 {v(V_T1)}, 3, {v(V_L)}
    v_mul_u32_u24 {v(V_T2)}, {s(S_T3)}, {v(V_T1)}
    v_lshrrev_b32 {v(V_T1)}, {s(S_T1)}, {v(V_T1)}
    v_and_b32 {v(V_T1)}, {s(S_T2)}, {v(V_T1)}
    v_and_b32 {v(V_T3)}, 7, {v(V_L)}
    v_xor_b32 {v(V_T3)}, {v(V_T3)}, {v(V_T1)}
    v_lshl_add_u32 {v(VW)}, {v(V_T3)}, 4, {v(V_T2)}
    v_xor_b32 {v(V_T3)}, 64, {v(VW)}
    s_lshl_b32 {s(S_T3)}, {s(S_T3)}, 3
    s_sub_u32 {s(S_T3)}, {s(S_T3)}, 1024
    v_add_u32 {v(VW+1)}, {s(S_T3)}, {v(V_T3)}
    v_lshrrev_b32 {v(V_T1)}, 3, {v(V_L)}
    v_mul_u32_u24 {v(V_T2)}, 2304, {v(V_T1)}
    v_lshrrev_b32 {v(V_T1)}, 1, {v(V_T1)}
    v_and_b32 {v(V_T3)}, 7, {v(V_L)}
    v_xor_b32 {v(V_T3)}, {v(V_T3)}, {v(V_T1)}
    v_lshl_add_u32 {v(V_PAO)}, {v(V_T3)}, 4, {v(V_T2)}
    v_xor_b32 {v(V_T3)}, 64, {v(V_PAO)}
    v_add_u32 {v(V_PAO+1)}, {18432-1024}, {v(V_T3)}
    s_lshl_b32 {s(S_PM)}, {s(S_W)}, 11
    """)


def aslot(j, t, nt):
    return L_PA + ((j % 4) * 3 + t) * 8192 if nt == 3 else L_PA + j * 8192


def prod_unit(g, j, nt):
    g(f"s_add_u32 m0, {s(S_PM)}, {j*8192}")
    g(f"s_add_u32 {s(S_T0)}, {s(S_PA)}, {j*128}")
    g(f"buffer_load_dwordx4 {v(VW)}, {s(SRD_B,4)}, {s(S_PB)} offen lds")
    g(f"buffer_load_dwordx4 {v(VW+1)}, {s(SRD_B,4)}, {s(S_PB)} offen offset:1024 lds")
    for t in range(nt):
        g(f"s_add_u32 m0, {s(S_PM)}, {aslot(j, t, nt)}")
        g(f"s_add_u32 {s(S_PB)}, {s(S_PB)}, {s(S_PS)}" if t == 0 else f"s_add_u32 {s(S_T0)}, {s(S_T0)}, {64*2304}")
        row_dma(g, SRD_A, V_PAO, S_T0, j)


def products(g):
    g(f"""
    L_products:
    """)
    prod_pre(g)
    g(f"""
    s_waitcnt lgkmcnt(0)
    s_load_dword {s(S_NONCE)}, {s(S_WS,2)}, {WS_NONCE}
    s_cmp_eq_u32 {s(S_PROD)}, 0
    s_cselect_b32 {s(SRD_A)}, {s(S_WQT)}, {s(S_WQS)}
    s_cselect_b32 {s(SRD_A+1)}, {s(S_WQT+1)}, {s(S_WQS+1)}
    s_cselect_b32 {s(SRD_B)}, {s(S_WOT)}, {s(S_WOS)}
    s_cselect_b32 {s(SRD_B+1)}, {s(S_WOT+1)}, {s(S_WOS+1)}
    s_mov_b32 {s(SRD_A+2)}, 884736
    s_cmp_eq_u32 {s(S_PROD)}, 1
    s_cselect_b32 {s(SRD_B)}, {s(S_WQS)}, {s(SRD_B)}
    s_cselect_b32 {s(SRD_B+1)}, {s(S_WQS+1)}, {s(SRD_B+1)}
    s_cselect_b32 {s(SRD_B+2)}, {s(SRD_A+2)}, 294912
    s_cmp_ge_u32 {s(S_TILE)}, 36
    s_cbranch_scc1 L_prod3
    """)
    g.stamp('x0', False)
    for j in range(3):
        prod_unit(g, j, 1)
    g(f"""
    s_branch L_prod_body
    L_prod3:
    s_cmp_ge_u32 {s(S_TILE)}, 60
    s_cbranch_scc1 L_prod_idle
    """)
    prod_unit(g, 0, 3)
    g("s_branch L_prod3_body")


def products_body(g):
    ACC = V_ACC
    PK = V_BUF
    CSA, SELP, V_CSO = V_MISC, V_MISC + 16, V_MISC + 20
    S_PC0, S_PC1 = 71, 72

    def setup():
        common_consts(g)
        g(f"""
        v_lshrrev_b32 {v(V_T0)}, 2, {v(V_I)}
        v_and_b32 {v(V_T0)}, 1, {v(V_T0)}
        v_lshlrev_b32 {v(V_T0)}, 10, {v(V_T0)}
        v_lshrrev_b32 {v(V_T1)}, 1, {v(V_G)}
        v_lshl_add_u32 {v(V_T0)}, {v(V_T1)}, 8, {v(V_T0)}
        v_and_b32 {v(V_T1)}, 1, {v(V_G)}
        v_lshl_add_u32 {v(V_T0)}, {v(V_T1)}, 7, {v(V_T0)}
        v_lshrrev_b32 {v(V_T1)}, 3, {v(V_I)}
        v_lshl_add_u32 {v(V_T0)}, {v(V_T1)}, 6, {v(V_T0)}
        v_and_b32 {v(V_T1)}, 3, {v(V_I)}
        v_lshl_add_u32 {v(V_T5)}, {v(V_T1)}, 4, {v(V_T0)}
        s_and_b32 {s(S_T1)}, {s(S_W)}, 1
        s_lshl_b32 {s(S_T1)}, {s(S_T1)}, 9
        v_add_u32 {v(V_T5)}, {s(S_T1)}, {v(V_T5)}
        s_lshl_b32 {s(S_PF)}, {s(S_TILE)}, 7
        s_add_u32 {s(S_PF)}, {s(S_PF)}, {WS_FP}
        s_lshr_b32 {s(S_T0)}, {s(S_W)}, 1
        s_lshl_b32 {s(S_T1)}, {s(S_KB)}, 1
        s_add_u32 {s(S_T3)}, {s(S_T0)}, {s(S_T1)}
        v_lshrrev_b32 {v(V_T0)}, 1, {v(V_I)}
        v_xor_b32 {v(V_T0)}, {v(V_T0)}, {v(V_G)}
        v_lshlrev_b32 {v(V_T0)}, 4, {v(V_T0)}
        v_lshl_add_u32 {v(V_T3)}, {v(V_I)}, 7, {v(V_T0)}
        s_add_u32 {s(S_T0)}, {s(S_PM)}, {L_PA}
        v_add_u32 {v(A2[0])}, {s(S_T0)}, {v(V_T3)}
        v_xor_b32 {v(A2[1])}, 64, {v(A2[0])}
        v_add_u32 {v(A2[2])}, 49152, {v(A2[0])}
        v_add_u32 {v(A2[3])}, 49152, {v(A2[1])}
        """)

    def tr_addr():
        g(f"""
        v_lshlrev_b32 {v(V_T0)}, 10, {v(V_G)}
        v_lshrrev_b32 {v(V_T2)}, 2, {v(V_I)}
        v_lshl_add_u32 {v(V_T0)}, {v(V_T2)}, 7, {v(V_T0)}
        v_and_b32 {v(V_T1)}, 1, {v(V_G)}
        v_lshrrev_b32 {v(V_T2)}, 3, {v(V_I)}
        v_lshl_or_b32 {v(V_T2)}, {v(V_T1)}, 1, {v(V_T2)}
        v_lshl_add_u32 {v(V_T0)}, {v(V_T2)}, 5, {v(V_T0)}
        v_and_b32 {v(V_T2)}, 3, {v(V_I)}
        v_lshl_add_u32 {v(V_AD)}, {v(V_T2)}, 3, {v(V_T0)}
        v_xor_b32 {v(V_AD+1)}, 32, {v(V_AD)}
        v_xor_b32 {v(V_AD+2)}, 64, {v(V_AD)}
        v_xor_b32 {v(V_AD+3)}, 96, {v(V_AD)}
        """)

    def gemm(tr, nt, order, later, extra=None):
        items = []
        spread = []
        for ks in range(12):
            for c in range(4):
                b = V_BUF + ((ks * 4 + c) % 16) * 4
                if tr:
                    rd = [f"ds_read_b64_tr_b16 {v(b,2)}, {v(V_AD+c)} offset:{ks*4096}",
                          f"ds_read_b64_tr_b16 {v(b+2,2)}, {v(V_AD+c)} offset:{ks*4096+512}"]
                else:
                    rd = [f"ds_read_b128 {v(b,4)}, {v(V_AD+(ks&1))} offset:{(ks>>1)*8192+c*2048}"]
                pre = []
                if ks % 2 == 0 and c == 0:
                    for u in later.get(ks // 2, []):
                        if nt == 1:
                            pre += capture(g, lambda: prod_unit(g, u, nt))
                            order += [f"U{u}"] * (2 + 2 * nt)
                        else:
                            spread += capture(g, lambda: prod_unit(g, u, nt))
                            stag = f"U{u}"
                    last = len(order) - 1 - order[::-1].index(f"U{ks//2}")
                    pre += [f"s_waitcnt vmcnt({len(order)-1-last})", "s_barrier"]
                    if ks in (0, 4, 10):
                        pre += capture(g, lambda: g.stamp(f'chunk{ {0:0,4:1,10:2}[ks] }', False))
                    if extra and ks in extra:
                        pre += extra[ks]
                        order += ["h"] * 2
                while spread:
                    x = spread.pop(0)
                    pre.append(x)
                    if x.startswith("buffer"):
                        order.append(stag)
                        if any(y.startswith("buffer") for y in spread):
                            break
                cm = []
                for t in range(nt):
                    d = ACC + 16 * t + 4 * c
                    af = V_XF + ((ks % 4) * 3 + t) * 4
                    if c == 0:
                        o = aslot(ks // 2, t, nt) - L_PA
                        rd.append(f"ds_read_b128 {v(af,4)}, {v(A2[(ks&1) + 2*(o >= 49152)])} offset:{o % 49152}")
                    cm.append(f"v_mfma_f32_16x16x32_bf16 {v(d,4)}, {v(af,4)}, {v(b,4)}, {'0' if ks == 0 else v(d,4)}")
                items.append((rd, cm, pre))
        pipelined(g, items, 14 if tr else 10, group=g.opts.get('pg', 1) if nt == 3 else 1)

    def epi(nt):
        g.nop(5 if nt == 1 else 1)
        for t in range(nt):
            P = PK + 8 * t
            for c in range(4):
                g(f"v_cvt_pk_bf16_f32 {v(P+2*c)}, {v(ACC+16*t+4*c)}, {v(ACC+16*t+4*c+1)}")
                g(f"v_cvt_pk_bf16_f32 {v(P+2*c+1)}, {v(ACC+16*t+4*c+2)}, {v(ACC+16*t+4*c+3)}")
            g(f"""
            v_permlane16_swap_b32 {v(P)}, {v(P+2)}
            v_permlane16_swap_b32 {v(P+1)}, {v(P+3)}
            v_permlane16_swap_b32 {v(P+4)}, {v(P+6)}
            v_permlane16_swap_b32 {v(P+5)}, {v(P+7)}
            buffer_store_dwordx4 {v(P,4)}, {v(V_T5)}, {s(SRD_WS,4)}, {s(S_PO0)} offen sc1
            buffer_store_dwordx4 {v(P+4,4)}, {v(V_T5)}, {s(SRD_WS,4)}, {s(S_PO1)} offen sc1
            """)
            if nt == 3:
                for aa in range(2):
                    mfma32(g, v(CSA + 4 * aa, 4), v(SELP, 4), v(P + 4 * aa, 4), "0" if t == 0 else None)
            if t < nt - 1:
                g(f"v_add_u32 {v(V_T5)}, {2*6144}, {v(V_T5)}")
        if nt == 3:
            g.nop(7)
            g(f"""
            s_mov_b32 exec_lo, 0xffff
            s_mov_b32 exec_hi, 0xffff
            buffer_store_dword {v(CSA)}, {v(V_CSO)}, {s(SRD_WS,4)}, {s(S_PC0)} offen sc1
            buffer_store_dword {v(CSA+4)}, {v(V_CSO)}, {s(SRD_WS,4)}, {s(S_PC1)} offen sc1
            s_mov_b64 exec, -1
            """)

    def helper():
        lb = g.label('help')
        S_HT, SRD_H = 73, SRD_B
        g(f"""
        s_lshl_b32 {s(S_T0)}, {s(S_RQ)}, 1
        s_add_u32 {s(S_T0)}, {s(S_T0)}, {s(S_CS)}
        s_sub_u32 {s(S_T0)}, {s(S_T0)}, 9
        s_lshl_b32 {s(S_T0)}, {s(S_T0)}, 2
        s_add_u32 {s(S_T0)}, {s(S_T0)}, {s(S_W)}
        s_mov_b32 {s(SRD_H)}, {s(S_WQS)}
        s_mov_b32 {s(SRD_H+1)}, {s(S_WQS+1)}
        s_mov_b32 {s(SRD_H+2)}, 884736
        v_mul_u32_u24 {v(V_T0)}, 43, {v(V_L)}
        v_lshrrev_b32 {v(V_T0)}, 8, {v(V_T0)}
        v_mul_u32_u24 {v(V_T0)}, {2304-768}, {v(V_T0)}
        v_lshl_add_u32 {v(V_T0)}, {v(V_L)}, 7, {v(V_T0)}
        s_bfe_u32 {s(S_T2)}, {s(S_G8)}, 0x10001
        s_cmp_ge_u32 {s(S_G8)}, 4
        s_cselect_b32 {s(S_T3)}, 1536, 0
        s_mov_b32 {s(S_HT)}, {10*2304}
        s_cmp_lt_u32 {s(S_T0)}, 10
        s_cbranch_scc1 {lb}
        s_sub_u32 {s(S_T0)}, {s(S_T0)}, 10
        s_and_b32 {s(S_T2)}, {s(S_G8)}, 1
        s_movk_i32 {s(S_T3)}, 768
        s_cmp_lt_u32 {s(S_G8)}, 4
        s_cbranch_scc1 {lb}
        s_mov_b32 {s(SRD_H)}, {s(S_WOS)}
        s_mov_b32 {s(SRD_H+1)}, {s(S_WOS+1)}
        s_mov_b32 {s(SRD_H+2)}, 294912
        v_mul_u32_u24 {v(V_T0)}, 86, {v(V_L)}
        v_lshrrev_b32 {v(V_T0)}, 8, {v(V_T0)}
        v_mul_u32_u24 {v(V_T0)}, {768-384}, {v(V_T0)}
        v_lshl_add_u32 {v(V_T0)}, {v(V_L)}, 7, {v(V_T0)}
        s_mul_i32 {s(S_T3)}, {s(S_T2)}, 384
        s_mov_b32 {s(S_T2)}, 0
        s_mov_b32 {s(S_HT)}, {20*768}
        {lb}:
        s_mul_i32 {s(S_T2)}, {s(S_T2)}, {192*2304}
        s_add_u32 {s(S_T2)}, {s(S_T2)}, {s(S_T3)}
        s_mul_i32 {s(S_T0)}, {s(S_T0)}, {s(S_HT)}
        s_lshl_b32 {s(S_T0)}, {s(S_T0)}, 1
        s_add_u32 {s(S_T0)}, {s(S_T0)}, {s(S_T2)}
        s_add_u32 {s(S_T1)}, {s(S_T0)}, {s(S_HT)}
        s_mov_b32 exec_hi, 0x0fffffff
        buffer_load_dword {v(V_MISC+60)}, {v(V_T0)}, {s(SRD_H,4)}, {s(S_T0)} offen
        buffer_load_dword {v(V_MISC+61)}, {v(V_T0)}, {s(SRD_H,4)}, {s(S_T1)} offen
        s_mov_b32 exec_hi, -1
        """)

    def dst_touch(nt):
        if g.opts.get("pw3", 0) & (1 if nt == 1 else 2):
            for t in range(nt):
                if t:
                    g(f"v_add_u32 {v(V_T0+t)}, {t*2*6144}, {v(V_T5)}")
                vo = V_T0 + t if t else V_T5
                g(f"buffer_load_dword {v(254)}, {v(vo)}, {s(SRD_WS,4)}, {s(S_PO0)} offen sc1")
                g(f"buffer_load_dword {v(254)}, {v(vo)}, {s(SRD_WS,4)}, {s(S_PO1)} offen sc1")

    def fp_touch():
        if g.opts.get("pw2", 1):
            g(f"""
            v_mul_u32_u24 {v(V_T0)}, {FP_REP}, {v(V_L)}
            s_mov_b64 exec, 0xff
            buffer_load_dword {v(254)}, {v(V_T0)}, {s(SRD_WS,4)}, {s(S_PF)} offen sc1
            s_mov_b64 exec, -1
            """)

    g("L_prod_body:")
    setup()
    g(f"""
    s_mul_i32 {s(S_T1)}, {s(S_NB)}, 49152
    s_lshl_b32 {s(S_T0)}, {s(S_T3)}, 12
    s_add_u32 {s(S_T0)}, {s(S_T0)}, {s(S_T1)}
    s_add_u32 {s(S_PO0)}, {s(S_T0)}, {WS_WVOT}
    s_add_u32 {s(S_PO1)}, {s(S_PO0)}, 2048
    """)
    tr_addr()
    nonce_and_publish(g)
    fp_touch()
    dst_touch(1)
    for j in range(3, 6):
        prod_unit(g, j, 1)
    o1 = [f"U{j}" for j in range(3) for _ in range(4)] + ["t"] * (1 + 2 * g.opts.get("tlb", 0) + g.opts.get("pw2", 1) + 2 * (g.opts.get("pw3", 0) & 1)) + [f"U{j}" for j in range(3, 6) for _ in range(4)]
    if g.opts.get("help", 0) == 2:
        helper()
        o1 += ["h"] * 2
    HK = g.opts.get("hk", 0)
    gemm(True, 1, o1, {}, extra={HK: capture(g, helper)} if g.opts.get("help", 0) == 3 else None)
    epi(1)
    g(f"""
    L_prod_fin:
    """)
    g.stamp('chunk3')
    g("""
    s_waitcnt vmcnt(0)
    s_barrier
    """)
    flag_store(g, s(S_PF), FP_REP)
    g.stamp('chunk5')
    g(f"""
    s_cmp_ge_u32 {s(S_TILE)}, 36
    s_cbranch_scc1 L_prod_out
    L_prod_help:
    """)
    if g.opts.get("help", 0) == 1:
        helper()
    if g.opts.get("res", 1):
        g(f"""
        s_lshl_b32 {s(S_T0)}, {s(S_RQ)}, 1
        s_add_u32 {s(S_T0)}, {s(S_T0)}, {s(S_CS)}
        s_sub_u32 {s(S_T0)}, {s(S_T0)}, 9
        s_lshl_b32 {s(S_T0)}, {s(S_T0)}, 2
        s_add_u32 {s(S_T0)}, {s(S_T0)}, {s(S_W)}
        s_mul_i32 {s(S_T1)}, {s(S_T0)}, 77
        v_add_u32 {v(V_T0)}, {s(S_T1)}, {v(V_L)}
        v_min_u32 {v(V_T0)}, 1535, {v(V_T0)}
        v_lshlrev_b32 {v(V_T0)}, 7, {v(V_T0)}
        s_mul_i32 {s(S_T2)}, {s(S_G8)}, 196608
        s_add_u32 {s(S_T2)}, {s(S_T2)}, {WS_QP}
        s_add_u32 {s(S_T3)}, {s(S_T2)}, {WS_VP-WS_QP}
        buffer_load_dword {v(254)}, {v(V_T0)}, {s(SRD_WS,4)}, {s(S_T2)} offen sc1
        buffer_load_dword {v(254)}, {v(V_T0)}, {s(SRD_WS,4)}, {s(S_T3)} offen sc1
        s_add_u32 {s(S_T1)}, {s(S_T1)}, 64
        v_add_u32 {v(V_T0)}, {s(S_T1)}, {v(V_I)}
        v_min_u32 {v(V_T0)}, 1535, {v(V_T0)}
        v_lshlrev_b32 {v(V_T0)}, 7, {v(V_T0)}
        v_and_b32 {v(V_T1)}, 1, {v(V_G)}
        v_mul_u32_u24 {v(V_T1)}, {WS_VP-WS_QP}, {v(V_T1)}
        v_add3_u32 {v(V_T0)}, {v(V_T0)}, {v(V_T1)}, {s(S_T2)}
        s_lshl_b32 {s(S_T1)}, {s(S_T0)}, 2
        v_and_b32 {v(V_T1)}, 3, {v(V_L)}
        v_add_u32 {v(V_T1)}, {s(S_T1)}, {v(V_T1)}
        v_min_u32 {v(V_T2)}, 63, {v(V_T1)}
        v_lshlrev_b32 {v(V_T2)}, 7, {v(V_T2)}
        s_lshl_b32 {s(S_T1)}, {s(S_G8)}, 13
        s_add_u32 {s(S_T1)}, {s(S_T1)}, {WS_SQ}
        v_add_u32 {v(V_T2)}, {s(S_T1)}, {v(V_T2)}
        v_and_b32 {v(V_T1)}, 31, {v(V_T1)}
        v_lshlrev_b32 {v(V_T1)}, 10, {v(V_T1)}
        s_lshl_b32 {s(S_T1)}, {s(S_G8)}, 7
        s_add_u32 {s(S_T1)}, {s(S_T1)}, {WS_F2}
        v_add_u32 {v(V_T1)}, {s(S_T1)}, {v(V_T1)}
        v_cmp_eq_u32 vcc, 2, {v(V_G)}
        s_nop 1
        v_cndmask_b32 {v(V_T0)}, {v(V_T0)}, {v(V_T2)}, vcc
        v_cmp_eq_u32 vcc, 3, {v(V_G)}
        s_nop 1
        v_cndmask_b32 {v(V_T0)}, {v(V_T0)}, {v(V_T1)}, vcc
        buffer_load_dword {v(254)}, {v(V_T0)}, {s(SRD_WS,4)}, 0 offen sc1
        """)
    p2_setup(g)
    p3_setup(g)
    p3_setup2(g)
    poll(g, V_PB, "0", s(S_NONCE), "pwsp", g.opts.get("pslp", 8))
    g(f"s_mov_b32 {s(S_F1)}, 1")
    ws2_dma(g)
    pa_wait(g, S_F1, "pxcd")
    g("s_branch L_p2d")
    g(f"""
    L_prod_out:
    buffer_load_dword {v(V_T7)}, {v(V_PA)}, {s(SRD_WS,4)}, 0 offen sc1
    buffer_load_dword {v(V_T5)}, {v(V_PB)}, {s(SRD_WS,4)}, 0 offen sc1
    """)
    p2_setup(g)
    p3_setup(g)
    p3_setup2(g)
    g("s_waitcnt vmcnt(0)")
    pa_eval(g)
    pa_wait(g, S_F1, "pxcc")
    g(f"""
    v_cmp_ne_u32 vcc, {s(S_NONCE)}, {v(V_T5)}
    s_cbranch_vccz L_prod_go
    """)
    poll(g, V_PB, "0", s(S_NONCE), "pwsq", g.opts.get("tslp", 1))
    g("L_prod_go:")
    ws2_dma(g)
    g(f"s_waitcnt vmcnt({g.opts.get('pw', 0)})")
    g("s_branch L_p2d")
    g("L_prod3_body:")
    setup()
    g(f"""
    s_mul_i32 {s(S_T0)}, {s(S_T3)}, 6144
    s_sub_u32 {s(S_T1)}, {s(S_PROD)}, 1
    s_mul_i32 {s(S_T1)}, {s(S_T1)}, {4*73728}
    s_add_u32 {s(S_T0)}, {s(S_T0)}, {s(S_T1)}
    s_add_u32 {s(S_T0)}, {s(S_T0)}, {WS_WS2}
    """)
    g(f"""
    s_sub_u32 {s(S_T1)}, {s(S_PROD)}, 1
    s_mul_i32 {s(S_T2)}, {s(S_T1)}, {4*3072}
    s_cmp_eq_u32 {s(S_KB)}, 0
    s_cselect_b32 {s(S_T1)}, 0, 256
    s_add_u32 {s(S_T2)}, {s(S_T2)}, {s(S_T1)}
    s_lshr_b32 {s(S_T1)}, {s(S_W)}, 1
    s_lshl_b32 {s(S_T1)}, {s(S_T1)}, 7
    s_add_u32 {s(S_T2)}, {s(S_T2)}, {s(S_T1)}
    s_and_b32 {s(S_T1)}, {s(S_W)}, 1
    s_lshl_b32 {s(S_T1)}, {s(S_T1)}, 2
    s_add_u32 {s(S_T2)}, {s(S_T2)}, {s(S_T1)}
    s_add_u32 {s(S_T2)}, {s(S_T2)}, {WS_CSP}
    v_bfe_u32 {v(V_T0)}, {v(V_I)}, 2, 1
    v_lshlrev_b32 {v(V_T0)}, 9, {v(V_T0)}
    v_lshrrev_b32 {v(V_T1)}, 1, {v(V_G)}
    v_lshl_add_u32 {v(V_T0)}, {v(V_T1)}, 6, {v(V_T0)}
    v_lshrrev_b32 {v(V_T1)}, 3, {v(V_I)}
    v_lshl_add_u32 {v(V_T0)}, {v(V_T1)}, 5, {v(V_T0)}
    v_and_b32 {v(V_T2)}, 3, {v(V_I)}
    v_lshl_add_u32 {v(V_CSO)}, {v(V_T2)}, 3, {v(V_T0)}
    v_and_b32 {v(V_T0)}, 1, {v(V_G)}
    v_cmp_eq_u32 vcc, {v(V_T0)}, {v(V_T1)}
    s_nop 1
    v_cndmask_b32 {v(SELP)}, 0, {v(V_ONES)}, vcc
    v_cndmask_b32 {v(SELP+1)}, 0, {v(V_ONES)}, vcc
    v_cndmask_b32 {v(SELP+2)}, 0, {v(V_ONES)}, vcc
    v_cndmask_b32 {v(SELP+3)}, 0, {v(V_ONES)}, vcc
    """)
    for aa, dst, dc in ((0, S_PO0, S_PC0), (1, S_PO1, S_PC1)):
        g(f"""
        s_lshl_b32 {s(S_T3)}, {s(S_NB)}, 1
        s_add_u32 {s(S_T3)}, {s(S_T3)}, {aa}
        s_mul_hi_u32 {s(dst)}, {s(S_T3)}, {(2**32+2)//3}
        s_mul_i32 {s(S_T1)}, {s(dst)}, 3
        s_lshl_b32 {s(dc)}, {s(S_T3)}, 10
        s_add_u32 {s(dc)}, {s(dc)}, {s(S_T2)}
        s_sub_u32 {s(S_T3)}, {s(S_T3)}, {s(S_T1)}
        s_mul_i32 {s(dst)}, {s(dst)}, 73728
        s_lshl_b32 {s(S_T3)}, {s(S_T3)}, 11
        s_add_u32 {s(dst)}, {s(dst)}, {s(S_T3)}
        s_add_u32 {s(dst)}, {s(dst)}, {s(S_T0)}
        """)
    nonce_and_publish(g)
    fp_touch()
    if g.opts.get("pw2", 1):
        g(f"buffer_load_dword {v(254)}, {v(V_CSO)}, {s(SRD_WS,4)}, {s(S_PC0)} offen sc1")
        g(f"buffer_load_dword {v(254)}, {v(V_CSO)}, {s(SRD_WS,4)}, {s(S_PC1)} offen sc1")
    prod_unit(g, 1, 3)
    dst_touch(3)
    o3 = (["U0"] * 8 + ["t"] * (1 + 2 * g.opts.get("tlb", 0) + 3 * g.opts.get("pw2", 1)) + ["U1"] * 8
          + ["t"] * (3 * (g.opts.get("pw3", 0) & 2)))
    l3 = {0: [2], 1: [3], 2: [4], 3: [5]}
    if g.opts.get("u2", 0):
        prod_unit(g, 2, 3)
        o3 += ["U2"] * 8
        l3 = {1: [3], 2: [4], 3: [5]}
    g(f"""
    s_cmp_eq_u32 {s(S_PROD)}, 1
    s_cbranch_scc1 L_prod_rows
    """)
    tr_addr()
    gemm(True, 3, list(o3), l3)
    g("L_prod_epi3:")
    epi(3)
    g("s_branch L_prod_fin")
    g(f"""
    L_prod_rows:
    v_mov_b32 {v(V_AD)}, {v(V_T3)}
    v_xor_b32 {v(V_AD+1)}, 64, {v(V_T3)}
    """)
    gemm(False, 3, list(o3), l3)
    g("s_branch L_prod_epi3")
    g("L_prod_idle:")
    common_consts(g)
    nonce_and_publish(g)
    if g.opts.get("help", 0) > 1:
        helper()
    g("s_branch L_prod_help")


A_K = 0
A_V = 144
V_RES = V_MISC + 28
RK = V_MISC
BK = 232
SG = 248
A2 = [70, 71, 72, 73, 79]
V_KO, VST, V_L16H = 78, 206, 216
VTB = 217
V_I8 = 244
S_RH2 = 74
VC2 = 232
V_FXP = 235
V_P3F, V_SQA, V_RSA, V_P3V = 188, 189, 190, 191
S_P3F, S_Q2, S_U0, S_U1 = 4, 5, 6, 7
S_QM = [8, 9, 10]
S_KS = [76, 77, 78, 79]
S_R0, S_R1, S_STX, S_FXP, S_O1, S_O0, S_FL = 80, 81, 14, 15, 3, 18, 19


def kreg(slot, ks):
    return v(V_XF + 4 * ks, 4) if slot == 0 else a(A_K + (slot - 1) * 48 + 4 * ks, 4)


S_CP0, S_CP1, S_O2 = 15, 16, 17
S_RHO = 26
VK = [71, 79, 78]
V_L8 = 73


def p2_setup(g):
    T0, T1 = V_T0, V_T1
    g(f"""
    s_lshr_b32 {s(S_RH2)}, {s(S_J)}, 4
    s_lshl_b32 {s(S_RH2)}, {s(S_RH2)}, 1
    s_and_b32 {s(S_T1)}, {s(S_J)}, 15
    s_mul_i32 {s(S_T2)}, {s(S_T1)}, 43
    s_lshr_b32 {s(S_T2)}, {s(S_T2)}, 7
    s_mul_i32 {s(S_T2)}, {s(S_T2)}, 3
    s_sub_u32 {s(S_RHO)}, {s(S_T1)}, {s(S_T2)}
    s_mul_i32 {s(S_RHO)}, {s(S_RHO)}, {4 if g.opts.get("krot", 0) else 0}
    s_lshl_b32 {s(S_T1)}, {s(S_RHO)}, 10
    v_add_u32 {v(VK[0])}, {s(S_T1)}, {v(V_L16)}
    s_add_u32 {s(S_T1)}, {s(S_T1)}, 4096
    s_cmp_eq_u32 {s(S_T1)}, 12288
    s_cselect_b32 {s(S_T1)}, 0, {s(S_T1)}
    v_add_u32 {v(VK[1])}, {s(S_T1)}, {v(V_L16)}
    s_add_u32 {s(S_T1)}, {s(S_T1)}, 4096
    s_cmp_eq_u32 {s(S_T1)}, 12288
    s_cselect_b32 {s(S_T1)}, 0, {s(S_T1)}
    v_add_u32 {v(VK[2])}, {s(S_T1)}, {v(V_L16)}
    s_mul_i32 {s(S_T1)}, {s(S_W)}, 3
    s_add_u32 {s(S_T1)}, {s(S_T1)}, 12
    s_sub_u32 {s(S_RHO)}, {s(S_T1)}, {s(S_RHO)}
    v_add_u32 {v(V_L16H)}, 4096, {v(V_L16)}
    v_lshlrev_b32 {v(V_L8)}, 3, {v(V_L)}
    v_xor_b32 {v(T0)}, {s(S_RH2)}, {v(V_G)}
    v_lshrrev_b32 {v(T1)}, 3, {v(V_I)}
    v_lshl_add_u32 {v(T1)}, {v(T0)}, 1, {v(T1)}
    v_mul_u32_u24 {v(T1)}, 768, {v(T1)}
    v_and_b32 {v(T0)}, 7, {v(V_I)}
    v_lshl_add_u32 {v(VST)}, {v(T0)}, 3, {v(T1)}
    s_mul_i32 {s(S_STX)}, {s(S_G8)}, {6*32*128}
    s_mul_i32 {s(S_T1)}, {s(S_W)}, {48*128}
    s_add_u32 {s(S_STX)}, {s(S_STX)}, {s(S_T1)}
    s_add_u32 {s(S_STX)}, {s(S_STX)}, {WS_STX}
    s_mul_i32 {s(S_T1)}, {s(S_W)}, 768
    s_add_u32 {s(S_T1)}, {s(S_T1)}, {L_ST}
    v_lshlrev_b32 {v(T0)}, 2, {v(V_L)}
    v_add_u32 {v(VTB)}, {s(S_T1)}, {v(T0)}
    v_lshlrev_b32 {v(V_I8)}, 3, {v(V_I)}
    v_lshlrev_b32 {v(VTB+1)}, 4, {v(V_G)}
    v_add_u32 {v(VTB+2)}, {s(S_T1)}, {v(VTB+1)}
    s_lshl_b32 {s(S_T3)}, {s(S_G8)}, 2
    s_add_u32 {s(S_T3)}, {s(S_T3)}, {s(S_W)}
    s_mul_i32 {s(S_T3)}, {s(S_T3)}, 49152
    s_add_u32 {s(S_T3)}, {s(S_T3)}, {WS_X1}
    s_mul_i32 {s(S_T1)}, {s(S_RH2)}, 12288
    s_add_u32 {s(S_KS[0])}, {s(S_T3)}, {s(S_T1)}
    s_add_u32 {s(S_KS[1])}, {s(S_KS[0])}, 12288
    s_sub_u32 {s(S_KS[2])}, {s(S_T3)}, {s(S_T1)}
    s_add_u32 {s(S_KS[2])}, {s(S_KS[2])}, 24576
    s_add_u32 {s(S_KS[3])}, {s(S_KS[2])}, 12288
    s_bfe_u32 {s(S_T1)}, {s(S_J)}, 0x20002
    s_sub_u32 {s(S_R1)}, {s(S_T1)}, {s(S_W)}
    s_mul_i32 {s(S_R1)}, {s(S_R1)}, 49152
    s_add_u32 {s(S_R1)}, {s(S_R1)}, {s(S_KS[0])}
    s_and_b32 {s(S_T1)}, {s(S_W)}, 1
    s_mul_i32 {s(S_T1)}, {s(S_T1)}, 12288
    s_add_u32 {s(S_R1)}, {s(S_R1)}, {s(S_T1)}
    s_and_b32 {s(S_T1)}, {s(S_J)}, 3
    s_mul_i32 {s(S_T1)}, {s(S_T1)}, 3072
    s_add_u32 {s(S_R1)}, {s(S_R1)}, {s(S_T1)}
    s_lshr_b32 {s(S_T1)}, {s(S_W)}, 1
    s_lshl_b32 {s(S_T1)}, {s(S_T1)}, 10
    s_add_u32 {s(S_R0)}, {s(S_T1)}, {s(S_R1)}
    s_lshl_b32 {s(S_FL)}, s2, 7
    s_lshl_b32 {s(S_T1)}, {s(S_W)}, 2
    s_add_u32 {s(S_FL)}, {s(S_FL)}, {s(S_T1)}
    s_add_u32 {s(S_FL)}, {s(S_FL)}, {WS_F2}
    s_bfe_u32 {s(S_T3)}, {s(S_J)}, 0x30001
    s_mul_i32 {s(S_WD0)}, {s(S_T3)}, 73728
    s_mul_i32 {s(S_T1)}, {s(S_W)}, 18432
    s_add_u32 {s(S_WD0)}, {s(S_WD0)}, {s(S_T1)}
    s_add_u32 {s(S_WD0)}, {s(S_WD0)}, {WS_WS2}
    s_mul_i32 {s(S_CP0)}, {s(S_T3)}, 3072
    s_add_u32 {s(S_CP0)}, {s(S_CP0)}, {WS_CSP}
    s_and_b32 {s(S_T2)}, {s(S_J)}, 1
    s_lshl_b32 {s(S_T1)}, {s(S_T2)}, 10
    s_add_u32 {s(S_WD1)}, {s(S_WD0)}, {s(S_T1)}
    s_lshl_b32 {s(S_T1)}, {s(S_T2)}, 12
    s_add_u32 {s(S_WD0)}, {s(S_WD0)}, {s(S_T1)}
    s_lshl_b32 {s(S_T1)}, {s(S_T2)}, 9
    s_add_u32 {s(S_CP1)}, {s(S_CP0)}, {s(S_T1)}
    s_lshl_b32 {s(S_T1)}, {s(S_T2)}, 11
    s_add_u32 {s(S_CP0)}, {s(S_CP0)}, {s(S_T1)}
    """)
    g(f"""
    s_lshl_b32 {s(S_O0)}, {s(S_G8)}, 2
    s_add_u32 {s(S_O0)}, {s(S_O0)}, {s(S_RH2)}
    s_lshl_b32 {s(S_O0)}, {s(S_O0)}, 1
    s_add_u32 {s(S_O0)}, {s(S_O0)}, {s(S_W)}
    s_mul_i32 {s(S_O1)}, {s(S_O0)}, 24576
    s_mul_i32 {s(S_T1)}, {s(S_T3)}, 3072
    s_add_u32 {s(S_O1)}, {s(S_O1)}, {s(S_T1)}
    s_add_u32 {s(S_O1)}, {s(S_O1)}, {WS_QP}
    s_lshl_b32 {s(S_T1)}, {s(S_T2)}, 3
    s_add_u32 {s(S_O2)}, {s(S_O1)}, {s(S_T1)}
    s_add_u32 {s(S_O2)}, {s(S_O2)}, 1024
    s_lshl_b32 {s(S_T1)}, {s(S_T2)}, 11
    s_add_u32 {s(S_O1)}, {s(S_O1)}, {s(S_T1)}
    s_lshl_b32 {s(S_O0)}, {s(S_O0)}, 10
    s_lshl_b32 {s(S_T1)}, {s(S_T3)}, 7
    s_add_u32 {s(S_O0)}, {s(S_O0)}, {s(S_T1)}
    s_lshl_b32 {s(S_T1)}, {s(S_T2)}, 2
    s_add_u32 {s(S_O0)}, {s(S_O0)}, {s(S_T1)}
    s_add_u32 {s(S_O0)}, {s(S_O0)}, {WS_SQ}
    s_bitcmp0_b32 {s(S_J)}, 3
    s_cbranch_scc1 {g.label("q") if False else "L_p2s_%d" % g.uid}
    s_lshl_b32 {s(S_O1)}, {s(S_G8)}, 2
    s_add_u32 {s(S_O1)}, {s(S_O1)}, {s(S_T3)}
    s_sub_u32 {s(S_O1)}, {s(S_O1)}, 4
    s_mul_i32 {s(S_O1)}, {s(S_O1)}, 49152
    s_lshl_b32 {s(S_T1)}, {s(S_W)}, 2
    s_add_u32 {s(S_T1)}, {s(S_T1)}, {s(S_RH2)}
    s_mul_i32 {s(S_T1)}, {s(S_T1)}, 3072
    s_add_u32 {s(S_O1)}, {s(S_O1)}, {s(S_T1)}
    s_add_u32 {s(S_O1)}, {s(S_O1)}, {WS_VP}
    s_lshl_b32 {s(S_T1)}, {s(S_T2)}, 10
    s_add_u32 {s(S_O2)}, {s(S_O1)}, {s(S_T1)}
    s_lshl_b32 {s(S_T1)}, {s(S_T2)}, 12
    s_add_u32 {s(S_O1)}, {s(S_O1)}, {s(S_T1)}
    L_p2s_{g.uid}:
    """)
    g.uid += 1


KORD = [(sl, ks) for ks in range(12) for sl in range(2)] + [(sl, ks) for sl in (2, 3) for ks in range(12)]
KL = ([f"buffer_load_dwordx4 {kreg(sl,ks)}, {v(VK[ks//4])}, {s(SRD_WS,4)}, {s(S_KS[sl])} offen offset:{(ks%4)*1024} sc1"
       for sl, ks in KORD] +
      [f"buffer_load_dwordx4 {v(V_RES,4)}, {v(V_RSA)}, {s(SRD_WS,4)}, {s(S_R0)} offen sc1",
       f"buffer_load_dwordx4 {v(V_RES+4,4)}, {v(V_RSA)}, {s(SRD_WS,4)}, {s(S_R1)} offen offset:2048 sc1"])


def colsums(g):
    CT = V_ACC + 32
    for c in range(3):
        g(f"v_add_f32 {v(CSL+4*c)}, {v(CSL+4*c)}, {v(CSL+4*c+1)}")
    for sw in ("v_permlane16_swap_b32", "v_permlane32_swap_b32"):
        for c in range(3):
            g(f"v_mov_b32 {v(CSL+4*c+1)}, {v(CSL+4*c)}")
        for c in range(3):
            g(f"{sw} {v(CSL+4*c)}, {v(CSL+4*c+1)}")
        for c in range(3):
            g(f"v_add_f32 {v(CSL+4*c)}, {v(CSL+4*c)}, {v(CSL+4*c+1)}")
    for c in range(3):
        colsum_pack(g, CSL + 4 * c, CT + 2 * c)


def p2(g):
    ACC = V_ACC
    CS = V_ACC + 24
    CT = V_ACC + 32
    RT = 232
    MU2 = [V_MU, 240]
    SC2 = [V_T0, 242]
    STP = V_MISC
    KM, KR, KB = V_MISC + 12, V_MISC + 13, V_MISC + 20
    g("L_p2:")
    g.stamp('early')
    ws2_dma(g)
    g("L_p2c:")

    def stx():
        for cb in range(6):
            g(f"buffer_load_dwordx2 {v(STP+2*cb,2)}, {v(VST)}, {s(SRD_WS,4)}, {s(S_STX)} offen offset:{cb*128} sc1")
    FXW = g.opts.get("fxw", 1)
    p3_setup(g)
    p3_setup2(g)
    g("L_p2d:")

    def qstores(sc, P):
        g(f"""
        s_add_u32 {s(S_T1)}, {s(S_O1)}, 12288
        s_add_u32 {s(S_T2)}, {s(S_O2)}, 12288
        buffer_store_dwordx4 {v(P[0],4)}, {v(V_L16)}, {s(SRD_WS,4)}, {s(S_O1)} offen{sc}
        buffer_store_dwordx4 {v(P[1],4)}, {v(V_L16)}, {s(SRD_WS,4)}, {s(S_T1)} offen{sc}
        buffer_store_dwordx2 {v(P[2],2)}, {v(V_L16)}, {s(SRD_WS,4)}, {s(S_O2)} offen{sc}
        buffer_store_dwordx2 {v(P[3],2)}, {v(V_L16)}, {s(SRD_WS,4)}, {s(S_T2)} offen{sc}
        """)
    g(f"""
    s_bitcmp1_b32 {s(S_J)}, 3
    s_cbranch_scc1 L_nomark
    """)
    PR = g.opts.get("pr", 0)
    if PR:
        g(f"""
        s_add_u32 {s(S_T2)}, {s(S_O2)}, 12288
        buffer_load_dword {v(254)}, {v(V_L16)}, {s(SRD_WS,4)}, {s(S_O2)} offen sc1
        buffer_load_dword {v(254)}, {v(V_L16)}, {s(SRD_WS,4)}, {s(S_T2)} offen sc1
        buffer_load_dword {v(254)}, {v(V_I8)}, {s(SRD_WS,4)}, {s(S_O0)} offen sc1
        buffer_load_dword {v(254)}, {v(V_I8)}, {s(SRD_WS,4)}, {s(S_O0)} offen offset:512 sc1
        """)
    for q in range(4):
        g(f"v_mov_b32 {v(NANQ+q)}, -1")
    both_modes(g, lambda sc: qstores(sc, [NANQ] * 4))
    assert FXW == 1
    g(f"""
    s_waitcnt vmcnt({13 + 4 * PR})
    s_branch L_marked
    L_nomark:
    """)
    if PR:
        g(f"buffer_load_dword {v(254)}, {v(V_ZERO)}, {s(SRD_WS,4)}, {s(S_FL)} offen sc1")
    g(f"""
    s_waitcnt vmcnt({9 + PR})
    L_marked:
    """)
    g.stamp('wsland')
    colsums(g)
    g(f"""
    s_mov_b32 {s(S_SPIN)}, {SPIN_LIMIT}
    s_mov_b32 {s(S_RETRY)}, 64
    {'s_branch L_px1' if FXW == 0 else ''}
    L_px:
    """)
    stx()
    g("L_px1:")
    g("s_waitcnt vmcnt(0)")
    for cb in range(6):
        for h in range(2):
            g(f"v_xor_b32 {v(STP+2*cb+h)}, {s(S_TAG+h)}, {v(STP+2*cb+h)}")
    g(f"v_or3_b32 {v(V_T0)}, {v(STP)}, {v(STP+1)}, {v(STP+2)}")
    for q in range(3, 11, 2):
        g(f"v_or3_b32 {v(V_T0)}, {v(V_T0)}, {v(STP+q)}, {v(STP+q+1)}")
    g(f"""
    v_or_b32 {v(V_T0)}, {v(V_T0)}, {v(STP+11)}
    v_and_b32 {v(V_T0)}, 0xff, {v(V_T0)}
    v_cmp_ne_u32 vcc, 0, {v(V_T0)}
    s_cbranch_vccz L_pxok
    s_sleep {g.opts.get("slp", 4)}
    s_sub_u32 {s(S_SPIN)}, {s(S_SPIN)}, 1
    s_cbranch_scc0 L_px
    L_pxok:
    """)
    g.stamp('x1ok')
    K0N = g.opts.get("k0n", 12)
    for x in KL[:K0N]:
        g(x)
    g(f"""
    s_barrier
    s_bitcmp0_b32 {s(S_J)}, 3
    s_cbranch_scc0 L_p2_v
    """)

    def stats(typ):
        for c in range(1, 6):
            g(f"v_pk_add_f32 {v(STP,2)}, {v(STP,2)}, {v(STP+2*c,2)}")
        mean_rstd(g, STP, STP + 1, KM, KR)
        g.nop(1)
        g(f"v_mul_f32 {v(KB)}, {v(KM)}, {v(KR)}")
        g(f"""
        ds_write_b32 {v(VTB)}, {v(KR)}
        ds_write_b32 {v(VTB)}, {v(KB)} offset:256
        """)
        for src, d0, d1 in ((KM, V_MEAN, STP + 2), (KR, V_R, STP + 3))[:2 - typ]:
            g(f"v_mov_b32 {v(d0)}, {v(src)}")
            g(f"v_mov_b32 {v(d1)}, {v(src)}")
            g.nop(2)
            g(f"v_permlane16_swap_b32 {v(d0)}, {v(d1)}")
            g.nop(1)
            g(f"v_mov_b32 {v(STP+4)}, {v(d0)}")
            g(f"v_mov_b32 {v(STP+5)}, {v(d1)}")
            g.nop(2)
            g(f"v_permlane32_swap_b32 {v(d0)}, {v(STP+4)}")
            g(f"v_permlane32_swap_b32 {v(d1)}, {v(STP+5)}")
            g.nop(1)
        mu_operand(g, V_MEAN, MU2[0])
        mu_operand(g, STP + 2, MU2[1])
        if typ == 0:
            for u, r in ((0, V_R), (1, STP + 3)):
                g(f"v_mul_f32 {v(SC2[u])}, {f2u(SCALE_LOG2E):#x}, {v(r)}")
                g(f"v_mul_f32 {v(SC2[u]+1)}, {f2u(SCALE_LOG2E):#x}, {v(r)}")
        else:
            g("s_waitcnt lgkmcnt(0)")
            for u in range(2):
                g(f"ds_read_b128 {v(RT+4*u,4)}, {v(VTB+2)} offset:{u*64}")
    KIN = g.opts.get("kin", 24)
    KA = g.opts.get("kafter", 4)
    KB4 = g.opts.get("kpoll", 0)
    for typ in range(2):
        if typ == 1:
            g("L_p2_v:")
        stats(typ)
        g("s_waitcnt lgkmcnt(0)")
        g(f"L_p2_go{typ}:")
        g.stamp('k0')
        items = []
        nk = K0N
        urgent = 24 - K0N
        slots = [q * g.opts.get("ku", 2) for q in range(urgent)]
        s0 = slots[-1] + 2 if slots else 0
        slots += [s0 + round((q + 0.5) * (72 - s0) / max(KIN - urgent, 1)) for q in range(KIN - urgent)]
        for ks in range(12):
            for c in range(3):
                n = ks * 3 + c
                b = V_BUF + (n % 16) * 4
                rd = [f"ds_read_b128 {v(b,4)}, {v(V_L16)} offset:{n*1024}"]
                cm = []
                for u in range(2):
                    d = ACC + 12 * u + 4 * c
                    if c == 0:
                        assert nk - 1 - (2 * ks + u) >= 0
                        cm.append(f"s_waitcnt vmcnt({nk - 1 - (2 * ks + u)})")
                    A, B = (v(b, 4), kreg(u, ks)) if typ == 0 else (kreg(u, ks), v(b, 4))
                    cm.append(f"v_mfma_f32_16x16x32_bf16 {v(d,4)}, {A}, {B}, {'0' if ks == 0 else v(d,4)}")
                    for _ in range(slots.count(2 * n + u)):
                        cm.append(KL[nk])
                        nk += 1
                items.append((rd, cm))
        pipelined(g, items, 8, group=1)
        g.stamp('p2gemm')
        PK = V_BUF
        for u in range(2):
            for c in range(3):
                d = ACC + 12 * u + 4 * c
                A, B = (v(CT + 2 * c, 2), v(MU2[u], 2)) if typ == 0 else (v(MU2[u], 2), v(CT + 2 * c, 2))
                mfma16(g, v(d, 4), A, B)
        g.nop(3)
        if typ == 0:
            for i in range(6):
                g(f"v_pk_mul_f32 {v(ACC+2*i,2)}, {v(ACC+2*i,2)}, {v(SC2[0],2)}")
            g(f"v_cmp_u_f32 vcc, {v(ACC)}, {v(ACC+12)}")
            g("s_cbranch_vccnz L_p2_redo")
            g("L_p2_q_on:")
            for i in range(6, 12):
                g(f"v_pk_mul_f32 {v(ACC+2*i,2)}, {v(ACC+2*i,2)}, {v(SC2[1],2)}")
            for u in range(2):
                for i in range(6):
                    g(f"v_cvt_pk_bf16_f32 {v(PK+8*u+i)}, {v(ACC+12*u+2*i)}, {v(ACC+12*u+2*i+1)}")
            g.nop(1)
            for u in range(2):
                mfma32(g, v(CS + 4 * u, 4), v(V_ONES, 4), v(PK + 8 * u, 4), "0")
            for u in range(2):
                mfma16(g, v(CS + 4 * u, 4), v(V_ONES, 2), v(PK + 8 * u + 4, 2))

            def st(sc):
                qstores(sc, [PK, PK + 8, PK + 4, PK + 12])
                g(f"""
                v_bfi_b32 {v(CS)}, {v(V_MASK)}, {v(CS)}, {s(S_TAG+2)}
                v_bfi_b32 {v(CS+4)}, {v(V_MASK)}, {v(CS+4)}, {s(S_TAG+2)}
                {'s_sleep 60' if False else ''}
                s_mov_b64 exec, {s(S_G0,2)}
                buffer_store_dword {v(CS)}, {v(V_I8)}, {s(SRD_WS,4)}, {s(S_O0)} offen{sc}
                buffer_store_dword {v(CS+4)}, {v(V_I8)}, {s(SRD_WS,4)}, {s(S_O0)} offen offset:512{sc}
                s_mov_b64 exec, -1
                """)
            if g.opts.get("dbgearly", 0) & 8:
                g.nop(8)
                g(f"""
                v_bfi_b32 {v(CS+1)}, {v(V_MASK)}, {v(CS)}, {s(S_TAG+2)}
                v_bfi_b32 {v(CS+5)}, {v(V_MASK)}, {v(CS+4)}, {s(S_TAG+2)}
                s_mov_b64 exec, {s(S_G0,2)}
                buffer_store_dword {v(CS+1)}, {v(V_I8)}, {s(SRD_WS,4)}, {s(S_O0)} offen sc1
                buffer_store_dword {v(CS+5)}, {v(V_I8)}, {s(SRD_WS,4)}, {s(S_O0)} offen offset:512 sc1
                s_mov_b64 exec, -1
                s_waitcnt vmcnt(0)
                s_sleep 100
                """)
            both_modes(g, st)
            g.stamp('p2st')
            for x in KL[nk:nk + KA]:
                g(x)
            g("s_branch L_p2_done")
        else:
            for c in range(3):
                for h in range(2):
                    g(f"v_pk_mul_f32 {v(ACC+4*c+2*h,2)}, {v(ACC+4*c+2*h,2)}, {v(RT+2*h,2)}")
            g(f"""
            v_pk_add_f32 {v(CS,2)}, {v(ACC,2)}, {v(ACC+12,2)}
            v_pk_add_f32 {v(CS+2,2)}, {v(ACC+2,2)}, {v(ACC+14,2)}
            v_pk_add_f32 {v(CS,2)}, {v(CS,2)}, {v(CS+2,2)}
            v_cmp_u_f32 vcc, {v(CS)}, {v(CS+1)}
            s_cbranch_vccnz L_p2_redo
            L_p2_v_on:
            """)
            for c in range(3):
                for h in range(2):
                    g(f"v_pk_mul_f32 {v(ACC+12+4*c+2*h,2)}, {v(ACC+12+4*c+2*h,2)}, {v(RT+4+2*h,2)}")
            for c in range(3):
                for u in range(2):
                    for h in range(2):
                        d = ACC + 12 * u + 4 * c + 2 * h
                        g(f"v_cvt_pk_bf16_f32 {v(PK+4*c+2*u+h)}, {v(d)}, {v(d+1)}")

            def st(sc):
                g(f"""
                buffer_store_dwordx4 {v(PK,4)}, {v(V_L16)}, {s(SRD_WS,4)}, {s(S_O1)} offen{sc}
                buffer_store_dwordx4 {v(PK+4,4)}, {v(V_L16)}, {s(SRD_WS,4)}, {s(S_O1)} offen offset:1024{sc}
                buffer_store_dwordx4 {v(PK+8,4)}, {v(V_L16)}, {s(SRD_WS,4)}, {s(S_O2)} offen offset:2048{sc}
                """)
            both_modes(g, st)
    g.stamp('p2st')
    for x in KL[nk:nk + KA]:
        g(x)
    g(f"s_waitcnt vmcnt({KA})")
    g("s_mov_b64 exec, 1")
    both_modes(g, lambda sc: g(f"buffer_store_dword {v(V_NONCE)}, {v(V_ZERO)}, {s(SRD_WS,4)}, {s(S_FL)} offen{sc}"))
    g("s_mov_b64 exec, -1")
    g("L_p2_done:")
    g.stamp('p2flag')
    for x in KL[nk + KA:nk + KA + KB4]:
        g(x)
    for sl in range(4):
        g(f"ds_read_b128 {v(RK+4*sl,4)}, {v(VTB+2)} offset:{sl*64}")
        g(f"ds_read_b128 {v(BK+4*sl,4)}, {v(VTB+2)} offset:{256+sl*64}")
    return nk + KA + KB4


S_Q, S_SQ, S_V0, S_V1 = 0, 1, 72, 75


def p3_setup(g):
    g(f"""
    s_and_b32 {s(S_T5)}, {s(S_J)}, 3
    s_bfe_u32 {s(S_T4)}, {s(S_J)}, 0x20002
    s_lshl_b32 {s(S_P3F)}, {s(S_G8)}, 7
    s_add_u32 {s(S_P3F)}, {s(S_P3F)}, {WS_F2}
    v_and_b32 {v(V_T2)}, 7, {v(V_L)}
    v_lshlrev_b32 {v(V_T2)}, 10, {v(V_T2)}
    s_lshl_b32 {s(S_T1)}, {s(S_RH2)}, 13
    s_lshl_b32 {s(S_T2)}, {s(S_T4)}, 2
    s_add_u32 {s(S_T1)}, {s(S_T1)}, {s(S_T2)}
    v_add_u32 {v(V_P3F)}, {s(S_T1)}, {v(V_T2)}
    """)


def p3_setup2(g):
    g(f"""
    v_and_b32 {v(V_T2)}, 1, {v(V_L)}
    v_lshlrev_b32 {v(V_T2)}, 10, {v(V_T2)}
    v_and_b32 {v(V_T3)}, 2, {v(V_L)}
    v_lshl_add_u32 {v(V_T2)}, {v(V_T3)}, 13, {v(V_T2)}
    s_lshl_b32 {s(S_T1)}, {s(S_T5)}, 11
    s_lshl_b32 {s(S_T2)}, {s(S_W)}, 2
    s_add_u32 {s(S_T1)}, {s(S_T1)}, {s(S_T2)}
    s_add_u32 {s(S_T1)}, {s(S_T1)}, 8192
    v_add_u32 {v(V_P3V)}, {s(S_T1)}, {v(V_T2)}
    s_lshl_b32 {s(11)}, {s(S_G8)}, 2
    s_add_u32 {s(13)}, {s(11)}, {s(S_T5)}
    s_add_u32 {s(11)}, {s(11)}, {s(S_RH2)}
    s_lshl_b32 {s(11)}, {s(11)}, 1
    s_add_u32 {s(11)}, {s(11)}, {s(S_T4)}
    s_mul_i32 {s(S_Q)}, {s(11)}, 24576
    s_mul_i32 {s(S_T2)}, {s(S_W)}, 3072
    s_add_u32 {s(S_Q)}, {s(S_Q)}, {s(S_T2)}
    s_add_u32 {s(S_Q)}, {s(S_Q)}, {WS_QP}
    s_lshl_b32 {s(S_SQ)}, {s(11)}, 10
    s_add_u32 {s(S_SQ)}, {s(S_SQ)}, {WS_SQ}
    s_mul_i32 {s(S_V1)}, {s(13)}, 49152
    s_mul_i32 {s(S_T2)}, {s(S_W)}, 12288
    s_add_u32 {s(S_V1)}, {s(S_V1)}, {s(S_T2)}
    s_add_u32 {s(S_V1)}, {s(S_V1)}, {WS_VP}
    s_mul_i32 {s(S_T2)}, {s(S_RH2)}, 3072
    s_add_u32 {s(S_V0)}, {s(S_V1)}, {s(S_T2)}
    s_sub_u32 {s(S_V1)}, {s(S_V1)}, {s(S_T2)}
    s_add_u32 {s(S_V1)}, {s(S_V1)}, 6144
    s_add_u32 {s(S_Q2)}, {s(S_Q)}, 12288
    v_add_u32 {v(V_AD)}, {L_WVO}, {v(V_L16)}
    """)
    for q in range(3):
        kpos(g, q, 1024, L_WVO - q * 1024)
        g(f"s_mov_b32 {s(S_QM[q])}, m0")
    g(f"""
    v_bfe_u32 {v(V_T2)}, {v(V_I)}, 1, 2
    v_xor_b32 {v(V_T2)}, {v(V_T2)}, {v(V_G)}
    v_lshl_add_u32 {v(V_T2)}, {v(V_I)}, 2, {v(V_T2)}
    v_lshlrev_b32 {v(V_T2)}, 4, {v(V_T2)}
    s_lshl_b32 {s(S_T1)}, {s(S_W)}, 11
    v_add_u32 {v(V_AD+1)}, {s(S_T1)}, {v(V_T2)}
    s_lshl_b32 {s(S_T1)}, {s(S_W)}, 8
    s_add_u32 {s(S_T1)}, {s(S_T1)}, {L_ML}
    v_lshlrev_b32 {v(V_T3)}, 3, {v(V_I)}
    v_add_u32 {v(V_AD+2)}, {s(S_T1)}, {v(V_T3)}
    s_and_b32 {s(13)}, {s(S_W)}, 1
    s_lshl_b32 {s(S_T1)}, {s(13)}, 7
    s_add_u32 {s(S_T1)}, {s(S_T1)}, {L_ML}
    v_lshrrev_b32 {v(V_T4)}, 2, {v(V_L)}
    v_lshlrev_b32 {v(V_T3)}, 3, {v(V_T4)}
    v_add_u32 {v(V_AD+3)}, {s(S_T1)}, {v(V_T3)}
    v_bfe_u32 {v(V_T3)}, {v(V_L)}, 3, 2
    v_xor_b32 {v(V_T3)}, {v(V_T3)}, {v(V_L)}
    v_lshlrev_b32 {v(V_T3)}, 4, {v(V_T3)}
    s_lshl_b32 {s(S_T1)}, {s(S_W)}, 13
    v_add_u32 {v(213)}, {s(S_T1)}, {v(V_T3)}
    v_and_b32 {v(V_T3)}, 3, {v(V_L)}
    v_lshlrev_b32 {v(V_T2)}, 4, {v(V_T4)}
    v_lshl_add_u32 {v(V_RSA)}, {v(V_T3)}, 8, {v(V_T2)}
    s_lshl_b32 {s(S_U1)}, {s(S_T4)}, 2
    s_add_u32 {s(S_U1)}, {s(S_U1)}, {s(S_RH2)}
    s_add_u32 {s(S_U1)}, {s(S_U1)}, {s(13)}
    s_lshl_b32 {s(S_U1)}, {s(S_U1)}, 4
    s_lshl_b32 {s(S_T2)}, {s(S_G8)}, 8
    s_add_u32 {s(S_U1)}, {s(S_U1)}, {s(S_T2)}
    s_mul_i32 {s(S_U1)}, {s(S_U1)}, 768
    s_mul_i32 {s(S_T2)}, {s(S_T5)}, 192
    s_add_u32 {s(S_U1)}, {s(S_U1)}, {s(S_T2)}
    s_lshr_b32 {s(S_T2)}, {s(S_W)}, 1
    s_lshl_b32 {s(S_T2)}, {s(S_T2)}, 6
    s_add_u32 {s(S_U0)}, {s(S_T2)}, {s(S_U1)}
    v_mul_u32_u24 {v(V_T4)}, 768, {v(V_T4)}
    v_lshl_add_u32 {v(A2[0])}, {v(V_T3)}, 4, {v(V_T4)}
    """)


def kcheck(g):
    for n in range(24):
        mfma32(g, v(V_ACC + 32 + 4 * (n & 1), 4), v(V_ONES, 4), kreg(2 + n // 12, n % 12), "0" if n < 2 else None)


def wbl2(g):
    sk = g.label("nowb")
    g(f"""
    s_lshl_b32 {s(S_T0)}, {s(S_J)}, 2
    s_add_u32 {s(S_T0)}, {s(S_T0)}, {s(S_W)}
    s_and_b32 {s(S_T0)}, {s(S_T0)}, {g.opts.get("wbm", 127)}
    s_cmp_lg_u32 {s(S_T0)}, 3
    s_cbranch_scc1 {sk}
    buffer_wbl2 sc1
    {sk}:
    """)


def p3(g, nk):
    SA = V_ACC
    LS = V_ACC + 32
    MX = V_ACC + 40
    SQ = V_ACC + 42
    OA = V_BUF
    QB = V_BUF + 32
    PF = V_XF
    BS = OA
    V_RW, V_MW, V_MR, V_RR, V_OO = V_AD + 1, V_AD + 2, V_AD + 3, 213, A2[0]
    g(f"""
    s_mov_b32 {s(S_SPIN)}, {SPIN_LIMIT}
    L_e3:
    """)
    for u in range(2):
        g(f"buffer_load_dwordx2 {v(SG+4+2*u,2)}, {v(V_L8)}, {s(SRD_WS,4)}, {s(S_SQ)} offen offset:{u*512} sc1")
    g("s_waitcnt vmcnt(0)")
    for q in range(4):
        g(f"v_xor_b32 {v(SG+4+q)}, {s(S_TAG+2)}, {v(SG+4+q)}")
    g(f"""
    v_or3_b32 {v(V_T0)}, {v(SG+4)}, {v(SG+5)}, {v(SG+6)}
    v_or_b32 {v(V_T0)}, {v(V_T0)}, {v(SG+7)}
    v_and_b32 {v(V_T0)}, 0xff, {v(V_T0)}
    v_cmp_ne_u32 vcc, 0, {v(V_T0)}
    s_cbranch_vccz L_e3ok
    s_sub_u32 {s(S_SPIN)}, {s(S_SPIN)}, 1
    s_cbranch_scc0 L_e3
    L_e3ok:
    """)
    g.stamp('e3ok')

    def qdma(u, so):
        for q in range(3):
            g(f"s_add_u32 m0, {s(S_QM[q])}, {u*12288}")
            g("s_nop 0")
            g(f"buffer_load_dwordx4 {v(V_L16)}, {s(SRD_WS,4)}, {s(so)} offen offset:{q*1024} sc1 lds")
    qdma(0, S_Q)
    q1 = capture(g, lambda: qdma(1, S_Q2))
    early = ["\n".join(q1[3*q:3*q+3]) for q in range(3)] + [f"buffer_load_dword {v(V_T7)}, {v(V_P3V)}, {s(SRD_WS,4)}, {s(S_P3F)} offen sc1"]
    vl = []
    for pr, so in ((0, S_V0), (1, S_V1)):
        for c in range(6):
            vo, off = (V_L16, c * 1024) if c < 4 else (V_L16H, (c - 4) * 1024)
            vl.append(f"buffer_load_dwordx4 {a(A_V+(pr*6+c)*4,4)}, {v(vo)}, {s(SRD_WS,4)}, {s(so)} offen offset:{off} sc1")
    late = KL[nk:48] + vl + KL[48:]
    nkl = 48 - min(nk, 48)
    late = early + late
    PRE = g.opts.get("p3pre", 4)
    for x in late[:PRE]:
        g(x)
    g("s_waitcnt lgkmcnt(0)")
    g.stamp('q1')
    for u in range(2):
        g(f"v_add_f32 {v(SQ+u)}, {v(SG+4+2*u)}, {v(SG+5+2*u)}")
    for u in range(2):
        g(f"v_mov_b32 {v(SG+u)}, {v(SQ+u)}")
    g.nop(1)
    for u in range(2):
        g(f"v_permlane16_swap_b32 {v(SQ+u)}, {v(SG+u)}")
    for u in range(2):
        g(f"v_add_f32 {v(SQ+u)}, {v(SQ+u)}, {v(SG+u)}")
    for u in range(2):
        g(f"v_mov_b32 {v(SG+u)}, {v(SQ+u)}")
    g.nop(1)
    for u in range(2):
        g(f"v_permlane32_swap_b32 {v(SQ+u)}, {v(SG+u)}")
    for u in range(2):
        g(f"v_add_f32 {v(SG+2+2*u)}, {v(SQ+u)}, {v(SG+u)}")
        g(f"v_add_f32 {v(SG+3+2*u)}, {v(SQ+u)}, {v(SG+u)}")
    for u in range(2):
        for i in range(8):
            g(f"v_pk_mul_f32 {v(BS+16*u+2*i,2)}, {v(BK+2*i,2)}, {v(SG+2+2*u,2)}")
    g.stamp('q2')
    g(f"s_waitcnt vmcnt({PRE})")
    g.stamp('q3')
    g("s_barrier")
    g.stamp('qland')

    def softmax_lines(u, pk):
        d = SA + u * 16
        TMP = SG + 4 * u
        L = []
        if pk:
            for i in range(8):
                L.append(f"v_pk_fma_f32 {v(d+2*i,2)}, {v(d+2*i,2)}, {v(RK+2*i,2)}, {v(BS+16*u+2*i,2)} neg_lo:[0,0,1] neg_hi:[0,0,1]")
        else:
            for i in range(16):
                L.append(f"v_fma_f32 {v(d+i)}, {v(d+i)}, {v(RK+i)}, -{v(BS+16*u+i)}")
        nf = len(L)
        L.append(f"v_max3_f32 {v(MX+u)}, {v(d)}, {v(d+1)}, {v(d+2)}")
        for i in range(3, 15, 2):
            L.append(f"v_max3_f32 {v(MX+u)}, {v(MX+u)}, {v(d+i)}, {v(d+i+1)}")
        L.append(f"v_max_f32 {v(MX+u)}, {v(MX+u)}, {v(d+15)}")
        L += capture(g, lambda: xlane_sum(g, MX + u, TMP + 2, "v_max_f32"))
        if pk:
            L.append(f"v_mov_b32 {v(TMP)}, {v(MX+u)}")
            L.append(f"v_mov_b32 {v(TMP+1)}, {v(MX+u)}")
            for i in range(8):
                L.append(f"v_pk_add_f32 {v(d+2*i,2)}, {v(d+2*i,2)}, {v(TMP,2)} neg_lo:[0,1] neg_hi:[0,1]")
        else:
            for i in range(16):
                L.append(f"v_sub_f32 {v(d+i)}, {v(d+i)}, {v(MX+u)}")
        for i in range(16):
            L.append(f"v_exp_f32 {v(d+i)}, {v(d+i)}")
        return L, nf
    OV = g.opts.get("ov", 0)
    sm0, _ = softmax_lines(0, not OV)
    items = []
    rest = list(late[PRE:])
    issued = PRE
    nk2 = nkl + 4 - PRE
    KD = g.opts.get("kd", 2)
    L0 = max(g.opts.get("l0", 4), nk2 * KD + 2)
    LSPAN = g.opts.get("lspan", 84)
    lpos = [q * KD for q in range(nk2)] + [L0 + int(q * (LSPAN - L0) / 14) for q in range(14)]
    vchk = capture(g, lambda: (g(f"""
    s_waitcnt vmcnt(@V@)
    v_cmp_ne_u32 vcc, {s(S_NONCE)}, {v(V_T7)}
    s_cbranch_vccz L_v_ok
    """), poll(g, V_P3V, s(S_P3F), s(S_NONCE), "pv"), g("L_v_ok:")))
    pos = 0
    for ph, (slots, u) in enumerate((((0, 1), 0), ((0, 1), 1), ((2, 3), 0), ((2, 3), 1))):
        for ks in range(12):
            b = QB + ((ph * 12 + ks) % 8) * 4
            rd = [f"ds_read_b128 {v(b,4)}, {v(V_AD)} offset:{u*12288+ks*1024}"]
            cm = []
            for sl in slots:
                kidx = KORD.index((sl, ks))
                if kidx >= nk and u == 0:
                    assert issued - (4 + kidx - nk) - 1 >= 0
                    cm.append(f"s_waitcnt vmcnt({issued - (4 + kidx - nk) - 1})")
                d = SA + u * 16 + sl * 4
                cm.append(f"v_mfma_f32_16x16x32_bf16 {v(d,4)}, {kreg(sl,ks)}, {v(b,4)}, {'0' if ks == 0 else v(d,4)}")
                if pos == L0:
                    cm += [x.replace("@V@", str(issued - 4)) for x in vchk]
                for _ in range(lpos.count(pos)):
                    cm.append(rest.pop(0))
                    issued += 1
                pos += 1
            items.append((rd, cm, [], issued))
    assert not rest
    QD = g.opts.get('qd', 6)
    assert items[12 - QD - 1][3] >= 3
    items[12][2].extend([f"s_waitcnt vmcnt({items[12 - QD - 1][3] - 3})", "s_barrier"])
    if g.opts.get("wb", 2) == 1:
        items[12][2].extend(capture(g, lambda: wbl2(g)))
    pipelined(g, items, QD)
    g(f"""
    L_k_chk:
    v_cmp_u_f32 {s(S_M,2)}, {v(SA+8)}, {v(SA+9)}
    v_cmp_u_f32 s[16:17], {v(SA+10)}, {v(SA+11)}
    v_cmp_u_f32 s[14:15], {v(SA+12)}, {v(SA+13)}
    v_cmp_u_f32 vcc, {v(SA+14)}, {v(SA+15)}
    s_or_b64 {s(S_M,2)}, {s(S_M,2)}, s[16:17]
    s_or_b64 vcc, vcc, s[14:15]
    s_or_b64 {s(S_M,2)}, vcc, {s(S_M,2)}
    v_cmp_u_f32 vcc, {v(SA+16)}, {v(SA+16)}
    s_or_b64 vcc, vcc, {s(S_M,2)}
    s_cbranch_scc1 L_k_redo
    L_k_ok:
    """)
    for x in sm0:
        g(x)
    g.stamp('sdone')

    def cvts(u, odd):
        L = []
        for sl in range(4):
            for h in range(2):
                dst = PF + u * 8 + (sl >> 1) * 4 + ((sl & 1) ^ odd) * 2 + h
                src = SA + u * 16 + sl * 4 + 2 * h
                L.append(f"v_cvt_pk_bf16_f32 {v(dst)}, {v(src)}, {v(src+1)}")
        return L

    def cvt_branch(u):
        g.nop(1)
        for x in cvts(u, 0):
            g(x)

    def pv_lines(u):
        L = []
        for pr in range(2):
            p = v(PF + u * 8 + pr * 4, 4)
            for c in range(6):
                d = OA + u * 24 + c * 4
                L.append(f"v_mfma_f32_16x16x32_bf16 {v(d,4)}, {a(A_V+(pr*6+c)*4,4)}, {p}, {'0' if pr == 0 else v(d,4)}")
            L.append(f"v_mfma_f32_16x16x32_bf16 {v(LS+4*u,4)}, {v(V_ONES,4)}, {p}, {'0' if pr == 0 else v(LS+4*u,4)}")
        return L
    cvt_branch(0)
    sm1, _ = softmax_lines(1, True)
    ex = sm1[-16:]
    for x in sm1[:-16]:
        g(x)
    g("s_waitcnt vmcnt(0)")
    if g.opts.get("wb", 2) == 2:
        wbl2(g)
    for x in pv_lines(0):
        g(x)
        if ex:
            g(ex.pop(0))
    for x in ex:
        g(x)
    g.stamp('smax')
    cvt_branch(1)
    OUT = V_ACC
    unp = []
    for rnd in range(2):
        for i in range(8):
            src = V_RES + 4 * rnd + (i >> 1)
            unp.append(f"v_and_b32 {v(OUT+8*rnd+i)}, 0xffff0000, {v(src)}" if i & 1 else
                       f"v_lshlrev_b32 {v(OUT+8*rnd+i)}, 16, {v(src)}")
    g(f"v_mov_b32 {v(V_T4)}, {v(MX)}")
    g(f"v_mov_b32 {v(V_T5)}, {v(LS)}")
    w0 = [f"ds_write_b128 {v(V_RW)}, {v(OA+(2*m+h)*4,4)} offset:{2*m*8192+h*1024}" for m in range(3) for h in range(2)]
    w0.append(f"ds_write_b64 {v(V_MW)}, {v(V_T4,2)}")
    for n, x in enumerate(pv_lines(1)):
        g(x)
        if n % 2 == 1:
            g(w0.pop(0))
        else:
            g(unp.pop(0))
    g.stamp('pvdone')
    for x in unp[:3]:
        g(x)
    unp = unp[3:]
    for m in range(3):
        for h in range(2):
            g(f"ds_write_b128 {v(V_RW)}, {v(OA+24+(2*m+h)*4,4)} offset:{(2*m+1)*8192+h*1024}")
            g(unp.pop(0))
    g(f"""
    v_mov_b32 {v(V_T6)}, {v(MX+1)}
    v_mov_b32 {v(V_T7)}, {v(LS+4)}
    ds_write_b64 {v(V_MW)}, {v(V_T6,2)} offset:128
    s_waitcnt lgkmcnt(0)
    s_barrier
    """)
    g.stamp('redbar')
    ML = V_ACC + 16
    FW = V_ACC + 24
    RD = V_BUF
    for w in range(4):
        g(f"ds_read_b64 {v(ML+2*w,2)}, {v(V_MR)} offset:{w*256}")
    for w in range(4):
        for h in range(2):
            g(f"ds_read_b128 {v(RD+w*8+h*4,4)}, {v(V_RR)} offset:{w*2048+h*1024}")
    g(f"""
    s_waitcnt lgkmcnt(8)
    v_max3_f32 {v(V_T3)}, {v(ML)}, {v(ML+2)}, {v(ML+4)}
    v_max_f32 {v(V_T3)}, {v(V_T3)}, {v(ML+6)}
    """)
    for w in range(4):
        g(f"v_sub_f32 {v(FW+2*w)}, {v(ML+2*w)}, {v(V_T3)}")
    for w in range(4):
        g(f"v_exp_f32 {v(FW+2*w)}, {v(FW+2*w)}")
    g(f"""
    s_waitcnt lgkmcnt(2)
    s_cmp_ge_u32 {s(S_W)}, 2
    s_cbranch_scc1 L_nord2
    """)
    for w in range(4):
        for h in range(2):
            g(f"ds_read_b128 {v(RD+32+w*8+h*4,4)}, {v(V_RR)} offset:{32768+w*2048+h*1024}")
    g(f"""
    s_waitcnt lgkmcnt(8)
    s_branch L_rd1
    L_nord2:
    s_waitcnt lgkmcnt(0)
    L_rd1:
    v_mul_f32 {v(V_T3)}, {v(FW)}, {v(ML+1)}
    v_fmac_f32 {v(V_T3)}, {v(FW+2)}, {v(ML+3)}
    v_fmac_f32 {v(V_T3)}, {v(FW+4)}, {v(ML+5)}
    v_fmac_f32 {v(V_T3)}, {v(FW+6)}, {v(ML+7)}
    v_rcp_f32 {v(V_T3)}, {v(V_T3)}
    s_nop 0
    """)
    for w in range(4):
        g(f"v_mul_f32 {v(FW+2*w)}, {v(FW+2*w)}, {v(V_T3)}")
        g(f"v_mov_b32 {v(FW+2*w+1)}, {v(FW+2*w)}")
    osc = " sc1" if g.opts.get("outsc1", 0) else (" nt" if g.opts.get("outnt", 0) else "")
    for rnd in range(2):
        if rnd == 1:
            g(f"""
            s_cmp_ge_u32 {s(S_W)}, 2
            s_cbranch_scc1 L_fin
            """)
        for w in range(4):
            if rnd == 1:
                g(f"s_waitcnt lgkmcnt({6-2*w})")
            for i in range(4):
                g(f"v_pk_fma_f32 {v(OUT+8*rnd+2*i,2)}, {v(RD+32*rnd+w*8+2*i,2)}, {v(FW+2*w,2)}, {v(OUT+8*rnd+2*i,2)}")
        PK = V_ACC + 32 + 4 * rnd
        if rnd == 0 and g.opts.get("perturb", 0):
            g(f"""
            s_or_b32 {s(S_T0)}, s2, {s(S_W)}
            s_cmp_lg_u32 {s(S_T0)}, 0
            s_cbranch_scc1 L_nopert
            s_mov_b64 exec, 1
            v_add_f32 {v(OUT)}, {f2u(g.opts["perturb"]/1000.):#x}, {v(OUT)}
            s_mov_b64 exec, -1
            L_nopert:
            """)
        for i in range(4):
            g(f"v_cvt_pk_bf16_f32 {v(PK+i)}, {v(OUT+8*rnd+2*i)}, {v(OUT+8*rnd+2*i+1)}")
        if rnd == 0:
            g(f"buffer_store_dwordx4 {v(PK,4)}, {v(V_OO)}, {s(SRD_OUT,4)}, {s(S_U0)} offen{osc}")
        else:
            g(f"buffer_store_dwordx4 {v(PK,4)}, {v(V_OO)}, {s(SRD_OUT,4)}, {s(S_U1)} offen offset:128{osc}")
    g("L_fin:")


def redo_blocks(g):
    g(f"""
    L_p2_redo:
    s_sub_u32 {s(S_RETRY)}, {s(S_RETRY)}, 1
    s_cbranch_scc1 L_p2_give
    s_waitcnt vmcnt(0)
    """)
    g.stamp('redo')
    for x in KL[:24]:
        g(x)
    g(f"""
    s_waitcnt vmcnt(0)
    s_bitcmp0_b32 {s(S_J)}, 3
    s_cbranch_scc1 L_p2_go0
    s_branch L_p2_go1
    L_p2_give:
    s_mov_b32 {s(S_RETRY)}, 0
    s_bitcmp0_b32 {s(S_J)}, 3
    s_cbranch_scc1 L_p2_q_on
    s_branch L_p2_v_on
    L_k_redo:
    s_sub_u32 {s(S_RETRY)}, {s(S_RETRY)}, 1
    s_cbranch_scc1 L_k_ok
    """)
    g.stamp('redo')
    g("s_waitcnt vmcnt(0)")
    for x in KL[24:48]:
        g(x)
    g(f"""
    s_mul_i32 {s(S_T3)}, {s(S_W)}, 3072
    s_sub_u32 {s(S_T3)}, {s(S_Q)}, {s(S_T3)}
    s_mul_i32 {s(S_T0)}, {s(S_W)}, 3
    s_sub_u32 {s(S_RHO)}, {s(S_RHO)}, {s(S_T0)}
    s_mov_b32 {s(S_SPIN)}, 12
    L_q_rw:
    """)
    kpos(g, 0, 1024, L_WVO)
    g(f"""
    s_add_u32 {s(S_T1)}, {s(S_T3)}, 12288
    buffer_load_dwordx4 {v(V_L16)}, {s(SRD_WS,4)}, {s(S_T3)} offen sc1 lds
    s_add_u32 m0, m0, 12288
    s_add_u32 {s(S_T3)}, {s(S_T3)}, 1024
    buffer_load_dwordx4 {v(V_L16)}, {s(SRD_WS,4)}, {s(S_T1)} offen sc1 lds
    s_add_u32 {s(S_RHO)}, {s(S_RHO)}, 1
    s_sub_u32 {s(S_SPIN)}, {s(S_SPIN)}, 1
    s_cmp_lg_u32 {s(S_SPIN)}, 0
    s_cbranch_scc1 L_q_rw
    s_sub_u32 {s(S_T0)}, {s(S_T0)}, 12
    s_add_u32 {s(S_RHO)}, {s(S_RHO)}, {s(S_T0)}
    s_waitcnt vmcnt(0)
    """)
    items = []
    for u in range(2):
        for ks in range(12):
            b = V_BUF + 32 + ((u * 12 + ks) % 8) * 4
            cm = []
            for sl in range(4):
                d = V_ACC + u * 16 + sl * 4
                cm.append(f"v_mfma_f32_16x16x32_bf16 {v(d,4)}, {kreg(sl,ks)}, {v(b,4)}, {'0' if ks == 0 else v(d,4)}")
            items.append(([f"ds_read_b128 {v(b,4)}, {v(V_AD)} offset:{u*12288+ks*1024}"], cm))
    pipelined(g, items, 6)
    g.nop(8)
    g("s_branch L_k_chk")


def epilogue(g):
    g(f"""
    s_or_b32 {s(S_T0)}, s2, {s(S_W)}
    s_cmp_lg_u32 {s(S_T0)}, 0
    s_cbranch_scc1 L_nononce
    s_mov_b64 exec, 1
    buffer_store_dword {v(V_NONCE)}, {v(V_ZERO)}, {s(SRD_WS,4)}, 0 offen
    s_mov_b64 exec, -1
    L_nononce:
    """)
    if g.stamps:
        g(f"""
        s_cmp_lg_u32 {s(S_W)}, 0
        s_cbranch_scc1 L_end
        s_waitcnt vmcnt(0)
        s_memtime s[98:99]
        s_memrealtime s[100:101]
        s_waitcnt lgkmcnt(0)
        s_lshl_b32 {s(S_T0)}, s2, 8
        s_add_u32 {s(S_T0)}, {s(S_T0)}, {WS_STAMP}
        v_mov_b32 {v(V_T1)}, 0
        s_mov_b64 exec, 1
        """)
        for i in range(20):
            g(f"v_mov_b32 {v(V_T0)}, s{S_STAMP+i}")
            g(f"buffer_store_dword {v(V_T0)}, {v(V_T1)}, {s(SRD_WS,4)}, {s(S_T0)} offen offset:{4*i}")
            g("s_nop 1")
    if g.opts.get("dbg", 0):
        g(f"""
        s_cmp_lg_u32 {s(S_W)}, 0
        s_cbranch_scc1 L_end
        s_cmp_ge_u32 {s(S_CS)}, 6
        s_cbranch_scc1 L_end
        s_waitcnt vmcnt(0)
        s_memrealtime s[98:99]
        s_waitcnt lgkmcnt(0)
        s_not_b32 s84, s84
        v_mov_b32 {v(V_T1)}, 0
        s_mov_b64 exec, 1
        """)
        for i in range(8):
            g(f"v_mov_b32 {v(V_T0)}, s{84+2*i}")
            g(f"global_atomic_umax {v(V_T1)}, {v(V_T0)}, s[82:83] offset:{4*i}")
            g("s_nop 1")
    g("L_end:")
    g("s_endpgm")


def build(stamps=False, opts=None):
    g = G(stamps, opts)
    prologue(g)
    p0_issue(g)
    g("s_branch L_main")
    products(g)
    g("L_main:")
    p0_main(g)
    p1(g)
    nk = p2(g)
    p3(g, nk)
    epilogue(g)
    redo_blocks(g)
    products_body(g)
    g("L_code_end:")
    hdr = f"""; TimeSformer divided space-time attention block, one persistent launch (256 workgroups, one per CU).
{('; wsstamp:%d' % WS_STAMP + chr(10)) if stamps else ''}; @launch grid=(256,1,1) block=(256,1,1) lds={LDS_SIZE}
.amdgcn_target "amdgcn-amd-amdhsa--gfx950"
.text
.globl {KNAME}
.p2align 8
.type {KNAME},@function
{KNAME}:
"""
    ftr = f"""
.section .rodata,"a"
.p2align 6
.amdhsa_kernel {KNAME}
  .amdhsa_next_free_vgpr 512
  .amdhsa_next_free_sgpr 102
  .amdhsa_accum_offset 256
  .amdhsa_group_segment_fixed_size 0
  .amdhsa_kernarg_size 64
  .amdhsa_user_sgpr_count 2
  .amdhsa_user_sgpr_kernarg_segment_ptr 1
  .amdhsa_system_sgpr_workgroup_id_x 1
.end_amdhsa_kernel
"""
    return hdr + "\n".join(g.L) + ftr


if __name__ == "__main__":
    out = sys.argv[1]
    stamps = None
    opts = {}
    for x in sys.argv[2:]:
        if x.startswith("--stamps="):
            stamps = ["start"] + x.split("=")[1].split(",")
            assert len(stamps) <= 7
        elif "=" in x:
            k, val = x.split("=")
            opts[k] = int(val)
    open(out, "w").write(build(stamps, opts))
```

```python
import sys, math

KNAME = "standalone__video_timesformer__vision_kernel"

WS_NONCE = 0
WS_FXCC = 0x1000
WS_F2 = 0x13000
WS_SP = 0x1B000
WS_STX = 0x7B000
WS_WVOT = 0xB3000
WS_WS2 = 0xFB000
WS_X1 = 0x18B000
WS_QP = 0x30B000
WS_VP = 0x48B000
WS_CSP = 0x60B000
WS_FP = 0x617000
FP_REP = 96 * 128
WS_SQ = WS_FP + 8 * FP_REP
WS_STAMP = WS_SQ + 0x10000
WS_SIZE = WS_STAMP + 256 * 256

L_W = 0
L_WVO = 98304
L_T = 81920
L_CT0 = 147456
L_CT1 = L_CT0 + 1024
L_CT2 = L_CT1 + 512
L_ML = L_CT2 + 1024
L_ST = L_ML + 1024
L_SG = L_ST + 3072
LDS_SIZE = L_SG + 512

SPIN_LIMIT = 40000
SCALE_LOG2E = (384 ** -0.5) * math.log2(math.e)


def f2u(x):
    import struct
    return struct.unpack("<I", struct.pack("<f", x))[0]


DBG_STAMPS = ['xarr0', 'chunk0', 'sstored', 'x1st', 'x1ok', 'e3ok']


class G:
    def __init__(self, stamps=False, opts=None):
        self.L = []
        self.stamps = stamps
        self.nstamp = 0
        self.uid = 0
        self.opts = opts or {}

    def __call__(self, s):
        for line in s.split("\n"):
            line = line.strip()
            if line:
                self.L.append("    " + line if not line.endswith(":") else line)

    def label(self, p):
        self.uid += 1
        return f"L_{p}_{self.uid}"

    def nop(self, n):
        while n > 0:
            k = min(n, 16)
            self(f"s_nop {k-1}")
            n -= k

    def stamp(self, name, wait=True):
        if self.opts.get("dbg", 0) and name in DBG_STAMPS:
            k = 86 + 2 * DBG_STAMPS.index(name)
            self(f"s_memrealtime s[{k}:{k+1}]")
        if self.stamps and name in self.stamps:
            idx = 1 + self.stamps.index(name)
            self(f"s_memtime s[{S_STAMP+2*idx}:{S_STAMP+2*idx+1}]")
            if wait:
                self("s_waitcnt lgkmcnt(0)")


def v(a, n=1):
    return f"v{a}" if n == 1 else f"v[{a}:{a+n-1}]"


def a(x, n=1):
    return f"a{x}" if n == 1 else f"a[{x}:{x+n-1}]"


def s(x, n=1):
    return f"s{x}" if n == 1 else f"s[{x}:{x+n-1}]"


S_X, S_WQT, S_WOT, S_WQS, S_WOS, S_OUT, S_DBG, S_WS = 4, 6, 8, 10, 12, 14, 16, 18
S_G8, S_J, S_W, S_NONCE, S_ME = 20, 21, 22, 23, 24
S_RB = 25
S_T0, S_T1, S_T2, S_T3 = 27, 28, 29, 30
S_SPIN = 31
SRD_WS = 32
SRD_A = 36
SRD_B = 40
SRD_OUT = 44
S_VALID = 48
S_G0 = 50
S_TAG = 52
S_M = 56
S_ONES = 58
S_RQ = 59
S_CS = 60
S_SLOW = 61
S_F1 = 62
S_F2 = 63
S_T4, S_T5, S_T6, S_T7 = 64, 65, 66, 67
S_DIAG = 100
S_STAMP = 82

V_TID, V_L, V_I, V_G = 0, 1, 2, 3
V_T0, V_T1, V_T2, V_T3, V_T4, V_T5, V_T6, V_T7 = 4, 5, 6, 7, 8, 9, 10, 11
V_ONES = 12
V_XF = 16
V_MU = 64
V_R = 66
V_MEAN = 67
V_L16 = 68
V_MASK = 69
V_S1A, V_S1B, V_S2A, V_S2B = 70, 71, 72, 73
V_AD = 74
V_BUF = 80
V_ACC = 144
V_MISC = 192
V_ZERO, V_NONCE, V_PA, V_PB = 228, 229, 230, 231
V_PS = 246


def row_stats_dots(g, lo, hi):
    for r in range(lo, hi):
        g(f"v_dot2c_f32_bf16 {v(V_S1A + (r & 1))}, {s(S_ONES)}, {v(V_XF + r)}")
        g(f"v_dot2c_f32_bf16 {v(V_S2A + (r & 1))}, {v(V_XF + r)}, {v(V_XF + r)}")


def xlane_sum(g, r, t, op="v_add_f32"):
    g(f"v_mov_b32 {v(t)}, {v(r)}")
    g.nop(2)
    g(f"v_permlane16_swap_b32 {v(r)}, {v(t)}")
    g.nop(1)
    g(f"{op} {v(r)}, {v(r)}, {v(t)}")
    g(f"v_mov_b32 {v(t)}, {v(r)}")
    g.nop(2)
    g(f"v_permlane32_swap_b32 {v(r)}, {v(t)}")
    g.nop(1)
    g(f"{op} {v(r)}, {v(r)}, {v(t)}")


def row_stats_finish(g):
    g.nop(3)
    g(f"v_add_f32 {v(V_S1A)}, {v(V_S1A)}, {v(V_S1B)}")
    g(f"v_add_f32 {v(V_S2A)}, {v(V_S2A)}, {v(V_S2B)}")
    xlane_sum(g, V_S1A, V_T0)
    xlane_sum(g, V_S2A, V_T1)
    g(f"""
    v_mul_f32 {v(V_MEAN)}, {f2u(1/384.):#x}, {v(V_S1A)}
    v_mul_f32 {v(V_T0)}, {f2u(1/384.):#x}, {v(V_S2A)}
    v_fma_f32 {v(V_T0)}, -{v(V_MEAN)}, {v(V_MEAN)}, {v(V_T0)}
    v_max_f32 {v(V_T0)}, 0, {v(V_T0)}
    v_add_f32 {v(V_T0)}, {f2u(1e-5):#x}, {v(V_T0)}
    v_rsq_f32 {v(V_R)}, {v(V_T0)}
    v_cvt_pk_bf16_f32 {v(V_T1)}, -{v(V_MEAN)}, -{v(V_MEAN)}
    v_lshlrev_b32 {v(V_T1)}, 16, {v(V_T1)}
    v_sub_f32 {v(V_T1)}, -{v(V_MEAN)}, {v(V_T1)}
    v_cvt_pk_bf16_f32 {v(V_T1)}, -{v(V_MEAN)}, {v(V_T1)}
    v_cndmask_b32 {v(V_MU)}, 0, {v(V_T1)}, {s(S_G0,2)}
    v_cndmask_b32 {v(V_MU+1)}, 0, {v(V_T1)}, {s(S_G0,2)}
    """)


def mean_rstd(g, s1, s2, mean, rstd):
    g(f"""
    v_mul_f32 {v(mean)}, {f2u(1/384.):#x}, {v(s1)}
    v_mul_f32 {v(rstd)}, {f2u(1/384.):#x}, {v(s2)}
    v_fma_f32 {v(rstd)}, -{v(mean)}, {v(mean)}, {v(rstd)}
    v_max_f32 {v(rstd)}, 0, {v(rstd)}
    v_add_f32 {v(rstd)}, {f2u(1e-5):#x}, {v(rstd)}
    v_rsq_f32 {v(rstd)}, {v(rstd)}
    """)


def mu_operand(g, mean, dst=V_MU):
    g(f"""
    v_cvt_pk_bf16_f32 {v(V_T1)}, -{v(mean)}, -{v(mean)}
    v_lshlrev_b32 {v(V_T1)}, 16, {v(V_T1)}
    v_sub_f32 {v(V_T1)}, -{v(mean)}, {v(V_T1)}
    v_cvt_pk_bf16_f32 {v(V_T1)}, -{v(mean)}, {v(V_T1)}
    v_cndmask_b32 {v(dst)}, 0, {v(V_T1)}, {s(S_G0,2)}
    v_cndmask_b32 {v(dst+1)}, 0, {v(V_T1)}, {s(S_G0,2)}
    """)


def colsum_pack(g, src, dst):
    g(f"""
    v_cvt_pk_bf16_f32 {v(dst)}, {v(src)}, {v(src)}
    v_lshlrev_b32 {v(dst+1)}, 16, {v(dst)}
    v_sub_f32 {v(dst+1)}, {v(src)}, {v(dst+1)}
    v_cvt_pk_bf16_f32 {v(dst+1)}, {v(dst+1)}, {v(dst+1)}
    """)


def poll(g, voff, soff, want, name, slp=0):
    lp, done = g.label(name), g.label(name + "_ok")
    g(f"s_mov_b32 {s(S_SPIN)}, {SPIN_LIMIT}")
    g(f"{lp}:")
    g(f"""
    buffer_load_dword {v(V_T7)}, {v(voff)}, {s(SRD_WS,4)}, {soff} offen sc1
    s_waitcnt vmcnt(0)
    v_cmp_ne_u32 vcc, {want}, {v(V_T7)}
    s_cbranch_vccz {done}
    {'s_sleep %d' % slp if slp else ''}
    s_sub_u32 {s(S_SPIN)}, {s(S_SPIN)}, 1
    s_cbranch_scc0 {lp}
    {done}:
    """)


def mfma32(g, d, A, B, c=None):
    g(f"v_mfma_f32_16x16x32_bf16 {d}, {A}, {B}, {c if c is not None else d}")


def mfma16(g, d, A, B, c=None):
    g(f"v_mfma_f32_16x16x16_bf16 {d}, {A}, {B}, {c if c is not None else d}")


def pipelined(g, items, depth_reads, group=1):
    n = len(items)
    issued = 0
    cum = [0]
    for it in items:
        cum.append(cum[-1] + len(it[0]))
    for i in range(0, n, group):
        hi = min(i + group, n)
        while issued < n and (issued < hi or cum[issued + 1] - cum[i] <= depth_reads):
            if len(items[issued]) > 2:
                for p in items[issued][2]:
                    g(p)
            for r in items[issued][0]:
                g(r)
            issued += 1
        g(f"s_waitcnt lgkmcnt({cum[issued] - cum[hi]})")
        for k in range(i, hi):
            for c in items[k][1]:
                g(c)


def capture(g, fn):
    keep = g.L
    g.L = []
    fn()
    out = [x.strip() for x in g.L]
    g.L = keep
    return out


def prologue(g):
    g(f"""
    s_cmp_ge_u32 s2, 256
    s_cbranch_scc1 L_end
    s_load_dwordx16 s[4:19], s[0:1], 0
    """)
    if g.opts.get("dbg", 0):
        g("s_load_dwordx2 s[82:83], s[0:1], 48")
        g("s_memrealtime s[84:85]")
    if g.stamps:
        for i in range(S_STAMP, 100):
            g(f"s_mov_b32 s{i}, 0")
        g(f"s_memrealtime s[{S_STAMP}:{S_STAMP+1}]")
        g.stamp('start', False)
    g(f"""
    s_and_b32 {s(S_G8)}, s2, 7
    s_lshr_b32 {s(S_J)}, s2, 3
    v_lshrrev_b32 {v(V_T0)}, 6, v0
    v_and_b32 {v(V_L)}, 63, v0
    v_readfirstlane_b32 {s(S_W)}, {v(V_T0)}
    v_and_b32 {v(V_I)}, 15, v0
    v_bfe_u32 {v(V_G)}, v0, 4, 2
    v_lshlrev_b32 {v(V_L16)}, 4, {v(V_L)}
    """)
    if g.opts.get("codepf", 1):
        NL = g.opts.get("cpl", 3)
        g(f"""
        s_getpc_b64 {s(S_M,2)}
        L_pc:
        s_lshl_b32 {s(S_T0)}, {s(S_J)}, 2
        s_add_u32 {s(S_T0)}, {s(S_T0)}, {s(S_W)}
        s_mul_i32 {s(S_T0)}, {s(S_T0)}, {128*NL}
        s_min_u32 {s(S_T0)}, {s(S_T0)}, L_code_end-L_pc-{128*NL}
        v_lshlrev_b32 {v(V_T0)}, 7, {v(V_L)}
        v_add_u32 {v(V_T1)}, {s(S_T0)}, {v(V_T0)}
        s_mov_b64 exec, {(1 << NL) - 1}
        global_load_dword {v(V_MISC+62)}, {v(V_T1)}, {s(S_M,2)}
        s_mov_b64 exec, -1
        """)
    g(f"""
    s_lshr_b32 {s(S_RQ)}, {s(S_J)}, 3
    s_and_b32 {s(S_CS)}, {s(S_J)}, 7
    s_lshl_b32 {s(S_RB)}, {s(S_RQ)}, 3
    s_add_u32 {s(S_RB)}, {s(S_RB)}, {s(S_G8)}
    s_mov_b32 {s(SRD_A+3)}, 0x20000
    s_mov_b32 {s(SRD_B+3)}, 0x20000
    s_mov_b32 {s(SRD_WS+3)}, 0x20000
    s_mov_b32 {s(SRD_WS+2)}, {WS_SIZE}
    s_cmp_ge_u32 {s(S_CS)}, 6
    s_cbranch_scc1 L_products
    """)
    p0_pre(g)
    g(f"""
    s_waitcnt lgkmcnt(0)
    s_load_dword {s(S_NONCE)}, {s(S_WS,2)}, {WS_NONCE}
    """)


def common_consts(g):
    g(f"""
    s_mov_b32 {s(SRD_WS)}, {s(S_WS)}
    s_mov_b32 {s(SRD_WS+1)}, {s(S_WS+1)}
    s_mov_b32 {s(SRD_OUT)}, {s(S_OUT)}
    s_mov_b32 {s(SRD_OUT+1)}, {s(S_OUT+1)}
    s_mov_b32 {s(SRD_OUT+2)}, 1572864
    s_mov_b32 {s(SRD_OUT+3)}, 0x20000
    s_mov_b32 {s(S_ONES)}, 0x3f803f80
    s_getreg_b32 {s(S_ME)}, hwreg(HW_REG_XCC_ID, 0, 3)
    v_mov_b32 {v(V_ONES)}, {s(S_ONES)}
    v_mov_b32 {v(V_ONES+1)}, {s(S_ONES)}
    v_mov_b32 {v(V_ONES+2)}, {s(S_ONES)}
    v_mov_b32 {v(V_ONES+3)}, {s(S_ONES)}
    v_mov_b32 {v(V_MASK)}, 0xffffff00
    v_mov_b32 {v(V_ZERO)}, 0
    v_cmp_eq_u32 {s(S_G0,2)}, 0, {v(V_G)}
    v_lshrrev_b32 {v(V_T0)}, 1, {v(V_G)}
    v_lshrrev_b32 {v(V_T1)}, 3, {v(V_I)}
    v_cmp_eq_u32 {s(S_VALID,2)}, {v(V_T0)}, {v(V_T1)}
    v_lshrrev_b32 {v(V_T1)}, 2, {v(V_I)}
    v_cmp_eq_u32 {s(S_DIAG,2)}, {v(V_G)}, {v(V_T1)}
    """)
    g(f"""
    s_lshl_b32 {s(S_T0)}, {s(S_G8)}, 7
    s_add_u32 {s(S_T0)}, {s(S_T0)}, {WS_FXCC}
    v_and_b32 {v(V_T1)}, 31, {v(V_L)}
    v_lshlrev_b32 {v(V_T1)}, 10, {v(V_T1)}
    v_add_u32 {v(V_PA)}, {s(S_T0)}, {v(V_T1)}
    v_min_u32 {v(V_PB)}, 11, {v(V_L)}
    s_mul_i32 {s(S_T1)}, {s(S_G8)}, {FP_REP}
    v_lshlrev_b32 {v(V_PB)}, 7, {v(V_PB)}
    s_bitcmp0_b32 {s(S_J)}, 3
    s_cselect_b32 {s(S_T0)}, 0, {12*128}
    s_add_u32 {s(S_T0)}, {s(S_T0)}, {WS_FP+36*128}
    s_add_u32 {s(S_T0)}, {s(S_T0)}, {s(S_T1)}
    v_add_u32 {v(V_PB)}, {s(S_T0)}, {v(V_PB)}
    v_min_u32 {v(V_T0)}, 5, {v(V_L)}
    v_mul_u32_u24 {v(V_T0)}, 768, {v(V_T0)}
    s_lshl_b32 {s(S_T0)}, {s(S_CS)}, 7
    s_add_u32 {s(S_T0)}, {s(S_T0)}, {s(S_T1)}
    s_add_u32 {s(S_T0)}, {s(S_T0)}, {WS_FP}
    v_add_u32 {v(V_PS)}, {s(S_T0)}, {v(V_T0)}
    """)


def nonce_and_publish(g):
    g(f"""
    s_waitcnt lgkmcnt(0)
    s_and_b32 {s(S_T0)}, {s(S_NONCE)}, 0x78787878
    s_add_u32 {s(S_T0)}, {s(S_T0)}, 0x08080808
    s_and_b32 {s(S_T1)}, {s(S_NONCE)}, 0x80808080
    s_xor_b32 {s(S_NONCE)}, {s(S_T0)}, {s(S_T1)}
    s_or_b32 {s(S_ME)}, {s(S_ME)}, {s(S_NONCE)}
    s_lshl_b32 {s(S_T0)}, s2, 7
    s_add_u32 {s(S_T0)}, {s(S_T0)}, {WS_FXCC}
    v_mov_b32 {v(V_T0)}, {s(S_ME)}
    v_mov_b32 {v(V_NONCE)}, {s(S_NONCE)}
    s_mov_b64 exec, 1
    buffer_store_dword {v(V_T0)}, {v(V_ZERO)}, {s(SRD_WS,4)}, {s(S_T0)} offen sc1
    """)
    if g.opts.get("tlb", 0):
        sh = g.opts.get("tlbs", 19)
        g(f"""
        s_mov_b64 exec, {(1 << min(16, (WS_SIZE >> sh) + 1)) - 1}
        v_lshlrev_b32 {v(V_T1)}, {sh}, {v(V_L)}
        v_add_u32 {v(V_T1)}, 64, {v(V_T1)}
        buffer_load_dword {v(254)}, {v(V_T1)}, {s(SRD_WS,4)}, 0 offen
        buffer_load_dword {v(255)}, {v(V_T1)}, {s(SRD_OUT,4)}, 0 offen
        """)
    g(f"""
    s_mov_b64 exec, -1
    s_and_b32 {s(S_TAG)}, {s(S_NONCE)}, 0xff
    s_bfe_u32 {s(S_TAG+1)}, {s(S_NONCE)}, 0x80008
    s_bfe_u32 {s(S_TAG+2)}, {s(S_NONCE)}, 0x80010
    s_lshr_b32 {s(S_TAG+3)}, {s(S_NONCE)}, 24
    """)


def flag_store(g, soff, rep):
    sk = g.label("nofl")
    g(f"""
    s_cmp_lg_u32 {s(S_W)}, 0
    s_cbranch_scc1 {sk}
    v_mul_u32_u24 {v(V_T0)}, {rep}, {v(V_L)}
    s_mov_b64 exec, 0xff
    buffer_store_dword {v(V_NONCE)}, {v(V_T0)}, {s(SRD_WS,4)}, {soff} offen sc1
    s_mov_b64 exec, -1
    {sk}:
    """)


def pa_eval(g):
    g(f"""
    v_and_b32 {v(V_T6)}, -8, {v(V_T7)}
    v_cmp_ne_u32 vcc, {s(S_NONCE)}, {v(V_T6)}
    s_mov_b32 {s(S_F1)}, vcc_lo
    v_cmp_ne_u32 vcc, {s(S_ME)}, {v(V_T7)}
    s_mov_b32 {s(S_SLOW)}, vcc_lo
    """)


def pa_wait(g, reg, name):
    lp, done = g.label(name), g.label(name + "_ok")
    g(f"""
    s_cmp_eq_u32 {s(reg)}, 0
    s_cbranch_scc1 {done}
    s_mov_b32 {s(S_SPIN)}, {SPIN_LIMIT}
    {lp}:
    buffer_load_dword {v(V_T7)}, {v(V_PA)}, {s(SRD_WS,4)}, 0 offen sc1
    s_waitcnt vmcnt(0)
    """)
    pa_eval(g)
    g(f"""
    s_cmp_eq_u32 {s(reg)}, 0
    s_cbranch_scc1 {done}
    s_sub_u32 {s(S_SPIN)}, {s(S_SPIN)}, 1
    s_cbranch_scc0 {lp}
    {done}:
    """)


def both_modes(g, emit):
    ls, le = g.label("slow"), g.label("join")
    g(f"""
    s_cmp_lg_u32 {s(S_SLOW)}, 0
    s_cbranch_scc1 {ls}
    """)
    emit(" sc1" if g.opts.get("allsc1", 0) else (" nt" if g.opts.get("fastnt", 0) else ""))
    g(f"s_branch {le}")
    g(f"{ls}:")
    emit(" sc1")
    g(f"{le}:")


S_WD0, S_WD1 = S_T6, S_T7
S_SPO = S_T4
S_WV, S_WVI = 0, 1
XR = V_MISC
VW = V_MISC + 8
VS = V_MISC + 12
RS = V_MISC + 16
FS = V_MISC + 20
V_XO = V_MISC + 14
S_XO = 26


S_SG, S_W0 = 76, 77


def wchunk(g):
    g(f"s_mov_b32 m0, {s(S_WD1)}")
    g(f"s_add_u32 {s(S_WD1)}, {s(S_WD1)}, 16384")
    for q in range(4):
        g(f"buffer_load_dwordx4 {v(VW+q)}, {s(SRD_B,4)}, {s(S_WD0)} offen offset:{q*1024}{ntf(g, 2)} lds")
    g(f"s_add_u32 {s(S_WD0)}, {s(S_WD0)}, {8*18432}")
    if g.opts.get("xrot", 0):
        g(f"""
        s_add_u32 {s(S_W0)}, {s(S_W0)}, 1
        s_cmp_eq_u32 {s(S_W0)}, 6
        s_cselect_b32 {s(S_T0)}, {6*8*18432}, 0
        s_sub_u32 {s(S_WD0)}, {s(S_WD0)}, {s(S_T0)}
        """)


def wvo_group(g, st, srd=SRD_WS):
    if g.opts.get("xrot", 0):
        g(f"""
        s_add_u32 {s(S_T1)}, {s(S_WK)}, {4*st}
        s_cmp_ge_u32 {s(S_T1)}, 12
        s_cselect_b32 {s(S_T2)}, -49152, 0
        s_add_u32 m0, {s(S_SIG2)}, {L_WVO + st*16384}
        s_add_u32 {s(S_T1)}, {s(S_WV)}, {st*16384}
        s_add_u32 {s(S_T1)}, {s(S_T1)}, {s(S_T2)}
        """)
    else:
        g(f"""
        s_add_u32 m0, {s(S_SIG2)}, {L_WVO + st*16384}
        s_add_u32 {s(S_T1)}, {s(S_WV)}, {st*16384}
        """)
    for q in range(4):
        g(f"buffer_load_dwordx4 {v(V_L16)}, {s(srd,4)}, {s(S_T1)} offen offset:{q*1024} sc1 lds")


SMR = [V_T2, V_T3, V_T4, V_T5]
S_RETRY = 70
S_WK = 12
NANQ = 220
NANQ2 = 232


def sample(dst):
    return f"buffer_load_dword {v(dst)}, {v(V_PS)}, {s(SRD_WS,4)}, 0 offen sc1"


S_CH, S_WSTEP, S_XSTEP, S_SIG2, S_XR = 68, 69, 70, 71, 72
S_X1O, S_FXO, S_STO = 73, 74, 75
A1 = [236, 237, 238]
C1 = [239, 240]
XA = 241


def row_dma(g, srd, vo, so, seg, nt=""):
    g(f"buffer_load_dwordx4 {v(vo)}, {s(srd,4)}, {s(so)} offen{nt} lds")
    g(f"buffer_load_dwordx4 {v(vo+1)}, {s(srd,4)}, {s(so)} offen offset:1024{nt} lds")


def ntf(g, bit):
    return " nt" if g.opts.get("nt", 25) & bit else ""


def p0_issue(g):
    g(f"""
    s_sub_u32 {s(SRD_A)}, {s(S_X)}, 1024
    s_subb_u32 {s(SRD_A+1)}, {s(S_X+1)}, 0
    s_mov_b32 {s(SRD_A+2)}, {1572864+1024}
    s_sub_u32 {s(SRD_B)}, {s(S_WQT)}, 4096
    s_subb_u32 {s(SRD_B+1)}, {s(S_WQT+1)}, 0
    s_mov_b32 {s(SRD_B+2)}, {884736+4096}
    """)
    g.stamp('x0', False)
    for seg in range(6):
        row_dma(g, SRD_A, V_XO, S_XO, seg, ntf(g, 1))
        if seg < 5:
            g(f"s_add_u32 m0, m0, 2048")
            g(f"s_add_u32 {s(S_XO)}, {s(S_XO)}, 128")
            if g.opts.get("xrot", 0):
                g(f"s_cmp_eq_u32 {s(S_SG)}, {5-seg}")
                g(f"s_cselect_b32 {s(S_T0)}, 768, 0")
                g(f"s_sub_u32 {s(S_XO)}, {s(S_XO)}, {s(S_T0)}")
    WT = g.opts.get("wt", 0)
    if WT:
        g(f"""
        s_mul_i32 {s(S_T0)}, {s(S_RB)}, 6
        s_add_u32 {s(S_T0)}, {s(S_T0)}, {s(S_CS)}
        s_lshl_b32 {s(S_T0)}, {s(S_T0)}, 2
        s_add_u32 {s(S_T0)}, {s(S_T0)}, {s(S_W)}
        s_mul_i32 {s(S_T1)}, {s(S_T0)}, 2304
        s_add_u32 {s(S_T1)}, {s(S_T1)}, 1536
        s_mul_i32 {s(S_T2)}, {s(S_T0)}, 768
        s_sub_u32 {s(S_T2)}, {s(S_T2)}, {384*768}
        s_cmp_lt_u32 {s(S_T0)}, 384
        s_cselect_b32 {s(S_T1)}, {s(S_T1)}, {s(S_T2)}
        s_cselect_b32 {s(S_M)}, {s(S_WQT)}, {s(S_WOT)}
        s_cselect_b32 {s(S_M+1)}, {s(S_WQT+1)}, {s(S_WOT+1)}
        v_lshlrev_b32 {v(V_T0)}, 7, {v(V_L)}
        v_add_u32 {v(V_T0)}, {s(S_T1)}, {v(V_T0)}
        s_mov_b64 exec, 63
        global_load_dword {v(255)}, {v(V_T0)}, {s(S_M,2)}
        s_mov_b64 exec, -1
        """)
    for _ in range(g.opts.get("c0", 1)):
        wchunk(g)
    g.stamp('dmaiss', False)


def p0_pre(g):
    S_CB = S_CS
    g(f"""
    v_lshrrev_b32 {v(V_T1)}, 3, {v(V_L)}
    v_mul_u32_u24 {v(V_T2)}, 2304, {v(V_T1)}
    v_and_b32 {v(V_T1)}, 2, {v(V_T1)}
    v_and_b32 {v(V_T3)}, 7, {v(V_L)}
    v_xor_b32 {v(V_T3)}, {v(V_T3)}, {v(V_T1)}
    v_lshl_add_u32 {v(V_T2)}, {v(V_T3)}, 4, {v(V_T2)}
    v_add_u32 {v(VW)}, 4096, {v(V_T2)}
    v_xor_b32 {v(V_T3)}, 64, {v(V_T2)}
    v_add_u32 {v(VW+1)}, {4096+18432-1024}, {v(V_T3)}
    v_add_u32 {v(VW+2)}, {4096+768-2048}, {v(V_T2)}
    v_add_u32 {v(VW+3)}, {4096+18432+768-3072}, {v(V_T3)}
    s_mul_i32 {s(S_WD0)}, {s(S_W)}, {2*18432}
    s_lshl_b32 {s(S_T1)}, {s(S_CB)}, 7
    s_add_u32 {s(S_WD0)}, {s(S_WD0)}, {s(S_T1)}
    s_lshl_b32 {s(S_WD1)}, {s(S_W)}, 12
    v_lshrrev_b32 {v(V_T0)}, 3, {v(V_L)}
    v_mul_u32_u24 {v(V_T2)}, 196608, {v(V_T0)}
    v_lshrrev_b32 {v(V_T0)}, 1, {v(V_T0)}
    v_and_b32 {v(V_T1)}, 7, {v(V_L)}
    v_xor_b32 {v(V_T1)}, {v(V_T1)}, {v(V_T0)}
    v_lshl_add_u32 {v(V_T2)}, {v(V_T1)}, 4, {v(V_T2)}
    v_add_u32 {v(V_XO)}, 1024, {v(V_T2)}
    v_xor_b32 {v(V_T2)}, 64, {v(V_T2)}
    v_add_u32 {v(V_XO+1)}, 768, {v(V_T2)}
    s_lshl_b32 {s(S_T0)}, {s(S_RB)}, 2
    s_add_u32 {s(S_T0)}, {s(S_T0)}, {s(S_W)}
    s_mul_i32 {s(S_XO)}, {s(S_T0)}, 1536
    s_lshl_b32 {s(S_SPO)}, {s(S_XO)}, 1
    s_mul_i32 {s(S_XR)}, {s(S_W)}, 12288
    s_add_u32 {s(S_XR)}, {s(S_XR)}, {L_WVO}
    s_mov_b32 m0, {s(S_XR)}
    """)
    if g.opts.get("xrot", 0):
        g(f"""
        s_cmp_ge_u32 {s(S_G8)}, 6
        s_cselect_b32 {s(S_T0)}, {3 if g.opts["xrot"] == 1 else 6}, 0
        s_sub_u32 {s(S_SG)}, {s(S_G8)}, {s(S_T0)}
        s_mov_b32 {s(S_W0)}, {s(S_SG)}
        s_lshl_b32 {s(S_T0)}, {s(S_SG)}, 7
        s_add_u32 {s(S_XO)}, {s(S_XO)}, {s(S_T0)}
        s_mul_i32 {s(S_T0)}, {s(S_SG)}, {8*18432}
        s_add_u32 {s(S_WD0)}, {s(S_WD0)}, {s(S_T0)}
        """)


def p0_main(g):
    ACCQ, ACCK = V_ACC, V_ACC + 16
    SX, SXX = V_ACC + 40, V_ACC + 44
    SEL, NM, DB = V_BUF, V_BUF + 8, V_BUF + 16
    S_CB = S_CS
    common_consts(g)
    g(f"""
    v_lshrrev_b32 {v(V_T0)}, 1, {v(V_G)}
    v_lshlrev_b32 {v(V_T0)}, 12, {v(V_T0)}
    v_and_b32 {v(V_T1)}, 1, {v(V_G)}
    v_lshl_add_u32 {v(V_T0)}, {v(V_T1)}, 10, {v(V_T0)}
    v_lshrrev_b32 {v(V_T2)}, 2, {v(V_I)}
    v_lshl_add_u32 {v(V_T0)}, {v(V_T2)}, 7, {v(V_T0)}
    v_lshrrev_b32 {v(V_T2)}, 3, {v(V_I)}
    v_lshl_or_b32 {v(V_T2)}, {v(V_T1)}, 1, {v(V_T2)}
    v_lshl_add_u32 {v(V_T0)}, {v(V_T2)}, 5, {v(V_T0)}
    v_and_b32 {v(V_T2)}, 3, {v(V_I)}
    v_lshl_add_u32 {v(V_AD)}, {v(V_T2)}, 3, {v(V_T0)}
    v_xor_b32 {v(V_AD+1)}, 32, {v(V_AD)}
    v_xor_b32 {v(V_AD+2)}, 64, {v(V_AD)}
    v_xor_b32 {v(V_AD+3)}, 96, {v(V_AD)}
    v_cmp_eq_u32 s[4:5], 1, {v(V_T2)}
    v_cmp_eq_u32 s[6:7], 2, {v(V_T2)}
    v_cmp_eq_u32 s[8:9], 3, {v(V_T2)}
    v_and_b32 {v(V_T0)}, 7, {v(V_L)}
    v_lshl_add_u32 {v(V_T0)}, {v(V_G)}, 3, {v(V_T0)}
    v_lshlrev_b32 {v(VS)}, 4, {v(V_T0)}
    s_add_u32 {s(S_SPO)}, {s(S_SPO)}, {WS_SP}
    v_lshrrev_b32 {v(V_T0)}, 1, {v(V_I)}
    v_xor_b32 {v(V_T0)}, {v(V_T0)}, {v(V_G)}
    v_lshlrev_b32 {v(V_T0)}, 4, {v(V_T0)}
    v_lshl_add_u32 {v(V_T0)}, {v(V_I)}, 7, {v(V_T0)}
    v_add_u32 {v(V_T2)}, {s(S_XR)}, {v(V_T0)}
    v_xor_b32 {v(V_T3)}, 64, {v(V_T2)}
    s_mov_b32 {s(S_T1)}, {s(S_CB)}
    """)
    if g.opts.get("xrot", 0):
        g(f"""
        s_sub_u32 {s(S_T1)}, {s(S_CB)}, {s(S_SG)}
        s_cselect_b32 {s(S_T2)}, 6, 0
        s_add_u32 {s(S_T1)}, {s(S_T1)}, {s(S_T2)}
        """)
    g(f"""
    s_lshl_b32 {s(S_T1)}, {s(S_T1)}, 11
    v_add_u32 {v(V_T4)}, {s(S_T1)}, {v(V_T2)}
    v_add_u32 {v(V_T5)}, {s(S_T1)}, {v(V_T3)}
    s_lshl_b32 {s(S_SIG2)}, {s(S_W)}, 12
    s_mul_i32 {s(S_WV)}, {s(S_CB)}, 49152
    s_add_u32 {s(S_WV)}, {s(S_WV)}, {s(S_SIG2)}
    s_add_u32 {s(S_WV)}, {s(S_WV)}, {WS_WVOT}
    """)
    if g.opts.get("xrot", 0):
        g(f"""
        s_lshl_b32 {s(S_T1)}, {s(S_SG)}, 13
        s_add_u32 {s(S_WV)}, {s(S_WV)}, {s(S_T1)}
        """)
    g(f"""
    s_lshl_b32 {s(S_T1)}, {s(S_CB)}, 9
    s_add_u32 {s(S_CH)}, {s(S_SPO)}, {s(S_T1)}
    """)
    g(f"""
    v_and_b32 {v(V_T0)}, 1, {v(V_I)}
    v_lshlrev_b32 {v(V_T0)}, 4, {v(V_T0)}
    v_mov_b32 {v(V_T1)}, 0x3f80
    v_lshlrev_b32 {v(V_T0)}, {v(V_T0)}, {v(V_T1)}
    v_cndmask_b32 {v(V_T0)}, 0, {v(V_T0)}, {s(S_DIAG,2)}
    v_and_b32 {v(V_T1)}, 2, {v(V_I)}
    v_cmp_eq_u32 vcc, 0, {v(V_T1)}
    v_mov_b32 {v(SEL+2)}, 0
    v_mov_b32 {v(SEL+3)}, 0
    v_cndmask_b32 {v(SEL)}, 0, {v(V_T0)}, vcc
    v_cndmask_b32 {v(SEL+1)}, {v(V_T0)}, 0, vcc
    v_mov_b32 {v(SEL+4)}, 0
    v_mov_b32 {v(SEL+5)}, 0
    v_mov_b32 {v(SEL+6)}, {v(SEL)}
    v_mov_b32 {v(SEL+7)}, {v(SEL+1)}
    """)
    p1_setup(g)
    if g.opts.get("xrot", 0):
        g(f"s_lshl_b32 {s(S_WK)}, {s(S_SG)}, 1")
        g(f"s_add_u32 {s(S_WK)}, {s(S_WK)}, {s(S_W)}")
    for q in range(4):
        g(f"v_mov_b32 {v(NANQ+q)}, -1")
        g(f"v_mov_b32 {v(NANQ2+q)}, -1")
    C0, C1_ = g.opts.get("c0", 1), g.opts.get("c1", 2)
    order = [f"x{k//2}" for k in range(12)] + ["w"] * g.opts.get("wt", 0) + [f"A{j}" for j in range(C0) for _ in range(4)]
    for j in range(C0, C1_):
        wchunk(g)
        order += [f"A{j}"] * 4
    nonce_and_publish(g)
    order += ["t"] * (1 + 2 * g.opts.get("tlb", 0))

    pend = []
    ptag = []

    def queue(fn, tag, n):
        pend.extend(capture(g, fn))
        ptag.extend([tag] * n)

    def pop_vm():
        out = []
        while pend:
            x = pend.pop(0)
            out.append(x)
            if x.startswith("buffer") or x.startswith("global"):
                order.append(ptag.pop(0))
                if any(y.startswith("buffer") or y.startswith("global") for y in pend):
                    break
        return out

    def need(tag):
        last = len(order) - 1 - order[::-1].index(tag)
        return f"s_waitcnt vmcnt({len(order) - 1 - last})"
    def mtouch():
        g(f"""
        s_mov_b64 exec, 0xffffff
        global_load_dword {v(V_MISC+62)}, {v(V_MT)}, s[16:17]{ntf(g, 16)}
        s_mov_b64 exec, -1
        """)
    if g.opts.get("mt", 1) == 1:
        mtouch()
        order.append("m")
    NQ = C1_ + 3 + (1 if g.opts.get("dense", 1) else 0)
    PAJ = g.opts.get("paj", 4)

    def qchunk(j):
        queue(lambda: wchunk(g), f"A{j}", 4)

    def mark():
        for so in (S_X1O, S_WSTEP):
            g(f"buffer_store_dwordx4 {v(NANQ,4)}, {v(XA)}, {s(SRD_WS,4)}, {s(so)} offen {('sc1', 'sc1 nt', 'sc0 sc1', 'sc0 sc1 nt')[g.opts.get('mf', 0)]}")

    def side():
        if not g.opts.get("pe", 0):
            queue(lambda: g(f"buffer_load_dword {v(254)}, {v(VS)}, {s(SRD_WS,4)}, {s(S_CH)} offen sc1"), "c", 1)
            queue(lambda: g(f"buffer_load_dword {v(254)}, {v(XA+1)}, {s(SRD_WS,4)}, {s(S_STO)} offen sc1"), "c", 1)
        if not g.opts.get("nomark", 0):
            queue(mark, "c", 2)
        elif g.opts["nomark"] == 2:
            queue(lambda: [g(f"buffer_load_dword {v(254)}, {v(XA)}, {s(SRD_WS,4)}, {s(so)} offen sc1") for so in (S_X1O, S_WSTEP)], "c", 2)
    MK = g.opts.get("mk", 2)
    if g.opts.get("pe", 0):
        g(f"buffer_load_dword {v(254)}, {v(VS)}, {s(SRD_WS,4)}, {s(S_CH)} offen sc1")
        g(f"buffer_load_dword {v(254)}, {v(XA+1)}, {s(SRD_WS,4)}, {s(S_STO)} offen sc1")
        order += ["c", "c"]
    if MK == 3:
        g(f"buffer_load_dword {v(254)}, {v(VS)}, {s(SRD_WS,4)}, {s(S_CH)} offen sc1")
        order.append("c")
    if MK == 0:
        side()
        while pend:
            for x in pop_vm():
                g(x)
    for j in range(C1_, min(NQ, 6)):
        qchunk(j)
        if MK == 1 and j == C1_ + g.opts.get("mkj", 0):
            side()
    items = []
    for ks in range(12):
        xf = v(V_XF + 4 * ks, 4)
        pre = []
        if ks % 4 == 0:
            pre = [need(f"x{ks//2+1}")] + (capture(g, lambda: g.stamp('xarr0', False)) if ks == 0 else [])
        if ks % 4 == 2 or (g.opts.get("dense", 1) and ks % 2 == 1):
            pre += pop_vm()
        rd = [f"ds_read_b128 {xf}, {v(V_T2+(ks&1))} offset:{(ks>>1)*2048}"]
        if ks == 11:
            rd += [f"ds_read_b128 {v(XR,4)}, {v(V_T4)}", f"ds_read_b128 {v(XR+4,4)}, {v(V_T5)}"]
        cm = capture(g, lambda: (mfma32(g, v(SXX, 4), xf, xf, "0" if ks == 0 else None),
                                 mfma32(g, v(SX, 4), v(V_ONES, 4), xf, "0" if ks == 0 else None)))
        items.append((rd, cm, pre))
    pipelined(g, items, 6)
    g.stamp('xarr', False)
    g.nop(8)
    g(f"""
    v_mul_f32 {v(NM)}, {f2u(-1/384.):#x}, {v(SX)}
    v_mul_f32 {v(NM+1)}, {f2u(-1/384.):#x}, {v(SX)}
    v_mul_f32 {v(NM+2)}, {f2u(-1/384.):#x}, {v(SX)}
    v_mul_f32 {v(NM+3)}, {f2u(-1/384.):#x}, {v(SX)}
    v_cndmask_b32 {v(SXX)}, {v(SXX)}, {v(SXX+1)}, s[4:5]
    v_cndmask_b32 {v(SXX)}, {v(SXX)}, {v(SXX+2)}, s[6:7]
    """)
    fin = capture(g, lambda: (g(f"v_cndmask_b32 {v(SXX)}, {v(SXX)}, {v(SXX+3)}, s[8:9]"),
                              g(f"v_cndmask_b32 {v(SXX)}, 0, {v(SXX)}, {s(S_DIAG,2)}"),
                              xlane_sum(g, SXX, V_T0), mean_rstd(g, SX, SXX, V_MEAN, V_R)))
    LAG = 2
    for ks in range(12 + LAG):
        if ks < 12:
            d = DB + (ks % 4) * 8
            mfma32(g, v(d, 4), v(SEL, 4), v(V_XF + 4 * ks, 4), v(NM, 4))
            mfma32(g, v(d + 4, 4), v(SEL + 4, 4), v(V_XF + 4 * ks, 4), v(NM, 4))
        if ks < LAG or ks >= 12:
            for x in fin[:9]:
                g(x)
            if ks >= 12 and not fin:
                g.nop(2)
            fin = fin[9:]
        if ks >= LAG:
            d = DB + ((ks - LAG) % 4) * 8
            for q in range(4):
                g(f"v_cvt_pk_bf16_f32 {v(V_XF+4*(ks-LAG)+q)}, {v(d+2*q)}, {v(d+2*q+1)}")
        if ks % 2 == 1 or g.opts.get("dense", 1) > 1:
            for x in pop_vm():
                g(x)
    assert not fin
    g.stamp('cent', False)
    if g.opts.get("mt", 1) == 2:
        mtouch()
        order.append("m")

    for j in range(NQ, 6):
        qchunk(j)
    UNI = g.opts.get("uni", 0)
    if UNI:
        assert pend and ptag[-1] == "A5"
        k = len(pend) - next(i for i, x in enumerate(reversed(pend)) if x.startswith("s_mov_b32 m0")) - 1
        pend.insert(k, f"buffer_load_dword {v(V_T7)}, {v(V_PA)}, {s(SRD_WS,4)}, 0 offen sc1")
        ptag.insert(len(ptag) - 4, "p")
    if MK == 2:
        side()
    MT = g.opts.get("mt", 1)
    if MT == 3:
        queue(mtouch, "m", 1)
    SMP = [g.opts.get("s0", 70), g.opts.get("s1", 82), g.opts.get("s2", 94)]
    items = []
    nb = 0
    for j in range(6):
        for n, (kk, mat, sl) in enumerate([(kk, mat, sl) for kk in range(2) for mat in range(2) for sl in range(4)]):
            ks = 2 * j + kk
            b = V_BUF + (nb % 16) * 4
            nb += 1
            off = (ks % 6) * 8192 + mat * 2048
            rd = [f"ds_read_b64_tr_b16 {v(b,2)}, {v(V_AD+sl)} offset:{off}",
                  f"ds_read_b64_tr_b16 {v(b+2,2)}, {v(V_AD+sl)} offset:{off+512}"]
            acc = (ACCQ if mat == 0 else ACCK) + 4 * sl
            cm = [f"v_mfma_f32_16x16x32_bf16 {v(acc,4)}, {v(b,4)}, {v(V_XF+4*ks,4)}, {'0' if ks == 0 else v(acc,4)}"]
            pre = []
            if n == 0:
                pre += [need(f"A{j}"), "s_barrier"]
                pre += capture(g, lambda: g.stamp(f'chunk{j}', False))
                if j == 3:
                    pre += [f"v_add_u32 {v(V_AD+q)}, 49152, {v(V_AD+q)}" for q in range(4)]
                if UNI and j == 5:
                    pre += capture(g, lambda: pa_eval(g))
                if j == g.opts.get("pj", 2) and not UNI:
                    pre.append(f"buffer_load_dword {v(V_T7)}, {v(V_PA)}, {s(SRD_WS,4)}, 0 offen sc1")
                    order.append("p")
            if 16 * j + n == g.opts.get("s0", 86):
                assert not pend
                pre += [sample(V_T5)] if UNI else ["s_waitcnt vmcnt(0)", sample(V_T5)] + capture(g, lambda: pa_eval(g))
            if n % 3 == 1:
                x = pop_vm()
                pre += x
            items.append([rd, cm, pre])
    assert not pend
    QF, KF = V_ACC + 32, V_ACC + 40
    pipelined(g, items, 14, group=1)
    for i in range(8):
        g(f"v_cvt_pk_bf16_f32 {v(QF+i)}, {v(ACCQ+2*i)}, {v(ACCQ+2*i+1)}")
    for i in range(8):
        g(f"v_cvt_pk_bf16_f32 {v(KF+i)}, {v(ACCK+2*i)}, {v(ACCK+2*i+1)}")
    SS = V_BUF + 32
    g.nop(1)
    mfma32(g, v(SS, 4), v(KF, 4), v(QF, 4), "0")
    mfma32(g, v(SS, 4), v(KF + 4, 4), v(QF + 4, 4))
    pa_wait(g, S_F1, "xcc")
    g.nop(6)
    for r in range(4):
        g(f"v_bfi_b32 {v(SS+r)}, {v(V_MASK)}, {v(SS+r)}, {s(S_TAG+r)}")
    g(f"s_mov_b64 exec, {s(S_VALID,2)}")
    both_modes(g, lambda sc: g(f"buffer_store_dwordx4 {v(SS,4)}, {v(VS)}, {s(SRD_WS,4)}, {s(S_CH)} offen{sc}"))
    g("s_mov_b64 exec, -1")
    g.stamp('sstored')


CSL = V_BUF


def kpos(g, q, scale, base):
    g(f"""
    s_add_u32 {s(S_T1)}, {s(S_RHO)}, {q}
    s_cmp_ge_u32 {s(S_T1)}, 12
    s_cselect_b32 {s(S_T2)}, 12, 0
    s_sub_u32 {s(S_T1)}, {s(S_T1)}, {s(S_T2)}
    s_mul_i32 {s(S_T1)}, {s(S_T1)}, {scale}
    s_add_u32 m0, {s(S_T1)}, {base}
    """)


def ws2_dma(g):
    for c in range(3):
        g(f"buffer_load_dwordx2 {v(CSL+4*c,2)}, {v(V_L8)}, {s(SRD_WS,4)}, {s(S_CP0 if c < 2 else S_CP1)} offen offset:{c*512} sc1")
    for q in range(3):
        kpos(g, q, 3072, 0)
        g(f"s_add_u32 {s(S_T1)}, {s(S_WD0)}, {q*6144}")
        g(f"s_add_u32 {s(S_T2)}, {s(S_WD1)}, {q*6144}")
        g(f"buffer_load_dwordx4 {v(V_L16)}, {s(SRD_WS,4)}, {s(S_T1)} offen sc1 lds")
        g(f"buffer_load_dwordx4 {v(V_L16)}, {s(SRD_WS,4)}, {s(S_T1)} offen offset:1024 sc1 lds")
        g(f"buffer_load_dwordx4 {v(V_L16)}, {s(SRD_WS,4)}, {s(S_T2)} offen offset:2048 sc1 lds")


def p1_setup(g):
    S_CB = S_CS
    g(f"""
    v_add_u32 {v(A1[0])}, {L_WVO}, {v(V_L16)}
    v_lshlrev_b32 {v(V_T0)}, 3, {v(V_I)}
    s_lshl_b32 {s(S_T0)}, {s(S_W)}, 7
    s_add_u32 {s(S_T0)}, {s(S_T0)}, {L_SG}
    v_add_u32 {v(A1[2])}, {s(S_T0)}, {v(V_T0)}
    v_and_b32 {v(V_T0)}, 7, {v(V_I)}
    v_lshrrev_b32 {v(V_T1)}, 3, {v(V_I)}
    v_lshl_add_u32 {v(V_T1)}, {v(V_G)}, 3, {v(V_T1)}
    s_lshl_b32 {s(S_T1)}, {s(S_W)}, 1
    v_add_u32 {v(V_T1)}, {s(S_T1)}, {v(V_T1)}
    v_xor_b32 {v(V_T1)}, {v(V_T1)}, {v(V_T0)}
    v_lshlrev_b32 {v(V_T1)}, 4, {v(V_T1)}
    v_lshl_add_u32 {v(V_T1)}, {v(V_T0)}, 10, {v(V_T1)}
    v_add_u32 {v(A1[1])}, {L_T}, {v(V_T1)}
    v_xor_b32 {v(V_T0)}, {s(S_T1)}, {v(V_L)}
    v_lshlrev_b32 {v(V_T0)}, 4, {v(V_T0)}
    s_lshl_b32 {s(S_T2)}, {s(S_W)}, 11
    s_add_u32 {s(S_T2)}, {s(S_T2)}, {L_T}
    v_add_u32 {v(C1[0])}, {s(S_T2)}, {v(V_T0)}
    v_xor_b32 {v(C1[1])}, 16, {v(C1[0])}
    v_lshrrev_b32 {v(V_T0)}, 3, {v(V_L)}
    v_lshlrev_b32 {v(V_T0)}, 8, {v(V_T0)}
    v_and_b32 {v(V_T1)}, 7, {v(V_L)}
    v_lshl_add_u32 {v(XA)}, {v(V_T1)}, 4, {v(V_T0)}
    s_mul_i32 {s(S_X1O)}, {s(S_W)}, {2*196608}
    s_lshr_b32 {s(S_T1)}, {s(S_RB)}, 1
    s_mul_i32 {s(S_T1)}, {s(S_T1)}, 12288
    s_add_u32 {s(S_X1O)}, {s(S_X1O)}, {s(S_T1)}
    s_and_b32 {s(S_T1)}, {s(S_RB)}, 1
    s_lshl_b32 {s(S_T1)}, {s(S_T1)}, 7
    s_add_u32 {s(S_X1O)}, {s(S_X1O)}, {s(S_T1)}
    s_lshl_b32 {s(S_T1)}, {s(S_CB)}, 11
    s_add_u32 {s(S_X1O)}, {s(S_X1O)}, {s(S_T1)}
    s_add_u32 {s(S_X1O)}, {s(S_X1O)}, {WS_X1}
    s_add_u32 {s(S_WSTEP)}, {s(S_X1O)}, 196608
    s_mul_i32 {s(S_FXO)}, {s(S_RB)}, 6
    s_add_u32 {s(S_FXO)}, {s(S_FXO)}, {s(S_CB)}
    s_lshl_b32 {s(S_T1)}, {s(S_FXO)}, 2
    s_lshl_b32 {s(S_FXO)}, {s(S_FXO)}, 7
    s_add_u32 {s(S_STO)}, {s(S_FXO)}, {WS_STX}
    v_and_b32 {v(V_T0)}, 7, {v(V_L)}
    v_mul_u32_u24 {v(V_T0)}, {6*32*128}, {v(V_T0)}
    v_and_b32 {v(V_T1)}, -8, {v(V_L)}
    v_add_u32 {v(XA+1)}, {v(V_T0)}, {v(V_T1)}
    v_lshlrev_b32 {v(XA+2)}, 3, {v(V_L)}
    v_add_u32 {v(XA+2)}, {L_SG}, {v(XA+2)}
    """)
    if g.opts.get("mt", 1):
        g(f"""
    s_mul_i32 {s(S_T1)}, {s(S_RQ)}, 6
    s_add_u32 {s(S_T1)}, {s(S_T1)}, {s(S_CB)}
    s_lshl_b32 {s(S_T1)}, {s(S_T1)}, 2
    s_add_u32 {s(S_T1)}, {s(S_T1)}, {s(S_W)}
    s_bfe_u32 {s(S_T2)}, {s(S_G8)}, 0x10001
    s_and_b32 {s(S_T3)}, {s(S_G8)}, 1
    v_mul_u32_u24 {v(V_T0)}, 43, {v(V_L)}
    v_lshrrev_b32 {v(V_T0)}, 8, {v(V_T0)}
    v_mul_u32_u24 {v(V_T0)}, {2304-768}, {v(V_T0)}
    v_lshl_add_u32 {v(V_MT)}, {v(V_L)}, 7, {v(V_T0)}
    v_mul_u32_u24 {v(V_T0)}, 86, {v(V_L)}
    v_lshrrev_b32 {v(V_T0)}, 8, {v(V_T0)}
    v_mul_u32_u24 {v(V_T0)}, {768-384}, {v(V_T0)}
    v_lshl_add_u32 {v(V_T1)}, {v(V_L)}, 7, {v(V_T0)}
    s_mov_b32 s16, {s(S_WQS)}
    s_mov_b32 s17, {s(S_WQS+1)}
    s_cmp_ge_u32 {s(S_T1)}, 48
    s_cbranch_scc1 L_mt_b
    s_mul_i32 {s(S_T2)}, {s(S_T2)}, {192*2304}
    s_mul_i32 {s(S_T1)}, {s(S_T1)}, {4*2304}
    s_add_u32 {s(S_T1)}, {s(S_T1)}, {s(S_T2)}
    s_cmp_ge_u32 {s(S_G8)}, 4
    s_cselect_b32 {s(S_T2)}, 1536, 0
    s_add_u32 {s(S_T1)}, {s(S_T1)}, {s(S_T2)}
    s_branch L_mt_e
    L_mt_b:
    s_sub_u32 {s(S_T1)}, {s(S_T1)}, 48
    s_cmp_ge_u32 {s(S_G8)}, 4
    s_cbranch_scc1 L_mt_c
    s_mul_i32 {s(S_T3)}, {s(S_T3)}, {192*2304}
    s_mul_i32 {s(S_T1)}, {s(S_T1)}, {4*2304}
    s_add_u32 {s(S_T1)}, {s(S_T1)}, {s(S_T3)}
    s_add_u32 {s(S_T1)}, {s(S_T1)}, 768
    s_branch L_mt_e
    L_mt_c:
    s_mul_i32 {s(S_T3)}, {s(S_T3)}, 384
    s_mul_i32 {s(S_T1)}, {s(S_T1)}, {8*768}
    s_add_u32 {s(S_T1)}, {s(S_T1)}, {s(S_T3)}
    s_mov_b32 s16, {s(S_WOS)}
    s_mov_b32 s17, {s(S_WOS+1)}
    v_mov_b32 {v(V_MT)}, {v(V_T1)}
    L_mt_e:
    v_add_u32 {v(V_MT)}, {s(S_T1)}, {v(V_MT)}
        """)


V_MT = 245


def p1(g):
    Z = V_ACC
    CS = V_ACC + 16
    XC = V_ACC + 20

    def shadow():
        g(f"v_lshlrev_b32 {v(V_T0)}, 4, {v(V_G)}")
        for e in range(4):
            g(f"ds_bpermute_b32 {v(RS+e)}, {v(V_T0)}, {v(V_R)} offset:{4*e}")
        for m in range(2):
            for par in range(2):
                for r in range(4):
                    src = XR + 4 * m + 2 * par + (r >> 1)
                    d = XC + (2 * m + par) * 4 + r
                    if r & 1:
                        g(f"v_and_b32 {v(d)}, 0xffff0000, {v(src)}")
                    else:
                        g(f"v_lshlrev_b32 {v(d)}, 16, {v(src)}")
        g(f"v_mul_f32 {v(V_T1)}, {f2u(SCALE_LOG2E):#x}, {v(V_R)}")
        g("s_waitcnt lgkmcnt(0)")
        for e in range(4):
            g(f"v_mul_f32 {v(FS+e)}, {v(V_T1)}, {v(RS+e)}")
        p2_setup(g)
    AOP = VW
    SPR = [V_ACC + 36, V_ACC + 40, V_ACC + 44, 220, 224, 248]

    def sloads():
        for c in range(6):
            g(f"buffer_load_dwordx4 {v(SPR[c],4)}, {v(VS)}, {s(SRD_WS,4)}, {s(S_SPO)} offen offset:{c*512} sc1")

    def scheck():
        for c in range(6):
            for r in range(4):
                g(f"v_xor_b32 {v(SPR[c]+r)}, {s(S_TAG+r)}, {v(SPR[c]+r)}")
            if c == 0:
                g(f"v_or_b32 {v(V_T2)}, {v(SPR[0])}, {v(SPR[0]+1)}")
            else:
                g(f"v_or3_b32 {v(V_T2)}, {v(V_T2)}, {v(SPR[c])}, {v(SPR[c]+1)}")
            g(f"v_or3_b32 {v(V_T2)}, {v(V_T2)}, {v(SPR[c]+2)}, {v(SPR[c]+3)}")
        g(f"v_and_b32 {v(V_T2)}, 0xff, {v(V_T2)}")

    def softmax(pk):
        T = SPR[5]
        if pk:
            for c in (1, 3, 5):
                for h in range(2):
                    g(f"v_pk_add_f32 {v(SPR[c]+2*h,2)}, {v(SPR[c]+2*h,2)}, {v(SPR[c-1]+2*h,2)}")
            for c in (3, 5):
                for h in range(2):
                    g(f"v_pk_add_f32 {v(SPR[c]+2*h,2)}, {v(SPR[c]+2*h,2)}, {v(SPR[c-2]+2*h,2)}")
        else:
            for c in (1, 3, 5):
                for r in range(4):
                    g(f"v_add_f32 {v(SPR[c]+r)}, {v(SPR[c]+r)}, {v(SPR[c-1]+r)}")
            for c in (3, 5):
                for r in range(4):
                    g(f"v_add_f32 {v(SPR[c]+r)}, {v(SPR[c]+r)}, {v(SPR[c-2]+r)}")
        for r in range(4):
            g(f"v_mul_f32 {v(T+r)}, {v(T+r)}, {v(FS+r)}")
        g(f"""
        v_max3_f32 {v(V_T0)}, {v(T)}, {v(T+1)}, {v(T+2)}
        v_max_f32 {v(V_T0)}, {v(V_T0)}, {v(T+3)}
        v_mov_b32 {v(V_T1)}, {v(V_T0)}
        s_nop 1
        v_permlane16_swap_b32 {v(V_T0)}, {v(V_T1)}
        s_nop 0
        v_max_f32 {v(V_T0)}, {v(V_T0)}, {v(V_T1)}
        """)
        for r in range(4):
            g(f"v_sub_f32 {v(T+r)}, {v(T+r)}, {v(V_T0)}")
        for r in range(4):
            g(f"v_exp_f32 {v(T+r)}, {v(T+r)}")
        g(f"""
        s_nop 0
        v_add_f32 {v(V_T0)}, {v(T)}, {v(T+1)}
        v_add_f32 {v(V_T1)}, {v(T+2)}, {v(T+3)}
        v_add_f32 {v(V_T0)}, {v(V_T0)}, {v(V_T1)}
        v_mov_b32 {v(V_T1)}, {v(V_T0)}
        v_mul_f32 {v(T)}, {v(T)}, {v(RS)}
        v_mul_f32 {v(T+1)}, {v(T+1)}, {v(RS+1)}
        v_permlane16_swap_b32 {v(V_T0)}, {v(V_T1)}
        v_mul_f32 {v(T+2)}, {v(T+2)}, {v(RS+2)}
        v_add_f32 {v(V_T0)}, {v(V_T0)}, {v(V_T1)}
        v_rcp_f32 {v(V_T0)}, {v(V_T0)}
        v_mul_f32 {v(T+3)}, {v(T+3)}, {v(RS+3)}
        v_cndmask_b32 {v(V_T0)}, 0, {v(V_T0)}, {s(S_VALID,2)}
        """)
        for r in range(4):
            g(f"v_mul_f32 {v(T+r)}, {v(T+r)}, {v(V_T0)}")
        g(f"""
        v_cvt_pk_bf16_f32 {v(AOP)}, {v(T)}, {v(T+1)}
        v_cvt_pk_bf16_f32 {v(AOP+1)}, {v(T+2)}, {v(T+3)}
        """)
    NS = 3 if g.opts.get("mk", 2) == 3 else 0

    def side3():
        if NS:
            for so in (S_X1O, S_WSTEP):
                g(f"buffer_store_dwordx4 {v(NANQ2,4)}, {v(XA)}, {s(SRD_WS,4)}, {s(so)} offen sc1")
            g(f"buffer_load_dword {v(254)}, {v(XA+1)}, {s(SRD_WS,4)}, {s(S_STO)} offen sc1")
    if not g.opts.get("uni", 0):
        g(f"""
        s_waitcnt vmcnt(1)
        v_cmp_ne_u32 vcc, {s(S_NONCE)}, {v(V_T5)}
        s_cbranch_vccz L_wvo_go
        """)
    sh = capture(g, shadow)
    SPL = g.opts.get("spl", 40)
    for x in sh[:SPL]:
        g(x)
    if g.opts.get("uni", 0) != 2:
        g(sample(V_T5))
    for x in sh[SPL:]:
        g(x)
    sloads()
    g(f"""
    s_waitcnt vmcnt(6)
    v_cmp_ne_u32 vcc, {s(S_NONCE)}, {v(V_T5)}
    s_cbranch_vccz L_wvo_l2
    """)
    poll(g, V_PS, "0", s(S_NONCE), "wvo", g.opts.get("slp", 4))
    g("L_wvo_l2:")
    g.stamp('wlate')
    for st in range(3):
        wvo_group(g, st)
    side3()
    g(f"s_waitcnt vmcnt({12 + NS})")
    scheck()
    g(f"""
    v_cmp_ne_u32 vcc, 0, {v(V_T2)}
    s_or_b32 {s(S_WVI)}, vcc_lo, vcc_hi
    s_cbranch_scc1 L_wvo_on
    """)
    softmax(True)
    g("s_branch L_wvo_on")
    g("L_wvo_go:")
    for st in range(3):
        wvo_group(g, st)
    side3()
    shadow()
    g(f"s_mov_b32 {s(S_WVI)}, 1")
    g("L_wvo_on:")
    late = capture(g, sloads)
    nl = NS
    g.stamp('wvoflag')
    fill = ["s_waitcnt vmcnt(0)"] + capture(g, lambda: (scheck(), softmax(g.opts.get('sfill', 48) >= 48)))
    items = []
    for ks in range(12):
        for c in range(4):
            n = ks * 4 + c
            b = V_BUF + (n % 16) * 4
            rd = [f"ds_read_b128 {v(b,4)}, {v(A1[0])} offset:{ks*4096+c*1024}"]
            cc = "0" if ks == 0 else v(Z + 4 * c, 4)
            cm = [f"v_mfma_f32_16x16x32_bf16 {v(Z+4*c,4)}, {v(V_XF+4*ks,4)}, {v(b,4)}, {cc}"]
            pre = []
            if ks % 4 == 0 and c == 0:
                pre = [f"s_waitcnt vmcnt({8-ks+nl})", "s_barrier"] + capture(g, lambda: g.stamp(f'wvo{ks//4}', False))
            if late and n % 2 == 1 and n >= g.opts.get("sl0", 1):
                pre.append(late.pop(0))
                nl += 1
            if n >= g.opts.get("sfill", 48):
                cm += fill[:2]
                fill = fill[2:]
            items.append((rd, cm, pre))
    pipelined(g, items, 10, group=1)
    ZB = V_BUF + 8
    g(f"""
    s_mov_b64 vcc, 0
    s_cmp_eq_u32 {s(S_WVI)}, 0
    s_cbranch_scc1 L_s_have
    """)
    for x in fill:
        g(x)
    g(f"""
    v_cmp_ne_u32 vcc, 0, {v(V_T2)}
    L_s_have:
    s_nop 1
    """)
    for c in range(4):
        g(f"v_cvt_pk_bf16_f32 {v(ZB+2*c)}, {v(Z+4*c)}, {v(Z+4*c+1)}")
        g(f"v_cvt_pk_bf16_f32 {v(ZB+2*c+1)}, {v(Z+4*c+2)}, {v(Z+4*c+3)}")
    g.stamp('zdone')
    g(f"""
    s_cbranch_vccz L_sok
    s_mov_b32 {s(S_SPIN)}, {SPIN_LIMIT}
    L_spoll:
    """)
    sloads()
    g("s_waitcnt vmcnt(0)")
    scheck()
    g(f"""
    v_cmp_ne_u32 vcc, 0, {v(V_T2)}
    s_cbranch_vccz L_sre
    s_sub_u32 {s(S_SPIN)}, {s(S_SPIN)}, 1
    s_cbranch_scc0 L_spoll
    L_sre:
    """)
    softmax(True)
    g.nop(2)
    g("L_sok:")
    g("s_waitcnt vmcnt(0)")
    g.stamp('sok')
    g(f"buffer_load_dword {v(V_T7)}, {v(V_PB)}, {s(SRD_WS,4)}, 0 offen sc1")
    for c in range(4):
        mfma16(g, v(XC + 4 * c, 4), v(ZB + 2 * c, 2), v(AOP, 2))
    g.nop(5)
    OB = V_BUF + 48
    for m in range(2):
        for i in range(4):
            g(f"v_cvt_pk_bf16_f32 {v(OB+4*m+i)}, {v(XC+8*m+2*i)}, {v(XC+8*m+2*i+1)}")
        g(f"ds_write_b128 {v(A1[1])}, {v(OB+4*m,4)} offset:{m*512}")
    S1, S2 = Z, Z + 4
    mfma32(g, v(S2, 4), v(OB, 4), v(OB, 4), "0")
    mfma32(g, v(S1, 4), v(V_ONES, 4), v(OB, 4), "0")
    mfma32(g, v(S2, 4), v(OB + 4, 4), v(OB + 4, 4))
    mfma32(g, v(S1, 4), v(V_ONES, 4), v(OB + 4, 4))
    g.nop(7)
    g(f"""
    v_cndmask_b32 {v(S2)}, {v(S2)}, {v(S2+1)}, s[4:5]
    v_cndmask_b32 {v(S2)}, {v(S2)}, {v(S2+2)}, s[6:7]
    v_cndmask_b32 {v(S1+1)}, {v(S2)}, {v(S2+3)}, s[8:9]
    s_mov_b64 exec, {s(S_DIAG,2)}
    ds_write_b64 {v(A1[2])}, {v(S1,2)}
    s_mov_b64 exec, -1
    s_waitcnt lgkmcnt(0)
    s_barrier
    ds_read_b128 {v(OB,4)}, {v(C1[0])}
    ds_read_b128 {v(OB+4,4)}, {v(C1[1])} offset:1024
    ds_read_b64 {v(V_T0,2)}, {v(XA+2)}
    """)
    if g.opts.get("dbgearly", 0) & 4:
        g(f"""
        s_waitcnt lgkmcnt(0)
        v_bfi_b32 {v(V_T2)}, {v(V_MASK)}, {v(V_T0)}, {s(S_TAG)}
        v_bfi_b32 {v(V_T3)}, {v(V_MASK)}, {v(V_T1)}, {s(S_TAG+1)}
        buffer_store_dwordx2 {v(V_T2,2)}, {v(XA+1)}, {s(SRD_WS,4)}, {s(S_STO)} offen sc1
        s_and_b32 {s(S_T0)}, {s(S_RB)}, 3
        s_cmp_eq_u32 {s(S_T0)}, 1
        s_cbranch_scc0 L_dbg1
        s_sleep 127
        L_dbg1:
        s_waitcnt vmcnt(0)
        buffer_load_dword {v(V_T7)}, {v(V_PB)}, {s(SRD_WS,4)}, 0 offen sc1
        """)
    g(f"""
    s_waitcnt lgkmcnt(2)
    buffer_store_dwordx4 {v(OB,4)}, {v(XA)}, {s(SRD_WS,4)}, {s(S_X1O)} offen sc1
    s_waitcnt lgkmcnt(1)
    buffer_store_dwordx4 {v(OB+4,4)}, {v(XA)}, {s(SRD_WS,4)}, {s(S_WSTEP)} offen sc1
    """)
    if g.opts.get("nomark", 0):
        g(f"""
        s_waitcnt vmcnt(2)
        v_cmp_ne_u32 vcc, {s(S_NONCE)}, {v(V_T7)}
        s_cbranch_vccnz L_nm_late
        """)
        ws2_dma(g)
        g(f"""
        s_waitcnt vmcnt(12)
        s_mov_b32 {s(S_T0)}, 0
        s_branch L_nm_j
        L_nm_late:
        s_waitcnt vmcnt(0)
        s_mov_b32 {s(S_T0)}, 1
        L_nm_j:
        s_barrier
        s_cmp_lg_u32 {s(S_W)}, 0
        s_cbranch_scc1 L_nm_k
        s_waitcnt lgkmcnt(0)
        v_bfi_b32 {v(V_T0)}, {v(V_MASK)}, {v(V_T0)}, {s(S_TAG)}
        v_bfi_b32 {v(V_T1)}, {v(V_MASK)}, {v(V_T1)}, {s(S_TAG+1)}
        buffer_store_dwordx2 {v(V_T0,2)}, {v(XA+1)}, {s(SRD_WS,4)}, {s(S_STO)} offen sc1
        """)
        g.stamp('x1st')
        g(f"""
        L_nm_k:
        s_cmp_eq_u32 {s(S_T0)}, 0
        s_cbranch_scc1 L_p2c
        """)
    else:
        g(f"""
    s_cmp_lg_u32 {s(S_W)}, 0
    s_cbranch_scc1 L_nostx
    s_waitcnt lgkmcnt(0)
    v_bfi_b32 {v(V_T0)}, {v(V_MASK)}, {v(V_T0)}, {s(S_TAG)}
    v_bfi_b32 {v(V_T1)}, {v(V_MASK)}, {v(V_T1)}, {s(S_TAG+1)}
    buffer_store_dwordx2 {v(V_T0,2)}, {v(XA+1)}, {s(SRD_WS,4)}, {s(S_STO)} offen sc1
        """)
        g.stamp('x1st')
        g(f"""
    s_waitcnt vmcnt(3)
    s_branch L_stx2
    L_nostx:
    s_waitcnt vmcnt(2)
    L_stx2:
    v_cmp_ne_u32 vcc, {s(S_NONCE)}, {v(V_T7)}
    s_cbranch_vccz L_p2
    """)
    poll(g, V_PB, "0", s(S_NONCE), "pws", g.opts.get("slp", 4))
    g.stamp('late')


S_TILE, S_PROD, S_KB, S_NB = S_T4, S_T5, S_T6, S_T7
S_PA, S_PB, S_PS = S_F2, S_SLOW, 26
S_PO0, S_PO1, S_PF = 16, 17, 25
V_PAO = V_MISC + 14
S_PU, S_PW = 69, 70
S_PM = 68
L_PA = 49152


def prod_pre(g):
    g(f"""
    s_lshl_b32 {s(S_T0)}, {s(S_RQ)}, 1
    s_add_u32 {s(S_T0)}, {s(S_T0)}, {s(S_CS)}
    s_sub_u32 {s(S_T0)}, {s(S_T0)}, 6
    s_mul_i32 {s(S_TILE)}, {s(S_G8)}, 5
    s_add_u32 {s(S_TILE)}, {s(S_TILE)}, {s(S_T0)}
    s_sub_u32 {s(S_TILE)}, {s(S_TILE)}, 3
    s_cmp_ge_u32 {s(S_TILE)}, 36
    s_cselect_b32 {s(S_TILE)}, 60, {s(S_TILE)}
    s_mul_i32 {s(S_T1)}, {s(S_G8)}, 3
    s_add_u32 {s(S_T1)}, {s(S_T1)}, {s(S_T0)}
    s_add_u32 {s(S_T1)}, {s(S_T1)}, 36
    s_cmp_lt_u32 {s(S_T0)}, 3
    s_cselect_b32 {s(S_TILE)}, {s(S_T1)}, {s(S_TILE)}
    s_mul_hi_u32 {s(S_KB)}, {s(S_TILE)}, {(2**32 + 5)//6}
    s_mul_i32 {s(S_T0)}, {s(S_KB)}, 6
    s_sub_u32 {s(S_NB)}, {s(S_TILE)}, {s(S_T0)}
    s_sub_u32 {s(S_T0)}, {s(S_KB)}, 4
    s_lshr_b32 {s(S_PROD)}, {s(S_T0)}, 1
    s_and_b32 {s(S_T0)}, {s(S_KB)}, 1
    s_mul_i32 {s(S_T0)}, {s(S_T0)}, 3
    s_cmp_lt_u32 {s(S_TILE)}, 36
    s_cselect_b32 {s(S_PROD)}, 0, {s(S_PROD)}
    s_cselect_b32 {s(S_KB)}, {s(S_KB)}, {s(S_T0)}
    s_lshl_b32 {s(S_PA)}, {s(S_KB)}, 2
    s_add_u32 {s(S_PA)}, {s(S_PA)}, {s(S_W)}
    s_mul_i32 {s(S_PA)}, {s(S_PA)}, {16*2304}
    s_lshl_b32 {s(S_T1)}, {s(S_NB)}, 2
    s_add_u32 {s(S_T1)}, {s(S_T1)}, {s(S_W)}
    s_mul_i32 {s(S_T1)}, {s(S_T1)}, {16*2304}
    s_add_u32 {s(S_T1)}, {s(S_T1)}, 768
    s_mul_i32 {s(S_T2)}, {s(S_W)}, {2*6144}
    s_lshl_b32 {s(S_T3)}, {s(S_NB)}, 7
    s_add_u32 {s(S_T2)}, {s(S_T2)}, {s(S_T3)}
    s_mov_b32 {s(S_T3)}, {8*6144}
    s_cmp_eq_u32 {s(S_PROD)}, 1
    s_cselect_b32 {s(S_PB)}, {s(S_T1)}, {s(S_T2)}
    s_cselect_b32 {s(S_PS)}, 128, {s(S_T3)}
    s_cselect_b32 {s(S_T0)}, 0, 1536
    s_cselect_b32 {s(S_T1)}, 1, 0
    s_cselect_b32 {s(S_T2)}, 7, 2
    s_movk_i32 {s(S_T3)}, 768
    s_cselect_b32 {s(S_T3)}, 2304, {s(S_T3)}
    s_add_u32 {s(S_PA)}, {s(S_PA)}, {s(S_T0)}
    v_lshrrev_b32 {v(V_T1)}, 3, {v(V_L)}
    v_mul_u32_u24 {v(V_T2)}, {s(S_T3)}, {v(V_T1)}
    v_lshrrev_b32 {v(V_T1)}, {s(S_T1)}, {v(V_T1)}
    v_and_b32 {v(V_T1)}, {s(S_T2)}, {v(V_T1)}
    v_and_b32 {v(V_T3)}, 7, {v(V_L)}
    v_xor_b32 {v(V_T3)}, {v(V_T3)}, {v(V_T1)}
    v_lshl_add_u32 {v(VW)}, {v(V_T3)}, 4, {v(V_T2)}
    v_xor_b32 {v(V_T3)}, 64, {v(VW)}
    s_lshl_b32 {s(S_T3)}, {s(S_T3)}, 3
    s_sub_u32 {s(S_T3)}, {s(S_T3)}, 1024
    v_add_u32 {v(VW+1)}, {s(S_T3)}, {v(V_T3)}
    v_lshrrev_b32 {v(V_T1)}, 3, {v(V_L)}
    v_mul_u32_u24 {v(V_T2)}, 2304, {v(V_T1)}
    v_lshrrev_b32 {v(V_T1)}, 1, {v(V_T1)}
    v_and_b32 {v(V_T3)}, 7, {v(V_L)}
    v_xor_b32 {v(V_T3)}, {v(V_T3)}, {v(V_T1)}
    v_lshl_add_u32 {v(V_PAO)}, {v(V_T3)}, 4, {v(V_T2)}
    v_xor_b32 {v(V_T3)}, 64, {v(V_PAO)}
    v_add_u32 {v(V_PAO+1)}, {18432-1024}, {v(V_T3)}
    s_lshl_b32 {s(S_PM)}, {s(S_W)}, 11
    """)


def aslot(j, t, nt):
    return L_PA + ((j % 4) * 3 + t) * 8192 if nt == 3 else L_PA + j * 8192


def prod_unit(g, j, nt):
    g(f"s_add_u32 m0, {s(S_PM)}, {j*8192}")
    g(f"s_add_u32 {s(S_T0)}, {s(S_PA)}, {j*128}")
    f = ntf(g, 4 if nt == 1 else 8)
    g(f"buffer_load_dwordx4 {v(VW)}, {s(SRD_B,4)}, {s(S_PB)} offen{f} lds")
    g(f"buffer_load_dwordx4 {v(VW+1)}, {s(SRD_B,4)}, {s(S_PB)} offen offset:1024{f} lds")
    for t in range(nt):
        g(f"s_add_u32 m0, {s(S_PM)}, {aslot(j, t, nt)}")
        g(f"s_add_u32 {s(S_PB)}, {s(S_PB)}, {s(S_PS)}" if t == 0 else f"s_add_u32 {s(S_T0)}, {s(S_T0)}, {64*2304}")
        row_dma(g, SRD_A, V_PAO, S_T0, j, f)


def products(g):
    g(f"""
    L_products:
    """)
    prod_pre(g)
    g(f"""
    s_waitcnt lgkmcnt(0)
    s_load_dword {s(S_NONCE)}, {s(S_WS,2)}, {WS_NONCE}
    s_cmp_eq_u32 {s(S_PROD)}, 0
    s_cselect_b32 {s(SRD_A)}, {s(S_WQT)}, {s(S_WQS)}
    s_cselect_b32 {s(SRD_A+1)}, {s(S_WQT+1)}, {s(S_WQS+1)}
    s_cselect_b32 {s(SRD_B)}, {s(S_WOT)}, {s(S_WOS)}
    s_cselect_b32 {s(SRD_B+1)}, {s(S_WOT+1)}, {s(S_WOS+1)}
    s_mov_b32 {s(SRD_A+2)}, 884736
    s_cmp_eq_u32 {s(S_PROD)}, 1
    s_cselect_b32 {s(SRD_B)}, {s(S_WQS)}, {s(SRD_B)}
    s_cselect_b32 {s(SRD_B+1)}, {s(S_WQS+1)}, {s(SRD_B+1)}
    s_cselect_b32 {s(SRD_B+2)}, {s(SRD_A+2)}, 294912
    s_cmp_ge_u32 {s(S_TILE)}, 36
    s_cbranch_scc1 L_prod3
    """)
    g.stamp('x0', False)
    for j in range(3):
        prod_unit(g, j, 1)
    g(f"""
    s_branch L_prod_body
    L_prod3:
    s_cmp_ge_u32 {s(S_TILE)}, 60
    s_cbranch_scc1 L_prod_idle
    """)
    prod_unit(g, 0, 3)
    g("s_branch L_prod3_body")


def products_body(g):
    ACC = V_ACC
    PK = V_BUF
    CSA, SELP, V_CSO = V_MISC, V_MISC + 16, V_MISC + 20
    S_PC0, S_PC1 = 71, 72

    def setup():
        common_consts(g)
        g(f"""
        v_lshrrev_b32 {v(V_T0)}, 2, {v(V_I)}
        v_and_b32 {v(V_T0)}, 1, {v(V_T0)}
        v_lshlrev_b32 {v(V_T0)}, 10, {v(V_T0)}
        v_lshrrev_b32 {v(V_T1)}, 1, {v(V_G)}
        v_lshl_add_u32 {v(V_T0)}, {v(V_T1)}, 8, {v(V_T0)}
        v_and_b32 {v(V_T1)}, 1, {v(V_G)}
        v_lshl_add_u32 {v(V_T0)}, {v(V_T1)}, 7, {v(V_T0)}
        v_lshrrev_b32 {v(V_T1)}, 3, {v(V_I)}
        v_lshl_add_u32 {v(V_T0)}, {v(V_T1)}, 6, {v(V_T0)}
        v_and_b32 {v(V_T1)}, 3, {v(V_I)}
        v_lshl_add_u32 {v(V_T5)}, {v(V_T1)}, 4, {v(V_T0)}
        s_and_b32 {s(S_T1)}, {s(S_W)}, 1
        s_lshl_b32 {s(S_T1)}, {s(S_T1)}, 9
        v_add_u32 {v(V_T5)}, {s(S_T1)}, {v(V_T5)}
        s_lshl_b32 {s(S_PF)}, {s(S_TILE)}, 7
        s_add_u32 {s(S_PF)}, {s(S_PF)}, {WS_FP}
        s_lshr_b32 {s(S_T0)}, {s(S_W)}, 1
        s_lshl_b32 {s(S_T1)}, {s(S_KB)}, 1
        s_add_u32 {s(S_T3)}, {s(S_T0)}, {s(S_T1)}
        v_lshrrev_b32 {v(V_T0)}, 1, {v(V_I)}
        v_xor_b32 {v(V_T0)}, {v(V_T0)}, {v(V_G)}
        v_lshlrev_b32 {v(V_T0)}, 4, {v(V_T0)}
        v_lshl_add_u32 {v(V_T3)}, {v(V_I)}, 7, {v(V_T0)}
        s_add_u32 {s(S_T0)}, {s(S_PM)}, {L_PA}
        v_add_u32 {v(A2[0])}, {s(S_T0)}, {v(V_T3)}
        v_xor_b32 {v(A2[1])}, 64, {v(A2[0])}
        v_add_u32 {v(A2[2])}, 49152, {v(A2[0])}
        v_add_u32 {v(A2[3])}, 49152, {v(A2[1])}
        """)

    def tr_addr():
        g(f"""
        v_lshlrev_b32 {v(V_T0)}, 10, {v(V_G)}
        v_lshrrev_b32 {v(V_T2)}, 2, {v(V_I)}
        v_lshl_add_u32 {v(V_T0)}, {v(V_T2)}, 7, {v(V_T0)}
        v_and_b32 {v(V_T1)}, 1, {v(V_G)}
        v_lshrrev_b32 {v(V_T2)}, 3, {v(V_I)}
        v_lshl_or_b32 {v(V_T2)}, {v(V_T1)}, 1, {v(V_T2)}
        v_lshl_add_u32 {v(V_T0)}, {v(V_T2)}, 5, {v(V_T0)}
        v_and_b32 {v(V_T2)}, 3, {v(V_I)}
        v_lshl_add_u32 {v(V_AD)}, {v(V_T2)}, 3, {v(V_T0)}
        v_xor_b32 {v(V_AD+1)}, 32, {v(V_AD)}
        v_xor_b32 {v(V_AD+2)}, 64, {v(V_AD)}
        v_xor_b32 {v(V_AD+3)}, 96, {v(V_AD)}
        """)

    def gemm(tr, nt, order, later, extra=None):
        items = []
        spread = []
        for ks in range(12):
            for c in range(4):
                b = V_BUF + ((ks * 4 + c) % 16) * 4
                if tr:
                    rd = [f"ds_read_b64_tr_b16 {v(b,2)}, {v(V_AD+c)} offset:{ks*4096}",
                          f"ds_read_b64_tr_b16 {v(b+2,2)}, {v(V_AD+c)} offset:{ks*4096+512}"]
                else:
                    rd = [f"ds_read_b128 {v(b,4)}, {v(V_AD+(ks&1))} offset:{(ks>>1)*8192+c*2048}"]
                pre = []
                if ks % 2 == 0 and c == 0:
                    for u in later.get(ks // 2, []):
                        if nt == 1:
                            pre += capture(g, lambda: prod_unit(g, u, nt))
                            order += [f"U{u}"] * (2 + 2 * nt)
                        else:
                            spread += capture(g, lambda: prod_unit(g, u, nt))
                            stag = f"U{u}"
                    last = len(order) - 1 - order[::-1].index(f"U{ks//2}")
                    pre += [f"s_waitcnt vmcnt({len(order)-1-last})", "s_barrier"]
                    if ks in (0, 4, 10):
                        pre += capture(g, lambda: g.stamp(f'chunk{ {0:0,4:1,10:2}[ks] }', False))
                    if extra and ks in extra:
                        pre += extra[ks]
                        order += ["h"] * 2
                while spread:
                    x = spread.pop(0)
                    pre.append(x)
                    if x.startswith("buffer"):
                        order.append(stag)
                        if any(y.startswith("buffer") for y in spread):
                            break
                cm = []
                for t in range(nt):
                    d = ACC + 16 * t + 4 * c
                    af = V_XF + ((ks % 4) * 3 + t) * 4
                    if c == 0:
                        o = aslot(ks // 2, t, nt) - L_PA
                        rd.append(f"ds_read_b128 {v(af,4)}, {v(A2[(ks&1) + 2*(o >= 49152)])} offset:{o % 49152}")
                    cm.append(f"v_mfma_f32_16x16x32_bf16 {v(d,4)}, {v(af,4)}, {v(b,4)}, {'0' if ks == 0 else v(d,4)}")
                items.append((rd, cm, pre))
        pipelined(g, items, 14 if tr else 10, group=g.opts.get('pg', 1) if nt == 3 else 1)

    def epi(nt):
        g.nop(5 if nt == 1 else 1)
        for t in range(nt):
            P = PK + 8 * t
            for c in range(4):
                g(f"v_cvt_pk_bf16_f32 {v(P+2*c)}, {v(ACC+16*t+4*c)}, {v(ACC+16*t+4*c+1)}")
                g(f"v_cvt_pk_bf16_f32 {v(P+2*c+1)}, {v(ACC+16*t+4*c+2)}, {v(ACC+16*t+4*c+3)}")
            g(f"""
            v_permlane16_swap_b32 {v(P)}, {v(P+2)}
            v_permlane16_swap_b32 {v(P+1)}, {v(P+3)}
            v_permlane16_swap_b32 {v(P+4)}, {v(P+6)}
            v_permlane16_swap_b32 {v(P+5)}, {v(P+7)}
            buffer_store_dwordx4 {v(P,4)}, {v(V_T5)}, {s(SRD_WS,4)}, {s(S_PO0)} offen sc1
            buffer_store_dwordx4 {v(P+4,4)}, {v(V_T5)}, {s(SRD_WS,4)}, {s(S_PO1)} offen sc1
            """)
            if nt == 3:
                for aa in range(2):
                    mfma32(g, v(CSA + 4 * aa, 4), v(SELP, 4), v(P + 4 * aa, 4), "0" if t == 0 else None)
            if t < nt - 1:
                g(f"v_add_u32 {v(V_T5)}, {2*6144}, {v(V_T5)}")
        if nt == 3:
            g.nop(7)
            g(f"""
            s_mov_b32 exec_lo, 0xffff
            s_mov_b32 exec_hi, 0xffff
            buffer_store_dword {v(CSA)}, {v(V_CSO)}, {s(SRD_WS,4)}, {s(S_PC0)} offen sc1
            buffer_store_dword {v(CSA+4)}, {v(V_CSO)}, {s(SRD_WS,4)}, {s(S_PC1)} offen sc1
            s_mov_b64 exec, -1
            """)

    def helper():
        lb = g.label('help')
        S_HT, SRD_H = 73, SRD_B
        g(f"""
        s_lshl_b32 {s(S_T0)}, {s(S_RQ)}, 1
        s_add_u32 {s(S_T0)}, {s(S_T0)}, {s(S_CS)}
        s_sub_u32 {s(S_T0)}, {s(S_T0)}, 9
        s_lshl_b32 {s(S_T0)}, {s(S_T0)}, 2
        s_add_u32 {s(S_T0)}, {s(S_T0)}, {s(S_W)}
        s_mov_b32 {s(SRD_H)}, {s(S_WQS)}
        s_mov_b32 {s(SRD_H+1)}, {s(S_WQS+1)}
        s_mov_b32 {s(SRD_H+2)}, 884736
        v_mul_u32_u24 {v(V_T0)}, 43, {v(V_L)}
        v_lshrrev_b32 {v(V_T0)}, 8, {v(V_T0)}
        v_mul_u32_u24 {v(V_T0)}, {2304-768}, {v(V_T0)}
        v_lshl_add_u32 {v(V_T0)}, {v(V_L)}, 7, {v(V_T0)}
        s_bfe_u32 {s(S_T2)}, {s(S_G8)}, 0x10001
        s_cmp_ge_u32 {s(S_G8)}, 4
        s_cselect_b32 {s(S_T3)}, 1536, 0
        s_mov_b32 {s(S_HT)}, {10*2304}
        s_cmp_lt_u32 {s(S_T0)}, 10
        s_cbranch_scc1 {lb}
        s_sub_u32 {s(S_T0)}, {s(S_T0)}, 10
        s_and_b32 {s(S_T2)}, {s(S_G8)}, 1
        s_movk_i32 {s(S_T3)}, 768
        s_cmp_lt_u32 {s(S_G8)}, 4
        s_cbranch_scc1 {lb}
        s_mov_b32 {s(SRD_H)}, {s(S_WOS)}
        s_mov_b32 {s(SRD_H+1)}, {s(S_WOS+1)}
        s_mov_b32 {s(SRD_H+2)}, 294912
        v_mul_u32_u24 {v(V_T0)}, 86, {v(V_L)}
        v_lshrrev_b32 {v(V_T0)}, 8, {v(V_T0)}
        v_mul_u32_u24 {v(V_T0)}, {768-384}, {v(V_T0)}
        v_lshl_add_u32 {v(V_T0)}, {v(V_L)}, 7, {v(V_T0)}
        s_mul_i32 {s(S_T3)}, {s(S_T2)}, 384
        s_mov_b32 {s(S_T2)}, 0
        s_mov_b32 {s(S_HT)}, {20*768}
        {lb}:
        s_mul_i32 {s(S_T2)}, {s(S_T2)}, {192*2304}
        s_add_u32 {s(S_T2)}, {s(S_T2)}, {s(S_T3)}
        s_mul_i32 {s(S_T0)}, {s(S_T0)}, {s(S_HT)}
        s_lshl_b32 {s(S_T0)}, {s(S_T0)}, 1
        s_add_u32 {s(S_T0)}, {s(S_T0)}, {s(S_T2)}
        s_add_u32 {s(S_T1)}, {s(S_T0)}, {s(S_HT)}
        s_mov_b32 exec_hi, 0x0fffffff
        buffer_load_dword {v(V_MISC+60)}, {v(V_T0)}, {s(SRD_H,4)}, {s(S_T0)} offen
        buffer_load_dword {v(V_MISC+61)}, {v(V_T0)}, {s(SRD_H,4)}, {s(S_T1)} offen
        s_mov_b32 exec_hi, -1
        """)

    def dst_touch(nt):
        if g.opts.get("pw3", 0) & (1 if nt == 1 else 2):
            for t in range(nt):
                if t:
                    g(f"v_add_u32 {v(V_T0+t)}, {t*2*6144}, {v(V_T5)}")
                vo = V_T0 + t if t else V_T5
                g(f"buffer_load_dword {v(254)}, {v(vo)}, {s(SRD_WS,4)}, {s(S_PO0)} offen sc1")
                g(f"buffer_load_dword {v(254)}, {v(vo)}, {s(SRD_WS,4)}, {s(S_PO1)} offen sc1")

    def fp_touch():
        if g.opts.get("pw2", 1):
            g(f"""
            v_mul_u32_u24 {v(V_T0)}, {FP_REP}, {v(V_L)}
            s_mov_b64 exec, 0xff
            buffer_load_dword {v(254)}, {v(V_T0)}, {s(SRD_WS,4)}, {s(S_PF)} offen sc1
            s_mov_b64 exec, -1
            """)

    g("L_prod_body:")
    setup()
    g(f"""
    s_mul_i32 {s(S_T1)}, {s(S_NB)}, 49152
    s_lshl_b32 {s(S_T0)}, {s(S_T3)}, 12
    s_add_u32 {s(S_T0)}, {s(S_T0)}, {s(S_T1)}
    s_add_u32 {s(S_PO0)}, {s(S_T0)}, {WS_WVOT}
    s_add_u32 {s(S_PO1)}, {s(S_PO0)}, 2048
    """)
    tr_addr()
    nonce_and_publish(g)
    fp_touch()
    dst_touch(1)
    for j in range(3, 6):
        prod_unit(g, j, 1)
    o1 = [f"U{j}" for j in range(3) for _ in range(4)] + ["t"] * (1 + 2 * g.opts.get("tlb", 0) + g.opts.get("pw2", 1) + 2 * (g.opts.get("pw3", 0) & 1)) + [f"U{j}" for j in range(3, 6) for _ in range(4)]
    if g.opts.get("help", 0) == 2:
        helper()
        o1 += ["h"] * 2
    HK = g.opts.get("hk", 0)
    gemm(True, 1, o1, {}, extra={HK: capture(g, helper)} if g.opts.get("help", 0) == 3 else None)
    epi(1)
    g(f"""
    L_prod_fin:
    """)
    g.stamp('chunk3')
    g("""
    s_waitcnt vmcnt(0)
    s_barrier
    """)
    flag_store(g, s(S_PF), FP_REP)
    g.stamp('chunk5')
    g(f"""
    s_cmp_ge_u32 {s(S_TILE)}, 36
    s_cbranch_scc1 L_prod_out
    L_prod_help:
    """)
    if g.opts.get("help", 0) == 1:
        helper()
    if g.opts.get("res", 1):
        g(f"""
        s_lshl_b32 {s(S_T0)}, {s(S_RQ)}, 1
        s_add_u32 {s(S_T0)}, {s(S_T0)}, {s(S_CS)}
        s_sub_u32 {s(S_T0)}, {s(S_T0)}, 9
        s_lshl_b32 {s(S_T0)}, {s(S_T0)}, 2
        s_add_u32 {s(S_T0)}, {s(S_T0)}, {s(S_W)}
        s_mul_i32 {s(S_T1)}, {s(S_T0)}, 77
        v_add_u32 {v(V_T0)}, {s(S_T1)}, {v(V_L)}
        v_min_u32 {v(V_T0)}, 1535, {v(V_T0)}
        v_lshlrev_b32 {v(V_T0)}, 7, {v(V_T0)}
        s_mul_i32 {s(S_T2)}, {s(S_G8)}, 196608
        s_add_u32 {s(S_T2)}, {s(S_T2)}, {WS_QP}
        s_add_u32 {s(S_T3)}, {s(S_T2)}, {WS_VP-WS_QP}
        buffer_load_dword {v(254)}, {v(V_T0)}, {s(SRD_WS,4)}, {s(S_T2)} offen sc1{ntf(g, 32)}
        buffer_load_dword {v(254)}, {v(V_T0)}, {s(SRD_WS,4)}, {s(S_T3)} offen sc1{ntf(g, 32)}
        s_add_u32 {s(S_T1)}, {s(S_T1)}, 64
        v_add_u32 {v(V_T0)}, {s(S_T1)}, {v(V_I)}
        v_min_u32 {v(V_T0)}, 1535, {v(V_T0)}
        v_lshlrev_b32 {v(V_T0)}, 7, {v(V_T0)}
        v_and_b32 {v(V_T1)}, 1, {v(V_G)}
        v_mul_u32_u24 {v(V_T1)}, {WS_VP-WS_QP}, {v(V_T1)}
        v_add3_u32 {v(V_T0)}, {v(V_T0)}, {v(V_T1)}, {s(S_T2)}
        s_lshl_b32 {s(S_T1)}, {s(S_T0)}, 2
        v_and_b32 {v(V_T1)}, 3, {v(V_L)}
        v_add_u32 {v(V_T1)}, {s(S_T1)}, {v(V_T1)}
        v_min_u32 {v(V_T2)}, 63, {v(V_T1)}
        v_lshlrev_b32 {v(V_T2)}, 7, {v(V_T2)}
        s_lshl_b32 {s(S_T1)}, {s(S_G8)}, 13
        s_add_u32 {s(S_T1)}, {s(S_T1)}, {WS_SQ}
        v_add_u32 {v(V_T2)}, {s(S_T1)}, {v(V_T2)}
        v_and_b32 {v(V_T1)}, 31, {v(V_T1)}
        v_lshlrev_b32 {v(V_T1)}, 10, {v(V_T1)}
        s_lshl_b32 {s(S_T1)}, {s(S_G8)}, 7
        s_add_u32 {s(S_T1)}, {s(S_T1)}, {WS_F2}
        v_add_u32 {v(V_T1)}, {s(S_T1)}, {v(V_T1)}
        v_cmp_eq_u32 vcc, 2, {v(V_G)}
        s_nop 1
        v_cndmask_b32 {v(V_T0)}, {v(V_T0)}, {v(V_T2)}, vcc
        v_cmp_eq_u32 vcc, 3, {v(V_G)}
        s_nop 1
        v_cndmask_b32 {v(V_T0)}, {v(V_T0)}, {v(V_T1)}, vcc
        buffer_load_dword {v(254)}, {v(V_T0)}, {s(SRD_WS,4)}, 0 offen sc1{ntf(g, 32)}
        """)
    p2_setup(g)
    p3_setup(g)
    p3_setup2(g)
    poll(g, V_PB, "0", s(S_NONCE), "pwsp", g.opts.get("pslp", 8))
    g(f"s_mov_b32 {s(S_F1)}, 1")
    ws2_dma(g)
    pa_wait(g, S_F1, "pxcd")
    g("s_branch L_p2d")
    g(f"""
    L_prod_out:
    buffer_load_dword {v(V_T7)}, {v(V_PA)}, {s(SRD_WS,4)}, 0 offen sc1
    buffer_load_dword {v(V_T5)}, {v(V_PB)}, {s(SRD_WS,4)}, 0 offen sc1
    """)
    p2_setup(g)
    p3_setup(g)
    p3_setup2(g)
    g("s_waitcnt vmcnt(0)")
    pa_eval(g)
    pa_wait(g, S_F1, "pxcc")
    g(f"""
    v_cmp_ne_u32 vcc, {s(S_NONCE)}, {v(V_T5)}
    s_cbranch_vccz L_prod_go
    """)
    poll(g, V_PB, "0", s(S_NONCE), "pwsq", g.opts.get("tslp", 1))
    g("L_prod_go:")
    ws2_dma(g)
    g(f"s_waitcnt vmcnt({g.opts.get('pw', 0)})")
    g("s_branch L_p2d")
    g("L_prod3_body:")
    setup()
    g(f"""
    s_mul_i32 {s(S_T0)}, {s(S_T3)}, 6144
    s_sub_u32 {s(S_T1)}, {s(S_PROD)}, 1
    s_mul_i32 {s(S_T1)}, {s(S_T1)}, {4*73728}
    s_add_u32 {s(S_T0)}, {s(S_T0)}, {s(S_T1)}
    s_add_u32 {s(S_T0)}, {s(S_T0)}, {WS_WS2}
    """)
    g(f"""
    s_sub_u32 {s(S_T1)}, {s(S_PROD)}, 1
    s_mul_i32 {s(S_T2)}, {s(S_T1)}, {4*3072}
    s_cmp_eq_u32 {s(S_KB)}, 0
    s_cselect_b32 {s(S_T1)}, 0, 256
    s_add_u32 {s(S_T2)}, {s(S_T2)}, {s(S_T1)}
    s_lshr_b32 {s(S_T1)}, {s(S_W)}, 1
    s_lshl_b32 {s(S_T1)}, {s(S_T1)}, 7
    s_add_u32 {s(S_T2)}, {s(S_T2)}, {s(S_T1)}
    s_and_b32 {s(S_T1)}, {s(S_W)}, 1
    s_lshl_b32 {s(S_T1)}, {s(S_T1)}, 2
    s_add_u32 {s(S_T2)}, {s(S_T2)}, {s(S_T1)}
    s_add_u32 {s(S_T2)}, {s(S_T2)}, {WS_CSP}
    v_bfe_u32 {v(V_T0)}, {v(V_I)}, 2, 1
    v_lshlrev_b32 {v(V_T0)}, 9, {v(V_T0)}
    v_lshrrev_b32 {v(V_T1)}, 1, {v(V_G)}
    v_lshl_add_u32 {v(V_T0)}, {v(V_T1)}, 6, {v(V_T0)}
    v_lshrrev_b32 {v(V_T1)}, 3, {v(V_I)}
    v_lshl_add_u32 {v(V_T0)}, {v(V_T1)}, 5, {v(V_T0)}
    v_and_b32 {v(V_T2)}, 3, {v(V_I)}
    v_lshl_add_u32 {v(V_CSO)}, {v(V_T2)}, 3, {v(V_T0)}
    v_and_b32 {v(V_T0)}, 1, {v(V_G)}
    v_cmp_eq_u32 vcc, {v(V_T0)}, {v(V_T1)}
    s_nop 1
    v_cndmask_b32 {v(SELP)}, 0, {v(V_ONES)}, vcc
    v_cndmask_b32 {v(SELP+1)}, 0, {v(V_ONES)}, vcc
    v_cndmask_b32 {v(SELP+2)}, 0, {v(V_ONES)}, vcc
    v_cndmask_b32 {v(SELP+3)}, 0, {v(V_ONES)}, vcc
    """)
    for aa, dst, dc in ((0, S_PO0, S_PC0), (1, S_PO1, S_PC1)):
        g(f"""
        s_lshl_b32 {s(S_T3)}, {s(S_NB)}, 1
        s_add_u32 {s(S_T3)}, {s(S_T3)}, {aa}
        s_mul_hi_u32 {s(dst)}, {s(S_T3)}, {(2**32+2)//3}
        s_mul_i32 {s(S_T1)}, {s(dst)}, 3
        s_lshl_b32 {s(dc)}, {s(S_T3)}, 10
        s_add_u32 {s(dc)}, {s(dc)}, {s(S_T2)}
        s_sub_u32 {s(S_T3)}, {s(S_T3)}, {s(S_T1)}
        s_mul_i32 {s(dst)}, {s(dst)}, 73728
        s_lshl_b32 {s(S_T3)}, {s(S_T3)}, 11
        s_add_u32 {s(dst)}, {s(dst)}, {s(S_T3)}
        s_add_u32 {s(dst)}, {s(dst)}, {s(S_T0)}
        """)
    nonce_and_publish(g)
    fp_touch()
    if g.opts.get("pw2", 1):
        g(f"buffer_load_dword {v(254)}, {v(V_CSO)}, {s(SRD_WS,4)}, {s(S_PC0)} offen sc1")
        g(f"buffer_load_dword {v(254)}, {v(V_CSO)}, {s(SRD_WS,4)}, {s(S_PC1)} offen sc1")
    prod_unit(g, 1, 3)
    dst_touch(3)
    o3 = (["U0"] * 8 + ["t"] * (1 + 2 * g.opts.get("tlb", 0) + 3 * g.opts.get("pw2", 1)) + ["U1"] * 8
          + ["t"] * (3 * (g.opts.get("pw3", 0) & 2)))
    l3 = {0: [2], 1: [3], 2: [4], 3: [5]}
    if g.opts.get("u2", 0):
        prod_unit(g, 2, 3)
        o3 += ["U2"] * 8
        l3 = {1: [3], 2: [4], 3: [5]}
    g(f"""
    s_cmp_eq_u32 {s(S_PROD)}, 1
    s_cbranch_scc1 L_prod_rows
    """)
    tr_addr()
    gemm(True, 3, list(o3), l3)
    g("L_prod_epi3:")
    epi(3)
    g("s_branch L_prod_fin")
    g(f"""
    L_prod_rows:
    v_mov_b32 {v(V_AD)}, {v(V_T3)}
    v_xor_b32 {v(V_AD+1)}, 64, {v(V_T3)}
    """)
    gemm(False, 3, list(o3), l3)
    g("s_branch L_prod_epi3")
    g("L_prod_idle:")
    common_consts(g)
    nonce_and_publish(g)
    if g.opts.get("help", 0) > 1:
        helper()
    g("s_branch L_prod_help")


A_K = 0
A_V = 144
V_RES = V_MISC + 28
RK = V_MISC
BK = 232
SG = 248
A2 = [70, 71, 72, 73, 79]
V_KO, VST, V_L16H = 78, 206, 216
VTB = 217
V_I8 = 244
S_RH2 = 74
VC2 = 232
V_FXP = 235
V_P3F, V_SQA, V_RSA, V_P3V = 188, 189, 190, 191
S_P3F, S_Q2, S_U0, S_U1 = 4, 5, 6, 7
S_QM = [8, 9, 10]
S_KS = [76, 77, 78, 79]
S_R0, S_R1, S_STX, S_FXP, S_O1, S_O0, S_FL = 80, 81, 14, 15, 3, 18, 19


def kreg(slot, ks):
    return v(V_XF + 4 * ks, 4) if slot == 0 else a(A_K + (slot - 1) * 48 + 4 * ks, 4)


S_CP0, S_CP1, S_O2 = 15, 16, 17
S_RHO = 26
VK = [71, 79, 78]
V_L8 = 73


def p2_setup(g):
    T0, T1 = V_T0, V_T1
    g(f"""
    s_lshr_b32 {s(S_RH2)}, {s(S_J)}, 4
    s_lshl_b32 {s(S_RH2)}, {s(S_RH2)}, 1
    s_and_b32 {s(S_T1)}, {s(S_J)}, 15
    s_mul_i32 {s(S_T2)}, {s(S_T1)}, 43
    s_lshr_b32 {s(S_T2)}, {s(S_T2)}, 7
    s_mul_i32 {s(S_T2)}, {s(S_T2)}, 3
    s_sub_u32 {s(S_RHO)}, {s(S_T1)}, {s(S_T2)}
    s_mul_i32 {s(S_RHO)}, {s(S_RHO)}, {4 if g.opts.get("krot", 0) else 0}
    s_lshl_b32 {s(S_T1)}, {s(S_RHO)}, 10
    v_add_u32 {v(VK[0])}, {s(S_T1)}, {v(V_L16)}
    s_add_u32 {s(S_T1)}, {s(S_T1)}, 4096
    s_cmp_eq_u32 {s(S_T1)}, 12288
    s_cselect_b32 {s(S_T1)}, 0, {s(S_T1)}
    v_add_u32 {v(VK[1])}, {s(S_T1)}, {v(V_L16)}
    s_add_u32 {s(S_T1)}, {s(S_T1)}, 4096
    s_cmp_eq_u32 {s(S_T1)}, 12288
    s_cselect_b32 {s(S_T1)}, 0, {s(S_T1)}
    v_add_u32 {v(VK[2])}, {s(S_T1)}, {v(V_L16)}
    s_mul_i32 {s(S_T1)}, {s(S_W)}, 3
    s_add_u32 {s(S_T1)}, {s(S_T1)}, 12
    s_sub_u32 {s(S_RHO)}, {s(S_T1)}, {s(S_RHO)}
    v_add_u32 {v(V_L16H)}, 4096, {v(V_L16)}
    v_lshlrev_b32 {v(V_L8)}, 3, {v(V_L)}
    v_xor_b32 {v(T0)}, {s(S_RH2)}, {v(V_G)}
    v_lshrrev_b32 {v(T1)}, 3, {v(V_I)}
    v_lshl_add_u32 {v(T1)}, {v(T0)}, 1, {v(T1)}
    v_mul_u32_u24 {v(T1)}, 768, {v(T1)}
    v_and_b32 {v(T0)}, 7, {v(V_I)}
    v_lshl_add_u32 {v(VST)}, {v(T0)}, 3, {v(T1)}
    s_mul_i32 {s(S_STX)}, {s(S_G8)}, {6*32*128}
    s_mul_i32 {s(S_T1)}, {s(S_W)}, {48*128}
    s_add_u32 {s(S_STX)}, {s(S_STX)}, {s(S_T1)}
    s_add_u32 {s(S_STX)}, {s(S_STX)}, {WS_STX}
    s_mul_i32 {s(S_T1)}, {s(S_W)}, 768
    s_add_u32 {s(S_T1)}, {s(S_T1)}, {L_ST}
    v_lshlrev_b32 {v(T0)}, 2, {v(V_L)}
    v_add_u32 {v(VTB)}, {s(S_T1)}, {v(T0)}
    v_lshlrev_b32 {v(V_I8)}, 3, {v(V_I)}
    v_lshlrev_b32 {v(VTB+1)}, 4, {v(V_G)}
    v_add_u32 {v(VTB+2)}, {s(S_T1)}, {v(VTB+1)}
    s_lshl_b32 {s(S_T3)}, {s(S_G8)}, 2
    s_add_u32 {s(S_T3)}, {s(S_T3)}, {s(S_W)}
    s_mul_i32 {s(S_T3)}, {s(S_T3)}, 49152
    s_add_u32 {s(S_T3)}, {s(S_T3)}, {WS_X1}
    s_mul_i32 {s(S_T1)}, {s(S_RH2)}, 12288
    s_add_u32 {s(S_KS[0])}, {s(S_T3)}, {s(S_T1)}
    s_add_u32 {s(S_KS[1])}, {s(S_KS[0])}, 12288
    s_sub_u32 {s(S_KS[2])}, {s(S_T3)}, {s(S_T1)}
    s_add_u32 {s(S_KS[2])}, {s(S_KS[2])}, 24576
    s_add_u32 {s(S_KS[3])}, {s(S_KS[2])}, 12288
    s_bfe_u32 {s(S_T1)}, {s(S_J)}, 0x20002
    s_sub_u32 {s(S_R1)}, {s(S_T1)}, {s(S_W)}
    s_mul_i32 {s(S_R1)}, {s(S_R1)}, 49152
    s_add_u32 {s(S_R1)}, {s(S_R1)}, {s(S_KS[0])}
    s_and_b32 {s(S_T1)}, {s(S_W)}, 1
    s_mul_i32 {s(S_T1)}, {s(S_T1)}, 12288
    s_add_u32 {s(S_R1)}, {s(S_R1)}, {s(S_T1)}
    s_and_b32 {s(S_T1)}, {s(S_J)}, 3
    s_mul_i32 {s(S_T1)}, {s(S_T1)}, 3072
    s_add_u32 {s(S_R1)}, {s(S_R1)}, {s(S_T1)}
    s_lshr_b32 {s(S_T1)}, {s(S_W)}, 1
    s_lshl_b32 {s(S_T1)}, {s(S_T1)}, 10
    s_add_u32 {s(S_R0)}, {s(S_T1)}, {s(S_R1)}
    s_lshl_b32 {s(S_FL)}, s2, 7
    s_lshl_b32 {s(S_T1)}, {s(S_W)}, 2
    s_add_u32 {s(S_FL)}, {s(S_FL)}, {s(S_T1)}
    s_add_u32 {s(S_FL)}, {s(S_FL)}, {WS_F2}
    s_bfe_u32 {s(S_T3)}, {s(S_J)}, 0x30001
    s_mul_i32 {s(S_WD0)}, {s(S_T3)}, 73728
    s_mul_i32 {s(S_T1)}, {s(S_W)}, 18432
    s_add_u32 {s(S_WD0)}, {s(S_WD0)}, {s(S_T1)}
    s_add_u32 {s(S_WD0)}, {s(S_WD0)}, {WS_WS2}
    s_mul_i32 {s(S_CP0)}, {s(S_T3)}, 3072
    s_add_u32 {s(S_CP0)}, {s(S_CP0)}, {WS_CSP}
    s_and_b32 {s(S_T2)}, {s(S_J)}, 1
    s_lshl_b32 {s(S_T1)}, {s(S_T2)}, 10
    s_add_u32 {s(S_WD1)}, {s(S_WD0)}, {s(S_T1)}
    s_lshl_b32 {s(S_T1)}, {s(S_T2)}, 12
    s_add_u32 {s(S_WD0)}, {s(S_WD0)}, {s(S_T1)}
    s_lshl_b32 {s(S_T1)}, {s(S_T2)}, 9
    s_add_u32 {s(S_CP1)}, {s(S_CP0)}, {s(S_T1)}
    s_lshl_b32 {s(S_T1)}, {s(S_T2)}, 11
    s_add_u32 {s(S_CP0)}, {s(S_CP0)}, {s(S_T1)}
    """)
    g(f"""
    s_lshl_b32 {s(S_O0)}, {s(S_G8)}, 2
    s_add_u32 {s(S_O0)}, {s(S_O0)}, {s(S_RH2)}
    s_lshl_b32 {s(S_O0)}, {s(S_O0)}, 1
    s_add_u32 {s(S_O0)}, {s(S_O0)}, {s(S_W)}
    s_mul_i32 {s(S_O1)}, {s(S_O0)}, 24576
    s_mul_i32 {s(S_T1)}, {s(S_T3)}, 3072
    s_add_u32 {s(S_O1)}, {s(S_O1)}, {s(S_T1)}
    s_add_u32 {s(S_O1)}, {s(S_O1)}, {WS_QP}
    s_lshl_b32 {s(S_T1)}, {s(S_T2)}, 3
    s_add_u32 {s(S_O2)}, {s(S_O1)}, {s(S_T1)}
    s_add_u32 {s(S_O2)}, {s(S_O2)}, 1024
    s_lshl_b32 {s(S_T1)}, {s(S_T2)}, 11
    s_add_u32 {s(S_O1)}, {s(S_O1)}, {s(S_T1)}
    s_lshl_b32 {s(S_O0)}, {s(S_O0)}, 10
    s_lshl_b32 {s(S_T1)}, {s(S_T3)}, 7
    s_add_u32 {s(S_O0)}, {s(S_O0)}, {s(S_T1)}
    s_lshl_b32 {s(S_T1)}, {s(S_T2)}, 2
    s_add_u32 {s(S_O0)}, {s(S_O0)}, {s(S_T1)}
    s_add_u32 {s(S_O0)}, {s(S_O0)}, {WS_SQ}
    s_bitcmp0_b32 {s(S_J)}, 3
    s_cbranch_scc1 {g.label("q") if False else "L_p2s_%d" % g.uid}
    s_lshl_b32 {s(S_O1)}, {s(S_G8)}, 2
    s_add_u32 {s(S_O1)}, {s(S_O1)}, {s(S_T3)}
    s_sub_u32 {s(S_O1)}, {s(S_O1)}, 4
    s_mul_i32 {s(S_O1)}, {s(S_O1)}, 49152
    s_lshl_b32 {s(S_T1)}, {s(S_W)}, 2
    s_add_u32 {s(S_T1)}, {s(S_T1)}, {s(S_RH2)}
    s_mul_i32 {s(S_T1)}, {s(S_T1)}, 3072
    s_add_u32 {s(S_O1)}, {s(S_O1)}, {s(S_T1)}
    s_add_u32 {s(S_O1)}, {s(S_O1)}, {WS_VP}
    s_lshl_b32 {s(S_T1)}, {s(S_T2)}, 10
    s_add_u32 {s(S_O2)}, {s(S_O1)}, {s(S_T1)}
    s_lshl_b32 {s(S_T1)}, {s(S_T2)}, 12
    s_add_u32 {s(S_O1)}, {s(S_O1)}, {s(S_T1)}
    L_p2s_{g.uid}:
    """)
    g.uid += 1


KORD = [(sl, ks) for ks in range(12) for sl in range(2)] + [(sl, ks) for sl in (2, 3) for ks in range(12)]
KL = ([f"buffer_load_dwordx4 {kreg(sl,ks)}, {v(VK[ks//4])}, {s(SRD_WS,4)}, {s(S_KS[sl])} offen offset:{(ks%4)*1024} sc1"
       for sl, ks in KORD] +
      [f"buffer_load_dwordx4 {v(V_RES,4)}, {v(V_RSA)}, {s(SRD_WS,4)}, {s(S_R0)} offen sc1",
       f"buffer_load_dwordx4 {v(V_RES+4,4)}, {v(V_RSA)}, {s(SRD_WS,4)}, {s(S_R1)} offen offset:2048 sc1"])


def colsums(g):
    CT = V_ACC + 32
    for c in range(3):
        g(f"v_add_f32 {v(CSL+4*c)}, {v(CSL+4*c)}, {v(CSL+4*c+1)}")
    for sw in ("v_permlane16_swap_b32", "v_permlane32_swap_b32"):
        for c in range(3):
            g(f"v_mov_b32 {v(CSL+4*c+1)}, {v(CSL+4*c)}")
        for c in range(3):
            g(f"{sw} {v(CSL+4*c)}, {v(CSL+4*c+1)}")
        for c in range(3):
            g(f"v_add_f32 {v(CSL+4*c)}, {v(CSL+4*c)}, {v(CSL+4*c+1)}")
    for c in range(3):
        colsum_pack(g, CSL + 4 * c, CT + 2 * c)


def p2(g):
    ACC = V_ACC
    CS = V_ACC + 24
    CT = V_ACC + 32
    RT = 232
    MU2 = [V_MU, 240]
    SC2 = [V_T0, 242]
    STP = V_MISC
    KM, KR, KB = V_MISC + 12, V_MISC + 13, V_MISC + 20
    g("L_p2:")
    g.stamp('early')
    ws2_dma(g)
    g("L_p2c:")

    def stx():
        for cb in range(6):
            g(f"buffer_load_dwordx2 {v(STP+2*cb,2)}, {v(VST)}, {s(SRD_WS,4)}, {s(S_STX)} offen offset:{cb*128} sc1")
    FXW = g.opts.get("fxw", 1)
    p3_setup(g)
    p3_setup2(g)
    g("L_p2d:")

    def qstores(sc, P):
        g(f"""
        s_add_u32 {s(S_T1)}, {s(S_O1)}, 12288
        s_add_u32 {s(S_T2)}, {s(S_O2)}, 12288
        buffer_store_dwordx4 {v(P[0],4)}, {v(V_L16)}, {s(SRD_WS,4)}, {s(S_O1)} offen{sc}
        buffer_store_dwordx4 {v(P[1],4)}, {v(V_L16)}, {s(SRD_WS,4)}, {s(S_T1)} offen{sc}
        buffer_store_dwordx2 {v(P[2],2)}, {v(V_L16)}, {s(SRD_WS,4)}, {s(S_O2)} offen{sc}
        buffer_store_dwordx2 {v(P[3],2)}, {v(V_L16)}, {s(SRD_WS,4)}, {s(S_T2)} offen{sc}
        """)
    g(f"""
    s_bitcmp1_b32 {s(S_J)}, 3
    s_cbranch_scc1 L_nomark
    """)
    PR = g.opts.get("pr", 0)
    if PR:
        g(f"""
        s_add_u32 {s(S_T2)}, {s(S_O2)}, 12288
        buffer_load_dword {v(254)}, {v(V_L16)}, {s(SRD_WS,4)}, {s(S_O2)} offen sc1
        buffer_load_dword {v(254)}, {v(V_L16)}, {s(SRD_WS,4)}, {s(S_T2)} offen sc1
        buffer_load_dword {v(254)}, {v(V_I8)}, {s(SRD_WS,4)}, {s(S_O0)} offen sc1
        buffer_load_dword {v(254)}, {v(V_I8)}, {s(SRD_WS,4)}, {s(S_O0)} offen offset:512 sc1
        """)
    for q in range(4):
        g(f"v_mov_b32 {v(NANQ+q)}, -1")
    both_modes(g, lambda sc: qstores(sc, [NANQ] * 4))
    assert FXW == 1
    g(f"""
    s_waitcnt vmcnt({13 + 4 * PR})
    s_branch L_marked
    L_nomark:
    """)
    if PR:
        g(f"buffer_load_dword {v(254)}, {v(V_ZERO)}, {s(SRD_WS,4)}, {s(S_FL)} offen sc1")
    g(f"""
    s_waitcnt vmcnt({9 + PR})
    L_marked:
    """)
    g.stamp('wsland')
    colsums(g)
    g(f"""
    s_mov_b32 {s(S_SPIN)}, {SPIN_LIMIT}
    s_mov_b32 {s(S_RETRY)}, 64
    {'s_branch L_px1' if FXW == 0 else ''}
    L_px:
    """)
    stx()
    g("L_px1:")
    g("s_waitcnt vmcnt(0)")
    for cb in range(6):
        for h in range(2):
            g(f"v_xor_b32 {v(STP+2*cb+h)}, {s(S_TAG+h)}, {v(STP+2*cb+h)}")
    g(f"v_or3_b32 {v(V_T0)}, {v(STP)}, {v(STP+1)}, {v(STP+2)}")
    for q in range(3, 11, 2):
        g(f"v_or3_b32 {v(V_T0)}, {v(V_T0)}, {v(STP+q)}, {v(STP+q+1)}")
    g(f"""
    v_or_b32 {v(V_T0)}, {v(V_T0)}, {v(STP+11)}
    v_and_b32 {v(V_T0)}, 0xff, {v(V_T0)}
    v_cmp_ne_u32 vcc, 0, {v(V_T0)}
    s_cbranch_vccz L_pxok
    s_sleep {g.opts.get("slp", 4)}
    s_sub_u32 {s(S_SPIN)}, {s(S_SPIN)}, 1
    s_cbranch_scc0 L_px
    L_pxok:
    """)
    g.stamp('x1ok')
    K0N = g.opts.get("k0n", 12)
    for x in KL[:K0N]:
        g(x)
    g(f"""
    s_barrier
    s_bitcmp0_b32 {s(S_J)}, 3
    s_cbranch_scc0 L_p2_v
    """)

    def stats(typ):
        for c in range(1, 6):
            g(f"v_pk_add_f32 {v(STP,2)}, {v(STP,2)}, {v(STP+2*c,2)}")
        mean_rstd(g, STP, STP + 1, KM, KR)
        g.nop(1)
        g(f"v_mul_f32 {v(KB)}, {v(KM)}, {v(KR)}")
        g(f"""
        ds_write_b32 {v(VTB)}, {v(KR)}
        ds_write_b32 {v(VTB)}, {v(KB)} offset:256
        """)
        for src, d0, d1 in ((KM, V_MEAN, STP + 2), (KR, V_R, STP + 3))[:2 - typ]:
            g(f"v_mov_b32 {v(d0)}, {v(src)}")
            g(f"v_mov_b32 {v(d1)}, {v(src)}")
            g.nop(2)
            g(f"v_permlane16_swap_b32 {v(d0)}, {v(d1)}")
            g.nop(1)
            g(f"v_mov_b32 {v(STP+4)}, {v(d0)}")
            g(f"v_mov_b32 {v(STP+5)}, {v(d1)}")
            g.nop(2)
            g(f"v_permlane32_swap_b32 {v(d0)}, {v(STP+4)}")
            g(f"v_permlane32_swap_b32 {v(d1)}, {v(STP+5)}")
            g.nop(1)
        mu_operand(g, V_MEAN, MU2[0])
        mu_operand(g, STP + 2, MU2[1])
        if typ == 0:
            for u, r in ((0, V_R), (1, STP + 3)):
                g(f"v_mul_f32 {v(SC2[u])}, {f2u(SCALE_LOG2E):#x}, {v(r)}")
                g(f"v_mul_f32 {v(SC2[u]+1)}, {f2u(SCALE_LOG2E):#x}, {v(r)}")
        else:
            g("s_waitcnt lgkmcnt(0)")
            for u in range(2):
                g(f"ds_read_b128 {v(RT+4*u,4)}, {v(VTB+2)} offset:{u*64}")
    KIN = g.opts.get("kin", 24)
    KA = g.opts.get("kafter", 4)
    KB4 = g.opts.get("kpoll", 0)
    for typ in range(2):
        if typ == 1:
            g("L_p2_v:")
        stats(typ)
        g("s_waitcnt lgkmcnt(0)")
        g(f"L_p2_go{typ}:")
        g.stamp('k0')
        items = []
        nk = K0N
        urgent = 24 - K0N
        slots = [q * g.opts.get("ku", 2) for q in range(urgent)]
        s0 = slots[-1] + 2 if slots else 0
        slots += [s0 + round((q + 0.5) * (72 - s0) / max(KIN - urgent, 1)) for q in range(KIN - urgent)]
        for ks in range(12):
            for c in range(3):
                n = ks * 3 + c
                b = V_BUF + (n % 16) * 4
                rd = [f"ds_read_b128 {v(b,4)}, {v(V_L16)} offset:{n*1024}"]
                cm = []
                for u in range(2):
                    d = ACC + 12 * u + 4 * c
                    if c == 0:
                        assert nk - 1 - (2 * ks + u) >= 0
                        cm.append(f"s_waitcnt vmcnt({nk - 1 - (2 * ks + u)})")
                    A, B = (v(b, 4), kreg(u, ks)) if typ == 0 else (kreg(u, ks), v(b, 4))
                    cm.append(f"v_mfma_f32_16x16x32_bf16 {v(d,4)}, {A}, {B}, {'0' if ks == 0 else v(d,4)}")
                    for _ in range(slots.count(2 * n + u)):
                        cm.append(KL[nk])
                        nk += 1
                items.append((rd, cm))
        pipelined(g, items, 8, group=1)
        g.stamp('p2gemm')
        PK = V_BUF
        for u in range(2):
            for c in range(3):
                d = ACC + 12 * u + 4 * c
                A, B = (v(CT + 2 * c, 2), v(MU2[u], 2)) if typ == 0 else (v(MU2[u], 2), v(CT + 2 * c, 2))
                mfma16(g, v(d, 4), A, B)
        g.nop(3)
        if typ == 0:
            for i in range(6):
                g(f"v_pk_mul_f32 {v(ACC+2*i,2)}, {v(ACC+2*i,2)}, {v(SC2[0],2)}")
            g(f"v_cmp_u_f32 vcc, {v(ACC)}, {v(ACC+12)}")
            g("s_cbranch_vccnz L_p2_redo")
            g("L_p2_q_on:")
            for i in range(6, 12):
                g(f"v_pk_mul_f32 {v(ACC+2*i,2)}, {v(ACC+2*i,2)}, {v(SC2[1],2)}")
            for u in range(2):
                for i in range(6):
                    g(f"v_cvt_pk_bf16_f32 {v(PK+8*u+i)}, {v(ACC+12*u+2*i)}, {v(ACC+12*u+2*i+1)}")
            g.nop(1)
            for u in range(2):
                mfma32(g, v(CS + 4 * u, 4), v(V_ONES, 4), v(PK + 8 * u, 4), "0")
            for u in range(2):
                mfma16(g, v(CS + 4 * u, 4), v(V_ONES, 2), v(PK + 8 * u + 4, 2))

            def st(sc):
                qstores(sc, [PK, PK + 8, PK + 4, PK + 12])
                g(f"""
                v_bfi_b32 {v(CS)}, {v(V_MASK)}, {v(CS)}, {s(S_TAG+2)}
                v_bfi_b32 {v(CS+4)}, {v(V_MASK)}, {v(CS+4)}, {s(S_TAG+2)}
                {'s_sleep 60' if False else ''}
                s_mov_b64 exec, {s(S_G0,2)}
                buffer_store_dword {v(CS)}, {v(V_I8)}, {s(SRD_WS,4)}, {s(S_O0)} offen{sc}
                buffer_store_dword {v(CS+4)}, {v(V_I8)}, {s(SRD_WS,4)}, {s(S_O0)} offen offset:512{sc}
                s_mov_b64 exec, -1
                """)
            if g.opts.get("dbgearly", 0) & 8:
                g.nop(8)
                g(f"""
                v_bfi_b32 {v(CS+1)}, {v(V_MASK)}, {v(CS)}, {s(S_TAG+2)}
                v_bfi_b32 {v(CS+5)}, {v(V_MASK)}, {v(CS+4)}, {s(S_TAG+2)}
                s_mov_b64 exec, {s(S_G0,2)}
                buffer_store_dword {v(CS+1)}, {v(V_I8)}, {s(SRD_WS,4)}, {s(S_O0)} offen sc1
                buffer_store_dword {v(CS+5)}, {v(V_I8)}, {s(SRD_WS,4)}, {s(S_O0)} offen offset:512 sc1
                s_mov_b64 exec, -1
                s_waitcnt vmcnt(0)
                s_sleep 100
                """)
            both_modes(g, st)
            g.stamp('p2st')
            for x in KL[nk:nk + KA]:
                g(x)
            g("s_branch L_p2_done")
        else:
            for c in range(3):
                for h in range(2):
                    g(f"v_pk_mul_f32 {v(ACC+4*c+2*h,2)}, {v(ACC+4*c+2*h,2)}, {v(RT+2*h,2)}")
            g(f"""
            v_pk_add_f32 {v(CS,2)}, {v(ACC,2)}, {v(ACC+12,2)}
            v_pk_add_f32 {v(CS+2,2)}, {v(ACC+2,2)}, {v(ACC+14,2)}
            v_pk_add_f32 {v(CS,2)}, {v(CS,2)}, {v(CS+2,2)}
            v_cmp_u_f32 vcc, {v(CS)}, {v(CS+1)}
            s_cbranch_vccnz L_p2_redo
            L_p2_v_on:
            """)
            for c in range(3):
                for h in range(2):
                    g(f"v_pk_mul_f32 {v(ACC+12+4*c+2*h,2)}, {v(ACC+12+4*c+2*h,2)}, {v(RT+4+2*h,2)}")
            for c in range(3):
                for u in range(2):
                    for h in range(2):
                        d = ACC + 12 * u + 4 * c + 2 * h
                        g(f"v_cvt_pk_bf16_f32 {v(PK+4*c+2*u+h)}, {v(d)}, {v(d+1)}")

            def st(sc):
                g(f"""
                buffer_store_dwordx4 {v(PK,4)}, {v(V_L16)}, {s(SRD_WS,4)}, {s(S_O1)} offen{sc}
                buffer_store_dwordx4 {v(PK+4,4)}, {v(V_L16)}, {s(SRD_WS,4)}, {s(S_O1)} offen offset:1024{sc}
                buffer_store_dwordx4 {v(PK+8,4)}, {v(V_L16)}, {s(SRD_WS,4)}, {s(S_O2)} offen offset:2048{sc}
                """)
            both_modes(g, st)
    g.stamp('p2st')
    for x in KL[nk:nk + KA]:
        g(x)
    g(f"s_waitcnt vmcnt({KA})")
    g("s_mov_b64 exec, 1")
    both_modes(g, lambda sc: g(f"buffer_store_dword {v(V_NONCE)}, {v(V_ZERO)}, {s(SRD_WS,4)}, {s(S_FL)} offen{sc}"))
    g("s_mov_b64 exec, -1")
    g("L_p2_done:")
    g.stamp('p2flag')
    for x in KL[nk + KA:nk + KA + KB4]:
        g(x)
    for sl in range(4):
        g(f"ds_read_b128 {v(RK+4*sl,4)}, {v(VTB+2)} offset:{sl*64}")
        g(f"ds_read_b128 {v(BK+4*sl,4)}, {v(VTB+2)} offset:{256+sl*64}")
    return nk + KA + KB4


S_Q, S_SQ, S_V0, S_V1 = 0, 1, 72, 75


def p3_setup(g):
    g(f"""
    s_and_b32 {s(S_T5)}, {s(S_J)}, 3
    s_bfe_u32 {s(S_T4)}, {s(S_J)}, 0x20002
    s_lshl_b32 {s(S_P3F)}, {s(S_G8)}, 7
    s_add_u32 {s(S_P3F)}, {s(S_P3F)}, {WS_F2}
    v_and_b32 {v(V_T2)}, 7, {v(V_L)}
    v_lshlrev_b32 {v(V_T2)}, 10, {v(V_T2)}
    s_lshl_b32 {s(S_T1)}, {s(S_RH2)}, 13
    s_lshl_b32 {s(S_T2)}, {s(S_T4)}, 2
    s_add_u32 {s(S_T1)}, {s(S_T1)}, {s(S_T2)}
    v_add_u32 {v(V_P3F)}, {s(S_T1)}, {v(V_T2)}
    """)


def p3_setup2(g):
    g(f"""
    v_and_b32 {v(V_T2)}, 1, {v(V_L)}
    v_lshlrev_b32 {v(V_T2)}, 10, {v(V_T2)}
    v_and_b32 {v(V_T3)}, 2, {v(V_L)}
    v_lshl_add_u32 {v(V_T2)}, {v(V_T3)}, 13, {v(V_T2)}
    s_lshl_b32 {s(S_T1)}, {s(S_T5)}, 11
    s_lshl_b32 {s(S_T2)}, {s(S_W)}, 2
    s_add_u32 {s(S_T1)}, {s(S_T1)}, {s(S_T2)}
    s_add_u32 {s(S_T1)}, {s(S_T1)}, 8192
    v_add_u32 {v(V_P3V)}, {s(S_T1)}, {v(V_T2)}
    s_lshl_b32 {s(11)}, {s(S_G8)}, 2
    s_add_u32 {s(13)}, {s(11)}, {s(S_T5)}
    s_add_u32 {s(11)}, {s(11)}, {s(S_RH2)}
    s_lshl_b32 {s(11)}, {s(11)}, 1
    s_add_u32 {s(11)}, {s(11)}, {s(S_T4)}
    s_mul_i32 {s(S_Q)}, {s(11)}, 24576
    s_mul_i32 {s(S_T2)}, {s(S_W)}, 3072
    s_add_u32 {s(S_Q)}, {s(S_Q)}, {s(S_T2)}
    s_add_u32 {s(S_Q)}, {s(S_Q)}, {WS_QP}
    s_lshl_b32 {s(S_SQ)}, {s(11)}, 10
    s_add_u32 {s(S_SQ)}, {s(S_SQ)}, {WS_SQ}
    s_mul_i32 {s(S_V1)}, {s(13)}, 49152
    s_mul_i32 {s(S_T2)}, {s(S_W)}, 12288
    s_add_u32 {s(S_V1)}, {s(S_V1)}, {s(S_T2)}
    s_add_u32 {s(S_V1)}, {s(S_V1)}, {WS_VP}
    s_mul_i32 {s(S_T2)}, {s(S_RH2)}, 3072
    s_add_u32 {s(S_V0)}, {s(S_V1)}, {s(S_T2)}
    s_sub_u32 {s(S_V1)}, {s(S_V1)}, {s(S_T2)}
    s_add_u32 {s(S_V1)}, {s(S_V1)}, 6144
    s_add_u32 {s(S_Q2)}, {s(S_Q)}, 12288
    v_add_u32 {v(V_AD)}, {L_WVO}, {v(V_L16)}
    """)
    for q in range(3):
        kpos(g, q, 1024, L_WVO - q * 1024)
        g(f"s_mov_b32 {s(S_QM[q])}, m0")
    g(f"""
    v_bfe_u32 {v(V_T2)}, {v(V_I)}, 1, 2
    v_xor_b32 {v(V_T2)}, {v(V_T2)}, {v(V_G)}
    v_lshl_add_u32 {v(V_T2)}, {v(V_I)}, 2, {v(V_T2)}
    v_lshlrev_b32 {v(V_T2)}, 4, {v(V_T2)}
    s_lshl_b32 {s(S_T1)}, {s(S_W)}, 11
    v_add_u32 {v(V_AD+1)}, {s(S_T1)}, {v(V_T2)}
    s_lshl_b32 {s(S_T1)}, {s(S_W)}, 8
    s_add_u32 {s(S_T1)}, {s(S_T1)}, {L_ML}
    v_lshlrev_b32 {v(V_T3)}, 3, {v(V_I)}
    v_add_u32 {v(V_AD+2)}, {s(S_T1)}, {v(V_T3)}
    s_and_b32 {s(13)}, {s(S_W)}, 1
    s_lshl_b32 {s(S_T1)}, {s(13)}, 7
    s_add_u32 {s(S_T1)}, {s(S_T1)}, {L_ML}
    v_lshrrev_b32 {v(V_T4)}, 2, {v(V_L)}
    v_lshlrev_b32 {v(V_T3)}, 3, {v(V_T4)}
    v_add_u32 {v(V_AD+3)}, {s(S_T1)}, {v(V_T3)}
    v_bfe_u32 {v(V_T3)}, {v(V_L)}, 3, 2
    v_xor_b32 {v(V_T3)}, {v(V_T3)}, {v(V_L)}
    v_lshlrev_b32 {v(V_T3)}, 4, {v(V_T3)}
    s_lshl_b32 {s(S_T1)}, {s(S_W)}, 13
    v_add_u32 {v(213)}, {s(S_T1)}, {v(V_T3)}
    v_and_b32 {v(V_T3)}, 3, {v(V_L)}
    v_lshlrev_b32 {v(V_T2)}, 4, {v(V_T4)}
    v_lshl_add_u32 {v(V_RSA)}, {v(V_T3)}, 8, {v(V_T2)}
    s_lshl_b32 {s(S_U1)}, {s(S_T4)}, 2
    s_add_u32 {s(S_U1)}, {s(S_U1)}, {s(S_RH2)}
    s_add_u32 {s(S_U1)}, {s(S_U1)}, {s(13)}
    s_lshl_b32 {s(S_U1)}, {s(S_U1)}, 4
    s_lshl_b32 {s(S_T2)}, {s(S_G8)}, 8
    s_add_u32 {s(S_U1)}, {s(S_U1)}, {s(S_T2)}
    s_mul_i32 {s(S_U1)}, {s(S_U1)}, 768
    s_mul_i32 {s(S_T2)}, {s(S_T5)}, 192
    s_add_u32 {s(S_U1)}, {s(S_U1)}, {s(S_T2)}
    s_lshr_b32 {s(S_T2)}, {s(S_W)}, 1
    s_lshl_b32 {s(S_T2)}, {s(S_T2)}, 6
    s_add_u32 {s(S_U0)}, {s(S_T2)}, {s(S_U1)}
    v_mul_u32_u24 {v(V_T4)}, 768, {v(V_T4)}
    v_lshl_add_u32 {v(A2[0])}, {v(V_T3)}, 4, {v(V_T4)}
    """)


def kcheck(g):
    for n in range(24):
        mfma32(g, v(V_ACC + 32 + 4 * (n & 1), 4), v(V_ONES, 4), kreg(2 + n // 12, n % 12), "0" if n < 2 else None)


def wbl2(g):
    sk = g.label("nowb")
    g(f"""
    s_lshl_b32 {s(S_T0)}, {s(S_J)}, 2
    s_add_u32 {s(S_T0)}, {s(S_T0)}, {s(S_W)}
    s_and_b32 {s(S_T0)}, {s(S_T0)}, {g.opts.get("wbm", 127)}
    s_cmp_lg_u32 {s(S_T0)}, 3
    s_cbranch_scc1 {sk}
    buffer_wbl2 sc1
    {sk}:
    """)


def p3(g, nk):
    SA = V_ACC
    LS = V_ACC + 32
    MX = V_ACC + 40
    SQ = V_ACC + 42
    OA = V_BUF
    QB = V_BUF + 32
    PF = V_XF
    BS = OA
    V_RW, V_MW, V_MR, V_RR, V_OO = V_AD + 1, V_AD + 2, V_AD + 3, 213, A2[0]
    g(f"""
    s_mov_b32 {s(S_SPIN)}, {SPIN_LIMIT}
    L_e3:
    """)
    for u in range(2):
        g(f"buffer_load_dwordx2 {v(SG+4+2*u,2)}, {v(V_L8)}, {s(SRD_WS,4)}, {s(S_SQ)} offen offset:{u*512} sc1")
    g("s_waitcnt vmcnt(0)")
    for q in range(4):
        g(f"v_xor_b32 {v(SG+4+q)}, {s(S_TAG+2)}, {v(SG+4+q)}")
    g(f"""
    v_or3_b32 {v(V_T0)}, {v(SG+4)}, {v(SG+5)}, {v(SG+6)}
    v_or_b32 {v(V_T0)}, {v(V_T0)}, {v(SG+7)}
    v_and_b32 {v(V_T0)}, 0xff, {v(V_T0)}
    v_cmp_ne_u32 vcc, 0, {v(V_T0)}
    s_cbranch_vccz L_e3ok
    s_sub_u32 {s(S_SPIN)}, {s(S_SPIN)}, 1
    s_cbranch_scc0 L_e3
    L_e3ok:
    """)
    g.stamp('e3ok')

    def qdma(u, so):
        for q in range(3):
            g(f"s_add_u32 m0, {s(S_QM[q])}, {u*12288}")
            g("s_nop 0")
            g(f"buffer_load_dwordx4 {v(V_L16)}, {s(SRD_WS,4)}, {s(so)} offen offset:{q*1024} sc1 lds")
    qdma(0, S_Q)
    q1 = capture(g, lambda: qdma(1, S_Q2))
    early = ["\n".join(q1[3*q:3*q+3]) for q in range(3)] + [f"buffer_load_dword {v(V_T7)}, {v(V_P3V)}, {s(SRD_WS,4)}, {s(S_P3F)} offen sc1"]
    vl = []
    for pr, so in ((0, S_V0), (1, S_V1)):
        for c in range(6):
            vo, off = (V_L16, c * 1024) if c < 4 else (V_L16H, (c - 4) * 1024)
            vl.append(f"buffer_load_dwordx4 {a(A_V+(pr*6+c)*4,4)}, {v(vo)}, {s(SRD_WS,4)}, {s(so)} offen offset:{off} sc1")
    late = KL[nk:48] + vl + KL[48:]
    nkl = 48 - min(nk, 48)
    late = early + late
    PRE = g.opts.get("p3pre", 4)
    for x in late[:PRE]:
        g(x)
    g("s_waitcnt lgkmcnt(0)")
    g.stamp('q1')
    for u in range(2):
        g(f"v_add_f32 {v(SQ+u)}, {v(SG+4+2*u)}, {v(SG+5+2*u)}")
    for u in range(2):
        g(f"v_mov_b32 {v(SG+u)}, {v(SQ+u)}")
    g.nop(1)
    for u in range(2):
        g(f"v_permlane16_swap_b32 {v(SQ+u)}, {v(SG+u)}")
    for u in range(2):
        g(f"v_add_f32 {v(SQ+u)}, {v(SQ+u)}, {v(SG+u)}")
    for u in range(2):
        g(f"v_mov_b32 {v(SG+u)}, {v(SQ+u)}")
    g.nop(1)
    for u in range(2):
        g(f"v_permlane32_swap_b32 {v(SQ+u)}, {v(SG+u)}")
    for u in range(2):
        g(f"v_add_f32 {v(SG+2+2*u)}, {v(SQ+u)}, {v(SG+u)}")
        g(f"v_add_f32 {v(SG+3+2*u)}, {v(SQ+u)}, {v(SG+u)}")
    for u in range(2):
        for i in range(8):
            g(f"v_pk_mul_f32 {v(BS+16*u+2*i,2)}, {v(BK+2*i,2)}, {v(SG+2+2*u,2)}")
    g.stamp('q2')
    g(f"s_waitcnt vmcnt({PRE})")
    g.stamp('q3')
    g("s_barrier")
    g.stamp('qland')

    def softmax_lines(u, pk):
        d = SA + u * 16
        TMP = SG + 4 * u
        L = []
        if pk:
            for i in range(8):
                L.append(f"v_pk_fma_f32 {v(d+2*i,2)}, {v(d+2*i,2)}, {v(RK+2*i,2)}, {v(BS+16*u+2*i,2)} neg_lo:[0,0,1] neg_hi:[0,0,1]")
        else:
            for i in range(16):
                L.append(f"v_fma_f32 {v(d+i)}, {v(d+i)}, {v(RK+i)}, -{v(BS+16*u+i)}")
        nf = len(L)
        L.append(f"v_max3_f32 {v(MX+u)}, {v(d)}, {v(d+1)}, {v(d+2)}")
        for i in range(3, 15, 2):
            L.append(f"v_max3_f32 {v(MX+u)}, {v(MX+u)}, {v(d+i)}, {v(d+i+1)}")
        L.append(f"v_max_f32 {v(MX+u)}, {v(MX+u)}, {v(d+15)}")
        L += capture(g, lambda: xlane_sum(g, MX + u, TMP + 2, "v_max_f32"))
        if pk:
            L.append(f"v_mov_b32 {v(TMP)}, {v(MX+u)}")
            L.append(f"v_mov_b32 {v(TMP+1)}, {v(MX+u)}")
            for i in range(8):
                L.append(f"v_pk_add_f32 {v(d+2*i,2)}, {v(d+2*i,2)}, {v(TMP,2)} neg_lo:[0,1] neg_hi:[0,1]")
        else:
            for i in range(16):
                L.append(f"v_sub_f32 {v(d+i)}, {v(d+i)}, {v(MX+u)}")
        for i in range(16):
            L.append(f"v_exp_f32 {v(d+i)}, {v(d+i)}")
        return L, nf
    OV = g.opts.get("ov", 0)
    sm0, _ = softmax_lines(0, not OV)
    items = []
    rest = list(late[PRE:])
    issued = PRE
    nk2 = nkl + 4 - PRE
    KD = g.opts.get("kd", 2)
    L0 = max(g.opts.get("l0", 4), nk2 * KD + 2)
    LSPAN = g.opts.get("lspan", 64)
    lpos = [q * KD for q in range(nk2)] + [L0 + int(q * (LSPAN - L0) / 14) for q in range(14)]
    vchk = capture(g, lambda: (g(f"""
    s_waitcnt vmcnt(@V@)
    v_cmp_ne_u32 vcc, {s(S_NONCE)}, {v(V_T7)}
    s_cbranch_vccz L_v_ok
    """), poll(g, V_P3V, s(S_P3F), s(S_NONCE), "pv"), g("L_v_ok:")))
    pos = 0
    for ph, (slots, u) in enumerate((((0, 1), 0), ((0, 1), 1), ((2, 3), 0), ((2, 3), 1))):
        for ks in range(12):
            b = QB + ((ph * 12 + ks) % 8) * 4
            rd = [f"ds_read_b128 {v(b,4)}, {v(V_AD)} offset:{u*12288+ks*1024}"]
            cm = []
            for sl in slots:
                kidx = KORD.index((sl, ks))
                if kidx >= nk and u == 0:
                    assert issued - (4 + kidx - nk) - 1 >= 0
                    cm.append(f"s_waitcnt vmcnt({issued - (4 + kidx - nk) - 1})")
                d = SA + u * 16 + sl * 4
                cm.append(f"v_mfma_f32_16x16x32_bf16 {v(d,4)}, {kreg(sl,ks)}, {v(b,4)}, {'0' if ks == 0 else v(d,4)}")
                if pos == L0:
                    cm += [x.replace("@V@", str(issued - 4)) for x in vchk]
                for _ in range(lpos.count(pos)):
                    cm.append(rest.pop(0))
                    issued += 1
                pos += 1
            items.append((rd, cm, [], issued))
    assert not rest
    QD = g.opts.get('qd', 6)
    assert items[12 - QD - 1][3] >= 3
    items[12][2].extend([f"s_waitcnt vmcnt({items[12 - QD - 1][3] - 3})", "s_barrier"])
    if g.opts.get("wb", 2) == 1:
        items[12][2].extend(capture(g, lambda: wbl2(g)))
    pipelined(g, items, QD)
    g(f"""
    L_k_chk:
    v_cmp_u_f32 {s(S_M,2)}, {v(SA+8)}, {v(SA+9)}
    v_cmp_u_f32 s[16:17], {v(SA+10)}, {v(SA+11)}
    v_cmp_u_f32 s[14:15], {v(SA+12)}, {v(SA+13)}
    v_cmp_u_f32 vcc, {v(SA+14)}, {v(SA+15)}
    s_or_b64 {s(S_M,2)}, {s(S_M,2)}, s[16:17]
    s_or_b64 vcc, vcc, s[14:15]
    s_or_b64 {s(S_M,2)}, vcc, {s(S_M,2)}
    v_cmp_u_f32 vcc, {v(SA+16)}, {v(SA+16)}
    s_or_b64 vcc, vcc, {s(S_M,2)}
    s_cbranch_scc1 L_k_redo
    L_k_ok:
    """)
    for x in sm0:
        g(x)
    g.stamp('sdone')

    def cvts(u, odd):
        L = []
        for sl in range(4):
            for h in range(2):
                dst = PF + u * 8 + (sl >> 1) * 4 + ((sl & 1) ^ odd) * 2 + h
                src = SA + u * 16 + sl * 4 + 2 * h
                L.append(f"v_cvt_pk_bf16_f32 {v(dst)}, {v(src)}, {v(src+1)}")
        return L

    def cvt_branch(u):
        g.nop(1)
        for x in cvts(u, 0):
            g(x)

    def pv_lines(u):
        L = []
        for pr in range(2):
            p = v(PF + u * 8 + pr * 4, 4)
            for c in range(6):
                d = OA + u * 24 + c * 4
                L.append(f"v_mfma_f32_16x16x32_bf16 {v(d,4)}, {a(A_V+(pr*6+c)*4,4)}, {p}, {'0' if pr == 0 else v(d,4)}")
            L.append(f"v_mfma_f32_16x16x32_bf16 {v(LS+4*u,4)}, {v(V_ONES,4)}, {p}, {'0' if pr == 0 else v(LS+4*u,4)}")
        return L
    cvt_branch(0)
    sm1, _ = softmax_lines(1, True)
    ex = sm1[-16:]
    for x in sm1[:-16]:
        g(x)
    g("s_waitcnt vmcnt(0)")
    if g.opts.get("wb", 2) == 2:
        wbl2(g)
    for x in pv_lines(0):
        g(x)
        if ex:
            g(ex.pop(0))
    for x in ex:
        g(x)
    g.stamp('smax')
    cvt_branch(1)
    OUT = V_ACC
    unp = []
    for rnd in range(2):
        for i in range(8):
            src = V_RES + 4 * rnd + (i >> 1)
            unp.append(f"v_and_b32 {v(OUT+8*rnd+i)}, 0xffff0000, {v(src)}" if i & 1 else
                       f"v_lshlrev_b32 {v(OUT+8*rnd+i)}, 16, {v(src)}")
    g(f"v_mov_b32 {v(V_T4)}, {v(MX)}")
    g(f"v_mov_b32 {v(V_T5)}, {v(LS)}")
    w0 = [f"ds_write_b128 {v(V_RW)}, {v(OA+(2*m+h)*4,4)} offset:{2*m*8192+h*1024}" for m in range(3) for h in range(2)]
    w0.append(f"ds_write_b64 {v(V_MW)}, {v(V_T4,2)}")
    for n, x in enumerate(pv_lines(1)):
        g(x)
        if n % 2 == 1:
            g(w0.pop(0))
        else:
            g(unp.pop(0))
    g.stamp('pvdone')
    for x in unp[:3]:
        g(x)
    unp = unp[3:]
    for m in range(3):
        for h in range(2):
            g(f"ds_write_b128 {v(V_RW)}, {v(OA+24+(2*m+h)*4,4)} offset:{(2*m+1)*8192+h*1024}")
            g(unp.pop(0))
    g(f"""
    v_mov_b32 {v(V_T6)}, {v(MX+1)}
    v_mov_b32 {v(V_T7)}, {v(LS+4)}
    ds_write_b64 {v(V_MW)}, {v(V_T6,2)} offset:128
    s_waitcnt lgkmcnt(0)
    s_barrier
    """)
    g.stamp('redbar')
    ML = V_ACC + 16
    FW = V_ACC + 24
    RD = V_BUF
    for w in range(4):
        g(f"ds_read_b64 {v(ML+2*w,2)}, {v(V_MR)} offset:{w*256}")
    for w in range(4):
        for h in range(2):
            g(f"ds_read_b128 {v(RD+w*8+h*4,4)}, {v(V_RR)} offset:{w*2048+h*1024}")
    g(f"""
    s_waitcnt lgkmcnt(8)
    v_max3_f32 {v(V_T3)}, {v(ML)}, {v(ML+2)}, {v(ML+4)}
    v_max_f32 {v(V_T3)}, {v(V_T3)}, {v(ML+6)}
    """)
    for w in range(4):
        g(f"v_sub_f32 {v(FW+2*w)}, {v(ML+2*w)}, {v(V_T3)}")
    for w in range(4):
        g(f"v_exp_f32 {v(FW+2*w)}, {v(FW+2*w)}")
    g(f"""
    s_waitcnt lgkmcnt(2)
    s_cmp_ge_u32 {s(S_W)}, 2
    s_cbranch_scc1 L_nord2
    """)
    for w in range(4):
        for h in range(2):
            g(f"ds_read_b128 {v(RD+32+w*8+h*4,4)}, {v(V_RR)} offset:{32768+w*2048+h*1024}")
    g(f"""
    s_waitcnt lgkmcnt(8)
    s_branch L_rd1
    L_nord2:
    s_waitcnt lgkmcnt(0)
    L_rd1:
    v_mul_f32 {v(V_T3)}, {v(FW)}, {v(ML+1)}
    v_fmac_f32 {v(V_T3)}, {v(FW+2)}, {v(ML+3)}
    v_fmac_f32 {v(V_T3)}, {v(FW+4)}, {v(ML+5)}
    v_fmac_f32 {v(V_T3)}, {v(FW+6)}, {v(ML+7)}
    v_rcp_f32 {v(V_T3)}, {v(V_T3)}
    s_nop 0
    """)
    for w in range(4):
        g(f"v_mul_f32 {v(FW+2*w)}, {v(FW+2*w)}, {v(V_T3)}")
        g(f"v_mov_b32 {v(FW+2*w+1)}, {v(FW+2*w)}")
    osc = " sc1" if g.opts.get("outsc1", 0) else (" nt" if g.opts.get("outnt", 0) else "")
    for rnd in range(2):
        if rnd == 1:
            g(f"""
            s_cmp_ge_u32 {s(S_W)}, 2
            s_cbranch_scc1 L_fin
            """)
        for w in range(4):
            if rnd == 1:
                g(f"s_waitcnt lgkmcnt({6-2*w})")
            for i in range(4):
                g(f"v_pk_fma_f32 {v(OUT+8*rnd+2*i,2)}, {v(RD+32*rnd+w*8+2*i,2)}, {v(FW+2*w,2)}, {v(OUT+8*rnd+2*i,2)}")
        PK = V_ACC + 32 + 4 * rnd
        if rnd == 0 and g.opts.get("perturb", 0):
            g(f"""
            s_or_b32 {s(S_T0)}, s2, {s(S_W)}
            s_cmp_lg_u32 {s(S_T0)}, 0
            s_cbranch_scc1 L_nopert
            s_mov_b64 exec, 1
            v_add_f32 {v(OUT)}, {f2u(g.opts["perturb"]/1000.):#x}, {v(OUT)}
            s_mov_b64 exec, -1
            L_nopert:
            """)
        for i in range(4):
            g(f"v_cvt_pk_bf16_f32 {v(PK+i)}, {v(OUT+8*rnd+2*i)}, {v(OUT+8*rnd+2*i+1)}")
        if rnd == 0:
            g(f"buffer_store_dwordx4 {v(PK,4)}, {v(V_OO)}, {s(SRD_OUT,4)}, {s(S_U0)} offen{osc}")
        else:
            g(f"buffer_store_dwordx4 {v(PK,4)}, {v(V_OO)}, {s(SRD_OUT,4)}, {s(S_U1)} offen offset:128{osc}")
    g("L_fin:")


def redo_blocks(g):
    g(f"""
    L_p2_redo:
    s_sub_u32 {s(S_RETRY)}, {s(S_RETRY)}, 1
    s_cbranch_scc1 L_p2_give
    s_waitcnt vmcnt(0)
    """)
    g.stamp('redo')
    for x in KL[:24]:
        g(x)
    g(f"""
    s_waitcnt vmcnt(0)
    s_bitcmp0_b32 {s(S_J)}, 3
    s_cbranch_scc1 L_p2_go0
    s_branch L_p2_go1
    L_p2_give:
    s_mov_b32 {s(S_RETRY)}, 0
    s_bitcmp0_b32 {s(S_J)}, 3
    s_cbranch_scc1 L_p2_q_on
    s_branch L_p2_v_on
    L_k_redo:
    s_sub_u32 {s(S_RETRY)}, {s(S_RETRY)}, 1
    s_cbranch_scc1 L_k_ok
    """)
    g.stamp('redo')
    g("s_waitcnt vmcnt(0)")
    for x in KL[24:48]:
        g(x)
    g(f"""
    s_mul_i32 {s(S_T3)}, {s(S_W)}, 3072
    s_sub_u32 {s(S_T3)}, {s(S_Q)}, {s(S_T3)}
    s_mul_i32 {s(S_T0)}, {s(S_W)}, 3
    s_sub_u32 {s(S_RHO)}, {s(S_RHO)}, {s(S_T0)}
    s_mov_b32 {s(S_SPIN)}, 12
    L_q_rw:
    """)
    kpos(g, 0, 1024, L_WVO)
    g(f"""
    s_add_u32 {s(S_T1)}, {s(S_T3)}, 12288
    buffer_load_dwordx4 {v(V_L16)}, {s(SRD_WS,4)}, {s(S_T3)} offen sc1 lds
    s_add_u32 m0, m0, 12288
    s_add_u32 {s(S_T3)}, {s(S_T3)}, 1024
    buffer_load_dwordx4 {v(V_L16)}, {s(SRD_WS,4)}, {s(S_T1)} offen sc1 lds
    s_add_u32 {s(S_RHO)}, {s(S_RHO)}, 1
    s_sub_u32 {s(S_SPIN)}, {s(S_SPIN)}, 1
    s_cmp_lg_u32 {s(S_SPIN)}, 0
    s_cbranch_scc1 L_q_rw
    s_sub_u32 {s(S_T0)}, {s(S_T0)}, 12
    s_add_u32 {s(S_RHO)}, {s(S_RHO)}, {s(S_T0)}
    s_waitcnt vmcnt(0)
    """)
    items = []
    for u in range(2):
        for ks in range(12):
            b = V_BUF + 32 + ((u * 12 + ks) % 8) * 4
            cm = []
            for sl in range(4):
                d = V_ACC + u * 16 + sl * 4
                cm.append(f"v_mfma_f32_16x16x32_bf16 {v(d,4)}, {kreg(sl,ks)}, {v(b,4)}, {'0' if ks == 0 else v(d,4)}")
            items.append(([f"ds_read_b128 {v(b,4)}, {v(V_AD)} offset:{u*12288+ks*1024}"], cm))
    pipelined(g, items, 6)
    g.nop(8)
    g("s_branch L_k_chk")


def epilogue(g):
    g(f"""
    s_or_b32 {s(S_T0)}, s2, {s(S_W)}
    s_cmp_lg_u32 {s(S_T0)}, 0
    s_cbranch_scc1 L_nononce
    s_mov_b64 exec, 1
    buffer_store_dword {v(V_NONCE)}, {v(V_ZERO)}, {s(SRD_WS,4)}, 0 offen
    s_mov_b64 exec, -1
    L_nononce:
    """)
    if g.stamps:
        g(f"""
        s_cmp_lg_u32 {s(S_W)}, 0
        s_cbranch_scc1 L_end
        s_waitcnt vmcnt(0)
        s_memtime s[98:99]
        s_memrealtime s[100:101]
        s_waitcnt lgkmcnt(0)
        s_lshl_b32 {s(S_T0)}, s2, 8
        s_add_u32 {s(S_T0)}, {s(S_T0)}, {WS_STAMP}
        v_mov_b32 {v(V_T1)}, 0
        s_mov_b64 exec, 1
        """)
        for i in range(20):
            g(f"v_mov_b32 {v(V_T0)}, s{S_STAMP+i}")
            g(f"buffer_store_dword {v(V_T0)}, {v(V_T1)}, {s(SRD_WS,4)}, {s(S_T0)} offen offset:{4*i}")
            g("s_nop 1")
    if g.opts.get("dbg", 0):
        g(f"""
        s_cmp_lg_u32 {s(S_W)}, 0
        s_cbranch_scc1 L_end
        s_cmp_ge_u32 {s(S_CS)}, 6
        s_cbranch_scc1 L_end
        s_waitcnt vmcnt(0)
        s_memrealtime s[98:99]
        s_waitcnt lgkmcnt(0)
        s_not_b32 s84, s84
        v_mov_b32 {v(V_T1)}, 0
        s_mov_b64 exec, 1
        """)
        for i in range(8):
            g(f"v_mov_b32 {v(V_T0)}, s{84+2*i}")
            g(f"global_atomic_umax {v(V_T1)}, {v(V_T0)}, s[82:83] offset:{4*i}")
            g("s_nop 1")
    g("L_end:")
    g("s_endpgm")


def build(stamps=False, opts=None):
    g = G(stamps, opts)
    prologue(g)
    p0_issue(g)
    g("s_branch L_main")
    products(g)
    g("L_main:")
    p0_main(g)
    p1(g)
    nk = p2(g)
    p3(g, nk)
    epilogue(g)
    redo_blocks(g)
    products_body(g)
    g("L_code_end:")
    hdr = f"""; TimeSformer divided space-time attention block, one persistent launch (256 workgroups, one per CU).
{('; wsstamp:%d' % WS_STAMP + chr(10)) if stamps else ''}; @launch grid=(256,1,1) block=(256,1,1) lds={LDS_SIZE}
.amdgcn_target "amdgcn-amd-amdhsa--gfx950"
.text
.globl {KNAME}
.p2align 8
.type {KNAME},@function
{KNAME}:
"""
    ftr = f"""
.section .rodata,"a"
.p2align 6
.amdhsa_kernel {KNAME}
  .amdhsa_next_free_vgpr 512
  .amdhsa_next_free_sgpr 102
  .amdhsa_accum_offset 256
  .amdhsa_group_segment_fixed_size 0
  .amdhsa_kernarg_size 64
  .amdhsa_user_sgpr_count 2
  .amdhsa_user_sgpr_kernarg_segment_ptr 1
  .amdhsa_system_sgpr_workgroup_id_x 1
.end_amdhsa_kernel
"""
    return hdr + "\n".join(g.L) + ftr


if __name__ == "__main__":
    out = sys.argv[1]
    stamps = None
    opts = {}
    for x in sys.argv[2:]:
        if x.startswith("--stamps="):
            stamps = ["start"] + x.split("=")[1].split(",")
            assert len(stamps) <= 7
        elif "=" in x:
            k, val = x.split("=")
            opts[k] = int(val)
    open(out, "w").write(build(stamps, opts))
```

```python
import sys, math

KNAME = "standalone__video_timesformer__vision_kernel"

WS_NONCE = 0
WS_FXCC = 0x1000
WS_F2 = 0x13000
WS_SP = 0x1B000
WS_STX = 0x7B000
WS_WVOT = 0xB3000
WS_WS2 = 0xFB000
WS_X1 = 0x18B000
WS_QP = 0x30B000
WS_VP = 0x48B000
WS_CSP = 0x60B000
WS_FP = 0x617000
FP_REP = 96 * 128
WS_SQ = WS_FP + 8 * FP_REP
WS_STAMP = WS_SQ + 0x10000
WS_SIZE = WS_STAMP + 256 * 256

L_W = 0
L_WVO = 98304
L_T = 81920
L_CT0 = 147456
L_CT1 = L_CT0 + 1024
L_CT2 = L_CT1 + 512
L_ML = L_CT2 + 1024
L_ST = L_ML + 1024
L_SG = L_ST + 3072
LDS_SIZE = L_SG + 512

SPIN_LIMIT = 40000
SCALE_LOG2E = (384 ** -0.5) * math.log2(math.e)


def f2u(x):
    import struct
    return struct.unpack("<I", struct.pack("<f", x))[0]


DBG_STAMPS = ['xarr0', 'chunk0', 'sstored', 'x1st', 'x1ok', 'e3ok']


class G:
    def __init__(self, stamps=False, opts=None):
        self.L = []
        self.stamps = stamps
        self.nstamp = 0
        self.uid = 0
        self.opts = opts or {}

    def __call__(self, s):
        for line in s.split("\n"):
            line = line.strip()
            if line:
                self.L.append("    " + line if not line.endswith(":") else line)

    def label(self, p):
        self.uid += 1
        return f"L_{p}_{self.uid}"

    def nop(self, n):
        while n > 0:
            k = min(n, 16)
            self(f"s_nop {k-1}")
            n -= k

    def stamp(self, name, wait=True):
        if self.opts.get("dbg", 0) and name in DBG_STAMPS:
            k = 86 + 2 * DBG_STAMPS.index(name)
            self(f"s_memrealtime s[{k}:{k+1}]")
        if self.stamps and name in self.stamps:
            idx = 1 + self.stamps.index(name)
            self(f"s_memtime s[{S_STAMP+2*idx}:{S_STAMP+2*idx+1}]")
            if wait:
                self("s_waitcnt lgkmcnt(0)")


def v(a, n=1):
    return f"v{a}" if n == 1 else f"v[{a}:{a+n-1}]"


def a(x, n=1):
    return f"a{x}" if n == 1 else f"a[{x}:{x+n-1}]"


def s(x, n=1):
    return f"s{x}" if n == 1 else f"s[{x}:{x+n-1}]"


S_X, S_WQT, S_WOT, S_WQS, S_WOS, S_OUT, S_DBG, S_WS = 4, 6, 8, 10, 12, 14, 16, 18
S_G8, S_J, S_W, S_NONCE, S_ME = 20, 21, 22, 23, 24
S_RB = 25
S_T0, S_T1, S_T2, S_T3 = 27, 28, 29, 30
S_SPIN = 31
SRD_WS = 32
SRD_A = 36
SRD_B = 40
SRD_OUT = 44
S_VALID = 48
S_G0 = 50
S_TAG = 52
S_M = 56
S_ONES = 58
S_RQ = 59
S_CS = 60
S_SLOW = 61
S_F1 = 62
S_F2 = 63
S_T4, S_T5, S_T6, S_T7 = 64, 65, 66, 67
S_DIAG = 100
S_STAMP = 82

V_TID, V_L, V_I, V_G = 0, 1, 2, 3
V_T0, V_T1, V_T2, V_T3, V_T4, V_T5, V_T6, V_T7 = 4, 5, 6, 7, 8, 9, 10, 11
V_ONES = 12
V_XF = 16
V_MU = 64
V_R = 66
V_MEAN = 67
V_L16 = 68
V_MASK = 69
V_S1A, V_S1B, V_S2A, V_S2B = 70, 71, 72, 73
V_AD = 74
V_BUF = 80
V_ACC = 144
V_MISC = 192
V_ZERO, V_NONCE, V_PA, V_PB = 228, 229, 230, 231
V_PS = 246


def row_stats_dots(g, lo, hi):
    for r in range(lo, hi):
        g(f"v_dot2c_f32_bf16 {v(V_S1A + (r & 1))}, {s(S_ONES)}, {v(V_XF + r)}")
        g(f"v_dot2c_f32_bf16 {v(V_S2A + (r & 1))}, {v(V_XF + r)}, {v(V_XF + r)}")


def xlane_sum(g, r, t, op="v_add_f32"):
    g(f"v_mov_b32 {v(t)}, {v(r)}")
    g.nop(2)
    g(f"v_permlane16_swap_b32 {v(r)}, {v(t)}")
    g.nop(1)
    g(f"{op} {v(r)}, {v(r)}, {v(t)}")
    g(f"v_mov_b32 {v(t)}, {v(r)}")
    g.nop(2)
    g(f"v_permlane32_swap_b32 {v(r)}, {v(t)}")
    g.nop(1)
    g(f"{op} {v(r)}, {v(r)}, {v(t)}")


def row_stats_finish(g):
    g.nop(3)
    g(f"v_add_f32 {v(V_S1A)}, {v(V_S1A)}, {v(V_S1B)}")
    g(f"v_add_f32 {v(V_S2A)}, {v(V_S2A)}, {v(V_S2B)}")
    xlane_sum(g, V_S1A, V_T0)
    xlane_sum(g, V_S2A, V_T1)
    g(f"""
    v_mul_f32 {v(V_MEAN)}, {f2u(1/384.):#x}, {v(V_S1A)}
    v_mul_f32 {v(V_T0)}, {f2u(1/384.):#x}, {v(V_S2A)}
    v_fma_f32 {v(V_T0)}, -{v(V_MEAN)}, {v(V_MEAN)}, {v(V_T0)}
    v_max_f32 {v(V_T0)}, 0, {v(V_T0)}
    v_add_f32 {v(V_T0)}, {f2u(1e-5):#x}, {v(V_T0)}
    v_rsq_f32 {v(V_R)}, {v(V_T0)}
    v_cvt_pk_bf16_f32 {v(V_T1)}, -{v(V_MEAN)}, -{v(V_MEAN)}
    v_lshlrev_b32 {v(V_T1)}, 16, {v(V_T1)}
    v_sub_f32 {v(V_T1)}, -{v(V_MEAN)}, {v(V_T1)}
    v_cvt_pk_bf16_f32 {v(V_T1)}, -{v(V_MEAN)}, {v(V_T1)}
    v_cndmask_b32 {v(V_MU)}, 0, {v(V_T1)}, {s(S_G0,2)}
    v_cndmask_b32 {v(V_MU+1)}, 0, {v(V_T1)}, {s(S_G0,2)}
    """)


def mean_rstd(g, s1, s2, mean, rstd):
    g(f"""
    v_mul_f32 {v(mean)}, {f2u(1/384.):#x}, {v(s1)}
    v_mul_f32 {v(rstd)}, {f2u(1/384.):#x}, {v(s2)}
    v_fma_f32 {v(rstd)}, -{v(mean)}, {v(mean)}, {v(rstd)}
    v_max_f32 {v(rstd)}, 0, {v(rstd)}
    v_add_f32 {v(rstd)}, {f2u(1e-5):#x}, {v(rstd)}
    v_rsq_f32 {v(rstd)}, {v(rstd)}
    """)


def mu_operand(g, mean, dst=V_MU):
    g(f"""
    v_cvt_pk_bf16_f32 {v(V_T1)}, -{v(mean)}, -{v(mean)}
    v_lshlrev_b32 {v(V_T1)}, 16, {v(V_T1)}
    v_sub_f32 {v(V_T1)}, -{v(mean)}, {v(V_T1)}
    v_cvt_pk_bf16_f32 {v(V_T1)}, -{v(mean)}, {v(V_T1)}
    v_cndmask_b32 {v(dst)}, 0, {v(V_T1)}, {s(S_G0,2)}
    v_cndmask_b32 {v(dst+1)}, 0, {v(V_T1)}, {s(S_G0,2)}
    """)


def colsum_pack(g, src, dst):
    g(f"""
    v_cvt_pk_bf16_f32 {v(dst)}, {v(src)}, {v(src)}
    v_lshlrev_b32 {v(dst+1)}, 16, {v(dst)}
    v_sub_f32 {v(dst+1)}, {v(src)}, {v(dst+1)}
    v_cvt_pk_bf16_f32 {v(dst+1)}, {v(dst+1)}, {v(dst+1)}
    """)


def poll(g, voff, soff, want, name, slp=0):
    lp, done = g.label(name), g.label(name + "_ok")
    g(f"s_mov_b32 {s(S_SPIN)}, {SPIN_LIMIT}")
    g(f"{lp}:")
    g(f"""
    buffer_load_dword {v(V_T7)}, {v(voff)}, {s(SRD_WS,4)}, {soff} offen sc1
    s_waitcnt vmcnt(0)
    v_cmp_ne_u32 vcc, {want}, {v(V_T7)}
    s_cbranch_vccz {done}
    {'s_sleep %d' % slp if slp else ''}
    s_sub_u32 {s(S_SPIN)}, {s(S_SPIN)}, 1
    s_cbranch_scc0 {lp}
    {done}:
    """)


def mfma32(g, d, A, B, c=None):
    g(f"v_mfma_f32_16x16x32_bf16 {d}, {A}, {B}, {c if c is not None else d}")


def mfma16(g, d, A, B, c=None):
    g(f"v_mfma_f32_16x16x16_bf16 {d}, {A}, {B}, {c if c is not None else d}")


def pipelined(g, items, depth_reads, group=1):
    n = len(items)
    issued = 0
    cum = [0]
    for it in items:
        cum.append(cum[-1] + len(it[0]))
    for i in range(0, n, group):
        hi = min(i + group, n)
        while issued < n and (issued < hi or cum[issued + 1] - cum[i] <= depth_reads):
            if len(items[issued]) > 2:
                for p in items[issued][2]:
                    g(p)
            for r in items[issued][0]:
                g(r)
            issued += 1
        g(f"s_waitcnt lgkmcnt({cum[issued] - cum[hi]})")
        for k in range(i, hi):
            for c in items[k][1]:
                g(c)


def capture(g, fn):
    keep = g.L
    g.L = []
    fn()
    out = [x.strip() for x in g.L]
    g.L = keep
    return out


def prologue(g):
    g(f"""
    s_cmp_ge_u32 s2, 256
    s_cbranch_scc1 L_end
    s_load_dwordx16 s[4:19], s[0:1], 0
    """)
    if g.opts.get("dbg", 0):
        g("s_load_dwordx2 s[82:83], s[0:1], 48")
        g("s_memrealtime s[84:85]")
    if g.stamps:
        for i in range(S_STAMP, 100):
            g(f"s_mov_b32 s{i}, 0")
        g(f"s_memrealtime s[{S_STAMP}:{S_STAMP+1}]")
        g.stamp('start', False)
    g(f"""
    s_and_b32 {s(S_G8)}, s2, 7
    s_lshr_b32 {s(S_J)}, s2, 3
    v_lshrrev_b32 {v(V_T0)}, 6, v0
    v_and_b32 {v(V_L)}, 63, v0
    v_readfirstlane_b32 {s(S_W)}, {v(V_T0)}
    v_and_b32 {v(V_I)}, 15, v0
    v_bfe_u32 {v(V_G)}, v0, 4, 2
    v_lshlrev_b32 {v(V_L16)}, 4, {v(V_L)}
    """)
    if g.opts.get("codepf", 1):
        NL = g.opts.get("cpl", 3)
        g(f"""
        s_getpc_b64 {s(S_M,2)}
        L_pc:
        s_lshl_b32 {s(S_T0)}, {s(S_J)}, 2
        s_add_u32 {s(S_T0)}, {s(S_T0)}, {s(S_W)}
        s_mul_i32 {s(S_T0)}, {s(S_T0)}, {128*NL}
        s_min_u32 {s(S_T0)}, {s(S_T0)}, L_code_end-L_pc-{128*NL}
        v_lshlrev_b32 {v(V_T0)}, 7, {v(V_L)}
        v_add_u32 {v(V_T1)}, {s(S_T0)}, {v(V_T0)}
        s_mov_b64 exec, {(1 << NL) - 1}
        global_load_dword {v(V_MISC+62)}, {v(V_T1)}, {s(S_M,2)}
        s_mov_b64 exec, -1
        """)
    g(f"""
    s_lshr_b32 {s(S_RQ)}, {s(S_J)}, 3
    s_and_b32 {s(S_CS)}, {s(S_J)}, 7
    s_lshl_b32 {s(S_RB)}, {s(S_RQ)}, 3
    s_add_u32 {s(S_RB)}, {s(S_RB)}, {s(S_G8)}
    s_mov_b32 {s(SRD_A+3)}, 0x20000
    s_mov_b32 {s(SRD_B+3)}, 0x20000
    s_mov_b32 {s(SRD_WS+3)}, 0x20000
    s_mov_b32 {s(SRD_WS+2)}, {WS_SIZE}
    s_cmp_ge_u32 {s(S_CS)}, 6
    s_cbranch_scc1 L_products
    """)
    p0_pre(g)
    g(f"""
    s_waitcnt lgkmcnt(0)
    s_load_dword {s(S_NONCE)}, {s(S_WS,2)}, {WS_NONCE}
    """)


def common_consts(g):
    g(f"""
    s_mov_b32 {s(SRD_WS)}, {s(S_WS)}
    s_mov_b32 {s(SRD_WS+1)}, {s(S_WS+1)}
    s_mov_b32 {s(SRD_OUT)}, {s(S_OUT)}
    s_mov_b32 {s(SRD_OUT+1)}, {s(S_OUT+1)}
    s_mov_b32 {s(SRD_OUT+2)}, 1572864
    s_mov_b32 {s(SRD_OUT+3)}, 0x20000
    s_mov_b32 {s(S_ONES)}, 0x3f803f80
    s_getreg_b32 {s(S_ME)}, hwreg(HW_REG_XCC_ID, 0, 3)
    v_mov_b32 {v(V_ONES)}, {s(S_ONES)}
    v_mov_b32 {v(V_ONES+1)}, {s(S_ONES)}
    v_mov_b32 {v(V_ONES+2)}, {s(S_ONES)}
    v_mov_b32 {v(V_ONES+3)}, {s(S_ONES)}
    v_mov_b32 {v(V_MASK)}, 0xffffff00
    v_mov_b32 {v(V_ZERO)}, 0
    v_cmp_eq_u32 {s(S_G0,2)}, 0, {v(V_G)}
    v_lshrrev_b32 {v(V_T0)}, 1, {v(V_G)}
    v_lshrrev_b32 {v(V_T1)}, 3, {v(V_I)}
    v_cmp_eq_u32 {s(S_VALID,2)}, {v(V_T0)}, {v(V_T1)}
    v_lshrrev_b32 {v(V_T1)}, 2, {v(V_I)}
    v_cmp_eq_u32 {s(S_DIAG,2)}, {v(V_G)}, {v(V_T1)}
    """)
    g(f"""
    s_lshl_b32 {s(S_T0)}, {s(S_G8)}, 7
    s_add_u32 {s(S_T0)}, {s(S_T0)}, {WS_FXCC}
    v_and_b32 {v(V_T1)}, 31, {v(V_L)}
    v_lshlrev_b32 {v(V_T1)}, 10, {v(V_T1)}
    v_add_u32 {v(V_PA)}, {s(S_T0)}, {v(V_T1)}
    v_min_u32 {v(V_PB)}, 11, {v(V_L)}
    s_mul_i32 {s(S_T1)}, {s(S_G8)}, {FP_REP}
    v_lshlrev_b32 {v(V_PB)}, 7, {v(V_PB)}
    s_bitcmp0_b32 {s(S_J)}, 3
    s_cselect_b32 {s(S_T0)}, 0, {12*128}
    s_add_u32 {s(S_T0)}, {s(S_T0)}, {WS_FP+36*128}
    s_add_u32 {s(S_T0)}, {s(S_T0)}, {s(S_T1)}
    v_add_u32 {v(V_PB)}, {s(S_T0)}, {v(V_PB)}
    v_min_u32 {v(V_T0)}, 5, {v(V_L)}
    v_mul_u32_u24 {v(V_T0)}, 768, {v(V_T0)}
    s_lshl_b32 {s(S_T0)}, {s(S_CS)}, 7
    s_add_u32 {s(S_T0)}, {s(S_T0)}, {s(S_T1)}
    s_add_u32 {s(S_T0)}, {s(S_T0)}, {WS_FP}
    v_add_u32 {v(V_PS)}, {s(S_T0)}, {v(V_T0)}
    """)


def nonce_and_publish(g):
    g(f"""
    s_waitcnt lgkmcnt(0)
    s_and_b32 {s(S_T0)}, {s(S_NONCE)}, 0x78787878
    s_add_u32 {s(S_T0)}, {s(S_T0)}, 0x08080808
    s_and_b32 {s(S_T1)}, {s(S_NONCE)}, 0x80808080
    s_xor_b32 {s(S_NONCE)}, {s(S_T0)}, {s(S_T1)}
    s_or_b32 {s(S_ME)}, {s(S_ME)}, {s(S_NONCE)}
    s_lshl_b32 {s(S_T0)}, s2, 7
    s_add_u32 {s(S_T0)}, {s(S_T0)}, {WS_FXCC}
    v_mov_b32 {v(V_T0)}, {s(S_ME)}
    v_mov_b32 {v(V_NONCE)}, {s(S_NONCE)}
    s_mov_b64 exec, 1
    buffer_store_dword {v(V_T0)}, {v(V_ZERO)}, {s(SRD_WS,4)}, {s(S_T0)} offen sc1
    """)
    if g.opts.get("tlb", 0):
        sh = g.opts.get("tlbs", 19)
        g(f"""
        s_mov_b64 exec, {(1 << min(16, (WS_SIZE >> sh) + 1)) - 1}
        v_lshlrev_b32 {v(V_T1)}, {sh}, {v(V_L)}
        v_add_u32 {v(V_T1)}, 64, {v(V_T1)}
        buffer_load_dword {v(254)}, {v(V_T1)}, {s(SRD_WS,4)}, 0 offen
        buffer_load_dword {v(255)}, {v(V_T1)}, {s(SRD_OUT,4)}, 0 offen
        """)
    g(f"""
    s_mov_b64 exec, -1
    s_and_b32 {s(S_TAG)}, {s(S_NONCE)}, 0xff
    s_bfe_u32 {s(S_TAG+1)}, {s(S_NONCE)}, 0x80008
    s_bfe_u32 {s(S_TAG+2)}, {s(S_NONCE)}, 0x80010
    s_lshr_b32 {s(S_TAG+3)}, {s(S_NONCE)}, 24
    """)


def flag_store(g, soff, rep):
    sk = g.label("nofl")
    g(f"""
    s_cmp_lg_u32 {s(S_W)}, 0
    s_cbranch_scc1 {sk}
    v_mul_u32_u24 {v(V_T0)}, {rep}, {v(V_L)}
    s_mov_b64 exec, 0xff
    buffer_store_dword {v(V_NONCE)}, {v(V_T0)}, {s(SRD_WS,4)}, {soff} offen sc1
    s_mov_b64 exec, -1
    {sk}:
    """)


def pa_eval(g):
    g(f"""
    v_and_b32 {v(V_T6)}, -8, {v(V_T7)}
    v_cmp_ne_u32 vcc, {s(S_NONCE)}, {v(V_T6)}
    s_mov_b32 {s(S_F1)}, vcc_lo
    v_cmp_ne_u32 vcc, {s(S_ME)}, {v(V_T7)}
    s_mov_b32 {s(S_SLOW)}, vcc_lo
    """)


def pa_wait(g, reg, name):
    lp, done = g.label(name), g.label(name + "_ok")
    g(f"""
    s_cmp_eq_u32 {s(reg)}, 0
    s_cbranch_scc1 {done}
    s_mov_b32 {s(S_SPIN)}, {SPIN_LIMIT}
    {lp}:
    buffer_load_dword {v(V_T7)}, {v(V_PA)}, {s(SRD_WS,4)}, 0 offen sc1
    s_waitcnt vmcnt(0)
    """)
    pa_eval(g)
    g(f"""
    s_cmp_eq_u32 {s(reg)}, 0
    s_cbranch_scc1 {done}
    s_sub_u32 {s(S_SPIN)}, {s(S_SPIN)}, 1
    s_cbranch_scc0 {lp}
    {done}:
    """)


def both_modes(g, emit):
    ls, le = g.label("slow"), g.label("join")
    g(f"""
    s_cmp_lg_u32 {s(S_SLOW)}, 0
    s_cbranch_scc1 {ls}
    """)
    emit(" sc1" if g.opts.get("allsc1", 0) else (" nt" if g.opts.get("fastnt", 0) else ""))
    g(f"s_branch {le}")
    g(f"{ls}:")
    emit(" sc1")
    g(f"{le}:")


S_WD0, S_WD1 = S_T6, S_T7
S_SPO = S_T4
S_WV, S_WVI = 0, 1
XR = V_MISC
VW = V_MISC + 8
VS = V_MISC + 12
RS = V_MISC + 16
FS = V_MISC + 20
V_XO = V_MISC + 14
S_XO = 26


S_SG, S_W0 = 76, 77


def wchunk(g):
    g(f"s_mov_b32 m0, {s(S_WD1)}")
    g(f"s_add_u32 {s(S_WD1)}, {s(S_WD1)}, 16384")
    for q in range(4):
        g(f"buffer_load_dwordx4 {v(VW+q)}, {s(SRD_B,4)}, {s(S_WD0)} offen offset:{q*1024}{ntf(g, 2)} lds")
    g(f"s_add_u32 {s(S_WD0)}, {s(S_WD0)}, {8*18432}")
    if g.opts.get("xrot", 0):
        g(f"""
        s_add_u32 {s(S_W0)}, {s(S_W0)}, 1
        s_cmp_eq_u32 {s(S_W0)}, 6
        s_cselect_b32 {s(S_T0)}, {6*8*18432}, 0
        s_sub_u32 {s(S_WD0)}, {s(S_WD0)}, {s(S_T0)}
        """)


def wvo_group(g, st, srd=SRD_WS):
    if g.opts.get("xrot", 0):
        g(f"""
        s_add_u32 {s(S_T1)}, {s(S_WK)}, {4*st}
        s_cmp_ge_u32 {s(S_T1)}, 12
        s_cselect_b32 {s(S_T2)}, -49152, 0
        s_add_u32 m0, {s(S_SIG2)}, {L_WVO + st*16384}
        s_add_u32 {s(S_T1)}, {s(S_WV)}, {st*16384}
        s_add_u32 {s(S_T1)}, {s(S_T1)}, {s(S_T2)}
        """)
    else:
        g(f"""
        s_add_u32 m0, {s(S_SIG2)}, {L_WVO + st*16384}
        s_add_u32 {s(S_T1)}, {s(S_WV)}, {st*16384}
        """)
    for q in range(4):
        g(f"buffer_load_dwordx4 {v(V_L16)}, {s(srd,4)}, {s(S_T1)} offen offset:{q*1024} sc1 lds")


SMR = [V_T2, V_T3, V_T4, V_T5]
S_RETRY = 70
S_WK = 12
NANQ = 220
NANQ2 = 232


def sample(dst):
    return f"buffer_load_dword {v(dst)}, {v(V_PS)}, {s(SRD_WS,4)}, 0 offen sc1"


S_CH, S_WSTEP, S_XSTEP, S_SIG2, S_XR = 68, 69, 70, 71, 72
S_X1O, S_FXO, S_STO = 73, 74, 75
A1 = [236, 237, 238]
C1 = [239, 240]
XA = 241


def row_dma(g, srd, vo, so, seg, nt=""):
    g(f"buffer_load_dwordx4 {v(vo)}, {s(srd,4)}, {s(so)} offen{nt} lds")
    g(f"buffer_load_dwordx4 {v(vo+1)}, {s(srd,4)}, {s(so)} offen offset:1024{nt} lds")


def ntf(g, bit):
    return " nt" if g.opts.get("nt", 1) & bit else ""


def p0_issue(g):
    g(f"""
    s_sub_u32 {s(SRD_A)}, {s(S_X)}, 1024
    s_subb_u32 {s(SRD_A+1)}, {s(S_X+1)}, 0
    s_mov_b32 {s(SRD_A+2)}, {1572864+1024}
    s_sub_u32 {s(SRD_B)}, {s(S_WQT)}, 4096
    s_subb_u32 {s(SRD_B+1)}, {s(S_WQT+1)}, 0
    s_mov_b32 {s(SRD_B+2)}, {884736+4096}
    """)
    g.stamp('x0', False)
    for seg in range(6):
        row_dma(g, SRD_A, V_XO, S_XO, seg, ntf(g, 1))
        if seg < 5:
            g(f"s_add_u32 m0, m0, 2048")
            g(f"s_add_u32 {s(S_XO)}, {s(S_XO)}, 128")
            if g.opts.get("xrot", 0):
                g(f"s_cmp_eq_u32 {s(S_SG)}, {5-seg}")
                g(f"s_cselect_b32 {s(S_T0)}, 768, 0")
                g(f"s_sub_u32 {s(S_XO)}, {s(S_XO)}, {s(S_T0)}")
    WT = g.opts.get("wt", 0)
    if WT:
        g(f"""
        s_mul_i32 {s(S_T0)}, {s(S_RB)}, 6
        s_add_u32 {s(S_T0)}, {s(S_T0)}, {s(S_CS)}
        s_lshl_b32 {s(S_T0)}, {s(S_T0)}, 2
        s_add_u32 {s(S_T0)}, {s(S_T0)}, {s(S_W)}
        s_mul_i32 {s(S_T1)}, {s(S_T0)}, 2304
        s_add_u32 {s(S_T1)}, {s(S_T1)}, 1536
        s_mul_i32 {s(S_T2)}, {s(S_T0)}, 768
        s_sub_u32 {s(S_T2)}, {s(S_T2)}, {384*768}
        s_cmp_lt_u32 {s(S_T0)}, 384
        s_cselect_b32 {s(S_T1)}, {s(S_T1)}, {s(S_T2)}
        s_cselect_b32 {s(S_M)}, {s(S_WQT)}, {s(S_WOT)}
        s_cselect_b32 {s(S_M+1)}, {s(S_WQT+1)}, {s(S_WOT+1)}
        v_lshlrev_b32 {v(V_T0)}, 7, {v(V_L)}
        v_add_u32 {v(V_T0)}, {s(S_T1)}, {v(V_T0)}
        s_mov_b64 exec, 63
        global_load_dword {v(255)}, {v(V_T0)}, {s(S_M,2)}
        s_mov_b64 exec, -1
        """)
    for _ in range(g.opts.get("c0", 1)):
        wchunk(g)
    g.stamp('dmaiss', False)


def p0_pre(g):
    S_CB = S_CS
    g(f"""
    v_lshrrev_b32 {v(V_T1)}, 3, {v(V_L)}
    v_mul_u32_u24 {v(V_T2)}, 2304, {v(V_T1)}
    v_and_b32 {v(V_T1)}, 2, {v(V_T1)}
    v_and_b32 {v(V_T3)}, 7, {v(V_L)}
    v_xor_b32 {v(V_T3)}, {v(V_T3)}, {v(V_T1)}
    v_lshl_add_u32 {v(V_T2)}, {v(V_T3)}, 4, {v(V_T2)}
    v_add_u32 {v(VW)}, 4096, {v(V_T2)}
    v_xor_b32 {v(V_T3)}, 64, {v(V_T2)}
    v_add_u32 {v(VW+1)}, {4096+18432-1024}, {v(V_T3)}
    v_add_u32 {v(VW+2)}, {4096+768-2048}, {v(V_T2)}
    v_add_u32 {v(VW+3)}, {4096+18432+768-3072}, {v(V_T3)}
    s_mul_i32 {s(S_WD0)}, {s(S_W)}, {2*18432}
    s_lshl_b32 {s(S_T1)}, {s(S_CB)}, 7
    s_add_u32 {s(S_WD0)}, {s(S_WD0)}, {s(S_T1)}
    s_lshl_b32 {s(S_WD1)}, {s(S_W)}, 12
    v_lshrrev_b32 {v(V_T0)}, 3, {v(V_L)}
    v_mul_u32_u24 {v(V_T2)}, 196608, {v(V_T0)}
    v_lshrrev_b32 {v(V_T0)}, 1, {v(V_T0)}
    v_and_b32 {v(V_T1)}, 7, {v(V_L)}
    v_xor_b32 {v(V_T1)}, {v(V_T1)}, {v(V_T0)}
    v_lshl_add_u32 {v(V_T2)}, {v(V_T1)}, 4, {v(V_T2)}
    v_add_u32 {v(V_XO)}, 1024, {v(V_T2)}
    v_xor_b32 {v(V_T2)}, 64, {v(V_T2)}
    v_add_u32 {v(V_XO+1)}, 768, {v(V_T2)}
    s_lshl_b32 {s(S_T0)}, {s(S_RB)}, 2
    s_add_u32 {s(S_T0)}, {s(S_T0)}, {s(S_W)}
    s_mul_i32 {s(S_XO)}, {s(S_T0)}, 1536
    s_lshl_b32 {s(S_SPO)}, {s(S_XO)}, 1
    s_mul_i32 {s(S_XR)}, {s(S_W)}, 12288
    s_add_u32 {s(S_XR)}, {s(S_XR)}, {L_WVO}
    s_mov_b32 m0, {s(S_XR)}
    """)
    if g.opts.get("xrot", 0):
        g(f"""
        s_cmp_ge_u32 {s(S_G8)}, 6
        s_cselect_b32 {s(S_T0)}, {3 if g.opts["xrot"] == 1 else 6}, 0
        s_sub_u32 {s(S_SG)}, {s(S_G8)}, {s(S_T0)}
        """)
        if g.opts["xrot"] >= 3:
            g(f"""
            s_lshl_b32 {s(S_SG)}, {s(S_RQ)}, 1
            s_min_u32 {s(S_SG)}, {s(S_SG)}, 5
            s_cmp_eq_u32 {s(S_SG)}, 5
            s_cselect_b32 {s(S_SG)}, 3, {s(S_SG)}
            """)
        if g.opts["xrot"] == 4:
            g(f"""
            s_and_b32 {s(S_SG)}, {s(S_RQ)}, 1
            s_mul_i32 {s(S_SG)}, {s(S_SG)}, 3
            """)
        g(f"""
        s_mov_b32 {s(S_W0)}, {s(S_SG)}
        s_lshl_b32 {s(S_T0)}, {s(S_SG)}, 7
        s_add_u32 {s(S_XO)}, {s(S_XO)}, {s(S_T0)}
        s_mul_i32 {s(S_T0)}, {s(S_SG)}, {8*18432}
        s_add_u32 {s(S_WD0)}, {s(S_WD0)}, {s(S_T0)}
        """)


def p0_main(g):
    ACCQ, ACCK = V_ACC, V_ACC + 16
    SX, SXX = V_ACC + 40, V_ACC + 44
    SEL, NM, DB = V_BUF, V_BUF + 8, V_BUF + 16
    S_CB = S_CS
    common_consts(g)
    g(f"""
    v_lshrrev_b32 {v(V_T0)}, 1, {v(V_G)}
    v_lshlrev_b32 {v(V_T0)}, 12, {v(V_T0)}
    v_and_b32 {v(V_T1)}, 1, {v(V_G)}
    v_lshl_add_u32 {v(V_T0)}, {v(V_T1)}, 10, {v(V_T0)}
    v_lshrrev_b32 {v(V_T2)}, 2, {v(V_I)}
    v_lshl_add_u32 {v(V_T0)}, {v(V_T2)}, 7, {v(V_T0)}
    v_lshrrev_b32 {v(V_T2)}, 3, {v(V_I)}
    v_lshl_or_b32 {v(V_T2)}, {v(V_T1)}, 1, {v(V_T2)}
    v_lshl_add_u32 {v(V_T0)}, {v(V_T2)}, 5, {v(V_T0)}
    v_and_b32 {v(V_T2)}, 3, {v(V_I)}
    v_lshl_add_u32 {v(V_AD)}, {v(V_T2)}, 3, {v(V_T0)}
    v_xor_b32 {v(V_AD+1)}, 32, {v(V_AD)}
    v_xor_b32 {v(V_AD+2)}, 64, {v(V_AD)}
    v_xor_b32 {v(V_AD+3)}, 96, {v(V_AD)}
    v_cmp_eq_u32 s[4:5], 1, {v(V_T2)}
    v_cmp_eq_u32 s[6:7], 2, {v(V_T2)}
    v_cmp_eq_u32 s[8:9], 3, {v(V_T2)}
    v_and_b32 {v(V_T0)}, 7, {v(V_L)}
    v_lshl_add_u32 {v(V_T0)}, {v(V_G)}, 3, {v(V_T0)}
    v_lshlrev_b32 {v(VS)}, 4, {v(V_T0)}
    s_add_u32 {s(S_SPO)}, {s(S_SPO)}, {WS_SP}
    v_lshrrev_b32 {v(V_T0)}, 1, {v(V_I)}
    v_xor_b32 {v(V_T0)}, {v(V_T0)}, {v(V_G)}
    v_lshlrev_b32 {v(V_T0)}, 4, {v(V_T0)}
    v_lshl_add_u32 {v(V_T0)}, {v(V_I)}, 7, {v(V_T0)}
    v_add_u32 {v(V_T2)}, {s(S_XR)}, {v(V_T0)}
    v_xor_b32 {v(V_T3)}, 64, {v(V_T2)}
    s_mov_b32 {s(S_T1)}, {s(S_CB)}
    """)
    if g.opts.get("xrot", 0):
        g(f"""
        s_sub_u32 {s(S_T1)}, {s(S_CB)}, {s(S_SG)}
        s_cselect_b32 {s(S_T2)}, 6, 0
        s_add_u32 {s(S_T1)}, {s(S_T1)}, {s(S_T2)}
        """)
    g(f"""
    s_lshl_b32 {s(S_T1)}, {s(S_T1)}, 11
    v_add_u32 {v(V_T4)}, {s(S_T1)}, {v(V_T2)}
    v_add_u32 {v(V_T5)}, {s(S_T1)}, {v(V_T3)}
    s_lshl_b32 {s(S_SIG2)}, {s(S_W)}, 12
    s_mul_i32 {s(S_WV)}, {s(S_CB)}, 49152
    s_add_u32 {s(S_WV)}, {s(S_WV)}, {s(S_SIG2)}
    s_add_u32 {s(S_WV)}, {s(S_WV)}, {WS_WVOT}
    """)
    if g.opts.get("xrot", 0):
        g(f"""
        s_lshl_b32 {s(S_T1)}, {s(S_SG)}, 13
        s_add_u32 {s(S_WV)}, {s(S_WV)}, {s(S_T1)}
        """)
    g(f"""
    s_lshl_b32 {s(S_T1)}, {s(S_CB)}, 9
    s_add_u32 {s(S_CH)}, {s(S_SPO)}, {s(S_T1)}
    s_mov_b32 {s(S_RETRY)}, 64
    """)
    g(f"""
    v_and_b32 {v(V_T0)}, 1, {v(V_I)}
    v_lshlrev_b32 {v(V_T0)}, 4, {v(V_T0)}
    v_mov_b32 {v(V_T1)}, 0x3f80
    v_lshlrev_b32 {v(V_T0)}, {v(V_T0)}, {v(V_T1)}
    v_cndmask_b32 {v(V_T0)}, 0, {v(V_T0)}, {s(S_DIAG,2)}
    v_and_b32 {v(V_T1)}, 2, {v(V_I)}
    v_cmp_eq_u32 vcc, 0, {v(V_T1)}
    v_mov_b32 {v(SEL+2)}, 0
    v_mov_b32 {v(SEL+3)}, 0
    v_cndmask_b32 {v(SEL)}, 0, {v(V_T0)}, vcc
    v_cndmask_b32 {v(SEL+1)}, {v(V_T0)}, 0, vcc
    v_mov_b32 {v(SEL+4)}, 0
    v_mov_b32 {v(SEL+5)}, 0
    v_mov_b32 {v(SEL+6)}, {v(SEL)}
    v_mov_b32 {v(SEL+7)}, {v(SEL+1)}
    """)
    p1_setup(g)
    if g.opts.get("xrot", 0):
        g(f"s_lshl_b32 {s(S_WK)}, {s(S_SG)}, 1")
        g(f"s_add_u32 {s(S_WK)}, {s(S_WK)}, {s(S_W)}")
    for q in range(4):
        g(f"v_mov_b32 {v(NANQ+q)}, -1")
        g(f"v_mov_b32 {v(NANQ2+q)}, -1")
    C0, C1_ = g.opts.get("c0", 1), g.opts.get("c1", 2)
    order = [f"x{k//2}" for k in range(12)] + ["w"] * g.opts.get("wt", 0) + [f"A{j}" for j in range(C0) for _ in range(4)]
    for j in range(C0, C1_):
        wchunk(g)
        order += [f"A{j}"] * 4
    nonce_and_publish(g)
    order += ["t"] * (1 + 2 * g.opts.get("tlb", 0))

    pend = []
    ptag = []

    def queue(fn, tag, n):
        pend.extend(capture(g, fn))
        ptag.extend([tag] * n)

    def pop_vm():
        out = []
        while pend:
            x = pend.pop(0)
            out.append(x)
            if x.startswith("buffer") or x.startswith("global"):
                order.append(ptag.pop(0))
                if any(y.startswith("buffer") or y.startswith("global") for y in pend):
                    break
        return out

    def need(tag):
        last = len(order) - 1 - order[::-1].index(tag)
        return f"s_waitcnt vmcnt({len(order) - 1 - last})"
    def mtouch():
        g(f"""
        s_mov_b64 exec, 0xffffff
        global_load_dword {v(V_MISC+62)}, {v(V_MT)}, s[16:17]{ntf(g, 16)}
        s_mov_b64 exec, -1
        """)
    if g.opts.get("mt", 2) == 1:
        mtouch()
        order.append("m")
    NQ = C1_ + 3 + (1 if g.opts.get("dense", 0) else 0)
    PAJ = g.opts.get("paj", 4)

    def qchunk(j):
        queue(lambda: wchunk(g), f"A{j}", 4)

    def mark():
        for so in (S_X1O, S_WSTEP):
            g(f"buffer_store_dwordx4 {v(NANQ,4)}, {v(XA)}, {s(SRD_WS,4)}, {s(so)} offen {('sc1', 'sc1 nt', 'sc0 sc1', 'sc0 sc1 nt')[g.opts.get('mf', 0)]}")

    def side():
        if not g.opts.get("pe", 0):
            queue(lambda: g(f"buffer_load_dword {v(254)}, {v(VS)}, {s(SRD_WS,4)}, {s(S_CH)} offen sc1"), "c", 1)
            queue(lambda: g(f"buffer_load_dword {v(254)}, {v(XA+1)}, {s(SRD_WS,4)}, {s(S_STO)} offen sc1"), "c", 1)
        if not g.opts.get("nomark", 0):
            queue(mark, "c", 2)
        elif g.opts["nomark"] == 2:
            queue(lambda: [g(f"buffer_load_dword {v(254)}, {v(XA)}, {s(SRD_WS,4)}, {s(so)} offen sc1") for so in (S_X1O, S_WSTEP)], "c", 2)
    MK = g.opts.get("mk", 2)
    if g.opts.get("pe", 0):
        g(f"buffer_load_dword {v(254)}, {v(VS)}, {s(SRD_WS,4)}, {s(S_CH)} offen sc1")
        g(f"buffer_load_dword {v(254)}, {v(XA+1)}, {s(SRD_WS,4)}, {s(S_STO)} offen sc1")
        order += ["c", "c"]
    if MK == 3:
        g(f"buffer_load_dword {v(254)}, {v(VS)}, {s(SRD_WS,4)}, {s(S_CH)} offen sc1")
        order.append("c")
    if MK == 0:
        side()
        while pend:
            for x in pop_vm():
                g(x)
    for j in range(C1_, min(NQ, 6)):
        qchunk(j)
        if MK == 1 and j == C1_ + g.opts.get("mkj", 0):
            side()
    items = []
    for ks in range(12):
        xf = v(V_XF + 4 * ks, 4)
        pre = []
        if ks % 4 == 0:
            pre = [need(f"x{ks//2+1}")] + (capture(g, lambda: g.stamp('xarr0', False)) if ks == 0 else [])
        if ks % 4 == 2 or (g.opts.get("dense", 0) and ks % 2 == 1):
            pre += pop_vm()
        rd = [f"ds_read_b128 {xf}, {v(V_T2+(ks&1))} offset:{(ks>>1)*2048}"]
        if ks == 11:
            rd += [f"ds_read_b128 {v(XR,4)}, {v(V_T4)}", f"ds_read_b128 {v(XR+4,4)}, {v(V_T5)}"]
        cm = capture(g, lambda: (mfma32(g, v(SXX, 4), xf, xf, "0" if ks == 0 else None),
                                 mfma32(g, v(SX, 4), v(V_ONES, 4), xf, "0" if ks == 0 else None)))
        items.append((rd, cm, pre))
    pipelined(g, items, 6)
    g.stamp('xarr', False)
    g.nop(8)
    g(f"""
    v_mul_f32 {v(NM)}, {f2u(-1/384.):#x}, {v(SX)}
    v_mul_f32 {v(NM+1)}, {f2u(-1/384.):#x}, {v(SX)}
    v_mul_f32 {v(NM+2)}, {f2u(-1/384.):#x}, {v(SX)}
    v_mul_f32 {v(NM+3)}, {f2u(-1/384.):#x}, {v(SX)}
    v_cndmask_b32 {v(SXX)}, {v(SXX)}, {v(SXX+1)}, s[4:5]
    v_cndmask_b32 {v(SXX)}, {v(SXX)}, {v(SXX+2)}, s[6:7]
    """)
    fin = capture(g, lambda: (g(f"v_cndmask_b32 {v(SXX)}, {v(SXX)}, {v(SXX+3)}, s[8:9]"),
                              g(f"v_cndmask_b32 {v(SXX)}, 0, {v(SXX)}, {s(S_DIAG,2)}"),
                              xlane_sum(g, SXX, V_T0), mean_rstd(g, SX, SXX, V_MEAN, V_R)))
    LAG = 2
    for ks in range(12 + LAG):
        if ks < 12:
            d = DB + (ks % 4) * 8
            mfma32(g, v(d, 4), v(SEL, 4), v(V_XF + 4 * ks, 4), v(NM, 4))
            mfma32(g, v(d + 4, 4), v(SEL + 4, 4), v(V_XF + 4 * ks, 4), v(NM, 4))
        if ks < LAG or ks >= 12:
            for x in fin[:9]:
                g(x)
            if ks >= 12 and not fin:
                g.nop(2)
            fin = fin[9:]
        if ks >= LAG:
            d = DB + ((ks - LAG) % 4) * 8
            for q in range(4):
                g(f"v_cvt_pk_bf16_f32 {v(V_XF+4*(ks-LAG)+q)}, {v(d+2*q)}, {v(d+2*q+1)}")
        if ks % 2 == 1 or g.opts.get("dense", 0) > 1:
            for x in pop_vm():
                g(x)
    assert not fin
    g.stamp('cent', False)
    if g.opts.get("mt", 2) == 2:
        mtouch()
        order.append("m")

    for j in range(NQ, 6):
        qchunk(j)
    UNI = g.opts.get("uni", 0)
    if UNI:
        assert pend and ptag[-1] == "A5"
        k = len(pend) - next(i for i, x in enumerate(reversed(pend)) if x.startswith("s_mov_b32 m0")) - 1
        pend.insert(k, f"buffer_load_dword {v(V_T7)}, {v(V_PA)}, {s(SRD_WS,4)}, 0 offen sc1")
        ptag.insert(len(ptag) - 4, "p")
    if MK == 2:
        side()
    MT = g.opts.get("mt", 2)
    if MT == 3:
        queue(mtouch, "m", 1)
    SMP = [g.opts.get("s0", 70), g.opts.get("s1", 82), g.opts.get("s2", 94)]
    items = []
    nb = 0
    for j in range(6):
        for n, (kk, mat, sl) in enumerate([(kk, mat, sl) for kk in range(2) for mat in range(2) for sl in range(4)]):
            ks = 2 * j + kk
            b = V_BUF + (nb % 16) * 4
            nb += 1
            off = (ks % 6) * 8192 + mat * 2048
            rd = [f"ds_read_b64_tr_b16 {v(b,2)}, {v(V_AD+sl)} offset:{off}",
                  f"ds_read_b64_tr_b16 {v(b+2,2)}, {v(V_AD+sl)} offset:{off+512}"]
            acc = (ACCQ if mat == 0 else ACCK) + 4 * sl
            cm = [f"v_mfma_f32_16x16x32_bf16 {v(acc,4)}, {v(b,4)}, {v(V_XF+4*ks,4)}, {'0' if ks == 0 else v(acc,4)}"]
            pre = []
            if n == 0:
                pre += [need(f"A{j}"), "s_barrier"]
                pre += capture(g, lambda: g.stamp(f'chunk{j}', False))
                if j == 3:
                    pre += [f"v_add_u32 {v(V_AD+q)}, 49152, {v(V_AD+q)}" for q in range(4)]
                if UNI and j == 5:
                    pre += capture(g, lambda: pa_eval(g))
                if j == g.opts.get("pj", 2) and not UNI:
                    pre.append(f"buffer_load_dword {v(V_T7)}, {v(V_PA)}, {s(SRD_WS,4)}, 0 offen sc1")
                    order.append("p")
            if 16 * j + n == g.opts.get("s0", 86):
                assert not pend
                pre += [sample(V_T5)] if UNI else ["s_waitcnt vmcnt(0)", sample(V_T5)] + capture(g, lambda: pa_eval(g))
            if n % 3 == 1:
                x = pop_vm()
                pre += x
            items.append([rd, cm, pre])
    assert not pend
    QF, KF = V_ACC + 32, V_ACC + 40
    pipelined(g, items, 14, group=1)
    for i in range(8):
        g(f"v_cvt_pk_bf16_f32 {v(QF+i)}, {v(ACCQ+2*i)}, {v(ACCQ+2*i+1)}")
    for i in range(8):
        g(f"v_cvt_pk_bf16_f32 {v(KF+i)}, {v(ACCK+2*i)}, {v(ACCK+2*i+1)}")
    SS = V_BUF + 32
    g.nop(1)
    mfma32(g, v(SS, 4), v(KF, 4), v(QF, 4), "0")
    mfma32(g, v(SS, 4), v(KF + 4, 4), v(QF + 4, 4))
    pa_wait(g, S_F1, "xcc")
    g.nop(6)
    for r in range(4):
        g(f"v_bfi_b32 {v(SS+r)}, {v(V_MASK)}, {v(SS+r)}, {s(S_TAG+r)}")
    g(f"s_mov_b64 exec, {s(S_VALID,2)}")
    both_modes(g, lambda sc: g(f"buffer_store_dwordx4 {v(SS,4)}, {v(VS)}, {s(SRD_WS,4)}, {s(S_CH)} offen{sc}"))
    g("s_mov_b64 exec, -1")
    g.stamp('sstored')


CSL = V_BUF


def kpos(g, q, scale, base):
    g(f"""
    s_add_u32 {s(S_T1)}, {s(S_RHO)}, {q}
    s_cmp_ge_u32 {s(S_T1)}, 12
    s_cselect_b32 {s(S_T2)}, 12, 0
    s_sub_u32 {s(S_T1)}, {s(S_T1)}, {s(S_T2)}
    s_mul_i32 {s(S_T1)}, {s(S_T1)}, {scale}
    s_add_u32 m0, {s(S_T1)}, {base}
    """)


def ws2_dma(g):
    for c in range(3):
        g(f"buffer_load_dwordx2 {v(CSL+4*c,2)}, {v(V_L8)}, {s(SRD_WS,4)}, {s(S_CP0 if c < 2 else S_CP1)} offen offset:{c*512} sc1")
    for q in range(3):
        kpos(g, q, 3072, 0)
        g(f"s_add_u32 {s(S_T1)}, {s(S_WD0)}, {q*6144}")
        g(f"s_add_u32 {s(S_T2)}, {s(S_WD1)}, {q*6144}")
        g(f"buffer_load_dwordx4 {v(V_L16)}, {s(SRD_WS,4)}, {s(S_T1)} offen sc1 lds")
        g(f"buffer_load_dwordx4 {v(V_L16)}, {s(SRD_WS,4)}, {s(S_T1)} offen offset:1024 sc1 lds")
        g(f"buffer_load_dwordx4 {v(V_L16)}, {s(SRD_WS,4)}, {s(S_T2)} offen offset:2048 sc1 lds")


def p1_setup(g):
    S_CB = S_CS
    g(f"""
    v_add_u32 {v(A1[0])}, {L_WVO}, {v(V_L16)}
    v_lshlrev_b32 {v(V_T0)}, 3, {v(V_I)}
    s_lshl_b32 {s(S_T0)}, {s(S_W)}, 7
    s_add_u32 {s(S_T0)}, {s(S_T0)}, {L_SG}
    v_add_u32 {v(A1[2])}, {s(S_T0)}, {v(V_T0)}
    v_and_b32 {v(V_T0)}, 7, {v(V_I)}
    v_lshrrev_b32 {v(V_T1)}, 3, {v(V_I)}
    v_lshl_add_u32 {v(V_T1)}, {v(V_G)}, 3, {v(V_T1)}
    s_lshl_b32 {s(S_T1)}, {s(S_W)}, 1
    v_add_u32 {v(V_T1)}, {s(S_T1)}, {v(V_T1)}
    v_xor_b32 {v(V_T1)}, {v(V_T1)}, {v(V_T0)}
    v_lshlrev_b32 {v(V_T1)}, 4, {v(V_T1)}
    v_lshl_add_u32 {v(V_T1)}, {v(V_T0)}, 10, {v(V_T1)}
    v_add_u32 {v(A1[1])}, {L_T}, {v(V_T1)}
    v_xor_b32 {v(V_T0)}, {s(S_T1)}, {v(V_L)}
    v_lshlrev_b32 {v(V_T0)}, 4, {v(V_T0)}
    s_lshl_b32 {s(S_T2)}, {s(S_W)}, 11
    s_add_u32 {s(S_T2)}, {s(S_T2)}, {L_T}
    v_add_u32 {v(C1[0])}, {s(S_T2)}, {v(V_T0)}
    v_xor_b32 {v(C1[1])}, 16, {v(C1[0])}
    v_lshrrev_b32 {v(V_T0)}, 3, {v(V_L)}
    v_lshlrev_b32 {v(V_T0)}, 8, {v(V_T0)}
    v_and_b32 {v(V_T1)}, 7, {v(V_L)}
    v_lshl_add_u32 {v(XA)}, {v(V_T1)}, 4, {v(V_T0)}
    s_mul_i32 {s(S_X1O)}, {s(S_W)}, {2*196608}
    s_lshr_b32 {s(S_T1)}, {s(S_RB)}, 1
    s_mul_i32 {s(S_T1)}, {s(S_T1)}, 12288
    s_add_u32 {s(S_X1O)}, {s(S_X1O)}, {s(S_T1)}
    s_and_b32 {s(S_T1)}, {s(S_RB)}, 1
    s_lshl_b32 {s(S_T1)}, {s(S_T1)}, 7
    s_add_u32 {s(S_X1O)}, {s(S_X1O)}, {s(S_T1)}
    s_lshl_b32 {s(S_T1)}, {s(S_CB)}, 11
    s_add_u32 {s(S_X1O)}, {s(S_X1O)}, {s(S_T1)}
    s_add_u32 {s(S_X1O)}, {s(S_X1O)}, {WS_X1}
    s_add_u32 {s(S_WSTEP)}, {s(S_X1O)}, 196608
    s_mul_i32 {s(S_FXO)}, {s(S_RB)}, 6
    s_add_u32 {s(S_FXO)}, {s(S_FXO)}, {s(S_CB)}
    s_lshl_b32 {s(S_T1)}, {s(S_FXO)}, 2
    s_lshl_b32 {s(S_FXO)}, {s(S_FXO)}, 7
    s_add_u32 {s(S_STO)}, {s(S_FXO)}, {WS_STX}
    v_and_b32 {v(V_T0)}, 7, {v(V_L)}
    v_mul_u32_u24 {v(V_T0)}, {6*32*128}, {v(V_T0)}
    v_and_b32 {v(V_T1)}, -8, {v(V_L)}
    v_add_u32 {v(XA+1)}, {v(V_T0)}, {v(V_T1)}
    v_lshlrev_b32 {v(XA+2)}, 3, {v(V_L)}
    v_add_u32 {v(XA+2)}, {L_SG}, {v(XA+2)}
    """)
    if g.opts.get("mt", 1):
        g(f"""
    s_mul_i32 {s(S_T1)}, {s(S_RQ)}, 6
    s_add_u32 {s(S_T1)}, {s(S_T1)}, {s(S_CB)}
    s_lshl_b32 {s(S_T1)}, {s(S_T1)}, 2
    s_add_u32 {s(S_T1)}, {s(S_T1)}, {s(S_W)}
    s_bfe_u32 {s(S_T2)}, {s(S_G8)}, 0x10001
    s_and_b32 {s(S_T3)}, {s(S_G8)}, 1
    v_mul_u32_u24 {v(V_T0)}, 43, {v(V_L)}
    v_lshrrev_b32 {v(V_T0)}, 8, {v(V_T0)}
    v_mul_u32_u24 {v(V_T0)}, {2304-768}, {v(V_T0)}
    v_lshl_add_u32 {v(V_MT)}, {v(V_L)}, 7, {v(V_T0)}
    v_mul_u32_u24 {v(V_T0)}, 86, {v(V_L)}
    v_lshrrev_b32 {v(V_T0)}, 8, {v(V_T0)}
    v_mul_u32_u24 {v(V_T0)}, {768-384}, {v(V_T0)}
    v_lshl_add_u32 {v(V_T1)}, {v(V_L)}, 7, {v(V_T0)}
    s_mov_b32 s16, {s(S_WQS)}
    s_mov_b32 s17, {s(S_WQS+1)}
    s_cmp_ge_u32 {s(S_T1)}, 48
    s_cbranch_scc1 L_mt_b
    s_mul_i32 {s(S_T2)}, {s(S_T2)}, {192*2304}
    s_mul_i32 {s(S_T1)}, {s(S_T1)}, {4*2304}
    s_add_u32 {s(S_T1)}, {s(S_T1)}, {s(S_T2)}
    s_cmp_ge_u32 {s(S_G8)}, 4
    s_cselect_b32 {s(S_T2)}, 1536, 0
    s_add_u32 {s(S_T1)}, {s(S_T1)}, {s(S_T2)}
    s_branch L_mt_e
    L_mt_b:
    s_sub_u32 {s(S_T1)}, {s(S_T1)}, 48
    s_cmp_ge_u32 {s(S_G8)}, 4
    s_cbranch_scc1 L_mt_c
    s_mul_i32 {s(S_T3)}, {s(S_T3)}, {192*2304}
    s_mul_i32 {s(S_T1)}, {s(S_T1)}, {4*2304}
    s_add_u32 {s(S_T1)}, {s(S_T1)}, {s(S_T3)}
    s_add_u32 {s(S_T1)}, {s(S_T1)}, 768
    s_branch L_mt_e
    L_mt_c:
    s_mul_i32 {s(S_T3)}, {s(S_T3)}, 384
    s_mul_i32 {s(S_T1)}, {s(S_T1)}, {8*768}
    s_add_u32 {s(S_T1)}, {s(S_T1)}, {s(S_T3)}
    s_mov_b32 s16, {s(S_WOS)}
    s_mov_b32 s17, {s(S_WOS+1)}
    v_mov_b32 {v(V_MT)}, {v(V_T1)}
    L_mt_e:
    v_add_u32 {v(V_MT)}, {s(S_T1)}, {v(V_MT)}
        """)


V_MT = 245


def unpack_res(g):
    XC = V_ACC + 20
    for m in range(2):
        for par in range(2):
            for r in range(4):
                src = XR + 4 * m + 2 * par + (r >> 1)
                d = XC + (2 * m + par) * 4 + r
                if r & 1:
                    g(f"v_and_b32 {v(d)}, 0xffff0000, {v(src)}")
                else:
                    g(f"v_lshlrev_b32 {v(d)}, 16, {v(src)}")


def p1(g):
    Z = V_ACC
    CS = V_ACC + 16
    XC = V_ACC + 20

    def shadow():
        g(f"v_lshlrev_b32 {v(V_T0)}, 4, {v(V_G)}")
        for e in range(4):
            g(f"ds_bpermute_b32 {v(RS+e)}, {v(V_T0)}, {v(V_R)} offset:{4*e}")
        unpack_res(g)
        g(f"v_mul_f32 {v(V_T1)}, {f2u(SCALE_LOG2E):#x}, {v(V_R)}")
        g("s_waitcnt lgkmcnt(0)")
        for e in range(4):
            g(f"v_mul_f32 {v(FS+e)}, {v(V_T1)}, {v(RS+e)}")
        p2_setup(g)
    AOP = VW
    SPR = [V_ACC + 36, V_ACC + 40, V_ACC + 44, 220, 224, 248]

    def sloads():
        for c in range(6):
            g(f"buffer_load_dwordx4 {v(SPR[c],4)}, {v(VS)}, {s(SRD_WS,4)}, {s(S_SPO)} offen offset:{c*512} sc1")

    def scheck():
        for c in range(6):
            for r in range(4):
                g(f"v_xor_b32 {v(SPR[c]+r)}, {s(S_TAG+r)}, {v(SPR[c]+r)}")
            if c == 0:
                g(f"v_or_b32 {v(V_T2)}, {v(SPR[0])}, {v(SPR[0]+1)}")
            else:
                g(f"v_or3_b32 {v(V_T2)}, {v(V_T2)}, {v(SPR[c])}, {v(SPR[c]+1)}")
            g(f"v_or3_b32 {v(V_T2)}, {v(V_T2)}, {v(SPR[c]+2)}, {v(SPR[c]+3)}")
        g(f"v_and_b32 {v(V_T2)}, 0xff, {v(V_T2)}")

    def softmax(pk):
        T = SPR[5]
        if pk:
            for c in (1, 3, 5):
                for h in range(2):
                    g(f"v_pk_add_f32 {v(SPR[c]+2*h,2)}, {v(SPR[c]+2*h,2)}, {v(SPR[c-1]+2*h,2)}")
            for c in (3, 5):
                for h in range(2):
                    g(f"v_pk_add_f32 {v(SPR[c]+2*h,2)}, {v(SPR[c]+2*h,2)}, {v(SPR[c-2]+2*h,2)}")
        else:
            for c in (1, 3, 5):
                for r in range(4):
                    g(f"v_add_f32 {v(SPR[c]+r)}, {v(SPR[c]+r)}, {v(SPR[c-1]+r)}")
            for c in (3, 5):
                for r in range(4):
                    g(f"v_add_f32 {v(SPR[c]+r)}, {v(SPR[c]+r)}, {v(SPR[c-2]+r)}")
        for r in range(4):
            g(f"v_mul_f32 {v(T+r)}, {v(T+r)}, {v(FS+r)}")
        g(f"""
        v_max3_f32 {v(V_T0)}, {v(T)}, {v(T+1)}, {v(T+2)}
        v_max_f32 {v(V_T0)}, {v(V_T0)}, {v(T+3)}
        v_mov_b32 {v(V_T1)}, {v(V_T0)}
        s_nop 1
        v_permlane16_swap_b32 {v(V_T0)}, {v(V_T1)}
        s_nop 0
        v_max_f32 {v(V_T0)}, {v(V_T0)}, {v(V_T1)}
        """)
        for r in range(4):
            g(f"v_sub_f32 {v(T+r)}, {v(T+r)}, {v(V_T0)}")
        for r in range(4):
            g(f"v_exp_f32 {v(T+r)}, {v(T+r)}")
        g(f"""
        s_nop 0
        v_add_f32 {v(V_T0)}, {v(T)}, {v(T+1)}
        v_add_f32 {v(V_T1)}, {v(T+2)}, {v(T+3)}
        v_add_f32 {v(V_T0)}, {v(V_T0)}, {v(V_T1)}
        v_mov_b32 {v(V_T1)}, {v(V_T0)}
        v_mul_f32 {v(T)}, {v(T)}, {v(RS)}
        v_mul_f32 {v(T+1)}, {v(T+1)}, {v(RS+1)}
        v_permlane16_swap_b32 {v(V_T0)}, {v(V_T1)}
        v_mul_f32 {v(T+2)}, {v(T+2)}, {v(RS+2)}
        v_add_f32 {v(V_T0)}, {v(V_T0)}, {v(V_T1)}
        v_rcp_f32 {v(V_T0)}, {v(V_T0)}
        v_mul_f32 {v(T+3)}, {v(T+3)}, {v(RS+3)}
        v_cndmask_b32 {v(V_T0)}, 0, {v(V_T0)}, {s(S_VALID,2)}
        """)
        for r in range(4):
            g(f"v_mul_f32 {v(T+r)}, {v(T+r)}, {v(V_T0)}")
        g(f"""
        v_cvt_pk_bf16_f32 {v(AOP)}, {v(T)}, {v(T+1)}
        v_cvt_pk_bf16_f32 {v(AOP+1)}, {v(T+2)}, {v(T+3)}
        """)
    NS = 3 if g.opts.get("mk", 2) == 3 else 0

    def side3():
        if NS:
            for so in (S_X1O, S_WSTEP):
                g(f"buffer_store_dwordx4 {v(NANQ2,4)}, {v(XA)}, {s(SRD_WS,4)}, {s(so)} offen sc1")
            g(f"buffer_load_dword {v(254)}, {v(XA+1)}, {s(SRD_WS,4)}, {s(S_STO)} offen sc1")
    if not g.opts.get("uni", 0):
        g(f"""
        s_waitcnt vmcnt(1)
        v_cmp_ne_u32 vcc, {s(S_NONCE)}, {v(V_T5)}
        s_cbranch_vccz L_wvo_go
        """)
    sh = capture(g, shadow)
    SPL = g.opts.get("spl", 40)
    for x in sh[:SPL]:
        g(x)
    if g.opts.get("uni", 0) != 2:
        g(sample(V_T5))
    for x in sh[SPL:]:
        g(x)
    sloads()
    g(f"""
    s_waitcnt vmcnt(6)
    v_cmp_ne_u32 vcc, {s(S_NONCE)}, {v(V_T5)}
    s_cbranch_vccz L_wvo_l2
    """)
    poll(g, V_PS, "0", s(S_NONCE), "wvo", g.opts.get("slp", 0))
    g("L_wvo_l2:")
    g.stamp('wlate')
    for st in range(3):
        wvo_group(g, st)
    side3()
    g(f"s_waitcnt vmcnt({12 + NS})")
    scheck()
    g(f"""
    v_cmp_ne_u32 vcc, 0, {v(V_T2)}
    s_or_b32 {s(S_WVI)}, vcc_lo, vcc_hi
    s_cbranch_scc1 L_wvo_on
    """)
    softmax(True)
    g("s_branch L_wvo_on")
    g("L_wvo_go:")
    for st in range(3):
        wvo_group(g, st)
    side3()
    shadow()
    g(f"s_mov_b32 {s(S_WVI)}, 1")
    g("L_wvo_on:")
    late = capture(g, sloads)
    nl = NS
    g.stamp('wvoflag')
    fill = ["s_waitcnt vmcnt(0)"] + capture(g, lambda: (scheck(), softmax(g.opts.get('sfill', 48) >= 48)))
    items = []
    for ks in range(12):
        for c in range(4):
            n = ks * 4 + c
            b = V_BUF + (n % 16) * 4
            rd = [f"ds_read_b128 {v(b,4)}, {v(A1[0])} offset:{ks*4096+c*1024}"]
            cc = "0" if ks == 0 else v(Z + 4 * c, 4)
            cm = [f"v_mfma_f32_16x16x32_bf16 {v(Z+4*c,4)}, {v(V_XF+4*ks,4)}, {v(b,4)}, {cc}"]
            pre = []
            if ks % 4 == 0 and c == 0:
                pre = [f"s_waitcnt vmcnt({8-ks+nl})", "s_barrier"] + capture(g, lambda: g.stamp(f'wvo{ks//4}', False))
            if late and n % 2 == 1 and n >= g.opts.get("sl0", 1):
                pre.append(late.pop(0))
                nl += 1
            if n >= g.opts.get("sfill", 48):
                cm += fill[:2]
                fill = fill[2:]
            items.append((rd, cm, pre))
    pipelined(g, items, 10, group=1)
    ZB = V_BUF + 8
    g(f"""
    s_mov_b64 vcc, 0
    s_cmp_eq_u32 {s(S_WVI)}, 0
    s_cbranch_scc1 L_s_have
    """)
    for x in fill:
        g(x)
    g(f"""
    v_cmp_ne_u32 vcc, 0, {v(V_T2)}
    L_s_have:
    s_nop 1
    """)
    for c in range(4):
        g(f"v_cvt_pk_bf16_f32 {v(ZB+2*c)}, {v(Z+4*c)}, {v(Z+4*c+1)}")
        g(f"v_cvt_pk_bf16_f32 {v(ZB+2*c+1)}, {v(Z+4*c+2)}, {v(Z+4*c+3)}")
    g.stamp('zdone')
    g(f"""
    s_cbranch_vccz L_sok
    s_mov_b32 {s(S_SPIN)}, {SPIN_LIMIT}
    L_spoll:
    """)
    sloads()
    g("s_waitcnt vmcnt(0)")
    scheck()
    g(f"""
    v_cmp_ne_u32 vcc, 0, {v(V_T2)}
    s_cbranch_vccz L_sre
    s_sub_u32 {s(S_SPIN)}, {s(S_SPIN)}, 1
    s_cbranch_scc0 L_spoll
    L_sre:
    """)
    softmax(True)
    g.nop(2)
    g("L_sok:")
    g("s_waitcnt vmcnt(0)")
    g.stamp('sok')
    g(f"buffer_load_dword {v(V_T7)}, {v(V_PB)}, {s(SRD_WS,4)}, 0 offen sc1")
    for c in range(4):
        mfma16(g, v(XC + 4 * c, 4), v(ZB + 2 * c, 2), v(AOP, 2))
    g.nop(5)
    OB = V_BUF + 48
    for m in range(2):
        for i in range(4):
            g(f"v_cvt_pk_bf16_f32 {v(OB+4*m+i)}, {v(XC+8*m+2*i)}, {v(XC+8*m+2*i+1)}")
        g(f"ds_write_b128 {v(A1[1])}, {v(OB+4*m,4)} offset:{m*512}")
    S1, S2 = Z, Z + 4
    mfma32(g, v(S2, 4), v(OB, 4), v(OB, 4), "0")
    mfma32(g, v(S1, 4), v(V_ONES, 4), v(OB, 4), "0")
    mfma32(g, v(S2, 4), v(OB + 4, 4), v(OB + 4, 4))
    mfma32(g, v(S1, 4), v(V_ONES, 4), v(OB + 4, 4))
    g.nop(7)
    g(f"""
    v_cndmask_b32 {v(S2)}, {v(S2)}, {v(S2+1)}, s[4:5]
    v_cndmask_b32 {v(S2)}, {v(S2)}, {v(S2+2)}, s[6:7]
    v_cndmask_b32 {v(S1+1)}, {v(S2)}, {v(S2+3)}, s[8:9]
    s_mov_b64 exec, {s(S_DIAG,2)}
    ds_write_b64 {v(A1[2])}, {v(S1,2)}
    s_mov_b64 exec, -1
    s_waitcnt lgkmcnt(0)
    s_barrier
    ds_read_b128 {v(OB,4)}, {v(C1[0])}
    ds_read_b128 {v(OB+4,4)}, {v(C1[1])} offset:1024
    ds_read_b64 {v(V_T0,2)}, {v(XA+2)}
    """)
    if g.opts.get("dbgearly", 0) & 4:
        g(f"""
        s_waitcnt lgkmcnt(0)
        v_bfi_b32 {v(V_T2)}, {v(V_MASK)}, {v(V_T0)}, {s(S_TAG)}
        v_bfi_b32 {v(V_T3)}, {v(V_MASK)}, {v(V_T1)}, {s(S_TAG+1)}
        buffer_store_dwordx2 {v(V_T2,2)}, {v(XA+1)}, {s(SRD_WS,4)}, {s(S_STO)} offen sc1
        s_and_b32 {s(S_T0)}, {s(S_RB)}, 3
        s_cmp_eq_u32 {s(S_T0)}, 1
        s_cbranch_scc0 L_dbg1
        s_sleep 127
        L_dbg1:
        s_waitcnt vmcnt(0)
        buffer_load_dword {v(V_T7)}, {v(V_PB)}, {s(SRD_WS,4)}, 0 offen sc1
        """)
    if g.opts.get("wm", 0):
        g(f"""
        s_waitcnt lgkmcnt(0)
        v_cmp_u_f32 vcc, {v(V_T0)}, {v(V_T0)}
        s_cbranch_vccnz L_z_redo
        L_z_ok:
        """)
    g(f"""
    s_waitcnt lgkmcnt(2)
    buffer_store_dwordx4 {v(OB,4)}, {v(XA)}, {s(SRD_WS,4)}, {s(S_X1O)} offen sc1
    s_waitcnt lgkmcnt(1)
    buffer_store_dwordx4 {v(OB+4,4)}, {v(XA)}, {s(SRD_WS,4)}, {s(S_WSTEP)} offen sc1
    """)
    if g.opts.get("nomark", 0):
        g(f"""
        s_waitcnt vmcnt(2)
        v_cmp_ne_u32 vcc, {s(S_NONCE)}, {v(V_T7)}
        s_cbranch_vccnz L_nm_late
        """)
        ws2_dma(g)
        g(f"""
        s_waitcnt vmcnt(12)
        s_mov_b32 {s(S_T0)}, 0
        s_branch L_nm_j
        L_nm_late:
        s_waitcnt vmcnt(0)
        s_mov_b32 {s(S_T0)}, 1
        L_nm_j:
        s_barrier
        s_cmp_lg_u32 {s(S_W)}, 0
        s_cbranch_scc1 L_nm_k
        s_waitcnt lgkmcnt(0)
        v_bfi_b32 {v(V_T0)}, {v(V_MASK)}, {v(V_T0)}, {s(S_TAG)}
        v_bfi_b32 {v(V_T1)}, {v(V_MASK)}, {v(V_T1)}, {s(S_TAG+1)}
        buffer_store_dwordx2 {v(V_T0,2)}, {v(XA+1)}, {s(SRD_WS,4)}, {s(S_STO)} offen sc1
        """)
        g.stamp('x1st')
        g(f"""
        L_nm_k:
        s_cmp_eq_u32 {s(S_T0)}, 0
        s_cbranch_scc1 L_p2c
        """)
    else:
        g(f"""
    s_cmp_lg_u32 {s(S_W)}, 0
    s_cbranch_scc1 L_nostx
    s_waitcnt lgkmcnt(0)
    v_bfi_b32 {v(V_T0)}, {v(V_MASK)}, {v(V_T0)}, {s(S_TAG)}
    v_bfi_b32 {v(V_T1)}, {v(V_MASK)}, {v(V_T1)}, {s(S_TAG+1)}
    buffer_store_dwordx2 {v(V_T0,2)}, {v(XA+1)}, {s(SRD_WS,4)}, {s(S_STO)} offen sc1
        """)
        g.stamp('x1st')
        g(f"""
    s_waitcnt vmcnt(3)
    s_branch L_stx2
    L_nostx:
    s_waitcnt vmcnt(2)
    L_stx2:
    v_cmp_ne_u32 vcc, {s(S_NONCE)}, {v(V_T7)}
    s_cbranch_vccz L_p2
    """)
    poll(g, V_PB, "0", s(S_NONCE), "pws", g.opts.get("slp", 0))
    g.stamp('late')


S_TILE, S_PROD, S_KB, S_NB = S_T4, S_T5, S_T6, S_T7
S_PA, S_PB, S_PS = S_F2, S_SLOW, 26
S_PO0, S_PO1, S_PF = 16, 17, 25
V_PAO = V_MISC + 14
S_PU, S_PW = 69, 70
S_PM = 68
L_PA = 49152


def prod_pre(g):
    g(f"""
    s_lshl_b32 {s(S_T0)}, {s(S_RQ)}, 1
    s_add_u32 {s(S_T0)}, {s(S_T0)}, {s(S_CS)}
    s_sub_u32 {s(S_T0)}, {s(S_T0)}, 6
    s_mul_i32 {s(S_TILE)}, {s(S_G8)}, 5
    s_add_u32 {s(S_TILE)}, {s(S_TILE)}, {s(S_T0)}
    s_sub_u32 {s(S_TILE)}, {s(S_TILE)}, 3
    s_cmp_ge_u32 {s(S_TILE)}, 36
    s_cselect_b32 {s(S_TILE)}, 60, {s(S_TILE)}
    s_mul_i32 {s(S_T1)}, {s(S_G8)}, 3
    s_add_u32 {s(S_T1)}, {s(S_T1)}, {s(S_T0)}
    s_add_u32 {s(S_T1)}, {s(S_T1)}, 36
    s_cmp_lt_u32 {s(S_T0)}, 3
    s_cselect_b32 {s(S_TILE)}, {s(S_T1)}, {s(S_TILE)}
    s_mul_hi_u32 {s(S_KB)}, {s(S_TILE)}, {(2**32 + 5)//6}
    s_mul_i32 {s(S_T0)}, {s(S_KB)}, 6
    s_sub_u32 {s(S_NB)}, {s(S_TILE)}, {s(S_T0)}
    s_sub_u32 {s(S_T0)}, {s(S_KB)}, 4
    s_lshr_b32 {s(S_PROD)}, {s(S_T0)}, 1
    s_and_b32 {s(S_T0)}, {s(S_KB)}, 1
    s_mul_i32 {s(S_T0)}, {s(S_T0)}, 3
    s_cmp_lt_u32 {s(S_TILE)}, 36
    s_cselect_b32 {s(S_PROD)}, 0, {s(S_PROD)}
    s_cselect_b32 {s(S_KB)}, {s(S_KB)}, {s(S_T0)}
    s_lshl_b32 {s(S_PA)}, {s(S_KB)}, 2
    s_add_u32 {s(S_PA)}, {s(S_PA)}, {s(S_W)}
    s_mul_i32 {s(S_PA)}, {s(S_PA)}, {16*2304}
    s_lshl_b32 {s(S_T1)}, {s(S_NB)}, 2
    s_add_u32 {s(S_T1)}, {s(S_T1)}, {s(S_W)}
    s_mul_i32 {s(S_T1)}, {s(S_T1)}, {16*2304}
    s_add_u32 {s(S_T1)}, {s(S_T1)}, 768
    s_mul_i32 {s(S_T2)}, {s(S_W)}, {2*6144}
    s_lshl_b32 {s(S_T3)}, {s(S_NB)}, 7
    s_add_u32 {s(S_T2)}, {s(S_T2)}, {s(S_T3)}
    s_mov_b32 {s(S_T3)}, {8*6144}
    s_cmp_eq_u32 {s(S_PROD)}, 1
    s_cselect_b32 {s(S_PB)}, {s(S_T1)}, {s(S_T2)}
    s_cselect_b32 {s(S_PS)}, 128, {s(S_T3)}
    s_cselect_b32 {s(S_T0)}, 0, 1536
    s_cselect_b32 {s(S_T1)}, 1, 0
    s_cselect_b32 {s(S_T2)}, 7, 2
    s_movk_i32 {s(S_T3)}, 768
    s_cselect_b32 {s(S_T3)}, 2304, {s(S_T3)}
    s_add_u32 {s(S_PA)}, {s(S_PA)}, {s(S_T0)}
    v_lshrrev_b32 {v(V_T1)}, 3, {v(V_L)}
    v_mul_u32_u24 {v(V_T2)}, {s(S_T3)}, {v(V_T1)}
    v_lshrrev_b32 {v(V_T1)}, {s(S_T1)}, {v(V_T1)}
    v_and_b32 {v(V_T1)}, {s(S_T2)}, {v(V_T1)}
    v_and_b32 {v(V_T3)}, 7, {v(V_L)}
    v_xor_b32 {v(V_T3)}, {v(V_T3)}, {v(V_T1)}
    v_lshl_add_u32 {v(VW)}, {v(V_T3)}, 4, {v(V_T2)}
    v_xor_b32 {v(V_T3)}, 64, {v(VW)}
    s_lshl_b32 {s(S_T3)}, {s(S_T3)}, 3
    s_sub_u32 {s(S_T3)}, {s(S_T3)}, 1024
    v_add_u32 {v(VW+1)}, {s(S_T3)}, {v(V_T3)}
    v_lshrrev_b32 {v(V_T1)}, 3, {v(V_L)}
    v_mul_u32_u24 {v(V_T2)}, 2304, {v(V_T1)}
    v_lshrrev_b32 {v(V_T1)}, 1, {v(V_T1)}
    v_and_b32 {v(V_T3)}, 7, {v(V_L)}
    v_xor_b32 {v(V_T3)}, {v(V_T3)}, {v(V_T1)}
    v_lshl_add_u32 {v(V_PAO)}, {v(V_T3)}, 4, {v(V_T2)}
    v_xor_b32 {v(V_T3)}, 64, {v(V_PAO)}
    v_add_u32 {v(V_PAO+1)}, {18432-1024}, {v(V_T3)}
    s_lshl_b32 {s(S_PM)}, {s(S_W)}, 11
    """)


def aslot(j, t, nt):
    return L_PA + ((j % 4) * 3 + t) * 8192 if nt == 3 else L_PA + j * 8192


def prod_unit(g, j, nt):
    g(f"s_add_u32 m0, {s(S_PM)}, {j*8192}")
    g(f"s_add_u32 {s(S_T0)}, {s(S_PA)}, {j*128}")
    f = ntf(g, 4 if nt == 1 else 8)
    g(f"buffer_load_dwordx4 {v(VW)}, {s(SRD_B,4)}, {s(S_PB)} offen{f} lds")
    g(f"buffer_load_dwordx4 {v(VW+1)}, {s(SRD_B,4)}, {s(S_PB)} offen offset:1024{f} lds")
    for t in range(nt):
        g(f"s_add_u32 m0, {s(S_PM)}, {aslot(j, t, nt)}")
        g(f"s_add_u32 {s(S_PB)}, {s(S_PB)}, {s(S_PS)}" if t == 0 else f"s_add_u32 {s(S_T0)}, {s(S_T0)}, {64*2304}")
        row_dma(g, SRD_A, V_PAO, S_T0, j, f)


def products(g):
    g(f"""
    L_products:
    """)
    prod_pre(g)
    g(f"""
    s_waitcnt lgkmcnt(0)
    s_load_dword {s(S_NONCE)}, {s(S_WS,2)}, {WS_NONCE}
    s_cmp_eq_u32 {s(S_PROD)}, 0
    s_cselect_b32 {s(SRD_A)}, {s(S_WQT)}, {s(S_WQS)}
    s_cselect_b32 {s(SRD_A+1)}, {s(S_WQT+1)}, {s(S_WQS+1)}
    s_cselect_b32 {s(SRD_B)}, {s(S_WOT)}, {s(S_WOS)}
    s_cselect_b32 {s(SRD_B+1)}, {s(S_WOT+1)}, {s(S_WOS+1)}
    s_mov_b32 {s(SRD_A+2)}, 884736
    s_cmp_eq_u32 {s(S_PROD)}, 1
    s_cselect_b32 {s(SRD_B)}, {s(S_WQS)}, {s(SRD_B)}
    s_cselect_b32 {s(SRD_B+1)}, {s(S_WQS+1)}, {s(SRD_B+1)}
    s_cselect_b32 {s(SRD_B+2)}, {s(SRD_A+2)}, 294912
    s_cmp_ge_u32 {s(S_TILE)}, 36
    s_cbranch_scc1 L_prod3
    """)
    g.stamp('x0', False)
    for j in range(3):
        prod_unit(g, j, 1)
    g(f"""
    s_branch L_prod_body
    L_prod3:
    s_cmp_ge_u32 {s(S_TILE)}, 60
    s_cbranch_scc1 L_prod_idle
    """)
    if not g.opts.get("tl", 0):
        prod_unit(g, 0, 3)
    g("s_branch L_prod3_body")


def products_body(g):
    ACC = V_ACC
    PK = V_BUF
    CSA, SELP, V_CSO = V_MISC, V_MISC + 16, V_MISC + 20
    S_PC0, S_PC1 = 71, 72

    def setup():
        common_consts(g)
        g(f"""
        v_lshrrev_b32 {v(V_T0)}, 2, {v(V_I)}
        v_and_b32 {v(V_T0)}, 1, {v(V_T0)}
        v_lshlrev_b32 {v(V_T0)}, 10, {v(V_T0)}
        v_lshrrev_b32 {v(V_T1)}, 1, {v(V_G)}
        v_lshl_add_u32 {v(V_T0)}, {v(V_T1)}, 8, {v(V_T0)}
        v_and_b32 {v(V_T1)}, 1, {v(V_G)}
        v_lshl_add_u32 {v(V_T0)}, {v(V_T1)}, 7, {v(V_T0)}
        v_lshrrev_b32 {v(V_T1)}, 3, {v(V_I)}
        v_lshl_add_u32 {v(V_T0)}, {v(V_T1)}, 6, {v(V_T0)}
        v_and_b32 {v(V_T1)}, 3, {v(V_I)}
        v_lshl_add_u32 {v(V_T5)}, {v(V_T1)}, 4, {v(V_T0)}
        s_and_b32 {s(S_T1)}, {s(S_W)}, 1
        s_lshl_b32 {s(S_T1)}, {s(S_T1)}, 9
        v_add_u32 {v(V_T5)}, {s(S_T1)}, {v(V_T5)}
        s_lshl_b32 {s(S_PF)}, {s(S_TILE)}, 7
        s_add_u32 {s(S_PF)}, {s(S_PF)}, {WS_FP}
        s_lshr_b32 {s(S_T0)}, {s(S_W)}, 1
        s_lshl_b32 {s(S_T1)}, {s(S_KB)}, 1
        s_add_u32 {s(S_T3)}, {s(S_T0)}, {s(S_T1)}
        v_lshrrev_b32 {v(V_T0)}, 1, {v(V_I)}
        v_xor_b32 {v(V_T0)}, {v(V_T0)}, {v(V_G)}
        v_lshlrev_b32 {v(V_T0)}, 4, {v(V_T0)}
        v_lshl_add_u32 {v(V_T3)}, {v(V_I)}, 7, {v(V_T0)}
        s_add_u32 {s(S_T0)}, {s(S_PM)}, {L_PA}
        v_add_u32 {v(A2[0])}, {s(S_T0)}, {v(V_T3)}
        v_xor_b32 {v(A2[1])}, 64, {v(A2[0])}
        v_add_u32 {v(A2[2])}, 49152, {v(A2[0])}
        v_add_u32 {v(A2[3])}, 49152, {v(A2[1])}
        """)

    def tr_addr():
        g(f"""
        v_lshlrev_b32 {v(V_T0)}, 10, {v(V_G)}
        v_lshrrev_b32 {v(V_T2)}, 2, {v(V_I)}
        v_lshl_add_u32 {v(V_T0)}, {v(V_T2)}, 7, {v(V_T0)}
        v_and_b32 {v(V_T1)}, 1, {v(V_G)}
        v_lshrrev_b32 {v(V_T2)}, 3, {v(V_I)}
        v_lshl_or_b32 {v(V_T2)}, {v(V_T1)}, 1, {v(V_T2)}
        v_lshl_add_u32 {v(V_T0)}, {v(V_T2)}, 5, {v(V_T0)}
        v_and_b32 {v(V_T2)}, 3, {v(V_I)}
        v_lshl_add_u32 {v(V_AD)}, {v(V_T2)}, 3, {v(V_T0)}
        v_xor_b32 {v(V_AD+1)}, 32, {v(V_AD)}
        v_xor_b32 {v(V_AD+2)}, 64, {v(V_AD)}
        v_xor_b32 {v(V_AD+3)}, 96, {v(V_AD)}
        """)

    def gemm(tr, nt, order, later, extra=None):
        items = []
        spread = []
        for ks in range(12):
            for c in range(4):
                b = V_BUF + ((ks * 4 + c) % 16) * 4
                if tr:
                    rd = [f"ds_read_b64_tr_b16 {v(b,2)}, {v(V_AD+c)} offset:{ks*4096}",
                          f"ds_read_b64_tr_b16 {v(b+2,2)}, {v(V_AD+c)} offset:{ks*4096+512}"]
                else:
                    rd = [f"ds_read_b128 {v(b,4)}, {v(V_AD+(ks&1))} offset:{(ks>>1)*8192+c*2048}"]
                pre = []
                if ks % 2 == 0 and c == 0:
                    for u in later.get(ks // 2, []):
                        if nt == 1:
                            pre += capture(g, lambda: prod_unit(g, u, nt))
                            order += [f"U{u}"] * (2 + 2 * nt)
                        else:
                            spread += capture(g, lambda: prod_unit(g, u, nt))
                            stag = f"U{u}"
                    last = len(order) - 1 - order[::-1].index(f"U{ks//2}")
                    pre += [f"s_waitcnt vmcnt({len(order)-1-last})", "s_barrier"]
                    if ks in (0, 4, 10):
                        pre += capture(g, lambda: g.stamp(f'chunk{ {0:0,4:1,10:2}[ks] }', False))
                    if extra and ks in extra:
                        pre += extra[ks]
                        order += ["h"] * 2
                while spread:
                    x = spread.pop(0)
                    pre.append(x)
                    if x.startswith("buffer"):
                        order.append(stag)
                        if any(y.startswith("buffer") for y in spread):
                            break
                cm = []
                for t in range(nt):
                    d = ACC + 16 * t + 4 * c
                    af = V_XF + ((ks % 4) * 3 + t) * 4
                    if c == 0:
                        o = aslot(ks // 2, t, nt) - L_PA
                        rd.append(f"ds_read_b128 {v(af,4)}, {v(A2[(ks&1) + 2*(o >= 49152)])} offset:{o % 49152}")
                    cm.append(f"v_mfma_f32_16x16x32_bf16 {v(d,4)}, {v(af,4)}, {v(b,4)}, {'0' if ks == 0 else v(d,4)}")
                items.append((rd, cm, pre))
        pipelined(g, items, 14 if tr else 10, group=g.opts.get('pg', 1) if nt == 3 else 1)

    def epi(nt):
        g.nop(5 if nt == 1 else 1)
        for t in range(nt):
            P = PK + 8 * t
            for c in range(4):
                g(f"v_cvt_pk_bf16_f32 {v(P+2*c)}, {v(ACC+16*t+4*c)}, {v(ACC+16*t+4*c+1)}")
                g(f"v_cvt_pk_bf16_f32 {v(P+2*c+1)}, {v(ACC+16*t+4*c+2)}, {v(ACC+16*t+4*c+3)}")
            g(f"""
            v_permlane16_swap_b32 {v(P)}, {v(P+2)}
            v_permlane16_swap_b32 {v(P+1)}, {v(P+3)}
            v_permlane16_swap_b32 {v(P+4)}, {v(P+6)}
            v_permlane16_swap_b32 {v(P+5)}, {v(P+7)}
            buffer_store_dwordx4 {v(P,4)}, {v(V_T5)}, {s(SRD_WS,4)}, {s(S_PO0)} offen sc1
            buffer_store_dwordx4 {v(P+4,4)}, {v(V_T5)}, {s(SRD_WS,4)}, {s(S_PO1)} offen sc1
            """)
            if nt == 3:
                for aa in range(2):
                    mfma32(g, v(CSA + 4 * aa, 4), v(SELP, 4), v(P + 4 * aa, 4), "0" if t == 0 else None)
            if t < nt - 1:
                g(f"v_add_u32 {v(V_T5)}, {2*6144}, {v(V_T5)}")
        if nt == 3:
            g.nop(7)
            g(f"""
            s_mov_b32 exec_lo, 0xffff
            s_mov_b32 exec_hi, 0xffff
            buffer_store_dword {v(CSA)}, {v(V_CSO)}, {s(SRD_WS,4)}, {s(S_PC0)} offen sc1
            buffer_store_dword {v(CSA+4)}, {v(V_CSO)}, {s(SRD_WS,4)}, {s(S_PC1)} offen sc1
            s_mov_b64 exec, -1
            """)

    def helper():
        lb = g.label('help')
        S_HT, SRD_H = 73, SRD_B
        g(f"""
        s_lshl_b32 {s(S_T0)}, {s(S_RQ)}, 1
        s_add_u32 {s(S_T0)}, {s(S_T0)}, {s(S_CS)}
        s_sub_u32 {s(S_T0)}, {s(S_T0)}, 9
        s_lshl_b32 {s(S_T0)}, {s(S_T0)}, 2
        s_add_u32 {s(S_T0)}, {s(S_T0)}, {s(S_W)}
        s_mov_b32 {s(SRD_H)}, {s(S_WQS)}
        s_mov_b32 {s(SRD_H+1)}, {s(S_WQS+1)}
        s_mov_b32 {s(SRD_H+2)}, 884736
        v_mul_u32_u24 {v(V_T0)}, 43, {v(V_L)}
        v_lshrrev_b32 {v(V_T0)}, 8, {v(V_T0)}
        v_mul_u32_u24 {v(V_T0)}, {2304-768}, {v(V_T0)}
        v_lshl_add_u32 {v(V_T0)}, {v(V_L)}, 7, {v(V_T0)}
        s_bfe_u32 {s(S_T2)}, {s(S_G8)}, 0x10001
        s_cmp_ge_u32 {s(S_G8)}, 4
        s_cselect_b32 {s(S_T3)}, 1536, 0
        s_mov_b32 {s(S_HT)}, {10*2304}
        s_cmp_lt_u32 {s(S_T0)}, 10
        s_cbranch_scc1 {lb}
        s_sub_u32 {s(S_T0)}, {s(S_T0)}, 10
        s_and_b32 {s(S_T2)}, {s(S_G8)}, 1
        s_movk_i32 {s(S_T3)}, 768
        s_cmp_lt_u32 {s(S_G8)}, 4
        s_cbranch_scc1 {lb}
        s_mov_b32 {s(SRD_H)}, {s(S_WOS)}
        s_mov_b32 {s(SRD_H+1)}, {s(S_WOS+1)}
        s_mov_b32 {s(SRD_H+2)}, 294912
        v_mul_u32_u24 {v(V_T0)}, 86, {v(V_L)}
        v_lshrrev_b32 {v(V_T0)}, 8, {v(V_T0)}
        v_mul_u32_u24 {v(V_T0)}, {768-384}, {v(V_T0)}
        v_lshl_add_u32 {v(V_T0)}, {v(V_L)}, 7, {v(V_T0)}
        s_mul_i32 {s(S_T3)}, {s(S_T2)}, 384
        s_mov_b32 {s(S_T2)}, 0
        s_mov_b32 {s(S_HT)}, {20*768}
        {lb}:
        s_mul_i32 {s(S_T2)}, {s(S_T2)}, {192*2304}
        s_add_u32 {s(S_T2)}, {s(S_T2)}, {s(S_T3)}
        s_mul_i32 {s(S_T0)}, {s(S_T0)}, {s(S_HT)}
        s_lshl_b32 {s(S_T0)}, {s(S_T0)}, 1
        s_add_u32 {s(S_T0)}, {s(S_T0)}, {s(S_T2)}
        s_add_u32 {s(S_T1)}, {s(S_T0)}, {s(S_HT)}
        s_mov_b32 exec_hi, 0x0fffffff
        buffer_load_dword {v(V_MISC+60)}, {v(V_T0)}, {s(SRD_H,4)}, {s(S_T0)} offen
        buffer_load_dword {v(V_MISC+61)}, {v(V_T0)}, {s(SRD_H,4)}, {s(S_T1)} offen
        s_mov_b32 exec_hi, -1
        """)

    def marks(nt):
        NQ = V_MISC + 24
        for q in range(4):
            g(f"v_mov_b32 {v(NQ+q)}, -1")
        for t in range(nt):
            if t:
                g(f"v_add_u32 {v(V_T0+t)}, {t*2*6144}, {v(V_T5)}")
            vo = V_T0 + t if t else V_T5
            g(f"buffer_store_dwordx4 {v(NQ,4)}, {v(vo)}, {s(SRD_WS,4)}, {s(S_PO0)} offen sc1")
            g(f"buffer_store_dwordx4 {v(NQ,4)}, {v(vo)}, {s(SRD_WS,4)}, {s(S_PO1)} offen sc1")
        if nt == 3:
            g(f"""
            s_mov_b32 exec_lo, 0xffff
            s_mov_b32 exec_hi, 0xffff
            buffer_store_dword {v(NQ)}, {v(V_CSO)}, {s(SRD_WS,4)}, {s(S_PC0)} offen sc1 ; keep
            buffer_store_dword {v(NQ)}, {v(V_CSO)}, {s(SRD_WS,4)}, {s(S_PC1)} offen sc1
            s_mov_b64 exec, -1
            """)

    def dst_touch(nt):
        if g.opts.get("pw3", 0) & (1 if nt == 1 else 2):
            for t in range(nt):
                if t:
                    g(f"v_add_u32 {v(V_T0+t)}, {t*2*6144}, {v(V_T5)}")
                vo = V_T0 + t if t else V_T5
                g(f"buffer_load_dword {v(254)}, {v(vo)}, {s(SRD_WS,4)}, {s(S_PO0)} offen sc1")
                g(f"buffer_load_dword {v(254)}, {v(vo)}, {s(SRD_WS,4)}, {s(S_PO1)} offen sc1")

    def fp_touch():
        if g.opts.get("pw2", 1):
            g(f"""
            v_mul_u32_u24 {v(V_T0)}, {FP_REP}, {v(V_L)}
            s_mov_b64 exec, 0xff
            buffer_load_dword {v(254)}, {v(V_T0)}, {s(SRD_WS,4)}, {s(S_PF)} offen sc1
            s_mov_b64 exec, -1
            """)

    g("L_prod_body:")
    setup()
    g(f"""
    s_mul_i32 {s(S_T1)}, {s(S_NB)}, 49152
    s_lshl_b32 {s(S_T0)}, {s(S_T3)}, 12
    s_add_u32 {s(S_T0)}, {s(S_T0)}, {s(S_T1)}
    s_add_u32 {s(S_PO0)}, {s(S_T0)}, {WS_WVOT}
    s_add_u32 {s(S_PO1)}, {s(S_PO0)}, 2048
    """)
    tr_addr()
    nonce_and_publish(g)
    fp_touch()
    dst_touch(1)
    WM = g.opts.get("wm", 0)
    if WM == 1:
        marks(1)
    for j in range(3, 6):
        prod_unit(g, j, 1)
        if WM == 2 and j == 4:
            marks(1)
    if WM == 3:
        marks(1)
    o1 = [f"U{j}" for j in range(3) for _ in range(4)] + ["t"] * (1 + 2 * g.opts.get("tlb", 0) + g.opts.get("pw2", 1) + 2 * (g.opts.get("pw3", 0) & 1)) + [f"U{j}" for j in range(3, 6) for _ in range(4)]
    if WM:
        o1.insert({1: len(o1) - 12, 2: len(o1) - 4, 3: len(o1)}[WM], "m")
        o1.insert({1: len(o1) - 12, 2: len(o1) - 4, 3: len(o1)}[WM], "m")
    if g.opts.get("dbgearly", 0) & 1:
        g("s_waitcnt vmcnt(0)")
        g("s_barrier")
        flag_store(g, s(S_PF), FP_REP)
        g("s_sleep 100")
    if g.opts.get("help", 0) == 2:
        helper()
        o1 += ["h"] * 2
    HK = g.opts.get("hk", 0)
    gemm(True, 1, o1, {}, extra={HK: capture(g, helper)} if g.opts.get("help", 0) == 3 else None)
    if WM == 3:
        g("s_waitcnt vmcnt(0)")
    epi(1)
    if WM:
        g.stamp('chunk3')
        g("s_barrier")
        flag_store(g, s(S_PF), FP_REP)
        g.stamp('chunk5')
        g("s_branch L_prod_help")
    g(f"""
    L_prod_fin:
    """)
    g.stamp('chunk3')
    g("""
    s_waitcnt vmcnt(0)
    s_barrier
    """)
    flag_store(g, s(S_PF), FP_REP)
    g.stamp('chunk5')
    g(f"""
    s_cmp_ge_u32 {s(S_TILE)}, 36
    s_cbranch_scc1 L_prod_out
    L_prod_help:
    """)
    if g.opts.get("help", 0) == 1:
        helper()
    def resident():
        if g.opts.get("res", 1):
            g(f"""
        s_lshl_b32 {s(S_T0)}, {s(S_RQ)}, 1
        s_add_u32 {s(S_T0)}, {s(S_T0)}, {s(S_CS)}
        s_sub_u32 {s(S_T0)}, {s(S_T0)}, 9
        s_lshl_b32 {s(S_T0)}, {s(S_T0)}, 2
        s_add_u32 {s(S_T0)}, {s(S_T0)}, {s(S_W)}
        s_mul_i32 {s(S_T1)}, {s(S_T0)}, 77
        v_add_u32 {v(V_T0)}, {s(S_T1)}, {v(V_L)}
        v_min_u32 {v(V_T0)}, 1535, {v(V_T0)}
        v_lshlrev_b32 {v(V_T0)}, 7, {v(V_T0)}
        s_mul_i32 {s(S_T2)}, {s(S_G8)}, 196608
        s_add_u32 {s(S_T2)}, {s(S_T2)}, {WS_QP}
        s_add_u32 {s(S_T3)}, {s(S_T2)}, {WS_VP-WS_QP}
        buffer_load_dword {v(254)}, {v(V_T0)}, {s(SRD_WS,4)}, {s(S_T2)} offen sc1{ntf(g, 32)}
            """)
            vp = f"buffer_load_dword {v(254)}, {v(V_T0)}, {s(SRD_WS,4)}, {s(S_T3)} offen sc1{ntf(g, 32)}"
            if g.opts.get("res", 1) == 1:
                g(vp)
            g(f"""
        s_add_u32 {s(S_T1)}, {s(S_T1)}, 64
        v_add_u32 {v(V_T0)}, {s(S_T1)}, {v(V_I)}
        v_min_u32 {v(V_T0)}, 1535, {v(V_T0)}
        v_lshlrev_b32 {v(V_T0)}, 7, {v(V_T0)}
        v_and_b32 {v(V_T1)}, 1, {v(V_G)}
        v_mul_u32_u24 {v(V_T1)}, {WS_VP-WS_QP}, {v(V_T1)}
        v_add3_u32 {v(V_T0)}, {v(V_T0)}, {v(V_T1)}, {s(S_T2)}
        s_lshl_b32 {s(S_T1)}, {s(S_T0)}, 2
        v_and_b32 {v(V_T1)}, 3, {v(V_L)}
        v_add_u32 {v(V_T1)}, {s(S_T1)}, {v(V_T1)}
        v_min_u32 {v(V_T2)}, 63, {v(V_T1)}
        v_lshlrev_b32 {v(V_T2)}, 7, {v(V_T2)}
        s_lshl_b32 {s(S_T1)}, {s(S_G8)}, 13
        s_add_u32 {s(S_T1)}, {s(S_T1)}, {WS_SQ}
        v_add_u32 {v(V_T2)}, {s(S_T1)}, {v(V_T2)}
        v_and_b32 {v(V_T1)}, 31, {v(V_T1)}
        v_lshlrev_b32 {v(V_T1)}, 10, {v(V_T1)}
        s_lshl_b32 {s(S_T1)}, {s(S_G8)}, 7
        s_add_u32 {s(S_T1)}, {s(S_T1)}, {WS_F2}
        v_add_u32 {v(V_T1)}, {s(S_T1)}, {v(V_T1)}
        v_cmp_eq_u32 vcc, 2, {v(V_G)}
        s_nop 1
        v_cndmask_b32 {v(V_T0)}, {v(V_T0)}, {v(V_T2)}, vcc
        v_cmp_eq_u32 vcc, 3, {v(V_G)}
        s_nop 1
        v_cndmask_b32 {v(V_T0)}, {v(V_T0)}, {v(V_T1)}, vcc
        buffer_load_dword {v(254)}, {v(V_T0)}, {s(SRD_WS,4)}, 0 offen sc1{ntf(g, 32)}
            """)
    RL = g.opts.get("rl", 0)
    if RL == 0:
        resident()
    p2_setup(g)
    p3_setup(g)
    p3_setup2(g)
    if RL == 1:
        resident()
    poll(g, V_PB, "0", s(S_NONCE), "pwsp", g.opts.get("pslp", 0))
    g(f"s_mov_b32 {s(S_F1)}, 1")
    ws2_dma(g)
    pa_wait(g, S_F1, "pxcd")
    g("s_branch L_p2d")
    g(f"""
    L_prod_out:
    buffer_load_dword {v(V_T7)}, {v(V_PA)}, {s(SRD_WS,4)}, 0 offen sc1
    buffer_load_dword {v(V_T5)}, {v(V_PB)}, {s(SRD_WS,4)}, 0 offen sc1
    """)
    p2_setup(g)
    p3_setup(g)
    p3_setup2(g)
    g("s_waitcnt vmcnt(0)")
    pa_eval(g)
    pa_wait(g, S_F1, "pxcc")
    g(f"""
    v_cmp_ne_u32 vcc, {s(S_NONCE)}, {v(V_T5)}
    s_cbranch_vccz L_prod_go
    """)
    poll(g, V_PB, "0", s(S_NONCE), "pwsq", g.opts.get("tslp", 0))
    g("L_prod_go:")
    ws2_dma(g)
    g(f"s_waitcnt vmcnt({g.opts.get('pw', 0)})")
    g("s_branch L_p2d")
    g("L_prod3_body:")
    setup()
    g(f"""
    s_mul_i32 {s(S_T0)}, {s(S_T3)}, 6144
    s_sub_u32 {s(S_T1)}, {s(S_PROD)}, 1
    s_mul_i32 {s(S_T1)}, {s(S_T1)}, {4*73728}
    s_add_u32 {s(S_T0)}, {s(S_T0)}, {s(S_T1)}
    s_add_u32 {s(S_T0)}, {s(S_T0)}, {WS_WS2}
    """)
    g(f"""
    s_sub_u32 {s(S_T1)}, {s(S_PROD)}, 1
    s_mul_i32 {s(S_T2)}, {s(S_T1)}, {4*3072}
    s_cmp_eq_u32 {s(S_KB)}, 0
    s_cselect_b32 {s(S_T1)}, 0, 256
    s_add_u32 {s(S_T2)}, {s(S_T2)}, {s(S_T1)}
    s_lshr_b32 {s(S_T1)}, {s(S_W)}, 1
    s_lshl_b32 {s(S_T1)}, {s(S_T1)}, 7
    s_add_u32 {s(S_T2)}, {s(S_T2)}, {s(S_T1)}
    s_and_b32 {s(S_T1)}, {s(S_W)}, 1
    s_lshl_b32 {s(S_T1)}, {s(S_T1)}, 2
    s_add_u32 {s(S_T2)}, {s(S_T2)}, {s(S_T1)}
    s_add_u32 {s(S_T2)}, {s(S_T2)}, {WS_CSP}
    v_bfe_u32 {v(V_T0)}, {v(V_I)}, 2, 1
    v_lshlrev_b32 {v(V_T0)}, 9, {v(V_T0)}
    v_lshrrev_b32 {v(V_T1)}, 1, {v(V_G)}
    v_lshl_add_u32 {v(V_T0)}, {v(V_T1)}, 6, {v(V_T0)}
    v_lshrrev_b32 {v(V_T1)}, 3, {v(V_I)}
    v_lshl_add_u32 {v(V_T0)}, {v(V_T1)}, 5, {v(V_T0)}
    v_and_b32 {v(V_T2)}, 3, {v(V_I)}
    v_lshl_add_u32 {v(V_CSO)}, {v(V_T2)}, 3, {v(V_T0)}
    v_and_b32 {v(V_T0)}, 1, {v(V_G)}
    v_cmp_eq_u32 vcc, {v(V_T0)}, {v(V_T1)}
    s_nop 1
    v_cndmask_b32 {v(SELP)}, 0, {v(V_ONES)}, vcc
    v_cndmask_b32 {v(SELP+1)}, 0, {v(V_ONES)}, vcc
    v_cndmask_b32 {v(SELP+2)}, 0, {v(V_ONES)}, vcc
    v_cndmask_b32 {v(SELP+3)}, 0, {v(V_ONES)}, vcc
    """)
    for aa, dst, dc in ((0, S_PO0, S_PC0), (1, S_PO1, S_PC1)):
        g(f"""
        s_lshl_b32 {s(S_T3)}, {s(S_NB)}, 1
        s_add_u32 {s(S_T3)}, {s(S_T3)}, {aa}
        s_mul_hi_u32 {s(dst)}, {s(S_T3)}, {(2**32+2)//3}
        s_mul_i32 {s(S_T1)}, {s(dst)}, 3
        s_lshl_b32 {s(dc)}, {s(S_T3)}, 10
        s_add_u32 {s(dc)}, {s(dc)}, {s(S_T2)}
        s_sub_u32 {s(S_T3)}, {s(S_T3)}, {s(S_T1)}
        s_mul_i32 {s(dst)}, {s(dst)}, 73728
        s_lshl_b32 {s(S_T3)}, {s(S_T3)}, 11
        s_add_u32 {s(dst)}, {s(dst)}, {s(S_T3)}
        s_add_u32 {s(dst)}, {s(dst)}, {s(S_T0)}
        """)
    nonce_and_publish(g)
    fp_touch()
    if g.opts.get("pw2", 1):
        g(f"buffer_load_dword {v(254)}, {v(V_CSO)}, {s(SRD_WS,4)}, {s(S_PC0)} offen sc1")
        g(f"buffer_load_dword {v(254)}, {v(V_CSO)}, {s(SRD_WS,4)}, {s(S_PC1)} offen sc1")
    if g.opts.get("tl", 0):
        prod_unit(g, 0, 3)
    prod_unit(g, 1, 3)
    dst_touch(3)
    o3 = (["U0"] * 8 + ["t"] * ((1 + 2 * g.opts.get("tlb", 0) + 3 * g.opts.get("pw2", 1)) * (1 - g.opts.get("tl", 0))) + ["U1"] * 8
          + ["t"] * (3 * (g.opts.get("pw3", 0) & 2)))
    l3 = {0: [2], 1: [3], 2: [4], 3: [5]}
    if g.opts.get("u2", 0):
        prod_unit(g, 2, 3)
        o3 += ["U2"] * 8
        l3 = {1: [3], 2: [4], 3: [5]}
    g(f"""
    s_cmp_eq_u32 {s(S_PROD)}, 1
    s_cbranch_scc1 L_prod_rows
    """)
    tr_addr()
    gemm(True, 3, list(o3), l3)
    g("L_prod_epi3:")
    epi(3)
    g("s_branch L_prod_fin")
    g(f"""
    L_prod_rows:
    v_mov_b32 {v(V_AD)}, {v(V_T3)}
    v_xor_b32 {v(V_AD+1)}, 64, {v(V_T3)}
    """)
    gemm(False, 3, list(o3), l3)
    g("s_branch L_prod_epi3")
    g("L_prod_idle:")
    common_consts(g)
    nonce_and_publish(g)
    if g.opts.get("help", 0) > 1:
        helper()
    g("s_branch L_prod_help")


A_K = 0
A_V = 144
V_RES = V_MISC + 28
RK = V_MISC
BK = 232
SG = 248
A2 = [70, 71, 72, 73, 79]
V_KO, VST, V_L16H = 78, 206, 216
VTB = 217
V_I8 = 244
S_RH2 = 74
VC2 = 232
V_FXP = 235
V_P3F, V_SQA, V_RSA, V_P3V = 188, 189, 190, 191
S_P3F, S_Q2, S_U0, S_U1 = 4, 5, 6, 7
S_QM = [8, 9, 10]
S_KS = [76, 77, 78, 79]
S_R0, S_R1, S_STX, S_FXP, S_O1, S_O0, S_FL = 80, 81, 14, 15, 3, 18, 19


def kreg(slot, ks):
    return v(V_XF + 4 * ks, 4) if slot == 0 else a(A_K + (slot - 1) * 48 + 4 * ks, 4)


S_CP0, S_CP1, S_O2 = 15, 16, 17
S_RHO = 26
VK = [71, 79, 78]
V_L8 = 73


def p2_setup(g):
    T0, T1 = V_T0, V_T1
    g(f"""
    s_lshr_b32 {s(S_RH2)}, {s(S_J)}, 4
    s_lshl_b32 {s(S_RH2)}, {s(S_RH2)}, 1
    s_and_b32 {s(S_T1)}, {s(S_J)}, 15
    s_mul_i32 {s(S_T2)}, {s(S_T1)}, 43
    s_lshr_b32 {s(S_T2)}, {s(S_T2)}, 7
    s_mul_i32 {s(S_T2)}, {s(S_T2)}, 3
    s_sub_u32 {s(S_RHO)}, {s(S_T1)}, {s(S_T2)}
    s_mul_i32 {s(S_RHO)}, {s(S_RHO)}, {4 if g.opts.get("krot", 0) else 0}
    s_lshl_b32 {s(S_T1)}, {s(S_RHO)}, 10
    v_add_u32 {v(VK[0])}, {s(S_T1)}, {v(V_L16)}
    s_add_u32 {s(S_T1)}, {s(S_T1)}, 4096
    s_cmp_eq_u32 {s(S_T1)}, 12288
    s_cselect_b32 {s(S_T1)}, 0, {s(S_T1)}
    v_add_u32 {v(VK[1])}, {s(S_T1)}, {v(V_L16)}
    s_add_u32 {s(S_T1)}, {s(S_T1)}, 4096
    s_cmp_eq_u32 {s(S_T1)}, 12288
    s_cselect_b32 {s(S_T1)}, 0, {s(S_T1)}
    v_add_u32 {v(VK[2])}, {s(S_T1)}, {v(V_L16)}
    s_mul_i32 {s(S_T1)}, {s(S_W)}, 3
    s_add_u32 {s(S_T1)}, {s(S_T1)}, 12
    s_sub_u32 {s(S_RHO)}, {s(S_T1)}, {s(S_RHO)}
    v_add_u32 {v(V_L16H)}, 4096, {v(V_L16)}
    v_lshlrev_b32 {v(V_L8)}, 3, {v(V_L)}
    v_xor_b32 {v(T0)}, {s(S_RH2)}, {v(V_G)}
    v_lshrrev_b32 {v(T1)}, 3, {v(V_I)}
    v_lshl_add_u32 {v(T1)}, {v(T0)}, 1, {v(T1)}
    v_mul_u32_u24 {v(T1)}, 768, {v(T1)}
    v_and_b32 {v(T0)}, 7, {v(V_I)}
    v_lshl_add_u32 {v(VST)}, {v(T0)}, 3, {v(T1)}
    s_mul_i32 {s(S_STX)}, {s(S_G8)}, {6*32*128}
    s_mul_i32 {s(S_T1)}, {s(S_W)}, {48*128}
    s_add_u32 {s(S_STX)}, {s(S_STX)}, {s(S_T1)}
    s_add_u32 {s(S_STX)}, {s(S_STX)}, {WS_STX}
    s_mul_i32 {s(S_T1)}, {s(S_W)}, 768
    s_add_u32 {s(S_T1)}, {s(S_T1)}, {L_ST}
    v_lshlrev_b32 {v(T0)}, 2, {v(V_L)}
    v_add_u32 {v(VTB)}, {s(S_T1)}, {v(T0)}
    v_lshlrev_b32 {v(V_I8)}, 3, {v(V_I)}
    v_lshlrev_b32 {v(VTB+1)}, 4, {v(V_G)}
    v_add_u32 {v(VTB+2)}, {s(S_T1)}, {v(VTB+1)}
    s_lshl_b32 {s(S_T3)}, {s(S_G8)}, 2
    s_add_u32 {s(S_T3)}, {s(S_T3)}, {s(S_W)}
    s_mul_i32 {s(S_T3)}, {s(S_T3)}, 49152
    s_add_u32 {s(S_T3)}, {s(S_T3)}, {WS_X1}
    s_mul_i32 {s(S_T1)}, {s(S_RH2)}, 12288
    s_add_u32 {s(S_KS[0])}, {s(S_T3)}, {s(S_T1)}
    s_add_u32 {s(S_KS[1])}, {s(S_KS[0])}, 12288
    s_sub_u32 {s(S_KS[2])}, {s(S_T3)}, {s(S_T1)}
    s_add_u32 {s(S_KS[2])}, {s(S_KS[2])}, 24576
    s_add_u32 {s(S_KS[3])}, {s(S_KS[2])}, 12288
    s_bfe_u32 {s(S_T1)}, {s(S_J)}, 0x20002
    s_sub_u32 {s(S_R1)}, {s(S_T1)}, {s(S_W)}
    s_mul_i32 {s(S_R1)}, {s(S_R1)}, 49152
    s_add_u32 {s(S_R1)}, {s(S_R1)}, {s(S_KS[0])}
    s_and_b32 {s(S_T1)}, {s(S_W)}, 1
    s_mul_i32 {s(S_T1)}, {s(S_T1)}, 12288
    s_add_u32 {s(S_R1)}, {s(S_R1)}, {s(S_T1)}
    s_and_b32 {s(S_T1)}, {s(S_J)}, 3
    s_mul_i32 {s(S_T1)}, {s(S_T1)}, 3072
    s_add_u32 {s(S_R1)}, {s(S_R1)}, {s(S_T1)}
    s_lshr_b32 {s(S_T1)}, {s(S_W)}, 1
    s_lshl_b32 {s(S_T1)}, {s(S_T1)}, 10
    s_add_u32 {s(S_R0)}, {s(S_T1)}, {s(S_R1)}
    s_lshl_b32 {s(S_FL)}, s2, 7
    s_lshl_b32 {s(S_T1)}, {s(S_W)}, 2
    s_add_u32 {s(S_FL)}, {s(S_FL)}, {s(S_T1)}
    s_add_u32 {s(S_FL)}, {s(S_FL)}, {WS_F2}
    s_bfe_u32 {s(S_T3)}, {s(S_J)}, 0x30001
    s_mul_i32 {s(S_WD0)}, {s(S_T3)}, 73728
    s_mul_i32 {s(S_T1)}, {s(S_W)}, 18432
    s_add_u32 {s(S_WD0)}, {s(S_WD0)}, {s(S_T1)}
    s_add_u32 {s(S_WD0)}, {s(S_WD0)}, {WS_WS2}
    s_mul_i32 {s(S_CP0)}, {s(S_T3)}, 3072
    s_add_u32 {s(S_CP0)}, {s(S_CP0)}, {WS_CSP}
    s_and_b32 {s(S_T2)}, {s(S_J)}, 1
    s_lshl_b32 {s(S_T1)}, {s(S_T2)}, 10
    s_add_u32 {s(S_WD1)}, {s(S_WD0)}, {s(S_T1)}
    s_lshl_b32 {s(S_T1)}, {s(S_T2)}, 12
    s_add_u32 {s(S_WD0)}, {s(S_WD0)}, {s(S_T1)}
    s_lshl_b32 {s(S_T1)}, {s(S_T2)}, 9
    s_add_u32 {s(S_CP1)}, {s(S_CP0)}, {s(S_T1)}
    s_lshl_b32 {s(S_T1)}, {s(S_T2)}, 11
    s_add_u32 {s(S_CP0)}, {s(S_CP0)}, {s(S_T1)}
    """)
    g(f"""
    s_lshl_b32 {s(S_O0)}, {s(S_G8)}, 2
    s_add_u32 {s(S_O0)}, {s(S_O0)}, {s(S_RH2)}
    s_lshl_b32 {s(S_O0)}, {s(S_O0)}, 1
    s_add_u32 {s(S_O0)}, {s(S_O0)}, {s(S_W)}
    s_mul_i32 {s(S_O1)}, {s(S_O0)}, 24576
    s_mul_i32 {s(S_T1)}, {s(S_T3)}, 3072
    s_add_u32 {s(S_O1)}, {s(S_O1)}, {s(S_T1)}
    s_add_u32 {s(S_O1)}, {s(S_O1)}, {WS_QP}
    s_lshl_b32 {s(S_T1)}, {s(S_T2)}, 3
    s_add_u32 {s(S_O2)}, {s(S_O1)}, {s(S_T1)}
    s_add_u32 {s(S_O2)}, {s(S_O2)}, 1024
    s_lshl_b32 {s(S_T1)}, {s(S_T2)}, 11
    s_add_u32 {s(S_O1)}, {s(S_O1)}, {s(S_T1)}
    s_lshl_b32 {s(S_O0)}, {s(S_O0)}, 10
    s_lshl_b32 {s(S_T1)}, {s(S_T3)}, 7
    s_add_u32 {s(S_O0)}, {s(S_O0)}, {s(S_T1)}
    s_lshl_b32 {s(S_T1)}, {s(S_T2)}, 2
    s_add_u32 {s(S_O0)}, {s(S_O0)}, {s(S_T1)}
    s_add_u32 {s(S_O0)}, {s(S_O0)}, {WS_SQ}
    s_bitcmp0_b32 {s(S_J)}, 3
    s_cbranch_scc1 {g.label("q") if False else "L_p2s_%d" % g.uid}
    s_lshl_b32 {s(S_O1)}, {s(S_G8)}, 2
    s_add_u32 {s(S_O1)}, {s(S_O1)}, {s(S_T3)}
    s_sub_u32 {s(S_O1)}, {s(S_O1)}, 4
    s_mul_i32 {s(S_O1)}, {s(S_O1)}, 49152
    s_lshl_b32 {s(S_T1)}, {s(S_W)}, 2
    s_add_u32 {s(S_T1)}, {s(S_T1)}, {s(S_RH2)}
    s_mul_i32 {s(S_T1)}, {s(S_T1)}, 3072
    s_add_u32 {s(S_O1)}, {s(S_O1)}, {s(S_T1)}
    s_add_u32 {s(S_O1)}, {s(S_O1)}, {WS_VP}
    s_lshl_b32 {s(S_T1)}, {s(S_T2)}, 10
    s_add_u32 {s(S_O2)}, {s(S_O1)}, {s(S_T1)}
    s_lshl_b32 {s(S_T1)}, {s(S_T2)}, 12
    s_add_u32 {s(S_O1)}, {s(S_O1)}, {s(S_T1)}
    L_p2s_{g.uid}:
    """)
    g.uid += 1


KORD = [(sl, ks) for ks in range(12) for sl in range(2)] + [(sl, ks) for sl in (2, 3) for ks in range(12)]
KL = ([f"buffer_load_dwordx4 {kreg(sl,ks)}, {v(VK[ks//4])}, {s(SRD_WS,4)}, {s(S_KS[sl])} offen offset:{(ks%4)*1024} sc1"
       for sl, ks in KORD] +
      [f"buffer_load_dwordx4 {v(V_RES,4)}, {v(V_RSA)}, {s(SRD_WS,4)}, {s(S_R0)} offen sc1",
       f"buffer_load_dwordx4 {v(V_RES+4,4)}, {v(V_RSA)}, {s(SRD_WS,4)}, {s(S_R1)} offen offset:2048 sc1"])


def colsums(g):
    CT = V_ACC + 32
    for c in range(3):
        g(f"v_add_f32 {v(CSL+4*c)}, {v(CSL+4*c)}, {v(CSL+4*c+1)}")
    for sw in ("v_permlane16_swap_b32", "v_permlane32_swap_b32"):
        for c in range(3):
            g(f"v_mov_b32 {v(CSL+4*c+1)}, {v(CSL+4*c)}")
        for c in range(3):
            g(f"{sw} {v(CSL+4*c)}, {v(CSL+4*c+1)}")
        for c in range(3):
            g(f"v_add_f32 {v(CSL+4*c)}, {v(CSL+4*c)}, {v(CSL+4*c+1)}")
    for c in range(3):
        colsum_pack(g, CSL + 4 * c, CT + 2 * c)


def p2(g):
    ACC = V_ACC
    CS = V_ACC + 24
    CT = V_ACC + 32
    RT = 232
    MU2 = [V_MU, 240]
    SC2 = [V_T0, 242]
    STP = V_MISC
    KM, KR, KB = V_MISC + 12, V_MISC + 13, V_MISC + 20
    g("L_p2:")
    g.stamp('early')
    ws2_dma(g)
    g("L_p2c:")

    def stx():
        for cb in range(6):
            g(f"buffer_load_dwordx2 {v(STP+2*cb,2)}, {v(VST)}, {s(SRD_WS,4)}, {s(S_STX)} offen offset:{cb*128} sc1")
    FXW = g.opts.get("fxw", 1)
    p3_setup(g)
    p3_setup2(g)
    g("L_p2d:")

    def qstores(sc, P):
        g(f"""
        s_add_u32 {s(S_T1)}, {s(S_O1)}, 12288
        s_add_u32 {s(S_T2)}, {s(S_O2)}, 12288
        buffer_store_dwordx4 {v(P[0],4)}, {v(V_L16)}, {s(SRD_WS,4)}, {s(S_O1)} offen{sc}
        buffer_store_dwordx4 {v(P[1],4)}, {v(V_L16)}, {s(SRD_WS,4)}, {s(S_T1)} offen{sc}
        buffer_store_dwordx2 {v(P[2],2)}, {v(V_L16)}, {s(SRD_WS,4)}, {s(S_O2)} offen{sc}
        buffer_store_dwordx2 {v(P[3],2)}, {v(V_L16)}, {s(SRD_WS,4)}, {s(S_T2)} offen{sc}
        """)
    g(f"""
    s_bitcmp1_b32 {s(S_J)}, 3
    s_cbranch_scc1 L_nomark
    """)
    PR = g.opts.get("pr", 0)
    nt = ntf(g, 32)
    if PR:
        g(f"""
        s_add_u32 {s(S_T1)}, {s(S_O1)}, 12288
        s_add_u32 {s(S_T2)}, {s(S_O2)}, 12288
        buffer_load_dword {v(254)}, {v(V_L16)}, {s(SRD_WS,4)}, {s(S_O1)} offen sc1{nt}
        buffer_load_dword {v(254)}, {v(V_L16)}, {s(SRD_WS,4)}, {s(S_T1)} offen sc1{nt}
        buffer_load_dword {v(254)}, {v(V_L16)}, {s(SRD_WS,4)}, {s(S_O2)} offen sc1{nt}
        buffer_load_dword {v(254)}, {v(V_L16)}, {s(SRD_WS,4)}, {s(S_T2)} offen sc1{nt}
        buffer_load_dword {v(254)}, {v(V_I8)}, {s(SRD_WS,4)}, {s(S_O0)} offen sc1{nt}
        buffer_load_dword {v(254)}, {v(V_I8)}, {s(SRD_WS,4)}, {s(S_O0)} offen offset:512 sc1{nt}
        """)
    for q in range(4):
        g(f"v_mov_b32 {v(NANQ+q)}, -1")
    both_modes(g, lambda sc: qstores(sc, [NANQ] * 4))
    assert FXW == 1
    g(f"""
    s_waitcnt vmcnt({13 + 6 * PR})
    s_branch L_marked
    L_nomark:
    """)
    if PR:
        g(f"""
        buffer_load_dword {v(254)}, {v(V_L16)}, {s(SRD_WS,4)}, {s(S_O1)} offen sc1{nt}
        buffer_load_dword {v(254)}, {v(V_L16)}, {s(SRD_WS,4)}, {s(S_O1)} offen offset:1024 sc1{nt}
        buffer_load_dword {v(254)}, {v(V_L16)}, {s(SRD_WS,4)}, {s(S_O2)} offen offset:2048 sc1{nt}
        buffer_load_dword {v(254)}, {v(V_ZERO)}, {s(SRD_WS,4)}, {s(S_FL)} offen sc1{nt}
        """)
    g(f"""
    s_waitcnt vmcnt({9 + 4 * PR})
    L_marked:
    """)
    g.stamp('wsland')
    colsums(g)
    g(f"""
    s_mov_b32 {s(S_SPIN)}, {SPIN_LIMIT}
    s_mov_b32 {s(S_RETRY)}, 64
    {'s_branch L_px1' if FXW == 0 else ''}
    L_px:
    """)
    stx()
    g("L_px1:")
    g("s_waitcnt vmcnt(0)")
    for cb in range(6):
        for h in range(2):
            g(f"v_xor_b32 {v(STP+2*cb+h)}, {s(S_TAG+h)}, {v(STP+2*cb+h)}")
    g(f"v_or3_b32 {v(V_T0)}, {v(STP)}, {v(STP+1)}, {v(STP+2)}")
    for q in range(3, 11, 2):
        g(f"v_or3_b32 {v(V_T0)}, {v(V_T0)}, {v(STP+q)}, {v(STP+q+1)}")
    g(f"""
    v_or_b32 {v(V_T0)}, {v(V_T0)}, {v(STP+11)}
    v_and_b32 {v(V_T0)}, 0xff, {v(V_T0)}
    v_cmp_ne_u32 vcc, 0, {v(V_T0)}
    s_cbranch_vccz L_pxok
    {'s_sleep %d' % g.opts.get("slp", 0) if g.opts.get("slp", 0) else ''}
    s_sub_u32 {s(S_SPIN)}, {s(S_SPIN)}, 1
    s_cbranch_scc0 L_px
    L_pxok:
    """)
    g.stamp('x1ok')
    K0N = g.opts.get("k0n", 12)
    for x in KL[:K0N]:
        g(x)
    g(f"""
    s_barrier
    s_bitcmp0_b32 {s(S_J)}, 3
    s_cbranch_scc0 L_p2_v
    """)

    def stats(typ):
        for c in range(1, 6):
            g(f"v_pk_add_f32 {v(STP,2)}, {v(STP,2)}, {v(STP+2*c,2)}")
        mean_rstd(g, STP, STP + 1, KM, KR)
        g.nop(1)
        g(f"v_mul_f32 {v(KB)}, {v(KM)}, {v(KR)}")
        g(f"""
        ds_write_b32 {v(VTB)}, {v(KR)}
        ds_write_b32 {v(VTB)}, {v(KB)} offset:256
        """)
        for src, d0, d1 in ((KM, V_MEAN, STP + 2), (KR, V_R, STP + 3))[:2 - typ]:
            g(f"v_mov_b32 {v(d0)}, {v(src)}")
            g(f"v_mov_b32 {v(d1)}, {v(src)}")
            g.nop(2)
            g(f"v_permlane16_swap_b32 {v(d0)}, {v(d1)}")
            g.nop(1)
            g(f"v_mov_b32 {v(STP+4)}, {v(d0)}")
            g(f"v_mov_b32 {v(STP+5)}, {v(d1)}")
            g.nop(2)
            g(f"v_permlane32_swap_b32 {v(d0)}, {v(STP+4)}")
            g(f"v_permlane32_swap_b32 {v(d1)}, {v(STP+5)}")
            g.nop(1)
        mu_operand(g, V_MEAN, MU2[0])
        mu_operand(g, STP + 2, MU2[1])
        if typ == 0:
            for u, r in ((0, V_R), (1, STP + 3)):
                g(f"v_mul_f32 {v(SC2[u])}, {f2u(SCALE_LOG2E):#x}, {v(r)}")
                g(f"v_mul_f32 {v(SC2[u]+1)}, {f2u(SCALE_LOG2E):#x}, {v(r)}")
        else:
            g("s_waitcnt lgkmcnt(0)")
            for u in range(2):
                g(f"ds_read_b128 {v(RT+4*u,4)}, {v(VTB+2)} offset:{u*64}")
    KIN = g.opts.get("kin", 24)
    KA = g.opts.get("kafter", 4)
    KB4 = g.opts.get("kpoll", 0)
    for typ in range(2):
        if typ == 1:
            g("L_p2_v:")
        stats(typ)
        g("s_waitcnt lgkmcnt(0)")
        g(f"L_p2_go{typ}:")
        g.stamp('k0')
        items = []
        nk = K0N
        urgent = 24 - K0N
        slots = [q * g.opts.get("ku", 2) for q in range(urgent)]
        s0 = slots[-1] + 2 if slots else 0
        slots += [s0 + round((q + 0.5) * (72 - s0) / max(KIN - urgent, 1)) for q in range(KIN - urgent)]
        for ks in range(12):
            for c in range(3):
                n = ks * 3 + c
                b = V_BUF + (n % 16) * 4
                rd = [f"ds_read_b128 {v(b,4)}, {v(V_L16)} offset:{n*1024}"]
                cm = []
                for u in range(2):
                    d = ACC + 12 * u + 4 * c
                    if c == 0:
                        assert nk - 1 - (2 * ks + u) >= 0
                        cm.append(f"s_waitcnt vmcnt({nk - 1 - (2 * ks + u)})")
                    A, B = (v(b, 4), kreg(u, ks)) if typ == 0 else (kreg(u, ks), v(b, 4))
                    cm.append(f"v_mfma_f32_16x16x32_bf16 {v(d,4)}, {A}, {B}, {'0' if ks == 0 else v(d,4)}")
                    for _ in range(slots.count(2 * n + u)):
                        cm.append(KL[nk])
                        nk += 1
                items.append((rd, cm))
        pipelined(g, items, 8, group=1)
        g.stamp('p2gemm')
        PK = V_BUF
        for u in range(2):
            for c in range(3):
                d = ACC + 12 * u + 4 * c
                A, B = (v(CT + 2 * c, 2), v(MU2[u], 2)) if typ == 0 else (v(MU2[u], 2), v(CT + 2 * c, 2))
                mfma16(g, v(d, 4), A, B)
        g.nop(3)
        if typ == 0:
            for i in range(6):
                g(f"v_pk_mul_f32 {v(ACC+2*i,2)}, {v(ACC+2*i,2)}, {v(SC2[0],2)}")
            g(f"v_cmp_u_f32 vcc, {v(ACC)}, {v(ACC+12)}")
            g("s_cbranch_vccnz L_p2_redo")
            g("L_p2_q_on:")
            for i in range(6, 12):
                g(f"v_pk_mul_f32 {v(ACC+2*i,2)}, {v(ACC+2*i,2)}, {v(SC2[1],2)}")
            for u in range(2):
                for i in range(6):
                    g(f"v_cvt_pk_bf16_f32 {v(PK+8*u+i)}, {v(ACC+12*u+2*i)}, {v(ACC+12*u+2*i+1)}")
            g.nop(1)
            for u in range(2):
                mfma32(g, v(CS + 4 * u, 4), v(V_ONES, 4), v(PK + 8 * u, 4), "0")
            for u in range(2):
                mfma16(g, v(CS + 4 * u, 4), v(V_ONES, 2), v(PK + 8 * u + 4, 2))

            def st(sc):
                qstores(sc, [PK, PK + 8, PK + 4, PK + 12])
                g(f"""
                v_bfi_b32 {v(CS)}, {v(V_MASK)}, {v(CS)}, {s(S_TAG+2)}
                v_bfi_b32 {v(CS+4)}, {v(V_MASK)}, {v(CS+4)}, {s(S_TAG+2)}
                {'s_sleep 60' if False else ''}
                s_mov_b64 exec, {s(S_G0,2)}
                buffer_store_dword {v(CS)}, {v(V_I8)}, {s(SRD_WS,4)}, {s(S_O0)} offen{sc}
                buffer_store_dword {v(CS+4)}, {v(V_I8)}, {s(SRD_WS,4)}, {s(S_O0)} offen offset:512{sc}
                s_mov_b64 exec, -1
                """)
            if g.opts.get("dbgearly", 0) & 8:
                g.nop(8)
                g(f"""
                v_bfi_b32 {v(CS+1)}, {v(V_MASK)}, {v(CS)}, {s(S_TAG+2)}
                v_bfi_b32 {v(CS+5)}, {v(V_MASK)}, {v(CS+4)}, {s(S_TAG+2)}
                s_mov_b64 exec, {s(S_G0,2)}
                buffer_store_dword {v(CS+1)}, {v(V_I8)}, {s(SRD_WS,4)}, {s(S_O0)} offen sc1
                buffer_store_dword {v(CS+5)}, {v(V_I8)}, {s(SRD_WS,4)}, {s(S_O0)} offen offset:512 sc1
                s_mov_b64 exec, -1
                s_waitcnt vmcnt(0)
                s_sleep 100
                """)
            both_modes(g, st)
            g.stamp('p2st')
            for x in KL[nk:nk + KA]:
                g(x)
            g("s_branch L_p2_done")
        else:
            for c in range(3):
                for h in range(2):
                    g(f"v_pk_mul_f32 {v(ACC+4*c+2*h,2)}, {v(ACC+4*c+2*h,2)}, {v(RT+2*h,2)}")
            g(f"""
            v_pk_add_f32 {v(CS,2)}, {v(ACC,2)}, {v(ACC+12,2)}
            v_pk_add_f32 {v(CS+2,2)}, {v(ACC+2,2)}, {v(ACC+14,2)}
            v_pk_add_f32 {v(CS,2)}, {v(CS,2)}, {v(CS+2,2)}
            v_cmp_u_f32 vcc, {v(CS)}, {v(CS+1)}
            s_cbranch_vccnz L_p2_redo
            L_p2_v_on:
            """)
            for c in range(3):
                for h in range(2):
                    g(f"v_pk_mul_f32 {v(ACC+12+4*c+2*h,2)}, {v(ACC+12+4*c+2*h,2)}, {v(RT+4+2*h,2)}")
            for c in range(3):
                for u in range(2):
                    for h in range(2):
                        d = ACC + 12 * u + 4 * c + 2 * h
                        g(f"v_cvt_pk_bf16_f32 {v(PK+4*c+2*u+h)}, {v(d)}, {v(d+1)}")

            def st(sc):
                g(f"""
                buffer_store_dwordx4 {v(PK,4)}, {v(V_L16)}, {s(SRD_WS,4)}, {s(S_O1)} offen{sc}
                buffer_store_dwordx4 {v(PK+4,4)}, {v(V_L16)}, {s(SRD_WS,4)}, {s(S_O1)} offen offset:1024{sc}
                buffer_store_dwordx4 {v(PK+8,4)}, {v(V_L16)}, {s(SRD_WS,4)}, {s(S_O2)} offen offset:2048{sc}
                """)
            both_modes(g, st)
    g.stamp('p2st')
    for x in KL[nk:nk + KA]:
        g(x)
    g(f"s_waitcnt vmcnt({KA})")
    g("s_mov_b64 exec, 1")
    both_modes(g, lambda sc: g(f"buffer_store_dword {v(V_NONCE)}, {v(V_ZERO)}, {s(SRD_WS,4)}, {s(S_FL)} offen{sc}"))
    g("s_mov_b64 exec, -1")
    g("L_p2_done:")
    g.stamp('p2flag')
    for x in KL[nk + KA:nk + KA + KB4]:
        g(x)
    for sl in range(4):
        g(f"ds_read_b128 {v(RK+4*sl,4)}, {v(VTB+2)} offset:{sl*64}")
        g(f"ds_read_b128 {v(BK+4*sl,4)}, {v(VTB+2)} offset:{256+sl*64}")
    return nk + KA + KB4


S_Q, S_SQ, S_V0, S_V1 = 0, 1, 72, 75


def p3_setup(g):
    g(f"""
    s_and_b32 {s(S_T5)}, {s(S_J)}, 3
    s_bfe_u32 {s(S_T4)}, {s(S_J)}, 0x20002
    s_lshl_b32 {s(S_P3F)}, {s(S_G8)}, 7
    s_add_u32 {s(S_P3F)}, {s(S_P3F)}, {WS_F2}
    v_and_b32 {v(V_T2)}, 7, {v(V_L)}
    v_lshlrev_b32 {v(V_T2)}, 10, {v(V_T2)}
    s_lshl_b32 {s(S_T1)}, {s(S_RH2)}, 13
    s_lshl_b32 {s(S_T2)}, {s(S_T4)}, 2
    s_add_u32 {s(S_T1)}, {s(S_T1)}, {s(S_T2)}
    v_add_u32 {v(V_P3F)}, {s(S_T1)}, {v(V_T2)}
    """)


def p3_setup2(g):
    g(f"""
    v_and_b32 {v(V_T2)}, 1, {v(V_L)}
    v_lshlrev_b32 {v(V_T2)}, 10, {v(V_T2)}
    v_and_b32 {v(V_T3)}, 2, {v(V_L)}
    v_lshl_add_u32 {v(V_T2)}, {v(V_T3)}, 13, {v(V_T2)}
    s_lshl_b32 {s(S_T1)}, {s(S_T5)}, 11
    s_lshl_b32 {s(S_T2)}, {s(S_W)}, 2
    s_add_u32 {s(S_T1)}, {s(S_T1)}, {s(S_T2)}
    s_add_u32 {s(S_T1)}, {s(S_T1)}, 8192
    v_add_u32 {v(V_P3V)}, {s(S_T1)}, {v(V_T2)}
    s_lshl_b32 {s(11)}, {s(S_G8)}, 2
    s_add_u32 {s(13)}, {s(11)}, {s(S_T5)}
    s_add_u32 {s(11)}, {s(11)}, {s(S_RH2)}
    s_lshl_b32 {s(11)}, {s(11)}, 1
    s_add_u32 {s(11)}, {s(11)}, {s(S_T4)}
    s_mul_i32 {s(S_Q)}, {s(11)}, 24576
    s_mul_i32 {s(S_T2)}, {s(S_W)}, 3072
    s_add_u32 {s(S_Q)}, {s(S_Q)}, {s(S_T2)}
    s_add_u32 {s(S_Q)}, {s(S_Q)}, {WS_QP}
    s_lshl_b32 {s(S_SQ)}, {s(11)}, 10
    s_add_u32 {s(S_SQ)}, {s(S_SQ)}, {WS_SQ}
    s_mul_i32 {s(S_V1)}, {s(13)}, 49152
    s_mul_i32 {s(S_T2)}, {s(S_W)}, 12288
    s_add_u32 {s(S_V1)}, {s(S_V1)}, {s(S_T2)}
    s_add_u32 {s(S_V1)}, {s(S_V1)}, {WS_VP}
    s_mul_i32 {s(S_T2)}, {s(S_RH2)}, 3072
    s_add_u32 {s(S_V0)}, {s(S_V1)}, {s(S_T2)}
    s_sub_u32 {s(S_V1)}, {s(S_V1)}, {s(S_T2)}
    s_add_u32 {s(S_V1)}, {s(S_V1)}, 6144
    s_add_u32 {s(S_Q2)}, {s(S_Q)}, 12288
    v_add_u32 {v(V_AD)}, {L_WVO}, {v(V_L16)}
    """)
    for q in range(3):
        kpos(g, q, 1024, L_WVO - q * 1024)
        g(f"s_mov_b32 {s(S_QM[q])}, m0")
    g(f"""
    v_bfe_u32 {v(V_T2)}, {v(V_I)}, 1, 2
    v_xor_b32 {v(V_T2)}, {v(V_T2)}, {v(V_G)}
    v_lshl_add_u32 {v(V_T2)}, {v(V_I)}, 2, {v(V_T2)}
    v_lshlrev_b32 {v(V_T2)}, 4, {v(V_T2)}
    s_lshl_b32 {s(S_T1)}, {s(S_W)}, 11
    v_add_u32 {v(V_AD+1)}, {s(S_T1)}, {v(V_T2)}
    s_lshl_b32 {s(S_T1)}, {s(S_W)}, 8
    s_add_u32 {s(S_T1)}, {s(S_T1)}, {L_ML}
    v_lshlrev_b32 {v(V_T3)}, 3, {v(V_I)}
    v_add_u32 {v(V_AD+2)}, {s(S_T1)}, {v(V_T3)}
    s_and_b32 {s(13)}, {s(S_W)}, 1
    s_lshl_b32 {s(S_T1)}, {s(13)}, 7
    s_add_u32 {s(S_T1)}, {s(S_T1)}, {L_ML}
    v_lshrrev_b32 {v(V_T4)}, 2, {v(V_L)}
    v_lshlrev_b32 {v(V_T3)}, 3, {v(V_T4)}
    v_add_u32 {v(V_AD+3)}, {s(S_T1)}, {v(V_T3)}
    v_bfe_u32 {v(V_T3)}, {v(V_L)}, 3, 2
    v_xor_b32 {v(V_T3)}, {v(V_T3)}, {v(V_L)}
    v_lshlrev_b32 {v(V_T3)}, 4, {v(V_T3)}
    s_lshl_b32 {s(S_T1)}, {s(S_W)}, 13
    v_add_u32 {v(213)}, {s(S_T1)}, {v(V_T3)}
    v_and_b32 {v(V_T3)}, 3, {v(V_L)}
    v_lshlrev_b32 {v(V_T2)}, 4, {v(V_T4)}
    v_lshl_add_u32 {v(V_RSA)}, {v(V_T3)}, 8, {v(V_T2)}
    s_lshl_b32 {s(S_U1)}, {s(S_T4)}, 2
    s_add_u32 {s(S_U1)}, {s(S_U1)}, {s(S_RH2)}
    s_add_u32 {s(S_U1)}, {s(S_U1)}, {s(13)}
    s_lshl_b32 {s(S_U1)}, {s(S_U1)}, 4
    s_lshl_b32 {s(S_T2)}, {s(S_G8)}, 8
    s_add_u32 {s(S_U1)}, {s(S_U1)}, {s(S_T2)}
    s_mul_i32 {s(S_U1)}, {s(S_U1)}, 768
    s_mul_i32 {s(S_T2)}, {s(S_T5)}, 192
    s_add_u32 {s(S_U1)}, {s(S_U1)}, {s(S_T2)}
    s_lshr_b32 {s(S_T2)}, {s(S_W)}, 1
    s_lshl_b32 {s(S_T2)}, {s(S_T2)}, 6
    s_add_u32 {s(S_U0)}, {s(S_T2)}, {s(S_U1)}
    v_mul_u32_u24 {v(V_T4)}, 768, {v(V_T4)}
    v_lshl_add_u32 {v(A2[0])}, {v(V_T3)}, 4, {v(V_T4)}
    """)


def kcheck(g):
    for n in range(24):
        mfma32(g, v(V_ACC + 32 + 4 * (n & 1), 4), v(V_ONES, 4), kreg(2 + n // 12, n % 12), "0" if n < 2 else None)


def wbl2(g):
    sk = g.label("nowb")
    g(f"""
    s_lshl_b32 {s(S_T0)}, {s(S_J)}, 2
    s_add_u32 {s(S_T0)}, {s(S_T0)}, {s(S_W)}
    s_and_b32 {s(S_T0)}, {s(S_T0)}, {g.opts.get("wbm", 127)}
    s_cmp_lg_u32 {s(S_T0)}, 3
    s_cbranch_scc1 {sk}
    buffer_wbl2 sc1
    {sk}:
    """)


def p3(g, nk):
    SA = V_ACC
    LS = V_ACC + 32
    MX = V_ACC + 40
    SQ = V_ACC + 42
    OA = V_BUF
    QB = V_BUF + 32
    PF = V_XF
    BS = OA
    V_RW, V_MW, V_MR, V_RR, V_OO = V_AD + 1, V_AD + 2, V_AD + 3, 213, A2[0]
    g(f"""
    s_mov_b32 {s(S_SPIN)}, {SPIN_LIMIT}
    L_e3:
    """)
    for u in range(2):
        g(f"buffer_load_dwordx2 {v(SG+4+2*u,2)}, {v(V_L8)}, {s(SRD_WS,4)}, {s(S_SQ)} offen offset:{u*512} sc1")
    g("s_waitcnt vmcnt(0)")
    for q in range(4):
        g(f"v_xor_b32 {v(SG+4+q)}, {s(S_TAG+2)}, {v(SG+4+q)}")
    g(f"""
    v_or3_b32 {v(V_T0)}, {v(SG+4)}, {v(SG+5)}, {v(SG+6)}
    v_or_b32 {v(V_T0)}, {v(V_T0)}, {v(SG+7)}
    v_and_b32 {v(V_T0)}, 0xff, {v(V_T0)}
    v_cmp_ne_u32 vcc, 0, {v(V_T0)}
    s_cbranch_vccz L_e3ok
    s_sub_u32 {s(S_SPIN)}, {s(S_SPIN)}, 1
    s_cbranch_scc0 L_e3
    L_e3ok:
    """)
    g.stamp('e3ok')

    def qdma(u, so):
        for q in range(3):
            g(f"s_add_u32 m0, {s(S_QM[q])}, {u*12288}")
            g("s_nop 0")
            g(f"buffer_load_dwordx4 {v(V_L16)}, {s(SRD_WS,4)}, {s(so)} offen offset:{q*1024} sc1 lds")
    qdma(0, S_Q)
    q1 = capture(g, lambda: qdma(1, S_Q2))
    early = ["\n".join(q1[3*q:3*q+3]) for q in range(3)] + [f"buffer_load_dword {v(V_T7)}, {v(V_P3V)}, {s(SRD_WS,4)}, {s(S_P3F)} offen sc1"]
    vl = []
    for pr, so in ((0, S_V0), (1, S_V1)):
        for c in range(6):
            vo, off = (V_L16, c * 1024) if c < 4 else (V_L16H, (c - 4) * 1024)
            vl.append(f"buffer_load_dwordx4 {a(A_V+(pr*6+c)*4,4)}, {v(vo)}, {s(SRD_WS,4)}, {s(so)} offen offset:{off} sc1")
    late = KL[nk:48] + vl + KL[48:]
    nkl = 48 - min(nk, 48)
    late = early + late
    PRE = g.opts.get("p3pre", 4)
    for x in late[:PRE]:
        g(x)
    g("s_waitcnt lgkmcnt(0)")
    g.stamp('q1')
    for u in range(2):
        g(f"v_add_f32 {v(SQ+u)}, {v(SG+4+2*u)}, {v(SG+5+2*u)}")
    for u in range(2):
        g(f"v_mov_b32 {v(SG+u)}, {v(SQ+u)}")
    g.nop(1)
    for u in range(2):
        g(f"v_permlane16_swap_b32 {v(SQ+u)}, {v(SG+u)}")
    for u in range(2):
        g(f"v_add_f32 {v(SQ+u)}, {v(SQ+u)}, {v(SG+u)}")
    for u in range(2):
        g(f"v_mov_b32 {v(SG+u)}, {v(SQ+u)}")
    g.nop(1)
    for u in range(2):
        g(f"v_permlane32_swap_b32 {v(SQ+u)}, {v(SG+u)}")
    for u in range(2):
        g(f"v_add_f32 {v(SG+2+2*u)}, {v(SQ+u)}, {v(SG+u)}")
        g(f"v_add_f32 {v(SG+3+2*u)}, {v(SQ+u)}, {v(SG+u)}")
    for u in range(2):
        for i in range(8):
            g(f"v_pk_mul_f32 {v(BS+16*u+2*i,2)}, {v(BK+2*i,2)}, {v(SG+2+2*u,2)}")
    g.stamp('q2')
    g(f"s_waitcnt vmcnt({PRE})")
    g.stamp('q3')
    g("s_barrier")
    g.stamp('qland')

    def softmax_lines(u, pk):
        d = SA + u * 16
        TMP = SG + 4 * u
        L = []
        if pk:
            for i in range(8):
                L.append(f"v_pk_fma_f32 {v(d+2*i,2)}, {v(d+2*i,2)}, {v(RK+2*i,2)}, {v(BS+16*u+2*i,2)} neg_lo:[0,0,1] neg_hi:[0,0,1]")
        else:
            for i in range(16):
                L.append(f"v_fma_f32 {v(d+i)}, {v(d+i)}, {v(RK+i)}, -{v(BS+16*u+i)}")
        nf = len(L)
        L.append(f"v_max3_f32 {v(MX+u)}, {v(d)}, {v(d+1)}, {v(d+2)}")
        for i in range(3, 15, 2):
            L.append(f"v_max3_f32 {v(MX+u)}, {v(MX+u)}, {v(d+i)}, {v(d+i+1)}")
        L.append(f"v_max_f32 {v(MX+u)}, {v(MX+u)}, {v(d+15)}")
        L += capture(g, lambda: xlane_sum(g, MX + u, TMP + 2, "v_max_f32"))
        if pk:
            L.append(f"v_mov_b32 {v(TMP)}, {v(MX+u)}")
            L.append(f"v_mov_b32 {v(TMP+1)}, {v(MX+u)}")
            for i in range(8):
                L.append(f"v_pk_add_f32 {v(d+2*i,2)}, {v(d+2*i,2)}, {v(TMP,2)} neg_lo:[0,1] neg_hi:[0,1]")
        else:
            for i in range(16):
                L.append(f"v_sub_f32 {v(d+i)}, {v(d+i)}, {v(MX+u)}")
        for i in range(16):
            L.append(f"v_exp_f32 {v(d+i)}, {v(d+i)}")
        return L, nf
    OV = g.opts.get("ov", 0)
    sm0, _ = softmax_lines(0, not OV)
    items = []
    rest = list(late[PRE:])
    issued = PRE
    nk2 = nkl + 4 - PRE
    KD = g.opts.get("kd", 2)
    L0 = max(g.opts.get("l0", 4), nk2 * KD + 2)
    LSPAN = g.opts.get("lspan", 64)
    lpos = [q * KD for q in range(nk2)] + [L0 + int(q * (LSPAN - L0) / 14) for q in range(14)]
    vchk = capture(g, lambda: (g(f"""
    s_waitcnt vmcnt(@V@)
    v_cmp_ne_u32 vcc, {s(S_NONCE)}, {v(V_T7)}
    s_cbranch_vccz L_v_ok
    """), poll(g, V_P3V, s(S_P3F), s(S_NONCE), "pv"), g("L_v_ok:")))
    pos = 0
    for ph, (slots, u) in enumerate((((0, 1), 0), ((0, 1), 1), ((2, 3), 0), ((2, 3), 1))):
        for ks in range(12):
            b = QB + ((ph * 12 + ks) % 8) * 4
            rd = [f"ds_read_b128 {v(b,4)}, {v(V_AD)} offset:{u*12288+ks*1024}"]
            cm = []
            for sl in slots:
                kidx = KORD.index((sl, ks))
                if kidx >= nk and u == 0:
                    assert issued - (4 + kidx - nk) - 1 >= 0
                    cm.append(f"s_waitcnt vmcnt({issued - (4 + kidx - nk) - 1})")
                d = SA + u * 16 + sl * 4
                cm.append(f"v_mfma_f32_16x16x32_bf16 {v(d,4)}, {kreg(sl,ks)}, {v(b,4)}, {'0' if ks == 0 else v(d,4)}")
                if pos == L0:
                    cm += [x.replace("@V@", str(issued - 4)) for x in vchk]
                for _ in range(lpos.count(pos)):
                    cm.append(rest.pop(0))
                    issued += 1
                pos += 1
            items.append((rd, cm, [], issued))
    assert not rest
    QD = g.opts.get('qd', 6)
    assert items[12 - QD - 1][3] >= 3
    items[12][2].extend([f"s_waitcnt vmcnt({items[12 - QD - 1][3] - 3})", "s_barrier"])
    if g.opts.get("wb", 2) == 1:
        items[12][2].extend(capture(g, lambda: wbl2(g)))
    pipelined(g, items, QD)
    g(f"""
    L_k_chk:
    v_cmp_u_f32 {s(S_M,2)}, {v(SA+8)}, {v(SA+9)}
    v_cmp_u_f32 s[16:17], {v(SA+10)}, {v(SA+11)}
    v_cmp_u_f32 s[14:15], {v(SA+12)}, {v(SA+13)}
    v_cmp_u_f32 vcc, {v(SA+14)}, {v(SA+15)}
    s_or_b64 {s(S_M,2)}, {s(S_M,2)}, s[16:17]
    s_or_b64 vcc, vcc, s[14:15]
    s_or_b64 {s(S_M,2)}, vcc, {s(S_M,2)}
    v_cmp_u_f32 vcc, {v(SA+16)}, {v(SA+16)}
    s_or_b64 vcc, vcc, {s(S_M,2)}
    s_cbranch_scc1 L_k_redo
    L_k_ok:
    """)
    for x in sm0:
        g(x)
    g.stamp('sdone')

    def cvts(u, odd):
        L = []
        for sl in range(4):
            for h in range(2):
                dst = PF + u * 8 + (sl >> 1) * 4 + ((sl & 1) ^ odd) * 2 + h
                src = SA + u * 16 + sl * 4 + 2 * h
                L.append(f"v_cvt_pk_bf16_f32 {v(dst)}, {v(src)}, {v(src+1)}")
        return L

    def cvt_branch(u):
        g.nop(1)
        for x in cvts(u, 0):
            g(x)

    def pv_lines(u):
        L = []
        for pr in range(2):
            p = v(PF + u * 8 + pr * 4, 4)
            for c in range(6):
                d = OA + u * 24 + c * 4
                L.append(f"v_mfma_f32_16x16x32_bf16 {v(d,4)}, {a(A_V+(pr*6+c)*4,4)}, {p}, {'0' if pr == 0 else v(d,4)}")
            L.append(f"v_mfma_f32_16x16x32_bf16 {v(LS+4*u,4)}, {v(V_ONES,4)}, {p}, {'0' if pr == 0 else v(LS+4*u,4)}")
        return L
    cvt_branch(0)
    sm1, _ = softmax_lines(1, True)
    ex = sm1[-16:]
    for x in sm1[:-16]:
        g(x)
    g("s_waitcnt vmcnt(0)")
    if g.opts.get("wb", 2) == 2:
        wbl2(g)
    for x in pv_lines(0):
        g(x)
        if ex:
            g(ex.pop(0))
    for x in ex:
        g(x)
    g.stamp('smax')
    cvt_branch(1)
    OUT = V_ACC
    unp = []
    for rnd in range(2):
        for i in range(8):
            src = V_RES + 4 * rnd + (i >> 1)
            unp.append(f"v_and_b32 {v(OUT+8*rnd+i)}, 0xffff0000, {v(src)}" if i & 1 else
                       f"v_lshlrev_b32 {v(OUT+8*rnd+i)}, 16, {v(src)}")
    g(f"v_mov_b32 {v(V_T4)}, {v(MX)}")
    g(f"v_mov_b32 {v(V_T5)}, {v(LS)}")
    w0 = [f"ds_write_b128 {v(V_RW)}, {v(OA+(2*m+h)*4,4)} offset:{2*m*8192+h*1024}" for m in range(3) for h in range(2)]
    w0.append(f"ds_write_b64 {v(V_MW)}, {v(V_T4,2)}")
    for n, x in enumerate(pv_lines(1)):
        g(x)
        if n % 2 == 1:
            g(w0.pop(0))
        else:
            g(unp.pop(0))
    g.stamp('pvdone')
    for x in unp[:3]:
        g(x)
    unp = unp[3:]
    for m in range(3):
        for h in range(2):
            g(f"ds_write_b128 {v(V_RW)}, {v(OA+24+(2*m+h)*4,4)} offset:{(2*m+1)*8192+h*1024}")
            g(unp.pop(0))
    g(f"""
    v_mov_b32 {v(V_T6)}, {v(MX+1)}
    v_mov_b32 {v(V_T7)}, {v(LS+4)}
    ds_write_b64 {v(V_MW)}, {v(V_T6,2)} offset:128
    s_waitcnt lgkmcnt(0)
    s_barrier
    """)
    g.stamp('redbar')
    ML = V_ACC + 16
    FW = V_ACC + 24
    RD = V_BUF
    for w in range(4):
        g(f"ds_read_b64 {v(ML+2*w,2)}, {v(V_MR)} offset:{w*256}")
    for w in range(4):
        for h in range(2):
            g(f"ds_read_b128 {v(RD+w*8+h*4,4)}, {v(V_RR)} offset:{w*2048+h*1024}")
    g(f"""
    s_waitcnt lgkmcnt(8)
    v_max3_f32 {v(V_T3)}, {v(ML)}, {v(ML+2)}, {v(ML+4)}
    v_max_f32 {v(V_T3)}, {v(V_T3)}, {v(ML+6)}
    """)
    for w in range(4):
        g(f"v_sub_f32 {v(FW+2*w)}, {v(ML+2*w)}, {v(V_T3)}")
    for w in range(4):
        g(f"v_exp_f32 {v(FW+2*w)}, {v(FW+2*w)}")
    g(f"""
    s_waitcnt lgkmcnt(2)
    s_cmp_ge_u32 {s(S_W)}, 2
    s_cbranch_scc1 L_nord2
    """)
    for w in range(4):
        for h in range(2):
            g(f"ds_read_b128 {v(RD+32+w*8+h*4,4)}, {v(V_RR)} offset:{32768+w*2048+h*1024}")
    g(f"""
    s_waitcnt lgkmcnt(8)
    s_branch L_rd1
    L_nord2:
    s_waitcnt lgkmcnt(0)
    L_rd1:
    v_mul_f32 {v(V_T3)}, {v(FW)}, {v(ML+1)}
    v_fmac_f32 {v(V_T3)}, {v(FW+2)}, {v(ML+3)}
    v_fmac_f32 {v(V_T3)}, {v(FW+4)}, {v(ML+5)}
    v_fmac_f32 {v(V_T3)}, {v(FW+6)}, {v(ML+7)}
    v_rcp_f32 {v(V_T3)}, {v(V_T3)}
    s_nop 0
    """)
    for w in range(4):
        g(f"v_mul_f32 {v(FW+2*w)}, {v(FW+2*w)}, {v(V_T3)}")
        g(f"v_mov_b32 {v(FW+2*w+1)}, {v(FW+2*w)}")
    osc = " sc1" if g.opts.get("outsc1", 0) else (" nt" if g.opts.get("outnt", 0) else "")
    for rnd in range(2):
        if rnd == 1:
            g(f"""
            s_cmp_ge_u32 {s(S_W)}, 2
            s_cbranch_scc1 L_fin
            """)
        for w in range(4):
            if rnd == 1:
                g(f"s_waitcnt lgkmcnt({6-2*w})")
            for i in range(4):
                g(f"v_pk_fma_f32 {v(OUT+8*rnd+2*i,2)}, {v(RD+32*rnd+w*8+2*i,2)}, {v(FW+2*w,2)}, {v(OUT+8*rnd+2*i,2)}")
        PK = V_ACC + 32 + 4 * rnd
        if rnd == 0 and g.opts.get("perturb", 0):
            g(f"""
            s_or_b32 {s(S_T0)}, s2, {s(S_W)}
            s_cmp_lg_u32 {s(S_T0)}, 0
            s_cbranch_scc1 L_nopert
            s_mov_b64 exec, 1
            v_add_f32 {v(OUT)}, {f2u(g.opts["perturb"]/1000.):#x}, {v(OUT)}
            s_mov_b64 exec, -1
            L_nopert:
            """)
        for i in range(4):
            g(f"v_cvt_pk_bf16_f32 {v(PK+i)}, {v(OUT+8*rnd+2*i)}, {v(OUT+8*rnd+2*i+1)}")
        if rnd == 0:
            g(f"buffer_store_dwordx4 {v(PK,4)}, {v(V_OO)}, {s(SRD_OUT,4)}, {s(S_U0)} offen{osc}")
        else:
            g(f"buffer_store_dwordx4 {v(PK,4)}, {v(V_OO)}, {s(SRD_OUT,4)}, {s(S_U1)} offen offset:128{osc}")
    g("L_fin:")


def redo_blocks(g):
    if g.opts.get("wm", 0):
        g(f"""
        L_z_redo:
        s_sub_u32 {s(S_RETRY)}, {s(S_RETRY)}, 1
        s_cbranch_scc1 L_z_ok
        s_waitcnt vmcnt(0)
        """)
        g.stamp('redo')
        for st in range(3):
            wvo_group(g, st)
        unpack_res(g)
        g(f"""
        s_mov_b32 {s(S_WVI)}, 0
        s_branch L_wvo_on
        """)
    g(f"""
    L_p2_redo:
    s_sub_u32 {s(S_RETRY)}, {s(S_RETRY)}, 1
    s_cbranch_scc1 L_p2_give
    s_waitcnt vmcnt(0)
    """)
    g.stamp('redo')
    for x in KL[:24]:
        g(x)
    g(f"""
    s_waitcnt vmcnt(0)
    s_bitcmp0_b32 {s(S_J)}, 3
    s_cbranch_scc1 L_p2_go0
    s_branch L_p2_go1
    L_p2_give:
    s_mov_b32 {s(S_RETRY)}, 0
    s_bitcmp0_b32 {s(S_J)}, 3
    s_cbranch_scc1 L_p2_q_on
    s_branch L_p2_v_on
    L_k_redo:
    s_sub_u32 {s(S_RETRY)}, {s(S_RETRY)}, 1
    s_cbranch_scc1 L_k_ok
    """)
    g.stamp('redo')
    g("s_waitcnt vmcnt(0)")
    for x in KL[24:48]:
        g(x)
    g(f"""
    s_mul_i32 {s(S_T3)}, {s(S_W)}, 3072
    s_sub_u32 {s(S_T3)}, {s(S_Q)}, {s(S_T3)}
    s_mul_i32 {s(S_T0)}, {s(S_W)}, 3
    s_sub_u32 {s(S_RHO)}, {s(S_RHO)}, {s(S_T0)}
    s_mov_b32 {s(S_SPIN)}, 12
    L_q_rw:
    """)
    kpos(g, 0, 1024, L_WVO)
    g(f"""
    s_add_u32 {s(S_T1)}, {s(S_T3)}, 12288
    buffer_load_dwordx4 {v(V_L16)}, {s(SRD_WS,4)}, {s(S_T3)} offen sc1 lds
    s_add_u32 m0, m0, 12288
    s_add_u32 {s(S_T3)}, {s(S_T3)}, 1024
    buffer_load_dwordx4 {v(V_L16)}, {s(SRD_WS,4)}, {s(S_T1)} offen sc1 lds
    s_add_u32 {s(S_RHO)}, {s(S_RHO)}, 1
    s_sub_u32 {s(S_SPIN)}, {s(S_SPIN)}, 1
    s_cmp_lg_u32 {s(S_SPIN)}, 0
    s_cbranch_scc1 L_q_rw
    s_sub_u32 {s(S_T0)}, {s(S_T0)}, 12
    s_add_u32 {s(S_RHO)}, {s(S_RHO)}, {s(S_T0)}
    s_waitcnt vmcnt(0)
    """)
    items = []
    for u in range(2):
        for ks in range(12):
            b = V_BUF + 32 + ((u * 12 + ks) % 8) * 4
            cm = []
            for sl in range(4):
                d = V_ACC + u * 16 + sl * 4
                cm.append(f"v_mfma_f32_16x16x32_bf16 {v(d,4)}, {kreg(sl,ks)}, {v(b,4)}, {'0' if ks == 0 else v(d,4)}")
            items.append(([f"ds_read_b128 {v(b,4)}, {v(V_AD)} offset:{u*12288+ks*1024}"], cm))
    pipelined(g, items, 6)
    g.nop(8)
    g("s_branch L_k_chk")


def epilogue(g):
    g(f"""
    s_or_b32 {s(S_T0)}, s2, {s(S_W)}
    s_cmp_lg_u32 {s(S_T0)}, 0
    s_cbranch_scc1 L_nononce
    s_mov_b64 exec, 1
    buffer_store_dword {v(V_NONCE)}, {v(V_ZERO)}, {s(SRD_WS,4)}, 0 offen
    s_mov_b64 exec, -1
    L_nononce:
    """)
    if g.stamps:
        g(f"""
        s_cmp_lg_u32 {s(S_W)}, 0
        s_cbranch_scc1 L_end
        s_waitcnt vmcnt(0)
        s_memtime s[98:99]
        s_memrealtime s[100:101]
        s_waitcnt lgkmcnt(0)
        s_lshl_b32 {s(S_T0)}, s2, 8
        s_add_u32 {s(S_T0)}, {s(S_T0)}, {WS_STAMP}
        v_mov_b32 {v(V_T1)}, 0
        s_mov_b64 exec, 1
        """)
        for i in range(20):
            g(f"v_mov_b32 {v(V_T0)}, s{S_STAMP+i}")
            g(f"buffer_store_dword {v(V_T0)}, {v(V_T1)}, {s(SRD_WS,4)}, {s(S_T0)} offen offset:{4*i}")
            g("s_nop 1")
    if g.opts.get("dbg", 0):
        g(f"""
        s_cmp_lg_u32 {s(S_W)}, 0
        s_cbranch_scc1 L_end
        s_cmp_ge_u32 {s(S_CS)}, 6
        s_cbranch_scc1 L_end
        s_waitcnt vmcnt(0)
        s_memrealtime s[98:99]
        s_waitcnt lgkmcnt(0)
        s_not_b32 s84, s84
        v_mov_b32 {v(V_T1)}, 0
        s_mov_b64 exec, 1
        """)
        for i in range(8):
            g(f"v_mov_b32 {v(V_T0)}, s{84+2*i}")
            g(f"global_atomic_umax {v(V_T1)}, {v(V_T0)}, s[82:83] offset:{4*i}")
            g("s_nop 1")
    g("L_end:")
    g("s_endpgm")


def build(stamps=False, opts=None):
    g = G(stamps, opts)
    prologue(g)
    p0_issue(g)
    g("s_branch L_main")
    products(g)
    g("L_main:")
    p0_main(g)
    p1(g)
    nk = p2(g)
    p3(g, nk)
    epilogue(g)
    redo_blocks(g)
    products_body(g)
    g("L_code_end:")
    hdr = f"""; TimeSformer divided space-time attention block, one persistent launch (256 workgroups, one per CU).
{('; wsstamp:%d' % WS_STAMP + chr(10)) if stamps else ''}; @launch grid=(256,1,1) block=(256,1,1) lds={LDS_SIZE}
.amdgcn_target "amdgcn-amd-amdhsa--gfx950"
.text
.globl {KNAME}
.p2align 8
.type {KNAME},@function
{KNAME}:
"""
    ftr = f"""
.section .rodata,"a"
.p2align 6
.amdhsa_kernel {KNAME}
  .amdhsa_next_free_vgpr 512
  .amdhsa_next_free_sgpr 102
  .amdhsa_accum_offset 256
  .amdhsa_group_segment_fixed_size 0
  .amdhsa_kernarg_size 64
  .amdhsa_user_sgpr_count 2
  .amdhsa_user_sgpr_kernarg_segment_ptr 1
  .amdhsa_system_sgpr_workgroup_id_x 1
.end_amdhsa_kernel
"""
    return hdr + "\n".join(g.L) + ftr


if __name__ == "__main__":
    out = sys.argv[1]
    stamps = None
    opts = {}
    for x in sys.argv[2:]:
        if x.startswith("--stamps="):
            stamps = ["start"] + x.split("=")[1].split(",")
            assert len(stamps) <= 7
        elif "=" in x:
            k, val = x.split("=")
            opts[k] = int(val)
    open(out, "w").write(build(stamps, opts))
```
